```python
import torch

def _softmax(x, axis=-1):
    return torch.softmax(x, dim=axis)
def _gelu(x):
    return torch.nn.functional.gelu(x, approximate="tanh")
def _silu(x):
    return torch.nn.functional.silu(x)
def _sigmoid(x):
    return torch.sigmoid(x)
def _layernorm(x, axis=-1, eps=1e-5):
    m = x.mean(dim=axis, keepdim=True)
    v = x.var(dim=axis, keepdim=True, unbiased=False)
    return (x - m) / torch.sqrt(v + eps)
def _scatter_add(tgt, idx, src, axis=0):
    return tgt.clone().index_add_(axis, idx, src)
def _segment_sum(src, seg, n):
    out = torch.zeros((n,) + src.shape[1:], dtype=src.dtype)
    return out.index_add_(0, seg, src)
def _pad(x, pw):
    flat = tuple(v for pair in reversed(pw) for v in pair)
    return torch.nn.functional.pad(x, flat)

kernel_name = 'gated_mix__sliding_block__dense_activation_relu__prompt'

def setup_inputs():

    _w = (lambda a: (lambda t: t.to(torch.bfloat16) if t.is_floating_point() else t)(torch.as_tensor(a)))
    def _A_setup():
        B, S, D = 1, 2048, 512
        return {
            "x": _w((lambda *s: torch.randn(*s, dtype=torch.bfloat16) * 0.05)(B, S, D)),
            "wqkv": _w((lambda *s: torch.randn(*s, dtype=torch.bfloat16) * 0.8)(D, 3 * D)),
            "wo": _w((lambda *s: torch.randn(*s, dtype=torch.bfloat16) * 0.05)(D, D)),
        }
    _A_in = _A_setup()

    def _B_setup():
        B, S, D, Dff = 1, 2048, 512, 1376
        return {
            "x": _w((lambda *s: torch.randn(*s, dtype=torch.bfloat16) * 0.05)(B, S, D)),
            "w1": _w((lambda *s: torch.randn(*s, dtype=torch.bfloat16) * 0.05)(D, Dff)),
            "w2": _w((lambda *s: torch.randn(*s, dtype=torch.bfloat16) * 0.05)(Dff, D)),
        }
    _B_in = _B_setup()

    return {
        "A_x": _A_in["x"],
        "A_wqkv": _A_in["wqkv"],
        "A_wo": _A_in["wo"],
        "B_x": _B_in["x"],
        "B_w1": _B_in["w1"],
        "B_w2": _B_in["w2"],
        "gate_w": _w((lambda *s: torch.randn(*s, dtype=torch.bfloat16) * 0.05)(512) * 16.0),
    }

def reference(A_x, A_wqkv, A_wo, B_x, B_w1, B_w2, gate_w):
    def _A_ref(x, wqkv, wo):
        B, S, D = x.shape
        H = 32; Dh = D // H; W = 256
        qkv = (lambda x, *d: x.permute(*d))((x @ wqkv).reshape(B, S, 3, H, Dh), 2, 0, 3, 1, 4)
        q, k, v = qkv[0], qkv[1], qkv[2]
        scores = torch.einsum("bhqd,bhkd->bhqk", q, k) * (Dh ** -0.5)
        idx = torch.arange(S)
        mask = (idx[:, None] - idx[None, :] >= 0) & (idx[:, None] - idx[None, :] < W)
        scores = torch.where(mask[None, None], scores, -1e9)
        p = _softmax(scores, axis=-1)
        o = torch.einsum("bhqk,bhkd->bhqd", p, v)
        return (lambda x, *d: x.permute(*d))(o, 0, 2, 1, 3).reshape(B, S, D) @ wo

    def _B_ref(x, w1, w2):
        h = torch.einsum("bsd,df->bsf", x, w1)
        zero = torch.zeros_like(h)
        h = torch.maximum(h, zero)
        return torch.einsum("bsf,fd->bsd", h, w2)

    x = A_x
    g = _sigmoid((x * gate_w).sum(-1, keepdims=True))
    a = _A_ref(x, A_wqkv, A_wo)
    b = _B_ref(x, B_w1, B_w2)
    return g * a + (1 - g) * b
```

```python
import sys, math, os

NAME = "gated_mix__sliding_block__dense_activation_relu__prompt"

QF = 0x000000
KF = 0x200000
VF = 0x400000
OF = 0x600000
HF = 0x800000
GB = 0xE00000
FL = 0xF00000
TS = 0xF80000
WS_BYTES = 0x1000000
HROW = 86 * 1024
OOB = 0x40000000

SLOT = 16384
AT0 = 6 * SLOT
NW2_PRE = 6

DEBUG_STOP = os.environ.get("GEN_STOP")
STAMPS = os.environ.get("GEN_STAMPS") == "1"

class Asm:
    def __init__(self):
        self.lines = []
        self.vm = []
        self.uid = 0
        self.nstamp = 0
    def e(self, s): self.lines.append("    " + s)
    def label(self, l): self.lines.append(l + ":")
    def c(self, s): self.lines.append("    ; " + s)
    def newlabel(self, p="L"):
        self.uid += 1
        return f"{p}_{self.uid}"
    def vmem(self, s, tag):
        self.e(s); self.vm.append(tag)
    def wait_vm(self, tags):
        if isinstance(tags, str): tags = [tags]
        last = -1
        for i, t in enumerate(self.vm):
            if t in tags: last = i
        if last < 0: return
        n = len(self.vm) - 1 - last
        assert n <= 63
        self.e(f"s_waitcnt vmcnt({n})")
        self.vm = self.vm[last + 1:]
    def wait_vm_all(self):
        self.e("s_waitcnt vmcnt(0)"); self.vm = []

class Lg:
    def __init__(self, a): self.a = a; self.q = []
    def add(self, tag): self.q.append(tag)
    def wait(self, tags):
        last = -1
        for i, t in enumerate(self.q):
            if t in tags: last = i
        if last < 0: return
        n = len(self.q) - 1 - last
        n = min(n, 15)
        self.a.e(f"s_waitcnt lgkmcnt({n})")
        self.q = self.q[len(self.q) - n:] if n else []
    def drain(self):
        if self.q: self.a.e("s_waitcnt lgkmcnt(0)")
        self.q = []

sX, sWQ, sW1, sW2, sWO, sWS, sOUT, sGW, sDBG = 8, 12, 16, 20, 24, 28, 32, 36, 40
def srd(b): return f"s[{b}:{b+3}]"
s_wv, s_rb, s_cg, s_p, s_t, s_rg, s_cgp, s_rb3, s_cb3, s_xbase = range(44, 54)
s_tmp, s_tmp2, s_wideoff, s_naroff = 54, 55, 56, 57
s_nonce = 58
s_tmp3, s_tmp4, s_st0, s_st1, s_first, s_w2off, s_xlds, s_cnt = range(60, 68)
s_exec = 68
s_m = 70; s_m2 = 72; s_m3 = 74
s_ldsw, s_a3, s_a3o, s_qb = 76, 77, 78, 79
s_vm = 80
s_ts = 82
s_tsb = 84
NSGPR = 96

v_lane, v_l16 = 1, 2
v_xo = 3
v_wq_n, v_w1_n, v_wide, v_xrd, v_trn, v_trw, v_tr3, v_w2_n = 7, 8, 9, 10, 11, 12, 13, 14
v_t0, v_t1 = 15, 16
v_hi = 17
v_t2, v_t3 = 18, 19
v_non = 20
v_c2 = 20
v_mc = 22
v_g2 = 24
v_omg2 = 26
v_t4, v_t5 = 28, 29
v_trw2, v_tr3b = 30, 31
MASKF = 32
MASKD = 48
BF = 64
ACC = 96
XF = 128

def vr(b, n): return f"v[{b}:{b+n-1}]"

def stamp(a):
    if not STAMPS: return
    i = a.nstamp; a.nstamp += 1
    a.e(f"s_memtime s[{s_ts}:{s_ts+1}]")
    a.e("s_waitcnt lgkmcnt(0)")
    a.e(f"v_mov_b32 v{v_t4}, s{s_ts}")
    a.e(f"v_mov_b32 v{v_t5}, 0")
    a.e(f"s_mov_b64 s[{s_exec}:{s_exec+1}], exec")
    a.e("s_mov_b64 exec, 1")
    a.e(f"buffer_store_dword v{v_t4}, v{v_t5}, {srd(sWS)}, s{s_tsb} offen offset:{i*4}")
    a.e(f"s_mov_b64 exec, s[{s_exec}:{s_exec+1}]")

def dma(a, voff, srd_b, soff, lds_sgpr, ldsimm, tag, sc1=False):
    a.e(f"s_add_u32 m0, s{lds_sgpr}, {ldsimm}")
    a.e("s_nop 0")
    a.vmem(f"buffer_load_dwordx4 v{voff}, {srd(srd_b)}, {soff} offen{' sc1' if sc1 else ''} lds", tag)

def issue_x_quarter(a, j):
    for t in range(4):
        a.e(f"s_add_u32 s{s_tmp}, s{s_xbase}, {t*4096 + j*256}")
        dma(a, v_xo + t, sX, f"s{s_tmp}", s_xlds, 32768 + 32768*j + t*1024, f"X{j}")

def piece_geom(typ, i):
    if typ == 0:
        wide = i < 8; j = i if wide else i - 8
        srdb = sWQ if wide else sW1
    else:
        wide = i >= 4; j = i - 4 if wide else i
        srdb = sW1 if wide else sWQ
    stride = 3072 if srdb == sWQ else 2752
    return wide, j, srdb, stride

def issue_piece(a, typ, i, slot):
    wide, j, srdb, stride = piece_geom(typ, i)
    for t in range(2):
        if wide:
            a.e(f"s_add_u32 s{s_tmp}, s{s_wideoff}, {(64*j + 4*t) * stride}")
            voff = v_wide
        else:
            a.e(f"s_add_u32 s{s_tmp}, s{s_naroff}, {(128*j + 8*t) * stride}")
            voff = v_wq_n if stride == 3072 else v_w1_n
        dma(a, voff, srdb, f"s{s_tmp}", s_ldsw, slot*SLOT + t*1024, f"P{i}")

def issue_w2_piece(a, i, slot):
    for t in range(2):
        srdb, r0 = (sW2, 128*i) if i <= 10 else (sWO, 128*(i-11))
        a.e(f"s_add_u32 s{s_tmp}, s{s_w2off}, {(r0 + 8*t) * 1024}")
        dma(a, v_w2_n, srdb, f"s{s_tmp}", s_ldsw, slot*SLOT + t*1024, f"Q{i}")

def mfma(a, d, x, y, c):
    cs = c if isinstance(c, str) else vr(c, 16)
    a.e(f"v_mfma_f32_32x32x16_bf16 {vr(d,16)}, {vr(x,4)}, {vr(y,4)}, {cs}")

def compute_piece(a, typ, i, slot, xq):
    wide, j, _, _ = piece_geom(typ, i)
    work = []
    if wide:
        for s in range(4):
            for tl in range(2):
                work.append((4*j + s, tl, slot*SLOT + s*16*256, v_trw2 if tl else v_trw, 4*256))
    else:
        for s in range(8):
            work.append((8*j + s, 0, slot*SLOT + s*16*128, v_trn, 4*128))
    lg = Lg(a)
    def rdx(s):
        a.e(f"v_xor_b32 v{v_t0 + (s & 1)}, {s*32}, v{v_xrd}")
        off = 32768 + 32768*xq
        assert off < 65536 or True
        if off <= 65535:
            a.e(f"ds_read_b128 {vr(XF + (8*xq + s)*4, 4)}, v{v_t0 + (s & 1)} offset:{off}")
        else:
            a.e(f"v_add_u32 v{v_t0 + (s & 1)}, {off}, v{v_t0 + (s & 1)}")
            a.e(f"ds_read_b128 {vr(XF + (8*xq + s)*4, 4)}, v{v_t0 + (s & 1)}")
        lg.add(("x", 8*xq + s))
    hi_base = {}
    def rd(w):
        ks, tl, off, vb, second = work[w]
        b = BF + (w % 8) * 4
        if off + second > 65535:
            key = vb
            if key not in hi_base:
                r = v_t4 if not hi_base else v_t5
                a.e(f"v_add_u32 v{r}, {slot*SLOT}, v{vb}")
                hi_base[key] = r
            vb = hi_base[key]; off -= slot*SLOT
        a.e(f"ds_read_b64_tr_b16 {vr(b,2)}, v{vb} offset:{off}")
        a.e(f"ds_read_b64_tr_b16 {vr(b+2,2)}, v{vb} offset:{off + second}")
        lg.add(("b", w)); lg.add(("b", w))
    D = 3
    xs = list(range(8)) if xq is not None else []
    for s in xs[:2]: rdx(s)
    for w in range(min(D, len(work))): rd(w)
    xi = 2
    for w in range(len(work)):
        if xi < len(xs): rdx(xs[xi]); xi += 1
        if w + D < len(work): rd(w + D)
        ks, tl, off, vb, second = work[w]
        lg.wait([("b", w), ("x", ks)])
        b = BF + (w % 8) * 4
        acc = ACC + 16*tl
        cin = "0" if ks == 0 else acc
        if typ == 0 and wide and tl == 1:
            mfma(a, acc, XF + ks*4, b, cin)
        else:
            mfma(a, acc, b, XF + ks*4, cin)
    lg.drain()

def store_tile(a, acc, soff_sgpr, relu, tag, pk, nop=True):
    if nop:
        a.e("s_nop 7"); a.e("s_nop 3")
    for q in range(8):
        a.e(f"v_cvt_pk_bf16_f32 v{pk+q}, v{acc+2*q}, v{acc+2*q+1}")
    if relu:
        for q in range(8):
            a.e(f"v_pk_max_i16 v{pk+q}, v{pk+q}, 0")
    a.vmem(f"buffer_store_dwordx4 {vr(pk,4)}, v{v_l16}, {srd(sWS)}, s{soff_sgpr} offen sc1", tag)
    a.vmem(f"buffer_store_dwordx4 {vr(pk+4,4)}, v{v_l16}, {srd(sWS)}, s{soff_sgpr} offen offset:1024 sc1", tag)

def signal(a, phase):
    l = a.newlabel("Lsig")
    a.e(f"s_cmp_lg_u32 s{s_wv}, 0")
    a.e(f"s_cbranch_scc1 {l}")
    a.e(f"s_lshl_b32 s{s_tmp}, s{s_rb}, 4")
    a.e(f"s_add_u32 s{s_tmp}, s{s_tmp}, s{s_cg}")
    a.e(f"s_lshl_b32 s{s_tmp}, s{s_tmp}, 7")
    a.e(f"s_add_u32 s{s_tmp}, s{s_tmp}, {FL + phase*32768}")
    a.e(f"v_mov_b32 v{v_t2}, s{s_nonce}")
    a.e(f"v_mov_b32 v{v_t3}, s{s_nonce+1}")
    a.e(f"v_mov_b32 v{v_t4}, 0")
    a.e(f"s_mov_b64 s[{s_exec}:{s_exec+1}], exec")
    a.e("s_mov_b64 exec, 1")
    a.e(f"buffer_store_dwordx2 v[{v_t2}:{v_t3}], v{v_t4}, {srd(sWS)}, s{s_tmp} offen sc1")
    a.e(f"s_mov_b64 exec, s[{s_exec}:{s_exec+1}]")
    a.label(l)

def poll(a, voff):
    lp = a.newlabel("Lpoll"); ld = a.newlabel("Lpolld")
    a.e(f"s_mov_b32 s{s_cnt}, 0")
    a.label(lp)
    a.e(f"buffer_load_dwordx2 v[{v_t2}:{v_t3}], v{voff}, {srd(sWS)}, 0 offen sc1")
    a.e("s_waitcnt vmcnt(0)")
    a.e(f"v_cmp_eq_u32 s[{s_m2}:{s_m2+1}], s{s_nonce}, v{v_t2}")
    a.e(f"v_cmp_eq_u32 s[{s_m3}:{s_m3+1}], s{s_nonce+1}, v{v_t3}")
    a.e("s_nop 3")
    a.e(f"s_and_b64 s[{s_m2}:{s_m2+1}], s[{s_m2}:{s_m2+1}], s[{s_m3}:{s_m3+1}]")
    a.e(f"s_and_b64 s[{s_m2}:{s_m2+1}], s[{s_m2}:{s_m2+1}], s[{s_m}:{s_m+1}]")
    a.e(f"s_cmp_eq_u64 s[{s_m2}:{s_m2+1}], s[{s_m}:{s_m+1}]")
    a.e(f"s_cbranch_scc1 {ld}")
    a.e("s_sleep 2")
    a.e(f"s_add_u32 s{s_cnt}, s{s_cnt}, 1")
    a.e(f"s_cmp_lt_u32 s{s_cnt}, 100000")
    a.e(f"s_cbranch_scc1 {lp}")
    a.label(ld)
    a.vm = []

def get_nonce_wave0(a):
    l = a.newlabel("Lnon")
    a.e(f"s_cmp_lg_u32 s{s_wv}, 0")
    a.e(f"s_cbranch_scc1 {l}")
    a.e(f"v_readfirstlane_b32 s{s_tmp}, v{v_non}")
    a.e(f"v_readfirstlane_b32 s{s_tmp2}, v{v_non+1}")
    a.e("s_nop 3")
    a.e(f"s_cmp_eq_u32 s{s_tmp}, 0")
    a.e(f"s_cselect_b32 s{s_nonce}, s{s_nonce}, s{s_tmp}")
    a.e(f"s_cselect_b32 s{s_nonce+1}, s{s_nonce+1}, s{s_tmp2}")
    a.label(l)

def stage1(a, typ):
    a.c(f"================ stage 1 type {'AB'[typ]} ================")
    slot_of = {0: 0, 1: 1}
    sched = {
        1: [("P", 2, 0), ("P", 3, 2), ("P", 4, 3)],
        2: [("P", 5, 1), ("P", 6, 4), ("P", 7, 5)],
        3: [("P", 8, 6), ("P", 9, 7), ("Q", 0, 0)],
        4: [("P", 10, 8), ("P", 11, 9), ("Q", 1, 2)],
        5: [("Q", 2, 3)], 6: [("Q", 3, 1)], 7: [("Q", 4, 4)], 8: [("Q", 5, 5)],
    }
    w2_slot = {}
    sigstep = 8 if typ == 0 else 4
    for step in range(12):
        need = [f"P{step}"] + ([f"X{step}"] if step < 4 else [])
        if step == sigstep: need.append("ST0")
        a.wait_vm(need)
        a.e("s_barrier")
        if step == 4: get_nonce_wave0(a)
        if step == sigstep: signal(a, 0)
        for kind, pc, sl in sched.get(step, []):
            if kind == "P":
                slot_of[pc] = sl; issue_piece(a, typ, pc, sl)
            else:
                w2_slot[pc] = sl; issue_w2_piece(a, pc, sl)
        compute_piece(a, typ, step, slot_of[step], step if step < 4 else None)
        if typ == 0 and step == 7:
            store_tile(a, ACC, s_st0, False, "ST0", BF)
            a.e(f"s_add_u32 s{s_tmp3}, s{s_st0}, {VF - KF}")
            store_tile(a, ACC + 16, s_tmp3, False, "ST0", BF + 8, nop=False)
        if typ == 1 and step == 3:
            store_tile(a, ACC, s_st0, False, "ST0", BF)
        if step == 11:
            store_tile(a, ACC, s_st1, True, "ST1", BF)
            if typ == 1:
                a.e(f"s_add_u32 s{s_tmp3}, s{s_st1}, 4096")
                store_tile(a, ACC + 16, s_tmp3, True, "ST1", BF + 8, nop=False)
    return w2_slot

def common_setup(a):
    e = a.e
    l = a.newlabel("Lcas")
    e(f"s_or_b32 s{s_nonce}, s{s_nonce}, 1")
    e(f"s_cmp_lg_u32 s{s_wv}, 0")
    e(f"s_cbranch_scc1 {l}")
    e(f"v_mov_b32 v{v_non}, s{s_nonce}")
    e(f"v_mov_b32 v{v_non+1}, s{s_nonce+1}")
    e(f"v_mov_b32 v{v_non+2}, 0")
    e(f"v_mov_b32 v{v_non+3}, 0")
    e(f"v_mov_b32 v{v_t4}, 0")
    e(f"s_mov_b64 s[{s_exec}:{s_exec+1}], exec")
    e("s_mov_b64 exec, 1")
    e(f"buffer_atomic_cmpswap_x2 {vr(v_non,4)}, v{v_t4}, {srd(sDBG)}, 0 offen sc0 sc1")
    e(f"s_mov_b64 exec, s[{s_exec}:{s_exec+1}]")
    a.label(l)
    e(f"v_and_b32 v{v_t0}, 31, v{v_lane}")
    e(f"v_lshrrev_b32 v{v_hi}, 5, v{v_lane}")
    e(f"v_and_b32 v{v_t1}, 15, v{v_lane}")
    e(f"v_xor_b32 v{v_t1}, v{v_t1}, v{v_hi}")
    e(f"v_lshlrev_b32 v{v_t1}, 4, v{v_t1}")
    e(f"v_lshl_add_u32 v{v_xrd}, v{v_t0}, 8, v{v_t1}")
    e(f"s_lshl_b32 s{s_tmp}, s{s_rg}, 13")
    e(f"v_add_u32 v{v_xrd}, s{s_tmp}, v{v_xrd}")
    e(f"v_and_b32 v{v_t0}, 15, v{v_lane}")
    e(f"v_lshrrev_b32 v{v_t1}, 2, v{v_t0}")
    e(f"v_bfe_u32 v{v_t2}, v{v_lane}, 4, 1")
    e(f"v_bfe_u32 v{v_t3}, v{v_lane}, 1, 1")
    e(f"v_lshl_add_u32 v{v_t2}, v{v_t2}, 1, v{v_t3}")
    e(f"v_and_b32 v{v_t3}, 1, v{v_lane}")
    e(f"v_lshlrev_b32 v{v_t3}, 3, v{v_t3}")
    e(f"v_lshl_add_u32 v{v_t2}, v{v_t2}, 4, v{v_t3}")
    e(f"v_lshrrev_b32 v{v_t3}, 1, v{v_t1}")
    e(f"v_xor_b32 v{v_t4}, s{s_cgp}, v{v_t3}")
    e(f"v_lshl_add_u32 v{v_t4}, v{v_t4}, 6, v{v_t2}")
    e(f"v_lshl_add_u32 v{v_t5}, v{v_hi}, 3, v{v_t1}")
    e(f"v_lshl_add_u32 v{v_trn}, v{v_t5}, 7, v{v_t4}")
    e(f"v_xor_b32 v{v_t4}, s{s_cgp}, v{v_t1}")
    e(f"v_lshl_add_u32 v{v_t4}, v{v_t4}, 6, v{v_t2}")
    e(f"v_lshl_add_u32 v{v_trw}, v{v_t5}, 8, v{v_t4}")
    e(f"v_xor_b32 v{v_trw2}, 128, v{v_trw}")
    e(f"v_lshl_add_u32 v{v_t4}, v{v_t3}, 6, v{v_t2}")
    e(f"v_lshl_add_u32 v{v_t5}, v{v_hi}, 2, v{v_t1}")
    e(f"v_lshl_add_u32 v{v_tr3}, v{v_t5}, 7, v{v_t4}")
    e(f"s_lshl_b32 s{s_tmp}, s{s_rg}, 11")
    e(f"v_add_u32 v{v_tr3}, s{s_tmp}, v{v_tr3}")
    e(f"v_xor_b32 v{v_tr3b}, 64, v{v_tr3}")
    e(f"v_and_b32 v{v_t0}, 31, v{v_lane}")
    e(f"v_lshlrev_b32 v{v_t1}, 2, v{v_hi}")
    e(f"v_sub_u32 v{v_t0}, v{v_t0}, v{v_t1}")
    e(f"v_mov_b32 v{v_t1}, 0xf149f2ca")
    e(f"v_mov_b32 v{v_t2}, 0")
    for r in range(16):
        cr = (r & 3) + 8 * (r >> 2)
        e(f"v_cmp_le_i32 vcc, {cr}, v{v_t0}")
        e("s_nop 1")
        e(f"v_cndmask_b32 v{MASKD+r}, v{v_t1}, v{v_t2}, vcc")
        e(f"v_cndmask_b32 v{MASKF+r}, v{v_t2}, v{v_t1}, vcc")

def gate(a):
    e = a.e
    l = a.newlabel("Lgate")
    e(f"s_cmp_lg_u32 s{s_p}, 6")
    e(f"s_cbranch_scc1 {l}")
    e(f"s_cmp_lg_u32 s{s_cgp}, 0")
    e(f"s_cbranch_scc1 {l}")
    e(f"v_lshlrev_b32 v{v_t0}, 4, v{v_hi}")
    for rnd in range(4):
        for s in range(8):
            e(f"buffer_load_dwordx4 {vr(BF+4*s,4)}, v{v_t0}, {srd(sGW)}, 0 offen offset:{(8*rnd+s)*32}")
        e("s_waitcnt vmcnt(0)")
        for s in range(8):
            ks = 8*rnd + s
            mfma(a, ACC, BF + 4*s, XF + 4*ks, "0" if ks == 0 else ACC)
    e("s_nop 7"); e("s_nop 3")
    e(f"v_cvt_pk_bf16_f32 v{v_t1}, v{ACC}, v{ACC}")
    e(f"v_lshlrev_b32 v{v_t1}, 16, v{v_t1}")
    e(f"v_mul_f32 v{v_t1}, 0xbfb8aa3b, v{v_t1}")
    e(f"v_exp_f32 v{v_t1}, v{v_t1}")
    e("s_nop 0")
    e(f"v_add_f32 v{v_t1}, 1.0, v{v_t1}")
    e(f"v_rcp_f32 v{v_t1}, v{v_t1}")
    e("s_nop 0")
    e(f"v_cvt_pk_bf16_f32 v{v_t1}, v{v_t1}, v{v_t1}")
    e(f"v_lshlrev_b32 v{v_t1}, 16, v{v_t1}")
    e(f"v_lshlrev_b32 v{v_t0}, 2, v{v_lane}")
    e(f"s_lshl_b32 s{s_tmp}, s{s_rb}, 2")
    e(f"s_add_u32 s{s_tmp}, s{s_tmp}, s{s_rg}")
    e(f"s_lshl_b32 s{s_tmp}, s{s_tmp}, 7")
    e(f"s_add_u32 s{s_tmp}, s{s_tmp}, {GB}")
    e(f"s_mov_b64 s[{s_exec}:{s_exec+1}], exec")
    e("s_mov_b32 exec_lo, -1")
    e("s_mov_b32 exec_hi, 0")
    e(f"buffer_store_dword v{v_t1}, v{v_t0}, {srd(sWS)}, s{s_tmp} offen sc1")
    e(f"s_mov_b64 exec, s[{s_exec}:{s_exec+1}]")
    a.label(l)

def Sreg(b):
    if b == 0: return MASKF
    if b == 8: return MASKD
    return 64 + 16*(b-1)
KFR = 176; QFR = 212; VROT = 216; OACC = 232
v_max = 248; v_max2 = 249; v_vrd = 250; v_krd = 251

def attention(a):
    e = a.e
    a.c("================ attention ================")
    l = a.newlabel("Lnl")
    e(f"s_cmp_eq_u32 s{s_wv}, 0")
    e(f"s_cbranch_scc1 {l}")
    e(f"v_mov_b32 v{v_t4}, 0")
    e(f"buffer_load_dwordx2 v[{v_t2}:{v_t3}], v{v_t4}, {srd(sDBG)}, 0 offen sc1")
    e("s_waitcnt vmcnt(0)")
    e(f"v_readfirstlane_b32 s{s_nonce}, v{v_t2}")
    e(f"v_readfirstlane_b32 s{s_nonce+1}, v{v_t3}")
    e("s_nop 3")
    a.label(l)
    e(f"s_lshl_b32 s{s_tmp}, s{s_rb}, 4")
    e(f"s_lshl_b32 s{s_tmp2}, s{s_p}, 1")
    e(f"s_add_u32 s{s_tmp}, s{s_tmp}, s{s_tmp2}")
    e(f"v_lshlrev_b32 v{v_t0}, 4, v{v_lane}")
    e(f"v_sub_u32 v{v_t0}, s{s_tmp}, v{v_t0}")
    e(f"s_add_u32 s{s_tmp2}, s{s_tmp}, 1")
    e(f"v_mov_b32 v{v_t1}, s{s_tmp2}")
    e(f"v_cmp_eq_u32 vcc, 3, v{v_lane}")
    e("s_nop 1")
    e(f"v_cndmask_b32 v{v_t0}, v{v_t0}, v{v_t1}, vcc")
    e(f"v_and_b32 v{v_t0}, 255, v{v_t0}")
    e(f"v_lshlrev_b32 v{v_t0}, 7, v{v_t0}")
    e(f"v_add_u32 v{v_t0}, {FL}, v{v_t0}")
    e(f"s_mov_b32 s{s_m}, 15")
    e(f"s_cmp_eq_u32 s{s_rb}, 1")
    e(f"s_cselect_b32 s{s_m}, 11, s{s_m}")
    e(f"s_cmp_eq_u32 s{s_rb}, 0")
    e(f"s_cselect_b32 s{s_m}, 9, s{s_m}")
    e(f"s_mov_b32 s{s_m+1}, 0")
    poll(a, v_t0)
    stamp(a)
    e(f"s_lshl_b32 s{s_tmp3}, s{s_cg}, 6")
    e(f"s_lshl_b32 s{s_tmp4}, s{s_rb}, 2")
    e(f"s_add_u32 s{s_tmp3}, s{s_tmp3}, s{s_tmp4}")
    e(f"s_lshl_b32 s{s_tmp3}, s{s_tmp3}, 11")
    e(f"s_mul_i32 s{s_tmp4}, s{s_wv}, 3072")
    e(f"s_add_u32 s{s_tmp2}, s{s_tmp3}, s{s_tmp4}")
    for i in range(3):
        e(f"s_add_u32 s{s_tmp}, s{s_tmp2}, {KF - 16384 + i*1024}")
        dma(a, v_l16, sWS, f"s{s_tmp}", s_tmp4, AT0 + i*1024, "AK", sc1=True)
    e(f"s_lshl_b32 s{s_tmp}, s{s_wv}, 10")
    e(f"s_add_u32 s{s_a3}, s{s_tmp3}, s{s_tmp}")
    e(f"s_add_u32 s{s_a3}, s{s_a3}, {QF}")
    dma(a, v_l16, sWS, f"s{s_a3}", s_tmp, AT0 + 49152, "AK", sc1=True)
    for i in range(3):
        e(f"s_add_u32 s{s_tmp}, s{s_tmp2}, {VF - 16384 + i*1024}")
        dma(a, v_l16, sWS, f"s{s_tmp}", s_tmp4, AT0 + 24576 + i*1024, "AV", sc1=True)
    e(f"s_lshl_b32 s{s_tmp}, s{s_rg}, 11")
    e(f"s_lshl_b32 s{s_tmp2}, s{s_cgp}, 10")
    e(f"s_add_u32 s{s_tmp2}, s{s_tmp2}, s{s_tmp}")
    e(f"s_add_u32 s{s_tmp2}, s{s_tmp2}, {AT0}")
    e(f"v_add_u32 v{v_krd}, s{s_tmp2}, v{v_l16}")
    e(f"s_lshl_b32 s{s_tmp2}, s{s_cgp}, 8")
    e(f"s_add_u32 s{s_tmp2}, s{s_tmp2}, s{s_tmp}")
    e(f"s_add_u32 s{s_tmp2}, s{s_tmp2}, {AT0 + 24576}")
    e(f"v_add_u32 v{v_vrd}, s{s_tmp2}, v{v_l16}")
    e(f"s_lshl_b32 s{s_qb}, s{s_rb}, 2")
    e(f"s_add_u32 s{s_qb}, s{s_qb}, s{s_rg}")
    e(f"s_sub_i32 s{s_first}, 8, s{s_qb}")
    e(f"s_max_i32 s{s_first}, s{s_first}, 0")
    e(f"s_mov_b32 s{s_vm}, 0xffff")
    e(f"s_mov_b32 s{s_vm+1}, 0xffff")
    for i in range(16):
        e(f"v_mov_b32 v{VROT+i}, 0x3f803f80")
    c = 0.25 * math.log2(math.e)
    import struct
    cbits = struct.unpack("<I", struct.pack("<f", c))[0]
    e(f"v_mov_b32 v{v_c2}, 0x{cbits:08x}")
    e(f"v_mov_b32 v{v_c2+1}, 0x{cbits:08x}")
    a.wait_vm("AK")
    e("s_barrier")
    stamp(a)
    lg = Lg(a)
    e(f"ds_read_b128 {vr(QFR,4)}, v{v_krd} offset:49152"); lg.add("q")
    for b in range(8, -1, -1):
        e(f"ds_read_b128 {vr(KFR+4*b,4)}, v{v_krd} offset:{b*2048}"); lg.add(("k", b))
    for b in range(8, -1, -1):
        lg.wait(["q", ("k", b)])
        S = Sreg(b)
        mfma(a, S, KFR + 4*b, QFR, S if b in (0, 8) else "0")
    lmax = a.newlabel("Lmaxd")
    e("s_nop 4")
    for b in range(8, -1, -1):
        S = Sreg(b)
        if b < 8:
            e(f"s_cmp_gt_u32 s{s_first}, {b}")
            e(f"s_cbranch_scc1 {lmax}")
        if b <= 1:
            e("s_nop 7"); e("s_nop 3")
        for q in range(8):
            if b == 8 and q == 0:
                e(f"v_max_f32 v{v_max}, v{S}, v{S+1}")
            else:
                e(f"v_max3_f32 v{v_max}, v{S+2*q}, v{S+2*q+1}, v{v_max}")
    a.label(lmax)
    e(f"v_mov_b32 v{v_max2}, v{v_max}")
    e("s_nop 1")
    e(f"v_permlane32_swap_b32 v{v_max}, v{v_max2}")
    e("s_nop 1")
    e(f"v_max_f32 v{v_max}, v{v_max}, v{v_max2}")
    e(f"v_mul_f32 v{v_mc}, v{v_c2}, v{v_max}")
    e(f"v_sub_f32 v{v_mc}, 0, v{v_mc}")
    e(f"v_mov_b32 v{v_mc+1}, v{v_mc}")
    a.wait_vm("AV")
    e("s_barrier")
    lg = Lg(a)
    def vread(n):
        b = 8 - n//2; m = n % 2
        e(f"ds_read_b128 {vr(VROT + 4*(n%4), 4)}, v{v_vrd} offset:{b*2048 + m*1024}")
        lg.add(("v", n))
    e(f"s_mov_b64 exec, s[{s_vm}:{s_vm+1}]")
    vread(0); vread(1)
    e("s_mov_b64 exec, -1")
    lpv = a.newlabel("Lpvd")
    for b in range(8, -1, -1):
        S = Sreg(b)
        n0 = 2*(8 - b)
        if b < 8:
            e(f"s_cmp_gt_u32 s{s_first}, {b}")
            e(f"s_cbranch_scc1 {lpv}")
        if b > 0:
            e(f"s_mov_b64 exec, s[{s_vm}:{s_vm+1}]")
            vread(n0 + 2); vread(n0 + 3)
            e("s_mov_b64 exec, -1")
        for q in range(8):
            e(f"v_pk_fma_f32 v[{S+2*q}:{S+2*q+1}], v[{S+2*q}:{S+2*q+1}], v[{v_c2}:{v_c2+1}], v[{v_mc}:{v_mc+1}]")
        for r in range(16):
            e(f"v_exp_f32 v{S+r}, v{S+r}")
        for q in range(8):
            e(f"v_cvt_pk_bf16_f32 v{S+q}, v{S+2*q}, v{S+2*q+1}")
        lg.wait([("v", n0), ("v", n0+1)])
        e("s_nop 0")
        mfma(a, OACC, VROT + 4*(n0 % 4), S, "0" if b == 8 else OACC)
        mfma(a, OACC, VROT + 4*((n0+1) % 4), S + 4, OACC)
    a.label(lpv)
    e("s_waitcnt lgkmcnt(0)")
    e("s_nop 7"); e("s_nop 3")
    e(f"v_rcp_f32 v{v_max}, v{OACC+8}")
    e("s_nop 0")
    for r in range(8):
        e(f"v_mul_f32 v{OACC+r}, v{OACC+r}, v{v_max}")
    for q in range(4):
        e(f"v_cvt_pk_bf16_f32 v{OACC+q}, v{OACC+2*q}, v{OACC+2*q+1}")
    e(f"s_lshl_b32 s{s_tmp}, s{s_qb}, 15")
    e(f"s_lshl_b32 s{s_tmp2}, s{s_cg}, 1")
    e(f"s_add_u32 s{s_tmp2}, s{s_tmp2}, s{s_cgp}")
    e(f"s_lshl_b32 s{s_tmp2}, s{s_tmp2}, 10")
    e(f"s_add_u32 s{s_tmp}, s{s_tmp}, s{s_tmp2}")
    e(f"s_add_u32 s{s_tmp}, s{s_tmp}, {OF}")
    a.vmem(f"buffer_store_dwordx4 {vr(OACC,4)}, v{v_l16}, {srd(sWS)}, s{s_tmp} offen sc1", "ST2")
    stamp(a)

AF = 64
AO = 152
ACB = 184
ACA = 216
BF3 = 32

def flags16(a, phase):
    e = a.e
    e(f"s_lshr_b32 s{s_tmp}, s{s_rb3}, 1")
    e(f"s_lshl_b32 s{s_tmp}, s{s_tmp}, 11")
    e(f"s_add_u32 s{s_tmp}, s{s_tmp}, {FL + phase*32768}")
    e(f"v_and_b32 v{v_t0}, 15, v{v_lane}")
    e(f"v_lshlrev_b32 v{v_t0}, 7, v{v_t0}")
    e(f"v_add_u32 v{v_t0}, s{s_tmp}, v{v_t0}")
    e(f"s_mov_b32 s{s_m}, 0xffff")
    e(f"s_mov_b32 s{s_m+1}, 0")

def compute3(a, pieces, slot_of, cnt):
    e = a.e
    work = []
    for pc in pieces:
        for u in range(2):
            if pc <= 10: af = AF + 4*(2*pc + u); tag = f"H{2*pc+u}"; acc = ACB; first = (pc == 0 and u == 0)
            else: af = AO + 4*(2*(pc-11) + u); tag = f"O{2*(pc-11)+u}"; acc = ACA; first = (pc == 11 and u == 0)
            for ct in range(2):
                work.append((slot_of[pc], u, ct, af, tag, acc + 16*ct, first))
    lg = Lg(a)
    cur = {}
    def rd(w):
        sl, u, ct, af, tag, acc, first = work[w]
        vb = v_tr3b if ct else v_tr3
        off = sl*SLOT + u*8192
        if off + 1024 > 65535:
            r = v_t5 if ct else v_t4
            if cur.get(ct) != sl:
                e(f"v_add_u32 v{r}, {sl*SLOT}, v{vb}")
                cur[ct] = sl
            vb = r; off = u*8192
        b = BF3 + ((cnt[0] + w) % 8)*4
        e(f"ds_read_b64_tr_b16 {vr(b,2)}, v{vb} offset:{off}")
        e(f"ds_read_b64_tr_b16 {vr(b+2,2)}, v{vb} offset:{off + 1024}")
        lg.add(w); lg.add(w)
    D = 3
    for w in range(min(D, len(work))): rd(w)
    for w in range(len(work)):
        if w + D < len(work): rd(w + D)
        sl, u, ct, af, tag, acc, first = work[w]
        a.wait_vm(tag)
        lg.wait([w])
        b = BF3 + ((cnt[0] + w) % 8)*4
        mfma(a, acc, b, af, "0" if first else acc)
    cnt[0] += len(work)
    lg.drain()

def stage3(a, w2_slot):
    e = a.e
    a.c("================ stage 3 ================")
    slot_of = dict(w2_slot)
    flags16(a, 1)
    poll(a, v_t0)
    stamp(a)
    e(f"s_lshl_b32 s{s_tmp3}, s{s_rb3}, 1")
    e(f"s_add_u32 s{s_tmp3}, s{s_tmp3}, s{s_cgp}")
    e(f"s_mul_i32 s{s_a3}, s{s_tmp3}, {HROW}")
    e(f"s_lshl_b32 s{s_tmp}, s{s_rg}, 10")
    e(f"s_add_u32 s{s_a3}, s{s_a3}, s{s_tmp}")
    e(f"s_add_u32 s{s_a3}, s{s_a3}, {HF}")
    e(f"s_lshl_b32 s{s_a3o}, s{s_tmp3}, 15")
    e(f"s_add_u32 s{s_a3o}, s{s_a3o}, s{s_tmp}")
    e(f"s_add_u32 s{s_a3o}, s{s_a3o}, {OF}")
    for n in range(22):
        e(f"s_add_u32 s{s_tmp}, s{s_a3}, {n*4096}")
        if n == 21:
            e(f"s_cmp_ge_u32 s{s_rg}, 2")
            e(f"s_cselect_b32 s{s_tmp}, {OOB}, s{s_tmp}")
        a.vmem(f"buffer_load_dwordx4 {vr(AF+4*n,4)}, v{v_l16}, {srd(sWS)}, s{s_tmp} offen sc1", f"H{n}")
    e(f"v_and_b32 v{v_t0}, 31, v{v_lane}")
    e(f"v_lshlrev_b32 v{v_t0}, 2, v{v_t0}")
    e(f"s_lshl_b32 s{s_tmp}, s{s_tmp3}, 7")
    e(f"s_add_u32 s{s_tmp}, s{s_tmp}, {GB}")
    a.vmem(f"buffer_load_dword v{v_g2}, v{v_t0}, {srd(sWS)}, s{s_tmp} offen sc1", "G")
    e("s_barrier")
    signal(a, 2)
    for i, pc in enumerate(range(6, 10)):
        slot_of[pc] = 6 + i; issue_w2_piece(a, pc, 6 + i)
    cnt = [0]
    compute3(a, [0, 1, 2, 3, 4, 5], slot_of, cnt)
    a.wait_vm(["Q6", "Q7", "Q8", "Q9"])
    e("s_barrier")
    stamp(a)
    free = [slot_of[p] for p in range(5)]
    for i, pc in enumerate(range(10, 15)):
        slot_of[pc] = free[i]; issue_w2_piece(a, pc, free[i])
    compute3(a, [6, 7, 8, 9], slot_of, cnt)
    flags16(a, 2)
    poll(a, v_t0)
    stamp(a)
    for n in range(8):
        e(f"s_add_u32 s{s_tmp}, s{s_a3o}, {n*4096}")
        a.vmem(f"buffer_load_dwordx4 {vr(AO+4*n,4)}, v{v_l16}, {srd(sWS)}, s{s_tmp} offen sc1", f"O{n}")
    e("s_barrier")
    compute3(a, [10, 11, 12, 13, 14], slot_of, cnt)
    stamp(a)
    e(f"v_sub_f32 v{v_omg2}, 1.0, v{v_g2}")
    e(f"v_cvt_pk_bf16_f32 v{v_omg2}, v{v_omg2}, v{v_omg2}")
    e(f"v_lshlrev_b32 v{v_omg2}, 16, v{v_omg2}")
    e(f"v_mov_b32 v{v_omg2+1}, v{v_omg2}")
    e(f"v_mov_b32 v{v_g2+1}, v{v_g2}")
    e(f"v_and_b32 v{v_t0}, 31, v{v_lane}")
    e(f"s_movk_i32 s{s_tmp}, 272")
    e(f"v_mul_u32_u24 v{v_t0}, s{s_tmp}, v{v_t0}")
    e(f"v_lshl_add_u32 v{v_t0}, v{v_hi}, 4, v{v_t0}")
    e(f"s_mul_i32 s{s_tmp}, s{s_rg}, 17408")
    e(f"s_mul_i32 s{s_tmp2}, s{s_cgp}, {32*272}")
    e(f"s_add_u32 s{s_tmp}, s{s_tmp}, s{s_tmp2}")
    e(f"v_add_u32 v{v_t0}, s{s_tmp}, v{v_t0}")
    e("s_nop 7")
    for q in range(16):
        e(f"v_pk_mul_f32 v[{ACB+2*q}:{ACB+2*q+1}], v[{ACB+2*q}:{ACB+2*q+1}], v[{v_omg2}:{v_omg2+1}]")
    for q in range(16):
        e(f"v_pk_fma_f32 v[{ACB+2*q}:{ACB+2*q+1}], v[{ACA+2*q}:{ACA+2*q+1}], v[{v_g2}:{v_g2+1}], v[{ACB+2*q}:{ACB+2*q+1}]")
    e("s_barrier")
    for ct in range(2):
        for g4 in range(4):
            e(f"ds_write_b128 v{v_t0}, {vr(ACB + 16*ct + 4*g4, 4)} offset:{ct*128 + g4*32}")
    e("s_waitcnt lgkmcnt(0)")
    e("s_barrier")
    e(f"v_lshrrev_b32 v{v_t0}, 3, v0")
    e(f"v_and_b32 v{v_t1}, 7, v0")
    e(f"s_movk_i32 s{s_tmp}, 272")
    e(f"v_mul_u32_u24 v{v_t2}, s{s_tmp}, v{v_t0}")
    e(f"v_lshl_add_u32 v{v_t2}, v{v_t1}, 5, v{v_t2}")
    for kq in range(4):
        e(f"ds_read_b128 {vr(64 + 8*kq, 4)}, v{v_t2} offset:{kq*17408}")
        e(f"ds_read_b128 {vr(68 + 8*kq, 4)}, v{v_t2} offset:{kq*17408 + 16}")
    e(f"v_lshlrev_b32 v{v_t0}, 10, v{v_t0}")
    e(f"v_lshl_add_u32 v{v_t0}, v{v_t1}, 4, v{v_t0}")
    e(f"s_lshl_b32 s{s_tmp}, s{s_rb3}, 16")
    e(f"s_lshl_b32 s{s_tmp2}, s{s_cb3}, 7")
    e(f"s_add_u32 s{s_tmp}, s{s_tmp}, s{s_tmp2}")
    e("s_waitcnt lgkmcnt(0)")
    for q in range(4):
        e(f"v_pk_add_f32 v[{64+2*q}:{65+2*q}], v[{64+2*q}:{65+2*q}], v[{72+2*q}:{73+2*q}]")
        e(f"v_pk_add_f32 v[{80+2*q}:{81+2*q}], v[{80+2*q}:{81+2*q}], v[{88+2*q}:{89+2*q}]")
    for q in range(4):
        e(f"v_pk_add_f32 v[{64+2*q}:{65+2*q}], v[{64+2*q}:{65+2*q}], v[{80+2*q}:{81+2*q}]")
    for q in range(4):
        e(f"v_cvt_pk_bf16_f32 v{64+q}, v{64+2*q}, v{65+2*q}")
    e(f"buffer_store_dwordx4 v[64:67], v{v_t0}, {srd(sOUT)}, s{s_tmp} offen")
    stamp(a)

def gen():
    a = Asm()
    e = a.e
    e("s_cmp_ge_u32 s2, 256")
    e("s_cbranch_scc1 L_exit")
    e("s_load_dwordx4 s[8:11], s[0:1], 0")
    e("s_load_dwordx2 s[24:25], s[0:1], 16")
    e("s_load_dwordx4 s[16:19], s[0:1], 32")
    e("s_load_dwordx4 s[36:39], s[0:1], 48")
    e("s_load_dwordx4 s[40:43], s[0:1], 64")
    e(f"s_memrealtime s[{s_nonce}:{s_nonce+1}]")
    e(f"v_and_b32 v{v_lane}, 63, v0")
    e(f"v_lshrrev_b32 v{v_t0}, 6, v0")
    e(f"v_lshlrev_b32 v{v_l16}, 4, v{v_lane}")
    e(f"v_readfirstlane_b32 s{s_wv}, v{v_t0}")
    e(f"s_and_b32 s{s_tmp}, s2, 7")
    e(f"s_lshr_b32 s{s_tmp2}, s2, 3")
    e(f"s_and_b32 s{s_rb}, s{s_tmp}, 1")
    e(f"s_lshl_b32 s{s_rb}, s{s_rb}, 3")
    e(f"s_and_b32 s{s_tmp3}, s{s_tmp2}, 7")
    e(f"s_add_u32 s{s_rb}, s{s_rb}, s{s_tmp3}")
    e(f"s_lshr_b32 s{s_cg}, s{s_tmp}, 1")
    e(f"s_lshl_b32 s{s_cg}, s{s_cg}, 2")
    e(f"s_lshr_b32 s{s_tmp3}, s{s_tmp2}, 3")
    e(f"s_add_u32 s{s_cg}, s{s_cg}, s{s_tmp3}")
    e(f"s_lshr_b32 s{s_p}, s{s_cg}, 1")
    e(f"s_and_b32 s{s_t}, s{s_cg}, 1")
    e(f"s_lshl_b32 s{s_rb3}, s{s_tmp}, 2")
    e(f"s_and_b32 s{s_tmp3}, s{s_tmp2}, 3")
    e(f"s_add_u32 s{s_rb3}, s{s_rb3}, s{s_tmp3}")
    e(f"s_lshr_b32 s{s_cb3}, s{s_tmp2}, 2")
    e(f"s_and_b32 s{s_rg}, s{s_wv}, 3")
    e(f"s_lshr_b32 s{s_cgp}, s{s_wv}, 2")
    e(f"s_lshl_b32 s{s_ldsw}, s{s_wv}, 11")
    e(f"s_lshl_b32 s{s_xlds}, s{s_wv}, 12")
    e(f"s_lshl_b32 s{s_xbase}, s{s_rb}, 17")
    e(f"s_lshl_b32 s{s_tmp3}, s{s_wv}, 14")
    e(f"s_add_u32 s{s_xbase}, s{s_xbase}, s{s_tmp3}")
    if STAMPS:
        e(f"s_lshl_b32 s{s_tsb}, s2, 3")
        e(f"s_add_u32 s{s_tsb}, s{s_tsb}, s{s_wv}")
        e(f"s_lshl_b32 s{s_tsb}, s{s_tsb}, 7")
        e(f"s_add_u32 s{s_tsb}, s{s_tsb}, {TS}")
    e(f"v_lshrrev_b32 v{v_t0}, 4, v{v_lane}")
    e(f"v_and_b32 v{v_t1}, 15, v{v_lane}")
    e(f"v_xor_b32 v{v_t1}, v{v_t1}, v{v_t0}")
    e(f"v_lshlrev_b32 v{v_t0}, 10, v{v_t0}")
    for t in range(4):
        e(f"v_xor_b32 v{v_t2}, {4*t}, v{v_t1}")
        e(f"v_lshl_add_u32 v{v_xo+t}, v{v_t2}, 4, v{v_t0}")
    e(f"v_lshrrev_b32 v{v_t0}, 3, v{v_lane}")
    e(f"v_and_b32 v{v_t1}, 7, v{v_lane}")
    e(f"v_lshrrev_b32 v{v_t2}, 2, v{v_lane}")
    e(f"v_and_b32 v{v_t2}, 4, v{v_t2}")
    e(f"v_xor_b32 v{v_t1}, v{v_t1}, v{v_t2}")
    e(f"v_lshlrev_b32 v{v_t1}, 4, v{v_t1}")
    e(f"s_movk_i32 s{s_tmp3}, 3072")
    e(f"v_mad_u32_u24 v{v_wq_n}, v{v_t0}, s{s_tmp3}, v{v_t1}")
    e(f"s_movk_i32 s{s_tmp3}, 2752")
    e(f"v_mad_u32_u24 v{v_w1_n}, v{v_t0}, s{s_tmp3}, v{v_t1}")
    e(f"v_lshl_add_u32 v{v_w2_n}, v{v_t0}, 10, v{v_t1}")
    e(f"v_lshrrev_b32 v{v_t0}, 4, v{v_lane}")
    e(f"v_and_b32 v{v_t1}, 15, v{v_lane}")
    e(f"v_lshlrev_b32 v{v_t2}, 2, v{v_t0}")
    e(f"v_xor_b32 v{v_t1}, v{v_t1}, v{v_t2}")
    e(f"v_and_b32 v{v_t2}, 7, v{v_t1}")
    e(f"v_lshrrev_b32 v{v_t3}, 3, v{v_t1}")
    e(f"s_cmp_eq_u32 s{s_t}, 0")
    e(f"s_movk_i32 s{s_tmp3}, 128")
    e(f"s_cselect_b32 s{s_tmp3}, 1024, s{s_tmp3}")
    e(f"s_movk_i32 s{s_tmp4}, 2752")
    e(f"s_cselect_b32 s{s_tmp4}, 3072, s{s_tmp4}")
    e(f"v_mul_u32_u24 v{v_t3}, s{s_tmp3}, v{v_t3}")
    e(f"v_lshl_add_u32 v{v_t3}, v{v_t2}, 4, v{v_t3}")
    e(f"v_mad_u32_u24 v{v_wide}, v{v_t0}, s{s_tmp4}, v{v_t3}")
    lA = "L_initA"; lJ = "L_initJ"
    e(f"s_cmp_eq_u32 s{s_t}, 0")
    e(f"s_cbranch_scc1 {lA}")
    e(f"s_mul_i32 s{s_naroff}, s{s_wv}, {16*3072}")
    e(f"s_lshl_b32 s{s_tmp3}, s{s_p}, 7")
    e(f"s_add_u32 s{s_naroff}, s{s_naroff}, s{s_tmp3}")
    e(f"s_mul_i32 s{s_wideoff}, s{s_wv}, {8*2752}")
    e(f"s_lshl_b32 s{s_tmp3}, s{s_p}, 8")
    e(f"s_add_u32 s{s_wideoff}, s{s_wideoff}, s{s_tmp3}")
    e(f"s_lshl_b32 s{s_tmp3}, s{s_p}, 1")
    e(f"s_add_u32 s{s_tmp3}, s{s_tmp3}, s{s_cgp}")
    e(f"s_lshl_b32 s{s_tmp3}, s{s_tmp3}, 6")
    e(f"s_lshl_b32 s{s_tmp4}, s{s_rb}, 2")
    e(f"s_add_u32 s{s_tmp4}, s{s_tmp4}, s{s_rg}")
    e(f"s_add_u32 s{s_tmp3}, s{s_tmp3}, s{s_tmp4}")
    e(f"s_lshl_b32 s{s_st0}, s{s_tmp3}, 11")
    e(f"s_add_u32 s{s_st0}, s{s_st0}, {QF}")
    e(f"s_mul_i32 s{s_st1}, s{s_tmp4}, {HROW}")
    e(f"s_lshl_b32 s{s_tmp3}, s{s_p}, 2")
    e(f"s_add_u32 s{s_tmp3}, s{s_tmp3}, s{s_cgp}")
    e(f"s_lshl_b32 s{s_tmp3}, s{s_tmp3}, 11")
    e(f"s_add_u32 s{s_st1}, s{s_st1}, s{s_tmp3}")
    e(f"s_add_u32 s{s_st1}, s{s_st1}, {HF}")
    e(f"s_branch {lJ}")
    a.label(lA)
    e(f"s_mul_i32 s{s_wideoff}, s{s_wv}, {8*3072}")
    e(f"s_lshl_b32 s{s_tmp3}, s{s_p}, 7")
    e(f"s_add_u32 s{s_wideoff}, s{s_wideoff}, s{s_tmp3}")
    e(f"s_add_u32 s{s_wideoff}, s{s_wideoff}, 1024")
    e(f"s_mul_i32 s{s_naroff}, s{s_wv}, {16*2752}")
    e(f"s_add_u32 s{s_naroff}, s{s_naroff}, s{s_tmp3}")
    e(f"s_add_u32 s{s_naroff}, s{s_naroff}, 2048")
    e(f"s_cmp_ge_u32 s{s_p}, 6")
    e(f"s_cselect_b32 s{s_naroff}, {OOB}, s{s_naroff}")
    e(f"s_lshl_b32 s{s_tmp3}, s{s_p}, 1")
    e(f"s_add_u32 s{s_tmp3}, s{s_tmp3}, s{s_cgp}")
    e(f"s_lshl_b32 s{s_tmp3}, s{s_tmp3}, 6")
    e(f"s_lshl_b32 s{s_tmp4}, s{s_rb}, 2")
    e(f"s_add_u32 s{s_tmp4}, s{s_tmp4}, s{s_rg}")
    e(f"s_add_u32 s{s_tmp3}, s{s_tmp3}, s{s_tmp4}")
    e(f"s_lshl_b32 s{s_st0}, s{s_tmp3}, 11")
    e(f"s_add_u32 s{s_st0}, s{s_st0}, {KF}")
    e(f"s_lshl_b32 s{s_tmp3}, s{s_p}, 1")
    e(f"s_add_u32 s{s_tmp3}, s{s_tmp3}, s{s_cgp}")
    e(f"s_add_u32 s{s_tmp3}, s{s_tmp3}, 32")
    e(f"s_mul_i32 s{s_st1}, s{s_tmp4}, {HROW}")
    e(f"s_lshl_b32 s{s_tmp4}, s{s_tmp3}, 11")
    e(f"s_add_u32 s{s_st1}, s{s_st1}, s{s_tmp4}")
    e(f"s_add_u32 s{s_st1}, s{s_st1}, {HF}")
    e(f"s_cmp_ge_u32 s{s_tmp3}, 43")
    e(f"s_cselect_b32 s{s_st1}, {OOB}, s{s_st1}")
    a.label(lJ)
    e(f"s_lshl_b32 s{s_w2off}, s{s_wv}, 14")
    e(f"s_lshl_b32 s{s_tmp3}, s{s_cb3}, 7")
    e(f"s_add_u32 s{s_w2off}, s{s_w2off}, s{s_tmp3}")
    e("s_waitcnt lgkmcnt(0)")
    e("s_mov_b32 s12, s10"); e("s_mov_b32 s13, s11"); e(f"s_mov_b32 s14, {512*1536*2}"); e("s_mov_b32 s15, 0x00020000")
    e(f"s_mov_b32 s10, {2048*512*2}"); e("s_mov_b32 s11, 0x00020000")
    e("s_mov_b32 s20, s18"); e("s_mov_b32 s21, s19"); e(f"s_mov_b32 s22, {1376*512*2}"); e("s_mov_b32 s23, 0x00020000")
    e(f"s_mov_b32 s18, {512*1376*2}"); e("s_mov_b32 s19, 0x00020000")
    e(f"s_mov_b32 s26, {512*512*2}"); e("s_mov_b32 s27, 0x00020000")
    e("s_mov_b32 s28, s42"); e("s_mov_b32 s29, s43"); e(f"s_mov_b32 s30, {WS_BYTES}"); e("s_mov_b32 s31, 0x00020000")
    e("s_mov_b32 s32, s38"); e("s_mov_b32 s33, s39"); e(f"s_mov_b32 s34, {2048*512*2}"); e("s_mov_b32 s35, 0x00020000")
    e("s_mov_b32 s38, 1024"); e("s_mov_b32 s39, 0x00020000")
    e("s_mov_b32 s42, 256"); e("s_mov_b32 s43, 0x00020000")
    stamp(a)
    e(f"s_cmp_eq_u32 s{s_t}, 0")
    e("s_cbranch_scc0 L_typeB")
    base_lines = a.lines
    paths = []
    for typ in (0, 1):
        a.lines = []; a.vm = []
        if typ == 1: a.label("L_typeB")
        issue_x_quarter(a, 0)
        issue_piece(a, typ, 0, 0)
        issue_piece(a, typ, 1, 1)
        for j in (1, 2, 3): issue_x_quarter(a, j)
        common_setup(a)
        w2_slot = stage1(a, typ)
        if typ == 0:
            gate(a)
            a.e("s_branch L_s1done")
        paths.append((a.lines, w2_slot))
    assert paths[0][1] == paths[1][1]
    a.lines = base_lines + paths[0][0] + paths[1][0]
    w2_slot = paths[0][1]
    a.label("L_s1done")
    a.wait_vm_all()
    a.e("s_barrier")
    stamp(a)
    signal(a, 1)
    if DEBUG_STOP == "s1": a.e("s_branch L_exit")
    attention(a)
    if DEBUG_STOP == "attn": a.e("s_branch L_exit")
    stage3(a, w2_slot)
    a.label("L_exit")
    a.e("s_endpgm")
    return a

HEADER = open(os.path.join(os.path.dirname(os.path.abspath(__file__)), "..", "cdna_kernels", NAME + ".s.ref")).read().split("; Override launch")[0]

def emit_file(path):
    a = gen()
    s = HEADER
    s += "; @launch grid=(256,1,1) block=(512,1,1) lds=163840\n"
    s += f""".amdgcn_target "amdgcn-amd-amdhsa--gfx950"
.text
.globl {NAME}_kernel
.p2align 8
.type {NAME}_kernel,@function
{NAME}_kernel:
"""
    s += "\n".join(a.lines) + "\n"
    s += f""".section .rodata,"a"
.p2align 6
.amdhsa_kernel {NAME}_kernel
  .amdhsa_next_free_vgpr 256
  .amdhsa_next_free_sgpr {NSGPR}
  .amdhsa_accum_offset 256
  .amdhsa_group_segment_fixed_size 0
  .amdhsa_kernarg_size 80
  .amdhsa_user_sgpr_count 2
  .amdhsa_user_sgpr_kernarg_segment_ptr 1
  .amdhsa_system_sgpr_workgroup_id_x 1
.end_amdhsa_kernel
"""
    open(path, "w").write(s)

if __name__ == "__main__":
    out = sys.argv[1] if len(sys.argv) > 1 else os.path.join(os.path.dirname(os.path.abspath(__file__)), "..", "cdna_kernels", NAME + ".s")
    emit_file(out)
```

```python
import sys, math, os, struct

NAME = "gated_mix__sliding_block__dense_activation_relu__prompt"

KF = 0x200000
VF = 0x400000
OF = 0x600000
HF = 0x800000
GB = 0xE00000
FL = 0xF00000
TS = 0xF80000
WS_BYTES = 0x1000000
HROW = 86 * 1024
OOB = 0x40000000
SLOT = 16384

def env(n, d): return int(os.environ.get(n, d))
STAMPS = env("GEN_STAMPS", 0) >= 1
STAMPS2 = env("GEN_STAMPS", 0) >= 2
TOUCH = env("GEN_TOUCH", 0)

class Asm:
    def __init__(self):
        self.lines = []; self.vm = []; self.uid = 0; self.nstamp = 0
    def e(self, s): self.lines.append("    " + s)
    def label(self, l): self.lines.append(l + ":")
    def c(self, s): self.lines.append("    ; " + s)
    def newlabel(self, p="L"):
        self.uid += 1
        return f"{p}_{self.uid}"
    def vmem(self, s, tag):
        self.e(s); self.vm.append(tag)
    def wait_vm(self, tags, lgkm0=False):
        if isinstance(tags, str): tags = [tags]
        last = -1
        for i, t in enumerate(self.vm):
            if t in tags: last = i
        x = " lgkmcnt(0)" if lgkm0 else ""
        if last < 0:
            if lgkm0: self.e("s_waitcnt lgkmcnt(0)")
            return
        n = len(self.vm) - 1 - last
        assert n <= 63
        self.e(f"s_waitcnt vmcnt({n}){x}")
        self.vm = self.vm[last + 1:]

class Lg:
    def __init__(self, a): self.a = a; self.q = []
    def add(self, tag): self.q.append(tag)
    def wait(self, tags):
        last = -1
        for i, t in enumerate(self.q):
            if t in tags: last = i
        if last < 0: return
        n = min(len(self.q) - 1 - last, 15)
        self.a.e(f"s_waitcnt lgkmcnt({n})")
        self.q = self.q[len(self.q) - n:] if n else []
    def clear(self): self.q = []
    def drain(self):
        if self.q: self.a.e("s_waitcnt lgkmcnt(0)")
        self.q = []

sX, sWQ, sW1, sW2, sWO, sWS, sOUT, sGW, sDBG, sPW = 8, 12, 16, 20, 24, 28, 32, 36, 40, 88
def srd(b): return f"s[{b}:{b+3}]"
s_wv, s_rb, s_cg, s_p, s_t, s_rg, s_cgp, s_rb3, s_cb3, s_xbase = range(44, 54)
s_tmp, s_tmp2, s_wideoff, s_naroff = 54, 55, 56, 57
s_nonce = 58
s_tmp3, s_tmp4, s_st0, s_st1, s_first, s_w2off, s_xlds, s_cnt = range(60, 68)
s_exec = 68
s_m = 70; s_m2 = 72; s_m3 = 74
s_ldsw, s_a3, s_a3o, s_qb = 76, 77, 78, 79
s_vm = 80
s_ts = 82
s_tsb, s_ok, s_ga, s_pstep = 84, 85, 86, 87
s_st2 = 92
s_ldsww = 95
s_gw = 7
GREG = 40
NSGPR = 96

v_lane, v_l16 = 1, 2
v_xo = 3
v_wq_n, v_wd0, v_wd1, v_xrd, v_trn, v_trw, v_tr3, v_w2_n = 7, 8, 9, 10, 11, 12, 13, 14
v_t0, v_t1 = 15, 16
v_hi = 17
v_t2, v_t3 = 18, 19
v_non = 20
v_c2 = 20
v_mc = 22
v_g2 = 24
v_omg2 = 26
v_t4, v_t5 = 28, 29
v_trw2, v_tr3b = 30, 31
MASKF = 32
MASKD = 48
BF = 64
ACC = 96
XF = 128
v_fo = 252; v_fd = 254

def vr(b, n): return f"v[{b}:{b+n-1}]"

XSLOT = {0: 0, 1: 4, 2: 6, 3: 0}
ATK = 6 * SLOT
ATQ = ATK + 24576
ATV = 8 * SLOT

def stamp(a):
    if not STAMPS: return
    i = a.nstamp; a.nstamp += 1
    a.e(f"s_memtime s[{s_ts}:{s_ts+1}]")
    a.e("s_waitcnt lgkmcnt(0)")
    a.e(f"v_mov_b32 v{v_t2}, s{s_ts}")
    a.e(f"v_mov_b32 v{v_t3}, 0")
    a.e(f"s_mov_b64 s[{s_exec}:{s_exec+1}], exec")
    a.e("s_mov_b64 exec, 1")
    a.vmem(f"buffer_store_dword v{v_t2}, v{v_t3}, {srd(sWS)}, s{s_tsb} offen offset:{i*4}", "TS")
    a.e(f"s_mov_b64 exec, s[{s_exec}:{s_exec+1}]")

def dma(a, voff, srd_b, soff, lds_sgpr, ldsimm, tag, sc1=False):
    a.e(f"s_add_u32 m0, s{lds_sgpr}, {ldsimm}")
    a.e("s_nop 0")
    a.vmem(f"buffer_load_dwordx4 v{voff}, {srd(srd_b)}, {soff} offen{' sc1' if sc1 else ''} lds", tag)

def issue_x_quarter(a, j):
    for t in range(4):
        a.e(f"s_add_u32 s{s_tmp}, s{s_xbase}, {t*4096 + j*256}")
        dma(a, v_xo + t, sX, f"s{s_tmp}", s_xlds, XSLOT[j]*SLOT + t*1024, f"X{j}")

def issue_piece(a, i, slot):
    if i < 4:
        for t in range(2):
            a.e(f"s_add_u32 s{s_tmp}, s{s_naroff}, {(128*i + 8*t) * 3072}")
            dma(a, v_wq_n, sWQ, f"s{s_tmp}", s_ldsw, slot*SLOT + t*1024, f"P{i}")
    else:
        for t in range(2):
            a.e(f"s_add_u32 s{s_tmp}, s{s_ldsw}, {slot*SLOT + t*1024}")
            a.e(f"s_max_u32 m0, s{s_tmp}, s{s_ldsww}")
            a.e("s_nop 0")
            a.vmem(f"buffer_load_dwordx4 v{v_wd0 + t}, {srd(sPW)}, s{s_wideoff} offen lds", f"P{i}")
        a.e(f"s_add_u32 s{s_wideoff}, s{s_wideoff}, s{s_pstep}")
        l = a.newlabel("Lgw")
        a.e(f"s_cmp_eq_u32 s{s_gw}, 0")
        a.e(f"s_cbranch_scc1 {l}")
        a.e(f"v_add_u32 v{v_t2}, {slot*SLOT + 4096 + 128}, v{v_g2}")
        a.e(f"ds_write_b16 v{v_t2}, v{GREG + i - 4}")
        a.label(l)

def issue_w2_piece(a, i, slot):
    for t in range(2):
        srdb, r0 = (sW2, 128*i) if i <= 10 else (sWO, 128*(i-11))
        a.e(f"s_add_u32 s{s_tmp}, s{s_w2off}, {(r0 + 8*t) * 1024}")
        dma(a, v_w2_n, srdb, f"s{s_tmp}", s_ldsw, slot*SLOT + t*1024, f"Q{i}")

def mfma(a, d, x, y, c):
    cs = c if isinstance(c, str) else vr(c, 16)
    a.e(f"v_mfma_f32_32x32x16_bf16 {vr(d,16)}, {vr(x,4)}, {vr(y,4)}, {cs}")

def pack_tile(a, acc, pk, relu):
    for q in range(8):
        a.e(f"v_cvt_pk_bf16_f32 v{pk+q}, v{acc+2*q}, v{acc+2*q+1}")
    if relu:
        for q in range(8):
            a.e(f"v_pk_max_i16 v{pk+q}, v{pk+q}, 0")

def store_pk(a, pk, soff_sgpr, tag):
    a.vmem(f"buffer_store_dwordx4 {vr(pk,4)}, v{v_l16}, {srd(sWS)}, s{soff_sgpr} offen sc1", tag)
    a.vmem(f"buffer_store_dwordx4 {vr(pk+4,4)}, v{v_l16}, {srd(sWS)}, s{soff_sgpr} offen offset:1024 sc1", tag)

def signal(a, phase):
    l = a.newlabel("Lsig")
    a.e(f"s_cmp_lg_u32 s{s_wv}, 0")
    a.e(f"s_cbranch_scc1 {l}")
    a.e(f"s_lshl_b32 s{s_tmp}, s{s_rb}, 4")
    a.e(f"s_add_u32 s{s_tmp}, s{s_tmp}, s{s_cg}")
    a.e(f"s_lshl_b32 s{s_tmp}, s{s_tmp}, 7")
    a.e(f"s_add_u32 s{s_tmp}, s{s_tmp}, {FL + phase*32768}")
    a.e(f"v_mov_b32 v{v_t2}, s{s_nonce}")
    a.e(f"v_mov_b32 v{v_t3}, s{s_nonce+1}")
    a.e(f"v_mov_b32 v{v_t1}, 0")
    a.e(f"s_mov_b64 s[{s_exec}:{s_exec+1}], exec")
    a.e("s_mov_b64 exec, 1")
    a.e(f"buffer_store_dwordx2 v[{v_t2}:{v_t3}], v{v_t1}, {srd(sWS)}, s{s_tmp} offen sc1")
    a.e(f"s_mov_b64 exec, s[{s_exec}:{s_exec+1}]")
    a.label(l)

def cmp_flags(a, vd):
    a.e(f"v_cmp_eq_u32 s[{s_m2}:{s_m2+1}], s{s_nonce}, v{vd}")
    a.e(f"v_cmp_eq_u32 s[{s_m3}:{s_m3+1}], s{s_nonce+1}, v{vd+1}")
    a.e("s_nop 3")
    a.e(f"s_and_b64 s[{s_m2}:{s_m2+1}], s[{s_m2}:{s_m2+1}], s[{s_m3}:{s_m3+1}]")
    a.e(f"s_and_b64 s[{s_m2}:{s_m2+1}], s[{s_m2}:{s_m2+1}], s[{s_m}:{s_m+1}]")
    a.e(f"s_cmp_eq_u64 s[{s_m2}:{s_m2+1}], s[{s_m}:{s_m+1}]")

def poll(a, voff):
    lp = a.newlabel("Lpoll"); ld = a.newlabel("Lpolld")
    a.e(f"s_mov_b32 s{s_cnt}, 0")
    a.label(lp)
    a.e(f"buffer_load_dwordx2 v[{v_t2}:{v_t3}], v{voff}, {srd(sWS)}, 0 offen sc1")
    a.e("s_waitcnt vmcnt(0)")
    cmp_flags(a, v_t2)
    a.e(f"s_cbranch_scc1 {ld}")
    a.e("s_sleep 1")
    a.e(f"s_add_u32 s{s_cnt}, s{s_cnt}, 1")
    a.e(f"s_cmp_lt_u32 s{s_cnt}, 100000")
    a.e(f"s_cbranch_scc1 {lp}")
    a.label(ld)

def flag_issue(a, voff, vdst, tag, track=True):
    ins = f"buffer_load_dwordx2 v[{vdst}:{vdst+1}], v{voff}, {srd(sWS)}, 0 offen sc1"
    (a.vmem(ins, tag) if track else a.e(ins))

def flag_check(a, vdst, tag, track=True):
    if track: a.wait_vm(tag)
    else: a.e("s_waitcnt vmcnt(0)")
    cmp_flags(a, vdst)

def get_nonce(a):
    a.wait_vm("NON")
    lp = a.newlabel("Lnp"); ld = a.newlabel("Lnd")
    a.e(f"s_mov_b32 s{s_cnt}, 0")
    a.label(lp)
    a.e(f"v_readfirstlane_b32 s{s_nonce}, v{v_non}")
    a.e(f"v_readfirstlane_b32 s{s_nonce+1}, v{v_non+1}")
    a.e("s_nop 3")
    a.e(f"s_cmp_lg_u32 s{s_nonce}, 0")
    a.e(f"s_cbranch_scc1 {ld}")
    a.e("s_sleep 2")
    a.e(f"v_mov_b32 v{v_t2}, 0")
    a.e(f"buffer_load_dwordx2 v[{v_non}:{v_non+1}], v{v_t2}, {srd(sDBG)}, 0 offen sc1")
    a.e("s_waitcnt vmcnt(0)")
    a.e(f"s_add_u32 s{s_cnt}, s{s_cnt}, 1")
    a.e(f"s_cmp_lt_u32 s{s_cnt}, 100000")
    a.e(f"s_cbranch_scc1 {lp}")
    a.label(ld)

def kv_flag_setup(a):
    e = a.e
    e(f"s_lshl_b32 s{s_tmp}, s{s_rb}, 4")
    e(f"s_lshl_b32 s{s_tmp2}, s{s_p}, 1")
    e(f"s_add_u32 s{s_tmp}, s{s_tmp}, s{s_tmp2}")
    e(f"v_lshrrev_b32 v{v_g2}, 1, v{v_lane}")
    e(f"v_lshlrev_b32 v{v_g2}, 4, v{v_g2}")
    e(f"v_sub_u32 v{v_g2}, s{s_tmp}, v{v_g2}")
    e(f"v_and_b32 v{v_g2+1}, 1, v{v_lane}")
    e(f"v_add_u32 v{v_g2}, v{v_g2}, v{v_g2+1}")
    e(f"v_and_b32 v{v_g2}, 255, v{v_g2}")
    e(f"v_lshlrev_b32 v{v_g2}, 7, v{v_g2}")
    e(f"v_add_u32 v{v_g2}, {FL}, v{v_g2}")
    e(f"s_mov_b32 s{s_m}, 63")
    e(f"s_cmp_eq_u32 s{s_rb}, 1")
    e(f"s_cselect_b32 s{s_m}, 15, s{s_m}")
    e(f"s_cmp_eq_u32 s{s_rb}, 0")
    e(f"s_cselect_b32 s{s_m}, 3, s{s_m}")
    e(f"s_mov_b32 s{s_m+1}, 0")

def issue_kv(a, which, track=True):
    e = a.e
    sv = list(a.vm)
    e(f"s_lshl_b32 s{s_tmp3}, s{s_cg}, 6")
    e(f"s_lshl_b32 s{s_tmp4}, s{s_rb}, 2")
    e(f"s_add_u32 s{s_tmp3}, s{s_tmp3}, s{s_tmp4}")
    e(f"s_lshl_b32 s{s_tmp3}, s{s_tmp3}, 11")
    e(f"s_mul_i32 s{s_tmp4}, s{s_wv}, 3072")
    e(f"s_add_u32 s{s_tmp2}, s{s_tmp3}, s{s_tmp4}")
    for reg, lds, tag in ((KF, ATK, "AK"), (VF, ATV, "AV")):
        if tag[1] not in which: continue
        for i in range(3):
            e(f"s_add_u32 s{s_tmp}, s{s_tmp2}, {reg - 16384 + i*1024}")
            dma(a, v_l16, sWS, f"s{s_tmp}", s_tmp4, lds + i*1024, tag, sc1=True)
    if not track: a.vm = sv

def s1_items(pieces, slot_of):
    items = []
    for i in pieces:
        sl = slot_of[i]
        if i < 4:
            for s in range(8):
                items.append(dict(pc=i, ks=8*i + s, tl=0, vb=v_trn, off=s*2048, sec=512, sl=sl, xs=s))
        else:
            j = i - 4
            for s in range(4):
                for tl in range(2):
                    items.append(dict(pc=i, ks=4*j + s, tl=tl, vb=(v_trw2 if tl else v_trw), off=None, s=s, sl=sl, xs=None))
    return items

def stage1(a, isv):
    raise NotImplementedError

class S1:
    D = 4
    def __init__(self, a):
        self.a = a; self.lg = Lg(a); self.n = 0
        self.slot_of = {0: 2, 1: 3}
        self.w2_slot = {}
        self.base = {}
        self.sched = {
            0: [("X", 2, 0), ("P", 2, 8), ("P", 3, 9)],
            1: [("X", 3, 0), ("P", 4, 2)],
            2: [("P", 5, 4), ("P", 6, 5), ("P", 7, 3)],
            3: [("P", 8, 6), ("P", 9, 7), ("P", 10, 8)],
            4: [("P", 11, 9), ("Q", 0, 0), ("Q", 1, 1)],
            5: [("Q", 2, 2)], 6: [("Q", 3, 4)], 7: [("Q", 4, 5)], 8: [("Q", 5, 3)],
        }
    def sync(self, i, extra_need=(), hook=None):
        a = self.a
        need = [f"P{i}"] + ([f"X{i}"] if i < 4 else []) + list(extra_need)
        a.wait_vm(need, lgkm0=True)
        self.lg.clear()
        a.e("s_barrier")
        if STAMPS2: stamp(a)
        if hook: hook()
        for kind, pc, sl in self.sched.get(i, []):
            if kind == "P": self.slot_of[pc] = sl; issue_piece(a, pc, sl)
            elif kind == "X": issue_x_quarter(a, pc)
            else: self.w2_slot[pc] = sl; issue_w2_piece(a, pc, sl)
        self.base = {}
    def read(self, it):
        a = self.a
        b = BF + (it["n"] % 8) * 4
        sl = it["sl"]
        if it["xs"] is not None:
            s = it["xs"]; xq = it["pc"]
            r = v_t0 + (s & 1)
            a.e(f"v_xor_b32 v{r}, {s*32}, v{v_xrd}")
            off = XSLOT[xq]*SLOT
            if off > 65535:
                a.e(f"v_add_u32 v{r}, {off}, v{r}"); off = 0
            a.e(f"ds_read_b128 {vr(XF + it['ks']*4, 4)}, v{r} offset:{off}")
            self.lg.add(("x", it["ks"]))
        vb = it["vb"]
        if it["pc"] < 4:
            off, sec = it["off"], it["sec"]
            o = sl*SLOT + off
            if o + sec > 65535:
                if vb not in self.base:
                    a.e(f"v_add_u32 v{v_t4}, {sl*SLOT}, v{vb}"); self.base[vb] = v_t4
                vb = self.base[vb]; o = off
            a.e(f"ds_read_b64_tr_b16 {vr(b,2)}, v{vb} offset:{o}")
            a.e(f"ds_read_b64_tr_b16 {vr(b+2,2)}, v{vb} offset:{o + sec}")
        else:
            s = it["s"]; tl = it["tl"]
            if tl == 1:
                o = sl*SLOT + s*16*192; sec = 4*192
                if o + sec > 65535 - 16384:
                    if vb not in self.base:
                        a.e(f"v_add_u32 v{v_t5}, {sl*SLOT}, v{vb}"); self.base[vb] = v_t5
                    vb = self.base[vb]; o = s*16*192
                a.e(f"ds_read_b64_tr_b16 {vr(b,2)}, v{vb} offset:{o}")
                a.e(f"ds_read_b64_tr_b16 {vr(b+2,2)}, v{vb} offset:{o + sec}")
            else:
                a.e(f"s_mul_i32 s{s_tmp}, s{s_k16}, {s}")
                a.e(f"s_add_u32 s{s_tmp}, s{s_tmp}, {sl*SLOT}")
                a.e(f"v_add_u32 v{v_t4}, s{s_tmp}, v{v_trw}")
                a.e(f"v_add_u32 v{v_t0}, s{s_tmp}, v{v_omg2}")
                a.e(f"ds_read_b64_tr_b16 {vr(b,2)}, v{v_t4}")
                a.e(f"ds_read_b64_tr_b16 {vr(b+2,2)}, v{v_t0}")
        self.lg.add(("b", it["n"])); self.lg.add(("b", it["n"]))
    def mm(self, it, isv):
        a = self.a
        self.lg.wait([("b", it["n"]), ("x", it["ks"])])
        b = BF + (it["n"] % 8) * 4
        if it["pc"] < 4:
            acc = ACC2
            cin = "0" if it["ks"] == 0 else acc
            if isv: mfma(a, acc, XF + it["ks"]*4, b, cin)
            else: mfma(a, acc, b, XF + it["ks"]*4, cin)
        else:
            acc = ACC + 16*it["tl"]
            cin = "0" if it["ks"] == 0 else acc
            mfma(a, acc, b, XF + it["ks"]*4, cin)

ACC2 = MASKD
s_k16 = 93

def build_masks(a):
    e = a.e
    e(f"v_and_b32 v{v_t2}, 31, v{v_lane}")
    e(f"v_lshlrev_b32 v{v_t3}, 2, v{v_hi}")
    e(f"v_sub_u32 v{v_t2}, v{v_t2}, v{v_t3}")
    e(f"v_mov_b32 v{v_t3}, 0xf149f2ca")
    for r in range(16):
        cr = (r & 3) + 8 * (r >> 2)
        e(f"v_cmp_le_i32 vcc, {cr}, v{v_t2}")
        e("s_nop 1")
        e(f"v_cndmask_b32 v{MASKD+r}, v{v_t3}, 0, vcc") if False else None
        e(f"v_cndmask_b32 v{MASKF+r}, 0, v{v_t3}, vcc")
        e(f"v_sub_f32 v{MASKD+r}, v{v_t3}, v{MASKF+r}")

def run_stage1(a):
    e = a.e
    a.c("================ stage 1 ================")
    D = S1.D
    base_lines = a.lines
    outs = []
    st0 = None
    ns0 = a.nstamp; vm0 = list(a.vm)
    for isv in (0, 1):
        a.lines = []; a.vm = list(vm0); a.nstamp = ns0
        st = S1(a)
        if isv: a.label("L_s1v")
        pend = []
        n = 0
        for pc in range(0, 5):
            def hook(pc=pc):
                if pc == 2:
                    a.e(f"v_mov_b32 v{v_t2}, 0")
                    a.vmem(f"buffer_load_dwordx2 v[{v_non}:{v_non+1}], v{v_t2}, {srd(sDBG)}, 0 offen sc1", "NON")
            st.sync(pc, hook=hook)
            items = s1_items([pc], st.slot_of)
            for it in items: it["n"] = n; n += 1
            lim = len(items) if pc < 4 else D
            for q in range(lim):
                st.read(items[q]); pend.append(items[q])
                if len(pend) > D or pc == 4:
                    if pend[0]["pc"] < 4 and (len(pend) > D or pc == 4): st.mm(pend.pop(0), isv)
            if pc == 4: rest4 = items
        if not isv: a.e("s_branch L_s1w")
        outs.append((a.lines, list(a.vm), st, pend, n, rest4))
    assert outs[0][1] == outs[1][1]
    a.lines = base_lines + outs[0][0] + outs[1][0]
    _, vm, st, pend, n, items4 = outs[1]
    a.vm = vm
    a.label("L_s1w")
    assert all(it["pc"] == 4 for it in pend) and len(pend) == D
    done_kv = False
    cnt_w = 0
    def after_mm():
        nonlocal cnt_w, done_kv
        cnt_w += 1
        if cnt_w == 2:
            a.e("s_nop 7")
            pack_tile(a, ACC2, MASKF, False)
            store_pk(a, MASKF, s_st0, "ST0")
        if cnt_w == 12:
            build_masks(a)
    for pc in range(4, 12):
        if pc == 4:
            items = items4; start = D
        else:
            extra = ["ST0"] if pc == SIG0 else []
            def hook(pc=pc):
                if pc == SIG0:
                    get_nonce(a); signal(a, 0); kv_flag_setup(a)
                if pc == KV_ISSUE:
                    flag_issue(a, v_g2, v_non + 2, "FKV")
                if pc == KV_CHECK:
                    flag_check(a, v_non + 2, "FKV")
                    a.e(f"s_cselect_b32 s{s_ok}, 1, 0")
                    l = a.newlabel("Lkvno")
                    a.e(f"s_cbranch_scc0 {l}")
                    issue_kv(a, "K")
                    a.label(l)
            st.sync(pc, extra, hook)
            items = s1_items([pc], st.slot_of)
            for it in items: it["n"] = n; n += 1
            start = 0
        for q in range(start, 8):
            st.read(items[q]); pend.append(items[q])
            st.mm(pend.pop(0), 0); after_mm()
    while pend:
        st.mm(pend.pop(0), 0)
    e("s_nop 7"); e("s_nop 3")
    gate(a)
    pack_tile(a, ACC + 16, BF + 8, True)
    store_pk(a, BF + 8, s_st2, "ST1")
    pack_tile(a, ACC, BF, False)
    l = a.newlabel("Lq"); l2 = a.newlabel("Lqd")
    e(f"s_cmp_eq_u32 s{s_cgp}, 0")
    e(f"s_cbranch_scc1 {l}")
    for q in range(8): e(f"v_pk_max_i16 v{BF+q}, v{BF+q}, 0")
    a.label(l)
    store_pk(a, BF, s_st1, "ST1")
    return st.w2_slot

SIG0, KV_ISSUE, KV_CHECK = 7, 10, 11

def gate(a):
    e = a.e
    l = a.newlabel("Lgate")
    e(f"s_cmp_lg_u32 s{s_cg}, 15")
    e(f"s_cbranch_scc1 {l}")
    e(f"s_cmp_lg_u32 s{s_cgp}, 1")
    e(f"s_cbranch_scc1 {l}")
    e(f"v_cvt_pk_bf16_f32 v{v_t1}, v{ACC+16}, v{ACC+16}")
    e(f"v_lshlrev_b32 v{v_t1}, 16, v{v_t1}")
    e(f"v_mul_f32 v{v_t1}, 0xbfb8aa3b, v{v_t1}")
    e(f"v_exp_f32 v{v_t1}, v{v_t1}")
    e("s_nop 0")
    e(f"v_add_f32 v{v_t1}, 1.0, v{v_t1}")
    e(f"v_rcp_f32 v{v_t1}, v{v_t1}")
    e("s_nop 0")
    e(f"v_cvt_pk_bf16_f32 v{v_t1}, v{v_t1}, v{v_t1}")
    e(f"v_lshlrev_b32 v{v_t1}, 16, v{v_t1}")
    e(f"v_lshlrev_b32 v{v_t0}, 2, v{v_lane}")
    e(f"s_lshl_b32 s{s_tmp}, s{s_rb}, 2")
    e(f"s_add_u32 s{s_tmp}, s{s_tmp}, s{s_rg}")
    e(f"s_lshl_b32 s{s_tmp}, s{s_tmp}, 7")
    e(f"s_add_u32 s{s_tmp}, s{s_tmp}, {GB}")
    e(f"s_mov_b64 s[{s_exec}:{s_exec+1}], exec")
    e("s_mov_b32 exec_lo, -1")
    e("s_mov_b32 exec_hi, 0")
    e(f"buffer_store_dword v{v_t1}, v{v_t0}, {srd(sWS)}, s{s_tmp} offen sc1")
    e(f"s_mov_b64 exec, s[{s_exec}:{s_exec+1}]")
    a.label(l)

def Sreg(b):
    if b == 0: return MASKF
    if b == 8: return MASKD
    return 64 + 16*(b-1)
KFR = 176; QFR = 212; VROT = 216; OACC = 232
v_max = 248; v_max2 = 249; v_vrd = 250; v_krd = 251

def AFreg(n):
    if n < 10: return 176 + 4*n
    if n < 14: return 48 + 4*(n-10)
    if n < 18: return 160 + 4*(n-14)
    return 144 + 4*(n-18)
def AOreg(n):
    return 128 + 4*n if n < 4 else 32 + 4*(n-4)
BF3 = 64; ACB = 96; ACA = 216

def s3_addr_setup(a):
    e = a.e
    e(f"s_lshl_b32 s{s_tmp3}, s{s_rb3}, 1")
    e(f"s_add_u32 s{s_tmp3}, s{s_tmp3}, s{s_cgp}")
    e(f"s_mul_i32 s{s_a3}, s{s_tmp3}, {HROW}")
    e(f"s_lshl_b32 s{s_tmp}, s{s_rg}, 10")
    e(f"s_add_u32 s{s_a3}, s{s_a3}, s{s_tmp}")
    e(f"s_add_u32 s{s_a3}, s{s_a3}, {HF}")
    e(f"s_lshl_b32 s{s_a3o}, s{s_tmp3}, 15")
    e(f"s_add_u32 s{s_a3o}, s{s_a3o}, s{s_tmp}")
    e(f"s_add_u32 s{s_a3o}, s{s_a3o}, {OF}")
    e(f"s_lshl_b32 s{s_ga}, s{s_tmp3}, 7")
    e(f"s_add_u32 s{s_ga}, s{s_ga}, {GB}")

def h_loads(a, ns, track=True):
    e = a.e
    for n in ns:
        if n == "g":
            e(f"v_and_b32 v{v_t0}, 31, v{v_lane}")
            e(f"v_lshlrev_b32 v{v_t0}, 2, v{v_t0}")
            ins = f"buffer_load_dword v{v_g2}, v{v_t0}, {srd(sWS)}, s{s_ga} offen sc1"
            (a.vmem(ins, "G") if track else e(ins))
            continue
        e(f"s_add_u32 s{s_tmp}, s{s_a3}, {n*4096}")
        if n == 21:
            e(f"s_cmp_ge_u32 s{s_rg}, 2")
            e(f"s_cselect_b32 s{s_tmp}, {OOB}, s{s_tmp}")
        ins = f"buffer_load_dwordx4 {vr(AFreg(n),4)}, v{v_l16}, {srd(sWS)}, s{s_tmp} offen sc1"
        (a.vmem(ins, f"H{n}") if track else e(ins))

def guarded_h_loads(a, ns, track=True):
    l = a.newlabel("Lhl")
    a.e(f"s_cmp_eq_u32 s{s_ok}, 0")
    a.e(f"s_cbranch_scc1 {l}")
    h_loads(a, ns, track)
    a.label(l)

def flags16(a, phase, vdst):
    e = a.e
    e(f"s_lshr_b32 s{s_tmp}, s{s_rb3}, 1")
    e(f"s_lshl_b32 s{s_tmp}, s{s_tmp}, 11")
    e(f"s_add_u32 s{s_tmp}, s{s_tmp}, {FL + phase*32768}")
    e(f"v_and_b32 v{vdst}, 15, v{v_lane}")
    e(f"v_lshlrev_b32 v{vdst}, 7, v{vdst}")
    e(f"v_add_u32 v{vdst}, s{s_tmp}, v{vdst}")
    e(f"s_mov_b32 s{s_m}, 0xffff")
    e(f"s_mov_b32 s{s_m+1}, 0")

HB_ISSUE, HB_CHECK = env("GEN_HBI", 4), env("GEN_HBC", 2)

def attention(a, slot_of):
    e = a.e
    a.c("================ attention ================")
    e(f"s_lshl_b32 s{s_tmp}, s{s_rg}, 10")
    e(f"s_add_u32 s{s_tmp}, s{s_tmp}, {ATQ}")
    e(f"v_add_u32 v{v_t0}, s{s_tmp}, v{v_l16}")
    l = a.newlabel("Lqx")
    e(f"s_cmp_lg_u32 s{s_cgp}, 0")
    e(f"s_cbranch_scc1 {l}")
    e(f"ds_write_b128 v{v_t0}, {vr(BF+4,4)}")
    for i in range(4): e(f"v_mov_b32 v{QFR+i}, v{BF+i}")
    a.label(l)
    l = a.newlabel("Lkvok")
    e(f"s_cmp_lg_u32 s{s_ok}, 0")
    e(f"s_cbranch_scc1 {l}")
    poll(a, v_g2)
    issue_kv(a, "K", track=False)
    e("s_waitcnt vmcnt(0)")
    a.label(l)
    stamp(a)
    e(f"s_lshl_b32 s{s_tmp}, s{s_rg}, 11")
    e(f"s_lshl_b32 s{s_tmp2}, s{s_cgp}, 10")
    e(f"s_add_u32 s{s_tmp2}, s{s_tmp2}, s{s_tmp}")
    e(f"s_add_u32 s{s_tmp2}, s{s_tmp2}, {ATK}")
    e(f"v_add_u32 v{v_krd}, s{s_tmp2}, v{v_l16}")
    e(f"s_lshl_b32 s{s_tmp2}, s{s_cgp}, 8")
    e(f"s_add_u32 s{s_tmp2}, s{s_tmp2}, s{s_tmp}")
    e(f"s_add_u32 s{s_tmp2}, s{s_tmp2}, {ATV}")
    e(f"v_add_u32 v{v_vrd}, s{s_tmp2}, v{v_l16}")
    e(f"s_lshl_b32 s{s_qb}, s{s_rb}, 2")
    e(f"s_add_u32 s{s_qb}, s{s_qb}, s{s_rg}")
    e(f"s_sub_i32 s{s_first}, 8, s{s_qb}")
    e(f"s_max_i32 s{s_first}, s{s_first}, 0")
    e(f"s_mov_b32 s{s_vm}, 0xffff")
    e(f"s_mov_b32 s{s_vm+1}, 0xffff")
    for i in range(16):
        e(f"v_mov_b32 v{VROT+i}, 0x3f803f80")
    c = 0.25 * math.log2(math.e)
    cbits = struct.unpack("<I", struct.pack("<f", c))[0]
    e(f"v_mov_b32 v{v_c2}, 0x{cbits:08x}")
    e(f"v_mov_b32 v{v_c2+1}, 0x{cbits:08x}")
    s3_addr_setup(a)
    flags16(a, 1, v_fo)
    a.wait_vm("AK", lgkm0=True)
    e("s_barrier")
    stamp(a)
    issue_kv(a, "V")
    lg = Lg(a)
    l = a.newlabel("Lqr")
    e(f"s_cmp_eq_u32 s{s_cgp}, 0")
    e(f"s_cbranch_scc1 {l}")
    e(f"ds_read_b128 {vr(QFR,4)}, v{v_t0}")
    a.label(l)
    for b in range(8, -1, -1):
        e(f"ds_read_b128 {vr(KFR+4*b,4)}, v{v_krd} offset:{b*2048}"); lg.add(("k", b))
    for b in range(8, -1, -1):
        lg.wait([("k", b)])
        S = Sreg(b)
        mfma(a, S, KFR + 4*b, QFR, S if b in (0, 8) else "0")
    lmax = a.newlabel("Lmaxd")
    e("s_nop 4")
    for b in range(8, -1, -1):
        S = Sreg(b)
        if b < 8:
            e(f"s_cmp_gt_u32 s{s_first}, {b}")
            e(f"s_cbranch_scc1 {lmax}")
        for q in range(8):
            if b == 8 and q == 0:
                e(f"v_max_f32 v{v_max}, v{S}, v{S+1}")
            else:
                e(f"v_max3_f32 v{v_max}, v{S+2*q}, v{S+2*q+1}, v{v_max}")
    a.label(lmax)
    e(f"v_mov_b32 v{v_max2}, v{v_max}")
    e("s_nop 1")
    e(f"v_permlane32_swap_b32 v{v_max}, v{v_max2}")
    e("s_nop 1")
    e(f"v_max_f32 v{v_max}, v{v_max}, v{v_max2}")
    e(f"v_mul_f32 v{v_mc}, v{v_c2}, v{v_max}")
    e(f"v_sub_f32 v{v_mc}, 0, v{v_mc}")
    e(f"v_mov_b32 v{v_mc+1}, v{v_mc}")
    def softmax_block(b):
        S = Sreg(b)
        for q in range(8):
            e(f"v_pk_fma_f32 v[{S+2*q}:{S+2*q+1}], v[{S+2*q}:{S+2*q+1}], v[{v_c2}:{v_c2+1}], v[{v_mc}:{v_mc+1}]")
        for r in range(16):
            e(f"v_exp_f32 v{S+r}, v{S+r}")
        for q in range(8):
            e(f"v_cvt_pk_bf16_f32 v{S+q}, v{S+2*q}, v{S+2*q+1}")
    softmax_block(8)
    a.wait_vm(["AV", "ST1"])
    e("s_barrier")
    signal(a, 1)
    stamp(a)
    for pc, sl in ((6, 6), (7, 7)):
        slot_of[pc] = sl; issue_w2_piece(a, pc, sl)
    lg = Lg(a)
    def vread(n):
        b = 8 - n//2; m = n % 2
        e(f"ds_read_b128 {vr(VROT + 4*(n%4), 4)}, v{v_vrd} offset:{b*2048 + m*1024}")
        lg.add(("v", n))
    e(f"s_mov_b64 exec, s[{s_vm}:{s_vm+1}]")
    vread(0); vread(1)
    e("s_mov_b64 exec, -1")
    lpv = a.newlabel("Lpvd")
    e(f"s_mov_b32 s{s_ok}, 0")
    skip_labels = {}
    hl = list(range(22)) + ["g"]
    per = -(-len(hl) // (HB_CHECK + 1))
    def post_block(b, track):
        if b == HB_ISSUE: flag_issue(a, v_fo, v_fd, "FH", track)
        if b == HB_CHECK:
            flag_check(a, v_fd, "FH", track)
            e(f"s_cselect_b32 s{s_ok}, 1, 0")
        if b <= HB_CHECK:
            i0 = (HB_CHECK - b) * per
            if hl[i0:i0+per]: guarded_h_loads(a, hl[i0:i0+per], track)
    for b in range(8, -1, -1):
        S = Sreg(b)
        n0 = 2*(8 - b)
        if b < 8:
            skip_labels[b] = a.newlabel("Lskip")
            e(f"s_cmp_gt_u32 s{s_first}, {b}")
            e(f"s_cbranch_scc1 {skip_labels[b]}")
        if b > 0:
            e(f"s_mov_b64 exec, s[{s_vm}:{s_vm+1}]")
            vread(n0 + 2); vread(n0 + 3)
            e("s_mov_b64 exec, -1")
        if b < 8: softmax_block(b)
        lg.wait([("v", n0), ("v", n0+1)])
        e("s_nop 0")
        mfma(a, OACC, VROT + 4*(n0 % 4), S, "0" if b == 8 else OACC)
        mfma(a, OACC, VROT + 4*((n0+1) % 4), S + 4, OACC)
        post_block(b, True)
    e(f"s_branch {lpv}")
    for b in range(7, -1, -1):
        a.label(skip_labels[b])
        post_block(b, False)
    a.label(lpv)
    e("s_waitcnt lgkmcnt(0)")
    e("s_nop 7"); e("s_nop 3")
    e(f"v_rcp_f32 v{v_max}, v{OACC+8}")
    e("s_nop 0")
    for r in range(8):
        e(f"v_mul_f32 v{OACC+r}, v{OACC+r}, v{v_max}")
    for q in range(4):
        e(f"v_cvt_pk_bf16_f32 v{248+q}, v{OACC+2*q}, v{OACC+2*q+1}")
    a.vmem(f"buffer_store_dwordx4 v[248:251], v{v_l16}, {srd(sWS)}, s{s_oa} offen sc1", "ST2")
    l = a.newlabel("Lhok")
    e(f"s_cmp_lg_u32 s{s_ok}, 0")
    e(f"s_cbranch_scc1 {l}")
    poll(a, v_fo)
    h_loads(a, list(range(22)) + ["g"], track=False)
    e("s_waitcnt vmcnt(0)")
    a.label(l)
    stamp(a)
s_oa = 94

def compute3(a, pieces, slot_of, cnt):
    e = a.e
    work = []
    for pc in pieces:
        for u in range(2):
            if pc <= 10: af = AFreg(2*pc + u); tag = f"H{2*pc+u}"; acc = ACB; first = (pc == 0 and u == 0)
            else: af = AOreg(2*(pc-11) + u); tag = f"O{2*(pc-11)+u}"; acc = ACA; first = (pc == 11 and u == 0)
            for ct in range(2):
                work.append((slot_of[pc], u, ct, af, tag, acc + 16*ct, first))
    lg = Lg(a)
    cur = {}
    def rd(w):
        sl, u, ct, af, tag, acc, first = work[w]
        vb = v_tr3b if ct else v_tr3
        off = sl*SLOT + u*8192
        if off + 1024 > 65535:
            r = v_t5 if ct else v_t4
            if cur.get(ct) != sl:
                e(f"v_add_u32 v{r}, {sl*SLOT}, v{vb}")
                cur[ct] = sl
            vb = r; off = u*8192
        b = BF3 + ((cnt[0] + w) % 8)*4
        e(f"ds_read_b64_tr_b16 {vr(b,2)}, v{vb} offset:{off}")
        e(f"ds_read_b64_tr_b16 {vr(b+2,2)}, v{vb} offset:{off + 1024}")
        lg.add(w); lg.add(w)
    D = 4
    for w in range(min(D, len(work))): rd(w)
    for w in range(len(work)):
        if w + D < len(work): rd(w + D)
        sl, u, ct, af, tag, acc, first = work[w]
        a.wait_vm(tag)
        lg.wait([w])
        b = BF3 + ((cnt[0] + w) % 8)*4
        mfma(a, acc, b, af, "0" if first else acc)
    cnt[0] += len(work)
    lg.drain()

def o_loads(a, track=True):
    for n in range(8):
        a.e(f"s_add_u32 s{s_tmp}, s{s_a3o}, {n*4096}")
        ins = f"buffer_load_dwordx4 {vr(AOreg(n),4)}, v{v_l16}, {srd(sWS)}, s{s_tmp} offen sc1"
        (a.vmem(ins, f"O{n}") if track else a.e(ins))

def o_check(a):
    e = a.e
    regs = [AOreg(n) + i for n in range(8) for i in range(4)]
    e(f"v_max3_u32 v{v_t2}, v{regs[0]}, v{regs[1]}, v{regs[2]}")
    i = 3
    while i < len(regs):
        if i + 1 < len(regs):
            e(f"v_max3_u32 v{v_t2}, v{regs[i]}, v{regs[i+1]}, v{v_t2}"); i += 2
        else:
            e(f"v_max_u32 v{v_t2}, v{regs[i]}, v{v_t2}"); i += 1
    e(f"v_cmp_eq_u32 vcc, -1, v{v_t2}")
    e("s_nop 3")
    e("s_cmp_eq_u64 vcc, 0")

def stage3(a, slot_of):
    e = a.e
    a.c("================ stage 3 ================")
    cnt = [0]
    compute3(a, [0, 1, 2], slot_of, cnt)
    a.wait_vm(["Q6", "Q7"])
    e("s_barrier")
    stamp(a)
    for pc, sl in ((8, 8), (9, 9), (10, slot_of[0]), (11, slot_of[1]), (12, slot_of[2])):
        slot_of[pc] = sl; issue_w2_piece(a, pc, sl)
    compute3(a, [3, 4, 5, 6, 7], slot_of, cnt)
    o_loads(a)
    a.wait_vm(["Q8", "Q9", "Q10", "Q11", "Q12"])
    e("s_barrier")
    stamp(a)
    for pc, sl in ((13, slot_of[3]), (14, slot_of[4])):
        slot_of[pc] = sl; issue_w2_piece(a, pc, sl)
    compute3(a, [8, 9, 10], slot_of, cnt)
    a.wait_vm("O7")
    lp = a.newlabel("Lop"); ld = a.newlabel("Lod")
    e(f"s_mov_b32 s{s_cnt}, 0")
    a.label(lp)
    o_check(a)
    e(f"s_cbranch_scc1 {ld}")
    o_loads(a, track=False)
    e("s_waitcnt vmcnt(0)")
    e(f"s_add_u32 s{s_cnt}, s{s_cnt}, 1")
    e(f"s_cmp_lt_u32 s{s_cnt}, 100000")
    e(f"s_cbranch_scc1 {lp}")
    a.label(ld)
    stamp(a)
    compute3(a, [11, 12], slot_of, cnt)
    a.wait_vm(["Q13", "Q14"])
    e("s_barrier")
    compute3(a, [13, 14], slot_of, cnt)
    stamp(a)
    a.wait_vm("G")
    e(f"v_sub_f32 v{v_omg2}, 1.0, v{v_g2}")
    e(f"v_cvt_pk_bf16_f32 v{v_omg2}, v{v_omg2}, v{v_omg2}")
    e(f"v_lshlrev_b32 v{v_omg2}, 16, v{v_omg2}")
    e(f"v_mov_b32 v{v_omg2+1}, v{v_omg2}")
    e(f"v_mov_b32 v{v_g2+1}, v{v_g2}")
    e(f"v_and_b32 v{v_t0}, 31, v{v_lane}")
    e(f"s_movk_i32 s{s_tmp}, 272")
    e(f"v_mul_u32_u24 v{v_t0}, s{s_tmp}, v{v_t0}")
    e(f"v_lshl_add_u32 v{v_t0}, v{v_hi}, 4, v{v_t0}")
    e(f"s_mul_i32 s{s_tmp}, s{s_rg}, 17408")
    e(f"s_mul_i32 s{s_tmp2}, s{s_cgp}, {32*272}")
    e(f"s_add_u32 s{s_tmp}, s{s_tmp}, s{s_tmp2}")
    e(f"v_add_u32 v{v_t0}, s{s_tmp}, v{v_t0}")
    for q in range(16):
        e(f"v_pk_mul_f32 v[{ACB+2*q}:{ACB+2*q+1}], v[{ACB+2*q}:{ACB+2*q+1}], v[{v_omg2}:{v_omg2+1}]")
    for q in range(16):
        e(f"v_pk_fma_f32 v[{ACB+2*q}:{ACB+2*q+1}], v[{ACA+2*q}:{ACA+2*q+1}], v[{v_g2}:{v_g2+1}], v[{ACB+2*q}:{ACB+2*q+1}]")
    e("s_barrier")
    for ct in range(2):
        for g4 in range(4):
            e(f"ds_write_b128 v{v_t0}, {vr(ACB + 16*ct + 4*g4, 4)} offset:{ct*128 + g4*32}")
    e(f"v_lshrrev_b32 v{v_t0}, 3, v0")
    e(f"v_and_b32 v{v_t1}, 7, v0")
    e(f"s_movk_i32 s{s_tmp}, 272")
    e(f"v_mul_u32_u24 v{v_t2}, s{s_tmp}, v{v_t0}")
    e(f"v_lshl_add_u32 v{v_t2}, v{v_t1}, 5, v{v_t2}")
    e(f"v_lshlrev_b32 v{v_t0}, 10, v{v_t0}")
    e(f"v_lshl_add_u32 v{v_t0}, v{v_t1}, 4, v{v_t0}")
    e(f"s_lshl_b32 s{s_tmp}, s{s_rb3}, 16")
    e(f"s_lshl_b32 s{s_tmp2}, s{s_cb3}, 7")
    e(f"s_add_u32 s{s_tmp}, s{s_tmp}, s{s_tmp2}")
    e("s_waitcnt lgkmcnt(0)")
    e("s_barrier")
    for kq in range(4):
        e(f"ds_read_b128 {vr(64 + 8*kq, 4)}, v{v_t2} offset:{kq*17408}")
        e(f"ds_read_b128 {vr(68 + 8*kq, 4)}, v{v_t2} offset:{kq*17408 + 16}")
    e("s_waitcnt lgkmcnt(0)")
    for q in range(4):
        e(f"v_pk_add_f32 v[{64+2*q}:{65+2*q}], v[{64+2*q}:{65+2*q}], v[{72+2*q}:{73+2*q}]")
        e(f"v_pk_add_f32 v[{80+2*q}:{81+2*q}], v[{80+2*q}:{81+2*q}], v[{88+2*q}:{89+2*q}]")
    for q in range(4):
        e(f"v_pk_add_f32 v[{64+2*q}:{65+2*q}], v[{64+2*q}:{65+2*q}], v[{80+2*q}:{81+2*q}]")
    for q in range(4):
        e(f"v_cvt_pk_bf16_f32 v{64+q}, v{64+2*q}, v{65+2*q}")
    e(f"buffer_store_dwordx4 v[64:67], v{v_t0}, {srd(sOUT)}, s{s_tmp} offen")
    stamp(a)

def common_setup(a):
    e = a.e
    l = a.newlabel("Lcas")
    e(f"s_or_b32 s{s_nonce}, s{s_nonce}, 1")
    e(f"s_or_b32 s{s_tmp}, s{s_wv}, s2")
    e(f"s_cmp_lg_u32 s{s_tmp}, 0")
    e(f"s_cbranch_scc1 {l}")
    e(f"v_mov_b32 v{v_non}, s{s_nonce}")
    e(f"v_mov_b32 v{v_non+1}, s{s_nonce+1}")
    e(f"v_mov_b32 v{v_t4}, 0")
    e(f"s_mov_b64 s[{s_exec}:{s_exec+1}], exec")
    e("s_mov_b64 exec, 1")
    e(f"buffer_store_dwordx2 {vr(v_non,2)}, v{v_t4}, {srd(sDBG)}, 0 offen sc1")
    e(f"s_mov_b64 exec, s[{s_exec}:{s_exec+1}]")
    a.label(l)
    e(f"s_lshl_b32 s{s_tmp}, s{s_rb}, 2")
    e(f"s_add_u32 s{s_tmp}, s{s_tmp}, s{s_rg}")
    e(f"s_lshl_b32 s{s_oa}, s{s_tmp}, 15")
    e(f"s_lshl_b32 s{s_tmp2}, s{s_cg}, 1")
    e(f"s_add_u32 s{s_tmp2}, s{s_tmp2}, s{s_cgp}")
    e(f"s_lshl_b32 s{s_tmp2}, s{s_tmp2}, 10")
    e(f"s_add_u32 s{s_oa}, s{s_oa}, s{s_tmp2}")
    e(f"s_add_u32 s{s_oa}, s{s_oa}, {OF}")
    for i in range(4): e(f"v_mov_b32 v{MASKF+i}, -1")
    a.vmem(f"buffer_store_dwordx4 {vr(MASKF,4)}, v{v_l16}, {srd(sWS)}, s{s_oa} offen sc1", "SENT")
    e(f"v_and_b32 v{v_t0}, 31, v{v_lane}")
    e(f"v_lshrrev_b32 v{v_hi}, 5, v{v_lane}")
    e(f"v_and_b32 v{v_t1}, 15, v{v_lane}")
    e(f"v_xor_b32 v{v_t1}, v{v_t1}, v{v_hi}")
    e(f"v_lshlrev_b32 v{v_t1}, 4, v{v_t1}")
    e(f"v_lshl_add_u32 v{v_xrd}, v{v_t0}, 8, v{v_t1}")
    e(f"s_lshl_b32 s{s_tmp}, s{s_rg}, 13")
    e(f"v_add_u32 v{v_xrd}, s{s_tmp}, v{v_xrd}")
    e(f"v_and_b32 v{v_t0}, 15, v{v_lane}")
    e(f"v_lshrrev_b32 v{v_t1}, 2, v{v_t0}")
    e(f"v_bfe_u32 v{v_t2}, v{v_lane}, 4, 1")
    e(f"v_bfe_u32 v{v_t3}, v{v_lane}, 1, 1")
    e(f"v_lshl_add_u32 v{v_t2}, v{v_t2}, 1, v{v_t3}")
    e(f"v_and_b32 v{v_t3}, 1, v{v_lane}")
    e(f"v_lshlrev_b32 v{v_t3}, 3, v{v_t3}")
    e(f"v_lshl_add_u32 v{v_t2}, v{v_t2}, 4, v{v_t3}")
    e(f"v_lshrrev_b32 v{v_t3}, 1, v{v_t1}")
    e(f"v_xor_b32 v{v_t4}, s{s_cgp}, v{v_t3}")
    e(f"v_lshl_add_u32 v{v_t4}, v{v_t4}, 6, v{v_t2}")
    e(f"v_lshl_add_u32 v{v_t5}, v{v_hi}, 3, v{v_t1}")
    e(f"v_lshl_add_u32 v{v_trn}, v{v_t5}, 7, v{v_t4}")
    e(f"s_cmp_eq_u32 s{s_cgp}, 0")
    e(f"s_movk_i32 s{s_tmp}, 192")
    e(f"s_cselect_b32 s{s_tmp}, 64, s{s_tmp}")
    e(f"s_lshl_b32 s{s_k16}, s{s_tmp}, 4")
    e(f"s_lshl_b32 s{s_tmp2}, s{s_cgp}, 12")
    e(f"v_mad_u32_u24 v{v_trw}, v{v_t5}, s{s_tmp}, v{v_t2}")
    e(f"v_add_u32 v{v_trw}, s{s_tmp2}, v{v_trw}")
    e(f"s_lshl_b32 s{s_tmp}, s{s_tmp}, 2")
    e(f"v_add_u32 v{v_omg2}, s{s_tmp}, v{v_trw}")
    e(f"s_movk_i32 s{s_tmp}, 192")
    e(f"v_mad_u32_u24 v{v_trw2}, v{v_t5}, s{s_tmp}, v{v_t2}")
    e(f"s_lshl_b32 s{s_tmp2}, s{s_cgp}, 6")
    e(f"s_add_u32 s{s_tmp2}, s{s_tmp2}, {4096 + 64}")
    e(f"v_add_u32 v{v_trw2}, s{s_tmp2}, v{v_trw2}")
    e(f"v_lshl_add_u32 v{v_t4}, v{v_t3}, 6, v{v_t2}")
    e(f"v_lshl_add_u32 v{v_t5}, v{v_hi}, 2, v{v_t1}")
    e(f"v_lshl_add_u32 v{v_tr3}, v{v_t5}, 7, v{v_t4}")
    e(f"s_lshl_b32 s{s_tmp}, s{s_rg}, 11")
    e(f"v_add_u32 v{v_tr3}, s{s_tmp}, v{v_tr3}")
    e(f"v_xor_b32 v{v_tr3b}, 64, v{v_tr3}")

def wide_setup(a):
    e = a.e
    lq = a.newlabel("Lwq"); lj = a.newlabel("Lwj")
    e(f"s_cmp_lt_u32 s{s_wv}, 2")
    e(f"s_cbranch_scc1 {lq}")
    e(f"s_mov_b32 s{sPW}, s{sW1}"); e(f"s_mov_b32 s{sPW+1}, s{sW1+1}"); e(f"s_mov_b32 s{sPW+2}, {512*1376*2}"); e(f"s_mov_b32 s{sPW+3}, 0x00020000")
    e(f"s_sub_u32 s{s_tmp}, s{s_wv}, 2")
    e(f"s_lshl_b32 s{s_tmp}, s{s_tmp}, 7")
    e(f"s_movk_i32 s{s_tmp3}, 2752")
    e(f"s_movk_i32 s{s_tmp4}, 5462")
    for t in range(2):
        e(f"v_add_u32 v{v_t0}, s{s_tmp}, v{v_lane}")
        if t: e(f"v_add_u32 v{v_t0}, 64, v{v_t0}")
        e(f"v_mul_u32_u24 v{v_t1}, s{s_tmp4}, v{v_t0}")
        e(f"v_lshrrev_b32 v{v_t1}, 16, v{v_t1}")
        e(f"v_mul_u32_u24 v{v_t2}, 12, v{v_t1}")
        e(f"v_sub_u32 v{v_t0}, v{v_t0}, v{v_t2}")
        e(f"v_lshlrev_b32 v{v_t0}, 4, v{v_t0}")
        e(f"v_mad_u32_u24 v{v_wd0+t}, v{v_t1}, s{s_tmp3}, v{v_t0}")
    e(f"s_mul_i32 s{s_wideoff}, s{s_cg}, 192")
    e(f"s_cmp_eq_u32 s{s_cg}, 15")
    e(f"s_cselect_b32 s{s_wideoff}, {OOB}, s{s_wideoff}")
    e(f"s_mov_b32 s{s_pstep}, {64*2752}")
    e(f"s_branch {lj}")
    a.label(lq)
    e(f"s_mov_b32 s{sPW}, s{sWQ}"); e(f"s_mov_b32 s{sPW+1}, s{sWQ+1}"); e(f"s_mov_b32 s{sPW+2}, {512*1536*2}"); e(f"s_mov_b32 s{sPW+3}, 0x00020000")
    e(f"s_lshl_b32 s{s_tmp}, s{s_wv}, 5")
    e(f"s_movk_i32 s{s_tmp3}, 3072")
    e(f"v_lshrrev_b32 v{v_t1}, 2, v{v_lane}")
    e(f"v_add_u32 v{v_t1}, s{s_tmp}, v{v_t1}")
    e(f"v_and_b32 v{v_t0}, 3, v{v_lane}")
    e(f"v_lshlrev_b32 v{v_t0}, 4, v{v_t0}")
    e(f"v_mad_u32_u24 v{v_wd0}, v{v_t1}, s{s_tmp3}, v{v_t0}")
    e(f"v_add_u32 v{v_wd1}, {16*3072}, v{v_wd0}")
    e(f"s_lshl_b32 s{s_wideoff}, s{s_cg}, 6")
    e(f"s_mov_b32 s{s_pstep}, {64*3072}")
    a.label(lj)

def gen():
    a = Asm()
    e = a.e
    e("s_cmp_ge_u32 s2, 256")
    e("s_cbranch_scc1 L_exit")
    e("s_load_dwordx4 s[8:11], s[0:1], 0")
    e("s_load_dwordx2 s[24:25], s[0:1], 16")
    e("s_load_dwordx4 s[16:19], s[0:1], 32")
    e("s_load_dwordx4 s[36:39], s[0:1], 48")
    e("s_load_dwordx4 s[40:43], s[0:1], 64")
    e(f"s_memrealtime s[{s_nonce}:{s_nonce+1}]")
    e(f"v_and_b32 v{v_lane}, 63, v0")
    e(f"v_lshrrev_b32 v{v_t0}, 6, v0")
    e(f"v_lshlrev_b32 v{v_l16}, 4, v{v_lane}")
    e(f"v_readfirstlane_b32 s{s_wv}, v{v_t0}")
    e(f"s_and_b32 s{s_tmp}, s2, 7")
    e(f"s_lshr_b32 s{s_tmp2}, s2, 3")
    e(f"s_and_b32 s{s_rb}, s{s_tmp}, 1")
    e(f"s_lshl_b32 s{s_rb}, s{s_rb}, 3")
    e(f"s_and_b32 s{s_tmp3}, s{s_tmp2}, 7")
    e(f"s_add_u32 s{s_rb}, s{s_rb}, s{s_tmp3}")
    e(f"s_lshr_b32 s{s_cg}, s{s_tmp}, 1")
    e(f"s_lshl_b32 s{s_cg}, s{s_cg}, 2")
    e(f"s_lshr_b32 s{s_tmp3}, s{s_tmp2}, 3")
    e(f"s_add_u32 s{s_cg}, s{s_cg}, s{s_tmp3}")
    e(f"s_lshr_b32 s{s_p}, s{s_cg}, 1")
    e(f"s_and_b32 s{s_t}, s{s_cg}, 1")
    e(f"s_lshl_b32 s{s_rb3}, s{s_tmp}, 2")
    e(f"s_and_b32 s{s_tmp3}, s{s_tmp2}, 3")
    e(f"s_add_u32 s{s_rb3}, s{s_rb3}, s{s_tmp3}")
    e(f"s_lshr_b32 s{s_cb3}, s{s_tmp2}, 2")
    e(f"s_and_b32 s{s_rg}, s{s_wv}, 3")
    e(f"s_lshr_b32 s{s_cgp}, s{s_wv}, 2")
    e(f"s_lshl_b32 s{s_ldsw}, s{s_wv}, 11")
    e(f"s_lshl_b32 s{s_xlds}, s{s_wv}, 12")
    e(f"s_lshl_b32 s{s_xbase}, s{s_rb}, 17")
    e(f"s_lshl_b32 s{s_tmp3}, s{s_wv}, 14")
    e(f"s_add_u32 s{s_xbase}, s{s_xbase}, s{s_tmp3}")
    if STAMPS:
        e(f"s_lshl_b32 s{s_tsb}, s2, 3")
        e(f"s_add_u32 s{s_tsb}, s{s_tsb}, s{s_wv}")
        e(f"s_lshl_b32 s{s_tsb}, s{s_tsb}, 7")
        e(f"s_add_u32 s{s_tsb}, s{s_tsb}, {TS}")
    e(f"v_lshrrev_b32 v{v_t0}, 4, v{v_lane}")
    e(f"v_and_b32 v{v_t1}, 15, v{v_lane}")
    e(f"v_xor_b32 v{v_t1}, v{v_t1}, v{v_t0}")
    e(f"v_lshlrev_b32 v{v_t0}, 10, v{v_t0}")
    for t in range(4):
        e(f"v_xor_b32 v{v_t2}, {4*t}, v{v_t1}")
        e(f"v_lshl_add_u32 v{v_xo+t}, v{v_t2}, 4, v{v_t0}")
    e(f"v_lshrrev_b32 v{v_t0}, 3, v{v_lane}")
    e(f"v_and_b32 v{v_t1}, 7, v{v_lane}")
    e(f"v_lshrrev_b32 v{v_t2}, 2, v{v_lane}")
    e(f"v_and_b32 v{v_t2}, 4, v{v_t2}")
    e(f"v_xor_b32 v{v_t1}, v{v_t1}, v{v_t2}")
    e(f"v_lshlrev_b32 v{v_t1}, 4, v{v_t1}")
    e(f"s_movk_i32 s{s_tmp3}, 3072")
    e(f"v_mad_u32_u24 v{v_wq_n}, v{v_t0}, s{s_tmp3}, v{v_t1}")
    e(f"v_lshl_add_u32 v{v_w2_n}, v{v_t0}, 10, v{v_t1}")
    e(f"s_mul_i32 s{s_naroff}, s{s_wv}, {16*3072}")
    e(f"s_lshl_b32 s{s_tmp3}, s{s_p}, 7")
    e(f"s_add_u32 s{s_naroff}, s{s_naroff}, s{s_tmp3}")
    e(f"s_lshl_b32 s{s_tmp3}, s{s_t}, 10")
    e(f"s_add_u32 s{s_naroff}, s{s_naroff}, s{s_tmp3}")
    e(f"s_add_u32 s{s_naroff}, s{s_naroff}, 1024")
    e(f"s_lshl_b32 s{s_tmp3}, s{s_p}, 1")
    e(f"s_add_u32 s{s_tmp3}, s{s_tmp3}, s{s_cgp}")
    e(f"s_lshl_b32 s{s_tmp3}, s{s_tmp3}, 6")
    e(f"s_lshl_b32 s{s_tmp4}, s{s_rb}, 2")
    e(f"s_add_u32 s{s_tmp4}, s{s_tmp4}, s{s_rg}")
    e(f"s_add_u32 s{s_tmp3}, s{s_tmp3}, s{s_tmp4}")
    e(f"s_lshl_b32 s{s_st0}, s{s_tmp3}, 11")
    e(f"s_lshl_b32 s{s_tmp3}, s{s_t}, 21")
    e(f"s_add_u32 s{s_st0}, s{s_st0}, s{s_tmp3}")
    e(f"s_add_u32 s{s_st0}, s{s_st0}, {KF}")
    e(f"s_mul_i32 s{s_tmp4}, s{s_tmp4}, {HROW}")
    e(f"s_add_u32 s{s_tmp4}, s{s_tmp4}, {HF}")
    e(f"s_mul_i32 s{s_tmp3}, s{s_cg}, 3")
    e(f"s_lshl_b32 s{s_st1}, s{s_tmp3}, 11")
    e(f"s_add_u32 s{s_st1}, s{s_st1}, s{s_tmp4}")
    e(f"s_cmp_ge_u32 s{s_tmp3}, 43")
    e(f"s_cselect_b32 s{s_st1}, {OOB}, s{s_st1}")
    e(f"s_cmp_eq_u32 s{s_cgp}, 0")
    e(f"s_cselect_b32 s{s_st1}, {OOB}, s{s_st1}")
    e(f"s_add_u32 s{s_tmp3}, s{s_tmp3}, s{s_cgp}")
    e(f"s_add_u32 s{s_tmp3}, s{s_tmp3}, 1")
    e(f"s_lshl_b32 s{s_st2}, s{s_tmp3}, 11")
    e(f"s_add_u32 s{s_st2}, s{s_st2}, s{s_tmp4}")
    e(f"s_cmp_ge_u32 s{s_tmp3}, 43")
    e(f"s_cselect_b32 s{s_st2}, {OOB}, s{s_st2}")
    e(f"s_lshl_b32 s{s_w2off}, s{s_wv}, 14")
    e(f"s_lshl_b32 s{s_tmp3}, s{s_cb3}, 7")
    e(f"s_add_u32 s{s_w2off}, s{s_w2off}, s{s_tmp3}")
    e("s_waitcnt lgkmcnt(0)")
    e("s_mov_b32 s12, s10"); e("s_mov_b32 s13, s11"); e(f"s_mov_b32 s14, {512*1536*2}"); e("s_mov_b32 s15, 0x00020000")
    e(f"s_mov_b32 s10, {2048*512*2}"); e("s_mov_b32 s11, 0x00020000")
    e("s_mov_b32 s32, s38"); e("s_mov_b32 s33, s39"); e(f"s_mov_b32 s34, {2048*512*2}"); e("s_mov_b32 s35, 0x00020000")
    e("s_mov_b32 s38, 1024"); e("s_mov_b32 s39, 0x00020000")
    e(f"s_mov_b32 s{s_ldsww}, 0")
    e(f"s_mov_b32 s{s_gw}, 0")
    lg_ = a.newlabel("Lgs")
    e(f"s_cmp_lg_u32 s{s_cg}, 15")
    e(f"s_cbranch_scc1 {lg_}")
    e(f"s_cmp_lt_u32 s{s_wv}, 2")
    e(f"s_cbranch_scc1 {lg_}")
    e(f"s_mov_b32 s{s_ldsww}, 0x30000")
    e(f"s_cmp_lg_u32 s{s_wv}, 2")
    e(f"s_cbranch_scc1 {lg_}")
    e(f"s_mov_b32 s{s_gw}, 1")
    e(f"v_lshlrev_b32 v{v_t0}, 1, v{v_lane}")
    for j in range(8):
        e(f"buffer_load_ushort v{GREG+j}, v{v_t0}, {srd(sGW)}, 0 offen offset:{j*128}")
    e(f"s_movk_i32 s{s_tmp3}, 192")
    e(f"v_mul_u32_u24 v{v_g2}, s{s_tmp3}, v{v_lane}")
    a.label(lg_)
    issue_x_quarter(a, 0)
    issue_piece(a, 0, 2)
    e("s_mov_b32 s20, s18"); e("s_mov_b32 s21, s19"); e(f"s_mov_b32 s22, {1376*512*2}"); e("s_mov_b32 s23, 0x00020000")
    e(f"s_mov_b32 s18, {512*1376*2}"); e("s_mov_b32 s19, 0x00020000")
    e(f"s_mov_b32 s26, {512*512*2}"); e("s_mov_b32 s27, 0x00020000")
    e("s_mov_b32 s28, s42"); e("s_mov_b32 s29, s43"); e(f"s_mov_b32 s30, {WS_BYTES}"); e("s_mov_b32 s31, 0x00020000")
    e("s_mov_b32 s42, 256"); e("s_mov_b32 s43, 0x00020000")
    stamp(a)
    e("s_barrier")
    issue_x_quarter(a, 1)
    issue_piece(a, 1, 3)
    if TOUCH: touch(a)
    common_setup(a)
    wide_setup(a)
    e(f"s_cmp_lg_u32 s{s_t}, 0")
    e("s_cbranch_scc1 L_s1v")
    w2_slot = run_stage1(a)
    stamp(a)
    attention(a, w2_slot)
    stage3(a, w2_slot)
    a.label("L_exit")
    a.e("s_endpgm")
    return a

def touch(a):
    e = a.e
    e(f"s_lshl_b32 s{s_tmp}, s2, 3")
    e(f"s_add_u32 s{s_tmp}, s{s_tmp}, s{s_wv}")
    e(f"s_lshl_b32 s{s_tmp}, s{s_tmp}, 10")
    T = 224
    for i, sr in enumerate((sW1, sW2, sWQ, sWO)):
        a.vmem(f"buffer_load_dwordx4 {vr(T+4*i,4)}, v{v_l16}, {srd(sr)}, s{s_tmp} offen", "TCH")

HEADER = open(os.path.join(os.path.dirname(os.path.abspath(__file__)), "..", "cdna_kernels", NAME + ".s.ref")).read().split("; Override launch")[0]

def emit_file(path):
    a = gen()
    s = HEADER
    s += "; @launch grid=(256,1,1) block=(512,1,1) lds=163840\n"
    s += f""".amdgcn_target "amdgcn-amd-amdhsa--gfx950"
.text
.globl {NAME}_kernel
.p2align 8
.type {NAME}_kernel,@function
{NAME}_kernel:
"""
    s += "\n".join(a.lines) + "\n"
    s += f""".section .rodata,"a"
.p2align 6
.amdhsa_kernel {NAME}_kernel
  .amdhsa_next_free_vgpr 256
  .amdhsa_next_free_sgpr {NSGPR}
  .amdhsa_accum_offset 256
  .amdhsa_group_segment_fixed_size 0
  .amdhsa_kernarg_size 80
  .amdhsa_user_sgpr_count 2
  .amdhsa_user_sgpr_kernarg_segment_ptr 1
  .amdhsa_system_sgpr_workgroup_id_x 1
.end_amdhsa_kernel
"""
    open(path, "w").write(s)

if __name__ == "__main__":
    out = sys.argv[1] if len(sys.argv) > 1 else os.path.join(os.path.dirname(os.path.abspath(__file__)), "..", "cdna_kernels", NAME + ".s")
    emit_file(out)
```

```python
import sys, math, os, struct

NAME = "gated_mix__sliding_block__dense_activation_relu__prompt"

KF = 0x200000
VF = 0x400000
OF = 0x600000
HF = 0x800000
GB = 0xE00000
FL = 0xF00000
TS = 0xF80000
WS_BYTES = 0x1000000
HROW = 86 * 1024
OOB = 0x40000000
SLOT = 16384

def env(n, d): return int(os.environ.get(n, d))
STAMPS = env("GEN_STAMPS", 0) >= 1
STAMPS2 = env("GEN_STAMPS", 0) >= 2
TOUCH = env("GEN_TOUCH", 2)
NT = env("GEN_NT", 0)
ROT = env("GEN_ROT", 0)

class Asm:
    def __init__(self):
        self.lines = []; self.vm = []; self.uid = 0; self.nstamp = 0
    def e(self, s): self.lines.append("    " + s)
    def label(self, l): self.lines.append(l + ":")
    def c(self, s): self.lines.append("    ; " + s)
    def newlabel(self, p="L"):
        self.uid += 1
        return f"{p}_{self.uid}"
    def vmem(self, s, tag):
        self.e(s); self.vm.append(tag)
    def wait_vm(self, tags, lgkm0=False):
        if isinstance(tags, str): tags = [tags]
        last = -1
        for i, t in enumerate(self.vm):
            if t in tags: last = i
        x = " lgkmcnt(0)" if lgkm0 else ""
        if last < 0:
            if lgkm0: self.e("s_waitcnt lgkmcnt(0)")
            return
        n = len(self.vm) - 1 - last
        assert n <= 63
        self.e(f"s_waitcnt vmcnt({n}){x}")
        self.vm = self.vm[last + 1:]

class Lg:
    def __init__(self, a): self.a = a; self.q = []
    def add(self, tag): self.q.append(tag)
    def wait(self, tags):
        last = -1
        for i, t in enumerate(self.q):
            if t in tags: last = i
        if last < 0: return
        n = min(len(self.q) - 1 - last, 15)
        self.a.e(f"s_waitcnt lgkmcnt({n})")
        self.q = self.q[len(self.q) - n:] if n else []
    def clear(self): self.q = []
    def drain(self):
        if self.q: self.a.e("s_waitcnt lgkmcnt(0)")
        self.q = []

sX, sWQ, sW1, sW2, sWO, sWS, sOUT, sGW, sDBG, sPW = 8, 12, 16, 20, 24, 28, 32, 36, 40, 88
def srd(b): return f"s[{b}:{b+3}]"
s_wv, s_rb, s_cg, s_p, s_t, s_rg, s_cgp, s_rb3, s_cb3, s_xbase = range(44, 54)
s_tmp, s_tmp2, s_wideoff, s_naroff = 54, 55, 56, 57
s_nonce = 58
s_tmp3, s_tmp4, s_st0, s_st1, s_first, s_w2off, s_xlds, s_cnt = range(60, 68)
s_exec = 68
s_m = 70; s_m2 = 72; s_m3 = 74
s_ldsw, s_a3, s_a3o, s_qb = 76, 77, 78, 79
s_vm = 80
s_ts = 82
s_tsb, s_ok, s_ga, s_pstep = 84, 85, 86, 87
s_st2 = 92
s_ldsww = 95
s_gw = 7
s_wbase = 5
GREG = 48
s_fl = 6
s_kvb = 3
s_krd = 4
s_vrdb = 98
s_flh = 99
s_flc = 100
v_kf = 25
NSGPR = 102

v_lane, v_l16 = 1, 2
v_xo = 3
v_wq_n, v_wd0, v_wd1, v_xrd, v_trn, v_trw, v_tr3, v_w2_n = 7, 8, 9, 10, 11, 12, 13, 14
v_t0, v_t1 = 15, 16
v_hi = 17
v_t2, v_t3 = 18, 19
v_non = 20
v_c2 = 20
v_mc = 22
v_g2 = 24
v_omg2 = 26
v_t4, v_t5 = 28, 29
v_trw2, v_tr3b = 30, 31
MASKF = 32
MASKD = 48
BF = 64
ACC = 96
XF = 128
v_fo = 252; v_fd = 254

def vr(b, n): return f"v[{b}:{b+n-1}]"

ORD = os.environ.get("GEN_ORD", "A")
CFG = {
 "A": dict(order=[0,1,2,3,4,5,6,7,8,9,10,11], xslot={0:0,1:4,2:6,3:0}, init={0:2,1:3}, atk=6, atv=4, usplit=4, lg=4,
      sched={0:[("X",2,0),("P",2,8),("P",3,9)], 1:[("X",3,0),("P",4,2)], 2:[("P",5,4),("P",6,5),("P",7,3)],
             3:[("P",8,6),("P",9,7),("P",10,8)], 4:[("P",11,9)], 5:[("Q",0,0),("Q",1,1)], 6:[("Q",2,2)], 9:[("Q",3,3)]},
      sig0=6, kvi=9, kvc=11, post=(8,9), non=2),
 "C": dict(order=[0,1,4,2,5,3,6,7,8,9,10,11], xslot={0:0,1:3,2:8,3:0}, init={0:2,1:5}, atk=3, atv=0, usplit=6, lg=6,
      sched={0:[("P",4,6),("X",2,0),("P",2,7)], 1:[("P",5,2),("X",3,0)], 2:[("P",3,5),("P",6,3),("P",7,4)],
             3:[("P",8,6)], 4:[("P",9,7),("P",10,8),("P",11,9)], 5:[("Q",0,2)], 7:[("Q",1,5)], 10:[("Q",2,6)], 11:[("Q",3,7)]},
      sig0=8, kvi=10, kvc=11, post=(8,9), non=3),
}[ORD]
XSLOT = CFG["xslot"]
ATK = CFG['atk'] * SLOT
ATQ = ATK + 24576
ATV = CFG['atv'] * SLOT

v_st = 27
def stamp(a, final=False):
    if not STAMPS: return
    i = a.nstamp; a.nstamp += 1
    cur = s_ts + 2*(i & 1) if False else (s_ts if (i & 1) == 0 else 96)
    prev = (s_ts if ((i-1) & 1) == 0 else 96)
    if i > 0:
        a.e(f"v_writelane_b32 v{v_st}, s{prev}, {i-1}")
    a.e(f"{'s_memrealtime' if env('GEN_RT',0) else 's_memtime'} s[{cur}:{cur+1}]")
    if final:
        a.e("s_waitcnt lgkmcnt(0)")
        a.e(f"v_writelane_b32 v{v_st}, s{cur}, {i}")
        a.e(f"v_lshlrev_b32 v{v_t3}, 2, v{v_lane}")
        a.e("s_mov_b32 exec_lo, -1")
        a.e("s_mov_b32 exec_hi, 0")
        a.e(f"buffer_store_dword v{v_st}, v{v_t3}, {srd(sWS)}, s{s_tsb} offen")

def dma(a, voff, srd_b, soff, lds_sgpr, ldsimm, tag, sc1=False):
    a.e(f"s_add_u32 m0, s{lds_sgpr}, {ldsimm}")
    a.e("s_nop 0")
    nt = " nt" if (not sc1 and ((NT & 1) and tag[0] in "XP" or (NT & 2) and tag[0] == "Q")) else ""
    a.vmem(f"buffer_load_dwordx4 v{voff}, {srd(srd_b)}, {soff} offen{' sc1' if sc1 else ''}{nt} lds", tag)

def x_ops(a, j):
    ops = []
    for t in range(4):
        def f(t=t):
            a.e(f"s_add_u32 s{s_tmp}, s{s_xbase}, {t*4096 + j*256}")
            dma(a, v_xo + t, sX, f"s{s_tmp}", s_xlds, XSLOT[j]*SLOT + t*1024, f"X{j}")
        ops.append(f)
    return ops

def piece_ops(a, i, slot):
    ops = []
    for t in range(2):
        if i < 4:
            def f(t=t):
                a.e(f"s_add_u32 s{s_tmp}, s{s_naroff}, {(128*i + 8*t)*3072}")
                dma(a, v_wq_n, sWQ, f"s{s_tmp}", s_ldsw, slot*SLOT + t*1024, f"P{i}")
        else:
            def f(t=t):
                if t == 0:
                    a.e(f"s_mul_i32 s{s_wideoff}, s{s_pstep}, {i-4}")
                    a.e(f"s_add_u32 s{s_wideoff}, s{s_wideoff}, s{s_wbase}")
                a.e(f"s_add_u32 s{s_tmp}, s{s_ldsw}, {slot*SLOT + t*1024}")
                a.e(f"s_max_u32 m0, s{s_tmp}, s{s_ldsww}")
                a.e("s_nop 0")
                a.vmem(f"buffer_load_dwordx4 v{v_wd0 + t}, {srd(sPW)}, s{s_wideoff} offen{' nt' if NT & 1 else ''} lds", f"P{i}")
                if t == 1:
                    l = a.newlabel("Lgw")
                    a.e(f"s_cmp_eq_u32 s{s_gw}, 0")
                    a.e(f"s_cbranch_scc1 {l}")
                    a.e(f"v_add_u32 v{v_t2}, {slot*SLOT + 4096 + 128}, v{v_g2}")
                    a.e(f"ds_write_b16 v{v_t2}, v{GREG + i - 4}")
                    a.label(l)
        ops.append(f)
    return ops

def w2_ops(a, i, slot):
    ops = []
    for t in range(2):
        def f(t=t):
            srdb, r0 = (sW2, 128*i) if i <= 10 else (sWO, 128*(i-11))
            a.e(f"s_add_u32 s{s_tmp}, s{s_w2off}, {(r0 + 8*t) * 1024}")
            dma(a, v_w2_n, srdb, f"s{s_tmp}", s_ldsw, slot*SLOT + t*1024, f"Q{i}")
        ops.append(f)
    return ops

def issue_x_quarter(a, j):
    for f in x_ops(a, j): f()
def issue_piece(a, i, slot):
    for f in piece_ops(a, i, slot): f()
def issue_w2_piece(a, i, slot):
    for f in w2_ops(a, i, slot): f()

def mfma(a, d, x, y, c):
    cs = c if isinstance(c, str) else vr(c, 16)
    a.e(f"v_mfma_f32_32x32x16_bf16 {vr(d,16)}, {vr(x,4)}, {vr(y,4)}, {cs}")

def pack_tile(a, acc, pk, relu):
    for q in range(8):
        a.e(f"v_cvt_pk_bf16_f32 v{pk+q}, v{acc+2*q}, v{acc+2*q+1}")
    if relu:
        for q in range(8):
            a.e(f"v_pk_max_i16 v{pk+q}, v{pk+q}, 0")

def store_pk(a, pk, soff_sgpr, tag):
    a.vmem(f"buffer_store_dwordx4 {vr(pk,4)}, v{v_l16}, {srd(sWS)}, s{soff_sgpr} offen sc1", tag)
    a.vmem(f"buffer_store_dwordx4 {vr(pk+4,4)}, v{v_l16}, {srd(sWS)}, s{soff_sgpr} offen offset:1024 sc1", tag)

def signal(a, phase):
    l = a.newlabel("Lsig")
    a.e(f"s_cmp_lg_u32 s{s_wv}, 0")
    a.e(f"s_cbranch_scc1 {l}")
    a.e(f"v_mov_b32 v{v_t2}, s{s_nonce}")
    a.e(f"v_mov_b32 v{v_t3}, s{s_nonce+1}")
    a.e(f"v_mov_b32 v{v_t1}, {phase*32768}")
    a.e("s_mov_b64 exec, 1")
    a.e(f"buffer_store_dwordx2 v[{v_t2}:{v_t3}], v{v_t1}, {srd(sWS)}, s{s_fl} offen sc1")
    a.e("s_mov_b64 exec, -1")
    a.label(l)

def signal_wave(a):
    a.e(f"v_mov_b32 v{v_t2}, s{s_nonce}")
    a.e(f"v_mov_b32 v{v_t3}, s{s_nonce+1}")
    a.e(f"v_mov_b32 v{v_t1}, 0")
    a.e("s_mov_b64 exec, 1")
    a.vmem(f"buffer_store_dwordx2 v[{v_t2}:{v_t3}], v{v_t1}, {srd(sWS)}, s{s_flh} offen sc1", "SIGH")
    a.e("s_mov_b64 exec, -1")

def cmp_flags4(a, vd):
    a.e(f"v_xor_b32 v{vd}, s{s_nonce}, v{vd}")
    a.e(f"v_xor_b32 v{vd+1}, s{s_nonce+1}, v{vd+1}")
    a.e(f"v_xor_b32 v{vd+2}, s{s_nonce}, v{vd+2}")
    a.e(f"v_xor_b32 v{vd+3}, s{s_nonce+1}, v{vd+3}")
    a.e(f"v_or3_b32 v{vd}, v{vd}, v{vd+1}, v{vd+2}")
    a.e(f"v_or_b32 v{vd}, v{vd}, v{vd+3}")
    a.e(f"v_cmp_ne_u32 vcc, 0, v{vd}")
    a.e("s_nop 3")
    a.e("s_cmp_eq_u64 vcc, 0")

def hflag_issue(a, track=True):
    ins = f"buffer_load_dwordx4 v[252:255], v{v_l16}, {srd(sWS)}, s{s_flc} offen sc1"
    (a.vmem(ins, "FH") if track else a.e(ins))

def hpoll(a):
    lp = a.newlabel("Lpoll"); ld = a.newlabel("Lpolld")
    a.e(f"s_mov_b32 s{s_cnt}, 0")
    a.label(lp)
    hflag_issue(a, False)
    a.e("s_waitcnt vmcnt(0)")
    cmp_flags4(a, 252)
    a.e(f"s_cbranch_scc1 {ld}")
    a.e("s_sleep 1")
    a.e(f"s_add_u32 s{s_cnt}, s{s_cnt}, 1")
    a.e(f"s_cmp_lt_u32 s{s_cnt}, 100000")
    a.e(f"s_cbranch_scc1 {lp}")
    a.label(ld)

def cmp_flags(a, vd):
    a.e(f"v_cmp_eq_u32 s[{s_m2}:{s_m2+1}], s{s_nonce}, v{vd}")
    a.e(f"v_cmp_eq_u32 s[{s_m3}:{s_m3+1}], s{s_nonce+1}, v{vd+1}")
    a.e("s_nop 3")
    a.e(f"s_and_b64 s[{s_m2}:{s_m2+1}], s[{s_m2}:{s_m2+1}], s[{s_m3}:{s_m3+1}]")
    a.e(f"s_and_b64 s[{s_m2}:{s_m2+1}], s[{s_m2}:{s_m2+1}], s[{s_m}:{s_m+1}]")
    a.e(f"s_cmp_eq_u64 s[{s_m2}:{s_m2+1}], s[{s_m}:{s_m+1}]")

def poll(a, voff):
    lp = a.newlabel("Lpoll"); ld = a.newlabel("Lpolld")
    a.e(f"s_mov_b32 s{s_cnt}, 0")
    a.label(lp)
    a.e(f"buffer_load_dwordx2 v[{v_t2}:{v_t3}], v{voff}, {srd(sWS)}, 0 offen sc1")
    a.e("s_waitcnt vmcnt(0)")
    cmp_flags(a, v_t2)
    a.e(f"s_cbranch_scc1 {ld}")
    a.e("s_sleep 1")
    a.e(f"s_add_u32 s{s_cnt}, s{s_cnt}, 1")
    a.e(f"s_cmp_lt_u32 s{s_cnt}, 100000")
    a.e(f"s_cbranch_scc1 {lp}")
    a.label(ld)

def flag_issue(a, voff, vdst, tag, track=True):
    ins = f"buffer_load_dwordx2 v[{vdst}:{vdst+1}], v{voff}, {srd(sWS)}, 0 offen sc1"
    (a.vmem(ins, tag) if track else a.e(ins))

def flag_check(a, vdst, tag, track=True):
    if track: a.wait_vm(tag)
    else: a.e("s_waitcnt vmcnt(0)")
    cmp_flags(a, vdst)

def get_nonce(a):
    a.wait_vm("NON")
    lp = a.newlabel("Lnp"); ld = a.newlabel("Lnd")
    a.e(f"s_mov_b32 s{s_cnt}, 0")
    a.label(lp)
    a.e(f"v_readfirstlane_b32 s{s_nonce}, v{v_non}")
    a.e(f"v_readfirstlane_b32 s{s_nonce+1}, v{v_non+1}")
    a.e("s_nop 3")
    a.e(f"s_cmp_lg_u32 s{s_nonce}, 0")
    a.e(f"s_cbranch_scc1 {ld}")
    a.e("s_sleep 2")
    a.e(f"v_mov_b32 v{v_t2}, 0")
    a.e(f"buffer_load_dwordx2 v[{v_non}:{v_non+1}], v{v_t2}, {srd(sDBG)}, 0 offen sc1")
    a.e("s_waitcnt vmcnt(0)")
    a.e(f"s_add_u32 s{s_cnt}, s{s_cnt}, 1")
    a.e(f"s_cmp_lt_u32 s{s_cnt}, 100000")
    a.e(f"s_cbranch_scc1 {lp}")
    a.label(ld)

def kv_flag_setup(a):
    e = a.e
    e(f"s_lshl_b32 s{s_tmp}, s{s_rb}, 4")
    e(f"s_add_u32 s{s_fl}, s{s_tmp}, s{s_cg}")
    e(f"s_lshl_b32 s{s_fl}, s{s_fl}, 7")
    e(f"s_add_u32 s{s_fl}, s{s_fl}, {FL}")
    e(f"s_lshl_b32 s{s_tmp2}, s{s_p}, 1")
    e(f"s_add_u32 s{s_tmp}, s{s_tmp}, s{s_tmp2}")
    e(f"v_lshrrev_b32 v{v_kf}, 1, v{v_lane}")
    e(f"v_lshlrev_b32 v{v_kf}, 4, v{v_kf}")
    e(f"v_sub_u32 v{v_kf}, s{s_tmp}, v{v_kf}")
    e(f"v_and_b32 v{v_t0}, 1, v{v_lane}")
    e(f"v_add_u32 v{v_kf}, v{v_kf}, v{v_t0}")
    e(f"v_and_b32 v{v_kf}, 255, v{v_kf}")
    e(f"v_lshlrev_b32 v{v_kf}, 7, v{v_kf}")
    e(f"v_add_u32 v{v_kf}, {FL}, v{v_kf}")
    e(f"s_mov_b32 s{s_m}, 63")
    e(f"s_cmp_eq_u32 s{s_rb}, 1")
    e(f"s_cselect_b32 s{s_m}, 15, s{s_m}")
    e(f"s_cmp_eq_u32 s{s_rb}, 0")
    e(f"s_cselect_b32 s{s_m}, 3, s{s_m}")
    e(f"s_mov_b32 s{s_m+1}, 0")
    e(f"s_lshl_b32 s{s_tmp3}, s{s_cg}, 6")
    e(f"s_lshl_b32 s{s_tmp4}, s{s_rb}, 2")
    e(f"s_add_u32 s{s_tmp3}, s{s_tmp3}, s{s_tmp4}")
    e(f"s_lshl_b32 s{s_tmp3}, s{s_tmp3}, 11")
    e(f"s_mul_i32 s{s_tmp4}, s{s_wv}, 3072")
    e(f"s_add_u32 s{s_kvb}, s{s_tmp3}, s{s_tmp4}")
    e(f"s_lshl_b32 s{s_tmp}, s{s_rg}, 11")
    e(f"s_lshl_b32 s{s_tmp2}, s{s_cgp}, 10")
    e(f"s_add_u32 s{s_tmp2}, s{s_tmp2}, s{s_tmp}")
    e(f"s_add_u32 s{s_krd}, s{s_tmp2}, {ATK}")
    e(f"s_lshl_b32 s{s_tmp2}, s{s_cgp}, 8")
    e(f"s_add_u32 s{s_tmp2}, s{s_tmp2}, s{s_tmp}")
    e(f"s_add_u32 s{s_vrdb}, s{s_tmp2}, {ATV}")
    e(f"s_lshl_b32 s{s_qb}, s{s_rb}, 2")
    e(f"s_add_u32 s{s_qb}, s{s_qb}, s{s_rg}")
    e(f"s_sub_i32 s{s_first}, 8, s{s_qb}")
    e(f"s_max_i32 s{s_first}, s{s_first}, 0")
    e(f"s_mov_b32 s{s_vm}, 0xffff")
    e(f"s_mov_b32 s{s_vm+1}, 0xffff")
    s3_addr_setup(a)
    e(f"s_lshl_b32 s{s_tmp}, s{s_cg}, 3")
    e(f"s_add_u32 s{s_tmp}, s{s_tmp}, s{s_wv}")
    e(f"s_lshl_b32 s{s_tmp}, s{s_tmp}, 3")
    e(f"s_lshl_b32 s{s_flh}, s{s_rb}, 10")
    e(f"s_add_u32 s{s_flh}, s{s_flh}, s{s_tmp}")
    e(f"s_add_u32 s{s_flh}, s{s_flh}, {FL + 32768}")
    e(f"s_lshr_b32 s{s_flc}, s{s_rb3}, 1")
    e(f"s_lshl_b32 s{s_flc}, s{s_flc}, 10")
    e(f"s_add_u32 s{s_flc}, s{s_flc}, {FL + 32768}")

def kv_ops(a, guard=True):
    ops = []
    for reg, lds, tag in ((KF, ATK, "AK"), (VF, ATV, "AV")):
        for i in range(3):
            def f(reg=reg, lds=lds, tag=tag, i=i):
                l = None
                if guard:
                    l = a.newlabel("Lkvg")
                    a.e(f"s_cmp_eq_u32 s{s_ok}, 0")
                    a.e(f"s_cbranch_scc1 {l}")
                a.e(f"s_mul_i32 s{s_tmp4}, s{s_wv}, 3072")
                a.e(f"s_add_u32 s{s_tmp}, s{s_kvb}, {reg - 16384 + i*1024}")
                dma(a, v_l16, sWS, f"s{s_tmp}", s_tmp4, lds + i*1024, tag, sc1=True)
                if l: a.label(l)
            ops.append(f)
    return ops

def issue_kv(a, which, track=True):
    sv = list(a.vm)
    for f in kv_ops(a, guard=False): f()
    if not track: a.vm = sv

def s1_items(pieces, slot_of):
    items = []
    for i in pieces:
        sl = slot_of[i]
        if i < 4:
            for s in range(8):
                items.append(dict(pc=i, ks=8*i + s, tl=0, vb=v_trn, off=s*2048, sec=512, sl=sl, xs=s))
        else:
            j = i - 4
            for s in range(4):
                for tl in range(2):
                    items.append(dict(pc=i, ks=4*j + s, tl=tl, vb=(v_trw2 if tl else v_trw), off=None, s=s, sl=sl, xs=None))
    return items

def stage1(a, isv):
    raise NotImplementedError

ORDER = CFG['order']
T3U = env('GEN_T3U', 99)
FLUSH = 1
USPLIT = CFG['usplit']

class S1:
    D = env('GEN_D', 5)
    def __init__(self, a):
        self.a = a; self.lg = Lg(a); self.n = 0
        self.fifo = []
        self.slot_of = dict(CFG["init"])
        self.w2_slot = {}
        self.base = {}
        self.sched = CFG["sched"]
    def sync(self, u, extra_need=(), hook=None):
        a = self.a
        i = ORDER[u]
        need = [f"P{i}"] + ([f"X{i}"] if i < 4 else []) + list(extra_need)
        if FLUSH: self.pump(len(self.fifo))
        if u <= CFG['lg']:
            a.wait_vm(need, lgkm0=True)
            self.lg.clear()
        else:
            a.wait_vm(need)
        a.e("s_barrier")
        if STAMPS2: stamp(a)
        if hook: hook()
        for kind, pc, sl in self.sched.get(u, []):
            if kind == "P": self.slot_of[pc] = sl; self.fifo += piece_ops(a, pc, sl)
            elif kind == "X": self.fifo += x_ops(a, pc)
            else: self.w2_slot[pc] = sl; self.fifo += w2_ops(a, pc, sl)
        self.base = {}
    def pump(self, n=1):
        for _ in range(n):
            if self.fifo: self.fifo.pop(0)()
    def read(self, it):
        a = self.a
        b = BF + (it["n"] % 8) * 4
        sl = it["sl"]
        if it["xs"] is not None:
            s = it["xs"]; xq = it["pc"]
            r = v_t0 + (s & 1)
            a.e(f"v_xor_b32 v{r}, {s*32}, v{v_xrd}")
            off = XSLOT[xq]*SLOT
            if off > 65535:
                a.e(f"v_add_u32 v{r}, {off}, v{r}"); off = 0
            a.e(f"ds_read_b128 {vr(XF + it['ks']*4, 4)}, v{r} offset:{off}")
            self.lg.add(("x", it["ks"]))
        vb = it["vb"]
        if it["pc"] < 4:
            off, sec = it["off"], it["sec"]
            o = sl*SLOT + off
            if o + sec > 65535:
                if vb not in self.base:
                    a.e(f"v_add_u32 v{v_t4}, {sl*SLOT}, v{vb}"); self.base[vb] = v_t4
                vb = self.base[vb]; o = off
            a.e(f"ds_read_b64_tr_b16 {vr(b,2)}, v{vb} offset:{o}")
            a.e(f"ds_read_b64_tr_b16 {vr(b+2,2)}, v{vb} offset:{o + sec}")
        else:
            s = it["s"]; tl = it["tl"]
            if tl == 1:
                o = sl*SLOT + s*16*192; sec = 4*192
                if o + sec > 65535 - 16384:
                    if vb not in self.base:
                        a.e(f"v_add_u32 v{v_t5}, {sl*SLOT}, v{vb}"); self.base[vb] = v_t5
                    vb = self.base[vb]; o = s*16*192
                a.e(f"ds_read_b64_tr_b16 {vr(b,2)}, v{vb} offset:{o}")
                a.e(f"ds_read_b64_tr_b16 {vr(b+2,2)}, v{vb} offset:{o + sec}")
            else:
                if s == 0:
                    a.e(f"v_add_u32 v{v_t4}, {sl*SLOT}, v{v_trw}")
                    a.e(f"v_add_u32 v{v_t0}, {sl*SLOT}, v{v_omg2}")
                else:
                    a.e(f"v_add_u32 v{v_t4}, s{s_k16}, v{v_t4}")
                    a.e(f"v_add_u32 v{v_t0}, s{s_k16}, v{v_t0}")
                a.e(f"ds_read_b64_tr_b16 {vr(b,2)}, v{v_t4}")
                a.e(f"ds_read_b64_tr_b16 {vr(b+2,2)}, v{v_t0}")
        self.lg.add(("b", it["n"])); self.lg.add(("b", it["n"]))
    def mm(self, it, isv):
        a = self.a
        self.lg.wait([("b", it["n"]), ("x", it["ks"])])
        b = BF + (it["n"] % 8) * 4
        if it["pc"] < 4:
            acc = ACC2
            cin = "0" if it["ks"] == 0 else acc
            if isv: mfma(a, acc, XF + it["ks"]*4, b, cin)
            else: mfma(a, acc, b, XF + it["ks"]*4, cin)
        else:
            acc = ACC + 16*it["tl"]
            cin = "0" if it["ks"] == 0 else acc
            mfma(a, acc, b, XF + it["ks"]*4, cin)

ACC2 = MASKF
s_k16 = 93

def build_maskd(a):
    e = a.e
    e(f"v_and_b32 v{v_t2}, 31, v{v_lane}")
    e(f"v_lshlrev_b32 v{v_t3}, 2, v{v_hi}")
    e(f"v_sub_u32 v{v_t2}, v{v_t2}, v{v_t3}")
    e(f"v_mov_b32 v{v_t3}, 0xf149f2ca")
    for r in range(16):
        cr = (r & 3) + 8 * (r >> 2)
        e(f"v_cmp_gt_i32 vcc, {cr}, v{v_t2}")
        e("s_nop 1")
        e(f"v_cndmask_b32 v{MASKD+r}, 0, v{v_t3}, vcc")

PRE = env("GEN_PRE", 2)
def run_stage1(a):
    e = a.e
    a.c("================ stage 1 ================")
    D = S1.D
    base_lines = a.lines
    outs = []
    ns0 = a.nstamp; vm0 = list(a.vm)
    state = {}
    def hook(u, st):
        if u == 1 and TOUCH >= 2: touch(a, (sW2, sWO), 240)
        if T3U <= u < T3U + 4: st.fifo.append(lambda u=u: touch_l2_s3(a, u - T3U, 4))
        if u == CFG['non']:
            a.e(f"v_mov_b32 v{v_t2}, 0")
            a.vmem(f"buffer_load_dwordx2 v[{v_non}:{v_non+1}], v{v_t2}, {srd(sDBG)}, 0 offen sc1", "NON")
        if u == SIG0:
            get_nonce(a); signal(a, 0)
        if u == CFG["kvi"]:
            flag_issue(a, v_kf, v_non + 2, "FKV")
        if u == CFG["kvc"]:
            flag_check(a, v_non + 2, "FKV")
            a.e(f"s_cselect_b32 s{s_ok}, 1, 0")
            st.fifo = kv_ops(a) + st.fifo
    def do_mm(st, pend, isv):
        it = pend.pop(0)
        st.mm(it, isv)
        if it["pc"] == 3 and it["ks"] == 31: state["kvdone"] = 0
        elif "kvdone" in state:
            state["kvdone"] += 1
            if state["kvdone"] == 2:
                a.e("s_nop 7")
                pack_tile(a, ACC2, ACC2, False)
                store_pk(a, ACC2, s_st0, "ST0")
        st.pump(1)
    def unit(st, u, pend, n, isv, q0=0, q1=8, items=None):
        pc = ORDER[u]
        if items is None:
            if u <= CFG["lg"]:
                for _ in range(min(PRE, len(pend))): do_mm(st, pend, isv)
            st.sync(u, ["ST0"] if u == SIG0 else [], lambda: hook(u, st))
            items = s1_items([pc], st.slot_of)
            for it in items: it["n"] = n; n += 1
        for q in range(q0, q1):
            st.read(items[q]); pend.append(items[q])
            if len(pend) > D: do_mm(st, pend, isv)
            elif q % 2 == 1 and len(pend) > 2 and u > 0 and pend[0]["pc"] != pc: do_mm(st, pend, isv)
        return n, items
    for isv in (0, 1):
        a.lines = []; a.vm = list(vm0); a.nstamp = ns0; state.clear()
        st = S1(a)
        if isv: a.label("L_s1v")
        pend = []; n = 0
        for u in range(0, USPLIT):
            n, _ = unit(st, u, pend, n, isv)
        n, items = unit(st, USPLIT, pend, n, isv, 0, 0)
        q = 0
        while any(it["pc"] < 4 for it in pend):
            unit(st, USPLIT, pend, n, isv, q, q + 1, items); q += 1
            if q >= 8:
                while any(it["pc"] < 4 for it in pend): do_mm(st, pend, isv)
        st.pump(len(st.fifo))
        if not isv: a.e("s_branch L_s1w")
        outs.append((a.lines, list(a.vm), st, pend, n, items, q, dict(state)))
    assert outs[0][1] == outs[1][1]
    a.lines = base_lines + outs[0][0] + outs[1][0]
    _, vm, st, pend, n, items_s, q0, stt = outs[1]
    a.vm = vm
    a.label("L_s1w")
    unit(st, USPLIT, pend, n, 0, q0, 8, items_s)
    for u in range(USPLIT + 1, 12):
        n, _ = unit(st, u, pend, n, 0)
    while pend: do_mm(st, pend, 0)
    st.pump(len(st.fifo))
    e("s_nop 7"); e("s_nop 3")
    gate(a)
    pack_tile(a, ACC + 16, BF + 8, True)
    store_pk(a, BF + 8, s_st2, "ST1")
    pack_tile(a, ACC, BF, False)
    l = a.newlabel("Lq"); l2 = a.newlabel("Lqd")
    e(f"s_cmp_eq_u32 s{s_cgp}, 0")
    e(f"s_cbranch_scc1 {l}")
    for q in range(8): e(f"v_pk_max_i16 v{BF+q}, v{BF+q}, 0")
    a.label(l)
    store_pk(a, BF, s_st1, "ST1")
    return st.w2_slot

SIG0 = CFG['sig0']

def gate(a):
    e = a.e
    l = a.newlabel("Lgate")
    e(f"s_cmp_lg_u32 s{s_cg}, 15")
    e(f"s_cbranch_scc1 {l}")
    e(f"s_cmp_lg_u32 s{s_cgp}, 1")
    e(f"s_cbranch_scc1 {l}")
    e(f"v_cvt_pk_bf16_f32 v{v_t1}, v{ACC+16}, v{ACC+16}")
    e(f"v_lshlrev_b32 v{v_t1}, 16, v{v_t1}")
    e(f"v_mul_f32 v{v_t1}, 0xbfb8aa3b, v{v_t1}")
    e(f"v_exp_f32 v{v_t1}, v{v_t1}")
    e("s_nop 0")
    e(f"v_add_f32 v{v_t1}, 1.0, v{v_t1}")
    e(f"v_rcp_f32 v{v_t1}, v{v_t1}")
    e("s_nop 0")
    e(f"v_cvt_pk_bf16_f32 v{v_t1}, v{v_t1}, v{v_t1}")
    e(f"v_lshlrev_b32 v{v_t1}, 16, v{v_t1}")
    e(f"v_lshlrev_b32 v{v_t0}, 2, v{v_lane}")
    e(f"s_lshl_b32 s{s_tmp}, s{s_rb}, 2")
    e(f"s_add_u32 s{s_tmp}, s{s_tmp}, s{s_rg}")
    e(f"s_lshl_b32 s{s_tmp}, s{s_tmp}, 7")
    e(f"s_add_u32 s{s_tmp}, s{s_tmp}, {GB}")
    e(f"s_mov_b64 s[{s_exec}:{s_exec+1}], exec")
    e("s_mov_b32 exec_lo, -1")
    e("s_mov_b32 exec_hi, 0")
    e(f"buffer_store_dword v{v_t1}, v{v_t0}, {srd(sWS)}, s{s_tmp} offen sc1")
    e(f"s_mov_b64 exec, s[{s_exec}:{s_exec+1}]")
    a.label(l)

def Sreg(b):
    if b == 0: return MASKF
    if b == 8: return MASKD
    return 64 + 16*(b-1)
KFR = 176; QFR = 212; VROT = 216; OACC = 232
v_max = 248; v_max2 = 249; v_vrd = 250; v_krd = 251

def AFreg(n):
    if n < 10: return 176 + 4*n
    if n < 14: return 48 + 4*(n-10)
    if n < 18: return 160 + 4*(n-14)
    return 144 + 4*(n-18)
def AOreg(n):
    return 128 + 4*n if n < 4 else 32 + 4*(n-4)
BF3 = 64; ACB = 96; ACA = 216

def s3_addr_setup(a):
    e = a.e
    e(f"s_lshl_b32 s{s_tmp3}, s{s_rb3}, 1")
    e(f"s_add_u32 s{s_tmp3}, s{s_tmp3}, s{s_cgp}")
    e(f"s_mul_i32 s{s_a3}, s{s_tmp3}, {HROW}")
    e(f"s_lshl_b32 s{s_tmp}, s{s_rg}, 10")
    e(f"s_add_u32 s{s_a3}, s{s_a3}, s{s_tmp}")
    e(f"s_add_u32 s{s_a3}, s{s_a3}, {HF}")
    e(f"s_lshl_b32 s{s_a3o}, s{s_tmp3}, 15")
    e(f"s_add_u32 s{s_a3o}, s{s_a3o}, s{s_tmp}")
    e(f"s_add_u32 s{s_a3o}, s{s_a3o}, {OF}")
    e(f"s_lshl_b32 s{s_ga}, s{s_tmp3}, 7")
    e(f"s_add_u32 s{s_ga}, s{s_ga}, {GB}")

def h_loads(a, ns, track=True):
    e = a.e
    for n in ns:
        if n == "g":
            e(f"v_and_b32 v{v_t0}, 31, v{v_lane}")
            e(f"v_lshlrev_b32 v{v_t0}, 2, v{v_t0}")
            ins = f"buffer_load_dword v{v_g2}, v{v_t0}, {srd(sWS)}, s{s_ga} offen sc1"
            (a.vmem(ins, "G") if track else e(ins))
            continue
        e(f"s_add_u32 s{s_tmp}, s{s_a3}, {n*4096}")
        if n == 21:
            e(f"s_cmp_ge_u32 s{s_rg}, 2")
            e(f"s_cselect_b32 s{s_tmp}, {OOB}, s{s_tmp}")
        ins = f"buffer_load_dwordx4 {vr(AFreg(n),4)}, v{v_l16}, {srd(sWS)}, s{s_tmp} offen sc1"
        (a.vmem(ins, f"H{n}") if track else e(ins))

def guarded_h_loads(a, ns, track=True):
    l = a.newlabel("Lhl")
    a.e(f"s_cmp_eq_u32 s{s_ok}, 0")
    a.e(f"s_cbranch_scc1 {l}")
    h_loads(a, ns, track)
    a.label(l)

def flags16(a, phase, vdst):
    e = a.e
    e(f"s_lshr_b32 s{s_tmp}, s{s_rb3}, 1")
    e(f"s_lshl_b32 s{s_tmp}, s{s_tmp}, 11")
    e(f"s_add_u32 s{s_tmp}, s{s_tmp}, {FL + phase*32768}")
    e(f"v_and_b32 v{vdst}, 15, v{v_lane}")
    e(f"v_lshlrev_b32 v{vdst}, 7, v{vdst}")
    e(f"v_add_u32 v{vdst}, s{s_tmp}, v{vdst}")
    e(f"s_mov_b32 s{s_m}, 0xffff")
    e(f"s_mov_b32 s{s_m+1}, 0")

SIGB = env('GEN_SIGB', 1)
HB_ISSUE, HB_CHECK = env("GEN_HBI", 6), env("GEN_HBC", 4)

def attention(a, slot_of):
    e = a.e
    a.c("================ attention ================")
    e(f"s_lshl_b32 s{s_tmp}, s{s_rg}, 10")
    e(f"s_add_u32 s{s_tmp}, s{s_tmp}, {ATQ}")
    e(f"v_add_u32 v{v_t0}, s{s_tmp}, v{v_l16}")
    l = a.newlabel("Lqx")
    e(f"s_cmp_lg_u32 s{s_cgp}, 0")
    e(f"s_cbranch_scc1 {l}")
    e(f"ds_write_b128 v{v_t0}, {vr(BF+4,4)}")
    for i in range(4): e(f"v_mov_b32 v{QFR+i}, v{BF+i}")
    a.label(l)
    l = a.newlabel("Lkvok")
    e(f"s_cmp_lg_u32 s{s_ok}, 0")
    e(f"s_cbranch_scc1 {l}")
    poll(a, v_kf)
    issue_kv(a, "KV", track=False)
    e("s_waitcnt vmcnt(0)")
    a.label(l)
    l = a.newlabel("Lgm")
    e(f"s_cmp_eq_u32 s{s_gw}, 0")
    e(f"s_cbranch_scc1 {l}")
    build_maskd(a)
    a.label(l)
    stamp(a)
    e(f"v_add_u32 v{v_krd}, s{s_krd}, v{v_l16}")
    e(f"v_mov_b32 v{v_t3}, 0xf149f2ca")
    for r in range(16):
        e(f"v_sub_f32 v{MASKF+r}, v{v_t3}, v{MASKD+r}")
    a.wait_vm(["AK", "AV"], lgkm0=True)
    e("s_barrier")
    stamp(a)
    lg = Lg(a)
    l = a.newlabel("Lqr")
    e(f"s_cmp_eq_u32 s{s_cgp}, 0")
    e(f"s_cbranch_scc1 {l}")
    e(f"ds_read_b128 {vr(QFR,4)}, v{v_t0}")
    a.label(l)
    for b in range(8, -1, -1):
        e(f"ds_read_b128 {vr(KFR+4*b,4)}, v{v_krd} offset:{b*2048}"); lg.add(("k", b))
    fill = []
    for pc, sl in zip((4, 5), CFG["post"]):
        slot_of[pc] = sl; fill += w2_ops(a, pc, sl)
    c = 0.25 * math.log2(math.e)
    cbits = struct.unpack("<I", struct.pack("<f", c))[0]
    misc = [f"v_mov_b32 v{VROT+i}, 0x3f803f80" for i in range(16)]
    misc += [f"v_mov_b32 v{v_c2}, 0x{cbits:08x}", f"v_mov_b32 v{v_c2+1}, 0x{cbits:08x}", f"v_add_u32 v{v_vrd}, s{s_vrdb}, v{v_l16}"]
    for b in range(8, -1, -1):
        lg.wait([("k", b)])
        S = Sreg(b)
        mfma(a, S, KFR + 4*b, QFR, S if b in (0, 8) else "0")
        for _ in range(3):
            if misc: e(misc.pop(0))
        if fill and b % 2 == 0: fill.pop(0)()
    while misc: e(misc.pop(0))
    while fill: fill.pop(0)()
    if SIGB == 1:
        a.wait_vm("ST1"); signal_wave(a)
    lmax = a.newlabel("Lmaxd")
    e("s_nop 4")
    for b in range(8, -1, -1):
        S = Sreg(b)
        if b < 8:
            e(f"s_cmp_gt_u32 s{s_first}, {b}")
            e(f"s_cbranch_scc1 {lmax}")
        for q in range(8):
            if b == 8 and q == 0:
                e(f"v_max_f32 v{v_max}, v{S}, v{S+1}")
            else:
                e(f"v_max3_f32 v{v_max}, v{S+2*q}, v{S+2*q+1}, v{v_max}")
    a.label(lmax)
    e(f"v_mov_b32 v{v_max2}, v{v_max}")
    e("s_nop 1")
    e(f"v_permlane32_swap_b32 v{v_max}, v{v_max2}")
    e("s_nop 1")
    e(f"v_max_f32 v{v_max}, v{v_max}, v{v_max2}")
    e(f"v_mul_f32 v{v_mc}, v{v_c2}, v{v_max}")
    e(f"v_sub_f32 v{v_mc}, 0, v{v_mc}")
    e(f"v_mov_b32 v{v_mc+1}, v{v_mc}")
    if SIGB == 2:
        a.wait_vm("ST1"); signal_wave(a)
    def softmax_block(b):
        S = Sreg(b)
        for q in range(8):
            e(f"v_pk_fma_f32 v[{S+2*q}:{S+2*q+1}], v[{S+2*q}:{S+2*q+1}], v[{v_c2}:{v_c2+1}], v[{v_mc}:{v_mc+1}]")
        for r in range(16):
            e(f"v_exp_f32 v{S+r}, v{S+r}")
        for q in range(8):
            e(f"v_cvt_pk_bf16_f32 v{S+q}, v{S+2*q}, v{S+2*q+1}")
    softmax_block(8)
    e("s_barrier")
    stamp(a)
    for pc, sl in ((6, CFG['atk']), (7, CFG['atk']+1)):
        slot_of[pc] = sl; issue_w2_piece(a, pc, sl)
    lg = Lg(a)
    def vread(n):
        b = 8 - n//2; m = n % 2
        e(f"ds_read_b128 {vr(VROT + 4*(n%4), 4)}, v{v_vrd} offset:{b*2048 + m*1024}")
        lg.add(("v", n))
    e(f"s_mov_b64 exec, s[{s_vm}:{s_vm+1}]")
    vread(0); vread(1)
    e("s_mov_b64 exec, -1")
    lpv = a.newlabel("Lpvd")
    e(f"s_mov_b32 s{s_ok}, 0")
    skip_labels = {}
    hl = list(range(22)) + ["g"]
    per = -(-len(hl) // (HB_CHECK + 1))
    def post_block(b, track):
        if b == HB_ISSUE: hflag_issue(a, track)
        if b == HB_CHECK:
            if track: a.wait_vm("FH")
            else: e("s_waitcnt vmcnt(0)")
            cmp_flags4(a, 252)
            e(f"s_cselect_b32 s{s_ok}, 1, 0")
        if b <= HB_CHECK:
            i0 = (HB_CHECK - b) * per
            if hl[i0:i0+per]: guarded_h_loads(a, hl[i0:i0+per], track)
    for b in range(8, -1, -1):
        S = Sreg(b)
        n0 = 2*(8 - b)
        if b < 8:
            skip_labels[b] = a.newlabel("Lskip")
            e(f"s_cmp_gt_u32 s{s_first}, {b}")
            e(f"s_cbranch_scc1 {skip_labels[b]}")
        if b > 0:
            e(f"s_mov_b64 exec, s[{s_vm}:{s_vm+1}]")
            vread(n0 + 2); vread(n0 + 3)
            e("s_mov_b64 exec, -1")
        if b < 8: softmax_block(b)
        lg.wait([("v", n0), ("v", n0+1)])
        e("s_nop 0")
        mfma(a, OACC, VROT + 4*(n0 % 4), S, "0" if b == 8 else OACC)
        mfma(a, OACC, VROT + 4*((n0+1) % 4), S + 4, OACC)
        post_block(b, True)
    e(f"s_branch {lpv}")
    for b in range(7, -1, -1):
        a.label(skip_labels[b])
        post_block(b, False)
    a.label(lpv)
    e("s_waitcnt lgkmcnt(0)")
    e("s_nop 7"); e("s_nop 3")
    e(f"v_rcp_f32 v{v_max}, v{OACC+8}")
    e("s_nop 0")
    for r in range(8):
        e(f"v_mul_f32 v{OACC+r}, v{OACC+r}, v{v_max}")
    for q in range(4):
        e(f"v_cvt_pk_bf16_f32 v{248+q}, v{OACC+2*q}, v{OACC+2*q+1}")
    a.vmem(f"buffer_store_dwordx4 v[248:251], v{v_l16}, {srd(sWS)}, s{s_oa} offen sc1", "ST2")
    l = a.newlabel("Lhok")
    e(f"s_cmp_lg_u32 s{s_ok}, 0")
    e(f"s_cbranch_scc1 {l}")
    hpoll(a)
    h_loads(a, list(range(22)) + ["g"], track=False)
    e("s_waitcnt vmcnt(0)")
    a.label(l)
    stamp(a)
s_oa = 94

def compute3(a, pieces, slot_of, cnt):
    e = a.e
    work = []
    for pc in pieces:
        for u in range(2):
            if pc <= 10: af = AFreg(2*pc + u); tag = f"H{2*pc+u}"; acc = ACB; first = (pc == 0 and u == 0)
            else: af = AOreg(2*(pc-11) + u); tag = f"O{2*(pc-11)+u}"; acc = ACA; first = (pc == 11 and u == 0)
            for ct in range(2):
                work.append((slot_of[pc], u, ct, af, tag, acc + 16*ct, first))
    lg = Lg(a)
    cur = {}
    def rd(w):
        sl, u, ct, af, tag, acc, first = work[w]
        vb = v_tr3b if ct else v_tr3
        off = sl*SLOT + u*8192
        if off + 1024 > 65535:
            r = v_t5 if ct else v_t4
            if cur.get(ct) != sl:
                e(f"v_add_u32 v{r}, {sl*SLOT}, v{vb}")
                cur[ct] = sl
            vb = r; off = u*8192
        b = BF3 + ((cnt[0] + w) % 8)*4
        e(f"ds_read_b64_tr_b16 {vr(b,2)}, v{vb} offset:{off}")
        e(f"ds_read_b64_tr_b16 {vr(b+2,2)}, v{vb} offset:{off + 1024}")
        lg.add(w); lg.add(w)
    D = 4
    for w in range(min(D, len(work))): rd(w)
    for w in range(len(work)):
        if w + D < len(work): rd(w + D)
        sl, u, ct, af, tag, acc, first = work[w]
        a.wait_vm(tag)
        lg.wait([w])
        b = BF3 + ((cnt[0] + w) % 8)*4
        mfma(a, acc, b, af, "0" if first else acc)
    cnt[0] += len(work)
    lg.drain()

S3J = env('GEN_S3J', 1)
def o_loads(a, track=True):
    for n in range(8):
        a.e(f"s_add_u32 s{s_tmp}, s{s_a3o}, {n*4096}")
        ins = f"buffer_load_dwordx4 {vr(AOreg(n),4)}, v{v_l16}, {srd(sWS)}, s{s_tmp} offen sc1"
        (a.vmem(ins, f"O{n}") if track else a.e(ins))

def o_check(a):
    e = a.e
    regs = [AOreg(n) + i for n in range(8) for i in range(4)]
    e(f"v_max3_u32 v{v_t2}, v{regs[0]}, v{regs[1]}, v{regs[2]}")
    i = 3
    while i < len(regs):
        if i + 1 < len(regs):
            e(f"v_max3_u32 v{v_t2}, v{regs[i]}, v{regs[i+1]}, v{v_t2}"); i += 2
        else:
            e(f"v_max_u32 v{v_t2}, v{regs[i]}, v{v_t2}"); i += 1
    e(f"v_cmp_eq_u32 vcc, -1, v{v_t2}")
    e("s_nop 3")
    e("s_cmp_eq_u64 vcc, 0")

def stage3(a, slot_of):
    e = a.e
    a.c("================ stage 3 ================")
    D = 4
    lg = Lg(a)
    fifo = []
    cur = {}
    V0 = CFG["atv"]
    def assign(pc, sl):
        slot_of[pc] = sl
        for f in w2_ops(a, pc, sl):
            f.tag = f"Q{pc}"; fifo.append(f)
    def o_verify():
        a.wait_vm("O7")
        lp = a.newlabel("Lop"); ld = a.newlabel("Lod")
        e(f"s_mov_b32 s{s_cnt}, 0")
        a.label(lp)
        o_check(a)
        e(f"s_cbranch_scc1 {ld}")
        o_loads(a, track=False)
        e("s_waitcnt vmcnt(0)")
        e(f"s_add_u32 s{s_cnt}, s{s_cnt}, 1")
        e(f"s_cmp_lt_u32 s{s_cnt}, 100000")
        e(f"s_cbranch_scc1 {lp}")
        a.label(ld)
        stamp(a)
    def o_ops():
        ops = []
        for n in range(8):
            def f(n=n):
                a.e(f"s_add_u32 s{s_tmp}, s{s_a3o}, {n*4096}")
                a.vmem(f"buffer_load_dwordx4 {vr(AOreg(n),4)}, v{v_l16}, {srd(sWS)}, s{s_tmp} offen sc1", f"O{n}")
            f.tag = f"O{n}"
            ops.append(f)
        return ops
    syncs = {
        S3J: (["Q4", "Q5", "Q6", "Q7"], lambda: (assign(8, V0), assign(9, V0 + 1))),
        4: ([], lambda: (assign(10, slot_of[0]), assign(11, slot_of[1]), assign(12, slot_of[2]))),
        6: ([], lambda: (assign(13, slot_of[3]), assign(14, slot_of[4]), fifo.extend(o_ops()))),
        8: (["Q8", "Q9"], None),
        10: (["Q10", "Q11", "Q12"], None),
        13: (["Q13", "Q14"], None),
    }
    items = []
    for pc in range(15):
        for u in range(2):
            for ct in range(2):
                items.append((pc, u, ct))
    def rd(w):
        pc, u, ct = items[w]
        if u == 0 and ct == 0 and pc in syncs:
            tags, act = syncs[pc]
            while any(f.tag in tags for f in fifo): fifo.pop(0)()
            a.wait_vm(tags)
            e("s_barrier")
            if STAMPS2: stamp(a)
            if act: act()
        sl = slot_of[pc]
        vb = v_tr3b if ct else v_tr3
        off = sl*SLOT + u*8192
        if off + 1024 > 65535:
            r = v_t5 if ct else v_t4
            if cur.get(ct) != sl:
                e(f"v_add_u32 v{r}, {sl*SLOT}, v{vb}")
                cur[ct] = sl
            vb = r; off = u*8192
        b = BF3 + (w % 8)*4
        e(f"ds_read_b64_tr_b16 {vr(b,2)}, v{vb} offset:{off}")
        e(f"ds_read_b64_tr_b16 {vr(b+2,2)}, v{vb} offset:{off + 1024}")
        lg.add(w); lg.add(w)
    done = set(["Q4", "Q5", "Q6", "Q7"])
    for w in range(D): rd(w)
    for w in range(len(items)):
        if w + D < len(items):
            rd(w + D)
        pc, u, ct = items[w]
        if pc <= 10: af = AFreg(2*pc + u); tag = f"H{2*pc+u}"; acc = ACB; first = (pc == 0 and u == 0)
        else: af = AOreg(2*(pc-11) + u); tag = f"O{2*(pc-11)+u}"; acc = ACA; first = (pc == 11 and u == 0)
        if pc == 11 and u == 0 and ct == 0:
            while fifo: fifo.pop(0)()
            o_verify()
        a.wait_vm(tag)
        lg.wait([w])
        b = BF3 + (w % 8)*4
        mfma(a, acc + 16*ct, b, af, "0" if first else acc + 16*ct)
        if fifo: fifo.pop(0)()
        if pc >= 11:
            k = w - 44
            if k == 0:
                a.wait_vm("G")
                e(f"v_sub_f32 v{v_c2}, 1.0, v{v_g2}")
                e(f"v_cvt_pk_bf16_f32 v{v_c2}, v{v_c2}, v{v_c2}")
                e(f"v_lshlrev_b32 v{v_c2}, 16, v{v_c2}")
                e(f"v_mov_b32 v{v_c2+1}, v{v_c2}")
                e(f"v_mov_b32 v{v_g2+1}, v{v_g2}")
            elif 2 <= k < 10:
                for q in (2*(k-2), 2*(k-2)+1):
                    e(f"v_pk_mul_f32 v[{ACB+2*q}:{ACB+2*q+1}], v[{ACB+2*q}:{ACB+2*q+1}], v[{v_c2}:{v_c2+1}]")
    lg.drain()
    stamp(a)
    PS = [slot_of[p] for p in (5, 6, 7, 8)]
    e(f"s_cmp_eq_u32 s{s_rg}, 1"); e(f"s_movk_i32 s{s_tmp}, {PS[0]}"); e(f"s_cselect_b32 s{s_tmp}, {PS[1]}, s{s_tmp}")
    e(f"s_cmp_eq_u32 s{s_rg}, 2"); e(f"s_cselect_b32 s{s_tmp}, {PS[2]}, s{s_tmp}")
    e(f"s_cmp_eq_u32 s{s_rg}, 3"); e(f"s_cselect_b32 s{s_tmp}, {PS[3]}, s{s_tmp}")
    e(f"s_lshl_b32 s{s_tmp}, s{s_tmp}, 14")
    e(f"s_lshl_b32 s{s_tmp2}, s{s_cgp}, 13")
    e(f"s_add_u32 s{s_tmp}, s{s_tmp}, s{s_tmp2}")
    e(f"v_and_b32 v{v_t0}, 31, v{v_lane}")
    e(f"v_and_b32 v{v_t1}, 7, v{v_lane}")
    e(f"v_xor_b32 v{v_t1}, v{v_t1}, v{v_hi}")
    e(f"v_lshlrev_b32 v{v_t1}, 4, v{v_t1}")
    e(f"v_lshl_add_u32 v{v_t0}, v{v_t0}, 8, v{v_t1}")
    e(f"v_add_u32 v{v_t0}, s{s_tmp}, v{v_t0}")
    e("s_nop 4")
    for ct in range(2):
        for g4 in range(4):
            b0 = 16*ct + 4*g4
            for q in range(2):
                e(f"v_pk_fma_f32 v[{ACB+b0+2*q}:{ACB+b0+2*q+1}], v[{ACA+b0+2*q}:{ACA+b0+2*q+1}], v[{v_g2}:{v_g2+1}], v[{ACB+b0+2*q}:{ACB+b0+2*q+1}]")
            r = v_t2 + (g4 & 1)
            e(f"v_xor_b32 v{r}, {g4*32}, v{v_t0}")
            e(f"ds_write_b128 v{r}, {vr(ACB + b0, 4)} offset:{ct*128}")
    e(f"v_lshrrev_b32 v{v_t0}, 3, v0")
    e(f"v_and_b32 v{v_t1}, 7, v0")
    e(f"v_and_b32 v{v_t2}, 7, v{v_t0}")
    e(f"v_lshlrev_b32 v{v_t3}, 1, v{v_t1}")
    e(f"v_xor_b32 v{v_t2}, v{v_t2}, v{v_t3}")
    e(f"v_lshlrev_b32 v{v_t2}, 4, v{v_t2}")
    e(f"v_lshl_add_u32 v{v_t2}, v{v_t0}, 8, v{v_t2}")
    e(f"v_xor_b32 v{v_t3}, 16, v{v_t2}")
    e(f"v_add_u32 v{v_t4}, 0x10000, v{v_t2}")
    e(f"v_add_u32 v{v_t5}, 0x10000, v{v_t3}")
    e(f"v_add_u32 v{v_trn}, 0x20000, v{v_t2}")
    e(f"v_add_u32 v{v_trw}, 0x20000, v{v_t3}")
    e(f"v_lshlrev_b32 v{v_t0}, 10, v{v_t0}")
    e(f"v_lshl_add_u32 v{v_t0}, v{v_t1}, 4, v{v_t0}")
    e(f"s_lshl_b32 s{s_tmp}, s{s_rb3}, 16")
    e(f"s_lshl_b32 s{s_tmp2}, s{s_cb3}, 7")
    e(f"s_add_u32 s{s_tmp}, s{s_tmp}, s{s_tmp2}")
    e("s_waitcnt lgkmcnt(0)")
    e("s_barrier")
    for kq in range(4):
        off = PS[kq]*SLOT
        ra, rb_ = ((v_t2, v_t3), (v_t4, v_t5), (v_trn, v_trw))[off >> 16]
        e(f"ds_read_b128 {vr(64 + 8*kq, 4)}, v{ra} offset:{off & 0xffff}")
        e(f"ds_read_b128 {vr(68 + 8*kq, 4)}, v{rb_} offset:{off & 0xffff}")
    e("s_waitcnt lgkmcnt(4)")
    for q in range(4):
        e(f"v_pk_add_f32 v[{64+2*q}:{65+2*q}], v[{64+2*q}:{65+2*q}], v[{72+2*q}:{73+2*q}]")
    e("s_waitcnt lgkmcnt(0)")
    for q in range(4):
        e(f"v_pk_add_f32 v[{80+2*q}:{81+2*q}], v[{80+2*q}:{81+2*q}], v[{88+2*q}:{89+2*q}]")
    for q in range(4):
        e(f"v_pk_add_f32 v[{64+2*q}:{65+2*q}], v[{64+2*q}:{65+2*q}], v[{80+2*q}:{81+2*q}]")
    for q in range(4):
        e(f"v_cvt_pk_bf16_f32 v{64+q}, v{64+2*q}, v{65+2*q}")
    e(f"buffer_store_dwordx4 v[64:67], v{v_t0}, {srd(sOUT)}, s{s_tmp} offen {os.environ.get('GEN_OST','').replace('_',' ')}")
    stamp(a, final=True)

def common_setup(a):
    e = a.e
    l = a.newlabel("Lcas")
    e(f"s_or_b32 s{s_nonce}, s{s_nonce}, 1")
    e(f"s_or_b32 s{s_tmp}, s{s_wv}, s2")
    e(f"s_cmp_lg_u32 s{s_tmp}, 0")
    e(f"s_cbranch_scc1 {l}")
    e(f"v_mov_b32 v{v_non}, s{s_nonce}")
    e(f"v_mov_b32 v{v_non+1}, s{s_nonce+1}")
    e(f"v_mov_b32 v{v_t4}, 0")
    e(f"s_mov_b64 s[{s_exec}:{s_exec+1}], exec")
    e("s_mov_b64 exec, 1")
    e(f"buffer_store_dwordx2 {vr(v_non,2)}, v{v_t4}, {srd(sDBG)}, 0 offen sc1")
    e(f"s_mov_b64 exec, s[{s_exec}:{s_exec+1}]")
    a.label(l)
    e(f"s_lshl_b32 s{s_tmp}, s{s_rb}, 2")
    e(f"s_add_u32 s{s_tmp}, s{s_tmp}, s{s_rg}")
    e(f"s_lshl_b32 s{s_oa}, s{s_tmp}, 15")
    e(f"s_lshl_b32 s{s_tmp2}, s{s_cg}, 1")
    e(f"s_add_u32 s{s_tmp2}, s{s_tmp2}, s{s_cgp}")
    e(f"s_lshl_b32 s{s_tmp2}, s{s_tmp2}, 10")
    e(f"s_add_u32 s{s_oa}, s{s_oa}, s{s_tmp2}")
    e(f"s_add_u32 s{s_oa}, s{s_oa}, {OF}")
    for i in range(4): e(f"v_mov_b32 v{ACC+i}, -1")
    a.vmem(f"buffer_store_dwordx4 {vr(ACC,4)}, v{v_l16}, {srd(sWS)}, s{s_oa} offen sc1", "SENT")
    e(f"v_and_b32 v{v_t0}, 31, v{v_lane}")
    e(f"v_lshrrev_b32 v{v_hi}, 5, v{v_lane}")
    e(f"v_and_b32 v{v_t1}, 15, v{v_lane}")
    e(f"v_xor_b32 v{v_t1}, v{v_t1}, v{v_hi}")
    e(f"v_lshlrev_b32 v{v_t1}, 4, v{v_t1}")
    e(f"v_lshl_add_u32 v{v_xrd}, v{v_t0}, 8, v{v_t1}")
    e(f"s_lshl_b32 s{s_tmp}, s{s_rg}, 13")
    e(f"v_add_u32 v{v_xrd}, s{s_tmp}, v{v_xrd}")
    e(f"v_and_b32 v{v_t0}, 15, v{v_lane}")
    e(f"v_lshrrev_b32 v{v_t1}, 2, v{v_t0}")
    e(f"v_bfe_u32 v{v_t2}, v{v_lane}, 4, 1")
    e(f"v_bfe_u32 v{v_t3}, v{v_lane}, 1, 1")
    e(f"v_lshl_add_u32 v{v_t2}, v{v_t2}, 1, v{v_t3}")
    e(f"v_and_b32 v{v_t3}, 1, v{v_lane}")
    e(f"v_lshlrev_b32 v{v_t3}, 3, v{v_t3}")
    e(f"v_lshl_add_u32 v{v_t2}, v{v_t2}, 4, v{v_t3}")
    e(f"v_lshrrev_b32 v{v_t3}, 1, v{v_t1}")
    e(f"v_xor_b32 v{v_t4}, s{s_cgp}, v{v_t3}")
    e(f"v_lshl_add_u32 v{v_t4}, v{v_t4}, 6, v{v_t2}")
    e(f"v_lshl_add_u32 v{v_t5}, v{v_hi}, 3, v{v_t1}")
    e(f"v_lshl_add_u32 v{v_trn}, v{v_t5}, 7, v{v_t4}")
    e(f"s_cmp_eq_u32 s{s_cgp}, 0")
    e(f"s_movk_i32 s{s_tmp}, 192")
    e(f"s_cselect_b32 s{s_tmp}, 64, s{s_tmp}")
    e(f"s_lshl_b32 s{s_k16}, s{s_tmp}, 4")
    e(f"s_lshl_b32 s{s_tmp2}, s{s_cgp}, 12")
    e(f"v_mad_u32_u24 v{v_trw}, v{v_t5}, s{s_tmp}, v{v_t2}")
    e(f"v_add_u32 v{v_trw}, s{s_tmp2}, v{v_trw}")
    e(f"s_lshl_b32 s{s_tmp}, s{s_tmp}, 2")
    e(f"v_add_u32 v{v_omg2}, s{s_tmp}, v{v_trw}")
    e(f"s_movk_i32 s{s_tmp}, 192")
    e(f"v_mad_u32_u24 v{v_trw2}, v{v_t5}, s{s_tmp}, v{v_t2}")
    e(f"s_lshl_b32 s{s_tmp2}, s{s_cgp}, 6")
    e(f"s_add_u32 s{s_tmp2}, s{s_tmp2}, {4096 + 64}")
    e(f"v_add_u32 v{v_trw2}, s{s_tmp2}, v{v_trw2}")
    e(f"v_lshl_add_u32 v{v_t4}, v{v_t3}, 6, v{v_t2}")
    e(f"v_lshl_add_u32 v{v_t5}, v{v_hi}, 2, v{v_t1}")
    e(f"v_lshl_add_u32 v{v_tr3}, v{v_t5}, 7, v{v_t4}")
    e(f"s_lshl_b32 s{s_tmp}, s{s_rg}, 11")
    e(f"v_add_u32 v{v_tr3}, s{s_tmp}, v{v_tr3}")
    e(f"v_xor_b32 v{v_tr3b}, 64, v{v_tr3}")

def wide_setup(a):
    e = a.e
    lq = a.newlabel("Lwq"); lj = a.newlabel("Lwj")
    e(f"s_cmp_lt_u32 s{s_wv}, 2")
    e(f"s_cbranch_scc1 {lq}")
    e(f"s_mov_b32 s{sPW}, s{sW1}"); e(f"s_mov_b32 s{sPW+1}, s{sW1+1}"); e(f"s_mov_b32 s{sPW+2}, {512*1376*2}"); e(f"s_mov_b32 s{sPW+3}, 0x00020000")
    e(f"s_sub_u32 s{s_tmp}, s{s_wv}, 2")
    e(f"s_lshl_b32 s{s_tmp}, s{s_tmp}, 7")
    e(f"s_movk_i32 s{s_tmp3}, 2752")
    e(f"s_movk_i32 s{s_tmp4}, 5462")
    for t in range(2):
        e(f"v_add_u32 v{v_t0}, s{s_tmp}, v{v_lane}")
        if t: e(f"v_add_u32 v{v_t0}, 64, v{v_t0}")
        e(f"v_mul_u32_u24 v{v_t1}, s{s_tmp4}, v{v_t0}")
        e(f"v_lshrrev_b32 v{v_t1}, 16, v{v_t1}")
        e(f"v_mul_u32_u24 v{v_t2}, 12, v{v_t1}")
        e(f"v_sub_u32 v{v_t0}, v{v_t0}, v{v_t2}")
        e(f"v_lshlrev_b32 v{v_t0}, 4, v{v_t0}")
        e(f"v_mad_u32_u24 v{v_wd0+t}, v{v_t1}, s{s_tmp3}, v{v_t0}")
    e(f"s_mul_i32 s{s_wbase}, s{s_cg}, 192")
    e(f"s_cmp_eq_u32 s{s_cg}, 15")
    e(f"s_cselect_b32 s{s_wbase}, {OOB}, s{s_wbase}")
    e(f"s_mov_b32 s{s_pstep}, {64*2752}")
    e(f"s_branch {lj}")
    a.label(lq)
    e(f"s_mov_b32 s{sPW}, s{sWQ}"); e(f"s_mov_b32 s{sPW+1}, s{sWQ+1}"); e(f"s_mov_b32 s{sPW+2}, {512*1536*2}"); e(f"s_mov_b32 s{sPW+3}, 0x00020000")
    e(f"s_lshl_b32 s{s_tmp}, s{s_wv}, 5")
    e(f"s_movk_i32 s{s_tmp3}, 3072")
    e(f"v_lshrrev_b32 v{v_t1}, 2, v{v_lane}")
    e(f"v_add_u32 v{v_t1}, s{s_tmp}, v{v_t1}")
    e(f"v_and_b32 v{v_t0}, 3, v{v_lane}")
    e(f"v_lshlrev_b32 v{v_t0}, 4, v{v_t0}")
    e(f"v_mad_u32_u24 v{v_wd0}, v{v_t1}, s{s_tmp3}, v{v_t0}")
    e(f"v_add_u32 v{v_wd1}, {16*3072}, v{v_wd0}")
    e(f"s_lshl_b32 s{s_wbase}, s{s_cg}, 6")
    e(f"s_mov_b32 s{s_pstep}, {64*3072}")
    a.label(lj)

def gen():
    a = Asm()
    e = a.e
    e("s_cmp_ge_u32 s2, 256")
    e("s_cbranch_scc1 L_exit")
    stamp(a)
    e("s_load_dwordx4 s[8:11], s[0:1], 0")
    e("s_load_dwordx2 s[24:25], s[0:1], 16")
    e("s_load_dwordx4 s[16:19], s[0:1], 32")
    e("s_load_dwordx4 s[36:39], s[0:1], 48")
    e("s_load_dwordx4 s[40:43], s[0:1], 64")
    e(f"s_memrealtime s[{s_nonce}:{s_nonce+1}]")
    e(f"v_and_b32 v{v_lane}, 63, v0")
    e(f"v_lshrrev_b32 v{v_t0}, 6, v0")
    e(f"v_lshlrev_b32 v{v_l16}, 4, v{v_lane}")
    e(f"v_readfirstlane_b32 s{s_wv}, v{v_t0}")
    e(f"s_and_b32 s{s_tmp}, s2, 7")
    e(f"s_lshr_b32 s{s_tmp2}, s2, 3")
    e(f"s_and_b32 s{s_rb}, s{s_tmp}, 1")
    e(f"s_lshl_b32 s{s_rb}, s{s_rb}, 3")
    e(f"s_and_b32 s{s_tmp3}, s{s_tmp2}, 7")
    e(f"s_add_u32 s{s_rb}, s{s_rb}, s{s_tmp3}")
    e(f"s_lshr_b32 s{s_cg}, s{s_tmp}, 1")
    e(f"s_lshl_b32 s{s_cg}, s{s_cg}, 2")
    e(f"s_lshr_b32 s{s_tmp3}, s{s_tmp2}, 3")
    e(f"s_add_u32 s{s_cg}, s{s_cg}, s{s_tmp3}")
    e(f"s_lshr_b32 s{s_p}, s{s_cg}, 1")
    e(f"s_and_b32 s{s_t}, s{s_cg}, 1")
    e(f"s_lshl_b32 s{s_rb3}, s{s_tmp}, 2")
    e(f"s_and_b32 s{s_tmp3}, s{s_tmp2}, 3")
    e(f"s_add_u32 s{s_rb3}, s{s_rb3}, s{s_tmp3}")
    e(f"s_lshr_b32 s{s_cb3}, s{s_tmp2}, 2")
    e(f"s_and_b32 s{s_rg}, s{s_wv}, 3")
    e(f"s_lshr_b32 s{s_cgp}, s{s_wv}, 2")
    e(f"s_lshl_b32 s{s_ldsw}, s{s_wv}, 11")
    e(f"s_lshl_b32 s{s_xlds}, s{s_wv}, 12")
    e(f"s_lshl_b32 s{s_xbase}, s{s_rb}, 17")
    e(f"s_lshl_b32 s{s_tmp3}, s{s_wv}, 14")
    e(f"s_add_u32 s{s_xbase}, s{s_xbase}, s{s_tmp3}")
    if STAMPS:
        e(f"s_lshl_b32 s{s_tsb}, s2, 3")
        e(f"s_add_u32 s{s_tsb}, s{s_tsb}, s{s_wv}")
        e(f"s_lshl_b32 s{s_tsb}, s{s_tsb}, 7")
        e(f"s_add_u32 s{s_tsb}, s{s_tsb}, {TS}")
    e(f"v_lshrrev_b32 v{v_t0}, 4, v{v_lane}")
    e(f"v_and_b32 v{v_t1}, 15, v{v_lane}")
    e(f"v_xor_b32 v{v_t1}, v{v_t1}, v{v_t0}")
    e(f"v_lshlrev_b32 v{v_t0}, 10, v{v_t0}")
    for t in range(4):
        e(f"v_xor_b32 v{v_t2}, {4*t}, v{v_t1}")
        e(f"v_lshl_add_u32 v{v_xo+t}, v{v_t2}, 4, v{v_t0}")
    e(f"v_lshrrev_b32 v{v_t0}, 3, v{v_lane}")
    e(f"v_and_b32 v{v_t1}, 7, v{v_lane}")
    e(f"v_lshrrev_b32 v{v_t2}, 2, v{v_lane}")
    e(f"v_and_b32 v{v_t2}, 4, v{v_t2}")
    e(f"v_xor_b32 v{v_t1}, v{v_t1}, v{v_t2}")
    e(f"v_lshlrev_b32 v{v_t1}, 4, v{v_t1}")
    e(f"s_movk_i32 s{s_tmp3}, 3072")
    e(f"v_mad_u32_u24 v{v_wq_n}, v{v_t0}, s{s_tmp3}, v{v_t1}")
    e(f"v_lshl_add_u32 v{v_w2_n}, v{v_t0}, 10, v{v_t1}")
    e(f"s_mul_i32 s{s_naroff}, s{s_wv}, {16*3072}")
    e(f"s_lshl_b32 s{s_tmp3}, s{s_p}, 7")
    e(f"s_add_u32 s{s_naroff}, s{s_naroff}, s{s_tmp3}")
    e(f"s_lshl_b32 s{s_tmp3}, s{s_t}, 10")
    e(f"s_add_u32 s{s_naroff}, s{s_naroff}, s{s_tmp3}")
    e(f"s_add_u32 s{s_naroff}, s{s_naroff}, 1024")
    e(f"s_lshl_b32 s{s_tmp3}, s{s_p}, 1")
    e(f"s_add_u32 s{s_tmp3}, s{s_tmp3}, s{s_cgp}")
    e(f"s_lshl_b32 s{s_tmp3}, s{s_tmp3}, 6")
    e(f"s_lshl_b32 s{s_tmp4}, s{s_rb}, 2")
    e(f"s_add_u32 s{s_tmp4}, s{s_tmp4}, s{s_rg}")
    e(f"s_add_u32 s{s_tmp3}, s{s_tmp3}, s{s_tmp4}")
    e(f"s_lshl_b32 s{s_st0}, s{s_tmp3}, 11")
    e(f"s_lshl_b32 s{s_tmp3}, s{s_t}, 21")
    e(f"s_add_u32 s{s_st0}, s{s_st0}, s{s_tmp3}")
    e(f"s_add_u32 s{s_st0}, s{s_st0}, {KF}")
    e(f"s_mul_i32 s{s_tmp4}, s{s_tmp4}, {HROW}")
    e(f"s_add_u32 s{s_tmp4}, s{s_tmp4}, {HF}")
    e(f"s_mul_i32 s{s_tmp3}, s{s_cg}, 3")
    e(f"s_lshl_b32 s{s_st1}, s{s_tmp3}, 11")
    e(f"s_add_u32 s{s_st1}, s{s_st1}, s{s_tmp4}")
    e(f"s_cmp_ge_u32 s{s_tmp3}, 43")
    e(f"s_cselect_b32 s{s_st1}, {OOB}, s{s_st1}")
    e(f"s_cmp_eq_u32 s{s_cgp}, 0")
    e(f"s_cselect_b32 s{s_st1}, {OOB}, s{s_st1}")
    e(f"s_add_u32 s{s_tmp3}, s{s_tmp3}, s{s_cgp}")
    e(f"s_add_u32 s{s_tmp3}, s{s_tmp3}, 1")
    e(f"s_lshl_b32 s{s_st2}, s{s_tmp3}, 11")
    e(f"s_add_u32 s{s_st2}, s{s_st2}, s{s_tmp4}")
    e(f"s_cmp_ge_u32 s{s_tmp3}, 43")
    e(f"s_cselect_b32 s{s_st2}, {OOB}, s{s_st2}")
    e(f"s_lshl_b32 s{s_w2off}, s{s_wv}, 14")
    e(f"s_lshl_b32 s{s_tmp3}, s{s_cb3}, 7")
    e(f"s_add_u32 s{s_w2off}, s{s_w2off}, s{s_tmp3}")
    e("s_waitcnt lgkmcnt(0)")
    e("s_mov_b32 s12, s10"); e("s_mov_b32 s13, s11"); e(f"s_mov_b32 s14, {512*1536*2}"); e("s_mov_b32 s15, 0x00020000")
    e(f"s_mov_b32 s10, {2048*512*2}"); e("s_mov_b32 s11, 0x00020000")
    e("s_mov_b32 s32, s38"); e("s_mov_b32 s33, s39"); e(f"s_mov_b32 s34, {2048*512*2}"); e("s_mov_b32 s35, 0x00020000")
    e("s_mov_b32 s38, 1024"); e("s_mov_b32 s39, 0x00020000")
    e(f"s_mov_b32 s{s_ldsww}, 0")
    e(f"s_mov_b32 s{s_gw}, 0")
    lg_ = a.newlabel("Lgs")
    e(f"s_cmp_lg_u32 s{s_cg}, 15")
    e(f"s_cbranch_scc1 {lg_}")
    e(f"s_cmp_lt_u32 s{s_wv}, 2")
    e(f"s_cbranch_scc1 {lg_}")
    e(f"s_mov_b32 s{s_ldsww}, 0x30000")
    e(f"s_cmp_lg_u32 s{s_wv}, 2")
    e(f"s_cbranch_scc1 {lg_}")
    e(f"s_mov_b32 s{s_gw}, 1")
    e(f"v_lshlrev_b32 v{v_t0}, 1, v{v_lane}")
    for j in range(8):
        e(f"buffer_load_ushort v{GREG+j}, v{v_t0}, {srd(sGW)}, 0 offen offset:{j*128}")
    e(f"s_movk_i32 s{s_tmp3}, 192")
    e(f"v_mul_u32_u24 v{v_g2}, s{s_tmp3}, v{v_lane}")
    a.label(lg_)
    e("s_mov_b32 s20, s18"); e("s_mov_b32 s21, s19"); e(f"s_mov_b32 s22, {1376*512*2}"); e("s_mov_b32 s23, 0x00020000")
    e(f"s_mov_b32 s18, {512*1376*2}"); e("s_mov_b32 s19, 0x00020000")
    if TOUCH == 2: touch(a, (sX, sWQ, sW1), 224)
    if TOUCH == 4: touch_l2(a)
    issue_x_quarter(a, 0)
    issue_piece(a, 0, CFG['init'][0])
    if TOUCH == 3: touch(a, (sX, sWQ, sW1), 224)
    if TOUCH == 5: touch_l2(a)
    e(f"s_mov_b32 s26, {512*512*2}"); e("s_mov_b32 s27, 0x00020000")
    e("s_mov_b32 s28, s42"); e("s_mov_b32 s29, s43"); e(f"s_mov_b32 s30, {WS_BYTES}"); e("s_mov_b32 s31, 0x00020000")
    e("s_mov_b32 s42, 256"); e("s_mov_b32 s43, 0x00020000")
    stamp(a)
    if env("GEN_ST3",0): stamp(a)
    common_setup(a)
    wide_setup(a)
    if env("GEN_ST3",0): stamp(a)
    kv_flag_setup(a)
    lm_ = a.newlabel("Lmk")
    e(f"s_cmp_lg_u32 s{s_gw}, 0")
    e(f"s_cbranch_scc1 {lm_}")
    build_maskd(a)
    a.label(lm_)
    if env("GEN_ST3",0): stamp(a)
    e("s_barrier")
    issue_x_quarter(a, 1)
    issue_piece(a, 1, CFG['init'][1])
    e(f"s_cmp_lg_u32 s{s_t}, 0")
    e("s_cbranch_scc1 L_s1v")
    w2_slot = run_stage1(a)
    stamp(a)
    attention(a, w2_slot)
    stage3(a, w2_slot)
    a.label("L_exit")
    a.e("s_endpgm")
    return a

def touch(a, srds, T):
    e = a.e
    e(f"s_lshl_b32 s{s_tmp}, s2, 3")
    e(f"s_add_u32 s{s_tmp}, s{s_tmp}, s{s_wv}")
    e(f"s_lshl_b32 s{s_tmp}, s{s_tmp}, 10")
    for i, sr in enumerate(srds):
        a.vmem(f"buffer_load_dwordx4 {vr(T+4*i,4)}, v{v_l16}, {srd(sr)}, s{s_tmp} offen", "TCH")

def touch_l2(a):
    e = a.e
    T = 224
    lx = a.newlabel("Ltx"); lk = a.newlabel("Ltk"); lq = a.newlabel("Ltq"); lj = a.newlabel("Ltj")
    e(f"s_lshr_b32 s{s_tmp}, s2, 3")
    e(f"s_and_b32 s{s_tmp2}, s2, 7")
    e(f"s_lshr_b32 s{s_tmp3}, s{s_tmp2}, 1")
    e(f"s_cmp_lt_u32 s{s_wv}, 4")
    e(f"s_cbranch_scc1 {lx}")
    e(f"s_cmp_eq_u32 s{s_wv}, 4")
    e(f"s_cbranch_scc1 {lk}")
    e(f"s_cmp_eq_u32 s{s_wv}, 5")
    e(f"s_cbranch_scc1 {lq}")
    e(f"s_sub_u32 s{s_tmp4}, s{s_wv}, 6")
    e(f"s_lshl_b32 s{s_tmp4}, s{s_tmp4}, 3")
    e(f"s_lshl_b32 s{s_tmp}, s{s_tmp}, 4")
    e(f"s_add_u32 s{s_tmp}, s{s_tmp}, s{s_tmp4}")
    e(f"s_mul_i32 s{s_tmp}, s{s_tmp}, 2752")
    e(f"s_mul_i32 s{s_tmp3}, s{s_tmp3}, 768")
    e(f"s_add_u32 s{s_tmp}, s{s_tmp}, s{s_tmp3}")
    e(f"v_lshrrev_b32 v{v_t0}, 3, v{v_lane}")
    e(f"s_movk_i32 s{s_tmp4}, 2752")
    e(f"v_mul_u32_u24 v{v_t0}, s{s_tmp4}, v{v_t0}")
    e(f"v_and_b32 v{v_t1}, 7, v{v_lane}")
    e(f"v_min_u32 v{v_t1}, 6, v{v_t1}")
    e(f"v_lshl_add_u32 v{v_t0}, v{v_t1}, 7, v{v_t0}")
    e(f"buffer_load_dword v{T}, v{v_t0}, {srd(sW1)}, s{s_tmp} offen")
    e(f"s_branch {lj}")
    a.label(lx)
    e(f"s_and_b32 s{s_tmp2}, s{s_tmp2}, 1")
    e(f"s_lshl_b32 s{s_tmp2}, s{s_tmp2}, 20")
    e(f"s_lshl_b32 s{s_tmp}, s{s_tmp}, 15")
    e(f"s_add_u32 s{s_tmp}, s{s_tmp}, s{s_tmp2}")
    e(f"s_lshl_b32 s{s_tmp2}, s{s_wv}, 8")
    e(f"s_add_u32 s{s_tmp}, s{s_tmp}, s{s_tmp2}")
    e(f"v_lshrrev_b32 v{v_t0}, 1, v{v_lane}")
    e(f"v_lshlrev_b32 v{v_t0}, 10, v{v_t0}")
    e(f"v_and_b32 v{v_t1}, 1, v{v_lane}")
    e(f"v_lshl_add_u32 v{v_t0}, v{v_t1}, 7, v{v_t0}")
    e(f"buffer_load_dword v{T}, v{v_t0}, {srd(sX)}, s{s_tmp} offen")
    e(f"s_branch {lj}")
    a.label(lk)
    e(f"s_mul_i32 s{s_tmp}, s{s_tmp}, {16*3072}")
    e(f"s_lshl_b32 s{s_tmp3}, s{s_tmp3}, 8")
    e(f"s_add_u32 s{s_tmp}, s{s_tmp}, s{s_tmp3}")
    e(f"s_add_u32 s{s_tmp}, s{s_tmp}, 1024")
    e(f"v_lshrrev_b32 v{v_t0}, 2, v{v_lane}")
    e(f"s_movk_i32 s{s_tmp4}, 3072")
    e(f"v_mul_u32_u24 v{v_t0}, s{s_tmp4}, v{v_t0}")
    e(f"v_and_b32 v{v_t1}, 1, v{v_lane}")
    e(f"v_lshl_add_u32 v{v_t0}, v{v_t1}, 10, v{v_t0}")
    e(f"v_bfe_u32 v{v_t1}, v{v_lane}, 1, 1")
    e(f"v_lshl_add_u32 v{v_t0}, v{v_t1}, 7, v{v_t0}")
    e(f"buffer_load_dword v{T}, v{v_t0}, {srd(sWQ)}, s{s_tmp} offen")
    e(f"s_branch {lj}")
    a.label(lq)
    e(f"s_mul_i32 s{s_tmp}, s{s_tmp}, {16*3072}")
    e(f"s_lshl_b32 s{s_tmp3}, s{s_tmp3}, 8")
    e(f"s_add_u32 s{s_tmp}, s{s_tmp}, s{s_tmp3}")
    e(f"v_bfe_u32 v{v_t0}, v{v_lane}, 1, 4")
    e(f"s_movk_i32 s{s_tmp4}, 3072")
    e(f"v_mul_u32_u24 v{v_t0}, s{s_tmp4}, v{v_t0}")
    e(f"v_and_b32 v{v_t1}, 1, v{v_lane}")
    e(f"v_lshl_add_u32 v{v_t0}, v{v_t1}, 7, v{v_t0}")
    e(f"buffer_load_dword v{T}, v{v_t0}, {srd(sWQ)}, s{s_tmp} offen")
    a.label(lj)
    a.vm.append("TCH")

def touch_l2_s3(a, part, nparts):
    e = a.e
    T = v_xo + 3
    l1 = a.newlabel("Lt3"); lj = a.newlabel("Lt3j")
    n = 64 // nparts
    mask = ((1 << n) - 1) << (n * part)
    e(f"s_lshr_b32 s{s_tmp}, s2, 3")
    e(f"s_lshl_b32 s{s_tmp}, s{s_tmp}, 3")
    e(f"s_add_u32 s{s_tmp}, s{s_tmp}, s{s_wv}")
    e(f"s_mul_i32 s{s_tmp}, s{s_tmp}, {n*128}")
    e(f"s_add_u32 s{s_tmp}, s{s_tmp}, {part * 256 * n * 128 - part*n*128}")
    e(f"v_lshlrev_b32 v{v_t2}, 7, v{v_lane}")
    e(f"s_mov_b32 exec_lo, 0x{mask & 0xffffffff:x}")
    e(f"s_mov_b32 exec_hi, 0x{mask >> 32:x}")
    lim = 1376*1024
    if (part + 1) * 256 * n * 128 <= 0x180000:
        e(f"buffer_load_dword v{T}, v{v_t2}, {srd(sW2)}, s{s_tmp} offen")
    else:
        e(f"s_sub_u32 s{s_tmp}, s{s_tmp}, 0x180000")
        e(f"buffer_load_dword v{T}, v{v_t2}, {srd(sWO)}, s{s_tmp} offen")
    e("s_mov_b64 exec, -1")
    a.vm.append("TCH")

HEADER = open(os.path.join(os.path.dirname(os.path.abspath(__file__)), "..", "cdna_kernels", NAME + ".s.ref")).read().split("; Override launch")[0]

def emit_file(path):
    a = gen()
    s = HEADER
    s += "; @launch grid=(256,1,1) block=(512,1,1) lds=163840\n"
    s += f""".amdgcn_target "amdgcn-amd-amdhsa--gfx950"
.text
.globl {NAME}_kernel
.p2align 8
.type {NAME}_kernel,@function
{NAME}_kernel:
"""
    s += "\n".join(a.lines) + "\n"
    s += f""".section .rodata,"a"
.p2align 6
.amdhsa_kernel {NAME}_kernel
  .amdhsa_next_free_vgpr 256
  .amdhsa_next_free_sgpr {NSGPR}
  .amdhsa_accum_offset 256
  .amdhsa_group_segment_fixed_size 0
  .amdhsa_kernarg_size 80
  .amdhsa_user_sgpr_count 2
  .amdhsa_user_sgpr_kernarg_segment_ptr 1
  .amdhsa_system_sgpr_workgroup_id_x 1
.end_amdhsa_kernel
"""
    open(path, "w").write(s)

if __name__ == "__main__":
    out = sys.argv[1] if len(sys.argv) > 1 else os.path.join(os.path.dirname(os.path.abspath(__file__)), "..", "cdna_kernels", NAME + ".s")
    emit_file(out)
```

```python
import sys, math, os, struct

NAME = "gated_mix__sliding_block__dense_activation_relu__prompt"

KF = 0x200000
VF = 0x400000
OF = 0x600000
HF = 0x800000
GB = 0xE00000
FL = 0xF00000
TS = 0xF80000
WS_BYTES = 0x1000000
HROW = 86 * 1024
OOB = 0x40000000
SLOT = 16384

def env(n, d): return int(os.environ.get(n, d))
STAMPS = env("GEN_STAMPS", 0) >= 1
STAMPS2 = env("GEN_STAMPS", 0) >= 2
TOUCH = env("GEN_TOUCH", 2)
NT = env("GEN_NT", 0)
ROT = env("GEN_ROT", 0)

class Asm:
    def __init__(self):
        self.lines = []; self.vm = []; self.uid = 0; self.nstamp = 0
    def e(self, s): self.lines.append("    " + s)
    def label(self, l): self.lines.append(l + ":")
    def c(self, s): self.lines.append("    ; " + s)
    def newlabel(self, p="L"):
        self.uid += 1
        return f"{p}_{self.uid}"
    def vmem(self, s, tag):
        self.e(s); self.vm.append(tag)
    def wait_vm(self, tags, lgkm0=False):
        if isinstance(tags, str): tags = [tags]
        last = -1
        for i, t in enumerate(self.vm):
            if t in tags: last = i
        x = " lgkmcnt(0)" if lgkm0 else ""
        if last < 0:
            if lgkm0: self.e("s_waitcnt lgkmcnt(0)")
            return
        n = len(self.vm) - 1 - last
        assert n <= 63
        self.e(f"s_waitcnt vmcnt({n}){x}")
        self.vm = self.vm[last + 1:]

class Lg:
    def __init__(self, a): self.a = a; self.q = []
    def add(self, tag): self.q.append(tag)
    def wait(self, tags):
        last = -1
        for i, t in enumerate(self.q):
            if t in tags: last = i
        if last < 0: return
        n = min(len(self.q) - 1 - last, 15)
        self.a.e(f"s_waitcnt lgkmcnt({n})")
        self.q = self.q[len(self.q) - n:] if n else []
    def clear(self): self.q = []
    def drain(self):
        if self.q: self.a.e("s_waitcnt lgkmcnt(0)")
        self.q = []

sX, sWQ, sW1, sW2, sWO, sWS, sOUT, sGW, sDBG, sPW = 8, 12, 16, 20, 24, 28, 32, 36, 40, 88
def srd(b): return f"s[{b}:{b+3}]"
s_wv, s_rb, s_cg, s_p, s_t, s_rg, s_cgp, s_rb3, s_cb3, s_xbase = range(44, 54)
s_tmp, s_tmp2, s_wideoff, s_naroff = 54, 55, 56, 57
s_nonce = 58
s_tmp3, s_tmp4, s_st0, s_st1, s_first, s_w2off, s_xlds, s_cnt = range(60, 68)
s_exec = 68
s_m = 70; s_m2 = 72; s_m3 = 74
s_ldsw, s_a3, s_a3o, s_qb = 76, 77, 78, 79
s_vm = 80
s_ts = 82
s_tsb, s_ok, s_ga, s_pstep = 84, 85, 86, 87
s_st2 = 92
s_ldsww = 95
s_gw = 7
s_wbase = 5
GREG = 48
s_fl = 6
s_kvb = 3
s_krd = 4
s_vrdb = 98
s_flh = 99
s_flc = 100
v_kf = 25
NSGPR = 102

v_lane, v_l16 = 1, 2
v_xo = 3
v_wq_n, v_wd0, v_wd1, v_xrd, v_trn, v_trw, v_tr3, v_w2_n = 7, 8, 9, 10, 11, 12, 13, 14
v_t0, v_t1 = 15, 16
v_hi = 17
v_t2, v_t3 = 18, 19
v_non = 20
v_c2 = 20
v_mc = 22
v_g2 = 24
v_omg2 = 26
v_t4, v_t5 = 28, 29
v_trw2, v_tr3b = 30, 31
MASKF = 32
MASKD = 48
BF = 64
ACC = 96
XF = 128
v_fo = 252; v_fd = 254

def vr(b, n): return f"v[{b}:{b+n-1}]"

ORD = os.environ.get("GEN_ORD", "A")
CFG = {
 "A": dict(order=[0,1,2,3,4,5,6,7,8,9,10,11], xslot={0:0,1:4,2:6,3:0}, init={0:2,1:3}, atk=6, atv=4, usplit=4, lg=4,
      sched={0:[("X",2,0),("P",2,8),("P",3,9)], 1:[("X",3,0),("P",4,2)], 2:[("P",5,4),("P",6,5),("P",7,3)],
             3:[("P",8,6),("P",9,7),("P",10,8)], 4:[("P",11,9)], 5:[("Q",0,0),("Q",1,1)], 6:[("Q",2,2)], 9:[("Q",3,3)]},
      sig0=6, kvi=9, kvc=11, post=(8,9), non=2),
 "C": dict(order=[0,1,4,2,5,3,6,7,8,9,10,11], xslot={0:0,1:3,2:8,3:0}, init={0:2,1:5}, atk=3, atv=0, usplit=6, lg=6,
      sched={0:[("P",4,6),("X",2,0),("P",2,7)], 1:[("P",5,2),("X",3,0)], 2:[("P",3,5),("P",6,3),("P",7,4)],
             3:[("P",8,6)], 4:[("P",9,7),("P",10,8),("P",11,9)], 5:[("Q",0,2)], 7:[("Q",1,5)], 10:[("Q",2,6)], 11:[("Q",3,7)]},
      sig0=8, kvi=10, kvc=11, post=(8,9), non=3),
}[ORD]
XSLOT = CFG["xslot"]
ATK = CFG['atk'] * SLOT
ATQ = ATK + 24576
ATV = CFG['atv'] * SLOT

v_st = 27
def stamp(a, final=False):
    if not STAMPS: return
    i = a.nstamp; a.nstamp += 1
    cur = s_ts + 2*(i & 1) if False else (s_ts if (i & 1) == 0 else 96)
    prev = (s_ts if ((i-1) & 1) == 0 else 96)
    if i > 0:
        a.e(f"v_writelane_b32 v{v_st}, s{prev}, {i-1}")
    a.e(f"{'s_memrealtime' if env('GEN_RT',0) else 's_memtime'} s[{cur}:{cur+1}]")
    if final:
        a.e("s_waitcnt lgkmcnt(0)")
        a.e(f"v_writelane_b32 v{v_st}, s{cur}, {i}")
        a.e(f"v_lshlrev_b32 v{v_t3}, 2, v{v_lane}")
        a.e("s_mov_b32 exec_lo, -1")
        a.e("s_mov_b32 exec_hi, 0")
        a.e(f"buffer_store_dword v{v_st}, v{v_t3}, {srd(sWS)}, s{s_tsb} offen")
        if env("GEN_DBG", 0):
            l = a.newlabel("Ldbg")
            a.e(f"s_cmp_lg_u32 s2, {env('GEN_DBG',0)}")
            a.e(f"s_cbranch_scc1 {l}")
            a.e(f"s_cmp_lg_u32 s{s_wv}, 0")
            a.e(f"s_cbranch_scc1 {l}")
            a.e(f"v_readlane_b32 s{s_tmp}, v{v_st}, 0")
            a.e("s_nop 3")
            a.e(f"v_subrev_u32 v{v_st}, s{s_tmp}, v{v_st}")
            a.e("s_mov_b32 exec_lo, 0x3ffe")
            a.e(f"buffer_store_dword v{v_st}, v{v_t3}, {srd(sDBG)}, 0 offen offset:4")
            a.label(l)

def dma(a, voff, srd_b, soff, lds_sgpr, ldsimm, tag, sc1=False):
    a.e(f"s_add_u32 m0, s{lds_sgpr}, {ldsimm}")
    a.e("s_nop 0")
    nt = " nt" if (not sc1 and ((NT & 1) and tag[0] in "XP" or (NT & 2) and tag[0] == "Q")) else ""
    a.vmem(f"buffer_load_dwordx4 v{voff}, {srd(srd_b)}, {soff} offen{' sc1' if sc1 else ''}{nt} lds", tag)

def x_ops(a, j):
    ops = []
    for t in range(4):
        def f(t=t):
            a.e(f"s_add_u32 s{s_tmp}, s{s_xbase}, {t*4096 + j*256}")
            dma(a, v_xo + t, sX, f"s{s_tmp}", s_xlds, XSLOT[j]*SLOT + t*1024, f"X{j}")
        ops.append(f)
    return ops

def piece_ops(a, i, slot):
    ops = []
    for t in range(2):
        if i < 4:
            def f(t=t):
                a.e(f"s_add_u32 s{s_tmp}, s{s_naroff}, {(128*i + 8*t)*3072}")
                dma(a, v_wq_n, sWQ, f"s{s_tmp}", s_ldsw, slot*SLOT + t*1024, f"P{i}")
        else:
            def f(t=t):
                if t == 0:
                    a.e(f"s_mul_i32 s{s_wideoff}, s{s_pstep}, {i-4}")
                    a.e(f"s_add_u32 s{s_wideoff}, s{s_wideoff}, s{s_wbase}")
                a.e(f"s_add_u32 s{s_tmp}, s{s_ldsw}, {slot*SLOT + t*1024}")
                a.e(f"s_max_u32 m0, s{s_tmp}, s{s_ldsww}")
                a.e("s_nop 0")
                a.vmem(f"buffer_load_dwordx4 v{v_wd0 + t}, {srd(sPW)}, s{s_wideoff} offen{' nt' if NT & 1 else ''} lds", f"P{i}")
                if t == 1:
                    l = a.newlabel("Lgw")
                    a.e(f"s_cmp_eq_u32 s{s_gw}, 0")
                    a.e(f"s_cbranch_scc1 {l}")
                    a.e(f"v_add_u32 v{v_t2}, {slot*SLOT + 4096 + 128}, v{v_g2}")
                    a.e(f"ds_write_b16 v{v_t2}, v{GREG + i - 4}")
                    a.label(l)
        ops.append(f)
    return ops

def w2_ops(a, i, slot):
    ops = []
    for t in range(2):
        def f(t=t):
            srdb, r0 = (sW2, 128*i) if i <= 10 else (sWO, 128*(i-11))
            a.e(f"s_add_u32 s{s_tmp}, s{s_w2off}, {(r0 + 8*t) * 1024}")
            dma(a, v_w2_n, srdb, f"s{s_tmp}", s_ldsw, slot*SLOT + t*1024, f"Q{i}")
        ops.append(f)
    return ops

def issue_x_quarter(a, j):
    for f in x_ops(a, j): f()
def issue_piece(a, i, slot):
    for f in piece_ops(a, i, slot): f()
def issue_w2_piece(a, i, slot):
    for f in w2_ops(a, i, slot): f()

def mfma(a, d, x, y, c):
    cs = c if isinstance(c, str) else vr(c, 16)
    a.e(f"v_mfma_f32_32x32x16_bf16 {vr(d,16)}, {vr(x,4)}, {vr(y,4)}, {cs}")

def pack_tile(a, acc, pk, relu):
    for q in range(8):
        a.e(f"v_cvt_pk_bf16_f32 v{pk+q}, v{acc+2*q}, v{acc+2*q+1}")
    if relu:
        for q in range(8):
            a.e(f"v_pk_max_i16 v{pk+q}, v{pk+q}, 0")

def store_pk(a, pk, soff_sgpr, tag):
    a.vmem(f"buffer_store_dwordx4 {vr(pk,4)}, v{v_l16}, {srd(sWS)}, s{soff_sgpr} offen sc1", tag)
    a.vmem(f"buffer_store_dwordx4 {vr(pk+4,4)}, v{v_l16}, {srd(sWS)}, s{soff_sgpr} offen offset:1024 sc1", tag)

def signal(a, phase):
    l = a.newlabel("Lsig")
    a.e(f"s_cmp_lg_u32 s{s_wv}, 0")
    a.e(f"s_cbranch_scc1 {l}")
    a.e(f"v_mov_b32 v{v_t2}, s{s_nonce}")
    a.e(f"v_mov_b32 v{v_t3}, s{s_nonce+1}")
    a.e(f"v_mov_b32 v{v_t1}, {phase*32768}")
    a.e("s_mov_b64 exec, 1")
    a.e(f"buffer_store_dwordx2 v[{v_t2}:{v_t3}], v{v_t1}, {srd(sWS)}, s{s_fl} offen sc1")
    a.e("s_mov_b64 exec, -1")
    a.label(l)

def signal_wave(a):
    a.e(f"v_mov_b32 v{v_t2}, s{s_nonce}")
    a.e(f"v_mov_b32 v{v_t3}, s{s_nonce+1}")
    a.e(f"v_mov_b32 v{v_t1}, 0")
    a.e("s_mov_b64 exec, 1")
    a.vmem(f"buffer_store_dwordx2 v[{v_t2}:{v_t3}], v{v_t1}, {srd(sWS)}, s{s_flh} offen sc1", "SIGH")
    a.e("s_mov_b64 exec, -1")

def cmp_flags4(a, vd):
    a.e(f"v_xor_b32 v{vd}, s{s_nonce}, v{vd}")
    a.e(f"v_xor_b32 v{vd+1}, s{s_nonce+1}, v{vd+1}")
    a.e(f"v_xor_b32 v{vd+2}, s{s_nonce}, v{vd+2}")
    a.e(f"v_xor_b32 v{vd+3}, s{s_nonce+1}, v{vd+3}")
    a.e(f"v_or3_b32 v{vd}, v{vd}, v{vd+1}, v{vd+2}")
    a.e(f"v_or_b32 v{vd}, v{vd}, v{vd+3}")
    a.e(f"v_cmp_ne_u32 vcc, 0, v{vd}")
    a.e("s_nop 3")
    a.e("s_cmp_eq_u64 vcc, 0")

def hflag_issue(a, track=True):
    ins = f"buffer_load_dwordx4 v[252:255], v{v_l16}, {srd(sWS)}, s{s_flc} offen sc1"
    (a.vmem(ins, "FH") if track else a.e(ins))

def hpoll(a):
    lp = a.newlabel("Lpoll"); ld = a.newlabel("Lpolld")
    a.e(f"s_mov_b32 s{s_cnt}, 0")
    a.label(lp)
    hflag_issue(a, False)
    a.e("s_waitcnt vmcnt(0)")
    cmp_flags4(a, 252)
    a.e(f"s_cbranch_scc1 {ld}")
    a.e("s_sleep 1")
    a.e(f"s_add_u32 s{s_cnt}, s{s_cnt}, 1")
    a.e(f"s_cmp_lt_u32 s{s_cnt}, 100000")
    a.e(f"s_cbranch_scc1 {lp}")
    a.label(ld)

def cmp_flags(a, vd):
    a.e(f"v_cmp_eq_u32 s[{s_m2}:{s_m2+1}], s{s_nonce}, v{vd}")
    a.e(f"v_cmp_eq_u32 s[{s_m3}:{s_m3+1}], s{s_nonce+1}, v{vd+1}")
    a.e("s_nop 3")
    a.e(f"s_and_b64 s[{s_m2}:{s_m2+1}], s[{s_m2}:{s_m2+1}], s[{s_m3}:{s_m3+1}]")
    a.e(f"s_and_b64 s[{s_m2}:{s_m2+1}], s[{s_m2}:{s_m2+1}], s[{s_m}:{s_m+1}]")
    a.e(f"s_cmp_eq_u64 s[{s_m2}:{s_m2+1}], s[{s_m}:{s_m+1}]")

def poll(a, voff):
    lp = a.newlabel("Lpoll"); ld = a.newlabel("Lpolld")
    a.e(f"s_mov_b32 s{s_cnt}, 0")
    a.label(lp)
    a.e(f"buffer_load_dwordx2 v[{v_t2}:{v_t3}], v{voff}, {srd(sWS)}, 0 offen sc1")
    a.e("s_waitcnt vmcnt(0)")
    cmp_flags(a, v_t2)
    a.e(f"s_cbranch_scc1 {ld}")
    a.e("s_sleep 1")
    a.e(f"s_add_u32 s{s_cnt}, s{s_cnt}, 1")
    a.e(f"s_cmp_lt_u32 s{s_cnt}, 100000")
    a.e(f"s_cbranch_scc1 {lp}")
    a.label(ld)

def flag_issue(a, voff, vdst, tag, track=True):
    ins = f"buffer_load_dwordx2 v[{vdst}:{vdst+1}], v{voff}, {srd(sWS)}, 0 offen sc1"
    (a.vmem(ins, tag) if track else a.e(ins))

def flag_check(a, vdst, tag, track=True):
    if track: a.wait_vm(tag)
    else: a.e("s_waitcnt vmcnt(0)")
    cmp_flags(a, vdst)

def get_nonce(a):
    a.wait_vm("NON")
    lp = a.newlabel("Lnp"); ld = a.newlabel("Lnd")
    a.e(f"s_mov_b32 s{s_cnt}, 0")
    a.label(lp)
    a.e(f"v_readfirstlane_b32 s{s_nonce}, v{v_non}")
    a.e(f"v_readfirstlane_b32 s{s_nonce+1}, v{v_non+1}")
    a.e("s_nop 3")
    a.e(f"s_cmp_lg_u32 s{s_nonce}, 0")
    a.e(f"s_cbranch_scc1 {ld}")
    a.e("s_sleep 2")
    a.e(f"v_mov_b32 v{v_t2}, 0")
    a.e(f"buffer_load_dwordx2 v[{v_non}:{v_non+1}], v{v_t2}, {srd(sDBG)}, 0 offen sc1")
    a.e("s_waitcnt vmcnt(0)")
    a.e(f"s_add_u32 s{s_cnt}, s{s_cnt}, 1")
    a.e(f"s_cmp_lt_u32 s{s_cnt}, 100000")
    a.e(f"s_cbranch_scc1 {lp}")
    a.label(ld)

def kv_flag_setup(a):
    e = a.e
    e(f"s_lshl_b32 s{s_tmp}, s{s_rb}, 4")
    e(f"s_add_u32 s{s_fl}, s{s_tmp}, s{s_cg}")
    e(f"s_lshl_b32 s{s_fl}, s{s_fl}, 7")
    e(f"s_add_u32 s{s_fl}, s{s_fl}, {FL}")
    e(f"s_lshl_b32 s{s_tmp2}, s{s_p}, 1")
    e(f"s_add_u32 s{s_tmp}, s{s_tmp}, s{s_tmp2}")
    e(f"v_lshrrev_b32 v{v_kf}, 1, v{v_lane}")
    e(f"v_lshlrev_b32 v{v_kf}, 4, v{v_kf}")
    e(f"v_sub_u32 v{v_kf}, s{s_tmp}, v{v_kf}")
    e(f"v_and_b32 v{v_t0}, 1, v{v_lane}")
    e(f"v_add_u32 v{v_kf}, v{v_kf}, v{v_t0}")
    e(f"v_and_b32 v{v_kf}, 255, v{v_kf}")
    e(f"v_lshlrev_b32 v{v_kf}, 7, v{v_kf}")
    e(f"v_add_u32 v{v_kf}, {FL}, v{v_kf}")
    e(f"s_mov_b32 s{s_m}, 63")
    e(f"s_cmp_eq_u32 s{s_rb}, 1")
    e(f"s_cselect_b32 s{s_m}, 15, s{s_m}")
    e(f"s_cmp_eq_u32 s{s_rb}, 0")
    e(f"s_cselect_b32 s{s_m}, 3, s{s_m}")
    e(f"s_mov_b32 s{s_m+1}, 0")
    e(f"s_lshl_b32 s{s_tmp3}, s{s_cg}, 6")
    e(f"s_lshl_b32 s{s_tmp4}, s{s_rb}, 2")
    e(f"s_add_u32 s{s_tmp3}, s{s_tmp3}, s{s_tmp4}")
    e(f"s_lshl_b32 s{s_tmp3}, s{s_tmp3}, 11")
    e(f"s_mul_i32 s{s_tmp4}, s{s_wv}, 3072")
    e(f"s_add_u32 s{s_kvb}, s{s_tmp3}, s{s_tmp4}")
    e(f"s_lshl_b32 s{s_tmp}, s{s_rg}, 11")
    e(f"s_lshl_b32 s{s_tmp2}, s{s_cgp}, 10")
    e(f"s_add_u32 s{s_tmp2}, s{s_tmp2}, s{s_tmp}")
    e(f"s_add_u32 s{s_krd}, s{s_tmp2}, {ATK}")
    e(f"s_lshl_b32 s{s_tmp2}, s{s_cgp}, 8")
    e(f"s_add_u32 s{s_tmp2}, s{s_tmp2}, s{s_tmp}")
    e(f"s_add_u32 s{s_vrdb}, s{s_tmp2}, {ATV}")
    e(f"s_lshl_b32 s{s_qb}, s{s_rb}, 2")
    e(f"s_add_u32 s{s_qb}, s{s_qb}, s{s_rg}")
    e(f"s_sub_i32 s{s_first}, 8, s{s_qb}")
    e(f"s_max_i32 s{s_first}, s{s_first}, 0")
    e(f"s_mov_b32 s{s_vm}, 0xffff")
    e(f"s_mov_b32 s{s_vm+1}, 0xffff")
    s3_addr_setup(a)
    e(f"s_lshl_b32 s{s_tmp}, s{s_cg}, 3")
    e(f"s_add_u32 s{s_tmp}, s{s_tmp}, s{s_wv}")
    e(f"s_lshl_b32 s{s_tmp}, s{s_tmp}, 3")
    e(f"s_lshl_b32 s{s_flh}, s{s_rb}, 10")
    e(f"s_add_u32 s{s_flh}, s{s_flh}, s{s_tmp}")
    e(f"s_add_u32 s{s_flh}, s{s_flh}, {FL + 32768}")
    e(f"s_lshr_b32 s{s_flc}, s{s_rb3}, 1")
    e(f"s_lshl_b32 s{s_flc}, s{s_flc}, 10")
    e(f"s_add_u32 s{s_flc}, s{s_flc}, {FL + 32768}")

def kv_ops(a, guard=True):
    ops = []
    for reg, lds, tag in ((KF, ATK, "AK"), (VF, ATV, "AV")):
        for i in range(3):
            def f(reg=reg, lds=lds, tag=tag, i=i):
                l = None
                if guard:
                    l = a.newlabel("Lkvg")
                    a.e(f"s_cmp_eq_u32 s{s_ok}, 0")
                    a.e(f"s_cbranch_scc1 {l}")
                a.e(f"s_mul_i32 s{s_tmp4}, s{s_wv}, 3072")
                a.e(f"s_add_u32 s{s_tmp}, s{s_kvb}, {reg - 16384 + i*1024}")
                dma(a, v_l16, sWS, f"s{s_tmp}", s_tmp4, lds + i*1024, tag, sc1=True)
                if l: a.label(l)
            ops.append(f)
    return ops

def issue_kv(a, which, track=True):
    sv = list(a.vm)
    for f in kv_ops(a, guard=False): f()
    if not track: a.vm = sv

def s1_items(pieces, slot_of):
    items = []
    for i in pieces:
        sl = slot_of[i]
        if i < 4:
            for s in range(8):
                items.append(dict(pc=i, ks=8*i + s, tl=0, vb=v_trn, off=s*2048, sec=512, sl=sl, xs=s))
        else:
            j = i - 4
            for s in range(4):
                for tl in range(2):
                    items.append(dict(pc=i, ks=4*j + s, tl=tl, vb=(v_trw2 if tl else v_trw), off=None, s=s, sl=sl, xs=None))
    return items

def stage1(a, isv):
    raise NotImplementedError

ORDER = CFG['order']
T3U = env('GEN_T3U', 99)
FLUSH = 1
USPLIT = CFG['usplit']

class S1:
    D = env('GEN_D', 5)
    def __init__(self, a):
        self.a = a; self.lg = Lg(a); self.n = 0
        self.fifo = []
        self.slot_of = dict(CFG["init"])
        self.w2_slot = {}
        self.base = {}
        self.sched = CFG["sched"]
    def sync(self, u, extra_need=(), hook=None):
        a = self.a
        i = ORDER[u]
        need = [f"P{i}"] + ([f"X{i}"] if i < 4 else []) + list(extra_need)
        if FLUSH: self.pump(len(self.fifo))
        if u <= CFG['lg']:
            a.wait_vm(need, lgkm0=True)
            self.lg.clear()
        else:
            a.wait_vm(need)
        a.e("s_barrier")
        if STAMPS2: stamp(a)
        if hook: hook()
        for kind, pc, sl in self.sched.get(u, []):
            if kind == "P": self.slot_of[pc] = sl; self.fifo += piece_ops(a, pc, sl)
            elif kind == "X": self.fifo += x_ops(a, pc)
            else: self.w2_slot[pc] = sl; self.fifo += w2_ops(a, pc, sl)
        self.base = {}
    def pump(self, n=1):
        for _ in range(n):
            if self.fifo: self.fifo.pop(0)()
    def read(self, it):
        a = self.a
        b = BF + (it["n"] % 8) * 4
        sl = it["sl"]
        if it["xs"] is not None:
            s = it["xs"]; xq = it["pc"]
            r = v_t0 + (s & 1)
            a.e(f"v_xor_b32 v{r}, {s*32}, v{v_xrd}")
            off = XSLOT[xq]*SLOT
            if off > 65535:
                a.e(f"v_add_u32 v{r}, {off}, v{r}"); off = 0
            a.e(f"ds_read_b128 {vr(XF + it['ks']*4, 4)}, v{r} offset:{off}")
            self.lg.add(("x", it["ks"]))
        vb = it["vb"]
        if it["pc"] < 4:
            off, sec = it["off"], it["sec"]
            o = sl*SLOT + off
            if o + sec > 65535:
                if vb not in self.base:
                    a.e(f"v_add_u32 v{v_t4}, {sl*SLOT}, v{vb}"); self.base[vb] = v_t4
                vb = self.base[vb]; o = off
            a.e(f"ds_read_b64_tr_b16 {vr(b,2)}, v{vb} offset:{o}")
            a.e(f"ds_read_b64_tr_b16 {vr(b+2,2)}, v{vb} offset:{o + sec}")
        else:
            s = it["s"]; tl = it["tl"]
            if tl == 1:
                o = sl*SLOT + s*16*192; sec = 4*192
                if o + sec > 65535 - 16384:
                    if vb not in self.base:
                        a.e(f"v_add_u32 v{v_t5}, {sl*SLOT}, v{vb}"); self.base[vb] = v_t5
                    vb = self.base[vb]; o = s*16*192
                a.e(f"ds_read_b64_tr_b16 {vr(b,2)}, v{vb} offset:{o}")
                a.e(f"ds_read_b64_tr_b16 {vr(b+2,2)}, v{vb} offset:{o + sec}")
            else:
                if s == 0:
                    a.e(f"v_add_u32 v{v_t4}, {sl*SLOT}, v{v_trw}")
                    a.e(f"v_add_u32 v{v_t0}, {sl*SLOT}, v{v_omg2}")
                else:
                    a.e(f"v_add_u32 v{v_t4}, s{s_k16}, v{v_t4}")
                    a.e(f"v_add_u32 v{v_t0}, s{s_k16}, v{v_t0}")
                a.e(f"ds_read_b64_tr_b16 {vr(b,2)}, v{v_t4}")
                a.e(f"ds_read_b64_tr_b16 {vr(b+2,2)}, v{v_t0}")
        self.lg.add(("b", it["n"])); self.lg.add(("b", it["n"]))
    def mm(self, it, isv):
        a = self.a
        self.lg.wait([("b", it["n"]), ("x", it["ks"])])
        b = BF + (it["n"] % 8) * 4
        if it["pc"] < 4:
            acc = ACC2
            cin = "0" if it["ks"] == 0 else acc
            if isv: mfma(a, acc, XF + it["ks"]*4, b, cin)
            else: mfma(a, acc, b, XF + it["ks"]*4, cin)
        else:
            acc = ACC + 16*it["tl"]
            cin = "0" if it["ks"] == 0 else acc
            mfma(a, acc, b, XF + it["ks"]*4, cin)

ACC2 = MASKF
s_k16 = 93

def build_maskd(a):
    e = a.e
    e(f"v_and_b32 v{v_t2}, 31, v{v_lane}")
    e(f"v_lshlrev_b32 v{v_t3}, 2, v{v_hi}")
    e(f"v_sub_u32 v{v_t2}, v{v_t2}, v{v_t3}")
    e(f"v_mov_b32 v{v_t3}, 0xf149f2ca")
    for r in range(16):
        cr = (r & 3) + 8 * (r >> 2)
        e(f"v_cmp_gt_i32 vcc, {cr}, v{v_t2}")
        e("s_nop 1")
        e(f"v_cndmask_b32 v{MASKD+r}, 0, v{v_t3}, vcc")

PRE = env("GEN_PRE", 2)
def run_stage1(a):
    e = a.e
    a.c("================ stage 1 ================")
    D = S1.D
    base_lines = a.lines
    outs = []
    ns0 = a.nstamp; vm0 = list(a.vm)
    state = {}
    def hook(u, st):
        if u == 1 and TOUCH >= 2: touch(a, (sW2, sWO), 240)
        if T3U <= u < T3U + 4: st.fifo.append(lambda u=u: touch_l2_s3(a, u - T3U, 4))
        if u == CFG['non']:
            a.e(f"v_mov_b32 v{v_t2}, 0")
            a.vmem(f"buffer_load_dwordx2 v[{v_non}:{v_non+1}], v{v_t2}, {srd(sDBG)}, 0 offen sc1", "NON")
        if u == SIG0:
            get_nonce(a); signal(a, 0)
        if u == CFG["kvi"]:
            flag_issue(a, v_kf, v_non + 2, "FKV")
        if u == CFG["kvc"]:
            flag_check(a, v_non + 2, "FKV")
            a.e(f"s_cselect_b32 s{s_ok}, 1, 0")
            st.fifo = kv_ops(a) + st.fifo
    def do_mm(st, pend, isv):
        it = pend.pop(0)
        st.mm(it, isv)
        if it["pc"] == 3 and it["ks"] == 31: state["kvdone"] = 0
        elif "kvdone" in state:
            state["kvdone"] += 1
            if state["kvdone"] == 2:
                a.e("s_nop 7")
                pack_tile(a, ACC2, ACC2, False)
                store_pk(a, ACC2, s_st0, "ST0")
        st.pump(1)
    def unit(st, u, pend, n, isv, q0=0, q1=8, items=None):
        pc = ORDER[u]
        if items is None:
            if u <= CFG["lg"]:
                for _ in range(min(PRE, len(pend))): do_mm(st, pend, isv)
            st.sync(u, ["ST0"] if u == SIG0 else [], lambda: hook(u, st))
            items = s1_items([pc], st.slot_of)
            for it in items: it["n"] = n; n += 1
        for q in range(q0, q1):
            st.read(items[q]); pend.append(items[q])
            if len(pend) > D: do_mm(st, pend, isv)
            elif q % 2 == 1 and len(pend) > 2 and u > 0 and pend[0]["pc"] != pc: do_mm(st, pend, isv)
        return n, items
    for isv in (0, 1):
        a.lines = []; a.vm = list(vm0); a.nstamp = ns0; state.clear()
        st = S1(a)
        if isv: a.label("L_s1v")
        pend = []; n = 0
        for u in range(0, USPLIT):
            n, _ = unit(st, u, pend, n, isv)
        n, items = unit(st, USPLIT, pend, n, isv, 0, 0)
        q = 0
        while any(it["pc"] < 4 for it in pend):
            unit(st, USPLIT, pend, n, isv, q, q + 1, items); q += 1
            if q >= 8:
                while any(it["pc"] < 4 for it in pend): do_mm(st, pend, isv)
        st.pump(len(st.fifo))
        if not isv: a.e("s_branch L_s1w")
        outs.append((a.lines, list(a.vm), st, pend, n, items, q, dict(state)))
    assert outs[0][1] == outs[1][1]
    a.lines = base_lines + outs[0][0] + outs[1][0]
    _, vm, st, pend, n, items_s, q0, stt = outs[1]
    a.vm = vm
    a.label("L_s1w")
    unit(st, USPLIT, pend, n, 0, q0, 8, items_s)
    for u in range(USPLIT + 1, 12):
        n, _ = unit(st, u, pend, n, 0)
    while pend: do_mm(st, pend, 0)
    st.pump(len(st.fifo))
    e("s_nop 7"); e("s_nop 3")
    gate(a)
    pack_tile(a, ACC + 16, BF + 8, True)
    store_pk(a, BF + 8, s_st2, "ST1")
    pack_tile(a, ACC, BF, False)
    l = a.newlabel("Lq"); l2 = a.newlabel("Lqd")
    e(f"s_cmp_eq_u32 s{s_cgp}, 0")
    e(f"s_cbranch_scc1 {l}")
    for q in range(8): e(f"v_pk_max_i16 v{BF+q}, v{BF+q}, 0")
    a.label(l)
    store_pk(a, BF, s_st1, "ST1")
    return st.w2_slot

SIG0 = CFG['sig0']

def gate(a):
    e = a.e
    l = a.newlabel("Lgate")
    e(f"s_cmp_lg_u32 s{s_cg}, 15")
    e(f"s_cbranch_scc1 {l}")
    e(f"s_cmp_lg_u32 s{s_cgp}, 1")
    e(f"s_cbranch_scc1 {l}")
    e(f"v_cvt_pk_bf16_f32 v{v_t1}, v{ACC+16}, v{ACC+16}")
    e(f"v_lshlrev_b32 v{v_t1}, 16, v{v_t1}")
    e(f"v_mul_f32 v{v_t1}, 0xbfb8aa3b, v{v_t1}")
    e(f"v_exp_f32 v{v_t1}, v{v_t1}")
    e("s_nop 0")
    e(f"v_add_f32 v{v_t1}, 1.0, v{v_t1}")
    e(f"v_rcp_f32 v{v_t1}, v{v_t1}")
    e("s_nop 0")
    e(f"v_cvt_pk_bf16_f32 v{v_t1}, v{v_t1}, v{v_t1}")
    e(f"v_lshlrev_b32 v{v_t1}, 16, v{v_t1}")
    e(f"v_lshlrev_b32 v{v_t0}, 2, v{v_lane}")
    e(f"s_lshl_b32 s{s_tmp}, s{s_rb}, 2")
    e(f"s_add_u32 s{s_tmp}, s{s_tmp}, s{s_rg}")
    e(f"s_lshl_b32 s{s_tmp}, s{s_tmp}, 7")
    e(f"s_add_u32 s{s_tmp}, s{s_tmp}, {GB}")
    e(f"s_mov_b64 s[{s_exec}:{s_exec+1}], exec")
    e("s_mov_b32 exec_lo, -1")
    e("s_mov_b32 exec_hi, 0")
    e(f"buffer_store_dword v{v_t1}, v{v_t0}, {srd(sWS)}, s{s_tmp} offen sc1")
    e(f"s_mov_b64 exec, s[{s_exec}:{s_exec+1}]")
    a.label(l)

def Sreg(b):
    if b == 0: return MASKF
    if b == 8: return MASKD
    return 64 + 16*(b-1)
KFR = 176; QFR = 212; VROT = 216; OACC = 232
v_max = 248; v_max2 = 249; v_vrd = 250; v_krd = 251

def AFreg(n):
    if n < 10: return 176 + 4*n
    if n < 14: return 48 + 4*(n-10)
    if n < 18: return 160 + 4*(n-14)
    return 144 + 4*(n-18)
def AOreg(n):
    return 128 + 4*n if n < 4 else 32 + 4*(n-4)
BF3 = 64; ACB = 96; ACA = 216

def s3_addr_setup(a):
    e = a.e
    e(f"s_lshl_b32 s{s_tmp3}, s{s_rb3}, 1")
    e(f"s_add_u32 s{s_tmp3}, s{s_tmp3}, s{s_cgp}")
    e(f"s_mul_i32 s{s_a3}, s{s_tmp3}, {HROW}")
    e(f"s_lshl_b32 s{s_tmp}, s{s_rg}, 10")
    e(f"s_add_u32 s{s_a3}, s{s_a3}, s{s_tmp}")
    e(f"s_add_u32 s{s_a3}, s{s_a3}, {HF}")
    e(f"s_lshl_b32 s{s_a3o}, s{s_tmp3}, 15")
    e(f"s_add_u32 s{s_a3o}, s{s_a3o}, s{s_tmp}")
    e(f"s_add_u32 s{s_a3o}, s{s_a3o}, {OF}")
    e(f"s_lshl_b32 s{s_ga}, s{s_tmp3}, 7")
    e(f"s_add_u32 s{s_ga}, s{s_ga}, {GB}")

def h_loads(a, ns, track=True):
    e = a.e
    for n in ns:
        if n == "g":
            e(f"v_and_b32 v{v_t0}, 31, v{v_lane}")
            e(f"v_lshlrev_b32 v{v_t0}, 2, v{v_t0}")
            ins = f"buffer_load_dword v{v_g2}, v{v_t0}, {srd(sWS)}, s{s_ga} offen sc1"
            (a.vmem(ins, "G") if track else e(ins))
            continue
        e(f"s_add_u32 s{s_tmp}, s{s_a3}, {n*4096}")
        if n == 21:
            e(f"s_cmp_ge_u32 s{s_rg}, 2")
            e(f"s_cselect_b32 s{s_tmp}, {OOB}, s{s_tmp}")
        ins = f"buffer_load_dwordx4 {vr(AFreg(n),4)}, v{v_l16}, {srd(sWS)}, s{s_tmp} offen sc1"
        (a.vmem(ins, f"H{n}") if track else e(ins))

def guarded_h_loads(a, ns, track=True):
    l = a.newlabel("Lhl")
    a.e(f"s_cmp_eq_u32 s{s_ok}, 0")
    a.e(f"s_cbranch_scc1 {l}")
    h_loads(a, ns, track)
    a.label(l)

def flags16(a, phase, vdst):
    e = a.e
    e(f"s_lshr_b32 s{s_tmp}, s{s_rb3}, 1")
    e(f"s_lshl_b32 s{s_tmp}, s{s_tmp}, 11")
    e(f"s_add_u32 s{s_tmp}, s{s_tmp}, {FL + phase*32768}")
    e(f"v_and_b32 v{vdst}, 15, v{v_lane}")
    e(f"v_lshlrev_b32 v{vdst}, 7, v{vdst}")
    e(f"v_add_u32 v{vdst}, s{s_tmp}, v{vdst}")
    e(f"s_mov_b32 s{s_m}, 0xffff")
    e(f"s_mov_b32 s{s_m+1}, 0")

SIGB = env('GEN_SIGB', 1)
HB_ISSUE, HB_CHECK = env("GEN_HBI", 6), env("GEN_HBC", 4)

def attention(a, slot_of):
    e = a.e
    a.c("================ attention ================")
    e(f"s_lshl_b32 s{s_tmp}, s{s_rg}, 10")
    e(f"s_add_u32 s{s_tmp}, s{s_tmp}, {ATQ}")
    e(f"v_add_u32 v{v_t0}, s{s_tmp}, v{v_l16}")
    l = a.newlabel("Lqx")
    e(f"s_cmp_lg_u32 s{s_cgp}, 0")
    e(f"s_cbranch_scc1 {l}")
    e(f"ds_write_b128 v{v_t0}, {vr(BF+4,4)}")
    for i in range(4): e(f"v_mov_b32 v{QFR+i}, v{BF+i}")
    a.label(l)
    l = a.newlabel("Lkvok")
    e(f"s_cmp_lg_u32 s{s_ok}, 0")
    e(f"s_cbranch_scc1 {l}")
    poll(a, v_kf)
    issue_kv(a, "KV", track=False)
    e("s_waitcnt vmcnt(0)")
    a.label(l)
    l = a.newlabel("Lgm")
    e(f"s_cmp_eq_u32 s{s_gw}, 0")
    e(f"s_cbranch_scc1 {l}")
    build_maskd(a)
    a.label(l)
    stamp(a)
    e(f"v_add_u32 v{v_krd}, s{s_krd}, v{v_l16}")
    e(f"v_mov_b32 v{v_t3}, 0xf149f2ca")
    for r in range(16):
        e(f"v_sub_f32 v{MASKF+r}, v{v_t3}, v{MASKD+r}")
    a.wait_vm(["AK", "AV"], lgkm0=True)
    e("s_barrier")
    stamp(a)
    lg = Lg(a)
    l = a.newlabel("Lqr")
    e(f"s_cmp_eq_u32 s{s_cgp}, 0")
    e(f"s_cbranch_scc1 {l}")
    e(f"ds_read_b128 {vr(QFR,4)}, v{v_t0}")
    a.label(l)
    for b in range(8, -1, -1):
        e(f"ds_read_b128 {vr(KFR+4*b,4)}, v{v_krd} offset:{b*2048}"); lg.add(("k", b))
    fill = []
    for pc, sl in zip((4, 5), CFG["post"]):
        slot_of[pc] = sl; fill += w2_ops(a, pc, sl)
    c = 0.25 * math.log2(math.e)
    cbits = struct.unpack("<I", struct.pack("<f", c))[0]
    misc = [f"v_mov_b32 v{VROT+i}, 0x3f803f80" for i in range(16)]
    misc += [f"v_mov_b32 v{v_c2}, 0x{cbits:08x}", f"v_mov_b32 v{v_c2+1}, 0x{cbits:08x}", f"v_add_u32 v{v_vrd}, s{s_vrdb}, v{v_l16}"]
    for b in range(8, -1, -1):
        lg.wait([("k", b)])
        S = Sreg(b)
        mfma(a, S, KFR + 4*b, QFR, S if b in (0, 8) else "0")
        for _ in range(3):
            if misc: e(misc.pop(0))
        if fill and b % 2 == 0: fill.pop(0)()
    while misc: e(misc.pop(0))
    while fill: fill.pop(0)()
    if SIGB == 1:
        a.wait_vm("ST1"); signal_wave(a)
    lmax = a.newlabel("Lmaxd")
    e("s_nop 4")
    for b in range(8, -1, -1):
        S = Sreg(b)
        if b < 8:
            e(f"s_cmp_gt_u32 s{s_first}, {b}")
            e(f"s_cbranch_scc1 {lmax}")
        for q in range(8):
            if b == 8 and q == 0:
                e(f"v_max_f32 v{v_max}, v{S}, v{S+1}")
            else:
                e(f"v_max3_f32 v{v_max}, v{S+2*q}, v{S+2*q+1}, v{v_max}")
    a.label(lmax)
    e(f"v_mov_b32 v{v_max2}, v{v_max}")
    e("s_nop 1")
    e(f"v_permlane32_swap_b32 v{v_max}, v{v_max2}")
    e("s_nop 1")
    e(f"v_max_f32 v{v_max}, v{v_max}, v{v_max2}")
    e(f"v_mul_f32 v{v_mc}, v{v_c2}, v{v_max}")
    e(f"v_sub_f32 v{v_mc}, 0, v{v_mc}")
    e(f"v_mov_b32 v{v_mc+1}, v{v_mc}")
    if SIGB == 2:
        a.wait_vm("ST1"); signal_wave(a)
    def softmax_block(b):
        S = Sreg(b)
        for q in range(8):
            e(f"v_pk_fma_f32 v[{S+2*q}:{S+2*q+1}], v[{S+2*q}:{S+2*q+1}], v[{v_c2}:{v_c2+1}], v[{v_mc}:{v_mc+1}]")
        for r in range(16):
            e(f"v_exp_f32 v{S+r}, v{S+r}")
        for q in range(8):
            e(f"v_cvt_pk_bf16_f32 v{S+q}, v{S+2*q}, v{S+2*q+1}")
    softmax_block(8)
    e("s_barrier")
    stamp(a)
    for pc, sl in ((6, CFG['atk']), (7, CFG['atk']+1)):
        slot_of[pc] = sl; issue_w2_piece(a, pc, sl)
    lg = Lg(a)
    def vread(n):
        b = 8 - n//2; m = n % 2
        e(f"ds_read_b128 {vr(VROT + 4*(n%4), 4)}, v{v_vrd} offset:{b*2048 + m*1024}")
        lg.add(("v", n))
    e(f"s_mov_b64 exec, s[{s_vm}:{s_vm+1}]")
    vread(0); vread(1)
    e("s_mov_b64 exec, -1")
    lpv = a.newlabel("Lpvd")
    e(f"s_mov_b32 s{s_ok}, 0")
    skip_labels = {}
    hl = list(range(22)) + ["g"]
    per = -(-len(hl) // (HB_CHECK + 1))
    def post_block(b, track):
        if b == HB_ISSUE: hflag_issue(a, track)
        if b == HB_CHECK:
            if track: a.wait_vm("FH")
            else: e("s_waitcnt vmcnt(0)")
            cmp_flags4(a, 252)
            e(f"s_cselect_b32 s{s_ok}, 1, 0")
        if b <= HB_CHECK:
            i0 = (HB_CHECK - b) * per
            if hl[i0:i0+per]: guarded_h_loads(a, hl[i0:i0+per], track)
    for b in range(8, -1, -1):
        S = Sreg(b)
        n0 = 2*(8 - b)
        if b < 8:
            skip_labels[b] = a.newlabel("Lskip")
            e(f"s_cmp_gt_u32 s{s_first}, {b}")
            e(f"s_cbranch_scc1 {skip_labels[b]}")
        if b > 0:
            e(f"s_mov_b64 exec, s[{s_vm}:{s_vm+1}]")
            vread(n0 + 2); vread(n0 + 3)
            e("s_mov_b64 exec, -1")
        if b < 8: softmax_block(b)
        lg.wait([("v", n0), ("v", n0+1)])
        e("s_nop 0")
        mfma(a, OACC, VROT + 4*(n0 % 4), S, "0" if b == 8 else OACC)
        mfma(a, OACC, VROT + 4*((n0+1) % 4), S + 4, OACC)
        post_block(b, True)
    e(f"s_branch {lpv}")
    for b in range(7, -1, -1):
        a.label(skip_labels[b])
        post_block(b, False)
    a.label(lpv)
    e("s_waitcnt lgkmcnt(0)")
    e("s_nop 7"); e("s_nop 3")
    e(f"v_rcp_f32 v{v_max}, v{OACC+8}")
    e("s_nop 0")
    for r in range(8):
        e(f"v_mul_f32 v{OACC+r}, v{OACC+r}, v{v_max}")
    for q in range(4):
        e(f"v_cvt_pk_bf16_f32 v{248+q}, v{OACC+2*q}, v{OACC+2*q+1}")
    a.vmem(f"buffer_store_dwordx4 v[248:251], v{v_l16}, {srd(sWS)}, s{s_oa} offen sc1", "ST2")
    l = a.newlabel("Lhok")
    e(f"s_cmp_lg_u32 s{s_ok}, 0")
    e(f"s_cbranch_scc1 {l}")
    hpoll(a)
    h_loads(a, list(range(22)) + ["g"], track=False)
    e("s_waitcnt vmcnt(0)")
    a.label(l)
    stamp(a)
s_oa = 94

def compute3(a, pieces, slot_of, cnt):
    e = a.e
    work = []
    for pc in pieces:
        for u in range(2):
            if pc <= 10: af = AFreg(2*pc + u); tag = f"H{2*pc+u}"; acc = ACB; first = (pc == 0 and u == 0)
            else: af = AOreg(2*(pc-11) + u); tag = f"O{2*(pc-11)+u}"; acc = ACA; first = (pc == 11 and u == 0)
            for ct in range(2):
                work.append((slot_of[pc], u, ct, af, tag, acc + 16*ct, first))
    lg = Lg(a)
    cur = {}
    def rd(w):
        sl, u, ct, af, tag, acc, first = work[w]
        vb = v_tr3b if ct else v_tr3
        off = sl*SLOT + u*8192
        if off + 1024 > 65535:
            r = v_t5 if ct else v_t4
            if cur.get(ct) != sl:
                e(f"v_add_u32 v{r}, {sl*SLOT}, v{vb}")
                cur[ct] = sl
            vb = r; off = u*8192
        b = BF3 + ((cnt[0] + w) % 8)*4
        e(f"ds_read_b64_tr_b16 {vr(b,2)}, v{vb} offset:{off}")
        e(f"ds_read_b64_tr_b16 {vr(b+2,2)}, v{vb} offset:{off + 1024}")
        lg.add(w); lg.add(w)
    D = 4
    for w in range(min(D, len(work))): rd(w)
    for w in range(len(work)):
        if w + D < len(work): rd(w + D)
        sl, u, ct, af, tag, acc, first = work[w]
        a.wait_vm(tag)
        lg.wait([w])
        b = BF3 + ((cnt[0] + w) % 8)*4
        mfma(a, acc, b, af, "0" if first else acc)
    cnt[0] += len(work)
    lg.drain()

S3J = env('GEN_S3J', 1)
def o_loads(a, track=True):
    for n in range(8):
        a.e(f"s_add_u32 s{s_tmp}, s{s_a3o}, {n*4096}")
        ins = f"buffer_load_dwordx4 {vr(AOreg(n),4)}, v{v_l16}, {srd(sWS)}, s{s_tmp} offen sc1"
        (a.vmem(ins, f"O{n}") if track else a.e(ins))

def o_check(a):
    e = a.e
    regs = [AOreg(n) + i for n in range(8) for i in range(4)]
    e(f"v_max3_u32 v{v_t2}, v{regs[0]}, v{regs[1]}, v{regs[2]}")
    i = 3
    while i < len(regs):
        if i + 1 < len(regs):
            e(f"v_max3_u32 v{v_t2}, v{regs[i]}, v{regs[i+1]}, v{v_t2}"); i += 2
        else:
            e(f"v_max_u32 v{v_t2}, v{regs[i]}, v{v_t2}"); i += 1
    e(f"v_cmp_eq_u32 vcc, -1, v{v_t2}")
    e("s_nop 3")
    e("s_cmp_eq_u64 vcc, 0")

def stage3(a, slot_of):
    e = a.e
    a.c("================ stage 3 ================")
    D = 4
    lg = Lg(a)
    fifo = []
    cur = {}
    V0 = CFG["atv"]
    def assign(pc, sl):
        slot_of[pc] = sl
        for f in w2_ops(a, pc, sl):
            f.tag = f"Q{pc}"; fifo.append(f)
    def o_verify():
        a.wait_vm("O7")
        lp = a.newlabel("Lop"); ld = a.newlabel("Lod")
        e(f"s_mov_b32 s{s_cnt}, 0")
        a.label(lp)
        o_check(a)
        e(f"s_cbranch_scc1 {ld}")
        o_loads(a, track=False)
        e("s_waitcnt vmcnt(0)")
        e(f"s_add_u32 s{s_cnt}, s{s_cnt}, 1")
        e(f"s_cmp_lt_u32 s{s_cnt}, 100000")
        e(f"s_cbranch_scc1 {lp}")
        a.label(ld)
        stamp(a)
    def o_ops():
        ops = []
        for n in range(8):
            def f(n=n):
                a.e(f"s_add_u32 s{s_tmp}, s{s_a3o}, {n*4096}")
                a.vmem(f"buffer_load_dwordx4 {vr(AOreg(n),4)}, v{v_l16}, {srd(sWS)}, s{s_tmp} offen sc1", f"O{n}")
            f.tag = f"O{n}"
            ops.append(f)
        return ops
    syncs = {
        S3J: (["Q4", "Q5", "Q6", "Q7"], lambda: (assign(8, V0), assign(9, V0 + 1))),
        4: ([], lambda: (assign(10, slot_of[0]), assign(11, slot_of[1]), assign(12, slot_of[2]))),
        6: ([], lambda: (assign(13, slot_of[3]), assign(14, slot_of[4]), fifo.extend(o_ops()))),
        8: (["Q8", "Q9"], None),
        10: (["Q10", "Q11", "Q12"], None),
        13: (["Q13", "Q14"], None),
    }
    items = []
    for pc in range(15):
        for u in range(2):
            for ct in range(2):
                items.append((pc, u, ct))
    def rd(w):
        pc, u, ct = items[w]
        if u == 0 and ct == 0 and pc in syncs:
            tags, act = syncs[pc]
            while any(f.tag in tags for f in fifo): fifo.pop(0)()
            a.wait_vm(tags)
            e("s_barrier")
            if STAMPS2: stamp(a)
            if act: act()
        sl = slot_of[pc]
        vb = v_tr3b if ct else v_tr3
        off = sl*SLOT + u*8192
        if off + 1024 > 65535:
            r = v_t5 if ct else v_t4
            if cur.get(ct) != sl:
                e(f"v_add_u32 v{r}, {sl*SLOT}, v{vb}")
                cur[ct] = sl
            vb = r; off = u*8192
        b = BF3 + (w % 8)*4
        e(f"ds_read_b64_tr_b16 {vr(b,2)}, v{vb} offset:{off}")
        e(f"ds_read_b64_tr_b16 {vr(b+2,2)}, v{vb} offset:{off + 1024}")
        lg.add(w); lg.add(w)
    done = set(["Q4", "Q5", "Q6", "Q7"])
    for w in range(D): rd(w)
    for w in range(len(items)):
        if w + D < len(items):
            rd(w + D)
        pc, u, ct = items[w]
        if pc <= 10: af = AFreg(2*pc + u); tag = f"H{2*pc+u}"; acc = ACB; first = (pc == 0 and u == 0)
        else: af = AOreg(2*(pc-11) + u); tag = f"O{2*(pc-11)+u}"; acc = ACA; first = (pc == 11 and u == 0)
        if pc == 11 and u == 0 and ct == 0:
            while fifo: fifo.pop(0)()
            o_verify()
        a.wait_vm(tag)
        lg.wait([w])
        b = BF3 + (w % 8)*4
        mfma(a, acc + 16*ct, b, af, "0" if first else acc + 16*ct)
        if fifo: fifo.pop(0)()
        if pc >= 11:
            k = w - 44
            if k == 0:
                a.wait_vm("G")
                e(f"v_sub_f32 v{v_c2}, 1.0, v{v_g2}")
                e(f"v_cvt_pk_bf16_f32 v{v_c2}, v{v_c2}, v{v_c2}")
                e(f"v_lshlrev_b32 v{v_c2}, 16, v{v_c2}")
                e(f"v_mov_b32 v{v_c2+1}, v{v_c2}")
                e(f"v_mov_b32 v{v_g2+1}, v{v_g2}")
            elif 2 <= k < 10:
                for q in (2*(k-2), 2*(k-2)+1):
                    e(f"v_pk_mul_f32 v[{ACB+2*q}:{ACB+2*q+1}], v[{ACB+2*q}:{ACB+2*q+1}], v[{v_c2}:{v_c2+1}]")
    lg.drain()
    stamp(a)
    PS = [slot_of[p] for p in (5, 6, 7, 8)]
    e(f"s_cmp_eq_u32 s{s_rg}, 1"); e(f"s_movk_i32 s{s_tmp}, {PS[0]}"); e(f"s_cselect_b32 s{s_tmp}, {PS[1]}, s{s_tmp}")
    e(f"s_cmp_eq_u32 s{s_rg}, 2"); e(f"s_cselect_b32 s{s_tmp}, {PS[2]}, s{s_tmp}")
    e(f"s_cmp_eq_u32 s{s_rg}, 3"); e(f"s_cselect_b32 s{s_tmp}, {PS[3]}, s{s_tmp}")
    e(f"s_lshl_b32 s{s_tmp}, s{s_tmp}, 14")
    e(f"s_lshl_b32 s{s_tmp2}, s{s_cgp}, 13")
    e(f"s_add_u32 s{s_tmp}, s{s_tmp}, s{s_tmp2}")
    e(f"v_and_b32 v{v_t0}, 31, v{v_lane}")
    e(f"v_and_b32 v{v_t1}, 7, v{v_lane}")
    e(f"v_xor_b32 v{v_t1}, v{v_t1}, v{v_hi}")
    e(f"v_lshlrev_b32 v{v_t1}, 4, v{v_t1}")
    e(f"v_lshl_add_u32 v{v_t0}, v{v_t0}, 8, v{v_t1}")
    e(f"v_add_u32 v{v_t0}, s{s_tmp}, v{v_t0}")
    e("s_nop 4")
    for ct in range(2):
        for g4 in range(4):
            b0 = 16*ct + 4*g4
            for q in range(2):
                e(f"v_pk_fma_f32 v[{ACB+b0+2*q}:{ACB+b0+2*q+1}], v[{ACA+b0+2*q}:{ACA+b0+2*q+1}], v[{v_g2}:{v_g2+1}], v[{ACB+b0+2*q}:{ACB+b0+2*q+1}]")
            r = v_t2 + (g4 & 1)
            e(f"v_xor_b32 v{r}, {g4*32}, v{v_t0}")
            e(f"ds_write_b128 v{r}, {vr(ACB + b0, 4)} offset:{ct*128}")
    e(f"v_lshrrev_b32 v{v_t0}, 3, v0")
    e(f"v_and_b32 v{v_t1}, 7, v0")
    e(f"v_and_b32 v{v_t2}, 7, v{v_t0}")
    e(f"v_lshlrev_b32 v{v_t3}, 1, v{v_t1}")
    e(f"v_xor_b32 v{v_t2}, v{v_t2}, v{v_t3}")
    e(f"v_lshlrev_b32 v{v_t2}, 4, v{v_t2}")
    e(f"v_lshl_add_u32 v{v_t2}, v{v_t0}, 8, v{v_t2}")
    e(f"v_xor_b32 v{v_t3}, 16, v{v_t2}")
    e(f"v_add_u32 v{v_t4}, 0x10000, v{v_t2}")
    e(f"v_add_u32 v{v_t5}, 0x10000, v{v_t3}")
    e(f"v_add_u32 v{v_trn}, 0x20000, v{v_t2}")
    e(f"v_add_u32 v{v_trw}, 0x20000, v{v_t3}")
    e(f"v_lshlrev_b32 v{v_t0}, 10, v{v_t0}")
    e(f"v_lshl_add_u32 v{v_t0}, v{v_t1}, 4, v{v_t0}")
    e(f"s_lshl_b32 s{s_tmp}, s{s_rb3}, 16")
    e(f"s_lshl_b32 s{s_tmp2}, s{s_cb3}, 7")
    e(f"s_add_u32 s{s_tmp}, s{s_tmp}, s{s_tmp2}")
    e("s_waitcnt lgkmcnt(0)")
    e("s_barrier")
    for kq in range(4):
        off = PS[kq]*SLOT
        ra, rb_ = ((v_t2, v_t3), (v_t4, v_t5), (v_trn, v_trw))[off >> 16]
        e(f"ds_read_b128 {vr(64 + 8*kq, 4)}, v{ra} offset:{off & 0xffff}")
        e(f"ds_read_b128 {vr(68 + 8*kq, 4)}, v{rb_} offset:{off & 0xffff}")
    e("s_waitcnt lgkmcnt(4)")
    for q in range(4):
        e(f"v_pk_add_f32 v[{64+2*q}:{65+2*q}], v[{64+2*q}:{65+2*q}], v[{72+2*q}:{73+2*q}]")
    e("s_waitcnt lgkmcnt(0)")
    for q in range(4):
        e(f"v_pk_add_f32 v[{80+2*q}:{81+2*q}], v[{80+2*q}:{81+2*q}], v[{88+2*q}:{89+2*q}]")
    for q in range(4):
        e(f"v_pk_add_f32 v[{64+2*q}:{65+2*q}], v[{64+2*q}:{65+2*q}], v[{80+2*q}:{81+2*q}]")
    for q in range(4):
        e(f"v_cvt_pk_bf16_f32 v{64+q}, v{64+2*q}, v{65+2*q}")
    e(f"buffer_store_dwordx4 v[64:67], v{v_t0}, {srd(sOUT)}, s{s_tmp} offen {os.environ.get('GEN_OST','sc1').replace('_',' ')}")
    stamp(a, final=True)

def common_setup(a):
    e = a.e
    l = a.newlabel("Lcas")
    e(f"s_or_b32 s{s_nonce}, s{s_nonce}, 1")
    e(f"s_or_b32 s{s_tmp}, s{s_wv}, s2")
    e(f"s_cmp_lg_u32 s{s_tmp}, 0")
    e(f"s_cbranch_scc1 {l}")
    e(f"v_mov_b32 v{v_non}, s{s_nonce}")
    e(f"v_mov_b32 v{v_non+1}, s{s_nonce+1}")
    e(f"v_mov_b32 v{v_t4}, 0")
    e(f"s_mov_b64 s[{s_exec}:{s_exec+1}], exec")
    e("s_mov_b64 exec, 1")
    e(f"buffer_store_dwordx2 {vr(v_non,2)}, v{v_t4}, {srd(sDBG)}, 0 offen sc1")
    e(f"s_mov_b64 exec, s[{s_exec}:{s_exec+1}]")
    a.label(l)
    e(f"s_lshl_b32 s{s_tmp}, s{s_rb}, 2")
    e(f"s_add_u32 s{s_tmp}, s{s_tmp}, s{s_rg}")
    e(f"s_lshl_b32 s{s_oa}, s{s_tmp}, 15")
    e(f"s_lshl_b32 s{s_tmp2}, s{s_cg}, 1")
    e(f"s_add_u32 s{s_tmp2}, s{s_tmp2}, s{s_cgp}")
    e(f"s_lshl_b32 s{s_tmp2}, s{s_tmp2}, 10")
    e(f"s_add_u32 s{s_oa}, s{s_oa}, s{s_tmp2}")
    e(f"s_add_u32 s{s_oa}, s{s_oa}, {OF}")
    for i in range(4): e(f"v_mov_b32 v{ACC+i}, -1")
    a.vmem(f"buffer_store_dwordx4 {vr(ACC,4)}, v{v_l16}, {srd(sWS)}, s{s_oa} offen sc1", "SENT")
    e(f"v_and_b32 v{v_t0}, 31, v{v_lane}")
    e(f"v_lshrrev_b32 v{v_hi}, 5, v{v_lane}")
    e(f"v_and_b32 v{v_t1}, 15, v{v_lane}")
    e(f"v_xor_b32 v{v_t1}, v{v_t1}, v{v_hi}")
    e(f"v_lshlrev_b32 v{v_t1}, 4, v{v_t1}")
    e(f"v_lshl_add_u32 v{v_xrd}, v{v_t0}, 8, v{v_t1}")
    e(f"s_lshl_b32 s{s_tmp}, s{s_rg}, 13")
    e(f"v_add_u32 v{v_xrd}, s{s_tmp}, v{v_xrd}")
    e(f"v_and_b32 v{v_t0}, 15, v{v_lane}")
    e(f"v_lshrrev_b32 v{v_t1}, 2, v{v_t0}")
    e(f"v_bfe_u32 v{v_t2}, v{v_lane}, 4, 1")
    e(f"v_bfe_u32 v{v_t3}, v{v_lane}, 1, 1")
    e(f"v_lshl_add_u32 v{v_t2}, v{v_t2}, 1, v{v_t3}")
    e(f"v_and_b32 v{v_t3}, 1, v{v_lane}")
    e(f"v_lshlrev_b32 v{v_t3}, 3, v{v_t3}")
    e(f"v_lshl_add_u32 v{v_t2}, v{v_t2}, 4, v{v_t3}")
    e(f"v_lshrrev_b32 v{v_t3}, 1, v{v_t1}")
    e(f"v_xor_b32 v{v_t4}, s{s_cgp}, v{v_t3}")
    e(f"v_lshl_add_u32 v{v_t4}, v{v_t4}, 6, v{v_t2}")
    e(f"v_lshl_add_u32 v{v_t5}, v{v_hi}, 3, v{v_t1}")
    e(f"v_lshl_add_u32 v{v_trn}, v{v_t5}, 7, v{v_t4}")
    e(f"s_cmp_eq_u32 s{s_cgp}, 0")
    e(f"s_movk_i32 s{s_tmp}, 192")
    e(f"s_cselect_b32 s{s_tmp}, 64, s{s_tmp}")
    e(f"s_lshl_b32 s{s_k16}, s{s_tmp}, 4")
    e(f"s_lshl_b32 s{s_tmp2}, s{s_cgp}, 12")
    e(f"v_mad_u32_u24 v{v_trw}, v{v_t5}, s{s_tmp}, v{v_t2}")
    e(f"v_add_u32 v{v_trw}, s{s_tmp2}, v{v_trw}")
    e(f"s_lshl_b32 s{s_tmp}, s{s_tmp}, 2")
    e(f"v_add_u32 v{v_omg2}, s{s_tmp}, v{v_trw}")
    e(f"s_movk_i32 s{s_tmp}, 192")
    e(f"v_mad_u32_u24 v{v_trw2}, v{v_t5}, s{s_tmp}, v{v_t2}")
    e(f"s_lshl_b32 s{s_tmp2}, s{s_cgp}, 6")
    e(f"s_add_u32 s{s_tmp2}, s{s_tmp2}, {4096 + 64}")
    e(f"v_add_u32 v{v_trw2}, s{s_tmp2}, v{v_trw2}")
    e(f"v_lshl_add_u32 v{v_t4}, v{v_t3}, 6, v{v_t2}")
    e(f"v_lshl_add_u32 v{v_t5}, v{v_hi}, 2, v{v_t1}")
    e(f"v_lshl_add_u32 v{v_tr3}, v{v_t5}, 7, v{v_t4}")
    e(f"s_lshl_b32 s{s_tmp}, s{s_rg}, 11")
    e(f"v_add_u32 v{v_tr3}, s{s_tmp}, v{v_tr3}")
    e(f"v_xor_b32 v{v_tr3b}, 64, v{v_tr3}")

def wide_setup(a):
    e = a.e
    lq = a.newlabel("Lwq"); lj = a.newlabel("Lwj")
    e(f"s_cmp_lt_u32 s{s_wv}, 2")
    e(f"s_cbranch_scc1 {lq}")
    e(f"s_mov_b32 s{sPW}, s{sW1}"); e(f"s_mov_b32 s{sPW+1}, s{sW1+1}"); e(f"s_mov_b32 s{sPW+2}, {512*1376*2}"); e(f"s_mov_b32 s{sPW+3}, 0x00020000")
    e(f"s_sub_u32 s{s_tmp}, s{s_wv}, 2")
    e(f"s_lshl_b32 s{s_tmp}, s{s_tmp}, 7")
    e(f"s_movk_i32 s{s_tmp3}, 2752")
    e(f"s_movk_i32 s{s_tmp4}, 5462")
    for t in range(2):
        e(f"v_add_u32 v{v_t0}, s{s_tmp}, v{v_lane}")
        if t: e(f"v_add_u32 v{v_t0}, 64, v{v_t0}")
        e(f"v_mul_u32_u24 v{v_t1}, s{s_tmp4}, v{v_t0}")
        e(f"v_lshrrev_b32 v{v_t1}, 16, v{v_t1}")
        e(f"v_mul_u32_u24 v{v_t2}, 12, v{v_t1}")
        e(f"v_sub_u32 v{v_t0}, v{v_t0}, v{v_t2}")
        e(f"v_lshlrev_b32 v{v_t0}, 4, v{v_t0}")
        e(f"v_mad_u32_u24 v{v_wd0+t}, v{v_t1}, s{s_tmp3}, v{v_t0}")
    e(f"s_mul_i32 s{s_wbase}, s{s_cg}, 192")
    e(f"s_cmp_eq_u32 s{s_cg}, 15")
    e(f"s_cselect_b32 s{s_wbase}, {OOB}, s{s_wbase}")
    e(f"s_mov_b32 s{s_pstep}, {64*2752}")
    e(f"s_branch {lj}")
    a.label(lq)
    e(f"s_mov_b32 s{sPW}, s{sWQ}"); e(f"s_mov_b32 s{sPW+1}, s{sWQ+1}"); e(f"s_mov_b32 s{sPW+2}, {512*1536*2}"); e(f"s_mov_b32 s{sPW+3}, 0x00020000")
    e(f"s_lshl_b32 s{s_tmp}, s{s_wv}, 5")
    e(f"s_movk_i32 s{s_tmp3}, 3072")
    e(f"v_lshrrev_b32 v{v_t1}, 2, v{v_lane}")
    e(f"v_add_u32 v{v_t1}, s{s_tmp}, v{v_t1}")
    e(f"v_and_b32 v{v_t0}, 3, v{v_lane}")
    e(f"v_lshlrev_b32 v{v_t0}, 4, v{v_t0}")
    e(f"v_mad_u32_u24 v{v_wd0}, v{v_t1}, s{s_tmp3}, v{v_t0}")
    e(f"v_add_u32 v{v_wd1}, {16*3072}, v{v_wd0}")
    e(f"s_lshl_b32 s{s_wbase}, s{s_cg}, 6")
    e(f"s_mov_b32 s{s_pstep}, {64*3072}")
    a.label(lj)

def gen():
    a = Asm()
    e = a.e
    e("s_cmp_ge_u32 s2, 256")
    e("s_cbranch_scc1 L_exit")
    stamp(a)
    e("s_load_dwordx4 s[8:11], s[0:1], 0")
    e("s_load_dwordx2 s[24:25], s[0:1], 16")
    e("s_load_dwordx4 s[16:19], s[0:1], 32")
    e("s_load_dwordx4 s[36:39], s[0:1], 48")
    e("s_load_dwordx4 s[40:43], s[0:1], 64")
    e(f"s_memrealtime s[{s_nonce}:{s_nonce+1}]")
    e(f"v_and_b32 v{v_lane}, 63, v0")
    e(f"v_lshrrev_b32 v{v_t0}, 6, v0")
    e(f"v_lshlrev_b32 v{v_l16}, 4, v{v_lane}")
    e(f"v_readfirstlane_b32 s{s_wv}, v{v_t0}")
    e(f"s_and_b32 s{s_tmp}, s2, 7")
    e(f"s_lshr_b32 s{s_tmp2}, s2, 3")
    e(f"s_and_b32 s{s_rb}, s{s_tmp}, 1")
    e(f"s_lshl_b32 s{s_rb}, s{s_rb}, 3")
    e(f"s_and_b32 s{s_tmp3}, s{s_tmp2}, 7")
    e(f"s_add_u32 s{s_rb}, s{s_rb}, s{s_tmp3}")
    e(f"s_lshr_b32 s{s_cg}, s{s_tmp}, 1")
    e(f"s_lshl_b32 s{s_cg}, s{s_cg}, 2")
    e(f"s_lshr_b32 s{s_tmp3}, s{s_tmp2}, 3")
    e(f"s_add_u32 s{s_cg}, s{s_cg}, s{s_tmp3}")
    e(f"s_lshr_b32 s{s_p}, s{s_cg}, 1")
    e(f"s_and_b32 s{s_t}, s{s_cg}, 1")
    e(f"s_lshl_b32 s{s_rb3}, s{s_tmp}, 2")
    e(f"s_and_b32 s{s_tmp3}, s{s_tmp2}, 3")
    e(f"s_add_u32 s{s_rb3}, s{s_rb3}, s{s_tmp3}")
    e(f"s_lshr_b32 s{s_cb3}, s{s_tmp2}, 2")
    e(f"s_and_b32 s{s_rg}, s{s_wv}, 3")
    e(f"s_lshr_b32 s{s_cgp}, s{s_wv}, 2")
    e(f"s_lshl_b32 s{s_ldsw}, s{s_wv}, 11")
    e(f"s_lshl_b32 s{s_xlds}, s{s_wv}, 12")
    e(f"s_lshl_b32 s{s_xbase}, s{s_rb}, 17")
    e(f"s_lshl_b32 s{s_tmp3}, s{s_wv}, 14")
    e(f"s_add_u32 s{s_xbase}, s{s_xbase}, s{s_tmp3}")
    if STAMPS:
        e(f"s_lshl_b32 s{s_tsb}, s2, 3")
        e(f"s_add_u32 s{s_tsb}, s{s_tsb}, s{s_wv}")
        e(f"s_lshl_b32 s{s_tsb}, s{s_tsb}, 7")
        e(f"s_add_u32 s{s_tsb}, s{s_tsb}, {TS}")
    e(f"v_lshrrev_b32 v{v_t0}, 4, v{v_lane}")
    e(f"v_and_b32 v{v_t1}, 15, v{v_lane}")
    e(f"v_xor_b32 v{v_t1}, v{v_t1}, v{v_t0}")
    e(f"v_lshlrev_b32 v{v_t0}, 10, v{v_t0}")
    for t in range(4):
        e(f"v_xor_b32 v{v_t2}, {4*t}, v{v_t1}")
        e(f"v_lshl_add_u32 v{v_xo+t}, v{v_t2}, 4, v{v_t0}")
    e(f"v_lshrrev_b32 v{v_t0}, 3, v{v_lane}")
    e(f"v_and_b32 v{v_t1}, 7, v{v_lane}")
    e(f"v_lshrrev_b32 v{v_t2}, 2, v{v_lane}")
    e(f"v_and_b32 v{v_t2}, 4, v{v_t2}")
    e(f"v_xor_b32 v{v_t1}, v{v_t1}, v{v_t2}")
    e(f"v_lshlrev_b32 v{v_t1}, 4, v{v_t1}")
    e(f"s_movk_i32 s{s_tmp3}, 3072")
    e(f"v_mad_u32_u24 v{v_wq_n}, v{v_t0}, s{s_tmp3}, v{v_t1}")
    e(f"v_lshl_add_u32 v{v_w2_n}, v{v_t0}, 10, v{v_t1}")
    e(f"s_mul_i32 s{s_naroff}, s{s_wv}, {16*3072}")
    e(f"s_lshl_b32 s{s_tmp3}, s{s_p}, 7")
    e(f"s_add_u32 s{s_naroff}, s{s_naroff}, s{s_tmp3}")
    e(f"s_lshl_b32 s{s_tmp3}, s{s_t}, 10")
    e(f"s_add_u32 s{s_naroff}, s{s_naroff}, s{s_tmp3}")
    e(f"s_add_u32 s{s_naroff}, s{s_naroff}, 1024")
    e(f"s_lshl_b32 s{s_tmp3}, s{s_p}, 1")
    e(f"s_add_u32 s{s_tmp3}, s{s_tmp3}, s{s_cgp}")
    e(f"s_lshl_b32 s{s_tmp3}, s{s_tmp3}, 6")
    e(f"s_lshl_b32 s{s_tmp4}, s{s_rb}, 2")
    e(f"s_add_u32 s{s_tmp4}, s{s_tmp4}, s{s_rg}")
    e(f"s_add_u32 s{s_tmp3}, s{s_tmp3}, s{s_tmp4}")
    e(f"s_lshl_b32 s{s_st0}, s{s_tmp3}, 11")
    e(f"s_lshl_b32 s{s_tmp3}, s{s_t}, 21")
    e(f"s_add_u32 s{s_st0}, s{s_st0}, s{s_tmp3}")
    e(f"s_add_u32 s{s_st0}, s{s_st0}, {KF}")
    e(f"s_mul_i32 s{s_tmp4}, s{s_tmp4}, {HROW}")
    e(f"s_add_u32 s{s_tmp4}, s{s_tmp4}, {HF}")
    e(f"s_mul_i32 s{s_tmp3}, s{s_cg}, 3")
    e(f"s_lshl_b32 s{s_st1}, s{s_tmp3}, 11")
    e(f"s_add_u32 s{s_st1}, s{s_st1}, s{s_tmp4}")
    e(f"s_cmp_ge_u32 s{s_tmp3}, 43")
    e(f"s_cselect_b32 s{s_st1}, {OOB}, s{s_st1}")
    e(f"s_cmp_eq_u32 s{s_cgp}, 0")
    e(f"s_cselect_b32 s{s_st1}, {OOB}, s{s_st1}")
    e(f"s_add_u32 s{s_tmp3}, s{s_tmp3}, s{s_cgp}")
    e(f"s_add_u32 s{s_tmp3}, s{s_tmp3}, 1")
    e(f"s_lshl_b32 s{s_st2}, s{s_tmp3}, 11")
    e(f"s_add_u32 s{s_st2}, s{s_st2}, s{s_tmp4}")
    e(f"s_cmp_ge_u32 s{s_tmp3}, 43")
    e(f"s_cselect_b32 s{s_st2}, {OOB}, s{s_st2}")
    e(f"s_lshl_b32 s{s_w2off}, s{s_wv}, 14")
    e(f"s_lshl_b32 s{s_tmp3}, s{s_cb3}, 7")
    e(f"s_add_u32 s{s_w2off}, s{s_w2off}, s{s_tmp3}")
    e("s_waitcnt lgkmcnt(0)")
    e("s_mov_b32 s12, s10"); e("s_mov_b32 s13, s11"); e(f"s_mov_b32 s14, {512*1536*2}"); e("s_mov_b32 s15, 0x00020000")
    e(f"s_mov_b32 s10, {2048*512*2}"); e("s_mov_b32 s11, 0x00020000")
    e("s_mov_b32 s32, s38"); e("s_mov_b32 s33, s39"); e(f"s_mov_b32 s34, {2048*512*2}"); e("s_mov_b32 s35, 0x00020000")
    e("s_mov_b32 s38, 1024"); e("s_mov_b32 s39, 0x00020000")
    e(f"s_mov_b32 s{s_ldsww}, 0")
    e(f"s_mov_b32 s{s_gw}, 0")
    lg_ = a.newlabel("Lgs")
    e(f"s_cmp_lg_u32 s{s_cg}, 15")
    e(f"s_cbranch_scc1 {lg_}")
    e(f"s_cmp_lt_u32 s{s_wv}, 2")
    e(f"s_cbranch_scc1 {lg_}")
    e(f"s_mov_b32 s{s_ldsww}, 0x30000")
    e(f"s_cmp_lg_u32 s{s_wv}, 2")
    e(f"s_cbranch_scc1 {lg_}")
    e(f"s_mov_b32 s{s_gw}, 1")
    e(f"v_lshlrev_b32 v{v_t0}, 1, v{v_lane}")
    for j in range(8):
        e(f"buffer_load_ushort v{GREG+j}, v{v_t0}, {srd(sGW)}, 0 offen offset:{j*128}")
    e(f"s_movk_i32 s{s_tmp3}, 192")
    e(f"v_mul_u32_u24 v{v_g2}, s{s_tmp3}, v{v_lane}")
    a.label(lg_)
    e("s_mov_b32 s20, s18"); e("s_mov_b32 s21, s19"); e(f"s_mov_b32 s22, {1376*512*2}"); e("s_mov_b32 s23, 0x00020000")
    e(f"s_mov_b32 s18, {512*1376*2}"); e("s_mov_b32 s19, 0x00020000")
    if TOUCH == 2: touch(a, (sX, sWQ, sW1), 224)
    if TOUCH == 4: touch_l2(a)
    issue_x_quarter(a, 0)
    issue_piece(a, 0, CFG['init'][0])
    if TOUCH == 3: touch(a, (sX, sWQ, sW1), 224)
    if TOUCH == 5: touch_l2(a)
    e(f"s_mov_b32 s26, {512*512*2}"); e("s_mov_b32 s27, 0x00020000")
    e("s_mov_b32 s28, s42"); e("s_mov_b32 s29, s43"); e(f"s_mov_b32 s30, {WS_BYTES}"); e("s_mov_b32 s31, 0x00020000")
    e("s_mov_b32 s42, 256"); e("s_mov_b32 s43, 0x00020000")
    stamp(a)
    if env("GEN_ST3",0): stamp(a)
    common_setup(a)
    wide_setup(a)
    if env("GEN_ST3",0): stamp(a)
    kv_flag_setup(a)
    lm_ = a.newlabel("Lmk")
    e(f"s_cmp_lg_u32 s{s_gw}, 0")
    e(f"s_cbranch_scc1 {lm_}")
    build_maskd(a)
    a.label(lm_)
    if env("GEN_ST3",0): stamp(a)
    e("s_barrier")
    issue_x_quarter(a, 1)
    issue_piece(a, 1, CFG['init'][1])
    e(f"s_cmp_lg_u32 s{s_t}, 0")
    e("s_cbranch_scc1 L_s1v")
    w2_slot = run_stage1(a)
    stamp(a)
    attention(a, w2_slot)
    stage3(a, w2_slot)
    a.label("L_exit")
    a.e("s_endpgm")
    return a

def touch(a, srds, T):
    e = a.e
    e(f"s_lshl_b32 s{s_tmp}, s2, 3")
    e(f"s_add_u32 s{s_tmp}, s{s_tmp}, s{s_wv}")
    e(f"s_lshl_b32 s{s_tmp}, s{s_tmp}, 10")
    for i, sr in enumerate(srds):
        a.vmem(f"buffer_load_dwordx4 {vr(T+4*i,4)}, v{v_l16}, {srd(sr)}, s{s_tmp} offen", "TCH")

def touch_l2(a):
    e = a.e
    T = 224
    lx = a.newlabel("Ltx"); lk = a.newlabel("Ltk"); lq = a.newlabel("Ltq"); lj = a.newlabel("Ltj")
    e(f"s_lshr_b32 s{s_tmp}, s2, 3")
    e(f"s_and_b32 s{s_tmp2}, s2, 7")
    e(f"s_lshr_b32 s{s_tmp3}, s{s_tmp2}, 1")
    e(f"s_cmp_lt_u32 s{s_wv}, 4")
    e(f"s_cbranch_scc1 {lx}")
    e(f"s_cmp_eq_u32 s{s_wv}, 4")
    e(f"s_cbranch_scc1 {lk}")
    e(f"s_cmp_eq_u32 s{s_wv}, 5")
    e(f"s_cbranch_scc1 {lq}")
    e(f"s_sub_u32 s{s_tmp4}, s{s_wv}, 6")
    e(f"s_lshl_b32 s{s_tmp4}, s{s_tmp4}, 3")
    e(f"s_lshl_b32 s{s_tmp}, s{s_tmp}, 4")
    e(f"s_add_u32 s{s_tmp}, s{s_tmp}, s{s_tmp4}")
    e(f"s_mul_i32 s{s_tmp}, s{s_tmp}, 2752")
    e(f"s_mul_i32 s{s_tmp3}, s{s_tmp3}, 768")
    e(f"s_add_u32 s{s_tmp}, s{s_tmp}, s{s_tmp3}")
    e(f"v_lshrrev_b32 v{v_t0}, 3, v{v_lane}")
    e(f"s_movk_i32 s{s_tmp4}, 2752")
    e(f"v_mul_u32_u24 v{v_t0}, s{s_tmp4}, v{v_t0}")
    e(f"v_and_b32 v{v_t1}, 7, v{v_lane}")
    e(f"v_min_u32 v{v_t1}, 6, v{v_t1}")
    e(f"v_lshl_add_u32 v{v_t0}, v{v_t1}, 7, v{v_t0}")
    e(f"buffer_load_dword v{T}, v{v_t0}, {srd(sW1)}, s{s_tmp} offen")
    e(f"s_branch {lj}")
    a.label(lx)
    e(f"s_and_b32 s{s_tmp2}, s{s_tmp2}, 1")
    e(f"s_lshl_b32 s{s_tmp2}, s{s_tmp2}, 20")
    e(f"s_lshl_b32 s{s_tmp}, s{s_tmp}, 15")
    e(f"s_add_u32 s{s_tmp}, s{s_tmp}, s{s_tmp2}")
    e(f"s_lshl_b32 s{s_tmp2}, s{s_wv}, 8")
    e(f"s_add_u32 s{s_tmp}, s{s_tmp}, s{s_tmp2}")
    e(f"v_lshrrev_b32 v{v_t0}, 1, v{v_lane}")
    e(f"v_lshlrev_b32 v{v_t0}, 10, v{v_t0}")
    e(f"v_and_b32 v{v_t1}, 1, v{v_lane}")
    e(f"v_lshl_add_u32 v{v_t0}, v{v_t1}, 7, v{v_t0}")
    e(f"buffer_load_dword v{T}, v{v_t0}, {srd(sX)}, s{s_tmp} offen")
    e(f"s_branch {lj}")
    a.label(lk)
    e(f"s_mul_i32 s{s_tmp}, s{s_tmp}, {16*3072}")
    e(f"s_lshl_b32 s{s_tmp3}, s{s_tmp3}, 8")
    e(f"s_add_u32 s{s_tmp}, s{s_tmp}, s{s_tmp3}")
    e(f"s_add_u32 s{s_tmp}, s{s_tmp}, 1024")
    e(f"v_lshrrev_b32 v{v_t0}, 2, v{v_lane}")
    e(f"s_movk_i32 s{s_tmp4}, 3072")
    e(f"v_mul_u32_u24 v{v_t0}, s{s_tmp4}, v{v_t0}")
    e(f"v_and_b32 v{v_t1}, 1, v{v_lane}")
    e(f"v_lshl_add_u32 v{v_t0}, v{v_t1}, 10, v{v_t0}")
    e(f"v_bfe_u32 v{v_t1}, v{v_lane}, 1, 1")
    e(f"v_lshl_add_u32 v{v_t0}, v{v_t1}, 7, v{v_t0}")
    e(f"buffer_load_dword v{T}, v{v_t0}, {srd(sWQ)}, s{s_tmp} offen")
    e(f"s_branch {lj}")
    a.label(lq)
    e(f"s_mul_i32 s{s_tmp}, s{s_tmp}, {16*3072}")
    e(f"s_lshl_b32 s{s_tmp3}, s{s_tmp3}, 8")
    e(f"s_add_u32 s{s_tmp}, s{s_tmp}, s{s_tmp3}")
    e(f"v_bfe_u32 v{v_t0}, v{v_lane}, 1, 4")
    e(f"s_movk_i32 s{s_tmp4}, 3072")
    e(f"v_mul_u32_u24 v{v_t0}, s{s_tmp4}, v{v_t0}")
    e(f"v_and_b32 v{v_t1}, 1, v{v_lane}")
    e(f"v_lshl_add_u32 v{v_t0}, v{v_t1}, 7, v{v_t0}")
    e(f"buffer_load_dword v{T}, v{v_t0}, {srd(sWQ)}, s{s_tmp} offen")
    a.label(lj)
    a.vm.append("TCH")

def touch_l2_s3(a, part, nparts):
    e = a.e
    T = v_xo + 3
    l1 = a.newlabel("Lt3"); lj = a.newlabel("Lt3j")
    n = 64 // nparts
    mask = ((1 << n) - 1) << (n * part)
    e(f"s_lshr_b32 s{s_tmp}, s2, 3")
    e(f"s_lshl_b32 s{s_tmp}, s{s_tmp}, 3")
    e(f"s_add_u32 s{s_tmp}, s{s_tmp}, s{s_wv}")
    e(f"s_mul_i32 s{s_tmp}, s{s_tmp}, {n*128}")
    e(f"s_add_u32 s{s_tmp}, s{s_tmp}, {part * 256 * n * 128 - part*n*128}")
    e(f"v_lshlrev_b32 v{v_t2}, 7, v{v_lane}")
    e(f"s_mov_b32 exec_lo, 0x{mask & 0xffffffff:x}")
    e(f"s_mov_b32 exec_hi, 0x{mask >> 32:x}")
    lim = 1376*1024
    if (part + 1) * 256 * n * 128 <= 0x180000:
        e(f"buffer_load_dword v{T}, v{v_t2}, {srd(sW2)}, s{s_tmp} offen")
    else:
        e(f"s_sub_u32 s{s_tmp}, s{s_tmp}, 0x180000")
        e(f"buffer_load_dword v{T}, v{v_t2}, {srd(sWO)}, s{s_tmp} offen")
    e("s_mov_b64 exec, -1")
    a.vm.append("TCH")

HEADER = open(os.path.join(os.path.dirname(os.path.abspath(__file__)), "..", "cdna_kernels", NAME + ".s.ref")).read().split("; Override launch")[0]

def emit_file(path):
    a = gen()
    s = HEADER
    s += "; @launch grid=(256,1,1) block=(512,1,1) lds=163840\n"
    s += f""".amdgcn_target "amdgcn-amd-amdhsa--gfx950"
.text
.globl {NAME}_kernel
.p2align 8
.type {NAME}_kernel,@function
{NAME}_kernel:
"""
    s += "\n".join(a.lines) + "\n"
    s += f""".section .rodata,"a"
.p2align 6
.amdhsa_kernel {NAME}_kernel
  .amdhsa_next_free_vgpr 256
  .amdhsa_next_free_sgpr {NSGPR}
  .amdhsa_accum_offset 256
  .amdhsa_group_segment_fixed_size 0
  .amdhsa_kernarg_size 80
  .amdhsa_user_sgpr_count 2
  .amdhsa_user_sgpr_kernarg_segment_ptr 1
  .amdhsa_system_sgpr_workgroup_id_x 1
.end_amdhsa_kernel
"""
    open(path, "w").write(s)

if __name__ == "__main__":
    out = sys.argv[1] if len(sys.argv) > 1 else os.path.join(os.path.dirname(os.path.abspath(__file__)), "..", "cdna_kernels", NAME + ".s")
    emit_file(out)
```

```python
import sys, math, os, struct

NAME = "gated_mix__sliding_block__dense_activation_relu__prompt"

KF = 0x200000
VF = 0x400000
OF = 0x600000
HF = 0x800000
GB = 0xE00000
FL = 0xF00000
TS = 0xF80000
WS_BYTES = 0x1000000
HROW = 86 * 1024
OOB = 0x40000000
SLOT = 16384

def env(n, d): return int(os.environ.get(n, d))
STAMPS = env("GEN_STAMPS", 0) >= 1
STAMPS2 = env("GEN_STAMPS", 0) >= 2
TOUCH = env("GEN_TOUCH", 2)
NT = env("GEN_NT", 0)
ROT = env("GEN_ROT", 0)

class Asm:
    def __init__(self):
        self.lines = []; self.vm = []; self.uid = 0; self.nstamp = 0
    def e(self, s): self.lines.append("    " + s)
    def label(self, l): self.lines.append(l + ":")
    def c(self, s): self.lines.append("    ; " + s)
    def newlabel(self, p="L"):
        self.uid += 1
        return f"{p}_{self.uid}"
    def vmem(self, s, tag):
        self.e(s); self.vm.append(tag)
    def wait_vm(self, tags, lgkm0=False):
        if isinstance(tags, str): tags = [tags]
        last = -1
        for i, t in enumerate(self.vm):
            if t in tags: last = i
        x = " lgkmcnt(0)" if lgkm0 else ""
        if last < 0:
            if lgkm0: self.e("s_waitcnt lgkmcnt(0)")
            return
        n = len(self.vm) - 1 - last
        assert n <= 63
        self.e(f"s_waitcnt vmcnt({n}){x}")
        self.vm = self.vm[last + 1:]

class Lg:
    def __init__(self, a): self.a = a; self.q = []
    def add(self, tag): self.q.append(tag)
    def wait(self, tags):
        last = -1
        for i, t in enumerate(self.q):
            if t in tags: last = i
        if last < 0: return
        n = min(len(self.q) - 1 - last, 15)
        self.a.e(f"s_waitcnt lgkmcnt({n})")
        self.q = self.q[len(self.q) - n:] if n else []
    def clear(self): self.q = []
    def drain(self):
        if self.q: self.a.e("s_waitcnt lgkmcnt(0)")
        self.q = []

sX, sWQ, sW1, sW2, sWO, sWS, sOUT, sGW, sDBG, sPW = 8, 12, 16, 20, 24, 28, 32, 36, 40, 88
def srd(b): return f"s[{b}:{b+3}]"
s_wv, s_rb, s_cg, s_p, s_t, s_rg, s_cgp, s_rb3, s_cb3, s_xbase = range(44, 54)
s_tmp, s_tmp2, s_wideoff, s_naroff = 54, 55, 56, 57
s_nonce = 58
s_tmp3, s_tmp4, s_st0, s_st1, s_first, s_w2off, s_xlds, s_cnt = range(60, 68)
s_exec = 68
s_m = 70; s_m2 = 72; s_m3 = 74
s_ldsw, s_a3, s_a3o, s_qb = 76, 77, 78, 79
s_vm = 80
s_ts = 82
s_tsb, s_ok, s_ga, s_pstep = 84, 85, 86, 87
s_st2 = 92
s_ldsww = 95
s_gw = 7
s_wbase = 5
GREG = 48
s_fl = 6
s_kvb = 3
s_krd = 4
s_vrdb = 98
s_flh = 99
s_flc = 100
v_kf = 25
NSGPR = 102

v_lane, v_l16 = 1, 2
v_xo = 3
v_wq_n, v_wd0, v_wd1, v_xrd, v_trn, v_trw, v_tr3, v_w2_n = 7, 8, 9, 10, 11, 12, 13, 14
v_t0, v_t1 = 15, 16
v_hi = 17
v_t2, v_t3 = 18, 19
v_non = 20
v_c2 = 20
v_mc = 22
v_g2 = 24
v_omg2 = 26
v_t4, v_t5 = 28, 29
v_trw2, v_tr3b = 30, 31
MASKF = 32
MASKD = 48
BF = 64
ACC = 96
XF = 128
v_fo = 252; v_fd = 254

def vr(b, n): return f"v[{b}:{b+n-1}]"

ORD = os.environ.get("GEN_ORD", "A")
CFG = {
 "A": dict(order=[0,1,2,3,4,5,6,7,8,9,10,11], xslot={0:0,1:4,2:6,3:0}, init={0:2,1:3}, atk=6, atv=4, usplit=4, lg=4,
      sched={0:[("X",2,0),("P",2,8),("P",3,9)], 1:[("X",3,0),("P",4,2)], 2:[("P",5,4),("P",6,5),("P",7,3)],
             3:[("P",8,6),("P",9,7),("P",10,8)], 4:[("P",11,9)], 5:[("Q",0,0),("Q",1,1)], 6:[("Q",2,2)], 9:[("Q",3,3)]},
      sig0=6, kvi=9, kvc=11, post=(8,9), non=2),
 "C": dict(order=[0,1,4,2,5,3,6,7,8,9,10,11], xslot={0:0,1:3,2:8,3:0}, init={0:2,1:5}, atk=3, atv=0, usplit=6, lg=6,
      sched={0:[("P",4,6),("X",2,0),("P",2,7)], 1:[("P",5,2),("X",3,0)], 2:[("P",3,5),("P",6,3),("P",7,4)],
             3:[("P",8,6)], 4:[("P",9,7),("P",10,8),("P",11,9)], 5:[("Q",0,2)], 7:[("Q",1,5)], 10:[("Q",2,6)], 11:[("Q",3,7)]},
      sig0=8, kvi=10, kvc=11, post=(8,9), non=3),
}[ORD]
XSLOT = CFG["xslot"]
ATK = CFG['atk'] * SLOT
ATQ = ATK + 24576
ATV = CFG['atv'] * SLOT

v_st = 27
def stamp(a, final=False):
    if not STAMPS: return
    i = a.nstamp; a.nstamp += 1
    cur = s_ts + 2*(i & 1) if False else (s_ts if (i & 1) == 0 else 96)
    prev = (s_ts if ((i-1) & 1) == 0 else 96)
    if i > 0:
        a.e(f"v_writelane_b32 v{v_st}, s{prev}, {i-1}")
    a.e(f"{'s_memrealtime' if env('GEN_RT',0) else 's_memtime'} s[{cur}:{cur+1}]")
    if final:
        a.e("s_waitcnt lgkmcnt(0)")
        a.e(f"v_writelane_b32 v{v_st}, s{cur}, {i}")
        a.e(f"v_lshlrev_b32 v{v_t3}, 2, v{v_lane}")
        a.e("s_mov_b32 exec_lo, -1")
        a.e("s_mov_b32 exec_hi, 0")
        a.e(f"buffer_store_dword v{v_st}, v{v_t3}, {srd(sWS)}, s{s_tsb} offen")
        if env("GEN_DBG", 0):
            l = a.newlabel("Ldbg")
            a.e(f"s_cmp_lg_u32 s2, {env('GEN_DBG',0)}")
            a.e(f"s_cbranch_scc1 {l}")
            a.e(f"s_cmp_lg_u32 s{s_wv}, 0")
            a.e(f"s_cbranch_scc1 {l}")
            a.e(f"v_readlane_b32 s{s_tmp}, v{v_st}, 0")
            a.e("s_nop 3")
            a.e(f"v_subrev_u32 v{v_st}, s{s_tmp}, v{v_st}")
            a.e("s_mov_b32 exec_lo, 0x3ffe")
            a.e(f"buffer_store_dword v{v_st}, v{v_t3}, {srd(sDBG)}, 0 offen offset:4")
            a.label(l)

def dma(a, voff, srd_b, soff, lds_sgpr, ldsimm, tag, sc1=False):
    a.e(f"s_add_u32 m0, s{lds_sgpr}, {ldsimm}")
    a.e("s_nop 0")
    nt = " nt" if (not sc1 and ((NT & 1) and tag[0] in "XP" or (NT & 2) and tag[0] == "Q")) else ""
    a.vmem(f"buffer_load_dwordx4 v{voff}, {srd(srd_b)}, {soff} offen{' sc1' if sc1 else ''}{nt} lds", tag)

def x_ops(a, j):
    ops = []
    for t in range(4):
        def f(t=t):
            a.e(f"s_add_u32 s{s_tmp}, s{s_xbase}, {t*4096 + j*256}")
            dma(a, v_xo + t, sX, f"s{s_tmp}", s_xlds, XSLOT[j]*SLOT + t*1024, f"X{j}")
        ops.append(f)
    return ops

def piece_ops(a, i, slot):
    ops = []
    for t in range(2):
        if i < 4:
            def f(t=t):
                a.e(f"s_add_u32 s{s_tmp}, s{s_naroff}, {(128*i + 8*t)*3072}")
                dma(a, v_wq_n, sWQ, f"s{s_tmp}", s_ldsw, slot*SLOT + t*1024, f"P{i}")
        else:
            def f(t=t):
                if t == 0:
                    a.e(f"s_mul_i32 s{s_wideoff}, s{s_pstep}, {i-4}")
                    a.e(f"s_add_u32 s{s_wideoff}, s{s_wideoff}, s{s_wbase}")
                a.e(f"s_add_u32 s{s_tmp}, s{s_ldsw}, {slot*SLOT + t*1024}")
                a.e(f"s_max_u32 m0, s{s_tmp}, s{s_ldsww}")
                a.e("s_nop 0")
                a.vmem(f"buffer_load_dwordx4 v{v_wd0 + t}, {srd(sPW)}, s{s_wideoff} offen{' nt' if NT & 1 else ''} lds", f"P{i}")
                if t == 1:
                    l = a.newlabel("Lgw")
                    a.e(f"s_cmp_eq_u32 s{s_gw}, 0")
                    a.e(f"s_cbranch_scc1 {l}")
                    a.e(f"v_add_u32 v{v_t2}, {slot*SLOT + 4096 + 128}, v{v_g2}")
                    a.e(f"ds_write_b16 v{v_t2}, v{GREG + i - 4}")
                    a.label(l)
        ops.append(f)
    return ops

def w2_ops(a, i, slot):
    ops = []
    for t in range(2):
        def f(t=t):
            srdb, r0 = (sW2, 128*i) if i <= 10 else (sWO, 128*(i-11))
            a.e(f"s_add_u32 s{s_tmp}, s{s_w2off}, {(r0 + 8*t) * 1024}")
            dma(a, v_w2_n, srdb, f"s{s_tmp}", s_ldsw, slot*SLOT + t*1024, f"Q{i}")
        ops.append(f)
    return ops

def issue_x_quarter(a, j):
    for f in x_ops(a, j): f()
def issue_piece(a, i, slot):
    for f in piece_ops(a, i, slot): f()
def issue_w2_piece(a, i, slot):
    for f in w2_ops(a, i, slot): f()

def mfma(a, d, x, y, c):
    cs = c if isinstance(c, str) else vr(c, 16)
    a.e(f"v_mfma_f32_32x32x16_bf16 {vr(d,16)}, {vr(x,4)}, {vr(y,4)}, {cs}")

def pack_tile(a, acc, pk, relu):
    for q in range(8):
        a.e(f"v_cvt_pk_bf16_f32 v{pk+q}, v{acc+2*q}, v{acc+2*q+1}")
    if relu:
        for q in range(8):
            a.e(f"v_pk_max_i16 v{pk+q}, v{pk+q}, 0")

def store_pk(a, pk, soff_sgpr, tag):
    a.vmem(f"buffer_store_dwordx4 {vr(pk,4)}, v{v_l16}, {srd(sWS)}, s{soff_sgpr} offen sc1", tag)
    a.vmem(f"buffer_store_dwordx4 {vr(pk+4,4)}, v{v_l16}, {srd(sWS)}, s{soff_sgpr} offen offset:1024 sc1", tag)

def signal(a, phase):
    l = a.newlabel("Lsig")
    a.e(f"s_cmp_lg_u32 s{s_wv}, 0")
    a.e(f"s_cbranch_scc1 {l}")
    a.e(f"v_mov_b32 v{v_t2}, s{s_nonce}")
    a.e(f"v_mov_b32 v{v_t3}, s{s_nonce+1}")
    a.e(f"v_mov_b32 v{v_t1}, {phase*32768}")
    a.e("s_mov_b64 exec, 1")
    a.e(f"buffer_store_dwordx2 v[{v_t2}:{v_t3}], v{v_t1}, {srd(sWS)}, s{s_fl} offen sc1")
    a.e("s_mov_b64 exec, -1")
    a.label(l)

def signal_wave(a):
    a.e(f"v_mov_b32 v{v_t2}, s{s_nonce}")
    a.e(f"v_mov_b32 v{v_t3}, s{s_nonce+1}")
    a.e(f"v_mov_b32 v{v_t1}, 0")
    a.e("s_mov_b64 exec, 1")
    a.vmem(f"buffer_store_dwordx2 v[{v_t2}:{v_t3}], v{v_t1}, {srd(sWS)}, s{s_flh} offen sc1", "SIGH")
    a.e("s_mov_b64 exec, -1")

def cmp_flags4(a, vd):
    a.e(f"v_xor_b32 v{vd}, s{s_nonce}, v{vd}")
    a.e(f"v_xor_b32 v{vd+1}, s{s_nonce+1}, v{vd+1}")
    a.e(f"v_xor_b32 v{vd+2}, s{s_nonce}, v{vd+2}")
    a.e(f"v_xor_b32 v{vd+3}, s{s_nonce+1}, v{vd+3}")
    a.e(f"v_or3_b32 v{vd}, v{vd}, v{vd+1}, v{vd+2}")
    a.e(f"v_or_b32 v{vd}, v{vd}, v{vd+3}")
    a.e(f"v_cmp_ne_u32 vcc, 0, v{vd}")
    a.e("s_nop 3")
    a.e("s_cmp_eq_u64 vcc, 0")

def hflag_issue(a, track=True):
    ins = f"buffer_load_dwordx4 v[252:255], v{v_l16}, {srd(sWS)}, s{s_flc} offen sc1"
    (a.vmem(ins, "FH") if track else a.e(ins))

def hpoll(a):
    lp = a.newlabel("Lpoll"); ld = a.newlabel("Lpolld")
    a.e(f"s_mov_b32 s{s_cnt}, 0")
    a.label(lp)
    hflag_issue(a, False)
    a.e("s_waitcnt vmcnt(0)")
    cmp_flags4(a, 252)
    a.e(f"s_cbranch_scc1 {ld}")
    a.e("s_sleep 1")
    a.e(f"s_add_u32 s{s_cnt}, s{s_cnt}, 1")
    a.e(f"s_cmp_lt_u32 s{s_cnt}, 100000")
    a.e(f"s_cbranch_scc1 {lp}")
    a.label(ld)

def cmp_flags(a, vd):
    a.e(f"v_cmp_eq_u32 s[{s_m2}:{s_m2+1}], s{s_nonce}, v{vd}")
    a.e(f"v_cmp_eq_u32 s[{s_m3}:{s_m3+1}], s{s_nonce+1}, v{vd+1}")
    a.e("s_nop 3")
    a.e(f"s_and_b64 s[{s_m2}:{s_m2+1}], s[{s_m2}:{s_m2+1}], s[{s_m3}:{s_m3+1}]")
    a.e(f"s_and_b64 s[{s_m2}:{s_m2+1}], s[{s_m2}:{s_m2+1}], s[{s_m}:{s_m+1}]")
    a.e(f"s_cmp_eq_u64 s[{s_m2}:{s_m2+1}], s[{s_m}:{s_m+1}]")

def poll(a, voff):
    lp = a.newlabel("Lpoll"); ld = a.newlabel("Lpolld")
    a.e(f"s_mov_b32 s{s_cnt}, 0")
    a.label(lp)
    a.e(f"buffer_load_dwordx2 v[{v_t2}:{v_t3}], v{voff}, {srd(sWS)}, 0 offen sc1")
    a.e("s_waitcnt vmcnt(0)")
    cmp_flags(a, v_t2)
    a.e(f"s_cbranch_scc1 {ld}")
    a.e("s_sleep 1")
    a.e(f"s_add_u32 s{s_cnt}, s{s_cnt}, 1")
    a.e(f"s_cmp_lt_u32 s{s_cnt}, 100000")
    a.e(f"s_cbranch_scc1 {lp}")
    a.label(ld)

def flag_issue(a, voff, vdst, tag, track=True):
    ins = f"buffer_load_dwordx2 v[{vdst}:{vdst+1}], v{voff}, {srd(sWS)}, 0 offen sc1"
    (a.vmem(ins, tag) if track else a.e(ins))

def flag_check(a, vdst, tag, track=True):
    if track: a.wait_vm(tag)
    else: a.e("s_waitcnt vmcnt(0)")
    cmp_flags(a, vdst)

def get_nonce(a):
    a.wait_vm("NON")
    lp = a.newlabel("Lnp"); ld = a.newlabel("Lnd")
    a.e(f"s_mov_b32 s{s_cnt}, 0")
    a.label(lp)
    a.e(f"v_readfirstlane_b32 s{s_nonce}, v{v_non}")
    a.e(f"v_readfirstlane_b32 s{s_nonce+1}, v{v_non+1}")
    a.e("s_nop 3")
    a.e(f"s_cmp_lg_u32 s{s_nonce}, 0")
    a.e(f"s_cbranch_scc1 {ld}")
    a.e("s_sleep 2")
    a.e(f"v_mov_b32 v{v_t2}, 0")
    a.e(f"buffer_load_dwordx2 v[{v_non}:{v_non+1}], v{v_t2}, {srd(sDBG)}, 0 offen sc1")
    a.e("s_waitcnt vmcnt(0)")
    a.e(f"s_add_u32 s{s_cnt}, s{s_cnt}, 1")
    a.e(f"s_cmp_lt_u32 s{s_cnt}, 100000")
    a.e(f"s_cbranch_scc1 {lp}")
    a.label(ld)

def kv_flag_setup(a):
    e = a.e
    e(f"s_lshl_b32 s{s_tmp}, s{s_rb}, 4")
    e(f"s_add_u32 s{s_fl}, s{s_tmp}, s{s_cg}")
    e(f"s_lshl_b32 s{s_fl}, s{s_fl}, 7")
    e(f"s_add_u32 s{s_fl}, s{s_fl}, {FL}")
    e(f"s_lshl_b32 s{s_tmp2}, s{s_p}, 1")
    e(f"s_add_u32 s{s_tmp}, s{s_tmp}, s{s_tmp2}")
    e(f"v_lshrrev_b32 v{v_kf}, 1, v{v_lane}")
    e(f"v_lshlrev_b32 v{v_kf}, 4, v{v_kf}")
    e(f"v_sub_u32 v{v_kf}, s{s_tmp}, v{v_kf}")
    e(f"v_and_b32 v{v_t0}, 1, v{v_lane}")
    e(f"v_add_u32 v{v_kf}, v{v_kf}, v{v_t0}")
    e(f"v_and_b32 v{v_kf}, 255, v{v_kf}")
    e(f"v_lshlrev_b32 v{v_kf}, 7, v{v_kf}")
    e(f"v_add_u32 v{v_kf}, {FL}, v{v_kf}")
    e(f"s_mov_b32 s{s_m}, 63")
    e(f"s_cmp_eq_u32 s{s_rb}, 1")
    e(f"s_cselect_b32 s{s_m}, 15, s{s_m}")
    e(f"s_cmp_eq_u32 s{s_rb}, 0")
    e(f"s_cselect_b32 s{s_m}, 3, s{s_m}")
    e(f"s_mov_b32 s{s_m+1}, 0")
    e(f"s_lshl_b32 s{s_tmp3}, s{s_cg}, 6")
    e(f"s_lshl_b32 s{s_tmp4}, s{s_rb}, 2")
    e(f"s_add_u32 s{s_tmp3}, s{s_tmp3}, s{s_tmp4}")
    e(f"s_lshl_b32 s{s_tmp3}, s{s_tmp3}, 11")
    e(f"s_mul_i32 s{s_tmp4}, s{s_wv}, 3072")
    e(f"s_add_u32 s{s_kvb}, s{s_tmp3}, s{s_tmp4}")
    e(f"s_lshl_b32 s{s_tmp}, s{s_rg}, 11")
    e(f"s_lshl_b32 s{s_tmp2}, s{s_cgp}, 10")
    e(f"s_add_u32 s{s_tmp2}, s{s_tmp2}, s{s_tmp}")
    e(f"s_add_u32 s{s_krd}, s{s_tmp2}, {ATK}")
    e(f"s_lshl_b32 s{s_tmp2}, s{s_cgp}, 8")
    e(f"s_add_u32 s{s_tmp2}, s{s_tmp2}, s{s_tmp}")
    e(f"s_add_u32 s{s_vrdb}, s{s_tmp2}, {ATV}")
    e(f"s_lshl_b32 s{s_qb}, s{s_rb}, 2")
    e(f"s_add_u32 s{s_qb}, s{s_qb}, s{s_rg}")
    e(f"s_sub_i32 s{s_first}, 8, s{s_qb}")
    e(f"s_max_i32 s{s_first}, s{s_first}, 0")
    e(f"s_mov_b32 s{s_vm}, 0xffff")
    e(f"s_mov_b32 s{s_vm+1}, 0xffff")
    s3_addr_setup(a)
    e(f"s_lshl_b32 s{s_tmp}, s{s_cg}, 3")
    e(f"s_add_u32 s{s_tmp}, s{s_tmp}, s{s_wv}")
    e(f"s_lshl_b32 s{s_tmp}, s{s_tmp}, 3")
    e(f"s_lshl_b32 s{s_flh}, s{s_rb}, 10")
    e(f"s_add_u32 s{s_flh}, s{s_flh}, s{s_tmp}")
    e(f"s_add_u32 s{s_flh}, s{s_flh}, {FL + 32768}")
    e(f"s_lshr_b32 s{s_flc}, s{s_rb3}, 1")
    e(f"s_lshl_b32 s{s_flc}, s{s_flc}, 10")
    e(f"s_add_u32 s{s_flc}, s{s_flc}, {FL + 32768}")

def kv_ops(a, guard=True):
    ops = []
    for reg, lds, tag in ((KF, ATK, "AK"), (VF, ATV, "AV")):
        for i in range(3):
            def f(reg=reg, lds=lds, tag=tag, i=i):
                l = None
                if guard:
                    l = a.newlabel("Lkvg")
                    a.e(f"s_cmp_eq_u32 s{s_ok}, 0")
                    a.e(f"s_cbranch_scc1 {l}")
                a.e(f"s_mul_i32 s{s_tmp4}, s{s_wv}, 3072")
                a.e(f"s_add_u32 s{s_tmp}, s{s_kvb}, {reg - 16384 + i*1024}")
                dma(a, v_l16, sWS, f"s{s_tmp}", s_tmp4, lds + i*1024, tag, sc1=True)
                if l: a.label(l)
            ops.append(f)
    return ops

def issue_kv(a, which, track=True):
    sv = list(a.vm)
    for f in kv_ops(a, guard=False): f()
    if not track: a.vm = sv

def s1_items(pieces, slot_of):
    items = []
    for i in pieces:
        sl = slot_of[i]
        if i < 4:
            for s in range(8):
                items.append(dict(pc=i, ks=8*i + s, tl=0, vb=v_trn, off=s*2048, sec=512, sl=sl, xs=s))
        else:
            j = i - 4
            for s in range(4):
                for tl in range(2):
                    items.append(dict(pc=i, ks=4*j + s, tl=tl, vb=(v_trw2 if tl else v_trw), off=None, s=s, sl=sl, xs=None))
    return items

def stage1(a, isv):
    raise NotImplementedError

ORDER = CFG['order']
T3U = env('GEN_T3U', 99)
FLUSH = 1
USPLIT = CFG['usplit']

class S1:
    D = env('GEN_D', 5)
    def __init__(self, a):
        self.a = a; self.lg = Lg(a); self.n = 0
        self.fifo = []
        self.slot_of = dict(CFG["init"])
        self.w2_slot = {}
        self.base = {}
        self.sched = CFG["sched"]
    def sync(self, u, extra_need=(), hook=None):
        a = self.a
        i = ORDER[u]
        need = [f"P{i}"] + ([f"X{i}"] if i < 4 else []) + list(extra_need)
        if FLUSH: self.pump(len(self.fifo))
        if u <= CFG['lg']:
            a.wait_vm(need, lgkm0=True)
            self.lg.clear()
        else:
            a.wait_vm(need)
        a.e("s_barrier")
        if STAMPS2: stamp(a)
        if hook: hook()
        for kind, pc, sl in self.sched.get(u, []):
            if kind == "P": self.slot_of[pc] = sl; self.fifo += piece_ops(a, pc, sl)
            elif kind == "X": self.fifo += x_ops(a, pc)
            else: self.w2_slot[pc] = sl; self.fifo += w2_ops(a, pc, sl)
        self.base = {}
    def pump(self, n=1):
        for _ in range(n):
            if self.fifo: self.fifo.pop(0)()
    def read(self, it):
        a = self.a
        b = BF + (it["n"] % 8) * 4
        sl = it["sl"]
        if it["xs"] is not None:
            s = it["xs"]; xq = it["pc"]
            r = v_t0 + (s & 1)
            a.e(f"v_xor_b32 v{r}, {s*32}, v{v_xrd}")
            off = XSLOT[xq]*SLOT
            if off > 65535:
                a.e(f"v_add_u32 v{r}, {off}, v{r}"); off = 0
            a.e(f"ds_read_b128 {vr(XF + it['ks']*4, 4)}, v{r} offset:{off}")
            self.lg.add(("x", it["ks"]))
        vb = it["vb"]
        if it["pc"] < 4:
            off, sec = it["off"], it["sec"]
            o = sl*SLOT + off
            if o + sec > 65535:
                if vb not in self.base:
                    a.e(f"v_add_u32 v{v_t4}, {sl*SLOT}, v{vb}"); self.base[vb] = v_t4
                vb = self.base[vb]; o = off
            a.e(f"ds_read_b64_tr_b16 {vr(b,2)}, v{vb} offset:{o}")
            a.e(f"ds_read_b64_tr_b16 {vr(b+2,2)}, v{vb} offset:{o + sec}")
        else:
            s = it["s"]; tl = it["tl"]
            if tl == 1:
                o = sl*SLOT + s*16*192; sec = 4*192
                if o + sec > 65535 - 16384:
                    if vb not in self.base:
                        a.e(f"v_add_u32 v{v_t5}, {sl*SLOT}, v{vb}"); self.base[vb] = v_t5
                    vb = self.base[vb]; o = s*16*192
                a.e(f"ds_read_b64_tr_b16 {vr(b,2)}, v{vb} offset:{o}")
                a.e(f"ds_read_b64_tr_b16 {vr(b+2,2)}, v{vb} offset:{o + sec}")
            else:
                if s == 0:
                    a.e(f"v_add_u32 v{v_t4}, {sl*SLOT}, v{v_trw}")
                    a.e(f"v_add_u32 v{v_t0}, {sl*SLOT}, v{v_omg2}")
                else:
                    a.e(f"v_add_u32 v{v_t4}, s{s_k16}, v{v_t4}")
                    a.e(f"v_add_u32 v{v_t0}, s{s_k16}, v{v_t0}")
                a.e(f"ds_read_b64_tr_b16 {vr(b,2)}, v{v_t4}")
                a.e(f"ds_read_b64_tr_b16 {vr(b+2,2)}, v{v_t0}")
        self.lg.add(("b", it["n"])); self.lg.add(("b", it["n"]))
    def mm(self, it, isv):
        a = self.a
        self.lg.wait([("b", it["n"]), ("x", it["ks"])])
        b = BF + (it["n"] % 8) * 4
        if it["pc"] < 4:
            acc = ACC2
            cin = "0" if it["ks"] == 0 else acc
            if isv: mfma(a, acc, XF + it["ks"]*4, b, cin)
            else: mfma(a, acc, b, XF + it["ks"]*4, cin)
        else:
            acc = ACC + 16*it["tl"]
            cin = "0" if it["ks"] == 0 else acc
            mfma(a, acc, b, XF + it["ks"]*4, cin)

ACC2 = MASKF
s_k16 = 93

def build_maskd(a):
    e = a.e
    e(f"v_and_b32 v{v_t2}, 31, v{v_lane}")
    e(f"v_lshlrev_b32 v{v_t3}, 2, v{v_hi}")
    e(f"v_sub_u32 v{v_t2}, v{v_t2}, v{v_t3}")
    e(f"v_mov_b32 v{v_t3}, 0xf149f2ca")
    for r in range(16):
        cr = (r & 3) + 8 * (r >> 2)
        e(f"v_cmp_gt_i32 vcc, {cr}, v{v_t2}")
        e("s_nop 1")
        e(f"v_cndmask_b32 v{MASKD+r}, 0, v{v_t3}, vcc")

PRE = env("GEN_PRE", 2)
def run_stage1(a):
    e = a.e
    a.c("================ stage 1 ================")
    D = S1.D
    base_lines = a.lines
    outs = []
    ns0 = a.nstamp; vm0 = list(a.vm)
    state = {}
    def hook(u, st):
        if u == 1 and TOUCH >= 2 and TOUCH != 7: touch(a, (sW2, sWO), 240)
        if T3U <= u < T3U + 4: st.fifo.append(lambda u=u: touch_l2_s3(a, u - T3U, 4))
        if u == CFG['non']:
            a.e(f"v_mov_b32 v{v_t2}, 0")
            a.vmem(f"buffer_load_dwordx2 v[{v_non}:{v_non+1}], v{v_t2}, {srd(sDBG)}, 0 offen sc1", "NON")
        if u == SIG0:
            get_nonce(a); signal(a, 0)
        if u == CFG["kvi"]:
            flag_issue(a, v_kf, v_non + 2, "FKV")
        if u == CFG["kvc"]:
            flag_check(a, v_non + 2, "FKV")
            a.e(f"s_cselect_b32 s{s_ok}, 1, 0")
            st.fifo = kv_ops(a) + st.fifo
    def do_mm(st, pend, isv):
        it = pend.pop(0)
        st.mm(it, isv)
        if it["pc"] == 3 and it["ks"] == 31: state["kvdone"] = 0
        elif "kvdone" in state:
            state["kvdone"] += 1
            if state["kvdone"] == 2:
                a.e("s_nop 7")
                pack_tile(a, ACC2, ACC2, False)
                store_pk(a, ACC2, s_st0, "ST0")
        st.pump(1)
    def unit(st, u, pend, n, isv, q0=0, q1=8, items=None):
        pc = ORDER[u]
        if items is None:
            if u <= CFG["lg"]:
                for _ in range(min(PRE, len(pend))): do_mm(st, pend, isv)
            st.sync(u, ["ST0"] if u == SIG0 else [], lambda: hook(u, st))
            items = s1_items([pc], st.slot_of)
            for it in items: it["n"] = n; n += 1
        for q in range(q0, q1):
            st.read(items[q]); pend.append(items[q])
            if len(pend) > D: do_mm(st, pend, isv)
            elif q % 2 == 1 and len(pend) > 2 and u > 0 and pend[0]["pc"] != pc: do_mm(st, pend, isv)
        return n, items
    for isv in (0, 1):
        a.lines = []; a.vm = list(vm0); a.nstamp = ns0; state.clear()
        st = S1(a)
        if isv: a.label("L_s1v")
        pend = []; n = 0
        for u in range(0, USPLIT):
            n, _ = unit(st, u, pend, n, isv)
        n, items = unit(st, USPLIT, pend, n, isv, 0, 0)
        q = 0
        while any(it["pc"] < 4 for it in pend):
            unit(st, USPLIT, pend, n, isv, q, q + 1, items); q += 1
            if q >= 8:
                while any(it["pc"] < 4 for it in pend): do_mm(st, pend, isv)
        st.pump(len(st.fifo))
        if not isv: a.e("s_branch L_s1w")
        outs.append((a.lines, list(a.vm), st, pend, n, items, q, dict(state)))
    assert outs[0][1] == outs[1][1]
    a.lines = base_lines + outs[0][0] + outs[1][0]
    _, vm, st, pend, n, items_s, q0, stt = outs[1]
    a.vm = vm
    a.label("L_s1w")
    unit(st, USPLIT, pend, n, 0, q0, 8, items_s)
    for u in range(USPLIT + 1, 12):
        n, _ = unit(st, u, pend, n, 0)
    while pend: do_mm(st, pend, 0)
    st.pump(len(st.fifo))
    e("s_nop 7"); e("s_nop 3")
    gate(a)
    pack_tile(a, ACC + 16, BF + 8, True)
    store_pk(a, BF + 8, s_st2, "ST1")
    pack_tile(a, ACC, BF, False)
    l = a.newlabel("Lq"); l2 = a.newlabel("Lqd")
    e(f"s_cmp_eq_u32 s{s_cgp}, 0")
    e(f"s_cbranch_scc1 {l}")
    for q in range(8): e(f"v_pk_max_i16 v{BF+q}, v{BF+q}, 0")
    a.label(l)
    store_pk(a, BF, s_st1, "ST1")
    return st.w2_slot

SIG0 = CFG['sig0']

def gate(a):
    e = a.e
    l = a.newlabel("Lgate")
    e(f"s_cmp_lg_u32 s{s_cg}, 15")
    e(f"s_cbranch_scc1 {l}")
    e(f"s_cmp_lg_u32 s{s_cgp}, 1")
    e(f"s_cbranch_scc1 {l}")
    e(f"v_cvt_pk_bf16_f32 v{v_t1}, v{ACC+16}, v{ACC+16}")
    e(f"v_lshlrev_b32 v{v_t1}, 16, v{v_t1}")
    e(f"v_mul_f32 v{v_t1}, 0xbfb8aa3b, v{v_t1}")
    e(f"v_exp_f32 v{v_t1}, v{v_t1}")
    e("s_nop 0")
    e(f"v_add_f32 v{v_t1}, 1.0, v{v_t1}")
    e(f"v_rcp_f32 v{v_t1}, v{v_t1}")
    e("s_nop 0")
    e(f"v_cvt_pk_bf16_f32 v{v_t1}, v{v_t1}, v{v_t1}")
    e(f"v_lshlrev_b32 v{v_t1}, 16, v{v_t1}")
    e(f"v_lshlrev_b32 v{v_t0}, 2, v{v_lane}")
    e(f"s_lshl_b32 s{s_tmp}, s{s_rb}, 2")
    e(f"s_add_u32 s{s_tmp}, s{s_tmp}, s{s_rg}")
    e(f"s_lshl_b32 s{s_tmp}, s{s_tmp}, 7")
    e(f"s_add_u32 s{s_tmp}, s{s_tmp}, {GB}")
    e(f"s_mov_b64 s[{s_exec}:{s_exec+1}], exec")
    e("s_mov_b32 exec_lo, -1")
    e("s_mov_b32 exec_hi, 0")
    e(f"buffer_store_dword v{v_t1}, v{v_t0}, {srd(sWS)}, s{s_tmp} offen sc1")
    e(f"s_mov_b64 exec, s[{s_exec}:{s_exec+1}]")
    a.label(l)

def Sreg(b):
    if b == 0: return MASKF
    if b == 8: return MASKD
    return 64 + 16*(b-1)
KFR = 176; QFR = 212; VROT = 216; OACC = 232
v_max = 248; v_max2 = 249; v_vrd = 250; v_krd = 251

def AFreg(n):
    if n < 10: return 176 + 4*n
    if n < 14: return 48 + 4*(n-10)
    if n < 18: return 160 + 4*(n-14)
    return 144 + 4*(n-18)
def AOreg(n):
    return 128 + 4*n if n < 4 else 32 + 4*(n-4)
BF3 = 64; ACB = 96; ACA = 216

def s3_addr_setup(a):
    e = a.e
    e(f"s_lshl_b32 s{s_tmp3}, s{s_rb3}, 1")
    e(f"s_add_u32 s{s_tmp3}, s{s_tmp3}, s{s_cgp}")
    e(f"s_mul_i32 s{s_a3}, s{s_tmp3}, {HROW}")
    e(f"s_lshl_b32 s{s_tmp}, s{s_rg}, 10")
    e(f"s_add_u32 s{s_a3}, s{s_a3}, s{s_tmp}")
    e(f"s_add_u32 s{s_a3}, s{s_a3}, {HF}")
    e(f"s_lshl_b32 s{s_a3o}, s{s_tmp3}, 15")
    e(f"s_add_u32 s{s_a3o}, s{s_a3o}, s{s_tmp}")
    e(f"s_add_u32 s{s_a3o}, s{s_a3o}, {OF}")
    e(f"s_lshl_b32 s{s_ga}, s{s_tmp3}, 7")
    e(f"s_add_u32 s{s_ga}, s{s_ga}, {GB}")

def h_loads(a, ns, track=True):
    e = a.e
    for n in ns:
        if n == "g":
            e(f"v_and_b32 v{v_t0}, 31, v{v_lane}")
            e(f"v_lshlrev_b32 v{v_t0}, 2, v{v_t0}")
            ins = f"buffer_load_dword v{v_g2}, v{v_t0}, {srd(sWS)}, s{s_ga} offen sc1"
            (a.vmem(ins, "G") if track else e(ins))
            continue
        e(f"s_add_u32 s{s_tmp}, s{s_a3}, {n*4096}")
        if n == 21:
            e(f"s_cmp_ge_u32 s{s_rg}, 2")
            e(f"s_cselect_b32 s{s_tmp}, {OOB}, s{s_tmp}")
        ins = f"buffer_load_dwordx4 {vr(AFreg(n),4)}, v{v_l16}, {srd(sWS)}, s{s_tmp} offen sc1"
        (a.vmem(ins, f"H{n}") if track else e(ins))

def guarded_h_loads(a, ns, track=True):
    l = a.newlabel("Lhl")
    a.e(f"s_cmp_eq_u32 s{s_ok}, 0")
    a.e(f"s_cbranch_scc1 {l}")
    h_loads(a, ns, track)
    a.label(l)

def flags16(a, phase, vdst):
    e = a.e
    e(f"s_lshr_b32 s{s_tmp}, s{s_rb3}, 1")
    e(f"s_lshl_b32 s{s_tmp}, s{s_tmp}, 11")
    e(f"s_add_u32 s{s_tmp}, s{s_tmp}, {FL + phase*32768}")
    e(f"v_and_b32 v{vdst}, 15, v{v_lane}")
    e(f"v_lshlrev_b32 v{vdst}, 7, v{vdst}")
    e(f"v_add_u32 v{vdst}, s{s_tmp}, v{vdst}")
    e(f"s_mov_b32 s{s_m}, 0xffff")
    e(f"s_mov_b32 s{s_m+1}, 0")

SIGB = env('GEN_SIGB', 1)
HB_ISSUE, HB_CHECK = env("GEN_HBI", 5), env("GEN_HBC", 3)

def attention(a, slot_of):
    e = a.e
    a.c("================ attention ================")
    e(f"s_lshl_b32 s{s_tmp}, s{s_rg}, 10")
    e(f"s_add_u32 s{s_tmp}, s{s_tmp}, {ATQ}")
    e(f"v_add_u32 v{v_t0}, s{s_tmp}, v{v_l16}")
    l = a.newlabel("Lqx")
    e(f"s_cmp_lg_u32 s{s_cgp}, 0")
    e(f"s_cbranch_scc1 {l}")
    e(f"ds_write_b128 v{v_t0}, {vr(BF+4,4)}")
    for i in range(4): e(f"v_mov_b32 v{QFR+i}, v{BF+i}")
    a.label(l)
    l = a.newlabel("Lkvok")
    e(f"s_cmp_lg_u32 s{s_ok}, 0")
    e(f"s_cbranch_scc1 {l}")
    poll(a, v_kf)
    issue_kv(a, "KV", track=False)
    e("s_waitcnt vmcnt(0)")
    a.label(l)
    l = a.newlabel("Lgm")
    e(f"s_cmp_eq_u32 s{s_gw}, 0")
    e(f"s_cbranch_scc1 {l}")
    build_maskd(a)
    a.label(l)
    stamp(a)
    e(f"v_add_u32 v{v_krd}, s{s_krd}, v{v_l16}")
    e(f"v_mov_b32 v{v_t3}, 0xf149f2ca")
    for r in range(16):
        e(f"v_sub_f32 v{MASKF+r}, v{v_t3}, v{MASKD+r}")
    a.wait_vm(["AK", "AV"], lgkm0=True)
    e("s_barrier")
    stamp(a)
    lg = Lg(a)
    l = a.newlabel("Lqr")
    e(f"s_cmp_eq_u32 s{s_cgp}, 0")
    e(f"s_cbranch_scc1 {l}")
    e(f"ds_read_b128 {vr(QFR,4)}, v{v_t0}")
    a.label(l)
    for b in range(8, -1, -1):
        e(f"ds_read_b128 {vr(KFR+4*b,4)}, v{v_krd} offset:{b*2048}"); lg.add(("k", b))
    fill = []
    for pc, sl in zip((4, 5), CFG["post"]):
        slot_of[pc] = sl; fill += w2_ops(a, pc, sl)
    c = 0.25 * math.log2(math.e)
    cbits = struct.unpack("<I", struct.pack("<f", c))[0]
    misc = [f"v_mov_b32 v{VROT+i}, 0x3f803f80" for i in range(16)]
    misc += [f"v_mov_b32 v{v_c2}, 0x{cbits:08x}", f"v_mov_b32 v{v_c2+1}, 0x{cbits:08x}", f"v_add_u32 v{v_vrd}, s{s_vrdb}, v{v_l16}"]
    for b in range(8, -1, -1):
        lg.wait([("k", b)])
        S = Sreg(b)
        mfma(a, S, KFR + 4*b, QFR, S if b in (0, 8) else "0")
        for _ in range(3):
            if misc: e(misc.pop(0))
        if fill and b % 2 == 0: fill.pop(0)()
    while misc: e(misc.pop(0))
    while fill: fill.pop(0)()
    if SIGB == 1:
        a.wait_vm("ST1"); signal_wave(a)
    lmax = a.newlabel("Lmaxd")
    e("s_nop 4")
    for b in range(8, -1, -1):
        S = Sreg(b)
        if b < 8:
            e(f"s_cmp_gt_u32 s{s_first}, {b}")
            e(f"s_cbranch_scc1 {lmax}")
        for q in range(8):
            if b == 8 and q == 0:
                e(f"v_max_f32 v{v_max}, v{S}, v{S+1}")
            else:
                e(f"v_max3_f32 v{v_max}, v{S+2*q}, v{S+2*q+1}, v{v_max}")
    a.label(lmax)
    e(f"v_mov_b32 v{v_max2}, v{v_max}")
    e("s_nop 1")
    e(f"v_permlane32_swap_b32 v{v_max}, v{v_max2}")
    e("s_nop 1")
    e(f"v_max_f32 v{v_max}, v{v_max}, v{v_max2}")
    e(f"v_mul_f32 v{v_mc}, v{v_c2}, v{v_max}")
    e(f"v_sub_f32 v{v_mc}, 0, v{v_mc}")
    e(f"v_mov_b32 v{v_mc+1}, v{v_mc}")
    if SIGB == 2:
        a.wait_vm("ST1"); signal_wave(a)
    def softmax_block(b):
        S = Sreg(b)
        for q in range(8):
            e(f"v_pk_fma_f32 v[{S+2*q}:{S+2*q+1}], v[{S+2*q}:{S+2*q+1}], v[{v_c2}:{v_c2+1}], v[{v_mc}:{v_mc+1}]")
        for r in range(16):
            e(f"v_exp_f32 v{S+r}, v{S+r}")
        for q in range(8):
            e(f"v_cvt_pk_bf16_f32 v{S+q}, v{S+2*q}, v{S+2*q+1}")
    softmax_block(8)
    e("s_barrier")
    stamp(a)
    for pc, sl in ((6, CFG['atk']), (7, CFG['atk']+1)):
        slot_of[pc] = sl; issue_w2_piece(a, pc, sl)
    lg = Lg(a)
    def vread(n):
        b = 8 - n//2; m = n % 2
        e(f"ds_read_b128 {vr(VROT + 4*(n%4), 4)}, v{v_vrd} offset:{b*2048 + m*1024}")
        lg.add(("v", n))
    e(f"s_mov_b64 exec, s[{s_vm}:{s_vm+1}]")
    vread(0); vread(1)
    e("s_mov_b64 exec, -1")
    lpv = a.newlabel("Lpvd")
    e(f"s_mov_b32 s{s_ok}, 0")
    skip_labels = {}
    hl = list(range(22)) + ["g"]
    per = -(-len(hl) // (HB_CHECK + 1))
    def post_block(b, track):
        if b == HB_ISSUE: hflag_issue(a, track)
        if b == HB_CHECK:
            if track: a.wait_vm("FH")
            else: e("s_waitcnt vmcnt(0)")
            cmp_flags4(a, 252)
            e(f"s_cselect_b32 s{s_ok}, 1, 0")
        if b <= HB_CHECK:
            i0 = (HB_CHECK - b) * per
            if hl[i0:i0+per]: guarded_h_loads(a, hl[i0:i0+per], track)
    for b in range(8, -1, -1):
        S = Sreg(b)
        n0 = 2*(8 - b)
        if b < 8:
            skip_labels[b] = a.newlabel("Lskip")
            e(f"s_cmp_gt_u32 s{s_first}, {b}")
            e(f"s_cbranch_scc1 {skip_labels[b]}")
        if b > 0:
            e(f"s_mov_b64 exec, s[{s_vm}:{s_vm+1}]")
            vread(n0 + 2); vread(n0 + 3)
            e("s_mov_b64 exec, -1")
        if b < 8: softmax_block(b)
        lg.wait([("v", n0), ("v", n0+1)])
        e("s_nop 0")
        mfma(a, OACC, VROT + 4*(n0 % 4), S, "0" if b == 8 else OACC)
        mfma(a, OACC, VROT + 4*((n0+1) % 4), S + 4, OACC)
        post_block(b, True)
    e(f"s_branch {lpv}")
    for b in range(7, -1, -1):
        a.label(skip_labels[b])
        post_block(b, False)
    a.label(lpv)
    e("s_waitcnt lgkmcnt(0)")
    e("s_nop 7"); e("s_nop 3")
    e(f"v_rcp_f32 v{v_max}, v{OACC+8}")
    e("s_nop 0")
    for r in range(8):
        e(f"v_mul_f32 v{OACC+r}, v{OACC+r}, v{v_max}")
    for q in range(4):
        e(f"v_cvt_pk_bf16_f32 v{248+q}, v{OACC+2*q}, v{OACC+2*q+1}")
    e(f"buffer_store_dwordx4 v[248:251], v{v_l16}, {srd(sWS)}, s{s_oa} offen sc1")
    l = a.newlabel("Lhok")
    e(f"s_cmp_lg_u32 s{s_ok}, 0")
    e(f"s_cbranch_scc1 {l}")
    hpoll(a)
    h_loads(a, list(range(22)) + ["g"], track=False)
    a.label(l)
    stamp(a)
s_oa = 94

def compute3(a, pieces, slot_of, cnt):
    e = a.e
    work = []
    for pc in pieces:
        for u in range(2):
            if pc <= 10: af = AFreg(2*pc + u); tag = f"H{2*pc+u}"; acc = ACB; first = (pc == 0 and u == 0)
            else: af = AOreg(2*(pc-11) + u); tag = f"O{2*(pc-11)+u}"; acc = ACA; first = (pc == 11 and u == 0)
            for ct in range(2):
                work.append((slot_of[pc], u, ct, af, tag, acc + 16*ct, first))
    lg = Lg(a)
    cur = {}
    def rd(w):
        sl, u, ct, af, tag, acc, first = work[w]
        vb = v_tr3b if ct else v_tr3
        off = sl*SLOT + u*8192
        if off + 1024 > 65535:
            r = v_t5 if ct else v_t4
            if cur.get(ct) != sl:
                e(f"v_add_u32 v{r}, {sl*SLOT}, v{vb}")
                cur[ct] = sl
            vb = r; off = u*8192
        b = BF3 + ((cnt[0] + w) % 8)*4
        e(f"ds_read_b64_tr_b16 {vr(b,2)}, v{vb} offset:{off}")
        e(f"ds_read_b64_tr_b16 {vr(b+2,2)}, v{vb} offset:{off + 1024}")
        lg.add(w); lg.add(w)
    D = 4
    for w in range(min(D, len(work))): rd(w)
    for w in range(len(work)):
        if w + D < len(work): rd(w + D)
        sl, u, ct, af, tag, acc, first = work[w]
        a.wait_vm(tag)
        lg.wait([w])
        b = BF3 + ((cnt[0] + w) % 8)*4
        mfma(a, acc, b, af, "0" if first else acc)
    cnt[0] += len(work)
    lg.drain()

S3J = env('GEN_S3J', 1)
def o_loads(a, track=True):
    for n in range(8):
        a.e(f"s_add_u32 s{s_tmp}, s{s_a3o}, {n*4096}")
        ins = f"buffer_load_dwordx4 {vr(AOreg(n),4)}, v{v_l16}, {srd(sWS)}, s{s_tmp} offen sc1"
        (a.vmem(ins, f"O{n}") if track else a.e(ins))

def o_check(a):
    e = a.e
    regs = [AOreg(n) + i for n in range(8) for i in range(4)]
    e(f"v_max3_u32 v{v_t2}, v{regs[0]}, v{regs[1]}, v{regs[2]}")
    i = 3
    while i < len(regs):
        if i + 1 < len(regs):
            e(f"v_max3_u32 v{v_t2}, v{regs[i]}, v{regs[i+1]}, v{v_t2}"); i += 2
        else:
            e(f"v_max_u32 v{v_t2}, v{regs[i]}, v{v_t2}"); i += 1
    e(f"v_cmp_eq_u32 vcc, -1, v{v_t2}")
    e("s_nop 3")
    e("s_cmp_eq_u64 vcc, 0")

def stage3(a, slot_of):
    e = a.e
    a.c("================ stage 3 ================")
    D = 4
    lg = Lg(a)
    fifo = []
    cur = {}
    V0 = CFG["atv"]
    def assign(pc, sl):
        slot_of[pc] = sl
        for f in w2_ops(a, pc, sl):
            f.tag = f"Q{pc}"; fifo.append(f)
    def o_verify():
        a.wait_vm("O7")
        lp = a.newlabel("Lop"); ld = a.newlabel("Lod")
        e(f"s_mov_b32 s{s_cnt}, 0")
        a.label(lp)
        o_check(a)
        e(f"s_cbranch_scc1 {ld}")
        o_loads(a, track=False)
        e("s_waitcnt vmcnt(0)")
        e(f"s_add_u32 s{s_cnt}, s{s_cnt}, 1")
        e(f"s_cmp_lt_u32 s{s_cnt}, 100000")
        e(f"s_cbranch_scc1 {lp}")
        a.label(ld)
        stamp(a)
    def o_ops():
        ops = []
        for n in range(8):
            def f(n=n):
                a.e(f"s_add_u32 s{s_tmp}, s{s_a3o}, {n*4096}")
                a.vmem(f"buffer_load_dwordx4 {vr(AOreg(n),4)}, v{v_l16}, {srd(sWS)}, s{s_tmp} offen sc1", f"O{n}")
            f.tag = f"O{n}"
            ops.append(f)
        return ops
    syncs = {
        S3J: (["Q4", "Q5", "Q6", "Q7"], lambda: (assign(8, V0), assign(9, V0 + 1))),
        4: ([], lambda: (assign(10, slot_of[0]), assign(11, slot_of[1]), assign(12, slot_of[2]))),
        6: ([], lambda: (assign(13, slot_of[3]), assign(14, slot_of[4]), fifo.extend(o_ops()))),
        8: (["Q8", "Q9"], None),
        10: (["Q10", "Q11", "Q12"], None),
        13: (["Q13", "Q14"], None),
    }
    items = []
    for pc in range(15):
        for u in range(2):
            for ct in range(2):
                items.append((pc, u, ct))
    def rd(w):
        pc, u, ct = items[w]
        if u == 0 and ct == 0 and pc in syncs:
            tags, act = syncs[pc]
            while any(f.tag in tags for f in fifo): fifo.pop(0)()
            a.wait_vm(tags)
            e("s_barrier")
            if STAMPS2: stamp(a)
            if act: act()
        sl = slot_of[pc]
        vb = v_tr3b if ct else v_tr3
        off = sl*SLOT + u*8192
        if off + 1024 > 65535:
            r = v_t5 if ct else v_t4
            if cur.get(ct) != sl:
                e(f"v_add_u32 v{r}, {sl*SLOT}, v{vb}")
                cur[ct] = sl
            vb = r; off = u*8192
        b = BF3 + (w % 8)*4
        e(f"ds_read_b64_tr_b16 {vr(b,2)}, v{vb} offset:{off}")
        e(f"ds_read_b64_tr_b16 {vr(b+2,2)}, v{vb} offset:{off + 1024}")
        lg.add(w); lg.add(w)
    done = set(["Q4", "Q5", "Q6", "Q7"])
    for w in range(D): rd(w)
    for w in range(len(items)):
        if w + D < len(items):
            rd(w + D)
        pc, u, ct = items[w]
        if pc <= 10: af = AFreg(2*pc + u); tag = f"H{2*pc+u}"; acc = ACB; first = (pc == 0 and u == 0)
        else: af = AOreg(2*(pc-11) + u); tag = f"O{2*(pc-11)+u}"; acc = ACA; first = (pc == 11 and u == 0)
        if pc == 11 and u == 0 and ct == 0:
            while fifo: fifo.pop(0)()
            o_verify()
        a.wait_vm(tag)
        lg.wait([w])
        b = BF3 + (w % 8)*4
        mfma(a, acc + 16*ct, b, af, "0" if first else acc + 16*ct)
        if fifo: fifo.pop(0)()
        if pc >= 11:
            k = w - 44
            if k == 0:
                a.wait_vm("G")
                e(f"v_sub_f32 v{v_c2}, 1.0, v{v_g2}")
                e(f"v_cvt_pk_bf16_f32 v{v_c2}, v{v_c2}, v{v_c2}")
                e(f"v_lshlrev_b32 v{v_c2}, 16, v{v_c2}")
                e(f"v_mov_b32 v{v_c2+1}, v{v_c2}")
                e(f"v_mov_b32 v{v_g2+1}, v{v_g2}")
            elif 2 <= k < 10:
                for q in (2*(k-2), 2*(k-2)+1):
                    e(f"v_pk_mul_f32 v[{ACB+2*q}:{ACB+2*q+1}], v[{ACB+2*q}:{ACB+2*q+1}], v[{v_c2}:{v_c2+1}]")
    lg.drain()
    stamp(a)
    PS = [slot_of[p] for p in (5, 6, 7, 8)]
    e(f"s_cmp_eq_u32 s{s_rg}, 1"); e(f"s_movk_i32 s{s_tmp}, {PS[0]}"); e(f"s_cselect_b32 s{s_tmp}, {PS[1]}, s{s_tmp}")
    e(f"s_cmp_eq_u32 s{s_rg}, 2"); e(f"s_cselect_b32 s{s_tmp}, {PS[2]}, s{s_tmp}")
    e(f"s_cmp_eq_u32 s{s_rg}, 3"); e(f"s_cselect_b32 s{s_tmp}, {PS[3]}, s{s_tmp}")
    e(f"s_lshl_b32 s{s_tmp}, s{s_tmp}, 14")
    e(f"s_lshl_b32 s{s_tmp2}, s{s_cgp}, 13")
    e(f"s_add_u32 s{s_tmp}, s{s_tmp}, s{s_tmp2}")
    e(f"v_and_b32 v{v_t0}, 31, v{v_lane}")
    e(f"v_and_b32 v{v_t1}, 7, v{v_lane}")
    e(f"v_xor_b32 v{v_t1}, v{v_t1}, v{v_hi}")
    e(f"v_lshlrev_b32 v{v_t1}, 4, v{v_t1}")
    e(f"v_lshl_add_u32 v{v_t0}, v{v_t0}, 8, v{v_t1}")
    e(f"v_add_u32 v{v_t0}, s{s_tmp}, v{v_t0}")
    e("s_nop 4")
    for ct in range(2):
        for g4 in range(4):
            b0 = 16*ct + 4*g4
            for q in range(2):
                e(f"v_pk_fma_f32 v[{ACB+b0+2*q}:{ACB+b0+2*q+1}], v[{ACA+b0+2*q}:{ACA+b0+2*q+1}], v[{v_g2}:{v_g2+1}], v[{ACB+b0+2*q}:{ACB+b0+2*q+1}]")
            r = v_t2 + (g4 & 1)
            e(f"v_xor_b32 v{r}, {g4*32}, v{v_t0}")
            e(f"ds_write_b128 v{r}, {vr(ACB + b0, 4)} offset:{ct*128}")
    e(f"v_lshrrev_b32 v{v_t0}, 3, v0")
    e(f"v_and_b32 v{v_t1}, 7, v0")
    e(f"v_and_b32 v{v_t2}, 7, v{v_t0}")
    e(f"v_lshlrev_b32 v{v_t3}, 1, v{v_t1}")
    e(f"v_xor_b32 v{v_t2}, v{v_t2}, v{v_t3}")
    e(f"v_lshlrev_b32 v{v_t2}, 4, v{v_t2}")
    e(f"v_lshl_add_u32 v{v_t2}, v{v_t0}, 8, v{v_t2}")
    e(f"v_xor_b32 v{v_t3}, 16, v{v_t2}")
    e(f"v_add_u32 v{v_t4}, 0x10000, v{v_t2}")
    e(f"v_add_u32 v{v_t5}, 0x10000, v{v_t3}")
    e(f"v_add_u32 v{v_trn}, 0x20000, v{v_t2}")
    e(f"v_add_u32 v{v_trw}, 0x20000, v{v_t3}")
    e(f"v_lshlrev_b32 v{v_t0}, 10, v{v_t0}")
    e(f"v_lshl_add_u32 v{v_t0}, v{v_t1}, 4, v{v_t0}")
    e(f"s_lshl_b32 s{s_tmp}, s{s_rb3}, 16")
    e(f"s_lshl_b32 s{s_tmp2}, s{s_cb3}, 7")
    e(f"s_add_u32 s{s_tmp}, s{s_tmp}, s{s_tmp2}")
    e("s_waitcnt lgkmcnt(0)")
    e("s_barrier")
    for kq in range(4):
        off = PS[kq]*SLOT
        ra, rb_ = ((v_t2, v_t3), (v_t4, v_t5), (v_trn, v_trw))[off >> 16]
        e(f"ds_read_b128 {vr(64 + 8*kq, 4)}, v{ra} offset:{off & 0xffff}")
        e(f"ds_read_b128 {vr(68 + 8*kq, 4)}, v{rb_} offset:{off & 0xffff}")
    e("s_waitcnt lgkmcnt(4)")
    for q in range(4):
        e(f"v_pk_add_f32 v[{64+2*q}:{65+2*q}], v[{64+2*q}:{65+2*q}], v[{72+2*q}:{73+2*q}]")
    e("s_waitcnt lgkmcnt(0)")
    for q in range(4):
        e(f"v_pk_add_f32 v[{80+2*q}:{81+2*q}], v[{80+2*q}:{81+2*q}], v[{88+2*q}:{89+2*q}]")
    for q in range(4):
        e(f"v_pk_add_f32 v[{64+2*q}:{65+2*q}], v[{64+2*q}:{65+2*q}], v[{80+2*q}:{81+2*q}]")
    for q in range(4):
        e(f"v_cvt_pk_bf16_f32 v{64+q}, v{64+2*q}, v{65+2*q}")
    e(f"buffer_store_dwordx4 v[64:67], v{v_t0}, {srd(sOUT)}, s{s_tmp} offen {os.environ.get('GEN_OST','sc1').replace('_',' ')}")
    stamp(a, final=True)

def common_setup(a):
    e = a.e
    l = a.newlabel("Lcas")
    e(f"s_or_b32 s{s_nonce}, s{s_nonce}, 1")
    e(f"s_or_b32 s{s_tmp}, s{s_wv}, s2")
    e(f"s_cmp_lg_u32 s{s_tmp}, 0")
    e(f"s_cbranch_scc1 {l}")
    e(f"v_mov_b32 v{v_non}, s{s_nonce}")
    e(f"v_mov_b32 v{v_non+1}, s{s_nonce+1}")
    e(f"v_mov_b32 v{v_t4}, 0")
    e(f"s_mov_b64 s[{s_exec}:{s_exec+1}], exec")
    e("s_mov_b64 exec, 1")
    e(f"buffer_store_dwordx2 {vr(v_non,2)}, v{v_t4}, {srd(sDBG)}, 0 offen sc1")
    e(f"s_mov_b64 exec, s[{s_exec}:{s_exec+1}]")
    a.label(l)
    e(f"s_lshl_b32 s{s_tmp}, s{s_rb}, 2")
    e(f"s_add_u32 s{s_tmp}, s{s_tmp}, s{s_rg}")
    e(f"s_lshl_b32 s{s_oa}, s{s_tmp}, 15")
    e(f"s_lshl_b32 s{s_tmp2}, s{s_cg}, 1")
    e(f"s_add_u32 s{s_tmp2}, s{s_tmp2}, s{s_cgp}")
    e(f"s_lshl_b32 s{s_tmp2}, s{s_tmp2}, 10")
    e(f"s_add_u32 s{s_oa}, s{s_oa}, s{s_tmp2}")
    e(f"s_add_u32 s{s_oa}, s{s_oa}, {OF}")
    for i in range(4): e(f"v_mov_b32 v{ACC+i}, -1")
    a.vmem(f"buffer_store_dwordx4 {vr(ACC,4)}, v{v_l16}, {srd(sWS)}, s{s_oa} offen sc1", "SENT")
    e(f"v_and_b32 v{v_t0}, 31, v{v_lane}")
    e(f"v_lshrrev_b32 v{v_hi}, 5, v{v_lane}")
    e(f"v_and_b32 v{v_t1}, 15, v{v_lane}")
    e(f"v_xor_b32 v{v_t1}, v{v_t1}, v{v_hi}")
    e(f"v_lshlrev_b32 v{v_t1}, 4, v{v_t1}")
    e(f"v_lshl_add_u32 v{v_xrd}, v{v_t0}, 8, v{v_t1}")
    e(f"s_lshl_b32 s{s_tmp}, s{s_rg}, 13")
    e(f"v_add_u32 v{v_xrd}, s{s_tmp}, v{v_xrd}")
    e(f"v_and_b32 v{v_t0}, 15, v{v_lane}")
    e(f"v_lshrrev_b32 v{v_t1}, 2, v{v_t0}")
    e(f"v_bfe_u32 v{v_t2}, v{v_lane}, 4, 1")
    e(f"v_bfe_u32 v{v_t3}, v{v_lane}, 1, 1")
    e(f"v_lshl_add_u32 v{v_t2}, v{v_t2}, 1, v{v_t3}")
    e(f"v_and_b32 v{v_t3}, 1, v{v_lane}")
    e(f"v_lshlrev_b32 v{v_t3}, 3, v{v_t3}")
    e(f"v_lshl_add_u32 v{v_t2}, v{v_t2}, 4, v{v_t3}")
    e(f"v_lshrrev_b32 v{v_t3}, 1, v{v_t1}")
    e(f"v_xor_b32 v{v_t4}, s{s_cgp}, v{v_t3}")
    e(f"v_lshl_add_u32 v{v_t4}, v{v_t4}, 6, v{v_t2}")
    e(f"v_lshl_add_u32 v{v_t5}, v{v_hi}, 3, v{v_t1}")
    e(f"v_lshl_add_u32 v{v_trn}, v{v_t5}, 7, v{v_t4}")
    e(f"s_cmp_eq_u32 s{s_cgp}, 0")
    e(f"s_movk_i32 s{s_tmp}, 192")
    e(f"s_cselect_b32 s{s_tmp}, 64, s{s_tmp}")
    e(f"s_lshl_b32 s{s_k16}, s{s_tmp}, 4")
    e(f"s_lshl_b32 s{s_tmp2}, s{s_cgp}, 12")
    e(f"v_mad_u32_u24 v{v_trw}, v{v_t5}, s{s_tmp}, v{v_t2}")
    e(f"v_add_u32 v{v_trw}, s{s_tmp2}, v{v_trw}")
    e(f"s_lshl_b32 s{s_tmp}, s{s_tmp}, 2")
    e(f"v_add_u32 v{v_omg2}, s{s_tmp}, v{v_trw}")
    e(f"s_movk_i32 s{s_tmp}, 192")
    e(f"v_mad_u32_u24 v{v_trw2}, v{v_t5}, s{s_tmp}, v{v_t2}")
    e(f"s_lshl_b32 s{s_tmp2}, s{s_cgp}, 6")
    e(f"s_add_u32 s{s_tmp2}, s{s_tmp2}, {4096 + 64}")
    e(f"v_add_u32 v{v_trw2}, s{s_tmp2}, v{v_trw2}")
    e(f"v_lshl_add_u32 v{v_t4}, v{v_t3}, 6, v{v_t2}")
    e(f"v_lshl_add_u32 v{v_t5}, v{v_hi}, 2, v{v_t1}")
    e(f"v_lshl_add_u32 v{v_tr3}, v{v_t5}, 7, v{v_t4}")
    e(f"s_lshl_b32 s{s_tmp}, s{s_rg}, 11")
    e(f"v_add_u32 v{v_tr3}, s{s_tmp}, v{v_tr3}")
    e(f"v_xor_b32 v{v_tr3b}, 64, v{v_tr3}")

def wide_setup(a):
    e = a.e
    lq = a.newlabel("Lwq"); lj = a.newlabel("Lwj")
    e(f"s_cmp_lt_u32 s{s_wv}, 2")
    e(f"s_cbranch_scc1 {lq}")
    e(f"s_mov_b32 s{sPW}, s{sW1}"); e(f"s_mov_b32 s{sPW+1}, s{sW1+1}"); e(f"s_mov_b32 s{sPW+2}, {512*1376*2}"); e(f"s_mov_b32 s{sPW+3}, 0x00020000")
    e(f"s_sub_u32 s{s_tmp}, s{s_wv}, 2")
    e(f"s_lshl_b32 s{s_tmp}, s{s_tmp}, 7")
    e(f"s_movk_i32 s{s_tmp3}, 2752")
    e(f"s_movk_i32 s{s_tmp4}, 5462")
    for t in range(2):
        e(f"v_add_u32 v{v_t0}, s{s_tmp}, v{v_lane}")
        if t: e(f"v_add_u32 v{v_t0}, 64, v{v_t0}")
        e(f"v_mul_u32_u24 v{v_t1}, s{s_tmp4}, v{v_t0}")
        e(f"v_lshrrev_b32 v{v_t1}, 16, v{v_t1}")
        e(f"v_mul_u32_u24 v{v_t2}, 12, v{v_t1}")
        e(f"v_sub_u32 v{v_t0}, v{v_t0}, v{v_t2}")
        e(f"v_lshlrev_b32 v{v_t0}, 4, v{v_t0}")
        e(f"v_mad_u32_u24 v{v_wd0+t}, v{v_t1}, s{s_tmp3}, v{v_t0}")
    e(f"s_mul_i32 s{s_wbase}, s{s_cg}, 192")
    e(f"s_cmp_eq_u32 s{s_cg}, 15")
    e(f"s_cselect_b32 s{s_wbase}, {OOB}, s{s_wbase}")
    e(f"s_mov_b32 s{s_pstep}, {64*2752}")
    e(f"s_branch {lj}")
    a.label(lq)
    e(f"s_mov_b32 s{sPW}, s{sWQ}"); e(f"s_mov_b32 s{sPW+1}, s{sWQ+1}"); e(f"s_mov_b32 s{sPW+2}, {512*1536*2}"); e(f"s_mov_b32 s{sPW+3}, 0x00020000")
    e(f"s_lshl_b32 s{s_tmp}, s{s_wv}, 5")
    e(f"s_movk_i32 s{s_tmp3}, 3072")
    e(f"v_lshrrev_b32 v{v_t1}, 2, v{v_lane}")
    e(f"v_add_u32 v{v_t1}, s{s_tmp}, v{v_t1}")
    e(f"v_and_b32 v{v_t0}, 3, v{v_lane}")
    e(f"v_lshlrev_b32 v{v_t0}, 4, v{v_t0}")
    e(f"v_mad_u32_u24 v{v_wd0}, v{v_t1}, s{s_tmp3}, v{v_t0}")
    e(f"v_add_u32 v{v_wd1}, {16*3072}, v{v_wd0}")
    e(f"s_lshl_b32 s{s_wbase}, s{s_cg}, 6")
    e(f"s_mov_b32 s{s_pstep}, {64*3072}")
    a.label(lj)

def gen():
    a = Asm()
    e = a.e
    e("s_cmp_ge_u32 s2, 256")
    e("s_cbranch_scc1 L_exit")
    stamp(a)
    e("s_load_dwordx4 s[8:11], s[0:1], 0")
    e("s_load_dwordx2 s[24:25], s[0:1], 16")
    e("s_load_dwordx4 s[16:19], s[0:1], 32")
    e("s_load_dwordx4 s[36:39], s[0:1], 48")
    e("s_load_dwordx4 s[40:43], s[0:1], 64")
    e(f"s_memrealtime s[{s_nonce}:{s_nonce+1}]")
    e(f"v_and_b32 v{v_lane}, 63, v0")
    e(f"v_lshrrev_b32 v{v_t0}, 6, v0")
    e(f"v_lshlrev_b32 v{v_l16}, 4, v{v_lane}")
    e(f"v_readfirstlane_b32 s{s_wv}, v{v_t0}")
    e(f"s_and_b32 s{s_tmp}, s2, 7")
    e(f"s_lshr_b32 s{s_tmp2}, s2, 3")
    e(f"s_and_b32 s{s_rb}, s{s_tmp}, 1")
    e(f"s_lshl_b32 s{s_rb}, s{s_rb}, 3")
    e(f"s_and_b32 s{s_tmp3}, s{s_tmp2}, 7")
    e(f"s_add_u32 s{s_rb}, s{s_rb}, s{s_tmp3}")
    e(f"s_lshr_b32 s{s_cg}, s{s_tmp}, 1")
    e(f"s_lshl_b32 s{s_cg}, s{s_cg}, 2")
    e(f"s_lshr_b32 s{s_tmp3}, s{s_tmp2}, 3")
    e(f"s_add_u32 s{s_cg}, s{s_cg}, s{s_tmp3}")
    e(f"s_lshr_b32 s{s_p}, s{s_cg}, 1")
    e(f"s_and_b32 s{s_t}, s{s_cg}, 1")
    e(f"s_lshl_b32 s{s_rb3}, s{s_tmp}, 2")
    e(f"s_and_b32 s{s_tmp3}, s{s_tmp2}, 3")
    e(f"s_add_u32 s{s_rb3}, s{s_rb3}, s{s_tmp3}")
    e(f"s_lshr_b32 s{s_cb3}, s{s_tmp2}, 2")
    e(f"s_and_b32 s{s_rg}, s{s_wv}, 3")
    e(f"s_lshr_b32 s{s_cgp}, s{s_wv}, 2")
    e(f"s_lshl_b32 s{s_ldsw}, s{s_wv}, 11")
    e(f"s_lshl_b32 s{s_xlds}, s{s_wv}, 12")
    e(f"s_lshl_b32 s{s_xbase}, s{s_rb}, 17")
    e(f"s_lshl_b32 s{s_tmp3}, s{s_wv}, 14")
    e(f"s_add_u32 s{s_xbase}, s{s_xbase}, s{s_tmp3}")
    if STAMPS:
        e(f"s_lshl_b32 s{s_tsb}, s2, 3")
        e(f"s_add_u32 s{s_tsb}, s{s_tsb}, s{s_wv}")
        e(f"s_lshl_b32 s{s_tsb}, s{s_tsb}, 7")
        e(f"s_add_u32 s{s_tsb}, s{s_tsb}, {TS}")
    e(f"v_lshrrev_b32 v{v_t0}, 4, v{v_lane}")
    e(f"v_and_b32 v{v_t1}, 15, v{v_lane}")
    e(f"v_xor_b32 v{v_t1}, v{v_t1}, v{v_t0}")
    e(f"v_lshlrev_b32 v{v_t0}, 10, v{v_t0}")
    for t in range(4):
        e(f"v_xor_b32 v{v_t2}, {4*t}, v{v_t1}")
        e(f"v_lshl_add_u32 v{v_xo+t}, v{v_t2}, 4, v{v_t0}")
    e(f"v_lshrrev_b32 v{v_t0}, 3, v{v_lane}")
    e(f"v_and_b32 v{v_t1}, 7, v{v_lane}")
    e(f"v_lshrrev_b32 v{v_t2}, 2, v{v_lane}")
    e(f"v_and_b32 v{v_t2}, 4, v{v_t2}")
    e(f"v_xor_b32 v{v_t1}, v{v_t1}, v{v_t2}")
    e(f"v_lshlrev_b32 v{v_t1}, 4, v{v_t1}")
    e(f"s_movk_i32 s{s_tmp3}, 3072")
    e(f"v_mad_u32_u24 v{v_wq_n}, v{v_t0}, s{s_tmp3}, v{v_t1}")
    e(f"v_lshl_add_u32 v{v_w2_n}, v{v_t0}, 10, v{v_t1}")
    e(f"s_mul_i32 s{s_naroff}, s{s_wv}, {16*3072}")
    e(f"s_lshl_b32 s{s_tmp3}, s{s_p}, 7")
    e(f"s_add_u32 s{s_naroff}, s{s_naroff}, s{s_tmp3}")
    e(f"s_lshl_b32 s{s_tmp3}, s{s_t}, 10")
    e(f"s_add_u32 s{s_naroff}, s{s_naroff}, s{s_tmp3}")
    e(f"s_add_u32 s{s_naroff}, s{s_naroff}, 1024")
    e(f"s_lshl_b32 s{s_tmp3}, s{s_p}, 1")
    e(f"s_add_u32 s{s_tmp3}, s{s_tmp3}, s{s_cgp}")
    e(f"s_lshl_b32 s{s_tmp3}, s{s_tmp3}, 6")
    e(f"s_lshl_b32 s{s_tmp4}, s{s_rb}, 2")
    e(f"s_add_u32 s{s_tmp4}, s{s_tmp4}, s{s_rg}")
    e(f"s_add_u32 s{s_tmp3}, s{s_tmp3}, s{s_tmp4}")
    e(f"s_lshl_b32 s{s_st0}, s{s_tmp3}, 11")
    e(f"s_lshl_b32 s{s_tmp3}, s{s_t}, 21")
    e(f"s_add_u32 s{s_st0}, s{s_st0}, s{s_tmp3}")
    e(f"s_add_u32 s{s_st0}, s{s_st0}, {KF}")
    e(f"s_mul_i32 s{s_tmp4}, s{s_tmp4}, {HROW}")
    e(f"s_add_u32 s{s_tmp4}, s{s_tmp4}, {HF}")
    e(f"s_mul_i32 s{s_tmp3}, s{s_cg}, 3")
    e(f"s_lshl_b32 s{s_st1}, s{s_tmp3}, 11")
    e(f"s_add_u32 s{s_st1}, s{s_st1}, s{s_tmp4}")
    e(f"s_cmp_ge_u32 s{s_tmp3}, 43")
    e(f"s_cselect_b32 s{s_st1}, {OOB}, s{s_st1}")
    e(f"s_cmp_eq_u32 s{s_cgp}, 0")
    e(f"s_cselect_b32 s{s_st1}, {OOB}, s{s_st1}")
    e(f"s_add_u32 s{s_tmp3}, s{s_tmp3}, s{s_cgp}")
    e(f"s_add_u32 s{s_tmp3}, s{s_tmp3}, 1")
    e(f"s_lshl_b32 s{s_st2}, s{s_tmp3}, 11")
    e(f"s_add_u32 s{s_st2}, s{s_st2}, s{s_tmp4}")
    e(f"s_cmp_ge_u32 s{s_tmp3}, 43")
    e(f"s_cselect_b32 s{s_st2}, {OOB}, s{s_st2}")
    e(f"s_lshl_b32 s{s_w2off}, s{s_wv}, 14")
    e(f"s_lshl_b32 s{s_tmp3}, s{s_cb3}, 7")
    e(f"s_add_u32 s{s_w2off}, s{s_w2off}, s{s_tmp3}")
    e("s_waitcnt lgkmcnt(0)")
    e("s_mov_b32 s12, s10"); e("s_mov_b32 s13, s11"); e(f"s_mov_b32 s14, {512*1536*2}"); e("s_mov_b32 s15, 0x00020000")
    e(f"s_mov_b32 s10, {2048*512*2}"); e("s_mov_b32 s11, 0x00020000")
    e("s_mov_b32 s32, s38"); e("s_mov_b32 s33, s39"); e(f"s_mov_b32 s34, {2048*512*2}"); e("s_mov_b32 s35, 0x00020000")
    e("s_mov_b32 s38, 1024"); e("s_mov_b32 s39, 0x00020000")
    e(f"s_mov_b32 s{s_ldsww}, 0")
    e(f"s_mov_b32 s{s_gw}, 0")
    lg_ = a.newlabel("Lgs")
    e(f"s_cmp_lg_u32 s{s_cg}, 15")
    e(f"s_cbranch_scc1 {lg_}")
    e(f"s_cmp_lt_u32 s{s_wv}, 2")
    e(f"s_cbranch_scc1 {lg_}")
    e(f"s_mov_b32 s{s_ldsww}, 0x30000")
    e(f"s_cmp_lg_u32 s{s_wv}, 2")
    e(f"s_cbranch_scc1 {lg_}")
    e(f"s_mov_b32 s{s_gw}, 1")
    e(f"v_lshlrev_b32 v{v_t0}, 1, v{v_lane}")
    for j in range(8):
        e(f"buffer_load_ushort v{GREG+j}, v{v_t0}, {srd(sGW)}, 0 offen offset:{j*128}")
    e(f"s_movk_i32 s{s_tmp3}, 192")
    e(f"v_mul_u32_u24 v{v_g2}, s{s_tmp3}, v{v_lane}")
    a.label(lg_)
    e("s_mov_b32 s20, s18"); e("s_mov_b32 s21, s19"); e(f"s_mov_b32 s22, {1376*512*2}"); e("s_mov_b32 s23, 0x00020000")
    e(f"s_mov_b32 s18, {512*1376*2}"); e("s_mov_b32 s19, 0x00020000")
    if TOUCH == 2: touch(a, (sX, sWQ, sW1), 224)
    if TOUCH == 4: touch_l2(a)
    issue_x_quarter(a, 0)
    issue_piece(a, 0, CFG['init'][0])
    if TOUCH == 3: touch(a, (sX, sWQ, sW1), 224)
    if TOUCH == 5: touch_l2(a)
    e(f"s_mov_b32 s26, {512*512*2}"); e("s_mov_b32 s27, 0x00020000")
    e("s_mov_b32 s28, s42"); e("s_mov_b32 s29, s43"); e(f"s_mov_b32 s30, {WS_BYTES}"); e("s_mov_b32 s31, 0x00020000")
    e("s_mov_b32 s42, 256"); e("s_mov_b32 s43, 0x00020000")
    if TOUCH == 7: touch_scalar(a, "xq12o")
    if TOUCH == 8: touch_scalar(a, "xq1")
    stamp(a)
    if env("GEN_ST3",0): stamp(a)
    common_setup(a)
    wide_setup(a)
    if env("GEN_ST3",0): stamp(a)
    kv_flag_setup(a)
    lm_ = a.newlabel("Lmk")
    e(f"s_cmp_lg_u32 s{s_gw}, 0")
    e(f"s_cbranch_scc1 {lm_}")
    build_maskd(a)
    a.label(lm_)
    if env("GEN_ST3",0): stamp(a)
    e("s_barrier")
    issue_x_quarter(a, 1)
    issue_piece(a, 1, CFG['init'][1])
    e(f"s_cmp_lg_u32 s{s_t}, 0")
    e("s_cbranch_scc1 L_s1v")
    w2_slot = run_stage1(a)
    stamp(a)
    attention(a, w2_slot)
    stage3(a, w2_slot)
    a.label("L_exit")
    a.e("s_endpgm")
    return a

def touch(a, srds, T):
    e = a.e
    e(f"s_lshl_b32 s{s_tmp}, s2, 3")
    e(f"s_add_u32 s{s_tmp}, s{s_tmp}, s{s_wv}")
    e(f"s_lshl_b32 s{s_tmp}, s{s_tmp}, 10")
    for i, sr in enumerate(srds):
        a.vmem(f"buffer_load_dwordx4 {vr(T+4*i,4)}, v{v_l16}, {srd(sr)}, s{s_tmp} offen", "TCH")

def touch_l2(a):
    e = a.e
    T = 224
    lx = a.newlabel("Ltx"); lk = a.newlabel("Ltk"); lq = a.newlabel("Ltq"); lj = a.newlabel("Ltj")
    e(f"s_lshr_b32 s{s_tmp}, s2, 3")
    e(f"s_and_b32 s{s_tmp2}, s2, 7")
    e(f"s_lshr_b32 s{s_tmp3}, s{s_tmp2}, 1")
    e(f"s_cmp_lt_u32 s{s_wv}, 4")
    e(f"s_cbranch_scc1 {lx}")
    e(f"s_cmp_eq_u32 s{s_wv}, 4")
    e(f"s_cbranch_scc1 {lk}")
    e(f"s_cmp_eq_u32 s{s_wv}, 5")
    e(f"s_cbranch_scc1 {lq}")
    e(f"s_sub_u32 s{s_tmp4}, s{s_wv}, 6")
    e(f"s_lshl_b32 s{s_tmp4}, s{s_tmp4}, 3")
    e(f"s_lshl_b32 s{s_tmp}, s{s_tmp}, 4")
    e(f"s_add_u32 s{s_tmp}, s{s_tmp}, s{s_tmp4}")
    e(f"s_mul_i32 s{s_tmp}, s{s_tmp}, 2752")
    e(f"s_mul_i32 s{s_tmp3}, s{s_tmp3}, 768")
    e(f"s_add_u32 s{s_tmp}, s{s_tmp}, s{s_tmp3}")
    e(f"v_lshrrev_b32 v{v_t0}, 3, v{v_lane}")
    e(f"s_movk_i32 s{s_tmp4}, 2752")
    e(f"v_mul_u32_u24 v{v_t0}, s{s_tmp4}, v{v_t0}")
    e(f"v_and_b32 v{v_t1}, 7, v{v_lane}")
    e(f"v_min_u32 v{v_t1}, 6, v{v_t1}")
    e(f"v_lshl_add_u32 v{v_t0}, v{v_t1}, 7, v{v_t0}")
    e(f"buffer_load_dword v{T}, v{v_t0}, {srd(sW1)}, s{s_tmp} offen")
    e(f"s_branch {lj}")
    a.label(lx)
    e(f"s_and_b32 s{s_tmp2}, s{s_tmp2}, 1")
    e(f"s_lshl_b32 s{s_tmp2}, s{s_tmp2}, 20")
    e(f"s_lshl_b32 s{s_tmp}, s{s_tmp}, 15")
    e(f"s_add_u32 s{s_tmp}, s{s_tmp}, s{s_tmp2}")
    e(f"s_lshl_b32 s{s_tmp2}, s{s_wv}, 8")
    e(f"s_add_u32 s{s_tmp}, s{s_tmp}, s{s_tmp2}")
    e(f"v_lshrrev_b32 v{v_t0}, 1, v{v_lane}")
    e(f"v_lshlrev_b32 v{v_t0}, 10, v{v_t0}")
    e(f"v_and_b32 v{v_t1}, 1, v{v_lane}")
    e(f"v_lshl_add_u32 v{v_t0}, v{v_t1}, 7, v{v_t0}")
    e(f"buffer_load_dword v{T}, v{v_t0}, {srd(sX)}, s{s_tmp} offen")
    e(f"s_branch {lj}")
    a.label(lk)
    e(f"s_mul_i32 s{s_tmp}, s{s_tmp}, {16*3072}")
    e(f"s_lshl_b32 s{s_tmp3}, s{s_tmp3}, 8")
    e(f"s_add_u32 s{s_tmp}, s{s_tmp}, s{s_tmp3}")
    e(f"s_add_u32 s{s_tmp}, s{s_tmp}, 1024")
    e(f"v_lshrrev_b32 v{v_t0}, 2, v{v_lane}")
    e(f"s_movk_i32 s{s_tmp4}, 3072")
    e(f"v_mul_u32_u24 v{v_t0}, s{s_tmp4}, v{v_t0}")
    e(f"v_and_b32 v{v_t1}, 1, v{v_lane}")
    e(f"v_lshl_add_u32 v{v_t0}, v{v_t1}, 10, v{v_t0}")
    e(f"v_bfe_u32 v{v_t1}, v{v_lane}, 1, 1")
    e(f"v_lshl_add_u32 v{v_t0}, v{v_t1}, 7, v{v_t0}")
    e(f"buffer_load_dword v{T}, v{v_t0}, {srd(sWQ)}, s{s_tmp} offen")
    e(f"s_branch {lj}")
    a.label(lq)
    e(f"s_mul_i32 s{s_tmp}, s{s_tmp}, {16*3072}")
    e(f"s_lshl_b32 s{s_tmp3}, s{s_tmp3}, 8")
    e(f"s_add_u32 s{s_tmp}, s{s_tmp}, s{s_tmp3}")
    e(f"v_bfe_u32 v{v_t0}, v{v_lane}, 1, 4")
    e(f"s_movk_i32 s{s_tmp4}, 3072")
    e(f"v_mul_u32_u24 v{v_t0}, s{s_tmp4}, v{v_t0}")
    e(f"v_and_b32 v{v_t1}, 1, v{v_lane}")
    e(f"v_lshl_add_u32 v{v_t0}, v{v_t1}, 7, v{v_t0}")
    e(f"buffer_load_dword v{T}, v{v_t0}, {srd(sWQ)}, s{s_tmp} offen")
    a.label(lj)
    a.vm.append("TCH")

def touch_l2_s3(a, part, nparts):
    e = a.e
    T = v_xo + 3
    l1 = a.newlabel("Lt3"); lj = a.newlabel("Lt3j")
    n = 64 // nparts
    mask = ((1 << n) - 1) << (n * part)
    e(f"s_lshr_b32 s{s_tmp}, s2, 3")
    e(f"s_lshl_b32 s{s_tmp}, s{s_tmp}, 3")
    e(f"s_add_u32 s{s_tmp}, s{s_tmp}, s{s_wv}")
    e(f"s_mul_i32 s{s_tmp}, s{s_tmp}, {n*128}")
    e(f"s_add_u32 s{s_tmp}, s{s_tmp}, {part * 256 * n * 128 - part*n*128}")
    e(f"v_lshlrev_b32 v{v_t2}, 7, v{v_lane}")
    e(f"s_mov_b32 exec_lo, 0x{mask & 0xffffffff:x}")
    e(f"s_mov_b32 exec_hi, 0x{mask >> 32:x}")
    lim = 1376*1024
    if (part + 1) * 256 * n * 128 <= 0x180000:
        e(f"buffer_load_dword v{T}, v{v_t2}, {srd(sW2)}, s{s_tmp} offen")
    else:
        e(f"s_sub_u32 s{s_tmp}, s{s_tmp}, 0x180000")
        e(f"buffer_load_dword v{T}, v{v_t2}, {srd(sWO)}, s{s_tmp} offen")
    e("s_mov_b64 exec, -1")
    a.vm.append("TCH")

def touch_scalar(a, which):
    e = a.e
    e(f"s_lshl_b32 s{s_tmp}, s2, 3")
    e(f"s_add_u32 s{s_tmp}, s{s_tmp}, s{s_wv}")
    tab = {"x": (sX, 8), "q": (sWQ, 6), "1": (sW1, 6), "2": (sW2, 6), "o": (sWO, 2)}
    for w in which:
        sr, n = tab[w]
        e(f"s_mul_i32 s{s_tmp2}, s{s_tmp}, {n*128}")
        for i in range(n):
            e(f"s_buffer_load_dword s{s_cnt}, {srd(sr)}, s{s_tmp2} offset:{i*128}")

HEADER = open(os.path.join(os.path.dirname(os.path.abspath(__file__)), "..", "cdna_kernels", NAME + ".s.ref")).read().split("; Override launch")[0]

def emit_file(path):
    a = gen()
    s = HEADER
    s += "; @launch grid=(256,1,1) block=(512,1,1) lds=163840\n"
    s += f""".amdgcn_target "amdgcn-amd-amdhsa--gfx950"
.text
.globl {NAME}_kernel
.p2align 8
.type {NAME}_kernel,@function
{NAME}_kernel:
"""
    s += "\n".join(a.lines) + "\n"
    s += f""".section .rodata,"a"
.p2align 6
.amdhsa_kernel {NAME}_kernel
  .amdhsa_next_free_vgpr 256
  .amdhsa_next_free_sgpr {NSGPR}
  .amdhsa_accum_offset 256
  .amdhsa_group_segment_fixed_size 0
  .amdhsa_kernarg_size 80
  .amdhsa_user_sgpr_count 2
  .amdhsa_user_sgpr_kernarg_segment_ptr 1
  .amdhsa_system_sgpr_workgroup_id_x 1
.end_amdhsa_kernel
"""
    open(path, "w").write(s)

if __name__ == "__main__":
    out = sys.argv[1] if len(sys.argv) > 1 else os.path.join(os.path.dirname(os.path.abspath(__file__)), "..", "cdna_kernels", NAME + ".s")
    emit_file(out)
```

```python
import sys, math, os, struct

NAME = "gated_mix__sliding_block__dense_activation_relu__prompt"

KF = 0x200000
VF = 0x400000
OF = 0x600000
HF = 0x800000
GB = 0xE00000
FL = 0xF00000
TS = 0xF80000
WS_BYTES = 0x1000000
HROW = 86 * 1024
OOB = 0x40000000
SLOT = 16384

def env(n, d): return int(os.environ.get(n, d))
STAMPS = env("GEN_STAMPS", 0) >= 1
STAMPS2 = env("GEN_STAMPS", 0) >= 2
TOUCH = env("GEN_TOUCH", 2)
NT = env("GEN_NT", 0)
ROT = env("GEN_ROT", 0)

class Asm:
    def __init__(self):
        self.lines = []; self.vm = []; self.uid = 0; self.nstamp = 0
    def e(self, s): self.lines.append("    " + s)
    def label(self, l): self.lines.append(l + ":")
    def c(self, s): self.lines.append("    ; " + s)
    def newlabel(self, p="L"):
        self.uid += 1
        return f"{p}_{self.uid}"
    def vmem(self, s, tag):
        self.e(s); self.vm.append(tag)
    def wait_vm(self, tags, lgkm0=False):
        if isinstance(tags, str): tags = [tags]
        last = -1
        for i, t in enumerate(self.vm):
            if t in tags: last = i
        x = " lgkmcnt(0)" if lgkm0 else ""
        if last < 0:
            if lgkm0: self.e("s_waitcnt lgkmcnt(0)")
            return
        n = len(self.vm) - 1 - last
        assert n <= 63
        self.e(f"s_waitcnt vmcnt({n}){x}")
        self.vm = self.vm[last + 1:]

class Lg:
    def __init__(self, a): self.a = a; self.q = []
    def add(self, tag): self.q.append(tag)
    def wait(self, tags):
        last = -1
        for i, t in enumerate(self.q):
            if t in tags: last = i
        if last < 0: return
        n = min(len(self.q) - 1 - last, 15)
        self.a.e(f"s_waitcnt lgkmcnt({n})")
        self.q = self.q[len(self.q) - n:] if n else []
    def clear(self): self.q = []
    def drain(self):
        if self.q: self.a.e("s_waitcnt lgkmcnt(0)")
        self.q = []

sX, sWQ, sW1, sW2, sWO, sWS, sOUT, sGW, sDBG, sPW = 8, 12, 16, 20, 24, 28, 32, 36, 40, 88
def srd(b): return f"s[{b}:{b+3}]"
s_wv, s_rb, s_cg, s_p, s_t, s_rg, s_cgp, s_rb3, s_cb3, s_xbase = range(44, 54)
s_tmp, s_tmp2, s_wideoff, s_naroff = 54, 55, 56, 57
s_nonce = 58
s_tmp3, s_tmp4, s_st0, s_st1, s_first, s_w2off, s_xlds, s_cnt = range(60, 68)
s_exec = 68
s_m = 70; s_m2 = 72; s_m3 = 74
s_ldsw, s_a3, s_a3o, s_qb = 76, 77, 78, 79
s_vm = 80
s_ts = 82
s_tsb, s_ok, s_ga, s_pstep = 84, 85, 86, 87
s_st2 = 92
s_ldsww = 95
s_gw = 7
s_wbase = 5
GREG = 48
s_fl = 6
s_kvb = 3
s_krd = 4
s_vrdb = 98
s_flh = 99
s_flc = 100
v_kf = 25
NSGPR = 102

v_lane, v_l16 = 1, 2
v_xo = 3
v_wq_n, v_wd0, v_wd1, v_xrd, v_trn, v_trw, v_tr3, v_w2_n = 7, 8, 9, 10, 11, 12, 13, 14
v_t0, v_t1 = 15, 16
v_hi = 17
v_t2, v_t3 = 18, 19
v_non = 20
v_c2 = 20
v_mc = 22
v_g2 = 24
v_omg2 = 26
v_t4, v_t5 = 28, 29
v_trw2, v_tr3b = 30, 31
MASKF = 32
MASKD = 48
BF = 64
ACC = 96
XF = 128
v_fo = 252; v_fd = 254

def vr(b, n): return f"v[{b}:{b+n-1}]"

ORD = os.environ.get("GEN_ORD", "A")
CFG = {
 "A": dict(order=[0,1,2,3,4,5,6,7,8,9,10,11], xslot={0:0,1:4,2:6,3:0}, init={0:2,1:3}, atk=6, atv=4, usplit=4, lg=4,
      sched={0:[("X",2,0),("P",2,8),("P",3,9)], 1:[("X",3,0),("P",4,2)], 2:[("P",5,4),("P",6,5),("P",7,3)],
             3:[("P",8,6),("P",9,7),("P",10,8)], 4:[("P",11,9)], 5:[("Q",0,0),("Q",1,1)], 6:[("Q",2,2)], 9:[("Q",3,3)]},
      sig0=6, kvi=9, kvc=11, post=(8,9), non=2),
 "C": dict(order=[0,1,4,2,5,3,6,7,8,9,10,11], xslot={0:0,1:3,2:8,3:0}, init={0:2,1:5}, atk=3, atv=0, usplit=6, lg=6,
      sched={0:[("P",4,6),("X",2,0),("P",2,7)], 1:[("P",5,2),("X",3,0)], 2:[("P",3,5),("P",6,3),("P",7,4)],
             3:[("P",8,6)], 4:[("P",9,7),("P",10,8),("P",11,9)], 5:[("Q",0,2)], 7:[("Q",1,5)], 10:[("Q",2,6)], 11:[("Q",3,7)]},
      sig0=8, kvi=10, kvc=11, post=(8,9), non=3),
}[ORD]
XSLOT = CFG["xslot"]
ATK = CFG['atk'] * SLOT
ATQ = ATK + 24576
ATV = CFG['atv'] * SLOT

v_st = 27
def stamp(a, final=False):
    if not STAMPS: return
    i = a.nstamp; a.nstamp += 1
    cur = s_ts + 2*(i & 1) if False else (s_ts if (i & 1) == 0 else 96)
    prev = (s_ts if ((i-1) & 1) == 0 else 96)
    if i > 0:
        a.e(f"v_writelane_b32 v{v_st}, s{prev}, {i-1}")
    a.e(f"{'s_memrealtime' if env('GEN_RT',0) else 's_memtime'} s[{cur}:{cur+1}]")
    if final:
        a.e("s_waitcnt lgkmcnt(0)")
        a.e(f"v_writelane_b32 v{v_st}, s{cur}, {i}")
        a.e(f"v_lshlrev_b32 v{v_t3}, 2, v{v_lane}")
        a.e("s_mov_b32 exec_lo, -1")
        a.e("s_mov_b32 exec_hi, 0")
        a.e(f"buffer_store_dword v{v_st}, v{v_t3}, {srd(sWS)}, s{s_tsb} offen")
        if env("GEN_DBG", 0):
            l = a.newlabel("Ldbg")
            a.e(f"s_cmp_lg_u32 s2, {env('GEN_DBG',0)}")
            a.e(f"s_cbranch_scc1 {l}")
            a.e(f"s_cmp_lg_u32 s{s_wv}, 0")
            a.e(f"s_cbranch_scc1 {l}")
            a.e(f"v_readlane_b32 s{s_tmp}, v{v_st}, 0")
            a.e("s_nop 3")
            a.e(f"v_subrev_u32 v{v_st}, s{s_tmp}, v{v_st}")
            a.e("s_mov_b32 exec_lo, 0x3ffe")
            a.e(f"buffer_store_dword v{v_st}, v{v_t3}, {srd(sDBG)}, 0 offen offset:4")
            a.label(l)

def dma(a, voff, srd_b, soff, lds_sgpr, ldsimm, tag, sc1=False):
    a.e(f"s_add_u32 m0, s{lds_sgpr}, {ldsimm}")
    a.e("s_nop 0")
    nt = " nt" if (not sc1 and ((NT & 1) and tag[0] in "XP" or (NT & 2) and tag[0] == "Q")) else ""
    a.vmem(f"buffer_load_dwordx4 v{voff}, {srd(srd_b)}, {soff} offen{' sc1' if sc1 else ''}{nt} lds", tag)

def x_ops(a, j):
    ops = []
    for t in range(4):
        def f(t=t):
            a.e(f"s_add_u32 s{s_tmp}, s{s_xbase}, {t*4096 + j*256}")
            dma(a, v_xo + t, sX, f"s{s_tmp}", s_xlds, XSLOT[j]*SLOT + t*1024, f"X{j}")
        ops.append(f)
    return ops

def piece_ops(a, i, slot):
    ops = []
    for t in range(2):
        if i < 4:
            def f(t=t):
                a.e(f"s_add_u32 s{s_tmp}, s{s_naroff}, {(128*i + 8*t)*3072}")
                dma(a, v_wq_n, sWQ, f"s{s_tmp}", s_ldsw, slot*SLOT + t*1024, f"P{i}")
        else:
            def f(t=t):
                if t == 0:
                    a.e(f"s_mul_i32 s{s_wideoff}, s{s_pstep}, {i-4}")
                    a.e(f"s_add_u32 s{s_wideoff}, s{s_wideoff}, s{s_wbase}")
                a.e(f"s_add_u32 s{s_tmp}, s{s_ldsw}, {slot*SLOT + t*1024}")
                a.e(f"s_max_u32 m0, s{s_tmp}, s{s_ldsww}")
                a.e("s_nop 0")
                a.vmem(f"buffer_load_dwordx4 v{v_wd0 + t}, {srd(sPW)}, s{s_wideoff} offen{' nt' if NT & 1 else ''} lds", f"P{i}")
                if t == 1:
                    l = a.newlabel("Lgw")
                    a.e(f"s_cmp_eq_u32 s{s_gw}, 0")
                    a.e(f"s_cbranch_scc1 {l}")
                    a.e(f"v_add_u32 v{v_t2}, {slot*SLOT + 4096 + 128}, v{v_g2}")
                    a.e(f"ds_write_b16 v{v_t2}, v{GREG + i - 4}")
                    a.label(l)
        ops.append(f)
    return ops

def w2_ops(a, i, slot):
    ops = []
    for t in range(2):
        def f(t=t):
            srdb, r0 = (sW2, 128*i) if i <= 10 else (sWO, 128*(i-11))
            a.e(f"s_add_u32 s{s_tmp}, s{s_w2off}, {(r0 + 8*t) * 1024}")
            dma(a, v_w2_n, srdb, f"s{s_tmp}", s_ldsw, slot*SLOT + t*1024, f"Q{i}")
        ops.append(f)
    return ops

def issue_x_quarter(a, j):
    for f in x_ops(a, j): f()
def issue_piece(a, i, slot):
    for f in piece_ops(a, i, slot): f()
def issue_w2_piece(a, i, slot):
    for f in w2_ops(a, i, slot): f()

def mfma(a, d, x, y, c):
    cs = c if isinstance(c, str) else vr(c, 16)
    a.e(f"v_mfma_f32_32x32x16_bf16 {vr(d,16)}, {vr(x,4)}, {vr(y,4)}, {cs}")

def pack_tile(a, acc, pk, relu):
    for q in range(8):
        a.e(f"v_cvt_pk_bf16_f32 v{pk+q}, v{acc+2*q}, v{acc+2*q+1}")
    if relu:
        for q in range(8):
            a.e(f"v_pk_max_i16 v{pk+q}, v{pk+q}, 0")

def store_pk(a, pk, soff_sgpr, tag):
    a.vmem(f"buffer_store_dwordx4 {vr(pk,4)}, v{v_l16}, {srd(sWS)}, s{soff_sgpr} offen sc1", tag)
    a.vmem(f"buffer_store_dwordx4 {vr(pk+4,4)}, v{v_l16}, {srd(sWS)}, s{soff_sgpr} offen offset:1024 sc1", tag)

def signal(a, phase):
    l = a.newlabel("Lsig")
    a.e(f"s_cmp_lg_u32 s{s_wv}, 0")
    a.e(f"s_cbranch_scc1 {l}")
    a.e(f"v_mov_b32 v{v_t2}, s{s_nonce}")
    a.e(f"v_mov_b32 v{v_t3}, s{s_nonce+1}")
    a.e(f"v_mov_b32 v{v_t1}, {phase*32768}")
    a.e("s_mov_b64 exec, 1")
    a.e(f"buffer_store_dwordx2 v[{v_t2}:{v_t3}], v{v_t1}, {srd(sWS)}, s{s_fl} offen sc1")
    a.e("s_mov_b64 exec, -1")
    a.label(l)

def signal_wave(a):
    a.e(f"v_mov_b32 v{v_t2}, s{s_nonce}")
    a.e(f"v_mov_b32 v{v_t3}, s{s_nonce+1}")
    a.e(f"v_mov_b32 v{v_t1}, 0")
    a.e("s_mov_b64 exec, 1")
    a.vmem(f"buffer_store_dwordx2 v[{v_t2}:{v_t3}], v{v_t1}, {srd(sWS)}, s{s_flh} offen sc1", "SIGH")
    a.e("s_mov_b64 exec, -1")

def cmp_flags4(a, vd):
    a.e(f"v_xor_b32 v{vd}, s{s_nonce}, v{vd}")
    a.e(f"v_xor_b32 v{vd+1}, s{s_nonce+1}, v{vd+1}")
    a.e(f"v_xor_b32 v{vd+2}, s{s_nonce}, v{vd+2}")
    a.e(f"v_xor_b32 v{vd+3}, s{s_nonce+1}, v{vd+3}")
    a.e(f"v_or3_b32 v{vd}, v{vd}, v{vd+1}, v{vd+2}")
    a.e(f"v_or_b32 v{vd}, v{vd}, v{vd+3}")
    a.e(f"v_cmp_ne_u32 vcc, 0, v{vd}")
    a.e("s_nop 3")
    a.e("s_cmp_eq_u64 vcc, 0")

def hflag_issue(a, track=True):
    ins = f"buffer_load_dwordx4 v[252:255], v{v_l16}, {srd(sWS)}, s{s_flc} offen sc1"
    (a.vmem(ins, "FH") if track else a.e(ins))

def hpoll(a):
    lp = a.newlabel("Lpoll"); ld = a.newlabel("Lpolld")
    a.e(f"s_mov_b32 s{s_cnt}, 0")
    a.label(lp)
    hflag_issue(a, False)
    a.e("s_waitcnt vmcnt(0)")
    cmp_flags4(a, 252)
    a.e(f"s_cbranch_scc1 {ld}")
    a.e("s_sleep 1")
    a.e(f"s_add_u32 s{s_cnt}, s{s_cnt}, 1")
    a.e(f"s_cmp_lt_u32 s{s_cnt}, 100000")
    a.e(f"s_cbranch_scc1 {lp}")
    a.label(ld)

def cmp_flags(a, vd):
    a.e(f"v_cmp_eq_u32 s[{s_m2}:{s_m2+1}], s{s_nonce}, v{vd}")
    a.e(f"v_cmp_eq_u32 s[{s_m3}:{s_m3+1}], s{s_nonce+1}, v{vd+1}")
    a.e("s_nop 3")
    a.e(f"s_and_b64 s[{s_m2}:{s_m2+1}], s[{s_m2}:{s_m2+1}], s[{s_m3}:{s_m3+1}]")
    a.e(f"s_and_b64 s[{s_m2}:{s_m2+1}], s[{s_m2}:{s_m2+1}], s[{s_m}:{s_m+1}]")
    a.e(f"s_cmp_eq_u64 s[{s_m2}:{s_m2+1}], s[{s_m}:{s_m+1}]")

def poll(a, voff):
    lp = a.newlabel("Lpoll"); ld = a.newlabel("Lpolld")
    a.e(f"s_mov_b32 s{s_cnt}, 0")
    a.label(lp)
    a.e(f"buffer_load_dwordx2 v[{v_t2}:{v_t3}], v{voff}, {srd(sWS)}, 0 offen sc1")
    a.e("s_waitcnt vmcnt(0)")
    cmp_flags(a, v_t2)
    a.e(f"s_cbranch_scc1 {ld}")
    a.e("s_sleep 1")
    a.e(f"s_add_u32 s{s_cnt}, s{s_cnt}, 1")
    a.e(f"s_cmp_lt_u32 s{s_cnt}, 100000")
    a.e(f"s_cbranch_scc1 {lp}")
    a.label(ld)

def flag_issue(a, voff, vdst, tag, track=True):
    ins = f"buffer_load_dwordx2 v[{vdst}:{vdst+1}], v{voff}, {srd(sWS)}, 0 offen sc1"
    (a.vmem(ins, tag) if track else a.e(ins))

def flag_check(a, vdst, tag, track=True):
    if track: a.wait_vm(tag)
    else: a.e("s_waitcnt vmcnt(0)")
    cmp_flags(a, vdst)

def get_nonce(a):
    a.wait_vm("NON")
    lp = a.newlabel("Lnp"); ld = a.newlabel("Lnd")
    a.e(f"s_mov_b32 s{s_cnt}, 0")
    a.label(lp)
    a.e(f"v_readfirstlane_b32 s{s_nonce}, v{v_non}")
    a.e(f"v_readfirstlane_b32 s{s_nonce+1}, v{v_non+1}")
    a.e("s_nop 3")
    a.e(f"s_cmp_lg_u32 s{s_nonce}, 0")
    a.e(f"s_cbranch_scc1 {ld}")
    a.e("s_sleep 2")
    a.e(f"v_mov_b32 v{v_t2}, 0")
    a.e(f"buffer_load_dwordx2 v[{v_non}:{v_non+1}], v{v_t2}, {srd(sDBG)}, 0 offen sc1")
    a.e("s_waitcnt vmcnt(0)")
    a.e(f"s_add_u32 s{s_cnt}, s{s_cnt}, 1")
    a.e(f"s_cmp_lt_u32 s{s_cnt}, 100000")
    a.e(f"s_cbranch_scc1 {lp}")
    a.label(ld)

def kv_flag_setup(a):
    e = a.e
    e(f"s_lshl_b32 s{s_tmp}, s{s_rb}, 4")
    e(f"s_add_u32 s{s_fl}, s{s_tmp}, s{s_cg}")
    e(f"s_lshl_b32 s{s_fl}, s{s_fl}, 7")
    e(f"s_add_u32 s{s_fl}, s{s_fl}, {FL}")
    e(f"s_lshl_b32 s{s_tmp2}, s{s_p}, 1")
    e(f"s_add_u32 s{s_tmp}, s{s_tmp}, s{s_tmp2}")
    e(f"v_lshrrev_b32 v{v_kf}, 1, v{v_lane}")
    e(f"v_lshlrev_b32 v{v_kf}, 4, v{v_kf}")
    e(f"v_sub_u32 v{v_kf}, s{s_tmp}, v{v_kf}")
    e(f"v_and_b32 v{v_t0}, 1, v{v_lane}")
    e(f"v_add_u32 v{v_kf}, v{v_kf}, v{v_t0}")
    e(f"v_and_b32 v{v_kf}, 255, v{v_kf}")
    e(f"v_lshlrev_b32 v{v_kf}, 7, v{v_kf}")
    e(f"v_add_u32 v{v_kf}, {FL}, v{v_kf}")
    e(f"s_mov_b32 s{s_m}, 63")
    e(f"s_cmp_eq_u32 s{s_rb}, 1")
    e(f"s_cselect_b32 s{s_m}, 15, s{s_m}")
    e(f"s_cmp_eq_u32 s{s_rb}, 0")
    e(f"s_cselect_b32 s{s_m}, 3, s{s_m}")
    e(f"s_mov_b32 s{s_m+1}, 0")
    e(f"s_lshl_b32 s{s_tmp3}, s{s_cg}, 6")
    e(f"s_lshl_b32 s{s_tmp4}, s{s_rb}, 2")
    e(f"s_add_u32 s{s_tmp3}, s{s_tmp3}, s{s_tmp4}")
    e(f"s_lshl_b32 s{s_tmp3}, s{s_tmp3}, 11")
    e(f"s_mul_i32 s{s_tmp4}, s{s_wv}, 3072")
    e(f"s_add_u32 s{s_kvb}, s{s_tmp3}, s{s_tmp4}")
    e(f"s_lshl_b32 s{s_tmp}, s{s_rg}, 11")
    e(f"s_lshl_b32 s{s_tmp2}, s{s_cgp}, 10")
    e(f"s_add_u32 s{s_tmp2}, s{s_tmp2}, s{s_tmp}")
    e(f"s_add_u32 s{s_krd}, s{s_tmp2}, {ATK}")
    e(f"s_lshl_b32 s{s_tmp2}, s{s_cgp}, 8")
    e(f"s_add_u32 s{s_tmp2}, s{s_tmp2}, s{s_tmp}")
    e(f"s_add_u32 s{s_vrdb}, s{s_tmp2}, {ATV}")
    e(f"s_lshl_b32 s{s_qb}, s{s_rb}, 2")
    e(f"s_add_u32 s{s_qb}, s{s_qb}, s{s_rg}")
    e(f"s_sub_i32 s{s_first}, 8, s{s_qb}")
    e(f"s_max_i32 s{s_first}, s{s_first}, 0")
    e(f"s_mov_b32 s{s_vm}, 0xffff")
    e(f"s_mov_b32 s{s_vm+1}, 0xffff")
    s3_addr_setup(a)
    e(f"s_lshl_b32 s{s_tmp}, s{s_cg}, 3")
    e(f"s_add_u32 s{s_tmp}, s{s_tmp}, s{s_wv}")
    e(f"s_lshl_b32 s{s_tmp}, s{s_tmp}, 3")
    e(f"s_lshl_b32 s{s_flh}, s{s_rb}, 10")
    e(f"s_add_u32 s{s_flh}, s{s_flh}, s{s_tmp}")
    e(f"s_add_u32 s{s_flh}, s{s_flh}, {FL + 32768}")
    e(f"s_lshr_b32 s{s_flc}, s{s_rb3}, 1")
    e(f"s_lshl_b32 s{s_flc}, s{s_flc}, 10")
    e(f"s_add_u32 s{s_flc}, s{s_flc}, {FL + 32768}")

def kv_ops(a, guard=True):
    ops = []
    for reg, lds, tag in ((KF, ATK, "AK"), (VF, ATV, "AV")):
        for i in range(3):
            def f(reg=reg, lds=lds, tag=tag, i=i):
                l = None
                if guard:
                    l = a.newlabel("Lkvg")
                    a.e(f"s_cmp_eq_u32 s{s_ok}, 0")
                    a.e(f"s_cbranch_scc1 {l}")
                a.e(f"s_mul_i32 s{s_tmp4}, s{s_wv}, 3072")
                a.e(f"s_add_u32 s{s_tmp}, s{s_kvb}, {reg - 16384 + i*1024}")
                dma(a, v_l16, sWS, f"s{s_tmp}", s_tmp4, lds + i*1024, tag, sc1=True)
                if l: a.label(l)
            ops.append(f)
    return ops

def issue_kv(a, which, track=True):
    sv = list(a.vm)
    for f in kv_ops(a, guard=False): f()
    if not track: a.vm = sv

def s1_items(pieces, slot_of):
    items = []
    for i in pieces:
        sl = slot_of[i]
        if i < 4:
            for s in range(8):
                items.append(dict(pc=i, ks=8*i + s, tl=0, vb=v_trn, off=s*2048, sec=512, sl=sl, xs=s))
        else:
            j = i - 4
            for s in range(4):
                for tl in range(2):
                    items.append(dict(pc=i, ks=4*j + s, tl=tl, vb=(v_trw2 if tl else v_trw), off=None, s=s, sl=sl, xs=None))
    return items

def stage1(a, isv):
    raise NotImplementedError

ORDER = CFG['order']
T3U = env('GEN_T3U', 99)
FLUSH = 1
USPLIT = CFG['usplit']

class S1:
    D = env('GEN_D', 5)
    def __init__(self, a):
        self.a = a; self.lg = Lg(a); self.n = 0
        self.fifo = []
        self.slot_of = dict(CFG["init"])
        self.w2_slot = {}
        self.base = {}
        self.sched = CFG["sched"]
    def sync(self, u, extra_need=(), hook=None):
        a = self.a
        i = ORDER[u]
        need = [f"P{i}"] + ([f"X{i}"] if i < 4 else []) + list(extra_need)
        if FLUSH: self.pump(len(self.fifo))
        if u <= CFG['lg']:
            a.wait_vm(need, lgkm0=True)
            self.lg.clear()
        else:
            a.wait_vm(need)
        a.e("s_barrier")
        if STAMPS2: stamp(a)
        if hook: hook()
        for kind, pc, sl in self.sched.get(u, []):
            if kind == "P": self.slot_of[pc] = sl; self.fifo += piece_ops(a, pc, sl)
            elif kind == "X": self.fifo += x_ops(a, pc)
            else: self.w2_slot[pc] = sl; self.fifo += w2_ops(a, pc, sl)
        self.base = {}
    def pump(self, n=1):
        for _ in range(n):
            if self.fifo: self.fifo.pop(0)()
    def read(self, it):
        a = self.a
        b = BF + (it["n"] % 8) * 4
        sl = it["sl"]
        if it["xs"] is not None:
            s = it["xs"]; xq = it["pc"]
            r = v_t0 + (s & 1)
            a.e(f"v_xor_b32 v{r}, {s*32}, v{v_xrd}")
            off = XSLOT[xq]*SLOT
            if off > 65535:
                a.e(f"v_add_u32 v{r}, {off}, v{r}"); off = 0
            a.e(f"ds_read_b128 {vr(XF + it['ks']*4, 4)}, v{r} offset:{off}")
            self.lg.add(("x", it["ks"]))
        vb = it["vb"]
        if it["pc"] < 4:
            off, sec = it["off"], it["sec"]
            o = sl*SLOT + off
            if o + sec > 65535:
                if vb not in self.base:
                    a.e(f"v_add_u32 v{v_t4}, {sl*SLOT}, v{vb}"); self.base[vb] = v_t4
                vb = self.base[vb]; o = off
            a.e(f"ds_read_b64_tr_b16 {vr(b,2)}, v{vb} offset:{o}")
            a.e(f"ds_read_b64_tr_b16 {vr(b+2,2)}, v{vb} offset:{o + sec}")
        else:
            s = it["s"]; tl = it["tl"]
            if tl == 1:
                o = sl*SLOT + s*16*192; sec = 4*192
                if o + sec > 65535 - 16384:
                    if vb not in self.base:
                        a.e(f"v_add_u32 v{v_t5}, {sl*SLOT}, v{vb}"); self.base[vb] = v_t5
                    vb = self.base[vb]; o = s*16*192
                a.e(f"ds_read_b64_tr_b16 {vr(b,2)}, v{vb} offset:{o}")
                a.e(f"ds_read_b64_tr_b16 {vr(b+2,2)}, v{vb} offset:{o + sec}")
            else:
                if s == 0:
                    a.e(f"v_add_u32 v{v_t4}, {sl*SLOT}, v{v_trw}")
                    a.e(f"v_add_u32 v{v_t0}, {sl*SLOT}, v{v_omg2}")
                else:
                    a.e(f"v_add_u32 v{v_t4}, s{s_k16}, v{v_t4}")
                    a.e(f"v_add_u32 v{v_t0}, s{s_k16}, v{v_t0}")
                a.e(f"ds_read_b64_tr_b16 {vr(b,2)}, v{v_t4}")
                a.e(f"ds_read_b64_tr_b16 {vr(b+2,2)}, v{v_t0}")
        self.lg.add(("b", it["n"])); self.lg.add(("b", it["n"]))
    def mm(self, it, isv):
        a = self.a
        self.lg.wait([("b", it["n"]), ("x", it["ks"])])
        b = BF + (it["n"] % 8) * 4
        if it["pc"] < 4:
            acc = ACC2
            cin = "0" if it["ks"] == 0 else acc
            if isv: mfma(a, acc, XF + it["ks"]*4, b, cin)
            else: mfma(a, acc, b, XF + it["ks"]*4, cin)
        else:
            acc = ACC + 16*it["tl"]
            cin = "0" if it["ks"] == 0 else acc
            mfma(a, acc, b, XF + it["ks"]*4, cin)

ACC2 = MASKF
s_k16 = 93

def build_maskd(a):
    e = a.e
    e(f"v_and_b32 v{v_t2}, 31, v{v_lane}")
    e(f"v_lshlrev_b32 v{v_t3}, 2, v{v_hi}")
    e(f"v_sub_u32 v{v_t2}, v{v_t2}, v{v_t3}")
    e(f"v_mov_b32 v{v_t3}, 0xf149f2ca")
    for r in range(16):
        cr = (r & 3) + 8 * (r >> 2)
        e(f"v_cmp_gt_i32 vcc, {cr}, v{v_t2}")
        e("s_nop 1")
        e(f"v_cndmask_b32 v{MASKD+r}, 0, v{v_t3}, vcc")

PRE = env("GEN_PRE", 2)
def run_stage1(a):
    e = a.e
    a.c("================ stage 1 ================")
    D = S1.D
    base_lines = a.lines
    outs = []
    ns0 = a.nstamp; vm0 = list(a.vm)
    state = {}
    def hook(u, st):
        if u == 1 and TOUCH >= 2 and TOUCH not in (7, 9): touch(a, (sW2, sWO), 240)
        if T3U <= u < T3U + 4: st.fifo.append(lambda u=u: touch_l2_s3(a, u - T3U, 4))
        if u == CFG['non']:
            a.e(f"v_mov_b32 v{v_t2}, 0")
            a.vmem(f"buffer_load_dwordx2 v[{v_non}:{v_non+1}], v{v_t2}, {srd(sDBG)}, 0 offen sc1", "NON")
        if u == SIG0:
            get_nonce(a); signal(a, 0)
        if u == CFG["kvi"]:
            flag_issue(a, v_kf, v_non + 2, "FKV")
        if u == CFG["kvc"]:
            flag_check(a, v_non + 2, "FKV")
            a.e(f"s_cselect_b32 s{s_ok}, 1, 0")
            st.fifo = kv_ops(a) + st.fifo
    def do_mm(st, pend, isv):
        it = pend.pop(0)
        st.mm(it, isv)
        if it["pc"] == 3 and it["ks"] == 31: state["kvdone"] = 0
        elif "kvdone" in state:
            state["kvdone"] += 1
            if state["kvdone"] == 2:
                a.e("s_nop 7")
                pack_tile(a, ACC2, ACC2, False)
                store_pk(a, ACC2, s_st0, "ST0")
        st.pump(1)
    def unit(st, u, pend, n, isv, q0=0, q1=8, items=None):
        pc = ORDER[u]
        if items is None:
            if u <= CFG["lg"]:
                for _ in range(min(PRE, len(pend))): do_mm(st, pend, isv)
            st.sync(u, ["ST0"] if u == SIG0 else [], lambda: hook(u, st))
            items = s1_items([pc], st.slot_of)
            for it in items: it["n"] = n; n += 1
        for q in range(q0, q1):
            st.read(items[q]); pend.append(items[q])
            if len(pend) > D: do_mm(st, pend, isv)
            elif q % 2 == 1 and len(pend) > 2 and u > 0 and pend[0]["pc"] != pc: do_mm(st, pend, isv)
        return n, items
    for isv in (0, 1):
        a.lines = []; a.vm = list(vm0); a.nstamp = ns0; state.clear()
        st = S1(a)
        if isv: a.label("L_s1v")
        pend = []; n = 0
        for u in range(0, USPLIT):
            n, _ = unit(st, u, pend, n, isv)
        n, items = unit(st, USPLIT, pend, n, isv, 0, 0)
        q = 0
        while any(it["pc"] < 4 for it in pend):
            unit(st, USPLIT, pend, n, isv, q, q + 1, items); q += 1
            if q >= 8:
                while any(it["pc"] < 4 for it in pend): do_mm(st, pend, isv)
        st.pump(len(st.fifo))
        if not isv: a.e("s_branch L_s1w")
        outs.append((a.lines, list(a.vm), st, pend, n, items, q, dict(state)))
    assert outs[0][1] == outs[1][1]
    a.lines = base_lines + outs[0][0] + outs[1][0]
    _, vm, st, pend, n, items_s, q0, stt = outs[1]
    a.vm = vm
    a.label("L_s1w")
    unit(st, USPLIT, pend, n, 0, q0, 8, items_s)
    for u in range(USPLIT + 1, 12):
        n, _ = unit(st, u, pend, n, 0)
    while pend: do_mm(st, pend, 0)
    st.pump(len(st.fifo))
    e("s_nop 7"); e("s_nop 3")
    gate(a)
    pack_tile(a, ACC + 16, BF + 8, True)
    store_pk(a, BF + 8, s_st2, "ST1")
    pack_tile(a, ACC, BF, False)
    l = a.newlabel("Lq"); l2 = a.newlabel("Lqd")
    e(f"s_cmp_eq_u32 s{s_cgp}, 0")
    e(f"s_cbranch_scc1 {l}")
    for q in range(8): e(f"v_pk_max_i16 v{BF+q}, v{BF+q}, 0")
    a.label(l)
    store_pk(a, BF, s_st1, "ST1")
    return st.w2_slot

SIG0 = CFG['sig0']

def gate(a):
    e = a.e
    l = a.newlabel("Lgate")
    e(f"s_cmp_lg_u32 s{s_cg}, 15")
    e(f"s_cbranch_scc1 {l}")
    e(f"s_cmp_lg_u32 s{s_cgp}, 1")
    e(f"s_cbranch_scc1 {l}")
    e(f"v_cvt_pk_bf16_f32 v{v_t1}, v{ACC+16}, v{ACC+16}")
    e(f"v_lshlrev_b32 v{v_t1}, 16, v{v_t1}")
    e(f"v_mul_f32 v{v_t1}, 0xbfb8aa3b, v{v_t1}")
    e(f"v_exp_f32 v{v_t1}, v{v_t1}")
    e("s_nop 0")
    e(f"v_add_f32 v{v_t1}, 1.0, v{v_t1}")
    e(f"v_rcp_f32 v{v_t1}, v{v_t1}")
    e("s_nop 0")
    e(f"v_cvt_pk_bf16_f32 v{v_t1}, v{v_t1}, v{v_t1}")
    e(f"v_lshlrev_b32 v{v_t1}, 16, v{v_t1}")
    e(f"v_lshlrev_b32 v{v_t0}, 2, v{v_lane}")
    e(f"s_lshl_b32 s{s_tmp}, s{s_rb}, 2")
    e(f"s_add_u32 s{s_tmp}, s{s_tmp}, s{s_rg}")
    e(f"s_lshl_b32 s{s_tmp}, s{s_tmp}, 7")
    e(f"s_add_u32 s{s_tmp}, s{s_tmp}, {GB}")
    e(f"s_mov_b64 s[{s_exec}:{s_exec+1}], exec")
    e("s_mov_b32 exec_lo, -1")
    e("s_mov_b32 exec_hi, 0")
    e(f"buffer_store_dword v{v_t1}, v{v_t0}, {srd(sWS)}, s{s_tmp} offen sc1")
    e(f"s_mov_b64 exec, s[{s_exec}:{s_exec+1}]")
    a.label(l)

def Sreg(b):
    if b == 0: return MASKF
    if b == 8: return MASKD
    return 64 + 16*(b-1)
KFR = 176; QFR = 212; VROT = 216; OACC = 232
v_max = 248; v_max2 = 249; v_vrd = 250; v_krd = 251

def AFreg(n):
    if n < 10: return 176 + 4*n
    if n < 14: return 48 + 4*(n-10)
    if n < 18: return 160 + 4*(n-14)
    return 144 + 4*(n-18)
def AOreg(n):
    return 128 + 4*n if n < 4 else 32 + 4*(n-4)
BF3 = 64; ACB = 96; ACA = 216

def s3_addr_setup(a):
    e = a.e
    e(f"s_lshl_b32 s{s_tmp3}, s{s_rb3}, 1")
    e(f"s_add_u32 s{s_tmp3}, s{s_tmp3}, s{s_cgp}")
    e(f"s_mul_i32 s{s_a3}, s{s_tmp3}, {HROW}")
    e(f"s_lshl_b32 s{s_tmp}, s{s_rg}, 10")
    e(f"s_add_u32 s{s_a3}, s{s_a3}, s{s_tmp}")
    e(f"s_add_u32 s{s_a3}, s{s_a3}, {HF}")
    e(f"s_lshl_b32 s{s_a3o}, s{s_tmp3}, 15")
    e(f"s_add_u32 s{s_a3o}, s{s_a3o}, s{s_tmp}")
    e(f"s_add_u32 s{s_a3o}, s{s_a3o}, {OF}")
    e(f"s_lshl_b32 s{s_ga}, s{s_tmp3}, 7")
    e(f"s_add_u32 s{s_ga}, s{s_ga}, {GB}")

def h_loads(a, ns, track=True):
    e = a.e
    for n in ns:
        if n == "g":
            e(f"v_and_b32 v{v_t0}, 31, v{v_lane}")
            e(f"v_lshlrev_b32 v{v_t0}, 2, v{v_t0}")
            ins = f"buffer_load_dword v{v_g2}, v{v_t0}, {srd(sWS)}, s{s_ga} offen sc1"
            (a.vmem(ins, "G") if track else e(ins))
            continue
        e(f"s_add_u32 s{s_tmp}, s{s_a3}, {n*4096}")
        if n == 21:
            e(f"s_cmp_ge_u32 s{s_rg}, 2")
            e(f"s_cselect_b32 s{s_tmp}, {OOB}, s{s_tmp}")
        ins = f"buffer_load_dwordx4 {vr(AFreg(n),4)}, v{v_l16}, {srd(sWS)}, s{s_tmp} offen sc1"
        (a.vmem(ins, f"H{n}") if track else e(ins))

def guarded_h_loads(a, ns, track=True):
    l = a.newlabel("Lhl")
    a.e(f"s_cmp_eq_u32 s{s_ok}, 0")
    a.e(f"s_cbranch_scc1 {l}")
    h_loads(a, ns, track)
    a.label(l)

def flags16(a, phase, vdst):
    e = a.e
    e(f"s_lshr_b32 s{s_tmp}, s{s_rb3}, 1")
    e(f"s_lshl_b32 s{s_tmp}, s{s_tmp}, 11")
    e(f"s_add_u32 s{s_tmp}, s{s_tmp}, {FL + phase*32768}")
    e(f"v_and_b32 v{vdst}, 15, v{v_lane}")
    e(f"v_lshlrev_b32 v{vdst}, 7, v{vdst}")
    e(f"v_add_u32 v{vdst}, s{s_tmp}, v{vdst}")
    e(f"s_mov_b32 s{s_m}, 0xffff")
    e(f"s_mov_b32 s{s_m+1}, 0")

SIGB = env('GEN_SIGB', 1)
HB_ISSUE, HB_CHECK = env("GEN_HBI", 5), env("GEN_HBC", 3)

def attention(a, slot_of):
    e = a.e
    a.c("================ attention ================")
    e(f"s_lshl_b32 s{s_tmp}, s{s_rg}, 10")
    e(f"s_add_u32 s{s_tmp}, s{s_tmp}, {ATQ}")
    e(f"v_add_u32 v{v_t0}, s{s_tmp}, v{v_l16}")
    l = a.newlabel("Lqx")
    e(f"s_cmp_lg_u32 s{s_cgp}, 0")
    e(f"s_cbranch_scc1 {l}")
    e(f"ds_write_b128 v{v_t0}, {vr(BF+4,4)}")
    for i in range(4): e(f"v_mov_b32 v{QFR+i}, v{BF+i}")
    a.label(l)
    l = a.newlabel("Lkvok")
    e(f"s_cmp_lg_u32 s{s_ok}, 0")
    e(f"s_cbranch_scc1 {l}")
    poll(a, v_kf)
    issue_kv(a, "KV", track=False)
    e("s_waitcnt vmcnt(0)")
    a.label(l)
    l = a.newlabel("Lgm")
    e(f"s_cmp_eq_u32 s{s_gw}, 0")
    e(f"s_cbranch_scc1 {l}")
    build_maskd(a)
    a.label(l)
    stamp(a)
    e(f"v_add_u32 v{v_krd}, s{s_krd}, v{v_l16}")
    e(f"v_mov_b32 v{v_t3}, 0xf149f2ca")
    for r in range(16):
        e(f"v_sub_f32 v{MASKF+r}, v{v_t3}, v{MASKD+r}")
    a.wait_vm(["AK", "AV"], lgkm0=True)
    e("s_barrier")
    stamp(a)
    lg = Lg(a)
    l = a.newlabel("Lqr")
    e(f"s_cmp_eq_u32 s{s_cgp}, 0")
    e(f"s_cbranch_scc1 {l}")
    e(f"ds_read_b128 {vr(QFR,4)}, v{v_t0}")
    a.label(l)
    for b in range(8, -1, -1):
        e(f"ds_read_b128 {vr(KFR+4*b,4)}, v{v_krd} offset:{b*2048}"); lg.add(("k", b))
    fill = []
    for pc, sl in zip((4, 5), CFG["post"]):
        slot_of[pc] = sl; fill += w2_ops(a, pc, sl)
    c = 0.25 * math.log2(math.e)
    cbits = struct.unpack("<I", struct.pack("<f", c))[0]
    misc = [f"v_mov_b32 v{VROT+i}, 0x3f803f80" for i in range(16)]
    misc += [f"v_mov_b32 v{v_c2}, 0x{cbits:08x}", f"v_mov_b32 v{v_c2+1}, 0x{cbits:08x}", f"v_add_u32 v{v_vrd}, s{s_vrdb}, v{v_l16}"]
    for b in range(8, -1, -1):
        lg.wait([("k", b)])
        S = Sreg(b)
        mfma(a, S, KFR + 4*b, QFR, S if b in (0, 8) else "0")
        for _ in range(3):
            if misc: e(misc.pop(0))
        if fill and b % 2 == 0: fill.pop(0)()
    while misc: e(misc.pop(0))
    while fill: fill.pop(0)()
    if SIGB == 1:
        a.wait_vm("ST1"); signal_wave(a)
    lmax = a.newlabel("Lmaxd")
    e("s_nop 4")
    for b in range(8, -1, -1):
        S = Sreg(b)
        if b < 8:
            e(f"s_cmp_gt_u32 s{s_first}, {b}")
            e(f"s_cbranch_scc1 {lmax}")
        for q in range(8):
            if b == 8 and q == 0:
                e(f"v_max_f32 v{v_max}, v{S}, v{S+1}")
            else:
                e(f"v_max3_f32 v{v_max}, v{S+2*q}, v{S+2*q+1}, v{v_max}")
    a.label(lmax)
    e(f"v_mov_b32 v{v_max2}, v{v_max}")
    e("s_nop 1")
    e(f"v_permlane32_swap_b32 v{v_max}, v{v_max2}")
    e("s_nop 1")
    e(f"v_max_f32 v{v_max}, v{v_max}, v{v_max2}")
    e(f"v_mul_f32 v{v_mc}, v{v_c2}, v{v_max}")
    e(f"v_sub_f32 v{v_mc}, 0, v{v_mc}")
    e(f"v_mov_b32 v{v_mc+1}, v{v_mc}")
    if SIGB == 2:
        a.wait_vm("ST1"); signal_wave(a)
    def softmax_block(b):
        S = Sreg(b)
        for q in range(8):
            e(f"v_pk_fma_f32 v[{S+2*q}:{S+2*q+1}], v[{S+2*q}:{S+2*q+1}], v[{v_c2}:{v_c2+1}], v[{v_mc}:{v_mc+1}]")
        for r in range(16):
            e(f"v_exp_f32 v{S+r}, v{S+r}")
        for q in range(8):
            e(f"v_cvt_pk_bf16_f32 v{S+q}, v{S+2*q}, v{S+2*q+1}")
    softmax_block(8)
    e("s_barrier")
    stamp(a)
    for pc, sl in ((6, CFG['atk']), (7, CFG['atk']+1)):
        slot_of[pc] = sl; issue_w2_piece(a, pc, sl)
    lg = Lg(a)
    def vread(n):
        b = 8 - n//2; m = n % 2
        e(f"ds_read_b128 {vr(VROT + 4*(n%4), 4)}, v{v_vrd} offset:{b*2048 + m*1024}")
        lg.add(("v", n))
    e(f"s_mov_b64 exec, s[{s_vm}:{s_vm+1}]")
    vread(0); vread(1)
    e("s_mov_b64 exec, -1")
    lpv = a.newlabel("Lpvd")
    e(f"s_mov_b32 s{s_ok}, 0")
    skip_labels = {}
    hl = list(range(22)) + ["g"]
    per = -(-len(hl) // (HB_CHECK + 1))
    def post_block(b, track):
        if b == HB_ISSUE: hflag_issue(a, track)
        if b == HB_CHECK:
            if track: a.wait_vm("FH")
            else: e("s_waitcnt vmcnt(0)")
            cmp_flags4(a, 252)
            e(f"s_cselect_b32 s{s_ok}, 1, 0")
        if b <= HB_CHECK:
            i0 = (HB_CHECK - b) * per
            if hl[i0:i0+per]: guarded_h_loads(a, hl[i0:i0+per], track)
    for b in range(8, -1, -1):
        S = Sreg(b)
        n0 = 2*(8 - b)
        if b < 8:
            skip_labels[b] = a.newlabel("Lskip")
            e(f"s_cmp_gt_u32 s{s_first}, {b}")
            e(f"s_cbranch_scc1 {skip_labels[b]}")
        if b > 0:
            e(f"s_mov_b64 exec, s[{s_vm}:{s_vm+1}]")
            vread(n0 + 2); vread(n0 + 3)
            e("s_mov_b64 exec, -1")
        if b < 8: softmax_block(b)
        lg.wait([("v", n0), ("v", n0+1)])
        e("s_nop 0")
        mfma(a, OACC, VROT + 4*(n0 % 4), S, "0" if b == 8 else OACC)
        mfma(a, OACC, VROT + 4*((n0+1) % 4), S + 4, OACC)
        post_block(b, True)
    e(f"s_branch {lpv}")
    for b in range(7, -1, -1):
        a.label(skip_labels[b])
        post_block(b, False)
    a.label(lpv)
    e("s_waitcnt lgkmcnt(0)")
    e("s_nop 7"); e("s_nop 3")
    e(f"v_rcp_f32 v{v_max}, v{OACC+8}")
    e("s_nop 0")
    for r in range(8):
        e(f"v_mul_f32 v{OACC+r}, v{OACC+r}, v{v_max}")
    for q in range(4):
        e(f"v_cvt_pk_bf16_f32 v{248+q}, v{OACC+2*q}, v{OACC+2*q+1}")
    e(f"buffer_store_dwordx4 v[248:251], v{v_l16}, {srd(sWS)}, s{s_oa} offen sc1")
    l = a.newlabel("Lhok")
    e(f"s_cmp_lg_u32 s{s_ok}, 0")
    e(f"s_cbranch_scc1 {l}")
    hpoll(a)
    h_loads(a, list(range(22)) + ["g"], track=False)
    a.label(l)
    stamp(a)
s_oa = 94

def compute3(a, pieces, slot_of, cnt):
    e = a.e
    work = []
    for pc in pieces:
        for u in range(2):
            if pc <= 10: af = AFreg(2*pc + u); tag = f"H{2*pc+u}"; acc = ACB; first = (pc == 0 and u == 0)
            else: af = AOreg(2*(pc-11) + u); tag = f"O{2*(pc-11)+u}"; acc = ACA; first = (pc == 11 and u == 0)
            for ct in range(2):
                work.append((slot_of[pc], u, ct, af, tag, acc + 16*ct, first))
    lg = Lg(a)
    cur = {}
    def rd(w):
        sl, u, ct, af, tag, acc, first = work[w]
        vb = v_tr3b if ct else v_tr3
        off = sl*SLOT + u*8192
        if off + 1024 > 65535:
            r = v_t5 if ct else v_t4
            if cur.get(ct) != sl:
                e(f"v_add_u32 v{r}, {sl*SLOT}, v{vb}")
                cur[ct] = sl
            vb = r; off = u*8192
        b = BF3 + ((cnt[0] + w) % 8)*4
        e(f"ds_read_b64_tr_b16 {vr(b,2)}, v{vb} offset:{off}")
        e(f"ds_read_b64_tr_b16 {vr(b+2,2)}, v{vb} offset:{off + 1024}")
        lg.add(w); lg.add(w)
    D = 4
    for w in range(min(D, len(work))): rd(w)
    for w in range(len(work)):
        if w + D < len(work): rd(w + D)
        sl, u, ct, af, tag, acc, first = work[w]
        a.wait_vm(tag)
        lg.wait([w])
        b = BF3 + ((cnt[0] + w) % 8)*4
        mfma(a, acc, b, af, "0" if first else acc)
    cnt[0] += len(work)
    lg.drain()

S3J = env('GEN_S3J', 1)
def o_loads(a, track=True):
    for n in range(8):
        a.e(f"s_add_u32 s{s_tmp}, s{s_a3o}, {n*4096}")
        ins = f"buffer_load_dwordx4 {vr(AOreg(n),4)}, v{v_l16}, {srd(sWS)}, s{s_tmp} offen sc1"
        (a.vmem(ins, f"O{n}") if track else a.e(ins))

def o_check(a):
    e = a.e
    regs = [AOreg(n) + i for n in range(8) for i in range(4)]
    e(f"v_max3_u32 v{v_t2}, v{regs[0]}, v{regs[1]}, v{regs[2]}")
    i = 3
    while i < len(regs):
        if i + 1 < len(regs):
            e(f"v_max3_u32 v{v_t2}, v{regs[i]}, v{regs[i+1]}, v{v_t2}"); i += 2
        else:
            e(f"v_max_u32 v{v_t2}, v{regs[i]}, v{v_t2}"); i += 1
    e(f"v_cmp_eq_u32 vcc, -1, v{v_t2}")
    e("s_nop 3")
    e("s_cmp_eq_u64 vcc, 0")

def stage3(a, slot_of):
    e = a.e
    a.c("================ stage 3 ================")
    D = 4
    lg = Lg(a)
    fifo = []
    cur = {}
    V0 = CFG["atv"]
    def assign(pc, sl):
        slot_of[pc] = sl
        for f in w2_ops(a, pc, sl):
            f.tag = f"Q{pc}"; fifo.append(f)
    def o_verify():
        a.wait_vm("O7")
        lp = a.newlabel("Lop"); ld = a.newlabel("Lod")
        e(f"s_mov_b32 s{s_cnt}, 0")
        a.label(lp)
        o_check(a)
        e(f"s_cbranch_scc1 {ld}")
        o_loads(a, track=False)
        e("s_waitcnt vmcnt(0)")
        e(f"s_add_u32 s{s_cnt}, s{s_cnt}, 1")
        e(f"s_cmp_lt_u32 s{s_cnt}, 100000")
        e(f"s_cbranch_scc1 {lp}")
        a.label(ld)
        stamp(a)
    def o_ops():
        ops = []
        for n in range(8):
            def f(n=n):
                a.e(f"s_add_u32 s{s_tmp}, s{s_a3o}, {n*4096}")
                a.vmem(f"buffer_load_dwordx4 {vr(AOreg(n),4)}, v{v_l16}, {srd(sWS)}, s{s_tmp} offen sc1", f"O{n}")
            f.tag = f"O{n}"
            ops.append(f)
        return ops
    syncs = {
        S3J: (["Q4", "Q5", "Q6", "Q7"], lambda: (assign(8, V0), assign(9, V0 + 1))),
        4: ([], lambda: (assign(10, slot_of[0]), assign(11, slot_of[1]), assign(12, slot_of[2]))),
        6: ([], lambda: (assign(13, slot_of[3]), assign(14, slot_of[4]), fifo.extend(o_ops()))),
        8: (["Q8", "Q9"], None),
        10: (["Q10", "Q11", "Q12"], None),
        13: (["Q13", "Q14"], None),
    }
    items = []
    for pc in range(15):
        for u in range(2):
            for ct in range(2):
                items.append((pc, u, ct))
    def rd(w):
        pc, u, ct = items[w]
        if u == 0 and ct == 0 and pc in syncs:
            tags, act = syncs[pc]
            while any(f.tag in tags for f in fifo): fifo.pop(0)()
            a.wait_vm(tags)
            e("s_barrier")
            if STAMPS2: stamp(a)
            if act: act()
        sl = slot_of[pc]
        vb = v_tr3b if ct else v_tr3
        off = sl*SLOT + u*8192
        if off + 1024 > 65535:
            r = v_t5 if ct else v_t4
            if cur.get(ct) != sl:
                e(f"v_add_u32 v{r}, {sl*SLOT}, v{vb}")
                cur[ct] = sl
            vb = r; off = u*8192
        b = BF3 + (w % 8)*4
        e(f"ds_read_b64_tr_b16 {vr(b,2)}, v{vb} offset:{off}")
        e(f"ds_read_b64_tr_b16 {vr(b+2,2)}, v{vb} offset:{off + 1024}")
        lg.add(w); lg.add(w)
    done = set(["Q4", "Q5", "Q6", "Q7"])
    for w in range(D): rd(w)
    for w in range(len(items)):
        if w + D < len(items):
            rd(w + D)
        pc, u, ct = items[w]
        if pc <= 10: af = AFreg(2*pc + u); tag = f"H{2*pc+u}"; acc = ACB; first = (pc == 0 and u == 0)
        else: af = AOreg(2*(pc-11) + u); tag = f"O{2*(pc-11)+u}"; acc = ACA; first = (pc == 11 and u == 0)
        if pc == 11 and u == 0 and ct == 0:
            while fifo: fifo.pop(0)()
            o_verify()
        a.wait_vm(tag)
        lg.wait([w])
        b = BF3 + (w % 8)*4
        mfma(a, acc + 16*ct, b, af, "0" if first else acc + 16*ct)
        if fifo: fifo.pop(0)()
        if pc >= 11:
            k = w - 44
            if k == 0:
                a.wait_vm("G")
                e(f"v_sub_f32 v{v_c2}, 1.0, v{v_g2}")
                e(f"v_cvt_pk_bf16_f32 v{v_c2}, v{v_c2}, v{v_c2}")
                e(f"v_lshlrev_b32 v{v_c2}, 16, v{v_c2}")
                e(f"v_mov_b32 v{v_c2+1}, v{v_c2}")
                e(f"v_mov_b32 v{v_g2+1}, v{v_g2}")
            elif 2 <= k < 10:
                for q in (2*(k-2), 2*(k-2)+1):
                    e(f"v_pk_mul_f32 v[{ACB+2*q}:{ACB+2*q+1}], v[{ACB+2*q}:{ACB+2*q+1}], v[{v_c2}:{v_c2+1}]")
    lg.drain()
    stamp(a)
    PS = [slot_of[p] for p in (5, 6, 7, 8)]
    e(f"s_cmp_eq_u32 s{s_rg}, 1"); e(f"s_movk_i32 s{s_tmp}, {PS[0]}"); e(f"s_cselect_b32 s{s_tmp}, {PS[1]}, s{s_tmp}")
    e(f"s_cmp_eq_u32 s{s_rg}, 2"); e(f"s_cselect_b32 s{s_tmp}, {PS[2]}, s{s_tmp}")
    e(f"s_cmp_eq_u32 s{s_rg}, 3"); e(f"s_cselect_b32 s{s_tmp}, {PS[3]}, s{s_tmp}")
    e(f"s_lshl_b32 s{s_tmp}, s{s_tmp}, 14")
    e(f"s_lshl_b32 s{s_tmp2}, s{s_cgp}, 13")
    e(f"s_add_u32 s{s_tmp}, s{s_tmp}, s{s_tmp2}")
    e(f"v_and_b32 v{v_t0}, 31, v{v_lane}")
    e(f"v_and_b32 v{v_t1}, 7, v{v_lane}")
    e(f"v_xor_b32 v{v_t1}, v{v_t1}, v{v_hi}")
    e(f"v_lshlrev_b32 v{v_t1}, 4, v{v_t1}")
    e(f"v_lshl_add_u32 v{v_t0}, v{v_t0}, 8, v{v_t1}")
    e(f"v_add_u32 v{v_t0}, s{s_tmp}, v{v_t0}")
    e("s_nop 4")
    for ct in range(2):
        for g4 in range(4):
            b0 = 16*ct + 4*g4
            for q in range(2):
                e(f"v_pk_fma_f32 v[{ACB+b0+2*q}:{ACB+b0+2*q+1}], v[{ACA+b0+2*q}:{ACA+b0+2*q+1}], v[{v_g2}:{v_g2+1}], v[{ACB+b0+2*q}:{ACB+b0+2*q+1}]")
            r = v_t2 + (g4 & 1)
            e(f"v_xor_b32 v{r}, {g4*32}, v{v_t0}")
            e(f"ds_write_b128 v{r}, {vr(ACB + b0, 4)} offset:{ct*128}")
    e(f"v_lshrrev_b32 v{v_t0}, 3, v0")
    e(f"v_and_b32 v{v_t1}, 7, v0")
    e(f"v_and_b32 v{v_t2}, 7, v{v_t0}")
    e(f"v_lshlrev_b32 v{v_t3}, 1, v{v_t1}")
    e(f"v_xor_b32 v{v_t2}, v{v_t2}, v{v_t3}")
    e(f"v_lshlrev_b32 v{v_t2}, 4, v{v_t2}")
    e(f"v_lshl_add_u32 v{v_t2}, v{v_t0}, 8, v{v_t2}")
    e(f"v_xor_b32 v{v_t3}, 16, v{v_t2}")
    e(f"v_add_u32 v{v_t4}, 0x10000, v{v_t2}")
    e(f"v_add_u32 v{v_t5}, 0x10000, v{v_t3}")
    e(f"v_add_u32 v{v_trn}, 0x20000, v{v_t2}")
    e(f"v_add_u32 v{v_trw}, 0x20000, v{v_t3}")
    e(f"v_lshlrev_b32 v{v_t0}, 10, v{v_t0}")
    e(f"v_lshl_add_u32 v{v_t0}, v{v_t1}, 4, v{v_t0}")
    e(f"s_lshl_b32 s{s_tmp}, s{s_rb3}, 16")
    e(f"s_lshl_b32 s{s_tmp2}, s{s_cb3}, 7")
    e(f"s_add_u32 s{s_tmp}, s{s_tmp}, s{s_tmp2}")
    e("s_waitcnt lgkmcnt(0)")
    e("s_barrier")
    for kq in range(4):
        off = PS[kq]*SLOT
        ra, rb_ = ((v_t2, v_t3), (v_t4, v_t5), (v_trn, v_trw))[off >> 16]
        e(f"ds_read_b128 {vr(64 + 8*kq, 4)}, v{ra} offset:{off & 0xffff}")
        e(f"ds_read_b128 {vr(68 + 8*kq, 4)}, v{rb_} offset:{off & 0xffff}")
    e("s_waitcnt lgkmcnt(4)")
    for q in range(4):
        e(f"v_pk_add_f32 v[{64+2*q}:{65+2*q}], v[{64+2*q}:{65+2*q}], v[{72+2*q}:{73+2*q}]")
    e("s_waitcnt lgkmcnt(0)")
    for q in range(4):
        e(f"v_pk_add_f32 v[{80+2*q}:{81+2*q}], v[{80+2*q}:{81+2*q}], v[{88+2*q}:{89+2*q}]")
    for q in range(4):
        e(f"v_pk_add_f32 v[{64+2*q}:{65+2*q}], v[{64+2*q}:{65+2*q}], v[{80+2*q}:{81+2*q}]")
    for q in range(4):
        e(f"v_cvt_pk_bf16_f32 v{64+q}, v{64+2*q}, v{65+2*q}")
    e(f"buffer_store_dwordx4 v[64:67], v{v_t0}, {srd(sOUT)}, s{s_tmp} offen {os.environ.get('GEN_OST','sc1').replace('_',' ')}")
    stamp(a, final=True)

def common_setup(a):
    e = a.e
    l = a.newlabel("Lcas")
    e(f"s_or_b32 s{s_nonce}, s{s_nonce}, 1")
    e(f"s_or_b32 s{s_tmp}, s{s_wv}, s2")
    e(f"s_cmp_lg_u32 s{s_tmp}, 0")
    e(f"s_cbranch_scc1 {l}")
    e(f"v_mov_b32 v{v_non}, s{s_nonce}")
    e(f"v_mov_b32 v{v_non+1}, s{s_nonce+1}")
    e(f"v_mov_b32 v{v_t4}, 0")
    e(f"s_mov_b64 s[{s_exec}:{s_exec+1}], exec")
    e("s_mov_b64 exec, 1")
    e(f"buffer_store_dwordx2 {vr(v_non,2)}, v{v_t4}, {srd(sDBG)}, 0 offen sc1")
    e(f"s_mov_b64 exec, s[{s_exec}:{s_exec+1}]")
    a.label(l)
    e(f"s_lshl_b32 s{s_tmp}, s{s_rb}, 2")
    e(f"s_add_u32 s{s_tmp}, s{s_tmp}, s{s_rg}")
    e(f"s_lshl_b32 s{s_oa}, s{s_tmp}, 15")
    e(f"s_lshl_b32 s{s_tmp2}, s{s_cg}, 1")
    e(f"s_add_u32 s{s_tmp2}, s{s_tmp2}, s{s_cgp}")
    e(f"s_lshl_b32 s{s_tmp2}, s{s_tmp2}, 10")
    e(f"s_add_u32 s{s_oa}, s{s_oa}, s{s_tmp2}")
    e(f"s_add_u32 s{s_oa}, s{s_oa}, {OF}")
    for i in range(4): e(f"v_mov_b32 v{ACC+i}, -1")
    a.vmem(f"buffer_store_dwordx4 {vr(ACC,4)}, v{v_l16}, {srd(sWS)}, s{s_oa} offen sc1", "SENT")
    e(f"v_and_b32 v{v_t0}, 31, v{v_lane}")
    e(f"v_lshrrev_b32 v{v_hi}, 5, v{v_lane}")
    e(f"v_and_b32 v{v_t1}, 15, v{v_lane}")
    e(f"v_xor_b32 v{v_t1}, v{v_t1}, v{v_hi}")
    e(f"v_lshlrev_b32 v{v_t1}, 4, v{v_t1}")
    e(f"v_lshl_add_u32 v{v_xrd}, v{v_t0}, 8, v{v_t1}")
    e(f"s_lshl_b32 s{s_tmp}, s{s_rg}, 13")
    e(f"v_add_u32 v{v_xrd}, s{s_tmp}, v{v_xrd}")
    e(f"v_and_b32 v{v_t0}, 15, v{v_lane}")
    e(f"v_lshrrev_b32 v{v_t1}, 2, v{v_t0}")
    e(f"v_bfe_u32 v{v_t2}, v{v_lane}, 4, 1")
    e(f"v_bfe_u32 v{v_t3}, v{v_lane}, 1, 1")
    e(f"v_lshl_add_u32 v{v_t2}, v{v_t2}, 1, v{v_t3}")
    e(f"v_and_b32 v{v_t3}, 1, v{v_lane}")
    e(f"v_lshlrev_b32 v{v_t3}, 3, v{v_t3}")
    e(f"v_lshl_add_u32 v{v_t2}, v{v_t2}, 4, v{v_t3}")
    e(f"v_lshrrev_b32 v{v_t3}, 1, v{v_t1}")
    e(f"v_xor_b32 v{v_t4}, s{s_cgp}, v{v_t3}")
    e(f"v_lshl_add_u32 v{v_t4}, v{v_t4}, 6, v{v_t2}")
    e(f"v_lshl_add_u32 v{v_t5}, v{v_hi}, 3, v{v_t1}")
    e(f"v_lshl_add_u32 v{v_trn}, v{v_t5}, 7, v{v_t4}")
    e(f"s_cmp_eq_u32 s{s_cgp}, 0")
    e(f"s_movk_i32 s{s_tmp}, 192")
    e(f"s_cselect_b32 s{s_tmp}, 64, s{s_tmp}")
    e(f"s_lshl_b32 s{s_k16}, s{s_tmp}, 4")
    e(f"s_lshl_b32 s{s_tmp2}, s{s_cgp}, 12")
    e(f"v_mad_u32_u24 v{v_trw}, v{v_t5}, s{s_tmp}, v{v_t2}")
    e(f"v_add_u32 v{v_trw}, s{s_tmp2}, v{v_trw}")
    e(f"s_lshl_b32 s{s_tmp}, s{s_tmp}, 2")
    e(f"v_add_u32 v{v_omg2}, s{s_tmp}, v{v_trw}")
    e(f"s_movk_i32 s{s_tmp}, 192")
    e(f"v_mad_u32_u24 v{v_trw2}, v{v_t5}, s{s_tmp}, v{v_t2}")
    e(f"s_lshl_b32 s{s_tmp2}, s{s_cgp}, 6")
    e(f"s_add_u32 s{s_tmp2}, s{s_tmp2}, {4096 + 64}")
    e(f"v_add_u32 v{v_trw2}, s{s_tmp2}, v{v_trw2}")
    e(f"v_lshl_add_u32 v{v_t4}, v{v_t3}, 6, v{v_t2}")
    e(f"v_lshl_add_u32 v{v_t5}, v{v_hi}, 2, v{v_t1}")
    e(f"v_lshl_add_u32 v{v_tr3}, v{v_t5}, 7, v{v_t4}")
    e(f"s_lshl_b32 s{s_tmp}, s{s_rg}, 11")
    e(f"v_add_u32 v{v_tr3}, s{s_tmp}, v{v_tr3}")
    e(f"v_xor_b32 v{v_tr3b}, 64, v{v_tr3}")

def wide_setup(a):
    e = a.e
    lq = a.newlabel("Lwq"); lj = a.newlabel("Lwj")
    e(f"s_cmp_lt_u32 s{s_wv}, 2")
    e(f"s_cbranch_scc1 {lq}")
    e(f"s_mov_b32 s{sPW}, s{sW1}"); e(f"s_mov_b32 s{sPW+1}, s{sW1+1}"); e(f"s_mov_b32 s{sPW+2}, {512*1376*2}"); e(f"s_mov_b32 s{sPW+3}, 0x00020000")
    e(f"s_sub_u32 s{s_tmp}, s{s_wv}, 2")
    e(f"s_lshl_b32 s{s_tmp}, s{s_tmp}, 7")
    e(f"s_movk_i32 s{s_tmp3}, 2752")
    e(f"s_movk_i32 s{s_tmp4}, 5462")
    for t in range(2):
        e(f"v_add_u32 v{v_t0}, s{s_tmp}, v{v_lane}")
        if t: e(f"v_add_u32 v{v_t0}, 64, v{v_t0}")
        e(f"v_mul_u32_u24 v{v_t1}, s{s_tmp4}, v{v_t0}")
        e(f"v_lshrrev_b32 v{v_t1}, 16, v{v_t1}")
        e(f"v_mul_u32_u24 v{v_t2}, 12, v{v_t1}")
        e(f"v_sub_u32 v{v_t0}, v{v_t0}, v{v_t2}")
        e(f"v_lshlrev_b32 v{v_t0}, 4, v{v_t0}")
        e(f"v_mad_u32_u24 v{v_wd0+t}, v{v_t1}, s{s_tmp3}, v{v_t0}")
    e(f"s_mul_i32 s{s_wbase}, s{s_cg}, 192")
    e(f"s_cmp_eq_u32 s{s_cg}, 15")
    e(f"s_cselect_b32 s{s_wbase}, {OOB}, s{s_wbase}")
    e(f"s_mov_b32 s{s_pstep}, {64*2752}")
    e(f"s_branch {lj}")
    a.label(lq)
    e(f"s_mov_b32 s{sPW}, s{sWQ}"); e(f"s_mov_b32 s{sPW+1}, s{sWQ+1}"); e(f"s_mov_b32 s{sPW+2}, {512*1536*2}"); e(f"s_mov_b32 s{sPW+3}, 0x00020000")
    e(f"s_lshl_b32 s{s_tmp}, s{s_wv}, 5")
    e(f"s_movk_i32 s{s_tmp3}, 3072")
    e(f"v_lshrrev_b32 v{v_t1}, 2, v{v_lane}")
    e(f"v_add_u32 v{v_t1}, s{s_tmp}, v{v_t1}")
    e(f"v_and_b32 v{v_t0}, 3, v{v_lane}")
    e(f"v_lshlrev_b32 v{v_t0}, 4, v{v_t0}")
    e(f"v_mad_u32_u24 v{v_wd0}, v{v_t1}, s{s_tmp3}, v{v_t0}")
    e(f"v_add_u32 v{v_wd1}, {16*3072}, v{v_wd0}")
    e(f"s_lshl_b32 s{s_wbase}, s{s_cg}, 6")
    e(f"s_mov_b32 s{s_pstep}, {64*3072}")
    a.label(lj)

def gen():
    a = Asm()
    e = a.e
    e("s_cmp_ge_u32 s2, 256")
    e("s_cbranch_scc1 L_exit")
    stamp(a)
    e("s_load_dwordx4 s[8:11], s[0:1], 0")
    e("s_load_dwordx2 s[24:25], s[0:1], 16")
    e("s_load_dwordx4 s[16:19], s[0:1], 32")
    e("s_load_dwordx4 s[36:39], s[0:1], 48")
    e("s_load_dwordx4 s[40:43], s[0:1], 64")
    e(f"s_memrealtime s[{s_nonce}:{s_nonce+1}]")
    e(f"v_and_b32 v{v_lane}, 63, v0")
    e(f"v_lshrrev_b32 v{v_t0}, 6, v0")
    e(f"v_lshlrev_b32 v{v_l16}, 4, v{v_lane}")
    e(f"v_readfirstlane_b32 s{s_wv}, v{v_t0}")
    e(f"s_and_b32 s{s_tmp}, s2, 7")
    e(f"s_lshr_b32 s{s_tmp2}, s2, 3")
    e(f"s_and_b32 s{s_rb}, s{s_tmp}, 1")
    e(f"s_lshl_b32 s{s_rb}, s{s_rb}, 3")
    e(f"s_and_b32 s{s_tmp3}, s{s_tmp2}, 7")
    e(f"s_add_u32 s{s_rb}, s{s_rb}, s{s_tmp3}")
    e(f"s_lshr_b32 s{s_cg}, s{s_tmp}, 1")
    e(f"s_lshl_b32 s{s_cg}, s{s_cg}, 2")
    e(f"s_lshr_b32 s{s_tmp3}, s{s_tmp2}, 3")
    e(f"s_add_u32 s{s_cg}, s{s_cg}, s{s_tmp3}")
    e(f"s_lshr_b32 s{s_p}, s{s_cg}, 1")
    e(f"s_and_b32 s{s_t}, s{s_cg}, 1")
    e(f"s_lshl_b32 s{s_rb3}, s{s_tmp}, 2")
    e(f"s_and_b32 s{s_tmp3}, s{s_tmp2}, 3")
    e(f"s_add_u32 s{s_rb3}, s{s_rb3}, s{s_tmp3}")
    e(f"s_lshr_b32 s{s_cb3}, s{s_tmp2}, 2")
    e(f"s_and_b32 s{s_rg}, s{s_wv}, 3")
    e(f"s_lshr_b32 s{s_cgp}, s{s_wv}, 2")
    e(f"s_lshl_b32 s{s_ldsw}, s{s_wv}, 11")
    e(f"s_lshl_b32 s{s_xlds}, s{s_wv}, 12")
    e(f"s_lshl_b32 s{s_xbase}, s{s_rb}, 17")
    e(f"s_lshl_b32 s{s_tmp3}, s{s_wv}, 14")
    e(f"s_add_u32 s{s_xbase}, s{s_xbase}, s{s_tmp3}")
    if STAMPS:
        e(f"s_lshl_b32 s{s_tsb}, s2, 3")
        e(f"s_add_u32 s{s_tsb}, s{s_tsb}, s{s_wv}")
        e(f"s_lshl_b32 s{s_tsb}, s{s_tsb}, 7")
        e(f"s_add_u32 s{s_tsb}, s{s_tsb}, {TS}")
    e(f"v_lshrrev_b32 v{v_t0}, 4, v{v_lane}")
    e(f"v_and_b32 v{v_t1}, 15, v{v_lane}")
    e(f"v_xor_b32 v{v_t1}, v{v_t1}, v{v_t0}")
    e(f"v_lshlrev_b32 v{v_t0}, 10, v{v_t0}")
    for t in range(4):
        e(f"v_xor_b32 v{v_t2}, {4*t}, v{v_t1}")
        e(f"v_lshl_add_u32 v{v_xo+t}, v{v_t2}, 4, v{v_t0}")
    e(f"v_lshrrev_b32 v{v_t0}, 3, v{v_lane}")
    e(f"v_and_b32 v{v_t1}, 7, v{v_lane}")
    e(f"v_lshrrev_b32 v{v_t2}, 2, v{v_lane}")
    e(f"v_and_b32 v{v_t2}, 4, v{v_t2}")
    e(f"v_xor_b32 v{v_t1}, v{v_t1}, v{v_t2}")
    e(f"v_lshlrev_b32 v{v_t1}, 4, v{v_t1}")
    e(f"s_movk_i32 s{s_tmp3}, 3072")
    e(f"v_mad_u32_u24 v{v_wq_n}, v{v_t0}, s{s_tmp3}, v{v_t1}")
    e(f"v_lshl_add_u32 v{v_w2_n}, v{v_t0}, 10, v{v_t1}")
    e(f"s_mul_i32 s{s_naroff}, s{s_wv}, {16*3072}")
    e(f"s_lshl_b32 s{s_tmp3}, s{s_p}, 7")
    e(f"s_add_u32 s{s_naroff}, s{s_naroff}, s{s_tmp3}")
    e(f"s_lshl_b32 s{s_tmp3}, s{s_t}, 10")
    e(f"s_add_u32 s{s_naroff}, s{s_naroff}, s{s_tmp3}")
    e(f"s_add_u32 s{s_naroff}, s{s_naroff}, 1024")
    e(f"s_lshl_b32 s{s_tmp3}, s{s_p}, 1")
    e(f"s_add_u32 s{s_tmp3}, s{s_tmp3}, s{s_cgp}")
    e(f"s_lshl_b32 s{s_tmp3}, s{s_tmp3}, 6")
    e(f"s_lshl_b32 s{s_tmp4}, s{s_rb}, 2")
    e(f"s_add_u32 s{s_tmp4}, s{s_tmp4}, s{s_rg}")
    e(f"s_add_u32 s{s_tmp3}, s{s_tmp3}, s{s_tmp4}")
    e(f"s_lshl_b32 s{s_st0}, s{s_tmp3}, 11")
    e(f"s_lshl_b32 s{s_tmp3}, s{s_t}, 21")
    e(f"s_add_u32 s{s_st0}, s{s_st0}, s{s_tmp3}")
    e(f"s_add_u32 s{s_st0}, s{s_st0}, {KF}")
    e(f"s_mul_i32 s{s_tmp4}, s{s_tmp4}, {HROW}")
    e(f"s_add_u32 s{s_tmp4}, s{s_tmp4}, {HF}")
    e(f"s_mul_i32 s{s_tmp3}, s{s_cg}, 3")
    e(f"s_lshl_b32 s{s_st1}, s{s_tmp3}, 11")
    e(f"s_add_u32 s{s_st1}, s{s_st1}, s{s_tmp4}")
    e(f"s_cmp_ge_u32 s{s_tmp3}, 43")
    e(f"s_cselect_b32 s{s_st1}, {OOB}, s{s_st1}")
    e(f"s_cmp_eq_u32 s{s_cgp}, 0")
    e(f"s_cselect_b32 s{s_st1}, {OOB}, s{s_st1}")
    e(f"s_add_u32 s{s_tmp3}, s{s_tmp3}, s{s_cgp}")
    e(f"s_add_u32 s{s_tmp3}, s{s_tmp3}, 1")
    e(f"s_lshl_b32 s{s_st2}, s{s_tmp3}, 11")
    e(f"s_add_u32 s{s_st2}, s{s_st2}, s{s_tmp4}")
    e(f"s_cmp_ge_u32 s{s_tmp3}, 43")
    e(f"s_cselect_b32 s{s_st2}, {OOB}, s{s_st2}")
    e(f"s_lshl_b32 s{s_w2off}, s{s_wv}, 14")
    e(f"s_lshl_b32 s{s_tmp3}, s{s_cb3}, 7")
    e(f"s_add_u32 s{s_w2off}, s{s_w2off}, s{s_tmp3}")
    e("s_waitcnt lgkmcnt(0)")
    e("s_mov_b32 s12, s10"); e("s_mov_b32 s13, s11"); e(f"s_mov_b32 s14, {512*1536*2}"); e("s_mov_b32 s15, 0x00020000")
    e(f"s_mov_b32 s10, {2048*512*2}"); e("s_mov_b32 s11, 0x00020000")
    e("s_mov_b32 s32, s38"); e("s_mov_b32 s33, s39"); e(f"s_mov_b32 s34, {2048*512*2}"); e("s_mov_b32 s35, 0x00020000")
    e("s_mov_b32 s38, 1024"); e("s_mov_b32 s39, 0x00020000")
    e(f"s_mov_b32 s{s_ldsww}, 0")
    e(f"s_mov_b32 s{s_gw}, 0")
    lg_ = a.newlabel("Lgs")
    e(f"s_cmp_lg_u32 s{s_cg}, 15")
    e(f"s_cbranch_scc1 {lg_}")
    e(f"s_cmp_lt_u32 s{s_wv}, 2")
    e(f"s_cbranch_scc1 {lg_}")
    e(f"s_mov_b32 s{s_ldsww}, 0x30000")
    e(f"s_cmp_lg_u32 s{s_wv}, 2")
    e(f"s_cbranch_scc1 {lg_}")
    e(f"s_mov_b32 s{s_gw}, 1")
    e(f"v_lshlrev_b32 v{v_t0}, 1, v{v_lane}")
    for j in range(8):
        e(f"buffer_load_ushort v{GREG+j}, v{v_t0}, {srd(sGW)}, 0 offen offset:{j*128}")
    e(f"s_movk_i32 s{s_tmp3}, 192")
    e(f"v_mul_u32_u24 v{v_g2}, s{s_tmp3}, v{v_lane}")
    a.label(lg_)
    e("s_mov_b32 s20, s18"); e("s_mov_b32 s21, s19"); e(f"s_mov_b32 s22, {1376*512*2}"); e("s_mov_b32 s23, 0x00020000")
    e(f"s_mov_b32 s18, {512*1376*2}"); e("s_mov_b32 s19, 0x00020000")
    if TOUCH in (2, 9): touch(a, (sX, sWQ, sW1), 224)
    if TOUCH == 4: touch_l2(a)
    issue_x_quarter(a, 0)
    issue_piece(a, 0, CFG['init'][0])
    if TOUCH == 3: touch(a, (sX, sWQ, sW1), 224)
    if TOUCH == 5: touch_l2(a)
    e(f"s_mov_b32 s26, {512*512*2}"); e("s_mov_b32 s27, 0x00020000")
    e("s_mov_b32 s28, s42"); e("s_mov_b32 s29, s43"); e(f"s_mov_b32 s30, {WS_BYTES}"); e("s_mov_b32 s31, 0x00020000")
    e("s_mov_b32 s42, 256"); e("s_mov_b32 s43, 0x00020000")
    if env("GEN_TLB", 0): tlb_warm(a, env("GEN_TLB", 0))
    if TOUCH == 9: touch(a, (sW2, sWO), 240)
    if TOUCH == 7: touch_scalar(a, "xq12o")
    if TOUCH == 8: touch_scalar(a, "xq1")
    stamp(a)
    if env("GEN_ST3",0): stamp(a)
    common_setup(a)
    wide_setup(a)
    if env("GEN_ST3",0): stamp(a)
    kv_flag_setup(a)
    lm_ = a.newlabel("Lmk")
    e(f"s_cmp_lg_u32 s{s_gw}, 0")
    e(f"s_cbranch_scc1 {lm_}")
    build_maskd(a)
    a.label(lm_)
    if env("GEN_ST3",0): stamp(a)
    e("s_barrier")
    issue_x_quarter(a, 1)
    issue_piece(a, 1, CFG['init'][1])
    e(f"s_cmp_lg_u32 s{s_t}, 0")
    e("s_cbranch_scc1 L_s1v")
    w2_slot = run_stage1(a)
    stamp(a)
    attention(a, w2_slot)
    stage3(a, w2_slot)
    a.label("L_exit")
    a.e("s_endpgm")
    return a

def touch(a, srds, T):
    e = a.e
    e(f"s_lshl_b32 s{s_tmp}, s2, 3")
    e(f"s_add_u32 s{s_tmp}, s{s_tmp}, s{s_wv}")
    e(f"s_lshl_b32 s{s_tmp}, s{s_tmp}, 10")
    for i, sr in enumerate(srds):
        a.vmem(f"buffer_load_dwordx4 {vr(T+4*i,4)}, v{v_l16}, {srd(sr)}, s{s_tmp} offen", "TCH")

def touch_l2(a):
    e = a.e
    T = 224
    lx = a.newlabel("Ltx"); lk = a.newlabel("Ltk"); lq = a.newlabel("Ltq"); lj = a.newlabel("Ltj")
    e(f"s_lshr_b32 s{s_tmp}, s2, 3")
    e(f"s_and_b32 s{s_tmp2}, s2, 7")
    e(f"s_lshr_b32 s{s_tmp3}, s{s_tmp2}, 1")
    e(f"s_cmp_lt_u32 s{s_wv}, 4")
    e(f"s_cbranch_scc1 {lx}")
    e(f"s_cmp_eq_u32 s{s_wv}, 4")
    e(f"s_cbranch_scc1 {lk}")
    e(f"s_cmp_eq_u32 s{s_wv}, 5")
    e(f"s_cbranch_scc1 {lq}")
    e(f"s_sub_u32 s{s_tmp4}, s{s_wv}, 6")
    e(f"s_lshl_b32 s{s_tmp4}, s{s_tmp4}, 3")
    e(f"s_lshl_b32 s{s_tmp}, s{s_tmp}, 4")
    e(f"s_add_u32 s{s_tmp}, s{s_tmp}, s{s_tmp4}")
    e(f"s_mul_i32 s{s_tmp}, s{s_tmp}, 2752")
    e(f"s_mul_i32 s{s_tmp3}, s{s_tmp3}, 768")
    e(f"s_add_u32 s{s_tmp}, s{s_tmp}, s{s_tmp3}")
    e(f"v_lshrrev_b32 v{v_t0}, 3, v{v_lane}")
    e(f"s_movk_i32 s{s_tmp4}, 2752")
    e(f"v_mul_u32_u24 v{v_t0}, s{s_tmp4}, v{v_t0}")
    e(f"v_and_b32 v{v_t1}, 7, v{v_lane}")
    e(f"v_min_u32 v{v_t1}, 6, v{v_t1}")
    e(f"v_lshl_add_u32 v{v_t0}, v{v_t1}, 7, v{v_t0}")
    e(f"buffer_load_dword v{T}, v{v_t0}, {srd(sW1)}, s{s_tmp} offen")
    e(f"s_branch {lj}")
    a.label(lx)
    e(f"s_and_b32 s{s_tmp2}, s{s_tmp2}, 1")
    e(f"s_lshl_b32 s{s_tmp2}, s{s_tmp2}, 20")
    e(f"s_lshl_b32 s{s_tmp}, s{s_tmp}, 15")
    e(f"s_add_u32 s{s_tmp}, s{s_tmp}, s{s_tmp2}")
    e(f"s_lshl_b32 s{s_tmp2}, s{s_wv}, 8")
    e(f"s_add_u32 s{s_tmp}, s{s_tmp}, s{s_tmp2}")
    e(f"v_lshrrev_b32 v{v_t0}, 1, v{v_lane}")
    e(f"v_lshlrev_b32 v{v_t0}, 10, v{v_t0}")
    e(f"v_and_b32 v{v_t1}, 1, v{v_lane}")
    e(f"v_lshl_add_u32 v{v_t0}, v{v_t1}, 7, v{v_t0}")
    e(f"buffer_load_dword v{T}, v{v_t0}, {srd(sX)}, s{s_tmp} offen")
    e(f"s_branch {lj}")
    a.label(lk)
    e(f"s_mul_i32 s{s_tmp}, s{s_tmp}, {16*3072}")
    e(f"s_lshl_b32 s{s_tmp3}, s{s_tmp3}, 8")
    e(f"s_add_u32 s{s_tmp}, s{s_tmp}, s{s_tmp3}")
    e(f"s_add_u32 s{s_tmp}, s{s_tmp}, 1024")
    e(f"v_lshrrev_b32 v{v_t0}, 2, v{v_lane}")
    e(f"s_movk_i32 s{s_tmp4}, 3072")
    e(f"v_mul_u32_u24 v{v_t0}, s{s_tmp4}, v{v_t0}")
    e(f"v_and_b32 v{v_t1}, 1, v{v_lane}")
    e(f"v_lshl_add_u32 v{v_t0}, v{v_t1}, 10, v{v_t0}")
    e(f"v_bfe_u32 v{v_t1}, v{v_lane}, 1, 1")
    e(f"v_lshl_add_u32 v{v_t0}, v{v_t1}, 7, v{v_t0}")
    e(f"buffer_load_dword v{T}, v{v_t0}, {srd(sWQ)}, s{s_tmp} offen")
    e(f"s_branch {lj}")
    a.label(lq)
    e(f"s_mul_i32 s{s_tmp}, s{s_tmp}, {16*3072}")
    e(f"s_lshl_b32 s{s_tmp3}, s{s_tmp3}, 8")
    e(f"s_add_u32 s{s_tmp}, s{s_tmp}, s{s_tmp3}")
    e(f"v_bfe_u32 v{v_t0}, v{v_lane}, 1, 4")
    e(f"s_movk_i32 s{s_tmp4}, 3072")
    e(f"v_mul_u32_u24 v{v_t0}, s{s_tmp4}, v{v_t0}")
    e(f"v_and_b32 v{v_t1}, 1, v{v_lane}")
    e(f"v_lshl_add_u32 v{v_t0}, v{v_t1}, 7, v{v_t0}")
    e(f"buffer_load_dword v{T}, v{v_t0}, {srd(sWQ)}, s{s_tmp} offen")
    a.label(lj)
    a.vm.append("TCH")

def touch_l2_s3(a, part, nparts):
    e = a.e
    T = v_xo + 3
    l1 = a.newlabel("Lt3"); lj = a.newlabel("Lt3j")
    n = 64 // nparts
    mask = ((1 << n) - 1) << (n * part)
    e(f"s_lshr_b32 s{s_tmp}, s2, 3")
    e(f"s_lshl_b32 s{s_tmp}, s{s_tmp}, 3")
    e(f"s_add_u32 s{s_tmp}, s{s_tmp}, s{s_wv}")
    e(f"s_mul_i32 s{s_tmp}, s{s_tmp}, {n*128}")
    e(f"s_add_u32 s{s_tmp}, s{s_tmp}, {part * 256 * n * 128 - part*n*128}")
    e(f"v_lshlrev_b32 v{v_t2}, 7, v{v_lane}")
    e(f"s_mov_b32 exec_lo, 0x{mask & 0xffffffff:x}")
    e(f"s_mov_b32 exec_hi, 0x{mask >> 32:x}")
    lim = 1376*1024
    if (part + 1) * 256 * n * 128 <= 0x180000:
        e(f"buffer_load_dword v{T}, v{v_t2}, {srd(sW2)}, s{s_tmp} offen")
    else:
        e(f"s_sub_u32 s{s_tmp}, s{s_tmp}, 0x180000")
        e(f"buffer_load_dword v{T}, v{v_t2}, {srd(sWO)}, s{s_tmp} offen")
    e("s_mov_b64 exec, -1")
    a.vm.append("TCH")

def touch_scalar(a, which):
    e = a.e
    e(f"s_lshl_b32 s{s_tmp}, s2, 3")
    e(f"s_add_u32 s{s_tmp}, s{s_tmp}, s{s_wv}")
    tab = {"x": (sX, 8), "q": (sWQ, 6), "1": (sW1, 6), "2": (sW2, 6), "o": (sWO, 2)}
    for w in which:
        sr, n = tab[w]
        e(f"s_mul_i32 s{s_tmp2}, s{s_tmp}, {n*128}")
        for i in range(n):
            e(f"s_buffer_load_dword s{s_cnt}, {srd(sr)}, s{s_tmp2} offset:{i*128}")

def tlb_warm(a, mode):
    e = a.e
    l = a.newlabel("Ltlb")
    e(f"s_cmp_lg_u32 s{s_wv}, 7")
    e(f"s_cbranch_scc1 {l}")
    sh = {1: 20, 2: 18}[mode]
    e(f"v_lshlrev_b32 v{v_t2}, {sh}, v{v_lane}")
    e(f"s_lshl_b32 s{s_tmp}, s2, 7")
    if mode == 1: e("s_mov_b64 exec, 0xffff")
    e(f"buffer_load_dword v236, v{v_t2}, {srd(sWS)}, s{s_tmp} offen")
    e("s_mov_b64 exec, 0xff")
    e(f"v_lshlrev_b32 v{v_t2}, 18, v{v_lane}")
    e(f"buffer_load_dword v237, v{v_t2}, {srd(sOUT)}, s{s_tmp} offen")
    e("s_mov_b64 exec, -1")
    a.label(l)

HEADER = open(os.path.join(os.path.dirname(os.path.abspath(__file__)), "..", "cdna_kernels", NAME + ".s.ref")).read().split("; Override launch")[0]

def emit_file(path):
    a = gen()
    s = HEADER
    s += "; @launch grid=(256,1,1) block=(512,1,1) lds=163840\n"
    s += f""".amdgcn_target "amdgcn-amd-amdhsa--gfx950"
.text
.globl {NAME}_kernel
.p2align 8
.type {NAME}_kernel,@function
{NAME}_kernel:
"""
    s += "\n".join(a.lines) + "\n"
    s += f""".section .rodata,"a"
.p2align 6
.amdhsa_kernel {NAME}_kernel
  .amdhsa_next_free_vgpr 256
  .amdhsa_next_free_sgpr {NSGPR}
  .amdhsa_accum_offset 256
  .amdhsa_group_segment_fixed_size 0
  .amdhsa_kernarg_size 80
  .amdhsa_user_sgpr_count 2
  .amdhsa_user_sgpr_kernarg_segment_ptr 1
  .amdhsa_system_sgpr_workgroup_id_x 1
.end_amdhsa_kernel
"""
    open(path, "w").write(s)

if __name__ == "__main__":
    out = sys.argv[1] if len(sys.argv) > 1 else os.path.join(os.path.dirname(os.path.abspath(__file__)), "..", "cdna_kernels", NAME + ".s")
    emit_file(out)
```

```python
import sys, math, os, struct

NAME = "gated_mix__sliding_block__dense_activation_relu__prompt"

KF = 0x200000
VF = 0x400000
OF = 0x600000
HF = 0x800000
GB = 0xE00000
FL = 0xF00000
TS = 0xF80000
WS_BYTES = 0x1000000
HROW = 86 * 1024
OOB = 0x40000000
SLOT = 16384

def env(n, d): return int(os.environ.get(n, d))
STAMPS = env("GEN_STAMPS", 0) >= 1
STAMPS2 = env("GEN_STAMPS", 0) >= 2
TOUCH = env("GEN_TOUCH", 2)
NT = env("GEN_NT", 0)
ROT = env("GEN_ROT", 0)

class Asm:
    def __init__(self):
        self.lines = []; self.vm = []; self.uid = 0; self.nstamp = 0
    def e(self, s): self.lines.append("    " + s)
    def label(self, l): self.lines.append(l + ":")
    def c(self, s): self.lines.append("    ; " + s)
    def newlabel(self, p="L"):
        self.uid += 1
        return f"{p}_{self.uid}"
    def vmem(self, s, tag):
        self.e(s); self.vm.append(tag)
    def wait_vm(self, tags, lgkm0=False):
        if isinstance(tags, str): tags = [tags]
        last = -1
        for i, t in enumerate(self.vm):
            if t in tags: last = i
        x = " lgkmcnt(0)" if lgkm0 else ""
        if last < 0:
            if lgkm0: self.e("s_waitcnt lgkmcnt(0)")
            return
        n = len(self.vm) - 1 - last
        assert n <= 63
        self.e(f"s_waitcnt vmcnt({n}){x}")
        self.vm = self.vm[last + 1:]

class Lg:
    def __init__(self, a): self.a = a; self.q = []
    def add(self, tag): self.q.append(tag)
    def wait(self, tags):
        last = -1
        for i, t in enumerate(self.q):
            if t in tags: last = i
        if last < 0: return
        n = min(len(self.q) - 1 - last, 15)
        self.a.e(f"s_waitcnt lgkmcnt({n})")
        self.q = self.q[len(self.q) - n:] if n else []
    def clear(self): self.q = []
    def drain(self):
        if self.q: self.a.e("s_waitcnt lgkmcnt(0)")
        self.q = []

sX, sWQ, sW1, sW2, sWO, sWS, sOUT, sGW, sDBG, sPW = 8, 12, 16, 20, 24, 28, 32, 36, 40, 88
def srd(b): return f"s[{b}:{b+3}]"
s_wv, s_rb, s_cg, s_p, s_t, s_rg, s_cgp, s_rb3, s_cb3, s_xbase = range(44, 54)
s_tmp, s_tmp2, s_wideoff, s_naroff = 54, 55, 56, 57
s_nonce = 58
s_tmp3, s_tmp4, s_st0, s_st1, s_first, s_w2off, s_xlds, s_cnt = range(60, 68)
s_exec = 68
s_m = 70; s_m2 = 72; s_m3 = 74
s_ldsw, s_a3, s_a3o, s_qb = 76, 77, 78, 79
s_vm = 80
s_ts = 82
s_tsb, s_ok, s_ga, s_pstep = 84, 85, 86, 87
s_st2 = 92
s_ldsww = 95
s_gw = 7
s_wbase = 5
GREG = 48
s_fl = 6
s_kvb = 3
s_krd = 4
s_vrdb = 98
s_flh = 99
s_flc = 100
v_kf = 25
NSGPR = 102

v_lane, v_l16 = 1, 2
v_xo = 3
v_wq_n, v_wd0, v_wd1, v_xrd, v_trn, v_trw, v_tr3, v_w2_n = 7, 8, 9, 10, 11, 12, 13, 14
v_t0, v_t1 = 15, 16
v_hi = 17
v_t2, v_t3 = 18, 19
v_non = 20
v_c2 = 20
v_mc = 22
v_g2 = 24
v_omg2 = 26
v_t4, v_t5 = 28, 29
v_trw2, v_tr3b = 30, 31
MASKF = 32
MASKD = 48
BF = 64
ACC = 96
XF = 128
v_fo = 252; v_fd = 254

def vr(b, n): return f"v[{b}:{b+n-1}]"

ORD = os.environ.get("GEN_ORD", "A")
CFG = {
 "A": dict(order=[0,1,2,3,4,5,6,7,8,9,10,11], xslot={0:0,1:4,2:6,3:0}, init={0:2,1:3}, atk=6, atv=4, usplit=4, lg=4,
      sched={0:[("X",2,0),("P",2,8),("P",3,9)], 1:[("X",3,0),("P",4,2)], 2:[("P",5,4),("P",6,5),("P",7,3)],
             3:[("P",8,6),("P",9,7),("P",10,8)], 4:[("P",11,9)], 5:[("Q",0,0),("Q",1,1)], 6:[("Q",2,2)], 9:[("Q",3,3)]},
      sig0=6, kvi=9, kvc=11, post=(8,9), non=2),
 "C": dict(order=[0,1,4,2,5,3,6,7,8,9,10,11], xslot={0:0,1:3,2:8,3:0}, init={0:2,1:5}, atk=3, atv=0, usplit=6, lg=6,
      sched={0:[("P",4,6),("X",2,0),("P",2,7)], 1:[("P",5,2),("X",3,0)], 2:[("P",3,5),("P",6,3),("P",7,4)],
             3:[("P",8,6)], 4:[("P",9,7),("P",10,8),("P",11,9)], 5:[("Q",0,2)], 7:[("Q",1,5)], 10:[("Q",2,6)], 11:[("Q",3,7)]},
      sig0=8, kvi=10, kvc=11, post=(8,9), non=3),
}[ORD]
XSLOT = CFG["xslot"]
ATK = CFG['atk'] * SLOT
ATQ = ATK + 24576
ATV = CFG['atv'] * SLOT

v_st = 27
def stamp(a, final=False):
    if not STAMPS: return
    i = a.nstamp; a.nstamp += 1
    cur = s_ts + 2*(i & 1) if False else (s_ts if (i & 1) == 0 else 96)
    prev = (s_ts if ((i-1) & 1) == 0 else 96)
    if i > 0:
        a.e(f"v_writelane_b32 v{v_st}, s{prev}, {i-1}")
    a.e(f"{'s_memrealtime' if env('GEN_RT',0) else 's_memtime'} s[{cur}:{cur+1}]")
    if final:
        a.e("s_waitcnt lgkmcnt(0)")
        a.e(f"v_writelane_b32 v{v_st}, s{cur}, {i}")
        a.e(f"v_lshlrev_b32 v{v_t3}, 2, v{v_lane}")
        a.e("s_mov_b32 exec_lo, -1")
        a.e("s_mov_b32 exec_hi, 0")
        a.e(f"buffer_store_dword v{v_st}, v{v_t3}, {srd(sWS)}, s{s_tsb} offen")
        if env("GEN_DBG", 0):
            l = a.newlabel("Ldbg")
            a.e(f"s_cmp_lg_u32 s2, {env('GEN_DBG',0)}")
            a.e(f"s_cbranch_scc1 {l}")
            a.e(f"s_cmp_lg_u32 s{s_wv}, 0")
            a.e(f"s_cbranch_scc1 {l}")
            a.e(f"v_readlane_b32 s{s_tmp}, v{v_st}, 0")
            a.e("s_nop 3")
            a.e(f"v_subrev_u32 v{v_st}, s{s_tmp}, v{v_st}")
            a.e("s_mov_b32 exec_lo, 0x3ffe")
            a.e(f"buffer_store_dword v{v_st}, v{v_t3}, {srd(sDBG)}, 0 offen offset:4")
            a.label(l)

def dma(a, voff, srd_b, soff, lds_sgpr, ldsimm, tag, sc1=False):
    a.e(f"s_add_u32 m0, s{lds_sgpr}, {ldsimm}")
    a.e("s_nop 0")
    nt = " nt" if (not sc1 and ((NT & 1) and tag[0] in "XP" or (NT & 2) and tag[0] == "Q")) else ""
    a.vmem(f"buffer_load_dwordx4 v{voff}, {srd(srd_b)}, {soff} offen{' sc1' if sc1 else ''}{nt} lds", tag)

def x_ops(a, j):
    ops = []
    for t in range(4):
        def f(t=t):
            a.e(f"s_add_u32 s{s_tmp}, s{s_xbase}, {t*4096 + j*256}")
            dma(a, v_xo + t, sX, f"s{s_tmp}", s_xlds, XSLOT[j]*SLOT + t*1024, f"X{j}")
        ops.append(f)
    return ops

def piece_ops(a, i, slot):
    ops = []
    for t in range(2):
        if i < 4:
            def f(t=t):
                a.e(f"s_add_u32 s{s_tmp}, s{s_naroff}, {(128*i + 8*t)*3072}")
                dma(a, v_wq_n, sWQ, f"s{s_tmp}", s_ldsw, slot*SLOT + t*1024, f"P{i}")
        else:
            def f(t=t):
                if t == 0:
                    a.e(f"s_mul_i32 s{s_wideoff}, s{s_pstep}, {i-4}")
                    a.e(f"s_add_u32 s{s_wideoff}, s{s_wideoff}, s{s_wbase}")
                a.e(f"s_add_u32 s{s_tmp}, s{s_ldsw}, {slot*SLOT + t*1024}")
                a.e(f"s_max_u32 m0, s{s_tmp}, s{s_ldsww}")
                a.e("s_nop 0")
                a.vmem(f"buffer_load_dwordx4 v{v_wd0 + t}, {srd(sPW)}, s{s_wideoff} offen{' nt' if NT & 1 else ''} lds", f"P{i}")
                if t == 1:
                    l = a.newlabel("Lgw")
                    a.e(f"s_cmp_eq_u32 s{s_gw}, 0")
                    a.e(f"s_cbranch_scc1 {l}")
                    a.e(f"v_add_u32 v{v_t2}, {slot*SLOT + 4096 + 128}, v{v_g2}")
                    a.e(f"ds_write_b16 v{v_t2}, v{GREG + i - 4}")
                    a.label(l)
        ops.append(f)
    return ops

def w2_ops(a, i, slot):
    ops = []
    for t in range(2):
        def f(t=t):
            srdb, r0 = (sW2, 128*i) if i <= 10 else (sWO, 128*(i-11))
            a.e(f"s_add_u32 s{s_tmp}, s{s_w2off}, {(r0 + 8*t) * 1024}")
            dma(a, v_w2_n, srdb, f"s{s_tmp}", s_ldsw, slot*SLOT + t*1024, f"Q{i}")
        ops.append(f)
    return ops

def issue_x_quarter(a, j):
    for f in x_ops(a, j): f()
def issue_piece(a, i, slot):
    for f in piece_ops(a, i, slot): f()
def issue_w2_piece(a, i, slot):
    for f in w2_ops(a, i, slot): f()

def mfma(a, d, x, y, c):
    cs = c if isinstance(c, str) else vr(c, 16)
    a.e(f"v_mfma_f32_32x32x16_bf16 {vr(d,16)}, {vr(x,4)}, {vr(y,4)}, {cs}")

def pack_tile(a, acc, pk, relu):
    for q in range(8):
        a.e(f"v_cvt_pk_bf16_f32 v{pk+q}, v{acc+2*q}, v{acc+2*q+1}")
    if relu:
        for q in range(8):
            a.e(f"v_pk_max_i16 v{pk+q}, v{pk+q}, 0")

def store_pk(a, pk, soff_sgpr, tag):
    a.vmem(f"buffer_store_dwordx4 {vr(pk,4)}, v{v_l16}, {srd(sWS)}, s{soff_sgpr} offen sc1", tag)
    a.vmem(f"buffer_store_dwordx4 {vr(pk+4,4)}, v{v_l16}, {srd(sWS)}, s{soff_sgpr} offen offset:1024 sc1", tag)

def signal(a, phase):
    l = a.newlabel("Lsig")
    a.e(f"s_cmp_lg_u32 s{s_wv}, 0")
    a.e(f"s_cbranch_scc1 {l}")
    a.e(f"v_mov_b32 v{v_t2}, s{s_nonce}")
    a.e(f"v_mov_b32 v{v_t3}, s{s_nonce+1}")
    a.e(f"v_mov_b32 v{v_t1}, {phase*32768}")
    a.e("s_mov_b64 exec, 1")
    a.e(f"buffer_store_dwordx2 v[{v_t2}:{v_t3}], v{v_t1}, {srd(sWS)}, s{s_fl} offen sc1")
    a.e("s_mov_b64 exec, -1")
    a.label(l)

def signal_wave(a):
    a.e(f"v_mov_b32 v{v_t2}, s{s_nonce}")
    a.e(f"v_mov_b32 v{v_t3}, s{s_nonce+1}")
    a.e(f"v_mov_b32 v{v_t1}, 0")
    a.e("s_mov_b64 exec, 1")
    a.vmem(f"buffer_store_dwordx2 v[{v_t2}:{v_t3}], v{v_t1}, {srd(sWS)}, s{s_flh} offen sc1", "SIGH")
    a.e("s_mov_b64 exec, -1")

def cmp_flags4(a, vd):
    a.e(f"v_xor_b32 v{vd}, s{s_nonce}, v{vd}")
    a.e(f"v_xor_b32 v{vd+1}, s{s_nonce+1}, v{vd+1}")
    a.e(f"v_xor_b32 v{vd+2}, s{s_nonce}, v{vd+2}")
    a.e(f"v_xor_b32 v{vd+3}, s{s_nonce+1}, v{vd+3}")
    a.e(f"v_or3_b32 v{vd}, v{vd}, v{vd+1}, v{vd+2}")
    a.e(f"v_or_b32 v{vd}, v{vd}, v{vd+3}")
    a.e(f"v_cmp_ne_u32 vcc, 0, v{vd}")
    a.e("s_nop 3")
    a.e("s_cmp_eq_u64 vcc, 0")

def hflag_issue(a, track=True):
    ins = f"buffer_load_dwordx4 v[252:255], v{v_l16}, {srd(sWS)}, s{s_flc} offen sc1"
    (a.vmem(ins, "FH") if track else a.e(ins))

def hpoll(a):
    lp = a.newlabel("Lpoll"); ld = a.newlabel("Lpolld")
    a.e(f"s_mov_b32 s{s_cnt}, 0")
    a.label(lp)
    hflag_issue(a, False)
    a.e("s_waitcnt vmcnt(0)")
    cmp_flags4(a, 252)
    a.e(f"s_cbranch_scc1 {ld}")
    a.e("s_sleep 1")
    a.e(f"s_add_u32 s{s_cnt}, s{s_cnt}, 1")
    a.e(f"s_cmp_lt_u32 s{s_cnt}, 100000")
    a.e(f"s_cbranch_scc1 {lp}")
    a.label(ld)

def cmp_flags(a, vd):
    a.e(f"v_cmp_eq_u32 s[{s_m2}:{s_m2+1}], s{s_nonce}, v{vd}")
    a.e(f"v_cmp_eq_u32 s[{s_m3}:{s_m3+1}], s{s_nonce+1}, v{vd+1}")
    a.e("s_nop 3")
    a.e(f"s_and_b64 s[{s_m2}:{s_m2+1}], s[{s_m2}:{s_m2+1}], s[{s_m3}:{s_m3+1}]")
    a.e(f"s_and_b64 s[{s_m2}:{s_m2+1}], s[{s_m2}:{s_m2+1}], s[{s_m}:{s_m+1}]")
    a.e(f"s_cmp_eq_u64 s[{s_m2}:{s_m2+1}], s[{s_m}:{s_m+1}]")

def poll(a, voff):
    lp = a.newlabel("Lpoll"); ld = a.newlabel("Lpolld")
    a.e(f"s_mov_b32 s{s_cnt}, 0")
    a.label(lp)
    a.e(f"buffer_load_dwordx2 v[{v_t2}:{v_t3}], v{voff}, {srd(sWS)}, 0 offen sc1")
    a.e("s_waitcnt vmcnt(0)")
    cmp_flags(a, v_t2)
    a.e(f"s_cbranch_scc1 {ld}")
    a.e("s_sleep 1")
    a.e(f"s_add_u32 s{s_cnt}, s{s_cnt}, 1")
    a.e(f"s_cmp_lt_u32 s{s_cnt}, 100000")
    a.e(f"s_cbranch_scc1 {lp}")
    a.label(ld)

def flag_issue(a, voff, vdst, tag, track=True):
    ins = f"buffer_load_dwordx2 v[{vdst}:{vdst+1}], v{voff}, {srd(sWS)}, 0 offen sc1"
    (a.vmem(ins, tag) if track else a.e(ins))

def flag_check(a, vdst, tag, track=True):
    if track: a.wait_vm(tag)
    else: a.e("s_waitcnt vmcnt(0)")
    cmp_flags(a, vdst)

def get_nonce(a):
    a.wait_vm("NON")
    lp = a.newlabel("Lnp"); ld = a.newlabel("Lnd")
    a.e(f"s_mov_b32 s{s_cnt}, 0")
    a.label(lp)
    a.e(f"v_readfirstlane_b32 s{s_nonce}, v{v_non}")
    a.e(f"v_readfirstlane_b32 s{s_nonce+1}, v{v_non+1}")
    a.e("s_nop 3")
    a.e(f"s_cmp_lg_u32 s{s_nonce}, 0")
    a.e(f"s_cbranch_scc1 {ld}")
    a.e("s_sleep 2")
    a.e(f"v_mov_b32 v{v_t2}, 0")
    a.e(f"buffer_load_dwordx2 v[{v_non}:{v_non+1}], v{v_t2}, {srd(sDBG)}, 0 offen sc1")
    a.e("s_waitcnt vmcnt(0)")
    a.e(f"s_add_u32 s{s_cnt}, s{s_cnt}, 1")
    a.e(f"s_cmp_lt_u32 s{s_cnt}, 100000")
    a.e(f"s_cbranch_scc1 {lp}")
    a.label(ld)

def kv_flag_setup(a):
    e = a.e
    e(f"s_lshl_b32 s{s_tmp}, s{s_rb}, 4")
    e(f"s_add_u32 s{s_fl}, s{s_tmp}, s{s_cg}")
    e(f"s_lshl_b32 s{s_fl}, s{s_fl}, 7")
    e(f"s_add_u32 s{s_fl}, s{s_fl}, {FL}")
    e(f"s_lshl_b32 s{s_tmp2}, s{s_p}, 1")
    e(f"s_add_u32 s{s_tmp}, s{s_tmp}, s{s_tmp2}")
    e(f"v_lshrrev_b32 v{v_kf}, 1, v{v_lane}")
    e(f"v_lshlrev_b32 v{v_kf}, 4, v{v_kf}")
    e(f"v_sub_u32 v{v_kf}, s{s_tmp}, v{v_kf}")
    e(f"v_and_b32 v{v_t0}, 1, v{v_lane}")
    e(f"v_add_u32 v{v_kf}, v{v_kf}, v{v_t0}")
    e(f"v_and_b32 v{v_kf}, 255, v{v_kf}")
    e(f"v_lshlrev_b32 v{v_kf}, 7, v{v_kf}")
    e(f"v_add_u32 v{v_kf}, {FL}, v{v_kf}")
    e(f"s_mov_b32 s{s_m}, 63")
    e(f"s_cmp_eq_u32 s{s_rb}, 1")
    e(f"s_cselect_b32 s{s_m}, 15, s{s_m}")
    e(f"s_cmp_eq_u32 s{s_rb}, 0")
    e(f"s_cselect_b32 s{s_m}, 3, s{s_m}")
    e(f"s_mov_b32 s{s_m+1}, 0")
    e(f"s_lshl_b32 s{s_tmp3}, s{s_cg}, 6")
    e(f"s_lshl_b32 s{s_tmp4}, s{s_rb}, 2")
    e(f"s_add_u32 s{s_tmp3}, s{s_tmp3}, s{s_tmp4}")
    e(f"s_lshl_b32 s{s_tmp3}, s{s_tmp3}, 11")
    e(f"s_mul_i32 s{s_tmp4}, s{s_wv}, 3072")
    e(f"s_add_u32 s{s_kvb}, s{s_tmp3}, s{s_tmp4}")
    e(f"s_lshl_b32 s{s_tmp}, s{s_rg}, 11")
    e(f"s_lshl_b32 s{s_tmp2}, s{s_cgp}, 10")
    e(f"s_add_u32 s{s_tmp2}, s{s_tmp2}, s{s_tmp}")
    e(f"s_add_u32 s{s_krd}, s{s_tmp2}, {ATK}")
    e(f"s_lshl_b32 s{s_tmp2}, s{s_cgp}, 8")
    e(f"s_add_u32 s{s_tmp2}, s{s_tmp2}, s{s_tmp}")
    e(f"s_add_u32 s{s_vrdb}, s{s_tmp2}, {ATV}")
    e(f"s_lshl_b32 s{s_qb}, s{s_rb}, 2")
    e(f"s_add_u32 s{s_qb}, s{s_qb}, s{s_rg}")
    e(f"s_sub_i32 s{s_first}, 8, s{s_qb}")
    e(f"s_max_i32 s{s_first}, s{s_first}, 0")
    e(f"s_mov_b32 s{s_vm}, 0xffff")
    e(f"s_mov_b32 s{s_vm+1}, 0xffff")
    s3_addr_setup(a)
    e(f"s_lshl_b32 s{s_tmp}, s{s_cg}, 3")
    e(f"s_add_u32 s{s_tmp}, s{s_tmp}, s{s_wv}")
    e(f"s_lshl_b32 s{s_tmp}, s{s_tmp}, 3")
    e(f"s_lshl_b32 s{s_flh}, s{s_rb}, 10")
    e(f"s_add_u32 s{s_flh}, s{s_flh}, s{s_tmp}")
    e(f"s_add_u32 s{s_flh}, s{s_flh}, {FL + 32768}")
    e(f"s_lshr_b32 s{s_flc}, s{s_rb3}, 1")
    e(f"s_lshl_b32 s{s_flc}, s{s_flc}, 10")
    e(f"s_add_u32 s{s_flc}, s{s_flc}, {FL + 32768}")

def kv_ops(a, guard=True):
    ops = []
    for reg, lds, tag in ((KF, ATK, "AK"), (VF, ATV, "AV")):
        for i in range(3):
            def f(reg=reg, lds=lds, tag=tag, i=i):
                l = None
                if guard:
                    l = a.newlabel("Lkvg")
                    a.e(f"s_cmp_eq_u32 s{s_ok}, 0")
                    a.e(f"s_cbranch_scc1 {l}")
                a.e(f"s_mul_i32 s{s_tmp4}, s{s_wv}, 3072")
                a.e(f"s_add_u32 s{s_tmp}, s{s_kvb}, {reg - 16384 + i*1024}")
                dma(a, v_l16, sWS, f"s{s_tmp}", s_tmp4, lds + i*1024, tag, sc1=True)
                if l: a.label(l)
            ops.append(f)
    return ops

def issue_kv(a, which, track=True):
    sv = list(a.vm)
    for f in kv_ops(a, guard=False): f()
    if not track: a.vm = sv

def s1_items(pieces, slot_of):
    items = []
    for i in pieces:
        sl = slot_of[i]
        if i < 4:
            for s in range(8):
                items.append(dict(pc=i, ks=8*i + s, tl=0, vb=v_trn, off=s*2048, sec=512, sl=sl, xs=s))
        else:
            j = i - 4
            for s in range(4):
                for tl in range(2):
                    items.append(dict(pc=i, ks=4*j + s, tl=tl, vb=(v_trw2 if tl else v_trw), off=None, s=s, sl=sl, xs=None))
    return items

def stage1(a, isv):
    raise NotImplementedError

ORDER = CFG['order']
T3U = env('GEN_T3U', 99)
FLUSH = 1
USPLIT = CFG['usplit']

class S1:
    D = env('GEN_D', 5)
    def __init__(self, a):
        self.a = a; self.lg = Lg(a); self.n = 0
        self.fifo = []
        self.slot_of = dict(CFG["init"])
        self.w2_slot = {}
        self.base = {}
        self.sched = CFG["sched"]
    def sync(self, u, extra_need=(), hook=None):
        a = self.a
        i = ORDER[u]
        need = [f"P{i}"] + ([f"X{i}"] if i < 4 else []) + list(extra_need)
        if FLUSH: self.pump(len(self.fifo))
        if u <= CFG['lg']:
            a.wait_vm(need, lgkm0=True)
            self.lg.clear()
        else:
            a.wait_vm(need)
        a.e("s_barrier")
        if STAMPS2: stamp(a)
        if hook: hook()
        for kind, pc, sl in self.sched.get(u, []):
            if kind == "P": self.slot_of[pc] = sl; self.fifo += piece_ops(a, pc, sl)
            elif kind == "X": self.fifo += x_ops(a, pc)
            else: self.w2_slot[pc] = sl; self.fifo += w2_ops(a, pc, sl)
        self.base = {}
    def pump(self, n=1):
        for _ in range(n):
            if self.fifo: self.fifo.pop(0)()
    def read(self, it):
        a = self.a
        b = BF + (it["n"] % 8) * 4
        sl = it["sl"]
        if it["xs"] is not None:
            s = it["xs"]; xq = it["pc"]
            r = v_t0 + (s & 1)
            a.e(f"v_xor_b32 v{r}, {s*32}, v{v_xrd}")
            off = XSLOT[xq]*SLOT
            if off > 65535:
                a.e(f"v_add_u32 v{r}, {off}, v{r}"); off = 0
            a.e(f"ds_read_b128 {vr(XF + it['ks']*4, 4)}, v{r} offset:{off}")
            self.lg.add(("x", it["ks"]))
        vb = it["vb"]
        if it["pc"] < 4:
            off, sec = it["off"], it["sec"]
            o = sl*SLOT + off
            if o + sec > 65535:
                if vb not in self.base:
                    a.e(f"v_add_u32 v{v_t4}, {sl*SLOT}, v{vb}"); self.base[vb] = v_t4
                vb = self.base[vb]; o = off
            a.e(f"ds_read_b64_tr_b16 {vr(b,2)}, v{vb} offset:{o}")
            a.e(f"ds_read_b64_tr_b16 {vr(b+2,2)}, v{vb} offset:{o + sec}")
        else:
            s = it["s"]; tl = it["tl"]
            if tl == 1:
                o = sl*SLOT + s*16*192; sec = 4*192
                if o + sec > 65535 - 16384:
                    if vb not in self.base:
                        a.e(f"v_add_u32 v{v_t5}, {sl*SLOT}, v{vb}"); self.base[vb] = v_t5
                    vb = self.base[vb]; o = s*16*192
                a.e(f"ds_read_b64_tr_b16 {vr(b,2)}, v{vb} offset:{o}")
                a.e(f"ds_read_b64_tr_b16 {vr(b+2,2)}, v{vb} offset:{o + sec}")
            else:
                if s == 0:
                    a.e(f"v_add_u32 v{v_t4}, {sl*SLOT}, v{v_trw}")
                    a.e(f"v_add_u32 v{v_t0}, {sl*SLOT}, v{v_omg2}")
                else:
                    a.e(f"v_add_u32 v{v_t4}, s{s_k16}, v{v_t4}")
                    a.e(f"v_add_u32 v{v_t0}, s{s_k16}, v{v_t0}")
                a.e(f"ds_read_b64_tr_b16 {vr(b,2)}, v{v_t4}")
                a.e(f"ds_read_b64_tr_b16 {vr(b+2,2)}, v{v_t0}")
        self.lg.add(("b", it["n"])); self.lg.add(("b", it["n"]))
    def mm(self, it, isv):
        a = self.a
        self.lg.wait([("b", it["n"]), ("x", it["ks"])])
        b = BF + (it["n"] % 8) * 4
        if it["pc"] < 4:
            acc = ACC2
            cin = "0" if it["ks"] == 0 else acc
            if isv: mfma(a, acc, XF + it["ks"]*4, b, cin)
            else: mfma(a, acc, b, XF + it["ks"]*4, cin)
        else:
            acc = ACC + 16*it["tl"]
            cin = "0" if it["ks"] == 0 else acc
            mfma(a, acc, b, XF + it["ks"]*4, cin)

ACC2 = MASKF
s_k16 = 93

def build_maskd(a):
    e = a.e
    e(f"v_and_b32 v{v_t2}, 31, v{v_lane}")
    e(f"v_lshlrev_b32 v{v_t3}, 2, v{v_hi}")
    e(f"v_sub_u32 v{v_t2}, v{v_t2}, v{v_t3}")
    e(f"v_mov_b32 v{v_t3}, 0xf149f2ca")
    for r in range(16):
        cr = (r & 3) + 8 * (r >> 2)
        e(f"v_cmp_gt_i32 vcc, {cr}, v{v_t2}")
        e("s_nop 1")
        e(f"v_cndmask_b32 v{MASKD+r}, 0, v{v_t3}, vcc")

PRE = env("GEN_PRE", 2)
def run_stage1(a):
    e = a.e
    a.c("================ stage 1 ================")
    D = S1.D
    base_lines = a.lines
    outs = []
    ns0 = a.nstamp; vm0 = list(a.vm)
    state = {}
    def hook(u, st):
        if u == 1 and TOUCH >= 2 and TOUCH not in (7, 9): touch(a, (sW2, sWO), 240)
        if T3U <= u < T3U + 4: st.fifo.append(lambda u=u: touch_l2_s3(a, u - T3U, 4))
        if u == CFG['non']:
            a.e(f"v_mov_b32 v{v_t2}, 0")
            a.vmem(f"buffer_load_dwordx2 v[{v_non}:{v_non+1}], v{v_t2}, {srd(sDBG)}, 0 offen sc1", "NON")
        if u == SIG0:
            get_nonce(a); signal(a, 0)
        if u == CFG["kvi"]:
            flag_issue(a, v_kf, v_non + 2, "FKV")
        if u == CFG["kvc"]:
            flag_check(a, v_non + 2, "FKV")
            a.e(f"s_cselect_b32 s{s_ok}, 1, 0")
            st.fifo = kv_ops(a) + st.fifo
    def do_mm(st, pend, isv):
        it = pend.pop(0)
        st.mm(it, isv)
        if it["pc"] == 3 and it["ks"] == 31: state["kvdone"] = 0
        elif "kvdone" in state:
            state["kvdone"] += 1
            if state["kvdone"] == 2:
                a.e("s_nop 7")
                pack_tile(a, ACC2, ACC2, False)
                store_pk(a, ACC2, s_st0, "ST0")
        st.pump(1)
    def unit(st, u, pend, n, isv, q0=0, q1=8, items=None):
        pc = ORDER[u]
        if items is None:
            if u <= CFG["lg"]:
                for _ in range(min(PRE, len(pend))): do_mm(st, pend, isv)
            st.sync(u, ["ST0"] if u == SIG0 else [], lambda: hook(u, st))
            items = s1_items([pc], st.slot_of)
            for it in items: it["n"] = n; n += 1
        for q in range(q0, q1):
            st.read(items[q]); pend.append(items[q])
            if len(pend) > D: do_mm(st, pend, isv)
            elif q % 2 == 1 and len(pend) > 2 and u > 0 and pend[0]["pc"] != pc: do_mm(st, pend, isv)
        return n, items
    for isv in (0, 1):
        a.lines = []; a.vm = list(vm0); a.nstamp = ns0; state.clear()
        st = S1(a)
        if isv: a.label("L_s1v")
        pend = []; n = 0
        for u in range(0, USPLIT):
            n, _ = unit(st, u, pend, n, isv)
        n, items = unit(st, USPLIT, pend, n, isv, 0, 0)
        q = 0
        while any(it["pc"] < 4 for it in pend):
            unit(st, USPLIT, pend, n, isv, q, q + 1, items); q += 1
            if q >= 8:
                while any(it["pc"] < 4 for it in pend): do_mm(st, pend, isv)
        st.pump(len(st.fifo))
        if not isv: a.e("s_branch L_s1w")
        outs.append((a.lines, list(a.vm), st, pend, n, items, q, dict(state)))
    assert outs[0][1] == outs[1][1]
    a.lines = base_lines + outs[0][0] + outs[1][0]
    _, vm, st, pend, n, items_s, q0, stt = outs[1]
    a.vm = vm
    a.label("L_s1w")
    unit(st, USPLIT, pend, n, 0, q0, 8, items_s)
    for u in range(USPLIT + 1, 12):
        n, _ = unit(st, u, pend, n, 0)
    while pend: do_mm(st, pend, 0)
    st.pump(len(st.fifo))
    e("s_nop 7"); e("s_nop 3")
    gate(a)
    pack_tile(a, ACC + 16, BF + 8, True)
    store_pk(a, BF + 8, s_st2, "ST1")
    pack_tile(a, ACC, BF, False)
    l = a.newlabel("Lq"); l2 = a.newlabel("Lqd")
    e(f"s_cmp_eq_u32 s{s_cgp}, 0")
    e(f"s_cbranch_scc1 {l}")
    for q in range(8): e(f"v_pk_max_i16 v{BF+q}, v{BF+q}, 0")
    a.label(l)
    store_pk(a, BF, s_st1, "ST1")
    return st.w2_slot

SIG0 = CFG['sig0']

def gate(a):
    e = a.e
    l = a.newlabel("Lgate")
    e(f"s_cmp_lg_u32 s{s_cg}, 15")
    e(f"s_cbranch_scc1 {l}")
    e(f"s_cmp_lg_u32 s{s_cgp}, 1")
    e(f"s_cbranch_scc1 {l}")
    e(f"v_cvt_pk_bf16_f32 v{v_t1}, v{ACC+16}, v{ACC+16}")
    e(f"v_lshlrev_b32 v{v_t1}, 16, v{v_t1}")
    e(f"v_mul_f32 v{v_t1}, 0xbfb8aa3b, v{v_t1}")
    e(f"v_exp_f32 v{v_t1}, v{v_t1}")
    e("s_nop 0")
    e(f"v_add_f32 v{v_t1}, 1.0, v{v_t1}")
    e(f"v_rcp_f32 v{v_t1}, v{v_t1}")
    e("s_nop 0")
    e(f"v_cvt_pk_bf16_f32 v{v_t1}, v{v_t1}, v{v_t1}")
    e(f"v_lshlrev_b32 v{v_t1}, 16, v{v_t1}")
    e(f"v_lshlrev_b32 v{v_t0}, 2, v{v_lane}")
    e(f"s_lshl_b32 s{s_tmp}, s{s_rb}, 2")
    e(f"s_add_u32 s{s_tmp}, s{s_tmp}, s{s_rg}")
    e(f"s_lshl_b32 s{s_tmp}, s{s_tmp}, 7")
    e(f"s_add_u32 s{s_tmp}, s{s_tmp}, {GB}")
    e(f"s_mov_b64 s[{s_exec}:{s_exec+1}], exec")
    e("s_mov_b32 exec_lo, -1")
    e("s_mov_b32 exec_hi, 0")
    e(f"buffer_store_dword v{v_t1}, v{v_t0}, {srd(sWS)}, s{s_tmp} offen sc1")
    e(f"s_mov_b64 exec, s[{s_exec}:{s_exec+1}]")
    a.label(l)

def Sreg(b):
    if b == 0: return MASKF
    if b == 8: return MASKD
    return 64 + 16*(b-1)
KFR = 176; QFR = 212; VROT = 216; OACC = 232
v_max = 248; v_max2 = 249; v_vrd = 250; v_krd = 251

def AFreg(n):
    if n < 10: return 176 + 4*n
    if n < 14: return 48 + 4*(n-10)
    if n < 18: return 160 + 4*(n-14)
    return 144 + 4*(n-18)
def AOreg(n):
    return 128 + 4*n if n < 4 else 32 + 4*(n-4)
BF3 = 64; ACB = 96; ACA = 216

def s3_addr_setup(a):
    e = a.e
    e(f"s_lshl_b32 s{s_tmp3}, s{s_rb3}, 1")
    e(f"s_add_u32 s{s_tmp3}, s{s_tmp3}, s{s_cgp}")
    e(f"s_mul_i32 s{s_a3}, s{s_tmp3}, {HROW}")
    e(f"s_lshl_b32 s{s_tmp}, s{s_rg}, 10")
    e(f"s_add_u32 s{s_a3}, s{s_a3}, s{s_tmp}")
    e(f"s_add_u32 s{s_a3}, s{s_a3}, {HF}")
    e(f"s_lshl_b32 s{s_a3o}, s{s_tmp3}, 15")
    e(f"s_add_u32 s{s_a3o}, s{s_a3o}, s{s_tmp}")
    e(f"s_add_u32 s{s_a3o}, s{s_a3o}, {OF}")
    e(f"s_lshl_b32 s{s_ga}, s{s_tmp3}, 7")
    e(f"s_add_u32 s{s_ga}, s{s_ga}, {GB}")

def h_loads(a, ns, track=True):
    e = a.e
    for n in ns:
        if n == "g":
            e(f"v_and_b32 v{v_t0}, 31, v{v_lane}")
            e(f"v_lshlrev_b32 v{v_t0}, 2, v{v_t0}")
            ins = f"buffer_load_dword v{v_g2}, v{v_t0}, {srd(sWS)}, s{s_ga} offen sc1"
            (a.vmem(ins, "G") if track else e(ins))
            continue
        e(f"s_add_u32 s{s_tmp}, s{s_a3}, {n*4096}")
        if n == 21:
            e(f"s_cmp_ge_u32 s{s_rg}, 2")
            e(f"s_cselect_b32 s{s_tmp}, {OOB}, s{s_tmp}")
        ins = f"buffer_load_dwordx4 {vr(AFreg(n),4)}, v{v_l16}, {srd(sWS)}, s{s_tmp} offen sc1"
        (a.vmem(ins, f"H{n}") if track else e(ins))

def guarded_h_loads(a, ns, track=True):
    l = a.newlabel("Lhl")
    a.e(f"s_cmp_eq_u32 s{s_ok}, 0")
    a.e(f"s_cbranch_scc1 {l}")
    h_loads(a, ns, track)
    a.label(l)

def flags16(a, phase, vdst):
    e = a.e
    e(f"s_lshr_b32 s{s_tmp}, s{s_rb3}, 1")
    e(f"s_lshl_b32 s{s_tmp}, s{s_tmp}, 11")
    e(f"s_add_u32 s{s_tmp}, s{s_tmp}, {FL + phase*32768}")
    e(f"v_and_b32 v{vdst}, 15, v{v_lane}")
    e(f"v_lshlrev_b32 v{vdst}, 7, v{vdst}")
    e(f"v_add_u32 v{vdst}, s{s_tmp}, v{vdst}")
    e(f"s_mov_b32 s{s_m}, 0xffff")
    e(f"s_mov_b32 s{s_m+1}, 0")

SIGB = env('GEN_SIGB', 1)
HB_ISSUE, HB_CHECK = env("GEN_HBI", 5), env("GEN_HBC", 3)

def attention(a, slot_of):
    e = a.e
    a.c("================ attention ================")
    e(f"s_lshl_b32 s{s_tmp}, s{s_rg}, 10")
    e(f"s_add_u32 s{s_tmp}, s{s_tmp}, {ATQ}")
    e(f"v_add_u32 v{v_t0}, s{s_tmp}, v{v_l16}")
    l = a.newlabel("Lqx")
    e(f"s_cmp_lg_u32 s{s_cgp}, 0")
    e(f"s_cbranch_scc1 {l}")
    e(f"ds_write_b128 v{v_t0}, {vr(BF+4,4)}")
    for i in range(4): e(f"v_mov_b32 v{QFR+i}, v{BF+i}")
    a.label(l)
    l = a.newlabel("Lkvok")
    e(f"s_cmp_lg_u32 s{s_ok}, 0")
    e(f"s_cbranch_scc1 {l}")
    poll(a, v_kf)
    issue_kv(a, "KV", track=False)
    e("s_waitcnt vmcnt(0)")
    a.label(l)
    l = a.newlabel("Lgm")
    e(f"s_cmp_eq_u32 s{s_gw}, 0")
    e(f"s_cbranch_scc1 {l}")
    build_maskd(a)
    a.label(l)
    stamp(a)
    e(f"v_add_u32 v{v_krd}, s{s_krd}, v{v_l16}")
    e(f"v_mov_b32 v{v_t3}, 0xf149f2ca")
    for r in range(16):
        e(f"v_sub_f32 v{MASKF+r}, v{v_t3}, v{MASKD+r}")
    a.wait_vm(["AK", "AV"], lgkm0=True)
    e("s_barrier")
    stamp(a)
    lg = Lg(a)
    l = a.newlabel("Lqr")
    e(f"s_cmp_eq_u32 s{s_cgp}, 0")
    e(f"s_cbranch_scc1 {l}")
    e(f"ds_read_b128 {vr(QFR,4)}, v{v_t0}")
    a.label(l)
    for b in range(8, -1, -1):
        e(f"ds_read_b128 {vr(KFR+4*b,4)}, v{v_krd} offset:{b*2048}"); lg.add(("k", b))
    fill = []
    for pc, sl in zip((4, 5), CFG["post"]):
        slot_of[pc] = sl; fill += w2_ops(a, pc, sl)
    c = 0.25 * math.log2(math.e)
    cbits = struct.unpack("<I", struct.pack("<f", c))[0]
    misc = [f"v_mov_b32 v{VROT+i}, 0x3f803f80" for i in range(16)]
    misc += [f"v_mov_b32 v{v_c2}, 0x{cbits:08x}", f"v_mov_b32 v{v_c2+1}, 0x{cbits:08x}", f"v_add_u32 v{v_vrd}, s{s_vrdb}, v{v_l16}"]
    for b in range(8, -1, -1):
        lg.wait([("k", b)])
        S = Sreg(b)
        mfma(a, S, KFR + 4*b, QFR, S if b in (0, 8) else "0")
        for _ in range(3):
            if misc: e(misc.pop(0))
        if fill and b % 2 == 0: fill.pop(0)()
    while misc: e(misc.pop(0))
    while fill: fill.pop(0)()
    if SIGB == 1:
        a.wait_vm("ST1"); signal_wave(a)
    lmax = a.newlabel("Lmaxd")
    e("s_nop 4")
    for b in range(8, -1, -1):
        S = Sreg(b)
        if b < 8:
            e(f"s_cmp_gt_u32 s{s_first}, {b}")
            e(f"s_cbranch_scc1 {lmax}")
        for q in range(8):
            if b == 8 and q == 0:
                e(f"v_max_f32 v{v_max}, v{S}, v{S+1}")
            else:
                e(f"v_max3_f32 v{v_max}, v{S+2*q}, v{S+2*q+1}, v{v_max}")
    a.label(lmax)
    e(f"v_mov_b32 v{v_max2}, v{v_max}")
    e("s_nop 1")
    e(f"v_permlane32_swap_b32 v{v_max}, v{v_max2}")
    e("s_nop 1")
    e(f"v_max_f32 v{v_max}, v{v_max}, v{v_max2}")
    e(f"v_mul_f32 v{v_mc}, v{v_c2}, v{v_max}")
    e(f"v_sub_f32 v{v_mc}, 0, v{v_mc}")
    e(f"v_mov_b32 v{v_mc+1}, v{v_mc}")
    if SIGB == 2:
        a.wait_vm("ST1"); signal_wave(a)
    def softmax_block(b):
        S = Sreg(b)
        for q in range(8):
            e(f"v_pk_fma_f32 v[{S+2*q}:{S+2*q+1}], v[{S+2*q}:{S+2*q+1}], v[{v_c2}:{v_c2+1}], v[{v_mc}:{v_mc+1}]")
        for r in range(16):
            e(f"v_exp_f32 v{S+r}, v{S+r}")
        for q in range(8):
            e(f"v_cvt_pk_bf16_f32 v{S+q}, v{S+2*q}, v{S+2*q+1}")
    softmax_block(8)
    e("s_barrier")
    stamp(a)
    for pc, sl in ((6, CFG['atk']), (7, CFG['atk']+1)):
        slot_of[pc] = sl; issue_w2_piece(a, pc, sl)
    lg = Lg(a)
    def vread(n):
        b = 8 - n//2; m = n % 2
        e(f"ds_read_b128 {vr(VROT + 4*(n%4), 4)}, v{v_vrd} offset:{b*2048 + m*1024}")
        lg.add(("v", n))
    e(f"s_mov_b64 exec, s[{s_vm}:{s_vm+1}]")
    vread(0); vread(1)
    e("s_mov_b64 exec, -1")
    lpv = a.newlabel("Lpvd")
    e(f"s_mov_b32 s{s_ok}, 0")
    skip_labels = {}
    hl = list(range(22)) + ["g"]
    per = -(-len(hl) // (HB_CHECK + 1))
    def post_block(b, track):
        if b == HB_ISSUE: hflag_issue(a, track)
        if b == HB_CHECK:
            if track: a.wait_vm("FH")
            else: e("s_waitcnt vmcnt(0)")
            cmp_flags4(a, 252)
            e(f"s_cselect_b32 s{s_ok}, 1, 0")
        if b <= HB_CHECK:
            i0 = (HB_CHECK - b) * per
            if hl[i0:i0+per]: guarded_h_loads(a, hl[i0:i0+per], track)
    for b in range(8, -1, -1):
        S = Sreg(b)
        n0 = 2*(8 - b)
        if b < 8:
            skip_labels[b] = a.newlabel("Lskip")
            e(f"s_cmp_gt_u32 s{s_first}, {b}")
            e(f"s_cbranch_scc1 {skip_labels[b]}")
        if b > 0:
            e(f"s_mov_b64 exec, s[{s_vm}:{s_vm+1}]")
            vread(n0 + 2); vread(n0 + 3)
            e("s_mov_b64 exec, -1")
        if b < 8: softmax_block(b)
        lg.wait([("v", n0), ("v", n0+1)])
        e("s_nop 0")
        mfma(a, OACC, VROT + 4*(n0 % 4), S, "0" if b == 8 else OACC)
        mfma(a, OACC, VROT + 4*((n0+1) % 4), S + 4, OACC)
        post_block(b, True)
    e(f"s_branch {lpv}")
    for b in range(7, -1, -1):
        a.label(skip_labels[b])
        post_block(b, False)
    a.label(lpv)
    e("s_waitcnt lgkmcnt(0)")
    e("s_nop 7"); e("s_nop 3")
    e(f"v_rcp_f32 v{v_max}, v{OACC+8}")
    e("s_nop 0")
    for r in range(8):
        e(f"v_mul_f32 v{OACC+r}, v{OACC+r}, v{v_max}")
    for q in range(4):
        e(f"v_cvt_pk_bf16_f32 v{248+q}, v{OACC+2*q}, v{OACC+2*q+1}")
    e(f"buffer_store_dwordx4 v[248:251], v{v_l16}, {srd(sWS)}, s{s_oa} offen sc1")
    l = a.newlabel("Lhok")
    e(f"s_cmp_lg_u32 s{s_ok}, 0")
    e(f"s_cbranch_scc1 {l}")
    hpoll(a)
    h_loads(a, list(range(22)) + ["g"], track=False)
    a.label(l)
    stamp(a)
s_oa = 94

def compute3(a, pieces, slot_of, cnt):
    e = a.e
    work = []
    for pc in pieces:
        for u in range(2):
            if pc <= 10: af = AFreg(2*pc + u); tag = f"H{2*pc+u}"; acc = ACB; first = (pc == 0 and u == 0)
            else: af = AOreg(2*(pc-11) + u); tag = f"O{2*(pc-11)+u}"; acc = ACA; first = (pc == 11 and u == 0)
            for ct in range(2):
                work.append((slot_of[pc], u, ct, af, tag, acc + 16*ct, first))
    lg = Lg(a)
    cur = {}
    def rd(w):
        sl, u, ct, af, tag, acc, first = work[w]
        vb = v_tr3b if ct else v_tr3
        off = sl*SLOT + u*8192
        if off + 1024 > 65535:
            r = v_t5 if ct else v_t4
            if cur.get(ct) != sl:
                e(f"v_add_u32 v{r}, {sl*SLOT}, v{vb}")
                cur[ct] = sl
            vb = r; off = u*8192
        b = BF3 + ((cnt[0] + w) % 8)*4
        e(f"ds_read_b64_tr_b16 {vr(b,2)}, v{vb} offset:{off}")
        e(f"ds_read_b64_tr_b16 {vr(b+2,2)}, v{vb} offset:{off + 1024}")
        lg.add(w); lg.add(w)
    D = 4
    for w in range(min(D, len(work))): rd(w)
    for w in range(len(work)):
        if w + D < len(work): rd(w + D)
        sl, u, ct, af, tag, acc, first = work[w]
        a.wait_vm(tag)
        lg.wait([w])
        b = BF3 + ((cnt[0] + w) % 8)*4
        mfma(a, acc, b, af, "0" if first else acc)
    cnt[0] += len(work)
    lg.drain()

S3J = env('GEN_S3J', 1)
def o_loads(a, track=True):
    for n in range(8):
        a.e(f"s_add_u32 s{s_tmp}, s{s_a3o}, {n*4096}")
        ins = f"buffer_load_dwordx4 {vr(AOreg(n),4)}, v{v_l16}, {srd(sWS)}, s{s_tmp} offen sc1"
        (a.vmem(ins, f"O{n}") if track else a.e(ins))

def o_check(a):
    e = a.e
    regs = [AOreg(n) + i for n in range(8) for i in range(4)]
    e(f"v_max3_u32 v{v_t2}, v{regs[0]}, v{regs[1]}, v{regs[2]}")
    i = 3
    while i < len(regs):
        if i + 1 < len(regs):
            e(f"v_max3_u32 v{v_t2}, v{regs[i]}, v{regs[i+1]}, v{v_t2}"); i += 2
        else:
            e(f"v_max_u32 v{v_t2}, v{regs[i]}, v{v_t2}"); i += 1
    e(f"v_cmp_eq_u32 vcc, -1, v{v_t2}")
    e("s_nop 3")
    e("s_cmp_eq_u64 vcc, 0")

def stage3(a, slot_of):
    e = a.e
    a.c("================ stage 3 ================")
    D = 4
    lg = Lg(a)
    fifo = []
    cur = {}
    V0 = CFG["atv"]
    def assign(pc, sl):
        slot_of[pc] = sl
        for f in w2_ops(a, pc, sl):
            f.tag = f"Q{pc}"; fifo.append(f)
    def o_verify():
        a.wait_vm("O7")
        lp = a.newlabel("Lop"); ld = a.newlabel("Lod")
        e(f"s_mov_b32 s{s_cnt}, 0")
        a.label(lp)
        o_check(a)
        e(f"s_cbranch_scc1 {ld}")
        o_loads(a, track=False)
        e("s_waitcnt vmcnt(0)")
        e(f"s_add_u32 s{s_cnt}, s{s_cnt}, 1")
        e(f"s_cmp_lt_u32 s{s_cnt}, 100000")
        e(f"s_cbranch_scc1 {lp}")
        a.label(ld)
        stamp(a)
    def o_ops():
        ops = []
        for n in range(8):
            def f(n=n):
                a.e(f"s_add_u32 s{s_tmp}, s{s_a3o}, {n*4096}")
                a.vmem(f"buffer_load_dwordx4 {vr(AOreg(n),4)}, v{v_l16}, {srd(sWS)}, s{s_tmp} offen sc1", f"O{n}")
            f.tag = f"O{n}"
            ops.append(f)
        return ops
    syncs = {
        S3J: (["Q4", "Q5", "Q6", "Q7"], lambda: (assign(8, V0), assign(9, V0 + 1))),
        4: ([], lambda: (assign(10, slot_of[0]), assign(11, slot_of[1]), assign(12, slot_of[2]))),
        6: ([], lambda: (assign(13, slot_of[3]), assign(14, slot_of[4]), fifo.extend(o_ops()))),
        8: (["Q8", "Q9"], None),
        10: (["Q10", "Q11", "Q12"], None),
        13: (["Q13", "Q14"], None),
    }
    items = []
    for pc in range(15):
        for u in range(2):
            for ct in range(2):
                items.append((pc, u, ct))
    def rd(w):
        pc, u, ct = items[w]
        if u == 0 and ct == 0 and pc in syncs:
            tags, act = syncs[pc]
            while any(f.tag in tags for f in fifo): fifo.pop(0)()
            a.wait_vm(tags)
            e("s_barrier")
            if STAMPS2: stamp(a)
            if act: act()
        sl = slot_of[pc]
        vb = v_tr3b if ct else v_tr3
        off = sl*SLOT + u*8192
        if off + 1024 > 65535:
            r = v_t5 if ct else v_t4
            if cur.get(ct) != sl:
                e(f"v_add_u32 v{r}, {sl*SLOT}, v{vb}")
                cur[ct] = sl
            vb = r; off = u*8192
        b = BF3 + (w % 8)*4
        e(f"ds_read_b64_tr_b16 {vr(b,2)}, v{vb} offset:{off}")
        e(f"ds_read_b64_tr_b16 {vr(b+2,2)}, v{vb} offset:{off + 1024}")
        lg.add(w); lg.add(w)
    done = set(["Q4", "Q5", "Q6", "Q7"])
    for w in range(D): rd(w)
    for w in range(len(items)):
        if w + D < len(items):
            rd(w + D)
        pc, u, ct = items[w]
        if pc <= 10: af = AFreg(2*pc + u); tag = f"H{2*pc+u}"; acc = ACB; first = (pc == 0 and u == 0)
        else: af = AOreg(2*(pc-11) + u); tag = f"O{2*(pc-11)+u}"; acc = ACA; first = (pc == 11 and u == 0)
        if pc == 11 and u == 0 and ct == 0:
            while fifo: fifo.pop(0)()
            o_verify()
        a.wait_vm(tag)
        lg.wait([w])
        b = BF3 + (w % 8)*4
        mfma(a, acc + 16*ct, b, af, "0" if first else acc + 16*ct)
        if fifo: fifo.pop(0)()
        if pc >= 11:
            k = w - 44
            if k == 0:
                a.wait_vm("G")
                e(f"v_sub_f32 v{v_c2}, 1.0, v{v_g2}")
                e(f"v_cvt_pk_bf16_f32 v{v_c2}, v{v_c2}, v{v_c2}")
                e(f"v_lshlrev_b32 v{v_c2}, 16, v{v_c2}")
                e(f"v_mov_b32 v{v_c2+1}, v{v_c2}")
                e(f"v_mov_b32 v{v_g2+1}, v{v_g2}")
            elif 2 <= k < 10:
                for q in (2*(k-2), 2*(k-2)+1):
                    e(f"v_pk_mul_f32 v[{ACB+2*q}:{ACB+2*q+1}], v[{ACB+2*q}:{ACB+2*q+1}], v[{v_c2}:{v_c2+1}]")
    lg.drain()
    stamp(a)
    PS = [slot_of[p] for p in (5, 6, 7, 8)]
    e(f"s_cmp_eq_u32 s{s_rg}, 1"); e(f"s_movk_i32 s{s_tmp}, {PS[0]}"); e(f"s_cselect_b32 s{s_tmp}, {PS[1]}, s{s_tmp}")
    e(f"s_cmp_eq_u32 s{s_rg}, 2"); e(f"s_cselect_b32 s{s_tmp}, {PS[2]}, s{s_tmp}")
    e(f"s_cmp_eq_u32 s{s_rg}, 3"); e(f"s_cselect_b32 s{s_tmp}, {PS[3]}, s{s_tmp}")
    e(f"s_lshl_b32 s{s_tmp}, s{s_tmp}, 14")
    e(f"s_lshl_b32 s{s_tmp2}, s{s_cgp}, 13")
    e(f"s_add_u32 s{s_tmp}, s{s_tmp}, s{s_tmp2}")
    e(f"v_and_b32 v{v_t0}, 31, v{v_lane}")
    e(f"v_and_b32 v{v_t1}, 7, v{v_lane}")
    e(f"v_xor_b32 v{v_t1}, v{v_t1}, v{v_hi}")
    e(f"v_lshlrev_b32 v{v_t1}, 4, v{v_t1}")
    e(f"v_lshl_add_u32 v{v_t0}, v{v_t0}, 8, v{v_t1}")
    e(f"v_add_u32 v{v_t0}, s{s_tmp}, v{v_t0}")
    e("s_nop 4")
    for ct in range(2):
        for g4 in range(4):
            b0 = 16*ct + 4*g4
            for q in range(2):
                e(f"v_pk_fma_f32 v[{ACB+b0+2*q}:{ACB+b0+2*q+1}], v[{ACA+b0+2*q}:{ACA+b0+2*q+1}], v[{v_g2}:{v_g2+1}], v[{ACB+b0+2*q}:{ACB+b0+2*q+1}]")
            r = v_t2 + (g4 & 1)
            e(f"v_xor_b32 v{r}, {g4*32}, v{v_t0}")
            e(f"ds_write_b128 v{r}, {vr(ACB + b0, 4)} offset:{ct*128}")
    e(f"v_lshrrev_b32 v{v_t0}, 3, v0")
    e(f"v_and_b32 v{v_t1}, 7, v0")
    e(f"v_and_b32 v{v_t2}, 7, v{v_t0}")
    e(f"v_lshlrev_b32 v{v_t3}, 1, v{v_t1}")
    e(f"v_xor_b32 v{v_t2}, v{v_t2}, v{v_t3}")
    e(f"v_lshlrev_b32 v{v_t2}, 4, v{v_t2}")
    e(f"v_lshl_add_u32 v{v_t2}, v{v_t0}, 8, v{v_t2}")
    e(f"v_xor_b32 v{v_t3}, 16, v{v_t2}")
    e(f"v_add_u32 v{v_t4}, 0x10000, v{v_t2}")
    e(f"v_add_u32 v{v_t5}, 0x10000, v{v_t3}")
    e(f"v_add_u32 v{v_trn}, 0x20000, v{v_t2}")
    e(f"v_add_u32 v{v_trw}, 0x20000, v{v_t3}")
    e(f"v_lshlrev_b32 v{v_t0}, 10, v{v_t0}")
    e(f"v_lshl_add_u32 v{v_t0}, v{v_t1}, 4, v{v_t0}")
    e(f"s_lshl_b32 s{s_tmp}, s{s_rb3}, 16")
    e(f"s_lshl_b32 s{s_tmp2}, s{s_cb3}, 7")
    e(f"s_add_u32 s{s_tmp}, s{s_tmp}, s{s_tmp2}")
    e("s_waitcnt lgkmcnt(0)")
    e("s_barrier")
    for kq in range(4):
        off = PS[kq]*SLOT
        ra, rb_ = ((v_t2, v_t3), (v_t4, v_t5), (v_trn, v_trw))[off >> 16]
        e(f"ds_read_b128 {vr(64 + 8*kq, 4)}, v{ra} offset:{off & 0xffff}")
        e(f"ds_read_b128 {vr(68 + 8*kq, 4)}, v{rb_} offset:{off & 0xffff}")
    e("s_waitcnt lgkmcnt(4)")
    for q in range(4):
        e(f"v_pk_add_f32 v[{64+2*q}:{65+2*q}], v[{64+2*q}:{65+2*q}], v[{72+2*q}:{73+2*q}]")
    e("s_waitcnt lgkmcnt(0)")
    for q in range(4):
        e(f"v_pk_add_f32 v[{80+2*q}:{81+2*q}], v[{80+2*q}:{81+2*q}], v[{88+2*q}:{89+2*q}]")
    for q in range(4):
        e(f"v_pk_add_f32 v[{64+2*q}:{65+2*q}], v[{64+2*q}:{65+2*q}], v[{80+2*q}:{81+2*q}]")
    for q in range(4):
        e(f"v_cvt_pk_bf16_f32 v{64+q}, v{64+2*q}, v{65+2*q}")
    e(f"buffer_store_dwordx4 v[64:67], v{v_t0}, {srd(sOUT)}, s{s_tmp} offen {os.environ.get('GEN_OST','sc1').replace('_',' ')}")
    stamp(a, final=True)

def common_setup(a):
    e = a.e
    l = a.newlabel("Lcas")
    e(f"s_or_b32 s{s_nonce}, s{s_nonce}, 1")
    e(f"s_or_b32 s{s_tmp}, s{s_wv}, s2")
    e(f"s_cmp_lg_u32 s{s_tmp}, 0")
    e(f"s_cbranch_scc1 {l}")
    e(f"v_mov_b32 v{v_non}, s{s_nonce}")
    e(f"v_mov_b32 v{v_non+1}, s{s_nonce+1}")
    e(f"v_mov_b32 v{v_t4}, 0")
    e(f"s_mov_b64 s[{s_exec}:{s_exec+1}], exec")
    e("s_mov_b64 exec, 1")
    e(f"buffer_store_dwordx2 {vr(v_non,2)}, v{v_t4}, {srd(sDBG)}, 0 offen sc1")
    e(f"s_mov_b64 exec, s[{s_exec}:{s_exec+1}]")
    a.label(l)
    e(f"s_lshl_b32 s{s_tmp}, s{s_rb}, 2")
    e(f"s_add_u32 s{s_tmp}, s{s_tmp}, s{s_rg}")
    e(f"s_lshl_b32 s{s_oa}, s{s_tmp}, 15")
    e(f"s_lshl_b32 s{s_tmp2}, s{s_cg}, 1")
    e(f"s_add_u32 s{s_tmp2}, s{s_tmp2}, s{s_cgp}")
    e(f"s_lshl_b32 s{s_tmp2}, s{s_tmp2}, 10")
    e(f"s_add_u32 s{s_oa}, s{s_oa}, s{s_tmp2}")
    e(f"s_add_u32 s{s_oa}, s{s_oa}, {OF}")
    for i in range(4): e(f"v_mov_b32 v{ACC+i}, -1")
    a.vmem(f"buffer_store_dwordx4 {vr(ACC,4)}, v{v_l16}, {srd(sWS)}, s{s_oa} offen sc1", "SENT")
    e(f"v_and_b32 v{v_t0}, 31, v{v_lane}")
    e(f"v_lshrrev_b32 v{v_hi}, 5, v{v_lane}")
    e(f"v_and_b32 v{v_t1}, 15, v{v_lane}")
    e(f"v_xor_b32 v{v_t1}, v{v_t1}, v{v_hi}")
    e(f"v_lshlrev_b32 v{v_t1}, 4, v{v_t1}")
    e(f"v_lshl_add_u32 v{v_xrd}, v{v_t0}, 8, v{v_t1}")
    e(f"s_lshl_b32 s{s_tmp}, s{s_rg}, 13")
    e(f"v_add_u32 v{v_xrd}, s{s_tmp}, v{v_xrd}")
    e(f"v_and_b32 v{v_t0}, 15, v{v_lane}")
    e(f"v_lshrrev_b32 v{v_t1}, 2, v{v_t0}")
    e(f"v_bfe_u32 v{v_t2}, v{v_lane}, 4, 1")
    e(f"v_bfe_u32 v{v_t3}, v{v_lane}, 1, 1")
    e(f"v_lshl_add_u32 v{v_t2}, v{v_t2}, 1, v{v_t3}")
    e(f"v_and_b32 v{v_t3}, 1, v{v_lane}")
    e(f"v_lshlrev_b32 v{v_t3}, 3, v{v_t3}")
    e(f"v_lshl_add_u32 v{v_t2}, v{v_t2}, 4, v{v_t3}")
    e(f"v_lshrrev_b32 v{v_t3}, 1, v{v_t1}")
    e(f"v_xor_b32 v{v_t4}, s{s_cgp}, v{v_t3}")
    e(f"v_lshl_add_u32 v{v_t4}, v{v_t4}, 6, v{v_t2}")
    e(f"v_lshl_add_u32 v{v_t5}, v{v_hi}, 3, v{v_t1}")
    e(f"v_lshl_add_u32 v{v_trn}, v{v_t5}, 7, v{v_t4}")
    e(f"s_cmp_eq_u32 s{s_cgp}, 0")
    e(f"s_movk_i32 s{s_tmp}, 192")
    e(f"s_cselect_b32 s{s_tmp}, 64, s{s_tmp}")
    e(f"s_lshl_b32 s{s_k16}, s{s_tmp}, 4")
    e(f"s_lshl_b32 s{s_tmp2}, s{s_cgp}, 12")
    e(f"v_mad_u32_u24 v{v_trw}, v{v_t5}, s{s_tmp}, v{v_t2}")
    e(f"v_add_u32 v{v_trw}, s{s_tmp2}, v{v_trw}")
    e(f"s_lshl_b32 s{s_tmp}, s{s_tmp}, 2")
    e(f"v_add_u32 v{v_omg2}, s{s_tmp}, v{v_trw}")
    e(f"s_movk_i32 s{s_tmp}, 192")
    e(f"v_mad_u32_u24 v{v_trw2}, v{v_t5}, s{s_tmp}, v{v_t2}")
    e(f"s_lshl_b32 s{s_tmp2}, s{s_cgp}, 6")
    e(f"s_add_u32 s{s_tmp2}, s{s_tmp2}, {4096 + 64}")
    e(f"v_add_u32 v{v_trw2}, s{s_tmp2}, v{v_trw2}")
    e(f"v_lshl_add_u32 v{v_t4}, v{v_t3}, 6, v{v_t2}")
    e(f"v_lshl_add_u32 v{v_t5}, v{v_hi}, 2, v{v_t1}")
    e(f"v_lshl_add_u32 v{v_tr3}, v{v_t5}, 7, v{v_t4}")
    e(f"s_lshl_b32 s{s_tmp}, s{s_rg}, 11")
    e(f"v_add_u32 v{v_tr3}, s{s_tmp}, v{v_tr3}")
    e(f"v_xor_b32 v{v_tr3b}, 64, v{v_tr3}")

def wide_setup(a):
    e = a.e
    lq = a.newlabel("Lwq"); lj = a.newlabel("Lwj")
    e(f"s_cmp_lt_u32 s{s_wv}, 2")
    e(f"s_cbranch_scc1 {lq}")
    e(f"s_mov_b32 s{sPW}, s{sW1}"); e(f"s_mov_b32 s{sPW+1}, s{sW1+1}"); e(f"s_mov_b32 s{sPW+2}, {512*1376*2}"); e(f"s_mov_b32 s{sPW+3}, 0x00020000")
    e(f"s_sub_u32 s{s_tmp}, s{s_wv}, 2")
    e(f"s_lshl_b32 s{s_tmp}, s{s_tmp}, 7")
    e(f"s_movk_i32 s{s_tmp3}, 2752")
    e(f"s_movk_i32 s{s_tmp4}, 5462")
    for t in range(2):
        e(f"v_add_u32 v{v_t0}, s{s_tmp}, v{v_lane}")
        if t: e(f"v_add_u32 v{v_t0}, 64, v{v_t0}")
        e(f"v_mul_u32_u24 v{v_t1}, s{s_tmp4}, v{v_t0}")
        e(f"v_lshrrev_b32 v{v_t1}, 16, v{v_t1}")
        e(f"v_mul_u32_u24 v{v_t2}, 12, v{v_t1}")
        e(f"v_sub_u32 v{v_t0}, v{v_t0}, v{v_t2}")
        e(f"v_lshlrev_b32 v{v_t0}, 4, v{v_t0}")
        e(f"v_mad_u32_u24 v{v_wd0+t}, v{v_t1}, s{s_tmp3}, v{v_t0}")
    e(f"s_mul_i32 s{s_wbase}, s{s_cg}, 192")
    e(f"s_cmp_eq_u32 s{s_cg}, 15")
    e(f"s_cselect_b32 s{s_wbase}, {OOB}, s{s_wbase}")
    e(f"s_mov_b32 s{s_pstep}, {64*2752}")
    e(f"s_branch {lj}")
    a.label(lq)
    e(f"s_mov_b32 s{sPW}, s{sWQ}"); e(f"s_mov_b32 s{sPW+1}, s{sWQ+1}"); e(f"s_mov_b32 s{sPW+2}, {512*1536*2}"); e(f"s_mov_b32 s{sPW+3}, 0x00020000")
    e(f"s_lshl_b32 s{s_tmp}, s{s_wv}, 5")
    e(f"s_movk_i32 s{s_tmp3}, 3072")
    e(f"v_lshrrev_b32 v{v_t1}, 2, v{v_lane}")
    e(f"v_add_u32 v{v_t1}, s{s_tmp}, v{v_t1}")
    e(f"v_and_b32 v{v_t0}, 3, v{v_lane}")
    e(f"v_lshlrev_b32 v{v_t0}, 4, v{v_t0}")
    e(f"v_mad_u32_u24 v{v_wd0}, v{v_t1}, s{s_tmp3}, v{v_t0}")
    e(f"v_add_u32 v{v_wd1}, {16*3072}, v{v_wd0}")
    e(f"s_lshl_b32 s{s_wbase}, s{s_cg}, 6")
    e(f"s_mov_b32 s{s_pstep}, {64*3072}")
    a.label(lj)

def gen():
    a = Asm()
    e = a.e
    e("s_cmp_ge_u32 s2, 256")
    e("s_cbranch_scc1 L_exit")
    stamp(a)
    e("s_load_dwordx4 s[8:11], s[0:1], 0")
    e("s_load_dwordx2 s[24:25], s[0:1], 16")
    e("s_load_dwordx4 s[16:19], s[0:1], 32")
    e("s_load_dwordx4 s[36:39], s[0:1], 48")
    e("s_load_dwordx4 s[40:43], s[0:1], 64")
    e(f"s_memrealtime s[{s_nonce}:{s_nonce+1}]")
    e(f"v_and_b32 v{v_lane}, 63, v0")
    e(f"v_lshrrev_b32 v{v_t0}, 6, v0")
    e(f"v_lshlrev_b32 v{v_l16}, 4, v{v_lane}")
    e(f"v_readfirstlane_b32 s{s_wv}, v{v_t0}")
    e(f"s_and_b32 s{s_tmp}, s2, 7")
    e(f"s_lshr_b32 s{s_tmp2}, s2, 3")
    e(f"s_and_b32 s{s_rb}, s{s_tmp}, 1")
    e(f"s_lshl_b32 s{s_rb}, s{s_rb}, 3")
    e(f"s_and_b32 s{s_tmp3}, s{s_tmp2}, 7")
    e(f"s_add_u32 s{s_rb}, s{s_rb}, s{s_tmp3}")
    e(f"s_lshr_b32 s{s_cg}, s{s_tmp}, 1")
    e(f"s_lshl_b32 s{s_cg}, s{s_cg}, 2")
    e(f"s_lshr_b32 s{s_tmp3}, s{s_tmp2}, 3")
    e(f"s_add_u32 s{s_cg}, s{s_cg}, s{s_tmp3}")
    e(f"s_lshr_b32 s{s_p}, s{s_cg}, 1")
    e(f"s_and_b32 s{s_t}, s{s_cg}, 1")
    e(f"s_lshl_b32 s{s_rb3}, s{s_tmp}, 2")
    e(f"s_and_b32 s{s_tmp3}, s{s_tmp2}, 3")
    e(f"s_add_u32 s{s_rb3}, s{s_rb3}, s{s_tmp3}")
    e(f"s_lshr_b32 s{s_cb3}, s{s_tmp2}, 2")
    e(f"s_and_b32 s{s_rg}, s{s_wv}, 3")
    e(f"s_lshr_b32 s{s_cgp}, s{s_wv}, 2")
    e(f"s_lshl_b32 s{s_ldsw}, s{s_wv}, 11")
    e(f"s_lshl_b32 s{s_xlds}, s{s_wv}, 12")
    e(f"s_lshl_b32 s{s_xbase}, s{s_rb}, 17")
    e(f"s_lshl_b32 s{s_tmp3}, s{s_wv}, 14")
    e(f"s_add_u32 s{s_xbase}, s{s_xbase}, s{s_tmp3}")
    if STAMPS:
        e(f"s_lshl_b32 s{s_tsb}, s2, 3")
        e(f"s_add_u32 s{s_tsb}, s{s_tsb}, s{s_wv}")
        e(f"s_lshl_b32 s{s_tsb}, s{s_tsb}, 7")
        e(f"s_add_u32 s{s_tsb}, s{s_tsb}, {TS}")
    e(f"v_lshrrev_b32 v{v_t0}, 4, v{v_lane}")
    e(f"v_and_b32 v{v_t1}, 15, v{v_lane}")
    e(f"v_xor_b32 v{v_t1}, v{v_t1}, v{v_t0}")
    e(f"v_lshlrev_b32 v{v_t0}, 10, v{v_t0}")
    for t in range(4):
        e(f"v_xor_b32 v{v_t2}, {4*t}, v{v_t1}")
        e(f"v_lshl_add_u32 v{v_xo+t}, v{v_t2}, 4, v{v_t0}")
    e(f"v_lshrrev_b32 v{v_t0}, 3, v{v_lane}")
    e(f"v_and_b32 v{v_t1}, 7, v{v_lane}")
    e(f"v_lshrrev_b32 v{v_t2}, 2, v{v_lane}")
    e(f"v_and_b32 v{v_t2}, 4, v{v_t2}")
    e(f"v_xor_b32 v{v_t1}, v{v_t1}, v{v_t2}")
    e(f"v_lshlrev_b32 v{v_t1}, 4, v{v_t1}")
    e(f"s_movk_i32 s{s_tmp3}, 3072")
    e(f"v_mad_u32_u24 v{v_wq_n}, v{v_t0}, s{s_tmp3}, v{v_t1}")
    e(f"v_lshl_add_u32 v{v_w2_n}, v{v_t0}, 10, v{v_t1}")
    e(f"s_mul_i32 s{s_naroff}, s{s_wv}, {16*3072}")
    e(f"s_lshl_b32 s{s_tmp3}, s{s_p}, 7")
    e(f"s_add_u32 s{s_naroff}, s{s_naroff}, s{s_tmp3}")
    e(f"s_lshl_b32 s{s_tmp3}, s{s_t}, 10")
    e(f"s_add_u32 s{s_naroff}, s{s_naroff}, s{s_tmp3}")
    e(f"s_add_u32 s{s_naroff}, s{s_naroff}, 1024")
    e(f"s_lshl_b32 s{s_tmp3}, s{s_p}, 1")
    e(f"s_add_u32 s{s_tmp3}, s{s_tmp3}, s{s_cgp}")
    e(f"s_lshl_b32 s{s_tmp3}, s{s_tmp3}, 6")
    e(f"s_lshl_b32 s{s_tmp4}, s{s_rb}, 2")
    e(f"s_add_u32 s{s_tmp4}, s{s_tmp4}, s{s_rg}")
    e(f"s_add_u32 s{s_tmp3}, s{s_tmp3}, s{s_tmp4}")
    e(f"s_lshl_b32 s{s_st0}, s{s_tmp3}, 11")
    e(f"s_lshl_b32 s{s_tmp3}, s{s_t}, 21")
    e(f"s_add_u32 s{s_st0}, s{s_st0}, s{s_tmp3}")
    e(f"s_add_u32 s{s_st0}, s{s_st0}, {KF}")
    e(f"s_mul_i32 s{s_tmp4}, s{s_tmp4}, {HROW}")
    e(f"s_add_u32 s{s_tmp4}, s{s_tmp4}, {HF}")
    e(f"s_mul_i32 s{s_tmp3}, s{s_cg}, 3")
    e(f"s_lshl_b32 s{s_st1}, s{s_tmp3}, 11")
    e(f"s_add_u32 s{s_st1}, s{s_st1}, s{s_tmp4}")
    e(f"s_cmp_ge_u32 s{s_tmp3}, 43")
    e(f"s_cselect_b32 s{s_st1}, {OOB}, s{s_st1}")
    e(f"s_cmp_eq_u32 s{s_cgp}, 0")
    e(f"s_cselect_b32 s{s_st1}, {OOB}, s{s_st1}")
    e(f"s_add_u32 s{s_tmp3}, s{s_tmp3}, s{s_cgp}")
    e(f"s_add_u32 s{s_tmp3}, s{s_tmp3}, 1")
    e(f"s_lshl_b32 s{s_st2}, s{s_tmp3}, 11")
    e(f"s_add_u32 s{s_st2}, s{s_st2}, s{s_tmp4}")
    e(f"s_cmp_ge_u32 s{s_tmp3}, 43")
    e(f"s_cselect_b32 s{s_st2}, {OOB}, s{s_st2}")
    e(f"s_lshl_b32 s{s_w2off}, s{s_wv}, 14")
    e(f"s_lshl_b32 s{s_tmp3}, s{s_cb3}, 7")
    e(f"s_add_u32 s{s_w2off}, s{s_w2off}, s{s_tmp3}")
    e("s_waitcnt lgkmcnt(0)")
    e("s_mov_b32 s12, s10"); e("s_mov_b32 s13, s11"); e(f"s_mov_b32 s14, {512*1536*2}"); e("s_mov_b32 s15, 0x00020000")
    e(f"s_mov_b32 s10, {2048*512*2}"); e("s_mov_b32 s11, 0x00020000")
    e("s_mov_b32 s32, s38"); e("s_mov_b32 s33, s39"); e(f"s_mov_b32 s34, {2048*512*2}"); e("s_mov_b32 s35, 0x00020000")
    e("s_mov_b32 s38, 1024"); e("s_mov_b32 s39, 0x00020000")
    e(f"s_mov_b32 s{s_ldsww}, 0")
    e(f"s_mov_b32 s{s_gw}, 0")
    lg_ = a.newlabel("Lgs")
    e(f"s_cmp_lg_u32 s{s_cg}, 15")
    e(f"s_cbranch_scc1 {lg_}")
    e(f"s_cmp_lt_u32 s{s_wv}, 2")
    e(f"s_cbranch_scc1 {lg_}")
    e(f"s_mov_b32 s{s_ldsww}, 0x30000")
    e(f"s_cmp_lg_u32 s{s_wv}, 2")
    e(f"s_cbranch_scc1 {lg_}")
    e(f"s_mov_b32 s{s_gw}, 1")
    e(f"v_lshlrev_b32 v{v_t0}, 1, v{v_lane}")
    for j in range(8):
        e(f"buffer_load_ushort v{GREG+j}, v{v_t0}, {srd(sGW)}, 0 offen offset:{j*128}")
    e(f"s_movk_i32 s{s_tmp3}, 192")
    e(f"v_mul_u32_u24 v{v_g2}, s{s_tmp3}, v{v_lane}")
    a.label(lg_)
    e("s_mov_b32 s20, s18"); e("s_mov_b32 s21, s19"); e(f"s_mov_b32 s22, {1376*512*2}"); e("s_mov_b32 s23, 0x00020000")
    e(f"s_mov_b32 s18, {512*1376*2}"); e("s_mov_b32 s19, 0x00020000")
    if TOUCH in (2, 9): touch(a, (sX, sWQ, sW1), 224)
    if TOUCH == 4: touch_l2(a)
    issue_x_quarter(a, 0)
    issue_piece(a, 0, CFG['init'][0])
    if TOUCH == 3: touch(a, (sX, sWQ, sW1), 224)
    if TOUCH == 5: touch_l2(a)
    e(f"s_mov_b32 s26, {512*512*2}"); e("s_mov_b32 s27, 0x00020000")
    e("s_mov_b32 s28, s42"); e("s_mov_b32 s29, s43"); e(f"s_mov_b32 s30, {WS_BYTES}"); e("s_mov_b32 s31, 0x00020000")
    e("s_mov_b32 s42, 256"); e("s_mov_b32 s43, 0x00020000")
    if env("GEN_TLB", 0): tlb_warm(a, env("GEN_TLB", 0))
    if TOUCH == 9: touch(a, (sW2, sWO), 240)
    if TOUCH == 7: touch_scalar(a, "xq12o")
    if TOUCH == 8: touch_scalar(a, "xq1")
    stamp(a)
    if env("GEN_ST3",0): stamp(a)
    common_setup(a)
    wide_setup(a)
    if env("GEN_ST3",0): stamp(a)
    kv_flag_setup(a)
    lm_ = a.newlabel("Lmk")
    e(f"s_cmp_lg_u32 s{s_gw}, 0")
    e(f"s_cbranch_scc1 {lm_}")
    build_maskd(a)
    a.label(lm_)
    if env("GEN_ST3",0): stamp(a)
    e("s_barrier")
    issue_x_quarter(a, 1)
    issue_piece(a, 1, CFG['init'][1])
    e(f"s_cmp_lg_u32 s{s_t}, 0")
    e("s_cbranch_scc1 L_s1v")
    w2_slot = run_stage1(a)
    stamp(a)
    attention(a, w2_slot)
    stage3(a, w2_slot)
    a.label("L_exit")
    a.e("s_endpgm")
    return a

def touch(a, srds, T):
    e = a.e
    e(f"s_lshl_b32 s{s_tmp}, s2, 3")
    e(f"s_add_u32 s{s_tmp}, s{s_tmp}, s{s_wv}")
    e(f"s_lshl_b32 s{s_tmp}, s{s_tmp}, 10")
    for i, sr in enumerate(srds):
        a.vmem(f"buffer_load_dwordx4 {vr(T+4*i,4)}, v{v_l16}, {srd(sr)}, s{s_tmp} offen", "TCH")

def touch_l2(a):
    e = a.e
    T = 224
    lx = a.newlabel("Ltx"); lk = a.newlabel("Ltk"); lq = a.newlabel("Ltq"); lj = a.newlabel("Ltj")
    e(f"s_lshr_b32 s{s_tmp}, s2, 3")
    e(f"s_and_b32 s{s_tmp2}, s2, 7")
    e(f"s_lshr_b32 s{s_tmp3}, s{s_tmp2}, 1")
    e(f"s_cmp_lt_u32 s{s_wv}, 4")
    e(f"s_cbranch_scc1 {lx}")
    e(f"s_cmp_eq_u32 s{s_wv}, 4")
    e(f"s_cbranch_scc1 {lk}")
    e(f"s_cmp_eq_u32 s{s_wv}, 5")
    e(f"s_cbranch_scc1 {lq}")
    e(f"s_sub_u32 s{s_tmp4}, s{s_wv}, 6")
    e(f"s_lshl_b32 s{s_tmp4}, s{s_tmp4}, 3")
    e(f"s_lshl_b32 s{s_tmp}, s{s_tmp}, 4")
    e(f"s_add_u32 s{s_tmp}, s{s_tmp}, s{s_tmp4}")
    e(f"s_mul_i32 s{s_tmp}, s{s_tmp}, 2752")
    e(f"s_mul_i32 s{s_tmp3}, s{s_tmp3}, 768")
    e(f"s_add_u32 s{s_tmp}, s{s_tmp}, s{s_tmp3}")
    e(f"v_lshrrev_b32 v{v_t0}, 3, v{v_lane}")
    e(f"s_movk_i32 s{s_tmp4}, 2752")
    e(f"v_mul_u32_u24 v{v_t0}, s{s_tmp4}, v{v_t0}")
    e(f"v_and_b32 v{v_t1}, 7, v{v_lane}")
    e(f"v_min_u32 v{v_t1}, 6, v{v_t1}")
    e(f"v_lshl_add_u32 v{v_t0}, v{v_t1}, 7, v{v_t0}")
    e(f"buffer_load_dword v{T}, v{v_t0}, {srd(sW1)}, s{s_tmp} offen")
    e(f"s_branch {lj}")
    a.label(lx)
    e(f"s_and_b32 s{s_tmp2}, s{s_tmp2}, 1")
    e(f"s_lshl_b32 s{s_tmp2}, s{s_tmp2}, 20")
    e(f"s_lshl_b32 s{s_tmp}, s{s_tmp}, 15")
    e(f"s_add_u32 s{s_tmp}, s{s_tmp}, s{s_tmp2}")
    e(f"s_lshl_b32 s{s_tmp2}, s{s_wv}, 8")
    e(f"s_add_u32 s{s_tmp}, s{s_tmp}, s{s_tmp2}")
    e(f"v_lshrrev_b32 v{v_t0}, 1, v{v_lane}")
    e(f"v_lshlrev_b32 v{v_t0}, 10, v{v_t0}")
    e(f"v_and_b32 v{v_t1}, 1, v{v_lane}")
    e(f"v_lshl_add_u32 v{v_t0}, v{v_t1}, 7, v{v_t0}")
    e(f"buffer_load_dword v{T}, v{v_t0}, {srd(sX)}, s{s_tmp} offen")
    e(f"s_branch {lj}")
    a.label(lk)
    e(f"s_mul_i32 s{s_tmp}, s{s_tmp}, {16*3072}")
    e(f"s_lshl_b32 s{s_tmp3}, s{s_tmp3}, 8")
    e(f"s_add_u32 s{s_tmp}, s{s_tmp}, s{s_tmp3}")
    e(f"s_add_u32 s{s_tmp}, s{s_tmp}, 1024")
    e(f"v_lshrrev_b32 v{v_t0}, 2, v{v_lane}")
    e(f"s_movk_i32 s{s_tmp4}, 3072")
    e(f"v_mul_u32_u24 v{v_t0}, s{s_tmp4}, v{v_t0}")
    e(f"v_and_b32 v{v_t1}, 1, v{v_lane}")
    e(f"v_lshl_add_u32 v{v_t0}, v{v_t1}, 10, v{v_t0}")
    e(f"v_bfe_u32 v{v_t1}, v{v_lane}, 1, 1")
    e(f"v_lshl_add_u32 v{v_t0}, v{v_t1}, 7, v{v_t0}")
    e(f"buffer_load_dword v{T}, v{v_t0}, {srd(sWQ)}, s{s_tmp} offen")
    e(f"s_branch {lj}")
    a.label(lq)
    e(f"s_mul_i32 s{s_tmp}, s{s_tmp}, {16*3072}")
    e(f"s_lshl_b32 s{s_tmp3}, s{s_tmp3}, 8")
    e(f"s_add_u32 s{s_tmp}, s{s_tmp}, s{s_tmp3}")
    e(f"v_bfe_u32 v{v_t0}, v{v_lane}, 1, 4")
    e(f"s_movk_i32 s{s_tmp4}, 3072")
    e(f"v_mul_u32_u24 v{v_t0}, s{s_tmp4}, v{v_t0}")
    e(f"v_and_b32 v{v_t1}, 1, v{v_lane}")
    e(f"v_lshl_add_u32 v{v_t0}, v{v_t1}, 7, v{v_t0}")
    e(f"buffer_load_dword v{T}, v{v_t0}, {srd(sWQ)}, s{s_tmp} offen")
    a.label(lj)
    a.vm.append("TCH")

def touch_l2_s3(a, part, nparts):
    e = a.e
    T = v_xo + 3
    l1 = a.newlabel("Lt3"); lj = a.newlabel("Lt3j")
    n = 64 // nparts
    mask = ((1 << n) - 1) << (n * part)
    e(f"s_lshr_b32 s{s_tmp}, s2, 3")
    e(f"s_lshl_b32 s{s_tmp}, s{s_tmp}, 3")
    e(f"s_add_u32 s{s_tmp}, s{s_tmp}, s{s_wv}")
    e(f"s_mul_i32 s{s_tmp}, s{s_tmp}, {n*128}")
    e(f"s_add_u32 s{s_tmp}, s{s_tmp}, {part * 256 * n * 128 - part*n*128}")
    e(f"v_lshlrev_b32 v{v_t2}, 7, v{v_lane}")
    e(f"s_mov_b32 exec_lo, 0x{mask & 0xffffffff:x}")
    e(f"s_mov_b32 exec_hi, 0x{mask >> 32:x}")
    lim = 1376*1024
    if (part + 1) * 256 * n * 128 <= 0x180000:
        e(f"buffer_load_dword v{T}, v{v_t2}, {srd(sW2)}, s{s_tmp} offen")
    else:
        e(f"s_sub_u32 s{s_tmp}, s{s_tmp}, 0x180000")
        e(f"buffer_load_dword v{T}, v{v_t2}, {srd(sWO)}, s{s_tmp} offen")
    e("s_mov_b64 exec, -1")
    a.vm.append("TCH")

def touch_scalar(a, which):
    e = a.e
    e(f"s_lshl_b32 s{s_tmp}, s2, 3")
    e(f"s_add_u32 s{s_tmp}, s{s_tmp}, s{s_wv}")
    tab = {"x": (sX, 8), "q": (sWQ, 6), "1": (sW1, 6), "2": (sW2, 6), "o": (sWO, 2)}
    for w in which:
        sr, n = tab[w]
        e(f"s_mul_i32 s{s_tmp2}, s{s_tmp}, {n*128}")
        for i in range(n):
            e(f"s_buffer_load_dword s{s_cnt}, {srd(sr)}, s{s_tmp2} offset:{i*128}")

def tlb_warm(a, mode):
    e = a.e
    e(f"s_lshl_b32 s{s_tmp}, s{s_wv}, 21")
    e(f"s_buffer_load_dword s{s_cnt}, {srd(sWS)}, s{s_tmp}")
    e(f"s_add_u32 s{s_tmp}, s{s_tmp}, 0x100000")
    e(f"s_buffer_load_dword s{s_cnt}, {srd(sWS)}, s{s_tmp}")
    e(f"s_lshl_b32 s{s_tmp}, s{s_wv}, 18")
    e(f"s_buffer_load_dword s{s_cnt}, {srd(sOUT)}, s{s_tmp}")
    if mode >= 2:
        e(f"s_buffer_load_dword s{s_cnt}, {srd(sW2)}, s{s_tmp}")
        e(f"s_buffer_load_dword s{s_cnt}, {srd(sWO)}, s{s_tmp}")
        e(f"s_buffer_load_dword s{s_cnt}, {srd(sDBG)}, 128")

HEADER = open(os.path.join(os.path.dirname(os.path.abspath(__file__)), "..", "cdna_kernels", NAME + ".s.ref")).read().split("; Override launch")[0]

def emit_file(path):
    a = gen()
    s = HEADER
    s += "; @launch grid=(256,1,1) block=(512,1,1) lds=163840\n"
    s += f""".amdgcn_target "amdgcn-amd-amdhsa--gfx950"
.text
.globl {NAME}_kernel
.p2align 8
.type {NAME}_kernel,@function
{NAME}_kernel:
"""
    s += "\n".join(a.lines) + "\n"
    s += f""".section .rodata,"a"
.p2align 6
.amdhsa_kernel {NAME}_kernel
  .amdhsa_next_free_vgpr 256
  .amdhsa_next_free_sgpr {NSGPR}
  .amdhsa_accum_offset 256
  .amdhsa_group_segment_fixed_size 0
  .amdhsa_kernarg_size 80
  .amdhsa_user_sgpr_count 2
  .amdhsa_user_sgpr_kernarg_segment_ptr 1
  .amdhsa_system_sgpr_workgroup_id_x 1
.end_amdhsa_kernel
"""
    open(path, "w").write(s)

if __name__ == "__main__":
    out = sys.argv[1] if len(sys.argv) > 1 else os.path.join(os.path.dirname(os.path.abspath(__file__)), "..", "cdna_kernels", NAME + ".s")
    emit_file(out)
```

```python
import sys, math, os, struct

NAME = "gated_mix__sliding_block__dense_activation_relu__prompt"

KF = 0x200000
VF = 0x400000
OF = 0x600000
HF = 0x800000
GB = 0xE00000
FL = 0xF00000
TS = 0xF80000
WS_BYTES = 0x1000000
HROW = 86 * 1024
OOB = 0x40000000
SLOT = 16384

def env(n, d): return int(os.environ.get(n, d))
STAMPS = env("GEN_STAMPS", 0) >= 1
STAMPS2 = env("GEN_STAMPS", 0) >= 2
TOUCH = env("GEN_TOUCH", 2)
NT = env("GEN_NT", 0)
ROT = env("GEN_ROT", 0)

class Asm:
    def __init__(self):
        self.lines = []; self.vm = []; self.uid = 0; self.nstamp = 0
    def e(self, s): self.lines.append("    " + s)
    def label(self, l): self.lines.append(l + ":")
    def c(self, s): self.lines.append("    ; " + s)
    def newlabel(self, p="L"):
        self.uid += 1
        return f"{p}_{self.uid}"
    def vmem(self, s, tag):
        self.e(s); self.vm.append(tag)
    def wait_vm(self, tags, lgkm0=False):
        if isinstance(tags, str): tags = [tags]
        last = -1
        for i, t in enumerate(self.vm):
            if t in tags: last = i
        x = " lgkmcnt(0)" if lgkm0 else ""
        if last < 0:
            if lgkm0: self.e("s_waitcnt lgkmcnt(0)")
            return
        n = len(self.vm) - 1 - last
        assert n <= 63
        self.e(f"s_waitcnt vmcnt({n}){x}")
        self.vm = self.vm[last + 1:]

class Lg:
    def __init__(self, a): self.a = a; self.q = []
    def add(self, tag): self.q.append(tag)
    def wait(self, tags):
        last = -1
        for i, t in enumerate(self.q):
            if t in tags: last = i
        if last < 0: return
        n = min(len(self.q) - 1 - last, 15)
        self.a.e(f"s_waitcnt lgkmcnt({n})")
        self.q = self.q[len(self.q) - n:] if n else []
    def clear(self): self.q = []
    def drain(self):
        if self.q: self.a.e("s_waitcnt lgkmcnt(0)")
        self.q = []

sX, sWQ, sW1, sW2, sWO, sWS, sOUT, sGW, sDBG, sPW = 8, 12, 16, 20, 24, 28, 32, 36, 40, 88
def srd(b): return f"s[{b}:{b+3}]"
s_wv, s_rb, s_cg, s_p, s_t, s_rg, s_cgp, s_rb3, s_cb3, s_xbase = range(44, 54)
s_tmp, s_tmp2, s_wideoff, s_naroff = 54, 55, 56, 57
s_nonce = 58
s_tmp3, s_tmp4, s_st0, s_st1, s_first, s_w2off, s_xlds, s_cnt = range(60, 68)
s_exec = 68
s_m = 70; s_m2 = 72; s_m3 = 74
s_ldsw, s_a3, s_a3o, s_qb = 76, 77, 78, 79
s_vm = 80
s_ts = 82
s_tsb, s_ok, s_ga, s_pstep = 84, 85, 86, 87
s_st2 = 92
s_ldsww = 95
s_gw = 7
s_wbase = 5
GREG = 48
s_fl = 6
s_kvb = 3
s_krd = 4
s_vrdb = 98
s_flh = 99
s_flc = 100
v_kf = 25
NSGPR = 102

v_lane, v_l16 = 1, 2
v_xo = 3
v_wq_n, v_wd0, v_wd1, v_xrd, v_trn, v_trw, v_tr3, v_w2_n = 7, 8, 9, 10, 11, 12, 13, 14
v_t0, v_t1 = 15, 16
v_hi = 17
v_t2, v_t3 = 18, 19
v_non = 20
v_c2 = 20
v_mc = 22
v_g2 = 24
v_omg2 = 26
v_t4, v_t5 = 28, 29
v_trw2, v_tr3b = 30, 31
MASKF = 32
MASKD = 48
BF = 64
ACC = 96
XF = 128
v_fo = 252; v_fd = 254

def vr(b, n): return f"v[{b}:{b+n-1}]"

ORD = os.environ.get("GEN_ORD", "A")
CFG = {
 "A": dict(order=[0,1,2,3,4,5,6,7,8,9,10,11], xslot={0:0,1:4,2:6,3:0}, init={0:2,1:3}, atk=6, atv=4, usplit=4, lg=4,
      sched={0:[("X",2,0),("P",2,8),("P",3,9)], 1:[("X",3,0),("P",4,2)], 2:[("P",5,4),("P",6,5),("P",7,3)],
             3:[("P",8,6),("P",9,7),("P",10,8)], 4:[("P",11,9)], 5:[("Q",0,0),("Q",1,1)], 6:[("Q",2,2)], 9:[("Q",3,3)]},
      sig0=6, kvi=9, kvc=11, post=(8,9), non=2),
 "C": dict(order=[0,1,4,2,5,3,6,7,8,9,10,11], xslot={0:0,1:3,2:8,3:0}, init={0:2,1:5}, atk=3, atv=0, usplit=6, lg=6,
      sched={0:[("P",4,6),("X",2,0),("P",2,7)], 1:[("P",5,2),("X",3,0)], 2:[("P",3,5),("P",6,3),("P",7,4)],
             3:[("P",8,6)], 4:[("P",9,7),("P",10,8),("P",11,9)], 5:[("Q",0,2)], 7:[("Q",1,5)], 10:[("Q",2,6)], 11:[("Q",3,7)]},
      sig0=8, kvi=10, kvc=11, post=(8,9), non=3),
}[ORD]
XSLOT = CFG["xslot"]
ATK = CFG['atk'] * SLOT
ATQ = ATK + 24576
ATV = CFG['atv'] * SLOT

v_st = 27
def stamp(a, final=False):
    if not STAMPS: return
    i = a.nstamp; a.nstamp += 1
    cur = s_ts + 2*(i & 1) if False else (s_ts if (i & 1) == 0 else 96)
    prev = (s_ts if ((i-1) & 1) == 0 else 96)
    if i > 0:
        a.e(f"v_writelane_b32 v{v_st}, s{prev}, {i-1}")
    a.e(f"{'s_memrealtime' if env('GEN_RT',0) else 's_memtime'} s[{cur}:{cur+1}]")
    if final:
        a.e("s_waitcnt lgkmcnt(0)")
        a.e(f"v_writelane_b32 v{v_st}, s{cur}, {i}")
        a.e(f"v_lshlrev_b32 v{v_t3}, 2, v{v_lane}")
        a.e("s_mov_b32 exec_lo, -1")
        a.e("s_mov_b32 exec_hi, 0")
        a.e(f"buffer_store_dword v{v_st}, v{v_t3}, {srd(sWS)}, s{s_tsb} offen")
        if env("GEN_DBG", 0):
            l = a.newlabel("Ldbg")
            a.e(f"s_cmp_lg_u32 s2, {env('GEN_DBG',0)}")
            a.e(f"s_cbranch_scc1 {l}")
            a.e(f"s_cmp_lg_u32 s{s_wv}, 0")
            a.e(f"s_cbranch_scc1 {l}")
            a.e(f"v_readlane_b32 s{s_tmp}, v{v_st}, 0")
            a.e("s_nop 3")
            a.e(f"v_subrev_u32 v{v_st}, s{s_tmp}, v{v_st}")
            a.e("s_mov_b32 exec_lo, 0x3ffe")
            a.e(f"buffer_store_dword v{v_st}, v{v_t3}, {srd(sDBG)}, 0 offen offset:4")
            a.label(l)

def dma(a, voff, srd_b, soff, lds_sgpr, ldsimm, tag, sc1=False):
    a.e(f"s_add_u32 m0, s{lds_sgpr}, {ldsimm}")
    a.e("s_nop 0")
    nt = " nt" if (not sc1 and ((NT & 1) and tag[0] in "XP" or (NT & 2) and tag[0] == "Q")) else ""
    a.vmem(f"buffer_load_dwordx4 v{voff}, {srd(srd_b)}, {soff} offen{' sc1' if sc1 else ''}{nt} lds", tag)

def x_ops(a, j):
    ops = []
    for t in range(4):
        def f(t=t):
            a.e(f"s_add_u32 s{s_tmp}, s{s_xbase}, {t*4096 + j*256}")
            dma(a, v_xo + t, sX, f"s{s_tmp}", s_xlds, XSLOT[j]*SLOT + t*1024, f"X{j}")
        ops.append(f)
    return ops

def piece_ops(a, i, slot):
    ops = []
    for t in range(2):
        if i < 4:
            def f(t=t):
                a.e(f"s_add_u32 s{s_tmp}, s{s_naroff}, {(128*i + 8*t)*3072}")
                dma(a, v_wq_n, sWQ, f"s{s_tmp}", s_ldsw, slot*SLOT + t*1024, f"P{i}")
        else:
            def f(t=t):
                if t == 0:
                    a.e(f"s_mul_i32 s{s_wideoff}, s{s_pstep}, {i-4}")
                    a.e(f"s_add_u32 s{s_wideoff}, s{s_wideoff}, s{s_wbase}")
                a.e(f"s_add_u32 s{s_tmp}, s{s_ldsw}, {slot*SLOT + t*1024}")
                a.e(f"s_max_u32 m0, s{s_tmp}, s{s_ldsww}")
                a.e("s_nop 0")
                a.vmem(f"buffer_load_dwordx4 v{v_wd0 + t}, {srd(sPW)}, s{s_wideoff} offen{' nt' if NT & 1 else ''} lds", f"P{i}")
                if t == 1:
                    l = a.newlabel("Lgw")
                    a.e(f"s_cmp_eq_u32 s{s_gw}, 0")
                    a.e(f"s_cbranch_scc1 {l}")
                    a.e(f"v_add_u32 v{v_t2}, {slot*SLOT + 4096 + 128}, v{v_g2}")
                    a.e(f"ds_write_b16 v{v_t2}, v{GREG + i - 4}")
                    a.label(l)
        ops.append(f)
    return ops

def w2_ops(a, i, slot):
    ops = []
    for t in range(2):
        def f(t=t):
            srdb, r0 = (sW2, 128*i) if i <= 10 else (sWO, 128*(i-11))
            a.e(f"s_add_u32 s{s_tmp}, s{s_w2off}, {(r0 + 8*t) * 1024}")
            dma(a, v_w2_n, srdb, f"s{s_tmp}", s_ldsw, slot*SLOT + t*1024, f"Q{i}")
        ops.append(f)
    return ops

def issue_x_quarter(a, j):
    for f in x_ops(a, j): f()
def issue_piece(a, i, slot):
    for f in piece_ops(a, i, slot): f()
def issue_w2_piece(a, i, slot):
    for f in w2_ops(a, i, slot): f()

def mfma(a, d, x, y, c):
    cs = c if isinstance(c, str) else vr(c, 16)
    a.e(f"v_mfma_f32_32x32x16_bf16 {vr(d,16)}, {vr(x,4)}, {vr(y,4)}, {cs}")

def pack_tile(a, acc, pk, relu):
    for q in range(8):
        a.e(f"v_cvt_pk_bf16_f32 v{pk+q}, v{acc+2*q}, v{acc+2*q+1}")
    if relu:
        for q in range(8):
            a.e(f"v_pk_max_i16 v{pk+q}, v{pk+q}, 0")

def store_pk(a, pk, soff_sgpr, tag):
    a.vmem(f"buffer_store_dwordx4 {vr(pk,4)}, v{v_l16}, {srd(sWS)}, s{soff_sgpr} offen sc1", tag)
    a.vmem(f"buffer_store_dwordx4 {vr(pk+4,4)}, v{v_l16}, {srd(sWS)}, s{soff_sgpr} offen offset:1024 sc1", tag)

def signal(a, phase):
    l = a.newlabel("Lsig")
    a.e(f"s_cmp_lg_u32 s{s_wv}, 0")
    a.e(f"s_cbranch_scc1 {l}")
    a.e(f"v_mov_b32 v{v_t2}, s{s_nonce}")
    a.e(f"v_mov_b32 v{v_t3}, s{s_nonce+1}")
    a.e(f"v_mov_b32 v{v_t1}, {phase*32768}")
    a.e("s_mov_b64 exec, 1")
    a.e(f"buffer_store_dwordx2 v[{v_t2}:{v_t3}], v{v_t1}, {srd(sWS)}, s{s_fl} offen sc1")
    a.e("s_mov_b64 exec, -1")
    a.label(l)

def signal_wave(a):
    a.e(f"v_mov_b32 v{v_t2}, s{s_nonce}")
    a.e(f"v_mov_b32 v{v_t3}, s{s_nonce+1}")
    a.e(f"v_mov_b32 v{v_t1}, 0")
    a.e("s_mov_b64 exec, 1")
    a.vmem(f"buffer_store_dwordx2 v[{v_t2}:{v_t3}], v{v_t1}, {srd(sWS)}, s{s_flh} offen sc1", "SIGH")
    a.e("s_mov_b64 exec, -1")

def cmp_flags4(a, vd):
    a.e(f"v_xor_b32 v{vd}, s{s_nonce}, v{vd}")
    a.e(f"v_xor_b32 v{vd+1}, s{s_nonce+1}, v{vd+1}")
    a.e(f"v_xor_b32 v{vd+2}, s{s_nonce}, v{vd+2}")
    a.e(f"v_xor_b32 v{vd+3}, s{s_nonce+1}, v{vd+3}")
    a.e(f"v_or3_b32 v{vd}, v{vd}, v{vd+1}, v{vd+2}")
    a.e(f"v_or_b32 v{vd}, v{vd}, v{vd+3}")
    a.e(f"v_cmp_ne_u32 vcc, 0, v{vd}")
    a.e("s_nop 3")
    a.e("s_cmp_eq_u64 vcc, 0")

def hflag_issue(a, track=True):
    ins = f"buffer_load_dwordx4 v[252:255], v{v_l16}, {srd(sWS)}, s{s_flc} offen sc1"
    (a.vmem(ins, "FH") if track else a.e(ins))

def hpoll(a):
    lp = a.newlabel("Lpoll"); ld = a.newlabel("Lpolld")
    a.e(f"s_mov_b32 s{s_cnt}, 0")
    a.label(lp)
    hflag_issue(a, False)
    a.e("s_waitcnt vmcnt(0)")
    cmp_flags4(a, 252)
    a.e(f"s_cbranch_scc1 {ld}")
    a.e("s_sleep 1")
    a.e(f"s_add_u32 s{s_cnt}, s{s_cnt}, 1")
    a.e(f"s_cmp_lt_u32 s{s_cnt}, 100000")
    a.e(f"s_cbranch_scc1 {lp}")
    a.label(ld)

def cmp_flags(a, vd):
    a.e(f"v_cmp_eq_u32 s[{s_m2}:{s_m2+1}], s{s_nonce}, v{vd}")
    a.e(f"v_cmp_eq_u32 s[{s_m3}:{s_m3+1}], s{s_nonce+1}, v{vd+1}")
    a.e("s_nop 3")
    a.e(f"s_and_b64 s[{s_m2}:{s_m2+1}], s[{s_m2}:{s_m2+1}], s[{s_m3}:{s_m3+1}]")
    a.e(f"s_and_b64 s[{s_m2}:{s_m2+1}], s[{s_m2}:{s_m2+1}], s[{s_m}:{s_m+1}]")
    a.e(f"s_cmp_eq_u64 s[{s_m2}:{s_m2+1}], s[{s_m}:{s_m+1}]")

def poll(a, voff):
    lp = a.newlabel("Lpoll"); ld = a.newlabel("Lpolld")
    a.e(f"s_mov_b32 s{s_cnt}, 0")
    a.label(lp)
    a.e(f"buffer_load_dwordx2 v[{v_t2}:{v_t3}], v{voff}, {srd(sWS)}, 0 offen sc1")
    a.e("s_waitcnt vmcnt(0)")
    cmp_flags(a, v_t2)
    a.e(f"s_cbranch_scc1 {ld}")
    a.e("s_sleep 1")
    a.e(f"s_add_u32 s{s_cnt}, s{s_cnt}, 1")
    a.e(f"s_cmp_lt_u32 s{s_cnt}, 100000")
    a.e(f"s_cbranch_scc1 {lp}")
    a.label(ld)

def flag_issue(a, voff, vdst, tag, track=True):
    ins = f"buffer_load_dwordx2 v[{vdst}:{vdst+1}], v{voff}, {srd(sWS)}, 0 offen sc1"
    (a.vmem(ins, tag) if track else a.e(ins))

def flag_check(a, vdst, tag, track=True):
    if track: a.wait_vm(tag)
    else: a.e("s_waitcnt vmcnt(0)")
    cmp_flags(a, vdst)

def get_nonce(a):
    a.wait_vm("NON")
    lp = a.newlabel("Lnp"); ld = a.newlabel("Lnd")
    a.e(f"s_mov_b32 s{s_cnt}, 0")
    a.label(lp)
    a.e(f"v_readfirstlane_b32 s{s_nonce}, v{v_non}")
    a.e(f"v_readfirstlane_b32 s{s_nonce+1}, v{v_non+1}")
    a.e("s_nop 3")
    a.e(f"s_cmp_lg_u32 s{s_nonce}, 0")
    a.e(f"s_cbranch_scc1 {ld}")
    a.e("s_sleep 2")
    a.e(f"v_mov_b32 v{v_t2}, 0")
    a.e(f"buffer_load_dwordx2 v[{v_non}:{v_non+1}], v{v_t2}, {srd(sDBG)}, 0 offen sc1")
    a.e("s_waitcnt vmcnt(0)")
    a.e(f"s_add_u32 s{s_cnt}, s{s_cnt}, 1")
    a.e(f"s_cmp_lt_u32 s{s_cnt}, 100000")
    a.e(f"s_cbranch_scc1 {lp}")
    a.label(ld)

def kv_flag_setup(a):
    e = a.e
    e(f"s_lshl_b32 s{s_tmp}, s{s_rb}, 4")
    e(f"s_add_u32 s{s_fl}, s{s_tmp}, s{s_cg}")
    e(f"s_lshl_b32 s{s_fl}, s{s_fl}, 7")
    e(f"s_add_u32 s{s_fl}, s{s_fl}, {FL}")
    e(f"s_lshl_b32 s{s_tmp2}, s{s_p}, 1")
    e(f"s_add_u32 s{s_tmp}, s{s_tmp}, s{s_tmp2}")
    e(f"v_lshrrev_b32 v{v_kf}, 1, v{v_lane}")
    e(f"v_lshlrev_b32 v{v_kf}, 4, v{v_kf}")
    e(f"v_sub_u32 v{v_kf}, s{s_tmp}, v{v_kf}")
    e(f"v_and_b32 v{v_t0}, 1, v{v_lane}")
    e(f"v_add_u32 v{v_kf}, v{v_kf}, v{v_t0}")
    e(f"v_and_b32 v{v_kf}, 255, v{v_kf}")
    e(f"v_lshlrev_b32 v{v_kf}, 7, v{v_kf}")
    e(f"v_add_u32 v{v_kf}, {FL}, v{v_kf}")
    e(f"s_mov_b32 s{s_m}, 63")
    e(f"s_cmp_eq_u32 s{s_rb}, 1")
    e(f"s_cselect_b32 s{s_m}, 15, s{s_m}")
    e(f"s_cmp_eq_u32 s{s_rb}, 0")
    e(f"s_cselect_b32 s{s_m}, 3, s{s_m}")
    e(f"s_mov_b32 s{s_m+1}, 0")
    e(f"s_lshl_b32 s{s_tmp3}, s{s_cg}, 6")
    e(f"s_lshl_b32 s{s_tmp4}, s{s_rb}, 2")
    e(f"s_add_u32 s{s_tmp3}, s{s_tmp3}, s{s_tmp4}")
    e(f"s_lshl_b32 s{s_tmp3}, s{s_tmp3}, 11")
    e(f"s_mul_i32 s{s_tmp4}, s{s_wv}, 3072")
    e(f"s_add_u32 s{s_kvb}, s{s_tmp3}, s{s_tmp4}")
    e(f"s_lshl_b32 s{s_tmp}, s{s_rg}, 11")
    e(f"s_lshl_b32 s{s_tmp2}, s{s_cgp}, 10")
    e(f"s_add_u32 s{s_tmp2}, s{s_tmp2}, s{s_tmp}")
    e(f"s_add_u32 s{s_krd}, s{s_tmp2}, {ATK}")
    e(f"s_lshl_b32 s{s_tmp2}, s{s_cgp}, 8")
    e(f"s_add_u32 s{s_tmp2}, s{s_tmp2}, s{s_tmp}")
    e(f"s_add_u32 s{s_vrdb}, s{s_tmp2}, {ATV}")
    e(f"s_lshl_b32 s{s_qb}, s{s_rb}, 2")
    e(f"s_add_u32 s{s_qb}, s{s_qb}, s{s_rg}")
    e(f"s_sub_i32 s{s_first}, 8, s{s_qb}")
    e(f"s_max_i32 s{s_first}, s{s_first}, 0")
    e(f"s_mov_b32 s{s_vm}, 0xffff")
    e(f"s_mov_b32 s{s_vm+1}, 0xffff")
    s3_addr_setup(a)
    e(f"s_lshl_b32 s{s_tmp}, s{s_cg}, 3")
    e(f"s_add_u32 s{s_tmp}, s{s_tmp}, s{s_wv}")
    e(f"s_lshl_b32 s{s_tmp}, s{s_tmp}, 3")
    e(f"s_lshl_b32 s{s_flh}, s{s_rb}, 10")
    e(f"s_add_u32 s{s_flh}, s{s_flh}, s{s_tmp}")
    e(f"s_add_u32 s{s_flh}, s{s_flh}, {FL + 32768}")
    e(f"s_lshr_b32 s{s_flc}, s{s_rb3}, 1")
    e(f"s_lshl_b32 s{s_flc}, s{s_flc}, 10")
    e(f"s_add_u32 s{s_flc}, s{s_flc}, {FL + 32768}")

def kv_ops(a, guard=True):
    ops = []
    for reg, lds, tag in ((KF, ATK, "AK"), (VF, ATV, "AV")):
        for i in range(3):
            def f(reg=reg, lds=lds, tag=tag, i=i):
                l = None
                if guard:
                    l = a.newlabel("Lkvg")
                    a.e(f"s_cmp_eq_u32 s{s_ok}, 0")
                    a.e(f"s_cbranch_scc1 {l}")
                a.e(f"s_mul_i32 s{s_tmp4}, s{s_wv}, 3072")
                a.e(f"s_add_u32 s{s_tmp}, s{s_kvb}, {reg - 16384 + i*1024}")
                dma(a, v_l16, sWS, f"s{s_tmp}", s_tmp4, lds + i*1024, tag, sc1=True)
                if l: a.label(l)
            ops.append(f)
    return ops

def issue_kv(a, which, track=True):
    sv = list(a.vm)
    for f in kv_ops(a, guard=False): f()
    if not track: a.vm = sv

def s1_items(pieces, slot_of):
    items = []
    for i in pieces:
        sl = slot_of[i]
        if i < 4:
            for s in range(8):
                items.append(dict(pc=i, ks=8*i + s, tl=0, vb=v_trn, off=s*2048, sec=512, sl=sl, xs=s))
        else:
            j = i - 4
            for s in range(4):
                for tl in range(2):
                    items.append(dict(pc=i, ks=4*j + s, tl=tl, vb=(v_trw2 if tl else v_trw), off=None, s=s, sl=sl, xs=None))
    return items

def stage1(a, isv):
    raise NotImplementedError

ORDER = CFG['order']
T3U = env('GEN_T3U', 99)
FLUSH = 1
USPLIT = CFG['usplit']

class S1:
    D = env('GEN_D', 5)
    def __init__(self, a):
        self.a = a; self.lg = Lg(a); self.n = 0
        self.fifo = []
        self.slot_of = dict(CFG["init"])
        self.w2_slot = {}
        self.base = {}
        self.sched = CFG["sched"]
    def sync(self, u, extra_need=(), hook=None):
        a = self.a
        i = ORDER[u]
        need = [f"P{i}"] + ([f"X{i}"] if i < 4 else []) + list(extra_need)
        if FLUSH: self.pump(len(self.fifo))
        if u <= CFG['lg']:
            a.wait_vm(need, lgkm0=True)
            self.lg.clear()
        else:
            a.wait_vm(need)
        a.e("s_barrier")
        if STAMPS2: stamp(a)
        if hook: hook()
        for kind, pc, sl in self.sched.get(u, []):
            if kind == "P": self.slot_of[pc] = sl; self.fifo += piece_ops(a, pc, sl)
            elif kind == "X": self.fifo += x_ops(a, pc)
            else: self.w2_slot[pc] = sl; self.fifo += w2_ops(a, pc, sl)
        self.base = {}
    def pump(self, n=1):
        for _ in range(n):
            if self.fifo: self.fifo.pop(0)()
    def read(self, it):
        a = self.a
        b = BF + (it["n"] % 8) * 4
        sl = it["sl"]
        if it["xs"] is not None:
            s = it["xs"]; xq = it["pc"]
            r = v_t0 + (s & 1)
            a.e(f"v_xor_b32 v{r}, {s*32}, v{v_xrd}")
            off = XSLOT[xq]*SLOT
            if off > 65535:
                a.e(f"v_add_u32 v{r}, {off}, v{r}"); off = 0
            a.e(f"ds_read_b128 {vr(XF + it['ks']*4, 4)}, v{r} offset:{off}")
            self.lg.add(("x", it["ks"]))
        vb = it["vb"]
        if it["pc"] < 4:
            off, sec = it["off"], it["sec"]
            o = sl*SLOT + off
            if o + sec > 65535:
                if vb not in self.base:
                    a.e(f"v_add_u32 v{v_t4}, {sl*SLOT}, v{vb}"); self.base[vb] = v_t4
                vb = self.base[vb]; o = off
            a.e(f"ds_read_b64_tr_b16 {vr(b,2)}, v{vb} offset:{o}")
            a.e(f"ds_read_b64_tr_b16 {vr(b+2,2)}, v{vb} offset:{o + sec}")
        else:
            s = it["s"]; tl = it["tl"]
            if tl == 1:
                o = sl*SLOT + s*16*192; sec = 4*192
                if o + sec > 65535 - 16384:
                    if vb not in self.base:
                        a.e(f"v_add_u32 v{v_t5}, {sl*SLOT}, v{vb}"); self.base[vb] = v_t5
                    vb = self.base[vb]; o = s*16*192
                a.e(f"ds_read_b64_tr_b16 {vr(b,2)}, v{vb} offset:{o}")
                a.e(f"ds_read_b64_tr_b16 {vr(b+2,2)}, v{vb} offset:{o + sec}")
            else:
                if s == 0:
                    a.e(f"v_add_u32 v{v_t4}, {sl*SLOT}, v{v_trw}")
                    a.e(f"v_add_u32 v{v_t0}, {sl*SLOT}, v{v_omg2}")
                else:
                    a.e(f"v_add_u32 v{v_t4}, s{s_k16}, v{v_t4}")
                    a.e(f"v_add_u32 v{v_t0}, s{s_k16}, v{v_t0}")
                a.e(f"ds_read_b64_tr_b16 {vr(b,2)}, v{v_t4}")
                a.e(f"ds_read_b64_tr_b16 {vr(b+2,2)}, v{v_t0}")
        self.lg.add(("b", it["n"])); self.lg.add(("b", it["n"]))
    def mm(self, it, isv):
        a = self.a
        self.lg.wait([("b", it["n"]), ("x", it["ks"])])
        b = BF + (it["n"] % 8) * 4
        if it["pc"] < 4:
            acc = ACC2
            cin = "0" if it["ks"] == 0 else acc
            if isv: mfma(a, acc, XF + it["ks"]*4, b, cin)
            else: mfma(a, acc, b, XF + it["ks"]*4, cin)
        else:
            acc = ACC + 16*it["tl"]
            cin = "0" if it["ks"] == 0 else acc
            mfma(a, acc, b, XF + it["ks"]*4, cin)

ACC2 = MASKF
s_k16 = 93

def build_maskd(a):
    e = a.e
    e(f"v_and_b32 v{v_t2}, 31, v{v_lane}")
    e(f"v_lshlrev_b32 v{v_t3}, 2, v{v_hi}")
    e(f"v_sub_u32 v{v_t2}, v{v_t2}, v{v_t3}")
    e(f"v_mov_b32 v{v_t3}, 0xf149f2ca")
    for r in range(16):
        cr = (r & 3) + 8 * (r >> 2)
        e(f"v_cmp_gt_i32 vcc, {cr}, v{v_t2}")
        e("s_nop 1")
        e(f"v_cndmask_b32 v{MASKD+r}, 0, v{v_t3}, vcc")

PRE = env("GEN_PRE", 2)
def run_stage1(a):
    e = a.e
    a.c("================ stage 1 ================")
    D = S1.D
    base_lines = a.lines
    outs = []
    ns0 = a.nstamp; vm0 = list(a.vm)
    state = {}
    def hook(u, st):
        if u == 1 and TOUCH >= 2 and TOUCH not in (7, 9): touch(a, (sW2, sWO), 240)
        if T3U <= u < T3U + 4: st.fifo.append(lambda u=u: touch_l2_s3(a, u - T3U, 4))
        if u == CFG['non']:
            a.e(f"v_mov_b32 v{v_t2}, 0")
            a.vmem(f"buffer_load_dwordx2 v[{v_non}:{v_non+1}], v{v_t2}, {srd(sDBG)}, 0 offen sc1", "NON")
        if u == SIG0:
            get_nonce(a); signal(a, 0)
        if u == CFG["kvi"]:
            flag_issue(a, v_kf, v_non + 2, "FKV")
        if u == CFG["kvc"]:
            flag_check(a, v_non + 2, "FKV")
            a.e(f"s_cselect_b32 s{s_ok}, 1, 0")
            st.fifo = kv_ops(a) + st.fifo
    def do_mm(st, pend, isv):
        it = pend.pop(0)
        st.mm(it, isv)
        if it["pc"] == 3 and it["ks"] == 31: state["kvdone"] = 0
        elif "kvdone" in state:
            state["kvdone"] += 1
            if state["kvdone"] == 2:
                a.e("s_nop 7")
                pack_tile(a, ACC2, ACC2, False)
                store_pk(a, ACC2, s_st0, "ST0")
        st.pump(1)
    def unit(st, u, pend, n, isv, q0=0, q1=8, items=None):
        pc = ORDER[u]
        if items is None:
            if u <= CFG["lg"]:
                for _ in range(min(PRE, len(pend))): do_mm(st, pend, isv)
            st.sync(u, ["ST0"] if u == SIG0 else [], lambda: hook(u, st))
            items = s1_items([pc], st.slot_of)
            for it in items: it["n"] = n; n += 1
        for q in range(q0, q1):
            st.read(items[q]); pend.append(items[q])
            if len(pend) > D: do_mm(st, pend, isv)
            elif q % 2 == 1 and len(pend) > 2 and u > 0 and pend[0]["pc"] != pc: do_mm(st, pend, isv)
        return n, items
    for isv in (0, 1):
        a.lines = []; a.vm = list(vm0); a.nstamp = ns0; state.clear()
        st = S1(a)
        if isv: a.label("L_s1v")
        pend = []; n = 0
        for u in range(0, USPLIT):
            n, _ = unit(st, u, pend, n, isv)
        n, items = unit(st, USPLIT, pend, n, isv, 0, 0)
        q = 0
        while any(it["pc"] < 4 for it in pend):
            unit(st, USPLIT, pend, n, isv, q, q + 1, items); q += 1
            if q >= 8:
                while any(it["pc"] < 4 for it in pend): do_mm(st, pend, isv)
        st.pump(len(st.fifo))
        if not isv: a.e("s_branch L_s1w")
        outs.append((a.lines, list(a.vm), st, pend, n, items, q, dict(state)))
    assert outs[0][1] == outs[1][1]
    a.lines = base_lines + outs[0][0] + outs[1][0]
    _, vm, st, pend, n, items_s, q0, stt = outs[1]
    a.vm = vm
    a.label("L_s1w")
    unit(st, USPLIT, pend, n, 0, q0, 8, items_s)
    for u in range(USPLIT + 1, 12):
        n, _ = unit(st, u, pend, n, 0)
    while pend: do_mm(st, pend, 0)
    st.pump(len(st.fifo))
    e("s_nop 7"); e("s_nop 3")
    gate(a)
    pack_tile(a, ACC + 16, BF + 8, True)
    store_pk(a, BF + 8, s_st2, "ST1")
    pack_tile(a, ACC, BF, False)
    l = a.newlabel("Lq"); l2 = a.newlabel("Lqd")
    e(f"s_cmp_eq_u32 s{s_cgp}, 0")
    e(f"s_cbranch_scc1 {l}")
    for q in range(8): e(f"v_pk_max_i16 v{BF+q}, v{BF+q}, 0")
    a.label(l)
    store_pk(a, BF, s_st1, "ST1")
    return st.w2_slot

SIG0 = CFG['sig0']

def gate(a):
    e = a.e
    l = a.newlabel("Lgate")
    e(f"s_cmp_lg_u32 s{s_cg}, 15")
    e(f"s_cbranch_scc1 {l}")
    e(f"s_cmp_lg_u32 s{s_cgp}, 1")
    e(f"s_cbranch_scc1 {l}")
    e(f"v_cvt_pk_bf16_f32 v{v_t1}, v{ACC+16}, v{ACC+16}")
    e(f"v_lshlrev_b32 v{v_t1}, 16, v{v_t1}")
    e(f"v_mul_f32 v{v_t1}, 0xbfb8aa3b, v{v_t1}")
    e(f"v_exp_f32 v{v_t1}, v{v_t1}")
    e("s_nop 0")
    e(f"v_add_f32 v{v_t1}, 1.0, v{v_t1}")
    e(f"v_rcp_f32 v{v_t1}, v{v_t1}")
    e("s_nop 0")
    e(f"v_cvt_pk_bf16_f32 v{v_t1}, v{v_t1}, v{v_t1}")
    e(f"v_lshlrev_b32 v{v_t1}, 16, v{v_t1}")
    e(f"v_lshlrev_b32 v{v_t0}, 2, v{v_lane}")
    e(f"s_lshl_b32 s{s_tmp}, s{s_rb}, 2")
    e(f"s_add_u32 s{s_tmp}, s{s_tmp}, s{s_rg}")
    e(f"s_lshl_b32 s{s_tmp}, s{s_tmp}, 7")
    e(f"s_add_u32 s{s_tmp}, s{s_tmp}, {GB}")
    e(f"s_mov_b64 s[{s_exec}:{s_exec+1}], exec")
    e("s_mov_b32 exec_lo, -1")
    e("s_mov_b32 exec_hi, 0")
    e(f"buffer_store_dword v{v_t1}, v{v_t0}, {srd(sWS)}, s{s_tmp} offen sc1")
    e(f"s_mov_b64 exec, s[{s_exec}:{s_exec+1}]")
    a.label(l)

def Sreg(b):
    if b == 0: return MASKF
    if b == 8: return MASKD
    return 64 + 16*(b-1)
KFR = 176; QFR = 212; VROT = 216; OACC = 232
v_max = 248; v_max2 = 249; v_vrd = 250; v_krd = 251

def AFreg(n):
    if n < 10: return 176 + 4*n
    if n < 14: return 48 + 4*(n-10)
    if n < 18: return 160 + 4*(n-14)
    return 144 + 4*(n-18)
def AOreg(n):
    return 128 + 4*n if n < 4 else 32 + 4*(n-4)
BF3 = 64; ACB = 96; ACA = 216

def s3_addr_setup(a):
    e = a.e
    e(f"s_lshl_b32 s{s_tmp3}, s{s_rb3}, 1")
    e(f"s_add_u32 s{s_tmp3}, s{s_tmp3}, s{s_cgp}")
    e(f"s_mul_i32 s{s_a3}, s{s_tmp3}, {HROW}")
    e(f"s_lshl_b32 s{s_tmp}, s{s_rg}, 10")
    e(f"s_add_u32 s{s_a3}, s{s_a3}, s{s_tmp}")
    e(f"s_add_u32 s{s_a3}, s{s_a3}, {HF}")
    e(f"s_lshl_b32 s{s_a3o}, s{s_tmp3}, 15")
    e(f"s_add_u32 s{s_a3o}, s{s_a3o}, s{s_tmp}")
    e(f"s_add_u32 s{s_a3o}, s{s_a3o}, {OF}")
    e(f"s_lshl_b32 s{s_ga}, s{s_tmp3}, 7")
    e(f"s_add_u32 s{s_ga}, s{s_ga}, {GB}")

def h_loads(a, ns, track=True):
    e = a.e
    for n in ns:
        if n == "g":
            e(f"v_and_b32 v{v_t0}, 31, v{v_lane}")
            e(f"v_lshlrev_b32 v{v_t0}, 2, v{v_t0}")
            ins = f"buffer_load_dword v{v_g2}, v{v_t0}, {srd(sWS)}, s{s_ga} offen sc1"
            (a.vmem(ins, "G") if track else e(ins))
            continue
        e(f"s_add_u32 s{s_tmp}, s{s_a3}, {n*4096}")
        if n == 21:
            e(f"s_cmp_ge_u32 s{s_rg}, 2")
            e(f"s_cselect_b32 s{s_tmp}, {OOB}, s{s_tmp}")
        ins = f"buffer_load_dwordx4 {vr(AFreg(n),4)}, v{v_l16}, {srd(sWS)}, s{s_tmp} offen sc1"
        (a.vmem(ins, f"H{n}") if track else e(ins))

def guarded_h_loads(a, ns, track=True):
    l = a.newlabel("Lhl")
    a.e(f"s_cmp_eq_u32 s{s_ok}, 0")
    a.e(f"s_cbranch_scc1 {l}")
    h_loads(a, ns, track)
    a.label(l)

def flags16(a, phase, vdst):
    e = a.e
    e(f"s_lshr_b32 s{s_tmp}, s{s_rb3}, 1")
    e(f"s_lshl_b32 s{s_tmp}, s{s_tmp}, 11")
    e(f"s_add_u32 s{s_tmp}, s{s_tmp}, {FL + phase*32768}")
    e(f"v_and_b32 v{vdst}, 15, v{v_lane}")
    e(f"v_lshlrev_b32 v{vdst}, 7, v{vdst}")
    e(f"v_add_u32 v{vdst}, s{s_tmp}, v{vdst}")
    e(f"s_mov_b32 s{s_m}, 0xffff")
    e(f"s_mov_b32 s{s_m+1}, 0")

SIGB = env('GEN_SIGB', 1)
HB_ISSUE, HB_CHECK = env("GEN_HBI", 5), env("GEN_HBC", 3)

def attention(a, slot_of):
    e = a.e
    a.c("================ attention ================")
    e(f"s_lshl_b32 s{s_tmp}, s{s_rg}, 10")
    e(f"s_add_u32 s{s_tmp}, s{s_tmp}, {ATQ}")
    e(f"v_add_u32 v{v_t0}, s{s_tmp}, v{v_l16}")
    l = a.newlabel("Lqx")
    e(f"s_cmp_lg_u32 s{s_cgp}, 0")
    e(f"s_cbranch_scc1 {l}")
    e(f"ds_write_b128 v{v_t0}, {vr(BF+4,4)}")
    for i in range(4): e(f"v_mov_b32 v{QFR+i}, v{BF+i}")
    a.label(l)
    l = a.newlabel("Lkvok")
    e(f"s_cmp_lg_u32 s{s_ok}, 0")
    e(f"s_cbranch_scc1 {l}")
    poll(a, v_kf)
    issue_kv(a, "KV", track=False)
    e("s_waitcnt vmcnt(0)")
    a.label(l)
    l = a.newlabel("Lgm")
    e(f"s_cmp_eq_u32 s{s_gw}, 0")
    e(f"s_cbranch_scc1 {l}")
    build_maskd(a)
    a.label(l)
    stamp(a)
    e(f"v_add_u32 v{v_krd}, s{s_krd}, v{v_l16}")
    e(f"v_mov_b32 v{v_t3}, 0xf149f2ca")
    for r in range(16):
        e(f"v_sub_f32 v{MASKF+r}, v{v_t3}, v{MASKD+r}")
    a.wait_vm(["AK", "AV"], lgkm0=True)
    e("s_barrier")
    stamp(a)
    lg = Lg(a)
    l = a.newlabel("Lqr")
    e(f"s_cmp_eq_u32 s{s_cgp}, 0")
    e(f"s_cbranch_scc1 {l}")
    e(f"ds_read_b128 {vr(QFR,4)}, v{v_t0}")
    a.label(l)
    for b in range(8, -1, -1):
        e(f"ds_read_b128 {vr(KFR+4*b,4)}, v{v_krd} offset:{b*2048}"); lg.add(("k", b))
    fill = []
    for pc, sl in zip((4, 5), CFG["post"]):
        slot_of[pc] = sl; fill += w2_ops(a, pc, sl)
    c = 0.25 * math.log2(math.e)
    cbits = struct.unpack("<I", struct.pack("<f", c))[0]
    misc = [f"v_mov_b32 v{VROT+i}, 0x3f803f80" for i in range(16)]
    misc += [f"v_mov_b32 v{v_c2}, 0x{cbits:08x}", f"v_mov_b32 v{v_c2+1}, 0x{cbits:08x}", f"v_add_u32 v{v_vrd}, s{s_vrdb}, v{v_l16}"]
    for b in range(8, -1, -1):
        lg.wait([("k", b)])
        S = Sreg(b)
        mfma(a, S, KFR + 4*b, QFR, S if b in (0, 8) else "0")
        for _ in range(3):
            if misc: e(misc.pop(0))
        if fill and b % 2 == 0: fill.pop(0)()
    while misc: e(misc.pop(0))
    while fill: fill.pop(0)()
    if SIGB == 1:
        a.wait_vm("ST1"); signal_wave(a)
    lmax = a.newlabel("Lmaxd")
    e("s_nop 4")
    for b in range(8, -1, -1):
        S = Sreg(b)
        if b < 8:
            e(f"s_cmp_gt_u32 s{s_first}, {b}")
            e(f"s_cbranch_scc1 {lmax}")
        for q in range(8):
            if b == 8 and q == 0:
                e(f"v_max_f32 v{v_max}, v{S}, v{S+1}")
            else:
                e(f"v_max3_f32 v{v_max}, v{S+2*q}, v{S+2*q+1}, v{v_max}")
    a.label(lmax)
    e(f"v_mov_b32 v{v_max2}, v{v_max}")
    e("s_nop 1")
    e(f"v_permlane32_swap_b32 v{v_max}, v{v_max2}")
    e("s_nop 1")
    e(f"v_max_f32 v{v_max}, v{v_max}, v{v_max2}")
    e(f"v_mul_f32 v{v_mc}, v{v_c2}, v{v_max}")
    e(f"v_sub_f32 v{v_mc}, 0, v{v_mc}")
    e(f"v_mov_b32 v{v_mc+1}, v{v_mc}")
    if SIGB == 2:
        a.wait_vm("ST1"); signal_wave(a)
    def softmax_block(b):
        S = Sreg(b)
        for q in range(8):
            e(f"v_pk_fma_f32 v[{S+2*q}:{S+2*q+1}], v[{S+2*q}:{S+2*q+1}], v[{v_c2}:{v_c2+1}], v[{v_mc}:{v_mc+1}]")
        for r in range(16):
            e(f"v_exp_f32 v{S+r}, v{S+r}")
        for q in range(8):
            e(f"v_cvt_pk_bf16_f32 v{S+q}, v{S+2*q}, v{S+2*q+1}")
    softmax_block(8)
    e("s_barrier")
    stamp(a)
    for pc, sl in ((6, CFG['atk']), (7, CFG['atk']+1)):
        slot_of[pc] = sl; issue_w2_piece(a, pc, sl)
    lg = Lg(a)
    def vread(n):
        b = 8 - n//2; m = n % 2
        e(f"ds_read_b128 {vr(VROT + 4*(n%4), 4)}, v{v_vrd} offset:{b*2048 + m*1024}")
        lg.add(("v", n))
    e(f"s_mov_b64 exec, s[{s_vm}:{s_vm+1}]")
    vread(0); vread(1)
    e("s_mov_b64 exec, -1")
    lpv = a.newlabel("Lpvd")
    e(f"s_mov_b32 s{s_ok}, 0")
    skip_labels = {}
    hl = list(range(22)) + ["g"]
    per = -(-len(hl) // (HB_CHECK + 1))
    def post_block(b, track):
        if b == HB_ISSUE: hflag_issue(a, track)
        if b == HB_CHECK:
            if track: a.wait_vm("FH")
            else: e("s_waitcnt vmcnt(0)")
            cmp_flags4(a, 252)
            e(f"s_cselect_b32 s{s_ok}, 1, 0")
        if b <= HB_CHECK:
            i0 = (HB_CHECK - b) * per
            if hl[i0:i0+per]: guarded_h_loads(a, hl[i0:i0+per], track)
    for b in range(8, -1, -1):
        S = Sreg(b)
        n0 = 2*(8 - b)
        if b < 8:
            skip_labels[b] = a.newlabel("Lskip")
            e(f"s_cmp_gt_u32 s{s_first}, {b}")
            e(f"s_cbranch_scc1 {skip_labels[b]}")
        if b > 0:
            e(f"s_mov_b64 exec, s[{s_vm}:{s_vm+1}]")
            vread(n0 + 2); vread(n0 + 3)
            e("s_mov_b64 exec, -1")
        if b < 8: softmax_block(b)
        lg.wait([("v", n0), ("v", n0+1)])
        e("s_nop 0")
        mfma(a, OACC, VROT + 4*(n0 % 4), S, "0" if b == 8 else OACC)
        mfma(a, OACC, VROT + 4*((n0+1) % 4), S + 4, OACC)
        post_block(b, True)
    e(f"s_branch {lpv}")
    for b in range(7, -1, -1):
        a.label(skip_labels[b])
        post_block(b, False)
    a.label(lpv)
    e("s_waitcnt lgkmcnt(0)")
    e("s_nop 7"); e("s_nop 3")
    e(f"v_rcp_f32 v{v_max}, v{OACC+8}")
    e("s_nop 0")
    for r in range(8):
        e(f"v_mul_f32 v{OACC+r}, v{OACC+r}, v{v_max}")
    for q in range(4):
        e(f"v_cvt_pk_bf16_f32 v{248+q}, v{OACC+2*q}, v{OACC+2*q+1}")
    e(f"buffer_store_dwordx4 v[248:251], v{v_l16}, {srd(sWS)}, s{s_oa} offen sc1")
    l = a.newlabel("Lhok")
    e(f"s_cmp_lg_u32 s{s_ok}, 0")
    e(f"s_cbranch_scc1 {l}")
    hpoll(a)
    h_loads(a, list(range(22)) + ["g"], track=False)
    a.label(l)
    stamp(a)
s_oa = 94

def compute3(a, pieces, slot_of, cnt):
    e = a.e
    work = []
    for pc in pieces:
        for u in range(2):
            if pc <= 10: af = AFreg(2*pc + u); tag = f"H{2*pc+u}"; acc = ACB; first = (pc == 0 and u == 0)
            else: af = AOreg(2*(pc-11) + u); tag = f"O{2*(pc-11)+u}"; acc = ACA; first = (pc == 11 and u == 0)
            for ct in range(2):
                work.append((slot_of[pc], u, ct, af, tag, acc + 16*ct, first))
    lg = Lg(a)
    cur = {}
    def rd(w):
        sl, u, ct, af, tag, acc, first = work[w]
        vb = v_tr3b if ct else v_tr3
        off = sl*SLOT + u*8192
        if off + 1024 > 65535:
            r = v_t5 if ct else v_t4
            if cur.get(ct) != sl:
                e(f"v_add_u32 v{r}, {sl*SLOT}, v{vb}")
                cur[ct] = sl
            vb = r; off = u*8192
        b = BF3 + ((cnt[0] + w) % 8)*4
        e(f"ds_read_b64_tr_b16 {vr(b,2)}, v{vb} offset:{off}")
        e(f"ds_read_b64_tr_b16 {vr(b+2,2)}, v{vb} offset:{off + 1024}")
        lg.add(w); lg.add(w)
    D = 4
    for w in range(min(D, len(work))): rd(w)
    for w in range(len(work)):
        if w + D < len(work): rd(w + D)
        sl, u, ct, af, tag, acc, first = work[w]
        a.wait_vm(tag)
        lg.wait([w])
        b = BF3 + ((cnt[0] + w) % 8)*4
        mfma(a, acc, b, af, "0" if first else acc)
    cnt[0] += len(work)
    lg.drain()

S3J = env('GEN_S3J', 1)
def o_loads(a, track=True):
    for n in range(8):
        a.e(f"s_add_u32 s{s_tmp}, s{s_a3o}, {n*4096}")
        ins = f"buffer_load_dwordx4 {vr(AOreg(n),4)}, v{v_l16}, {srd(sWS)}, s{s_tmp} offen sc1"
        (a.vmem(ins, f"O{n}") if track else a.e(ins))

def o_check(a):
    e = a.e
    regs = [AOreg(n) + i for n in range(8) for i in range(4)]
    e(f"v_max3_u32 v{v_t2}, v{regs[0]}, v{regs[1]}, v{regs[2]}")
    i = 3
    while i < len(regs):
        if i + 1 < len(regs):
            e(f"v_max3_u32 v{v_t2}, v{regs[i]}, v{regs[i+1]}, v{v_t2}"); i += 2
        else:
            e(f"v_max_u32 v{v_t2}, v{regs[i]}, v{v_t2}"); i += 1
    e(f"v_cmp_eq_u32 vcc, -1, v{v_t2}")
    e("s_nop 3")
    e("s_cmp_eq_u64 vcc, 0")

def stage3(a, slot_of):
    e = a.e
    a.c("================ stage 3 ================")
    D = 4
    lg = Lg(a)
    fifo = []
    cur = {}
    V0 = CFG["atv"]
    def assign(pc, sl):
        slot_of[pc] = sl
        for f in w2_ops(a, pc, sl):
            f.tag = f"Q{pc}"; fifo.append(f)
    def o_verify():
        a.wait_vm("O7")
        lp = a.newlabel("Lop"); ld = a.newlabel("Lod")
        e(f"s_mov_b32 s{s_cnt}, 0")
        a.label(lp)
        o_check(a)
        e(f"s_cbranch_scc1 {ld}")
        o_loads(a, track=False)
        e("s_waitcnt vmcnt(0)")
        e(f"s_add_u32 s{s_cnt}, s{s_cnt}, 1")
        e(f"s_cmp_lt_u32 s{s_cnt}, 100000")
        e(f"s_cbranch_scc1 {lp}")
        a.label(ld)
        stamp(a)
    def o_ops():
        ops = []
        for n in range(8):
            def f(n=n):
                a.e(f"s_add_u32 s{s_tmp}, s{s_a3o}, {n*4096}")
                a.vmem(f"buffer_load_dwordx4 {vr(AOreg(n),4)}, v{v_l16}, {srd(sWS)}, s{s_tmp} offen sc1", f"O{n}")
            f.tag = f"O{n}"
            ops.append(f)
        return ops
    syncs = {
        S3J: (["Q4", "Q5", "Q6", "Q7"], lambda: (assign(8, V0), assign(9, V0 + 1))),
        4: ([], lambda: (assign(10, slot_of[0]), assign(11, slot_of[1]), assign(12, slot_of[2]))),
        6: ([], lambda: (assign(13, slot_of[3]), assign(14, slot_of[4]), fifo.extend(o_ops()))),
        8: (["Q8", "Q9"], None),
        10: (["Q10", "Q11", "Q12"], None),
        13: (["Q13", "Q14"], None),
    }
    items = []
    for pc in range(15):
        for u in range(2):
            for ct in range(2):
                items.append((pc, u, ct))
    def rd(w):
        pc, u, ct = items[w]
        if u == 0 and ct == 0 and pc in syncs:
            tags, act = syncs[pc]
            while any(f.tag in tags for f in fifo): fifo.pop(0)()
            a.wait_vm(tags)
            e("s_barrier")
            if STAMPS2: stamp(a)
            if act: act()
        sl = slot_of[pc]
        vb = v_tr3b if ct else v_tr3
        off = sl*SLOT + u*8192
        if off + 1024 > 65535:
            r = v_t5 if ct else v_t4
            if cur.get(ct) != sl:
                e(f"v_add_u32 v{r}, {sl*SLOT}, v{vb}")
                cur[ct] = sl
            vb = r; off = u*8192
        b = BF3 + (w % 8)*4
        e(f"ds_read_b64_tr_b16 {vr(b,2)}, v{vb} offset:{off}")
        e(f"ds_read_b64_tr_b16 {vr(b+2,2)}, v{vb} offset:{off + 1024}")
        lg.add(w); lg.add(w)
    done = set(["Q4", "Q5", "Q6", "Q7"])
    for w in range(D): rd(w)
    for w in range(len(items)):
        if w + D < len(items):
            rd(w + D)
        pc, u, ct = items[w]
        if pc <= 10: af = AFreg(2*pc + u); tag = f"H{2*pc+u}"; acc = ACB; first = (pc == 0 and u == 0)
        else: af = AOreg(2*(pc-11) + u); tag = f"O{2*(pc-11)+u}"; acc = ACA; first = (pc == 11 and u == 0)
        if pc == 11 and u == 0 and ct == 0:
            while fifo: fifo.pop(0)()
            o_verify()
        a.wait_vm(tag)
        lg.wait([w])
        b = BF3 + (w % 8)*4
        mfma(a, acc + 16*ct, b, af, "0" if first else acc + 16*ct)
        if fifo: fifo.pop(0)()
        if pc >= 11:
            k = w - 44
            if k == 0:
                a.wait_vm("G")
                e(f"v_sub_f32 v{v_c2}, 1.0, v{v_g2}")
                e(f"v_cvt_pk_bf16_f32 v{v_c2}, v{v_c2}, v{v_c2}")
                e(f"v_lshlrev_b32 v{v_c2}, 16, v{v_c2}")
                e(f"v_mov_b32 v{v_c2+1}, v{v_c2}")
                e(f"v_mov_b32 v{v_g2+1}, v{v_g2}")
            elif 2 <= k < 10:
                for q in (2*(k-2), 2*(k-2)+1):
                    e(f"v_pk_mul_f32 v[{ACB+2*q}:{ACB+2*q+1}], v[{ACB+2*q}:{ACB+2*q+1}], v[{v_c2}:{v_c2+1}]")
    lg.drain()
    stamp(a)
    PS = [slot_of[p] for p in (5, 6, 7, 8)]
    e(f"s_cmp_eq_u32 s{s_rg}, 1"); e(f"s_movk_i32 s{s_tmp}, {PS[0]}"); e(f"s_cselect_b32 s{s_tmp}, {PS[1]}, s{s_tmp}")
    e(f"s_cmp_eq_u32 s{s_rg}, 2"); e(f"s_cselect_b32 s{s_tmp}, {PS[2]}, s{s_tmp}")
    e(f"s_cmp_eq_u32 s{s_rg}, 3"); e(f"s_cselect_b32 s{s_tmp}, {PS[3]}, s{s_tmp}")
    e(f"s_lshl_b32 s{s_tmp}, s{s_tmp}, 14")
    e(f"s_lshl_b32 s{s_tmp2}, s{s_cgp}, 13")
    e(f"s_add_u32 s{s_tmp}, s{s_tmp}, s{s_tmp2}")
    e(f"v_and_b32 v{v_t0}, 31, v{v_lane}")
    e(f"v_and_b32 v{v_t1}, 7, v{v_lane}")
    e(f"v_xor_b32 v{v_t1}, v{v_t1}, v{v_hi}")
    e(f"v_lshlrev_b32 v{v_t1}, 4, v{v_t1}")
    e(f"v_lshl_add_u32 v{v_t0}, v{v_t0}, 8, v{v_t1}")
    e(f"v_add_u32 v{v_t0}, s{s_tmp}, v{v_t0}")
    e("s_nop 4")
    for ct in range(2):
        for g4 in range(4):
            b0 = 16*ct + 4*g4
            for q in range(2):
                e(f"v_pk_fma_f32 v[{ACB+b0+2*q}:{ACB+b0+2*q+1}], v[{ACA+b0+2*q}:{ACA+b0+2*q+1}], v[{v_g2}:{v_g2+1}], v[{ACB+b0+2*q}:{ACB+b0+2*q+1}]")
            r = v_t2 + (g4 & 1)
            e(f"v_xor_b32 v{r}, {g4*32}, v{v_t0}")
            e(f"ds_write_b128 v{r}, {vr(ACB + b0, 4)} offset:{ct*128}")
    e(f"v_lshrrev_b32 v{v_t0}, 3, v0")
    e(f"v_and_b32 v{v_t1}, 7, v0")
    e(f"v_and_b32 v{v_t2}, 7, v{v_t0}")
    e(f"v_lshlrev_b32 v{v_t3}, 1, v{v_t1}")
    e(f"v_xor_b32 v{v_t2}, v{v_t2}, v{v_t3}")
    e(f"v_lshlrev_b32 v{v_t2}, 4, v{v_t2}")
    e(f"v_lshl_add_u32 v{v_t2}, v{v_t0}, 8, v{v_t2}")
    e(f"v_xor_b32 v{v_t3}, 16, v{v_t2}")
    e(f"v_add_u32 v{v_t4}, 0x10000, v{v_t2}")
    e(f"v_add_u32 v{v_t5}, 0x10000, v{v_t3}")
    e(f"v_add_u32 v{v_trn}, 0x20000, v{v_t2}")
    e(f"v_add_u32 v{v_trw}, 0x20000, v{v_t3}")
    e(f"v_lshlrev_b32 v{v_t0}, 10, v{v_t0}")
    e(f"v_lshl_add_u32 v{v_t0}, v{v_t1}, 4, v{v_t0}")
    e(f"s_lshl_b32 s{s_tmp}, s{s_rb3}, 16")
    e(f"s_lshl_b32 s{s_tmp2}, s{s_cb3}, 7")
    e(f"s_add_u32 s{s_tmp}, s{s_tmp}, s{s_tmp2}")
    e("s_waitcnt lgkmcnt(0)")
    e("s_barrier")
    for kq in range(4):
        off = PS[kq]*SLOT
        ra, rb_ = ((v_t2, v_t3), (v_t4, v_t5), (v_trn, v_trw))[off >> 16]
        e(f"ds_read_b128 {vr(64 + 8*kq, 4)}, v{ra} offset:{off & 0xffff}")
        e(f"ds_read_b128 {vr(68 + 8*kq, 4)}, v{rb_} offset:{off & 0xffff}")
    e("s_waitcnt lgkmcnt(4)")
    for q in range(4):
        e(f"v_pk_add_f32 v[{64+2*q}:{65+2*q}], v[{64+2*q}:{65+2*q}], v[{72+2*q}:{73+2*q}]")
    e("s_waitcnt lgkmcnt(0)")
    for q in range(4):
        e(f"v_pk_add_f32 v[{80+2*q}:{81+2*q}], v[{80+2*q}:{81+2*q}], v[{88+2*q}:{89+2*q}]")
    for q in range(4):
        e(f"v_pk_add_f32 v[{64+2*q}:{65+2*q}], v[{64+2*q}:{65+2*q}], v[{80+2*q}:{81+2*q}]")
    for q in range(4):
        e(f"v_cvt_pk_bf16_f32 v{64+q}, v{64+2*q}, v{65+2*q}")
    e(f"buffer_store_dwordx4 v[64:67], v{v_t0}, {srd(sOUT)}, s{s_tmp} offen {os.environ.get('GEN_OST','sc1').replace('_',' ')}")
    stamp(a, final=True)

def common_setup(a):
    e = a.e
    l = a.newlabel("Lcas")
    e(f"s_or_b32 s{s_nonce}, s{s_nonce}, 1")
    e(f"s_or_b32 s{s_tmp}, s{s_wv}, s2")
    e(f"s_cmp_lg_u32 s{s_tmp}, 0")
    e(f"s_cbranch_scc1 {l}")
    e(f"v_mov_b32 v{v_non}, s{s_nonce}")
    e(f"v_mov_b32 v{v_non+1}, s{s_nonce+1}")
    e(f"v_mov_b32 v{v_t4}, 0")
    e(f"s_mov_b64 s[{s_exec}:{s_exec+1}], exec")
    e("s_mov_b64 exec, 1")
    e(f"buffer_store_dwordx2 {vr(v_non,2)}, v{v_t4}, {srd(sDBG)}, 0 offen sc1")
    e(f"s_mov_b64 exec, s[{s_exec}:{s_exec+1}]")
    a.label(l)
    e(f"s_lshl_b32 s{s_tmp}, s{s_rb}, 2")
    e(f"s_add_u32 s{s_tmp}, s{s_tmp}, s{s_rg}")
    e(f"s_lshl_b32 s{s_oa}, s{s_tmp}, 15")
    e(f"s_lshl_b32 s{s_tmp2}, s{s_cg}, 1")
    e(f"s_add_u32 s{s_tmp2}, s{s_tmp2}, s{s_cgp}")
    e(f"s_lshl_b32 s{s_tmp2}, s{s_tmp2}, 10")
    e(f"s_add_u32 s{s_oa}, s{s_oa}, s{s_tmp2}")
    e(f"s_add_u32 s{s_oa}, s{s_oa}, {OF}")
    for i in range(4): e(f"v_mov_b32 v{ACC+i}, -1")
    a.vmem(f"buffer_store_dwordx4 {vr(ACC,4)}, v{v_l16}, {srd(sWS)}, s{s_oa} offen sc1", "SENT")
    e(f"v_and_b32 v{v_t0}, 31, v{v_lane}")
    e(f"v_lshrrev_b32 v{v_hi}, 5, v{v_lane}")
    e(f"v_and_b32 v{v_t1}, 15, v{v_lane}")
    e(f"v_xor_b32 v{v_t1}, v{v_t1}, v{v_hi}")
    e(f"v_lshlrev_b32 v{v_t1}, 4, v{v_t1}")
    e(f"v_lshl_add_u32 v{v_xrd}, v{v_t0}, 8, v{v_t1}")
    e(f"s_lshl_b32 s{s_tmp}, s{s_rg}, 13")
    e(f"v_add_u32 v{v_xrd}, s{s_tmp}, v{v_xrd}")
    e(f"v_and_b32 v{v_t0}, 15, v{v_lane}")
    e(f"v_lshrrev_b32 v{v_t1}, 2, v{v_t0}")
    e(f"v_bfe_u32 v{v_t2}, v{v_lane}, 4, 1")
    e(f"v_bfe_u32 v{v_t3}, v{v_lane}, 1, 1")
    e(f"v_lshl_add_u32 v{v_t2}, v{v_t2}, 1, v{v_t3}")
    e(f"v_and_b32 v{v_t3}, 1, v{v_lane}")
    e(f"v_lshlrev_b32 v{v_t3}, 3, v{v_t3}")
    e(f"v_lshl_add_u32 v{v_t2}, v{v_t2}, 4, v{v_t3}")
    e(f"v_lshrrev_b32 v{v_t3}, 1, v{v_t1}")
    e(f"v_xor_b32 v{v_t4}, s{s_cgp}, v{v_t3}")
    e(f"v_lshl_add_u32 v{v_t4}, v{v_t4}, 6, v{v_t2}")
    e(f"v_lshl_add_u32 v{v_t5}, v{v_hi}, 3, v{v_t1}")
    e(f"v_lshl_add_u32 v{v_trn}, v{v_t5}, 7, v{v_t4}")
    e(f"s_cmp_eq_u32 s{s_cgp}, 0")
    e(f"s_movk_i32 s{s_tmp}, 192")
    e(f"s_cselect_b32 s{s_tmp}, 64, s{s_tmp}")
    e(f"s_lshl_b32 s{s_k16}, s{s_tmp}, 4")
    e(f"s_lshl_b32 s{s_tmp2}, s{s_cgp}, 12")
    e(f"v_mad_u32_u24 v{v_trw}, v{v_t5}, s{s_tmp}, v{v_t2}")
    e(f"v_add_u32 v{v_trw}, s{s_tmp2}, v{v_trw}")
    e(f"s_lshl_b32 s{s_tmp}, s{s_tmp}, 2")
    e(f"v_add_u32 v{v_omg2}, s{s_tmp}, v{v_trw}")
    e(f"s_movk_i32 s{s_tmp}, 192")
    e(f"v_mad_u32_u24 v{v_trw2}, v{v_t5}, s{s_tmp}, v{v_t2}")
    e(f"s_lshl_b32 s{s_tmp2}, s{s_cgp}, 6")
    e(f"s_add_u32 s{s_tmp2}, s{s_tmp2}, {4096 + 64}")
    e(f"v_add_u32 v{v_trw2}, s{s_tmp2}, v{v_trw2}")
    e(f"v_lshl_add_u32 v{v_t4}, v{v_t3}, 6, v{v_t2}")
    e(f"v_lshl_add_u32 v{v_t5}, v{v_hi}, 2, v{v_t1}")
    e(f"v_lshl_add_u32 v{v_tr3}, v{v_t5}, 7, v{v_t4}")
    e(f"s_lshl_b32 s{s_tmp}, s{s_rg}, 11")
    e(f"v_add_u32 v{v_tr3}, s{s_tmp}, v{v_tr3}")
    e(f"v_xor_b32 v{v_tr3b}, 64, v{v_tr3}")

def wide_setup(a):
    e = a.e
    lq = a.newlabel("Lwq"); lj = a.newlabel("Lwj")
    e(f"s_cmp_lt_u32 s{s_wv}, 2")
    e(f"s_cbranch_scc1 {lq}")
    e(f"s_mov_b32 s{sPW}, s{sW1}"); e(f"s_mov_b32 s{sPW+1}, s{sW1+1}"); e(f"s_mov_b32 s{sPW+2}, {512*1376*2}"); e(f"s_mov_b32 s{sPW+3}, 0x00020000")
    e(f"s_sub_u32 s{s_tmp}, s{s_wv}, 2")
    e(f"s_lshl_b32 s{s_tmp}, s{s_tmp}, 7")
    e(f"s_movk_i32 s{s_tmp3}, 2752")
    e(f"s_movk_i32 s{s_tmp4}, 5462")
    for t in range(2):
        e(f"v_add_u32 v{v_t0}, s{s_tmp}, v{v_lane}")
        if t: e(f"v_add_u32 v{v_t0}, 64, v{v_t0}")
        e(f"v_mul_u32_u24 v{v_t1}, s{s_tmp4}, v{v_t0}")
        e(f"v_lshrrev_b32 v{v_t1}, 16, v{v_t1}")
        e(f"v_mul_u32_u24 v{v_t2}, 12, v{v_t1}")
        e(f"v_sub_u32 v{v_t0}, v{v_t0}, v{v_t2}")
        e(f"v_lshlrev_b32 v{v_t0}, 4, v{v_t0}")
        e(f"v_mad_u32_u24 v{v_wd0+t}, v{v_t1}, s{s_tmp3}, v{v_t0}")
    e(f"s_mul_i32 s{s_wbase}, s{s_cg}, 192")
    e(f"s_cmp_eq_u32 s{s_cg}, 15")
    e(f"s_cselect_b32 s{s_wbase}, {OOB}, s{s_wbase}")
    e(f"s_mov_b32 s{s_pstep}, {64*2752}")
    e(f"s_branch {lj}")
    a.label(lq)
    e(f"s_mov_b32 s{sPW}, s{sWQ}"); e(f"s_mov_b32 s{sPW+1}, s{sWQ+1}"); e(f"s_mov_b32 s{sPW+2}, {512*1536*2}"); e(f"s_mov_b32 s{sPW+3}, 0x00020000")
    e(f"s_lshl_b32 s{s_tmp}, s{s_wv}, 5")
    e(f"s_movk_i32 s{s_tmp3}, 3072")
    e(f"v_lshrrev_b32 v{v_t1}, 2, v{v_lane}")
    e(f"v_add_u32 v{v_t1}, s{s_tmp}, v{v_t1}")
    e(f"v_and_b32 v{v_t0}, 3, v{v_lane}")
    e(f"v_lshlrev_b32 v{v_t0}, 4, v{v_t0}")
    e(f"v_mad_u32_u24 v{v_wd0}, v{v_t1}, s{s_tmp3}, v{v_t0}")
    e(f"v_add_u32 v{v_wd1}, {16*3072}, v{v_wd0}")
    e(f"s_lshl_b32 s{s_wbase}, s{s_cg}, 6")
    e(f"s_mov_b32 s{s_pstep}, {64*3072}")
    a.label(lj)

def gen():
    a = Asm()
    e = a.e
    e("s_cmp_ge_u32 s2, 256")
    e("s_cbranch_scc1 L_exit")
    stamp(a)
    e("s_load_dwordx4 s[8:11], s[0:1], 0")
    e("s_load_dwordx2 s[24:25], s[0:1], 16")
    e("s_load_dwordx4 s[16:19], s[0:1], 32")
    e("s_load_dwordx4 s[36:39], s[0:1], 48")
    e("s_load_dwordx4 s[40:43], s[0:1], 64")
    e(f"s_memrealtime s[{s_nonce}:{s_nonce+1}]")
    e(f"v_and_b32 v{v_lane}, 63, v0")
    e(f"v_lshrrev_b32 v{v_t0}, 6, v0")
    e(f"v_lshlrev_b32 v{v_l16}, 4, v{v_lane}")
    e(f"v_readfirstlane_b32 s{s_wv}, v{v_t0}")
    if env("GEN_CPF", 0):
        e(f"s_getpc_b64 s[{s_m2}:{s_m2+1}]")
        a.label("L_pc")
        e(f"s_lshr_b32 s{s_tmp}, s2, 3")
        e(f"s_lshl_b32 s{s_tmp}, s{s_tmp}, 3")
        e(f"s_add_u32 s{s_tmp}, s{s_tmp}, s{s_wv}")
        e(f"s_lshl_b32 s{s_tmp}, s{s_tmp}, 6")
        e(f"s_load_dword s{s_cnt}, s[{s_m2}:{s_m2+1}], s{s_tmp}")
        e(f"s_lshr_b32 s{s_tmp}, s{s_tmp}, 2")
        e(f"s_and_b32 s{s_tmp}, s{s_tmp}, 0xfc0")
        e(f"s_add_u32 s{s_tmp}, s{s_tmp}, 16384")
        e(f"s_min_u32 s{s_tmp}, s{s_tmp}, L_exit-L_pc")
        e(f"s_load_dword s{s_cnt}, s[{s_m2}:{s_m2+1}], s{s_tmp}")
    e(f"s_and_b32 s{s_tmp}, s2, 7")
    e(f"s_lshr_b32 s{s_tmp2}, s2, 3")
    e(f"s_and_b32 s{s_rb}, s{s_tmp}, 1")
    e(f"s_lshl_b32 s{s_rb}, s{s_rb}, 3")
    e(f"s_and_b32 s{s_tmp3}, s{s_tmp2}, 7")
    e(f"s_add_u32 s{s_rb}, s{s_rb}, s{s_tmp3}")
    e(f"s_lshr_b32 s{s_cg}, s{s_tmp}, 1")
    e(f"s_lshl_b32 s{s_cg}, s{s_cg}, 2")
    e(f"s_lshr_b32 s{s_tmp3}, s{s_tmp2}, 3")
    e(f"s_add_u32 s{s_cg}, s{s_cg}, s{s_tmp3}")
    e(f"s_lshr_b32 s{s_p}, s{s_cg}, 1")
    e(f"s_and_b32 s{s_t}, s{s_cg}, 1")
    e(f"s_lshl_b32 s{s_rb3}, s{s_tmp}, 2")
    e(f"s_and_b32 s{s_tmp3}, s{s_tmp2}, 3")
    e(f"s_add_u32 s{s_rb3}, s{s_rb3}, s{s_tmp3}")
    e(f"s_lshr_b32 s{s_cb3}, s{s_tmp2}, 2")
    e(f"s_and_b32 s{s_rg}, s{s_wv}, 3")
    e(f"s_lshr_b32 s{s_cgp}, s{s_wv}, 2")
    e(f"s_lshl_b32 s{s_ldsw}, s{s_wv}, 11")
    e(f"s_lshl_b32 s{s_xlds}, s{s_wv}, 12")
    e(f"s_lshl_b32 s{s_xbase}, s{s_rb}, 17")
    e(f"s_lshl_b32 s{s_tmp3}, s{s_wv}, 14")
    e(f"s_add_u32 s{s_xbase}, s{s_xbase}, s{s_tmp3}")
    if STAMPS:
        e(f"s_lshl_b32 s{s_tsb}, s2, 3")
        e(f"s_add_u32 s{s_tsb}, s{s_tsb}, s{s_wv}")
        e(f"s_lshl_b32 s{s_tsb}, s{s_tsb}, 7")
        e(f"s_add_u32 s{s_tsb}, s{s_tsb}, {TS}")
    e(f"v_lshrrev_b32 v{v_t0}, 4, v{v_lane}")
    e(f"v_and_b32 v{v_t1}, 15, v{v_lane}")
    e(f"v_xor_b32 v{v_t1}, v{v_t1}, v{v_t0}")
    e(f"v_lshlrev_b32 v{v_t0}, 10, v{v_t0}")
    for t in range(4):
        e(f"v_xor_b32 v{v_t2}, {4*t}, v{v_t1}")
        e(f"v_lshl_add_u32 v{v_xo+t}, v{v_t2}, 4, v{v_t0}")
    e(f"v_lshrrev_b32 v{v_t0}, 3, v{v_lane}")
    e(f"v_and_b32 v{v_t1}, 7, v{v_lane}")
    e(f"v_lshrrev_b32 v{v_t2}, 2, v{v_lane}")
    e(f"v_and_b32 v{v_t2}, 4, v{v_t2}")
    e(f"v_xor_b32 v{v_t1}, v{v_t1}, v{v_t2}")
    e(f"v_lshlrev_b32 v{v_t1}, 4, v{v_t1}")
    e(f"s_movk_i32 s{s_tmp3}, 3072")
    e(f"v_mad_u32_u24 v{v_wq_n}, v{v_t0}, s{s_tmp3}, v{v_t1}")
    e(f"v_lshl_add_u32 v{v_w2_n}, v{v_t0}, 10, v{v_t1}")
    e(f"s_mul_i32 s{s_naroff}, s{s_wv}, {16*3072}")
    e(f"s_lshl_b32 s{s_tmp3}, s{s_p}, 7")
    e(f"s_add_u32 s{s_naroff}, s{s_naroff}, s{s_tmp3}")
    e(f"s_lshl_b32 s{s_tmp3}, s{s_t}, 10")
    e(f"s_add_u32 s{s_naroff}, s{s_naroff}, s{s_tmp3}")
    e(f"s_add_u32 s{s_naroff}, s{s_naroff}, 1024")
    e(f"s_lshl_b32 s{s_tmp3}, s{s_p}, 1")
    e(f"s_add_u32 s{s_tmp3}, s{s_tmp3}, s{s_cgp}")
    e(f"s_lshl_b32 s{s_tmp3}, s{s_tmp3}, 6")
    e(f"s_lshl_b32 s{s_tmp4}, s{s_rb}, 2")
    e(f"s_add_u32 s{s_tmp4}, s{s_tmp4}, s{s_rg}")
    e(f"s_add_u32 s{s_tmp3}, s{s_tmp3}, s{s_tmp4}")
    e(f"s_lshl_b32 s{s_st0}, s{s_tmp3}, 11")
    e(f"s_lshl_b32 s{s_tmp3}, s{s_t}, 21")
    e(f"s_add_u32 s{s_st0}, s{s_st0}, s{s_tmp3}")
    e(f"s_add_u32 s{s_st0}, s{s_st0}, {KF}")
    e(f"s_mul_i32 s{s_tmp4}, s{s_tmp4}, {HROW}")
    e(f"s_add_u32 s{s_tmp4}, s{s_tmp4}, {HF}")
    e(f"s_mul_i32 s{s_tmp3}, s{s_cg}, 3")
    e(f"s_lshl_b32 s{s_st1}, s{s_tmp3}, 11")
    e(f"s_add_u32 s{s_st1}, s{s_st1}, s{s_tmp4}")
    e(f"s_cmp_ge_u32 s{s_tmp3}, 43")
    e(f"s_cselect_b32 s{s_st1}, {OOB}, s{s_st1}")
    e(f"s_cmp_eq_u32 s{s_cgp}, 0")
    e(f"s_cselect_b32 s{s_st1}, {OOB}, s{s_st1}")
    e(f"s_add_u32 s{s_tmp3}, s{s_tmp3}, s{s_cgp}")
    e(f"s_add_u32 s{s_tmp3}, s{s_tmp3}, 1")
    e(f"s_lshl_b32 s{s_st2}, s{s_tmp3}, 11")
    e(f"s_add_u32 s{s_st2}, s{s_st2}, s{s_tmp4}")
    e(f"s_cmp_ge_u32 s{s_tmp3}, 43")
    e(f"s_cselect_b32 s{s_st2}, {OOB}, s{s_st2}")
    e(f"s_lshl_b32 s{s_w2off}, s{s_wv}, 14")
    e(f"s_lshl_b32 s{s_tmp3}, s{s_cb3}, 7")
    e(f"s_add_u32 s{s_w2off}, s{s_w2off}, s{s_tmp3}")
    e("s_waitcnt lgkmcnt(0)")
    e("s_mov_b32 s12, s10"); e("s_mov_b32 s13, s11"); e(f"s_mov_b32 s14, {512*1536*2}"); e("s_mov_b32 s15, 0x00020000")
    e(f"s_mov_b32 s10, {2048*512*2}"); e("s_mov_b32 s11, 0x00020000")
    e("s_mov_b32 s32, s38"); e("s_mov_b32 s33, s39"); e(f"s_mov_b32 s34, {2048*512*2}"); e("s_mov_b32 s35, 0x00020000")
    e("s_mov_b32 s38, 1024"); e("s_mov_b32 s39, 0x00020000")
    e(f"s_mov_b32 s{s_ldsww}, 0")
    e(f"s_mov_b32 s{s_gw}, 0")
    lg_ = a.newlabel("Lgs")
    e(f"s_cmp_lg_u32 s{s_cg}, 15")
    e(f"s_cbranch_scc1 {lg_}")
    e(f"s_cmp_lt_u32 s{s_wv}, 2")
    e(f"s_cbranch_scc1 {lg_}")
    e(f"s_mov_b32 s{s_ldsww}, 0x30000")
    e(f"s_cmp_lg_u32 s{s_wv}, 2")
    e(f"s_cbranch_scc1 {lg_}")
    e(f"s_mov_b32 s{s_gw}, 1")
    e(f"v_lshlrev_b32 v{v_t0}, 1, v{v_lane}")
    for j in range(8):
        e(f"buffer_load_ushort v{GREG+j}, v{v_t0}, {srd(sGW)}, 0 offen offset:{j*128}")
    e(f"s_movk_i32 s{s_tmp3}, 192")
    e(f"v_mul_u32_u24 v{v_g2}, s{s_tmp3}, v{v_lane}")
    a.label(lg_)
    e("s_mov_b32 s20, s18"); e("s_mov_b32 s21, s19"); e(f"s_mov_b32 s22, {1376*512*2}"); e("s_mov_b32 s23, 0x00020000")
    e(f"s_mov_b32 s18, {512*1376*2}"); e("s_mov_b32 s19, 0x00020000")
    if TOUCH in (2, 9): touch(a, (sX, sWQ, sW1), 224)
    if TOUCH == 4: touch_l2(a)
    issue_x_quarter(a, 0)
    issue_piece(a, 0, CFG['init'][0])
    if TOUCH == 3: touch(a, (sX, sWQ, sW1), 224)
    if TOUCH == 5: touch_l2(a)
    e(f"s_mov_b32 s26, {512*512*2}"); e("s_mov_b32 s27, 0x00020000")
    e("s_mov_b32 s28, s42"); e("s_mov_b32 s29, s43"); e(f"s_mov_b32 s30, {WS_BYTES}"); e("s_mov_b32 s31, 0x00020000")
    e("s_mov_b32 s42, 256"); e("s_mov_b32 s43, 0x00020000")
    if env("GEN_TLB", 2): tlb_warm(a, env("GEN_TLB", 2))
    if TOUCH == 9: touch(a, (sW2, sWO), 240)
    if TOUCH == 7: touch_scalar(a, "xq12o")
    if TOUCH == 8: touch_scalar(a, "xq1")
    stamp(a)
    if env("GEN_ST3",0): stamp(a)
    common_setup(a)
    wide_setup(a)
    if env("GEN_ST3",0): stamp(a)
    kv_flag_setup(a)
    lm_ = a.newlabel("Lmk")
    e(f"s_cmp_lg_u32 s{s_gw}, 0")
    e(f"s_cbranch_scc1 {lm_}")
    build_maskd(a)
    a.label(lm_)
    if env("GEN_ST3",0): stamp(a)
    e("s_barrier")
    issue_x_quarter(a, 1)
    issue_piece(a, 1, CFG['init'][1])
    e(f"s_cmp_lg_u32 s{s_t}, 0")
    e("s_cbranch_scc1 L_s1v")
    w2_slot = run_stage1(a)
    stamp(a)
    attention(a, w2_slot)
    stage3(a, w2_slot)
    a.label("L_exit")
    a.e("s_endpgm")
    return a

def touch(a, srds, T):
    e = a.e
    e(f"s_lshl_b32 s{s_tmp}, s2, 3")
    e(f"s_add_u32 s{s_tmp}, s{s_tmp}, s{s_wv}")
    e(f"s_lshl_b32 s{s_tmp}, s{s_tmp}, 10")
    for i, sr in enumerate(srds):
        a.vmem(f"buffer_load_dwordx4 {vr(T+4*i,4)}, v{v_l16}, {srd(sr)}, s{s_tmp} offen", "TCH")

def touch_l2(a):
    e = a.e
    T = 224
    lx = a.newlabel("Ltx"); lk = a.newlabel("Ltk"); lq = a.newlabel("Ltq"); lj = a.newlabel("Ltj")
    e(f"s_lshr_b32 s{s_tmp}, s2, 3")
    e(f"s_and_b32 s{s_tmp2}, s2, 7")
    e(f"s_lshr_b32 s{s_tmp3}, s{s_tmp2}, 1")
    e(f"s_cmp_lt_u32 s{s_wv}, 4")
    e(f"s_cbranch_scc1 {lx}")
    e(f"s_cmp_eq_u32 s{s_wv}, 4")
    e(f"s_cbranch_scc1 {lk}")
    e(f"s_cmp_eq_u32 s{s_wv}, 5")
    e(f"s_cbranch_scc1 {lq}")
    e(f"s_sub_u32 s{s_tmp4}, s{s_wv}, 6")
    e(f"s_lshl_b32 s{s_tmp4}, s{s_tmp4}, 3")
    e(f"s_lshl_b32 s{s_tmp}, s{s_tmp}, 4")
    e(f"s_add_u32 s{s_tmp}, s{s_tmp}, s{s_tmp4}")
    e(f"s_mul_i32 s{s_tmp}, s{s_tmp}, 2752")
    e(f"s_mul_i32 s{s_tmp3}, s{s_tmp3}, 768")
    e(f"s_add_u32 s{s_tmp}, s{s_tmp}, s{s_tmp3}")
    e(f"v_lshrrev_b32 v{v_t0}, 3, v{v_lane}")
    e(f"s_movk_i32 s{s_tmp4}, 2752")
    e(f"v_mul_u32_u24 v{v_t0}, s{s_tmp4}, v{v_t0}")
    e(f"v_and_b32 v{v_t1}, 7, v{v_lane}")
    e(f"v_min_u32 v{v_t1}, 6, v{v_t1}")
    e(f"v_lshl_add_u32 v{v_t0}, v{v_t1}, 7, v{v_t0}")
    e(f"buffer_load_dword v{T}, v{v_t0}, {srd(sW1)}, s{s_tmp} offen")
    e(f"s_branch {lj}")
    a.label(lx)
    e(f"s_and_b32 s{s_tmp2}, s{s_tmp2}, 1")
    e(f"s_lshl_b32 s{s_tmp2}, s{s_tmp2}, 20")
    e(f"s_lshl_b32 s{s_tmp}, s{s_tmp}, 15")
    e(f"s_add_u32 s{s_tmp}, s{s_tmp}, s{s_tmp2}")
    e(f"s_lshl_b32 s{s_tmp2}, s{s_wv}, 8")
    e(f"s_add_u32 s{s_tmp}, s{s_tmp}, s{s_tmp2}")
    e(f"v_lshrrev_b32 v{v_t0}, 1, v{v_lane}")
    e(f"v_lshlrev_b32 v{v_t0}, 10, v{v_t0}")
    e(f"v_and_b32 v{v_t1}, 1, v{v_lane}")
    e(f"v_lshl_add_u32 v{v_t0}, v{v_t1}, 7, v{v_t0}")
    e(f"buffer_load_dword v{T}, v{v_t0}, {srd(sX)}, s{s_tmp} offen")
    e(f"s_branch {lj}")
    a.label(lk)
    e(f"s_mul_i32 s{s_tmp}, s{s_tmp}, {16*3072}")
    e(f"s_lshl_b32 s{s_tmp3}, s{s_tmp3}, 8")
    e(f"s_add_u32 s{s_tmp}, s{s_tmp}, s{s_tmp3}")
    e(f"s_add_u32 s{s_tmp}, s{s_tmp}, 1024")
    e(f"v_lshrrev_b32 v{v_t0}, 2, v{v_lane}")
    e(f"s_movk_i32 s{s_tmp4}, 3072")
    e(f"v_mul_u32_u24 v{v_t0}, s{s_tmp4}, v{v_t0}")
    e(f"v_and_b32 v{v_t1}, 1, v{v_lane}")
    e(f"v_lshl_add_u32 v{v_t0}, v{v_t1}, 10, v{v_t0}")
    e(f"v_bfe_u32 v{v_t1}, v{v_lane}, 1, 1")
    e(f"v_lshl_add_u32 v{v_t0}, v{v_t1}, 7, v{v_t0}")
    e(f"buffer_load_dword v{T}, v{v_t0}, {srd(sWQ)}, s{s_tmp} offen")
    e(f"s_branch {lj}")
    a.label(lq)
    e(f"s_mul_i32 s{s_tmp}, s{s_tmp}, {16*3072}")
    e(f"s_lshl_b32 s{s_tmp3}, s{s_tmp3}, 8")
    e(f"s_add_u32 s{s_tmp}, s{s_tmp}, s{s_tmp3}")
    e(f"v_bfe_u32 v{v_t0}, v{v_lane}, 1, 4")
    e(f"s_movk_i32 s{s_tmp4}, 3072")
    e(f"v_mul_u32_u24 v{v_t0}, s{s_tmp4}, v{v_t0}")
    e(f"v_and_b32 v{v_t1}, 1, v{v_lane}")
    e(f"v_lshl_add_u32 v{v_t0}, v{v_t1}, 7, v{v_t0}")
    e(f"buffer_load_dword v{T}, v{v_t0}, {srd(sWQ)}, s{s_tmp} offen")
    a.label(lj)
    a.vm.append("TCH")

def touch_l2_s3(a, part, nparts):
    e = a.e
    T = v_xo + 3
    l1 = a.newlabel("Lt3"); lj = a.newlabel("Lt3j")
    n = 64 // nparts
    mask = ((1 << n) - 1) << (n * part)
    e(f"s_lshr_b32 s{s_tmp}, s2, 3")
    e(f"s_lshl_b32 s{s_tmp}, s{s_tmp}, 3")
    e(f"s_add_u32 s{s_tmp}, s{s_tmp}, s{s_wv}")
    e(f"s_mul_i32 s{s_tmp}, s{s_tmp}, {n*128}")
    e(f"s_add_u32 s{s_tmp}, s{s_tmp}, {part * 256 * n * 128 - part*n*128}")
    e(f"v_lshlrev_b32 v{v_t2}, 7, v{v_lane}")
    e(f"s_mov_b32 exec_lo, 0x{mask & 0xffffffff:x}")
    e(f"s_mov_b32 exec_hi, 0x{mask >> 32:x}")
    lim = 1376*1024
    if (part + 1) * 256 * n * 128 <= 0x180000:
        e(f"buffer_load_dword v{T}, v{v_t2}, {srd(sW2)}, s{s_tmp} offen")
    else:
        e(f"s_sub_u32 s{s_tmp}, s{s_tmp}, 0x180000")
        e(f"buffer_load_dword v{T}, v{v_t2}, {srd(sWO)}, s{s_tmp} offen")
    e("s_mov_b64 exec, -1")
    a.vm.append("TCH")

def touch_scalar(a, which):
    e = a.e
    e(f"s_lshl_b32 s{s_tmp}, s2, 3")
    e(f"s_add_u32 s{s_tmp}, s{s_tmp}, s{s_wv}")
    tab = {"x": (sX, 8), "q": (sWQ, 6), "1": (sW1, 6), "2": (sW2, 6), "o": (sWO, 2)}
    for w in which:
        sr, n = tab[w]
        e(f"s_mul_i32 s{s_tmp2}, s{s_tmp}, {n*128}")
        for i in range(n):
            e(f"s_buffer_load_dword s{s_cnt}, {srd(sr)}, s{s_tmp2} offset:{i*128}")

def tlb_warm(a, mode):
    e = a.e
    e(f"s_lshl_b32 s{s_tmp}, s{s_wv}, 21")
    e(f"s_buffer_load_dword s{s_cnt}, {srd(sWS)}, s{s_tmp}")
    e(f"s_add_u32 s{s_tmp}, s{s_tmp}, 0x100000")
    e(f"s_buffer_load_dword s{s_cnt}, {srd(sWS)}, s{s_tmp}")
    e(f"s_lshl_b32 s{s_tmp}, s{s_wv}, 18")
    e(f"s_buffer_load_dword s{s_cnt}, {srd(sOUT)}, s{s_tmp}")
    if mode >= 2:
        e(f"s_buffer_load_dword s{s_cnt}, {srd(sW2)}, s{s_tmp}")
        e(f"s_buffer_load_dword s{s_cnt}, {srd(sWO)}, s{s_tmp}")
        e(f"s_buffer_load_dword s{s_cnt}, {srd(sDBG)}, 128")

HEADER = open(os.path.join(os.path.dirname(os.path.abspath(__file__)), "..", "cdna_kernels", NAME + ".s.ref")).read().split("; Override launch")[0]

def emit_file(path):
    a = gen()
    s = HEADER
    s += "; @launch grid=(256,1,1) block=(512,1,1) lds=163840\n"
    s += f""".amdgcn_target "amdgcn-amd-amdhsa--gfx950"
.text
.globl {NAME}_kernel
.p2align 8
.type {NAME}_kernel,@function
{NAME}_kernel:
"""
    s += "\n".join(a.lines) + "\n"
    s += f""".section .rodata,"a"
.p2align 6
.amdhsa_kernel {NAME}_kernel
  .amdhsa_next_free_vgpr 256
  .amdhsa_next_free_sgpr {NSGPR}
  .amdhsa_accum_offset 256
  .amdhsa_group_segment_fixed_size 0
  .amdhsa_kernarg_size 80
  .amdhsa_user_sgpr_count 2
  .amdhsa_user_sgpr_kernarg_segment_ptr 1
  .amdhsa_system_sgpr_workgroup_id_x 1
.end_amdhsa_kernel
"""
    open(path, "w").write(s)

if __name__ == "__main__":
    out = sys.argv[1] if len(sys.argv) > 1 else os.path.join(os.path.dirname(os.path.abspath(__file__)), "..", "cdna_kernels", NAME + ".s")
    emit_file(out)
```

```python
import sys, math, os, struct

NAME = "gated_mix__sliding_block__dense_activation_relu__prompt"

KF = 0x200000
VF = 0x400000
OF = 0x600000
HF = 0x800000
GB = 0xE00000
FL = 0xF00000
TS = 0xF80000
WS_BYTES = 0x1000000
HROW = 86 * 1024
OOB = 0x40000000
SLOT = 16384

def env(n, d): return int(os.environ.get(n, d))
STAMPS = env("GEN_STAMPS", 0) >= 1
STAMPS2 = env("GEN_STAMPS", 0) >= 2
TOUCH = env("GEN_TOUCH", 2)
NT = env("GEN_NT", 0)
ROT = env("GEN_ROT", 0)

class Asm:
    def __init__(self):
        self.lines = []; self.vm = []; self.uid = 0; self.nstamp = 0
    def e(self, s): self.lines.append("    " + s)
    def label(self, l): self.lines.append(l + ":")
    def c(self, s): self.lines.append("    ; " + s)
    def newlabel(self, p="L"):
        self.uid += 1
        return f"{p}_{self.uid}"
    def vmem(self, s, tag):
        self.e(s); self.vm.append(tag)
    def wait_vm(self, tags, lgkm0=False):
        if isinstance(tags, str): tags = [tags]
        last = -1
        for i, t in enumerate(self.vm):
            if t in tags: last = i
        x = " lgkmcnt(0)" if lgkm0 else ""
        if last < 0:
            if lgkm0: self.e("s_waitcnt lgkmcnt(0)")
            return
        n = len(self.vm) - 1 - last
        assert n <= 63
        self.e(f"s_waitcnt vmcnt({n}){x}")
        self.vm = self.vm[last + 1:]

class Lg:
    def __init__(self, a): self.a = a; self.q = []
    def add(self, tag): self.q.append(tag)
    def wait(self, tags):
        last = -1
        for i, t in enumerate(self.q):
            if t in tags: last = i
        if last < 0: return
        n = min(len(self.q) - 1 - last, 15)
        self.a.e(f"s_waitcnt lgkmcnt({n})")
        self.q = self.q[len(self.q) - n:] if n else []
    def clear(self): self.q = []
    def drain(self):
        if self.q: self.a.e("s_waitcnt lgkmcnt(0)")
        self.q = []

sX, sWQ, sW1, sW2, sWO, sWS, sOUT, sGW, sDBG, sPW = 8, 12, 16, 20, 24, 28, 32, 36, 40, 88
def srd(b): return f"s[{b}:{b+3}]"
s_wv, s_rb, s_cg, s_p, s_t, s_rg, s_cgp, s_rb3, s_cb3, s_xbase = range(44, 54)
s_tmp, s_tmp2, s_wideoff, s_naroff = 54, 55, 56, 57
s_nonce = 58
s_tmp3, s_tmp4, s_st0, s_st1, s_first, s_w2off, s_xlds, s_cnt = range(60, 68)
s_exec = 68
s_m = 70; s_m2 = 72; s_m3 = 74
s_ldsw, s_a3, s_a3o, s_qb = 76, 77, 78, 79
s_vm = 80
s_ts = 82
s_tsb, s_ok, s_ga, s_pstep = 84, 85, 86, 87
s_st2 = 92
s_ldsww = 95
s_gw = 7
s_wbase = 5
GREG = 48
s_fl = 6
s_kvb = 3
s_krd = 4
s_vrdb = 98
s_flh = 99
s_flc = 100
v_kf = 25
NSGPR = 102

v_lane, v_l16 = 1, 2
v_xo = 3
v_wq_n, v_wd0, v_wd1, v_xrd, v_trn, v_trw, v_tr3, v_w2_n = 7, 8, 9, 10, 11, 12, 13, 14
v_t0, v_t1 = 15, 16
v_hi = 17
v_t2, v_t3 = 18, 19
v_non = 20
v_c2 = 20
v_mc = 22
v_g2 = 24
v_omg2 = 26
v_t4, v_t5 = 28, 29
v_trw2, v_tr3b = 30, 31
MASKF = 32
MASKD = 48
BF = 64
ACC = 96
XF = 128
v_fo = 252; v_fd = 254

def vr(b, n): return f"v[{b}:{b+n-1}]"

ORD = os.environ.get("GEN_ORD", "A")
CFG = {
 "A": dict(order=[0,1,2,3,4,5,6,7,8,9,10,11], xslot={0:0,1:4,2:6,3:0}, init={0:2,1:3}, atk=6, atv=4, usplit=4, lg=4,
      sched={0:[("X",2,0),("P",2,8),("P",3,9)], 1:[("X",3,0),("P",4,2)], 2:[("P",5,4),("P",6,5),("P",7,3)],
             3:[("P",8,6),("P",9,7),("P",10,8)], 4:[("P",11,9)], 5:[("Q",0,0),("Q",1,1)], 6:[("Q",2,2)], 9:[("Q",3,3)]},
      sig0=6, kvi=9, kvc=11, post=(8,9), non=2),
 "C": dict(order=[0,1,4,2,5,3,6,7,8,9,10,11], xslot={0:0,1:3,2:8,3:0}, init={0:2,1:5}, atk=3, atv=0, usplit=6, lg=6,
      sched={0:[("P",4,6),("X",2,0),("P",2,7)], 1:[("P",5,2),("X",3,0)], 2:[("P",3,5),("P",6,3),("P",7,4)],
             3:[("P",8,6)], 4:[("P",9,7),("P",10,8),("P",11,9)], 5:[("Q",0,2)], 7:[("Q",1,5)], 10:[("Q",2,6)], 11:[("Q",3,7)]},
      sig0=8, kvi=10, kvc=11, post=(8,9), non=3),
}[ORD]
XSLOT = CFG["xslot"]
ATK = CFG['atk'] * SLOT
ATQ = ATK + 24576
ATV = CFG['atv'] * SLOT

v_st = 27
def stamp(a, final=False):
    if not STAMPS: return
    i = a.nstamp; a.nstamp += 1
    cur = s_ts + 2*(i & 1) if False else (s_ts if (i & 1) == 0 else 96)
    prev = (s_ts if ((i-1) & 1) == 0 else 96)
    if i > 0:
        a.e(f"v_writelane_b32 v{v_st}, s{prev}, {i-1}")
    a.e(f"{'s_memrealtime' if env('GEN_RT',0) else 's_memtime'} s[{cur}:{cur+1}]")
    if final:
        a.e("s_waitcnt lgkmcnt(0)")
        a.e(f"v_writelane_b32 v{v_st}, s{cur}, {i}")
        a.e(f"v_lshlrev_b32 v{v_t3}, 2, v{v_lane}")
        a.e("s_mov_b32 exec_lo, -1")
        a.e("s_mov_b32 exec_hi, 0")
        a.e(f"buffer_store_dword v{v_st}, v{v_t3}, {srd(sWS)}, s{s_tsb} offen")
        if env("GEN_DBG", 0):
            l = a.newlabel("Ldbg")
            a.e(f"s_cmp_lg_u32 s2, {env('GEN_DBG',0)}")
            a.e(f"s_cbranch_scc1 {l}")
            a.e(f"s_cmp_lg_u32 s{s_wv}, 0")
            a.e(f"s_cbranch_scc1 {l}")
            a.e(f"v_readlane_b32 s{s_tmp}, v{v_st}, 0")
            a.e("s_nop 3")
            a.e(f"v_subrev_u32 v{v_st}, s{s_tmp}, v{v_st}")
            a.e("s_mov_b32 exec_lo, 0x3ffe")
            a.e(f"buffer_store_dword v{v_st}, v{v_t3}, {srd(sDBG)}, 0 offen offset:4")
            a.label(l)

def dma(a, voff, srd_b, soff, lds_sgpr, ldsimm, tag, sc1=False):
    a.e(f"s_add_u32 m0, s{lds_sgpr}, {ldsimm}")
    a.e("s_nop 0")
    nt = " nt" if (not sc1 and ((NT & 1) and tag[0] in "XP" or (NT & 2) and tag[0] == "Q")) else ""
    a.vmem(f"buffer_load_dwordx4 v{voff}, {srd(srd_b)}, {soff} offen{' sc1' if sc1 else ''}{nt} lds", tag)

def x_ops(a, j):
    ops = []
    for t in range(4):
        def f(t=t):
            a.e(f"s_add_u32 s{s_tmp}, s{s_xbase}, {t*4096 + j*256}")
            dma(a, v_xo + t, sX, f"s{s_tmp}", s_xlds, XSLOT[j]*SLOT + t*1024, f"X{j}")
        ops.append(f)
    return ops

def piece_ops(a, i, slot):
    ops = []
    for t in range(2):
        if i < 4:
            def f(t=t):
                a.e(f"s_add_u32 s{s_tmp}, s{s_naroff}, {(128*i + 8*t)*3072}")
                dma(a, v_wq_n, sWQ, f"s{s_tmp}", s_ldsw, slot*SLOT + t*1024, f"P{i}")
        else:
            def f(t=t):
                if t == 0:
                    a.e(f"s_mul_i32 s{s_wideoff}, s{s_pstep}, {i-4}")
                    a.e(f"s_add_u32 s{s_wideoff}, s{s_wideoff}, s{s_wbase}")
                a.e(f"s_add_u32 s{s_tmp}, s{s_ldsw}, {slot*SLOT + t*1024}")
                a.e(f"s_max_u32 m0, s{s_tmp}, s{s_ldsww}")
                a.e("s_nop 0")
                a.vmem(f"buffer_load_dwordx4 v{v_wd0 + t}, {srd(sPW)}, s{s_wideoff} offen{' nt' if NT & 1 else ''} lds", f"P{i}")
                if t == 1:
                    l = a.newlabel("Lgw")
                    a.e(f"s_cmp_eq_u32 s{s_gw}, 0")
                    a.e(f"s_cbranch_scc1 {l}")
                    a.e(f"v_add_u32 v{v_t2}, {slot*SLOT + 4096 + 128}, v{v_g2}")
                    a.e(f"ds_write_b16 v{v_t2}, v{GREG + i - 4}")
                    a.label(l)
        ops.append(f)
    return ops

def w2_ops(a, i, slot):
    ops = []
    for t in range(2):
        def f(t=t):
            srdb, r0 = (sW2, 128*i) if i <= 10 else (sWO, 128*(i-11))
            a.e(f"s_add_u32 s{s_tmp}, s{s_w2off}, {(r0 + 8*t) * 1024}")
            dma(a, v_w2_n, srdb, f"s{s_tmp}", s_ldsw, slot*SLOT + t*1024, f"Q{i}")
        ops.append(f)
    return ops

def issue_x_quarter(a, j):
    for f in x_ops(a, j): f()
def issue_piece(a, i, slot):
    for f in piece_ops(a, i, slot): f()
def issue_w2_piece(a, i, slot):
    for f in w2_ops(a, i, slot): f()

def mfma(a, d, x, y, c):
    cs = c if isinstance(c, str) else vr(c, 16)
    a.e(f"v_mfma_f32_32x32x16_bf16 {vr(d,16)}, {vr(x,4)}, {vr(y,4)}, {cs}")

def pack_tile(a, acc, pk, relu):
    for q in range(8):
        a.e(f"v_cvt_pk_bf16_f32 v{pk+q}, v{acc+2*q}, v{acc+2*q+1}")
    if relu:
        for q in range(8):
            a.e(f"v_pk_max_i16 v{pk+q}, v{pk+q}, 0")

def store_pk(a, pk, soff_sgpr, tag):
    a.vmem(f"buffer_store_dwordx4 {vr(pk,4)}, v{v_l16}, {srd(sWS)}, s{soff_sgpr} offen sc1", tag)
    a.vmem(f"buffer_store_dwordx4 {vr(pk+4,4)}, v{v_l16}, {srd(sWS)}, s{soff_sgpr} offen offset:1024 sc1", tag)

def signal(a, phase):
    l = a.newlabel("Lsig")
    a.e(f"s_cmp_lg_u32 s{s_wv}, 0")
    a.e(f"s_cbranch_scc1 {l}")
    a.e(f"v_mov_b32 v{v_t2}, s{s_nonce}")
    a.e(f"v_mov_b32 v{v_t3}, s{s_nonce+1}")
    a.e(f"v_mov_b32 v{v_t1}, {phase*32768}")
    a.e("s_mov_b64 exec, 1")
    a.e(f"buffer_store_dwordx2 v[{v_t2}:{v_t3}], v{v_t1}, {srd(sWS)}, s{s_fl} offen sc1")
    a.e("s_mov_b64 exec, -1")
    a.label(l)

def signal_wave(a):
    a.e(f"v_mov_b32 v{v_t2}, s{s_nonce}")
    a.e(f"v_mov_b32 v{v_t3}, s{s_nonce+1}")
    a.e(f"v_mov_b32 v{v_t1}, 0")
    a.e("s_mov_b64 exec, 1")
    a.vmem(f"buffer_store_dwordx2 v[{v_t2}:{v_t3}], v{v_t1}, {srd(sWS)}, s{s_flh} offen sc1", "SIGH")
    a.e("s_mov_b64 exec, -1")

def cmp_flags4(a, vd):
    a.e(f"v_xor_b32 v{vd}, s{s_nonce}, v{vd}")
    a.e(f"v_xor_b32 v{vd+1}, s{s_nonce+1}, v{vd+1}")
    a.e(f"v_xor_b32 v{vd+2}, s{s_nonce}, v{vd+2}")
    a.e(f"v_xor_b32 v{vd+3}, s{s_nonce+1}, v{vd+3}")
    a.e(f"v_or3_b32 v{vd}, v{vd}, v{vd+1}, v{vd+2}")
    a.e(f"v_or_b32 v{vd}, v{vd}, v{vd+3}")
    a.e(f"v_cmp_ne_u32 vcc, 0, v{vd}")
    a.e("s_nop 3")
    a.e("s_cmp_eq_u64 vcc, 0")

def hflag_issue(a, track=True):
    ins = f"buffer_load_dwordx4 v[252:255], v{v_l16}, {srd(sWS)}, s{s_flc} offen sc1"
    (a.vmem(ins, "FH") if track else a.e(ins))

def hpoll(a):
    lp = a.newlabel("Lpoll"); ld = a.newlabel("Lpolld")
    a.e(f"s_mov_b32 s{s_cnt}, 0")
    a.label(lp)
    hflag_issue(a, False)
    a.e("s_waitcnt vmcnt(0)")
    cmp_flags4(a, 252)
    a.e(f"s_cbranch_scc1 {ld}")
    a.e("s_sleep 1")
    a.e(f"s_add_u32 s{s_cnt}, s{s_cnt}, 1")
    a.e(f"s_cmp_lt_u32 s{s_cnt}, 100000")
    a.e(f"s_cbranch_scc1 {lp}")
    a.label(ld)

def cmp_flags(a, vd):
    a.e(f"v_cmp_eq_u32 s[{s_m2}:{s_m2+1}], s{s_nonce}, v{vd}")
    a.e(f"v_cmp_eq_u32 s[{s_m3}:{s_m3+1}], s{s_nonce+1}, v{vd+1}")
    a.e("s_nop 3")
    a.e(f"s_and_b64 s[{s_m2}:{s_m2+1}], s[{s_m2}:{s_m2+1}], s[{s_m3}:{s_m3+1}]")
    a.e(f"s_and_b64 s[{s_m2}:{s_m2+1}], s[{s_m2}:{s_m2+1}], s[{s_m}:{s_m+1}]")
    a.e(f"s_cmp_eq_u64 s[{s_m2}:{s_m2+1}], s[{s_m}:{s_m+1}]")

def poll(a, voff):
    lp = a.newlabel("Lpoll"); ld = a.newlabel("Lpolld")
    a.e(f"s_mov_b32 s{s_cnt}, 0")
    a.label(lp)
    a.e(f"buffer_load_dwordx2 v[{v_t2}:{v_t3}], v{voff}, {srd(sWS)}, 0 offen sc1")
    a.e("s_waitcnt vmcnt(0)")
    cmp_flags(a, v_t2)
    a.e(f"s_cbranch_scc1 {ld}")
    a.e("s_sleep 1")
    a.e(f"s_add_u32 s{s_cnt}, s{s_cnt}, 1")
    a.e(f"s_cmp_lt_u32 s{s_cnt}, 100000")
    a.e(f"s_cbranch_scc1 {lp}")
    a.label(ld)

def flag_issue(a, voff, vdst, tag, track=True):
    ins = f"buffer_load_dwordx2 v[{vdst}:{vdst+1}], v{voff}, {srd(sWS)}, 0 offen sc1"
    (a.vmem(ins, tag) if track else a.e(ins))

def flag_check(a, vdst, tag, track=True):
    if track: a.wait_vm(tag)
    else: a.e("s_waitcnt vmcnt(0)")
    cmp_flags(a, vdst)

def get_nonce(a):
    a.wait_vm("NON")
    lp = a.newlabel("Lnp"); ld = a.newlabel("Lnd")
    a.e(f"s_mov_b32 s{s_cnt}, 0")
    a.label(lp)
    a.e(f"v_readfirstlane_b32 s{s_nonce}, v{v_non}")
    a.e(f"v_readfirstlane_b32 s{s_nonce+1}, v{v_non+1}")
    a.e("s_nop 3")
    a.e(f"s_cmp_lg_u32 s{s_nonce}, 0")
    a.e(f"s_cbranch_scc1 {ld}")
    a.e("s_sleep 2")
    a.e(f"v_mov_b32 v{v_t2}, 0")
    a.e(f"buffer_load_dwordx2 v[{v_non}:{v_non+1}], v{v_t2}, {srd(sDBG)}, 0 offen sc1")
    a.e("s_waitcnt vmcnt(0)")
    a.e(f"s_add_u32 s{s_cnt}, s{s_cnt}, 1")
    a.e(f"s_cmp_lt_u32 s{s_cnt}, 100000")
    a.e(f"s_cbranch_scc1 {lp}")
    a.label(ld)

def kv_flag_setup(a):
    e = a.e
    e(f"s_lshl_b32 s{s_tmp}, s{s_rb}, 4")
    e(f"s_add_u32 s{s_fl}, s{s_tmp}, s{s_cg}")
    e(f"s_lshl_b32 s{s_fl}, s{s_fl}, 7")
    e(f"s_add_u32 s{s_fl}, s{s_fl}, {FL}")
    e(f"s_lshl_b32 s{s_tmp2}, s{s_p}, 1")
    e(f"s_add_u32 s{s_tmp}, s{s_tmp}, s{s_tmp2}")
    e(f"v_lshrrev_b32 v{v_kf}, 1, v{v_lane}")
    e(f"v_lshlrev_b32 v{v_kf}, 4, v{v_kf}")
    e(f"v_sub_u32 v{v_kf}, s{s_tmp}, v{v_kf}")
    e(f"v_and_b32 v{v_t0}, 1, v{v_lane}")
    e(f"v_add_u32 v{v_kf}, v{v_kf}, v{v_t0}")
    e(f"v_and_b32 v{v_kf}, 255, v{v_kf}")
    e(f"v_lshlrev_b32 v{v_kf}, 7, v{v_kf}")
    e(f"v_add_u32 v{v_kf}, {FL}, v{v_kf}")
    e(f"s_mov_b32 s{s_m}, 63")
    e(f"s_cmp_eq_u32 s{s_rb}, 1")
    e(f"s_cselect_b32 s{s_m}, 15, s{s_m}")
    e(f"s_cmp_eq_u32 s{s_rb}, 0")
    e(f"s_cselect_b32 s{s_m}, 3, s{s_m}")
    e(f"s_mov_b32 s{s_m+1}, 0")
    e(f"s_lshl_b32 s{s_tmp3}, s{s_cg}, 6")
    e(f"s_lshl_b32 s{s_tmp4}, s{s_rb}, 2")
    e(f"s_add_u32 s{s_tmp3}, s{s_tmp3}, s{s_tmp4}")
    e(f"s_lshl_b32 s{s_tmp3}, s{s_tmp3}, 11")
    e(f"s_mul_i32 s{s_tmp4}, s{s_wv}, 3072")
    e(f"s_add_u32 s{s_kvb}, s{s_tmp3}, s{s_tmp4}")
    e(f"s_lshl_b32 s{s_tmp}, s{s_rg}, 11")
    e(f"s_lshl_b32 s{s_tmp2}, s{s_cgp}, 10")
    e(f"s_add_u32 s{s_tmp2}, s{s_tmp2}, s{s_tmp}")
    e(f"s_add_u32 s{s_krd}, s{s_tmp2}, {ATK}")
    e(f"s_lshl_b32 s{s_tmp2}, s{s_cgp}, 8")
    e(f"s_add_u32 s{s_tmp2}, s{s_tmp2}, s{s_tmp}")
    e(f"s_add_u32 s{s_vrdb}, s{s_tmp2}, {ATV}")
    e(f"s_lshl_b32 s{s_qb}, s{s_rb}, 2")
    e(f"s_add_u32 s{s_qb}, s{s_qb}, s{s_rg}")
    e(f"s_sub_i32 s{s_first}, 8, s{s_qb}")
    e(f"s_max_i32 s{s_first}, s{s_first}, 0")
    e(f"s_mov_b32 s{s_vm}, 0xffff")
    e(f"s_mov_b32 s{s_vm+1}, 0xffff")
    s3_addr_setup(a)
    e(f"s_lshl_b32 s{s_tmp}, s{s_cg}, 3")
    e(f"s_add_u32 s{s_tmp}, s{s_tmp}, s{s_wv}")
    e(f"s_lshl_b32 s{s_tmp}, s{s_tmp}, 3")
    e(f"s_lshl_b32 s{s_flh}, s{s_rb}, 10")
    e(f"s_add_u32 s{s_flh}, s{s_flh}, s{s_tmp}")
    e(f"s_add_u32 s{s_flh}, s{s_flh}, {FL + 32768}")
    e(f"s_lshr_b32 s{s_flc}, s{s_rb3}, 1")
    e(f"s_lshl_b32 s{s_flc}, s{s_flc}, 10")
    e(f"s_add_u32 s{s_flc}, s{s_flc}, {FL + 32768}")

def kv_ops(a, guard=True):
    ops = []
    for reg, lds, tag in ((KF, ATK, "AK"), (VF, ATV, "AV")):
        for i in range(3):
            def f(reg=reg, lds=lds, tag=tag, i=i):
                l = None
                if guard:
                    l = a.newlabel("Lkvg")
                    a.e(f"s_cmp_eq_u32 s{s_ok}, 0")
                    a.e(f"s_cbranch_scc1 {l}")
                a.e(f"s_mul_i32 s{s_tmp4}, s{s_wv}, 3072")
                a.e(f"s_add_u32 s{s_tmp}, s{s_kvb}, {reg - 16384 + i*1024}")
                dma(a, v_l16, sWS, f"s{s_tmp}", s_tmp4, lds + i*1024, tag, sc1=True)
                if l: a.label(l)
            ops.append(f)
    return ops

def issue_kv(a, which, track=True):
    sv = list(a.vm)
    for f in kv_ops(a, guard=False): f()
    if not track: a.vm = sv

def s1_items(pieces, slot_of):
    items = []
    for i in pieces:
        sl = slot_of[i]
        if i < 4:
            for s in range(8):
                items.append(dict(pc=i, ks=8*i + s, tl=0, vb=v_trn, off=s*2048, sec=512, sl=sl, xs=s))
        else:
            j = i - 4
            for s in range(4):
                for tl in range(2):
                    items.append(dict(pc=i, ks=4*j + s, tl=tl, vb=(v_trw2 if tl else v_trw), off=None, s=s, sl=sl, xs=None))
    return items

def stage1(a, isv):
    raise NotImplementedError

ORDER = CFG['order']
T3U = env('GEN_T3U', 99)
FLUSH = 1
USPLIT = CFG['usplit']

class S1:
    D = env('GEN_D', 5)
    def __init__(self, a):
        self.a = a; self.lg = Lg(a); self.n = 0
        self.fifo = []
        self.slot_of = dict(CFG["init"])
        self.w2_slot = {}
        self.base = {}
        self.sched = CFG["sched"]
    def sync(self, u, extra_need=(), hook=None):
        a = self.a
        i = ORDER[u]
        need = [f"P{i}"] + ([f"X{i}"] if i < 4 else []) + list(extra_need)
        if FLUSH: self.pump(len(self.fifo))
        if u <= CFG['lg']:
            a.wait_vm(need, lgkm0=True)
            self.lg.clear()
        else:
            a.wait_vm(need)
        a.e("s_barrier")
        if STAMPS2: stamp(a)
        if hook: hook()
        for kind, pc, sl in self.sched.get(u, []):
            if kind == "P": self.slot_of[pc] = sl; self.fifo += piece_ops(a, pc, sl)
            elif kind == "X": self.fifo += x_ops(a, pc)
            else: self.w2_slot[pc] = sl; self.fifo += w2_ops(a, pc, sl)
        self.base = {}
    def pump(self, n=1):
        for _ in range(n):
            if self.fifo: self.fifo.pop(0)()
    def read(self, it):
        a = self.a
        b = BF + (it["n"] % 8) * 4
        sl = it["sl"]
        if it["xs"] is not None:
            s = it["xs"]; xq = it["pc"]
            r = v_t0 + (s & 1)
            a.e(f"v_xor_b32 v{r}, {s*32}, v{v_xrd}")
            off = XSLOT[xq]*SLOT
            if off > 65535:
                a.e(f"v_add_u32 v{r}, {off}, v{r}"); off = 0
            a.e(f"ds_read_b128 {vr(XF + it['ks']*4, 4)}, v{r} offset:{off}")
            self.lg.add(("x", it["ks"]))
        vb = it["vb"]
        if it["pc"] < 4:
            off, sec = it["off"], it["sec"]
            o = sl*SLOT + off
            if o + sec > 65535:
                if vb not in self.base:
                    a.e(f"v_add_u32 v{v_t4}, {sl*SLOT}, v{vb}"); self.base[vb] = v_t4
                vb = self.base[vb]; o = off
            a.e(f"ds_read_b64_tr_b16 {vr(b,2)}, v{vb} offset:{o}")
            a.e(f"ds_read_b64_tr_b16 {vr(b+2,2)}, v{vb} offset:{o + sec}")
        else:
            s = it["s"]; tl = it["tl"]
            if tl == 1:
                o = sl*SLOT + s*16*192; sec = 4*192
                if o + sec > 65535 - 16384:
                    if vb not in self.base:
                        a.e(f"v_add_u32 v{v_t5}, {sl*SLOT}, v{vb}"); self.base[vb] = v_t5
                    vb = self.base[vb]; o = s*16*192
                a.e(f"ds_read_b64_tr_b16 {vr(b,2)}, v{vb} offset:{o}")
                a.e(f"ds_read_b64_tr_b16 {vr(b+2,2)}, v{vb} offset:{o + sec}")
            else:
                if s == 0:
                    a.e(f"v_add_u32 v{v_t4}, {sl*SLOT}, v{v_trw}")
                    a.e(f"v_add_u32 v{v_t0}, {sl*SLOT}, v{v_omg2}")
                else:
                    a.e(f"v_add_u32 v{v_t4}, s{s_k16}, v{v_t4}")
                    a.e(f"v_add_u32 v{v_t0}, s{s_k16}, v{v_t0}")
                a.e(f"ds_read_b64_tr_b16 {vr(b,2)}, v{v_t4}")
                a.e(f"ds_read_b64_tr_b16 {vr(b+2,2)}, v{v_t0}")
        self.lg.add(("b", it["n"])); self.lg.add(("b", it["n"]))
    def mm(self, it, isv):
        a = self.a
        self.lg.wait([("b", it["n"]), ("x", it["ks"])])
        b = BF + (it["n"] % 8) * 4
        if it["pc"] < 4:
            acc = ACC2
            cin = "0" if it["ks"] == 0 else acc
            if isv: mfma(a, acc, XF + it["ks"]*4, b, cin)
            else: mfma(a, acc, b, XF + it["ks"]*4, cin)
        else:
            acc = ACC + 16*it["tl"]
            cin = "0" if it["ks"] == 0 else acc
            mfma(a, acc, b, XF + it["ks"]*4, cin)

ACC2 = MASKF
s_k16 = 93

def build_maskd(a):
    e = a.e
    e(f"v_and_b32 v{v_t2}, 31, v{v_lane}")
    e(f"v_lshlrev_b32 v{v_t3}, 2, v{v_hi}")
    e(f"v_sub_u32 v{v_t2}, v{v_t2}, v{v_t3}")
    e(f"v_mov_b32 v{v_t3}, 0xf149f2ca")
    for r in range(16):
        cr = (r & 3) + 8 * (r >> 2)
        e(f"v_cmp_gt_i32 vcc, {cr}, v{v_t2}")
        e("s_nop 1")
        e(f"v_cndmask_b32 v{MASKD+r}, 0, v{v_t3}, vcc")

PRE = env("GEN_PRE", 2)
def run_stage1(a):
    e = a.e
    a.c("================ stage 1 ================")
    D = S1.D
    base_lines = a.lines
    outs = []
    ns0 = a.nstamp; vm0 = list(a.vm)
    state = {}
    def hook(u, st):
        if u == 1 and TOUCH >= 2 and TOUCH not in (7, 9): touch(a, (sW2, sWO), 240)
        if T3U <= u < T3U + 4: st.fifo.append(lambda u=u: touch_l2_s3(a, u - T3U, 4))
        if u == CFG['non']:
            a.e(f"v_mov_b32 v{v_t2}, 0")
            a.vmem(f"buffer_load_dwordx2 v[{v_non}:{v_non+1}], v{v_t2}, {srd(sDBG)}, 0 offen sc1", "NON")
        if u == SIG0:
            get_nonce(a); signal(a, 0)
        if u == CFG["kvi"]:
            flag_issue(a, v_kf, v_non + 2, "FKV")
        if u == CFG["kvc"]:
            flag_check(a, v_non + 2, "FKV")
            a.e(f"s_cselect_b32 s{s_ok}, 1, 0")
            st.fifo = kv_ops(a) + st.fifo
    def do_mm(st, pend, isv):
        it = pend.pop(0)
        st.mm(it, isv)
        if it["pc"] == 3 and it["ks"] == 31: state["kvdone"] = 0
        elif "kvdone" in state:
            state["kvdone"] += 1
            if state["kvdone"] == 2:
                a.e("s_nop 7")
                pack_tile(a, ACC2, ACC2, False)
                store_pk(a, ACC2, s_st0, "ST0")
        st.pump(1)
    def unit(st, u, pend, n, isv, q0=0, q1=8, items=None):
        pc = ORDER[u]
        if items is None:
            if u <= CFG["lg"]:
                for _ in range(min(PRE, len(pend))): do_mm(st, pend, isv)
            st.sync(u, ["ST0"] if u == SIG0 else [], lambda: hook(u, st))
            items = s1_items([pc], st.slot_of)
            for it in items: it["n"] = n; n += 1
        for q in range(q0, q1):
            st.read(items[q]); pend.append(items[q])
            if len(pend) > D: do_mm(st, pend, isv)
            elif q % 2 == 1 and len(pend) > 2 and u > 0 and pend[0]["pc"] != pc: do_mm(st, pend, isv)
        return n, items
    for isv in (0, 1):
        a.lines = []; a.vm = list(vm0); a.nstamp = ns0; state.clear()
        st = S1(a)
        if isv: a.label("L_s1v")
        pend = []; n = 0
        for u in range(0, USPLIT):
            n, _ = unit(st, u, pend, n, isv)
        n, items = unit(st, USPLIT, pend, n, isv, 0, 0)
        q = 0
        while any(it["pc"] < 4 for it in pend):
            unit(st, USPLIT, pend, n, isv, q, q + 1, items); q += 1
            if q >= 8:
                while any(it["pc"] < 4 for it in pend): do_mm(st, pend, isv)
        st.pump(len(st.fifo))
        if not isv: a.e("s_branch L_s1w")
        outs.append((a.lines, list(a.vm), st, pend, n, items, q, dict(state)))
    assert outs[0][1] == outs[1][1]
    a.lines = base_lines + outs[0][0] + outs[1][0]
    _, vm, st, pend, n, items_s, q0, stt = outs[1]
    a.vm = vm
    a.label("L_s1w")
    unit(st, USPLIT, pend, n, 0, q0, 8, items_s)
    for u in range(USPLIT + 1, 12):
        n, _ = unit(st, u, pend, n, 0)
    while pend: do_mm(st, pend, 0)
    st.pump(len(st.fifo))
    e("s_nop 7"); e("s_nop 3")
    gate(a)
    pack_tile(a, ACC + 16, BF + 8, True)
    store_pk(a, BF + 8, s_st2, "ST1")
    pack_tile(a, ACC, BF, False)
    l = a.newlabel("Lq"); l2 = a.newlabel("Lqd")
    e(f"s_cmp_eq_u32 s{s_cgp}, 0")
    e(f"s_cbranch_scc1 {l}")
    for q in range(8): e(f"v_pk_max_i16 v{BF+q}, v{BF+q}, 0")
    a.label(l)
    store_pk(a, BF, s_st1, "ST1")
    return st.w2_slot

SIG0 = CFG['sig0']

def gate(a):
    e = a.e
    l = a.newlabel("Lgate")
    e(f"s_cmp_lg_u32 s{s_cg}, 15")
    e(f"s_cbranch_scc1 {l}")
    e(f"s_cmp_lg_u32 s{s_cgp}, 1")
    e(f"s_cbranch_scc1 {l}")
    e(f"v_cvt_pk_bf16_f32 v{v_t1}, v{ACC+16}, v{ACC+16}")
    e(f"v_lshlrev_b32 v{v_t1}, 16, v{v_t1}")
    e(f"v_mul_f32 v{v_t1}, 0xbfb8aa3b, v{v_t1}")
    e(f"v_exp_f32 v{v_t1}, v{v_t1}")
    e("s_nop 0")
    e(f"v_add_f32 v{v_t1}, 1.0, v{v_t1}")
    e(f"v_rcp_f32 v{v_t1}, v{v_t1}")
    e("s_nop 0")
    e(f"v_cvt_pk_bf16_f32 v{v_t1}, v{v_t1}, v{v_t1}")
    e(f"v_lshlrev_b32 v{v_t1}, 16, v{v_t1}")
    e(f"v_lshlrev_b32 v{v_t0}, 2, v{v_lane}")
    e(f"s_lshl_b32 s{s_tmp}, s{s_rb}, 2")
    e(f"s_add_u32 s{s_tmp}, s{s_tmp}, s{s_rg}")
    e(f"s_lshl_b32 s{s_tmp}, s{s_tmp}, 7")
    e(f"s_add_u32 s{s_tmp}, s{s_tmp}, {GB}")
    e(f"s_mov_b64 s[{s_exec}:{s_exec+1}], exec")
    e("s_mov_b32 exec_lo, -1")
    e("s_mov_b32 exec_hi, 0")
    e(f"buffer_store_dword v{v_t1}, v{v_t0}, {srd(sWS)}, s{s_tmp} offen sc1")
    e(f"s_mov_b64 exec, s[{s_exec}:{s_exec+1}]")
    a.label(l)

def Sreg(b):
    if b == 0: return MASKF
    if b == 8: return MASKD
    return 64 + 16*(b-1)
KFR = 176; QFR = 212; VROT = 216; OACC = 232
v_max = 248; v_max2 = 249; v_vrd = 250; v_krd = 251

def AFreg(n):
    if n < 10: return 176 + 4*n
    if n < 14: return 48 + 4*(n-10)
    if n < 18: return 160 + 4*(n-14)
    return 144 + 4*(n-18)
def AOreg(n):
    return 128 + 4*n if n < 4 else 32 + 4*(n-4)
BF3 = 64; ACB = 96; ACA = 216

def s3_addr_setup(a):
    e = a.e
    e(f"s_lshl_b32 s{s_tmp3}, s{s_rb3}, 1")
    e(f"s_add_u32 s{s_tmp3}, s{s_tmp3}, s{s_cgp}")
    e(f"s_mul_i32 s{s_a3}, s{s_tmp3}, {HROW}")
    e(f"s_lshl_b32 s{s_tmp}, s{s_rg}, 10")
    e(f"s_add_u32 s{s_a3}, s{s_a3}, s{s_tmp}")
    e(f"s_add_u32 s{s_a3}, s{s_a3}, {HF}")
    e(f"s_lshl_b32 s{s_a3o}, s{s_tmp3}, 15")
    e(f"s_add_u32 s{s_a3o}, s{s_a3o}, s{s_tmp}")
    e(f"s_add_u32 s{s_a3o}, s{s_a3o}, {OF}")
    e(f"s_lshl_b32 s{s_ga}, s{s_tmp3}, 7")
    e(f"s_add_u32 s{s_ga}, s{s_ga}, {GB}")

def h_loads(a, ns, track=True):
    e = a.e
    for n in ns:
        if n == "g":
            e(f"v_and_b32 v{v_t0}, 31, v{v_lane}")
            e(f"v_lshlrev_b32 v{v_t0}, 2, v{v_t0}")
            ins = f"buffer_load_dword v{v_g2}, v{v_t0}, {srd(sWS)}, s{s_ga} offen sc1"
            (a.vmem(ins, "G") if track else e(ins))
            continue
        e(f"s_add_u32 s{s_tmp}, s{s_a3}, {n*4096}")
        if n == 21:
            e(f"s_cmp_ge_u32 s{s_rg}, 2")
            e(f"s_cselect_b32 s{s_tmp}, {OOB}, s{s_tmp}")
        ins = f"buffer_load_dwordx4 {vr(AFreg(n),4)}, v{v_l16}, {srd(sWS)}, s{s_tmp} offen sc1"
        (a.vmem(ins, f"H{n}") if track else e(ins))

def guarded_h_loads(a, ns, track=True):
    l = a.newlabel("Lhl")
    a.e(f"s_cmp_eq_u32 s{s_ok}, 0")
    a.e(f"s_cbranch_scc1 {l}")
    h_loads(a, ns, track)
    a.label(l)

def flags16(a, phase, vdst):
    e = a.e
    e(f"s_lshr_b32 s{s_tmp}, s{s_rb3}, 1")
    e(f"s_lshl_b32 s{s_tmp}, s{s_tmp}, 11")
    e(f"s_add_u32 s{s_tmp}, s{s_tmp}, {FL + phase*32768}")
    e(f"v_and_b32 v{vdst}, 15, v{v_lane}")
    e(f"v_lshlrev_b32 v{vdst}, 7, v{vdst}")
    e(f"v_add_u32 v{vdst}, s{s_tmp}, v{vdst}")
    e(f"s_mov_b32 s{s_m}, 0xffff")
    e(f"s_mov_b32 s{s_m+1}, 0")

SIGB = env('GEN_SIGB', 1)
HB_ISSUE, HB_CHECK = env("GEN_HBI", 5), env("GEN_HBC", 3)

def attention(a, slot_of):
    e = a.e
    a.c("================ attention ================")
    e(f"s_lshl_b32 s{s_tmp}, s{s_rg}, 10")
    e(f"s_add_u32 s{s_tmp}, s{s_tmp}, {ATQ}")
    e(f"v_add_u32 v{v_t0}, s{s_tmp}, v{v_l16}")
    l = a.newlabel("Lqx")
    e(f"s_cmp_lg_u32 s{s_cgp}, 0")
    e(f"s_cbranch_scc1 {l}")
    e(f"ds_write_b128 v{v_t0}, {vr(BF+4,4)}")
    for i in range(4): e(f"v_mov_b32 v{QFR+i}, v{BF+i}")
    a.label(l)
    l = a.newlabel("Lkvok")
    e(f"s_cmp_lg_u32 s{s_ok}, 0")
    e(f"s_cbranch_scc1 {l}")
    poll(a, v_kf)
    issue_kv(a, "KV", track=False)
    e("s_waitcnt vmcnt(0)")
    a.label(l)
    l = a.newlabel("Lgm")
    e(f"s_cmp_eq_u32 s{s_gw}, 0")
    e(f"s_cbranch_scc1 {l}")
    build_maskd(a)
    a.label(l)
    stamp(a)
    e(f"v_add_u32 v{v_krd}, s{s_krd}, v{v_l16}")
    e(f"v_mov_b32 v{v_t3}, 0xf149f2ca")
    for r in range(16):
        e(f"v_sub_f32 v{MASKF+r}, v{v_t3}, v{MASKD+r}")
    a.wait_vm(["AK", "AV"], lgkm0=True)
    e("s_barrier")
    stamp(a)
    lg = Lg(a)
    l = a.newlabel("Lqr")
    e(f"s_cmp_eq_u32 s{s_cgp}, 0")
    e(f"s_cbranch_scc1 {l}")
    e(f"ds_read_b128 {vr(QFR,4)}, v{v_t0}")
    a.label(l)
    for b in range(8, -1, -1):
        e(f"ds_read_b128 {vr(KFR+4*b,4)}, v{v_krd} offset:{b*2048}"); lg.add(("k", b))
    fill = []
    for pc, sl in zip((4, 5), CFG["post"]):
        slot_of[pc] = sl; fill += w2_ops(a, pc, sl)
    c = 0.25 * math.log2(math.e)
    cbits = struct.unpack("<I", struct.pack("<f", c))[0]
    misc = [f"v_mov_b32 v{VROT+i}, 0x3f803f80" for i in range(16)]
    misc += [f"v_mov_b32 v{v_c2}, 0x{cbits:08x}", f"v_mov_b32 v{v_c2+1}, 0x{cbits:08x}", f"v_add_u32 v{v_vrd}, s{s_vrdb}, v{v_l16}"]
    for b in range(8, -1, -1):
        lg.wait([("k", b)])
        S = Sreg(b)
        mfma(a, S, KFR + 4*b, QFR, S if b in (0, 8) else "0")
        for _ in range(3):
            if misc: e(misc.pop(0))
        if fill and b % 2 == 0: fill.pop(0)()
    while misc: e(misc.pop(0))
    while fill: fill.pop(0)()
    if SIGB == 1:
        a.wait_vm("ST1"); signal_wave(a)
    lmax = a.newlabel("Lmaxd")
    e("s_nop 4")
    for b in range(8, -1, -1):
        S = Sreg(b)
        if b < 8:
            e(f"s_cmp_gt_u32 s{s_first}, {b}")
            e(f"s_cbranch_scc1 {lmax}")
        for q in range(8):
            if b == 8 and q == 0:
                e(f"v_max_f32 v{v_max}, v{S}, v{S+1}")
            else:
                e(f"v_max3_f32 v{v_max}, v{S+2*q}, v{S+2*q+1}, v{v_max}")
    a.label(lmax)
    e(f"v_mov_b32 v{v_max2}, v{v_max}")
    e("s_nop 1")
    e(f"v_permlane32_swap_b32 v{v_max}, v{v_max2}")
    e("s_nop 1")
    e(f"v_max_f32 v{v_max}, v{v_max}, v{v_max2}")
    e(f"v_mul_f32 v{v_mc}, v{v_c2}, v{v_max}")
    e(f"v_sub_f32 v{v_mc}, 0, v{v_mc}")
    e(f"v_mov_b32 v{v_mc+1}, v{v_mc}")
    if SIGB == 2:
        a.wait_vm("ST1"); signal_wave(a)
    def softmax_block(b):
        S = Sreg(b)
        for q in range(8):
            e(f"v_pk_fma_f32 v[{S+2*q}:{S+2*q+1}], v[{S+2*q}:{S+2*q+1}], v[{v_c2}:{v_c2+1}], v[{v_mc}:{v_mc+1}]")
        for r in range(16):
            e(f"v_exp_f32 v{S+r}, v{S+r}")
        for q in range(8):
            e(f"v_cvt_pk_bf16_f32 v{S+q}, v{S+2*q}, v{S+2*q+1}")
    softmax_block(8)
    e("s_barrier")
    stamp(a)
    for pc, sl in ((6, CFG['atk']), (7, CFG['atk']+1)):
        slot_of[pc] = sl; issue_w2_piece(a, pc, sl)
    lg = Lg(a)
    def vread(n):
        b = 8 - n//2; m = n % 2
        e(f"ds_read_b128 {vr(VROT + 4*(n%4), 4)}, v{v_vrd} offset:{b*2048 + m*1024}")
        lg.add(("v", n))
    e(f"s_mov_b64 exec, s[{s_vm}:{s_vm+1}]")
    vread(0); vread(1)
    e("s_mov_b64 exec, -1")
    lpv = a.newlabel("Lpvd")
    e(f"s_mov_b32 s{s_ok}, 0")
    skip_labels = {}
    hl = list(range(22)) + ["g"]
    per = -(-len(hl) // (HB_CHECK + 1))
    def post_block(b, track):
        if b == HB_ISSUE: hflag_issue(a, track)
        if b == HB_CHECK:
            if track: a.wait_vm("FH")
            else: e("s_waitcnt vmcnt(0)")
            cmp_flags4(a, 252)
            e(f"s_cselect_b32 s{s_ok}, 1, 0")
        if b <= HB_CHECK:
            i0 = (HB_CHECK - b) * per
            if hl[i0:i0+per]: guarded_h_loads(a, hl[i0:i0+per], track)
    for b in range(8, -1, -1):
        S = Sreg(b)
        n0 = 2*(8 - b)
        if b < 8:
            skip_labels[b] = a.newlabel("Lskip")
            e(f"s_cmp_gt_u32 s{s_first}, {b}")
            e(f"s_cbranch_scc1 {skip_labels[b]}")
        if b > 0:
            e(f"s_mov_b64 exec, s[{s_vm}:{s_vm+1}]")
            vread(n0 + 2); vread(n0 + 3)
            e("s_mov_b64 exec, -1")
        if b < 8: softmax_block(b)
        lg.wait([("v", n0), ("v", n0+1)])
        e("s_nop 0")
        mfma(a, OACC, VROT + 4*(n0 % 4), S, "0" if b == 8 else OACC)
        mfma(a, OACC, VROT + 4*((n0+1) % 4), S + 4, OACC)
        post_block(b, True)
    e(f"s_branch {lpv}")
    for b in range(7, -1, -1):
        a.label(skip_labels[b])
        post_block(b, False)
    a.label(lpv)
    e("s_waitcnt lgkmcnt(0)")
    e("s_nop 7"); e("s_nop 3")
    e(f"v_rcp_f32 v{v_max}, v{OACC+8}")
    e("s_nop 0")
    for r in range(8):
        e(f"v_mul_f32 v{OACC+r}, v{OACC+r}, v{v_max}")
    for q in range(4):
        e(f"v_cvt_pk_bf16_f32 v{248+q}, v{OACC+2*q}, v{OACC+2*q+1}")
    e(f"buffer_store_dwordx4 v[248:251], v{v_l16}, {srd(sWS)}, s{s_oa} offen sc1")
    l = a.newlabel("Lhok")
    e(f"s_cmp_lg_u32 s{s_ok}, 0")
    e(f"s_cbranch_scc1 {l}")
    hpoll(a)
    h_loads(a, list(range(22)) + ["g"], track=False)
    a.label(l)
    stamp(a)
s_oa = 94

def compute3(a, pieces, slot_of, cnt):
    e = a.e
    work = []
    for pc in pieces:
        for u in range(2):
            if pc <= 10: af = AFreg(2*pc + u); tag = f"H{2*pc+u}"; acc = ACB; first = (pc == 0 and u == 0)
            else: af = AOreg(2*(pc-11) + u); tag = f"O{2*(pc-11)+u}"; acc = ACA; first = (pc == 11 and u == 0)
            for ct in range(2):
                work.append((slot_of[pc], u, ct, af, tag, acc + 16*ct, first))
    lg = Lg(a)
    cur = {}
    def rd(w):
        sl, u, ct, af, tag, acc, first = work[w]
        vb = v_tr3b if ct else v_tr3
        off = sl*SLOT + u*8192
        if off + 1024 > 65535:
            r = v_t5 if ct else v_t4
            if cur.get(ct) != sl:
                e(f"v_add_u32 v{r}, {sl*SLOT}, v{vb}")
                cur[ct] = sl
            vb = r; off = u*8192
        b = BF3 + ((cnt[0] + w) % 8)*4
        e(f"ds_read_b64_tr_b16 {vr(b,2)}, v{vb} offset:{off}")
        e(f"ds_read_b64_tr_b16 {vr(b+2,2)}, v{vb} offset:{off + 1024}")
        lg.add(w); lg.add(w)
    D = 4
    for w in range(min(D, len(work))): rd(w)
    for w in range(len(work)):
        if w + D < len(work): rd(w + D)
        sl, u, ct, af, tag, acc, first = work[w]
        a.wait_vm(tag)
        lg.wait([w])
        b = BF3 + ((cnt[0] + w) % 8)*4
        mfma(a, acc, b, af, "0" if first else acc)
    cnt[0] += len(work)
    lg.drain()

S3J = env('GEN_S3J', 1)
def o_loads(a, track=True):
    for n in range(8):
        a.e(f"s_add_u32 s{s_tmp}, s{s_a3o}, {n*4096}")
        ins = f"buffer_load_dwordx4 {vr(AOreg(n),4)}, v{v_l16}, {srd(sWS)}, s{s_tmp} offen sc1"
        (a.vmem(ins, f"O{n}") if track else a.e(ins))

def o_check(a):
    e = a.e
    regs = [AOreg(n) + i for n in range(8) for i in range(4)]
    e(f"v_max3_u32 v{v_t2}, v{regs[0]}, v{regs[1]}, v{regs[2]}")
    i = 3
    while i < len(regs):
        if i + 1 < len(regs):
            e(f"v_max3_u32 v{v_t2}, v{regs[i]}, v{regs[i+1]}, v{v_t2}"); i += 2
        else:
            e(f"v_max_u32 v{v_t2}, v{regs[i]}, v{v_t2}"); i += 1
    e(f"v_cmp_eq_u32 vcc, -1, v{v_t2}")
    e("s_nop 3")
    e("s_cmp_eq_u64 vcc, 0")

def stage3(a, slot_of):
    e = a.e
    a.c("================ stage 3 ================")
    D = 4
    lg = Lg(a)
    fifo = []
    cur = {}
    V0 = CFG["atv"]
    def assign(pc, sl):
        slot_of[pc] = sl
        for f in w2_ops(a, pc, sl):
            f.tag = f"Q{pc}"; fifo.append(f)
    def o_verify():
        a.wait_vm("O7")
        lp = a.newlabel("Lop"); ld = a.newlabel("Lod")
        e(f"s_mov_b32 s{s_cnt}, 0")
        a.label(lp)
        o_check(a)
        e(f"s_cbranch_scc1 {ld}")
        o_loads(a, track=False)
        e("s_waitcnt vmcnt(0)")
        e(f"s_add_u32 s{s_cnt}, s{s_cnt}, 1")
        e(f"s_cmp_lt_u32 s{s_cnt}, 100000")
        e(f"s_cbranch_scc1 {lp}")
        a.label(ld)
        stamp(a)
    def o_ops():
        ops = []
        for n in range(8):
            def f(n=n):
                a.e(f"s_add_u32 s{s_tmp}, s{s_a3o}, {n*4096}")
                a.vmem(f"buffer_load_dwordx4 {vr(AOreg(n),4)}, v{v_l16}, {srd(sWS)}, s{s_tmp} offen sc1", f"O{n}")
            f.tag = f"O{n}"
            ops.append(f)
        return ops
    syncs = {
        S3J: (["Q4", "Q5", "Q6", "Q7"], lambda: (assign(8, V0), assign(9, V0 + 1))),
        4: ([], lambda: (assign(10, slot_of[0]), assign(11, slot_of[1]), assign(12, slot_of[2]))),
        6: ([], lambda: (assign(13, slot_of[3]), assign(14, slot_of[4]), fifo.extend(o_ops()))),
        8: (["Q8", "Q9"], None),
        10: (["Q10", "Q11", "Q12"], None),
        13: (["Q13", "Q14"], None),
    }
    items = []
    for pc in range(15):
        for u in range(2):
            for ct in range(2):
                items.append((pc, u, ct))
    def rd(w):
        pc, u, ct = items[w]
        if u == 0 and ct == 0 and pc in syncs:
            tags, act = syncs[pc]
            while any(f.tag in tags for f in fifo): fifo.pop(0)()
            a.wait_vm(tags)
            e("s_barrier")
            if STAMPS2: stamp(a)
            if act: act()
        sl = slot_of[pc]
        vb = v_tr3b if ct else v_tr3
        off = sl*SLOT + u*8192
        if off + 1024 > 65535:
            r = v_t5 if ct else v_t4
            if cur.get(ct) != sl:
                e(f"v_add_u32 v{r}, {sl*SLOT}, v{vb}")
                cur[ct] = sl
            vb = r; off = u*8192
        b = BF3 + (w % 8)*4
        e(f"ds_read_b64_tr_b16 {vr(b,2)}, v{vb} offset:{off}")
        e(f"ds_read_b64_tr_b16 {vr(b+2,2)}, v{vb} offset:{off + 1024}")
        lg.add(w); lg.add(w)
    done = set(["Q4", "Q5", "Q6", "Q7"])
    for w in range(D): rd(w)
    for w in range(len(items)):
        if w + D < len(items):
            rd(w + D)
        pc, u, ct = items[w]
        if pc <= 10: af = AFreg(2*pc + u); tag = f"H{2*pc+u}"; acc = ACB; first = (pc == 0 and u == 0)
        else: af = AOreg(2*(pc-11) + u); tag = f"O{2*(pc-11)+u}"; acc = ACA; first = (pc == 11 and u == 0)
        if pc == 11 and u == 0 and ct == 0:
            while fifo: fifo.pop(0)()
            o_verify()
        a.wait_vm(tag)
        lg.wait([w])
        b = BF3 + (w % 8)*4
        mfma(a, acc + 16*ct, b, af, "0" if first else acc + 16*ct)
        if fifo: fifo.pop(0)()
        if pc >= 11:
            k = w - 44
            if k == 0:
                a.wait_vm("G")
                e(f"v_sub_f32 v{v_c2}, 1.0, v{v_g2}")
                e(f"v_cvt_pk_bf16_f32 v{v_c2}, v{v_c2}, v{v_c2}")
                e(f"v_lshlrev_b32 v{v_c2}, 16, v{v_c2}")
                e(f"v_mov_b32 v{v_c2+1}, v{v_c2}")
                e(f"v_mov_b32 v{v_g2+1}, v{v_g2}")
            elif 2 <= k < 10:
                for q in (2*(k-2), 2*(k-2)+1):
                    e(f"v_pk_mul_f32 v[{ACB+2*q}:{ACB+2*q+1}], v[{ACB+2*q}:{ACB+2*q+1}], v[{v_c2}:{v_c2+1}]")
    lg.drain()
    stamp(a)
    PS = [slot_of[p] for p in (5, 6, 7, 8)]
    e(f"s_cmp_eq_u32 s{s_rg}, 1"); e(f"s_movk_i32 s{s_tmp}, {PS[0]}"); e(f"s_cselect_b32 s{s_tmp}, {PS[1]}, s{s_tmp}")
    e(f"s_cmp_eq_u32 s{s_rg}, 2"); e(f"s_cselect_b32 s{s_tmp}, {PS[2]}, s{s_tmp}")
    e(f"s_cmp_eq_u32 s{s_rg}, 3"); e(f"s_cselect_b32 s{s_tmp}, {PS[3]}, s{s_tmp}")
    e(f"s_lshl_b32 s{s_tmp}, s{s_tmp}, 14")
    e(f"s_lshl_b32 s{s_tmp2}, s{s_cgp}, 13")
    e(f"s_add_u32 s{s_tmp}, s{s_tmp}, s{s_tmp2}")
    e(f"v_and_b32 v{v_t0}, 31, v{v_lane}")
    e(f"v_and_b32 v{v_t1}, 7, v{v_lane}")
    e(f"v_xor_b32 v{v_t1}, v{v_t1}, v{v_hi}")
    e(f"v_lshlrev_b32 v{v_t1}, 4, v{v_t1}")
    e(f"v_lshl_add_u32 v{v_t0}, v{v_t0}, 8, v{v_t1}")
    e(f"v_add_u32 v{v_t0}, s{s_tmp}, v{v_t0}")
    e("s_nop 4")
    for ct in range(2):
        for g4 in range(4):
            b0 = 16*ct + 4*g4
            for q in range(2):
                e(f"v_pk_fma_f32 v[{ACB+b0+2*q}:{ACB+b0+2*q+1}], v[{ACA+b0+2*q}:{ACA+b0+2*q+1}], v[{v_g2}:{v_g2+1}], v[{ACB+b0+2*q}:{ACB+b0+2*q+1}]")
            r = v_t2 + (g4 & 1)
            e(f"v_xor_b32 v{r}, {g4*32}, v{v_t0}")
            e(f"ds_write_b128 v{r}, {vr(ACB + b0, 4)} offset:{ct*128}")
    e(f"v_lshrrev_b32 v{v_t0}, 3, v0")
    e(f"v_and_b32 v{v_t1}, 7, v0")
    e(f"v_and_b32 v{v_t2}, 7, v{v_t0}")
    e(f"v_lshlrev_b32 v{v_t3}, 1, v{v_t1}")
    e(f"v_xor_b32 v{v_t2}, v{v_t2}, v{v_t3}")
    e(f"v_lshlrev_b32 v{v_t2}, 4, v{v_t2}")
    e(f"v_lshl_add_u32 v{v_t2}, v{v_t0}, 8, v{v_t2}")
    e(f"v_xor_b32 v{v_t3}, 16, v{v_t2}")
    e(f"v_add_u32 v{v_t4}, 0x10000, v{v_t2}")
    e(f"v_add_u32 v{v_t5}, 0x10000, v{v_t3}")
    e(f"v_add_u32 v{v_trn}, 0x20000, v{v_t2}")
    e(f"v_add_u32 v{v_trw}, 0x20000, v{v_t3}")
    e(f"v_lshlrev_b32 v{v_t0}, 10, v{v_t0}")
    e(f"v_lshl_add_u32 v{v_t0}, v{v_t1}, 4, v{v_t0}")
    e(f"s_lshl_b32 s{s_tmp}, s{s_rb3}, 16")
    e(f"s_lshl_b32 s{s_tmp2}, s{s_cb3}, 7")
    e(f"s_add_u32 s{s_tmp}, s{s_tmp}, s{s_tmp2}")
    e("s_waitcnt lgkmcnt(0)")
    e("s_barrier")
    for kq in range(4):
        off = PS[kq]*SLOT
        ra, rb_ = ((v_t2, v_t3), (v_t4, v_t5), (v_trn, v_trw))[off >> 16]
        e(f"ds_read_b128 {vr(64 + 8*kq, 4)}, v{ra} offset:{off & 0xffff}")
        e(f"ds_read_b128 {vr(68 + 8*kq, 4)}, v{rb_} offset:{off & 0xffff}")
    e("s_waitcnt lgkmcnt(4)")
    for q in range(4):
        e(f"v_pk_add_f32 v[{64+2*q}:{65+2*q}], v[{64+2*q}:{65+2*q}], v[{72+2*q}:{73+2*q}]")
    e("s_waitcnt lgkmcnt(0)")
    for q in range(4):
        e(f"v_pk_add_f32 v[{80+2*q}:{81+2*q}], v[{80+2*q}:{81+2*q}], v[{88+2*q}:{89+2*q}]")
    for q in range(4):
        e(f"v_pk_add_f32 v[{64+2*q}:{65+2*q}], v[{64+2*q}:{65+2*q}], v[{80+2*q}:{81+2*q}]")
    for q in range(4):
        e(f"v_cvt_pk_bf16_f32 v{64+q}, v{64+2*q}, v{65+2*q}")
    e(f"buffer_store_dwordx4 v[64:67], v{v_t0}, {srd(sOUT)}, s{s_tmp} offen {os.environ.get('GEN_OST','sc1').replace('_',' ')}")
    stamp(a, final=True)

def common_setup(a):
    e = a.e
    l = a.newlabel("Lcas")
    e(f"s_or_b32 s{s_nonce}, s{s_nonce}, 1")
    e(f"s_or_b32 s{s_tmp}, s{s_wv}, s2")
    e(f"s_cmp_lg_u32 s{s_tmp}, 0")
    e(f"s_cbranch_scc1 {l}")
    e(f"v_mov_b32 v{v_non}, s{s_nonce}")
    e(f"v_mov_b32 v{v_non+1}, s{s_nonce+1}")
    e(f"v_mov_b32 v{v_t4}, 0")
    e(f"s_mov_b64 s[{s_exec}:{s_exec+1}], exec")
    e("s_mov_b64 exec, 1")
    e(f"buffer_store_dwordx2 {vr(v_non,2)}, v{v_t4}, {srd(sDBG)}, 0 offen sc1")
    e(f"s_mov_b64 exec, s[{s_exec}:{s_exec+1}]")
    a.label(l)
    e(f"s_lshl_b32 s{s_tmp}, s{s_rb}, 2")
    e(f"s_add_u32 s{s_tmp}, s{s_tmp}, s{s_rg}")
    e(f"s_lshl_b32 s{s_oa}, s{s_tmp}, 15")
    e(f"s_lshl_b32 s{s_tmp2}, s{s_cg}, 1")
    e(f"s_add_u32 s{s_tmp2}, s{s_tmp2}, s{s_cgp}")
    e(f"s_lshl_b32 s{s_tmp2}, s{s_tmp2}, 10")
    e(f"s_add_u32 s{s_oa}, s{s_oa}, s{s_tmp2}")
    e(f"s_add_u32 s{s_oa}, s{s_oa}, {OF}")
    for i in range(4): e(f"v_mov_b32 v{ACC+i}, -1")
    a.vmem(f"buffer_store_dwordx4 {vr(ACC,4)}, v{v_l16}, {srd(sWS)}, s{s_oa} offen sc1", "SENT")
    e(f"v_and_b32 v{v_t0}, 31, v{v_lane}")
    e(f"v_lshrrev_b32 v{v_hi}, 5, v{v_lane}")
    e(f"v_and_b32 v{v_t1}, 15, v{v_lane}")
    e(f"v_xor_b32 v{v_t1}, v{v_t1}, v{v_hi}")
    e(f"v_lshlrev_b32 v{v_t1}, 4, v{v_t1}")
    e(f"v_lshl_add_u32 v{v_xrd}, v{v_t0}, 8, v{v_t1}")
    e(f"s_lshl_b32 s{s_tmp}, s{s_rg}, 13")
    e(f"v_add_u32 v{v_xrd}, s{s_tmp}, v{v_xrd}")
    e(f"v_and_b32 v{v_t0}, 15, v{v_lane}")
    e(f"v_lshrrev_b32 v{v_t1}, 2, v{v_t0}")
    e(f"v_bfe_u32 v{v_t2}, v{v_lane}, 4, 1")
    e(f"v_bfe_u32 v{v_t3}, v{v_lane}, 1, 1")
    e(f"v_lshl_add_u32 v{v_t2}, v{v_t2}, 1, v{v_t3}")
    e(f"v_and_b32 v{v_t3}, 1, v{v_lane}")
    e(f"v_lshlrev_b32 v{v_t3}, 3, v{v_t3}")
    e(f"v_lshl_add_u32 v{v_t2}, v{v_t2}, 4, v{v_t3}")
    e(f"v_lshrrev_b32 v{v_t3}, 1, v{v_t1}")
    e(f"v_xor_b32 v{v_t4}, s{s_cgp}, v{v_t3}")
    e(f"v_lshl_add_u32 v{v_t4}, v{v_t4}, 6, v{v_t2}")
    e(f"v_lshl_add_u32 v{v_t5}, v{v_hi}, 3, v{v_t1}")
    e(f"v_lshl_add_u32 v{v_trn}, v{v_t5}, 7, v{v_t4}")
    e(f"s_cmp_eq_u32 s{s_cgp}, 0")
    e(f"s_movk_i32 s{s_tmp}, 192")
    e(f"s_cselect_b32 s{s_tmp}, 64, s{s_tmp}")
    e(f"s_lshl_b32 s{s_k16}, s{s_tmp}, 4")
    e(f"s_lshl_b32 s{s_tmp2}, s{s_cgp}, 12")
    e(f"v_mad_u32_u24 v{v_trw}, v{v_t5}, s{s_tmp}, v{v_t2}")
    e(f"v_add_u32 v{v_trw}, s{s_tmp2}, v{v_trw}")
    e(f"s_lshl_b32 s{s_tmp}, s{s_tmp}, 2")
    e(f"v_add_u32 v{v_omg2}, s{s_tmp}, v{v_trw}")
    e(f"s_movk_i32 s{s_tmp}, 192")
    e(f"v_mad_u32_u24 v{v_trw2}, v{v_t5}, s{s_tmp}, v{v_t2}")
    e(f"s_lshl_b32 s{s_tmp2}, s{s_cgp}, 6")
    e(f"s_add_u32 s{s_tmp2}, s{s_tmp2}, {4096 + 64}")
    e(f"v_add_u32 v{v_trw2}, s{s_tmp2}, v{v_trw2}")
    e(f"v_lshl_add_u32 v{v_t4}, v{v_t3}, 6, v{v_t2}")
    e(f"v_lshl_add_u32 v{v_t5}, v{v_hi}, 2, v{v_t1}")
    e(f"v_lshl_add_u32 v{v_tr3}, v{v_t5}, 7, v{v_t4}")
    e(f"s_lshl_b32 s{s_tmp}, s{s_rg}, 11")
    e(f"v_add_u32 v{v_tr3}, s{s_tmp}, v{v_tr3}")
    e(f"v_xor_b32 v{v_tr3b}, 64, v{v_tr3}")

def wide_setup(a):
    e = a.e
    lq = a.newlabel("Lwq"); lj = a.newlabel("Lwj")
    e(f"s_cmp_lt_u32 s{s_wv}, 2")
    e(f"s_cbranch_scc1 {lq}")
    e(f"s_mov_b32 s{sPW}, s{sW1}"); e(f"s_mov_b32 s{sPW+1}, s{sW1+1}"); e(f"s_mov_b32 s{sPW+2}, {512*1376*2}"); e(f"s_mov_b32 s{sPW+3}, 0x00020000")
    e(f"s_sub_u32 s{s_tmp}, s{s_wv}, 2")
    e(f"s_lshl_b32 s{s_tmp}, s{s_tmp}, 7")
    e(f"s_movk_i32 s{s_tmp3}, 2752")
    e(f"s_movk_i32 s{s_tmp4}, 5462")
    for t in range(2):
        e(f"v_add_u32 v{v_t0}, s{s_tmp}, v{v_lane}")
        if t: e(f"v_add_u32 v{v_t0}, 64, v{v_t0}")
        e(f"v_mul_u32_u24 v{v_t1}, s{s_tmp4}, v{v_t0}")
        e(f"v_lshrrev_b32 v{v_t1}, 16, v{v_t1}")
        e(f"v_mul_u32_u24 v{v_t2}, 12, v{v_t1}")
        e(f"v_sub_u32 v{v_t0}, v{v_t0}, v{v_t2}")
        e(f"v_lshlrev_b32 v{v_t0}, 4, v{v_t0}")
        e(f"v_mad_u32_u24 v{v_wd0+t}, v{v_t1}, s{s_tmp3}, v{v_t0}")
    e(f"s_mul_i32 s{s_wbase}, s{s_cg}, 192")
    e(f"s_cmp_eq_u32 s{s_cg}, 15")
    e(f"s_cselect_b32 s{s_wbase}, {OOB}, s{s_wbase}")
    e(f"s_mov_b32 s{s_pstep}, {64*2752}")
    e(f"s_branch {lj}")
    a.label(lq)
    e(f"s_mov_b32 s{sPW}, s{sWQ}"); e(f"s_mov_b32 s{sPW+1}, s{sWQ+1}"); e(f"s_mov_b32 s{sPW+2}, {512*1536*2}"); e(f"s_mov_b32 s{sPW+3}, 0x00020000")
    e(f"s_lshl_b32 s{s_tmp}, s{s_wv}, 5")
    e(f"s_movk_i32 s{s_tmp3}, 3072")
    e(f"v_lshrrev_b32 v{v_t1}, 2, v{v_lane}")
    e(f"v_add_u32 v{v_t1}, s{s_tmp}, v{v_t1}")
    e(f"v_and_b32 v{v_t0}, 3, v{v_lane}")
    e(f"v_lshlrev_b32 v{v_t0}, 4, v{v_t0}")
    e(f"v_mad_u32_u24 v{v_wd0}, v{v_t1}, s{s_tmp3}, v{v_t0}")
    e(f"v_add_u32 v{v_wd1}, {16*3072}, v{v_wd0}")
    e(f"s_lshl_b32 s{s_wbase}, s{s_cg}, 6")
    e(f"s_mov_b32 s{s_pstep}, {64*3072}")
    a.label(lj)

def gen():
    a = Asm()
    e = a.e
    e("s_cmp_ge_u32 s2, 256")
    e("s_cbranch_scc1 L_exit")
    stamp(a)
    e("s_load_dwordx4 s[8:11], s[0:1], 0")
    e("s_load_dwordx2 s[24:25], s[0:1], 16")
    e("s_load_dwordx4 s[16:19], s[0:1], 32")
    e("s_load_dwordx4 s[36:39], s[0:1], 48")
    e("s_load_dwordx4 s[40:43], s[0:1], 64")
    e(f"s_memrealtime s[{s_nonce}:{s_nonce+1}]")
    e(f"v_and_b32 v{v_lane}, 63, v0")
    e(f"v_lshrrev_b32 v{v_t0}, 6, v0")
    e(f"v_lshlrev_b32 v{v_l16}, 4, v{v_lane}")
    e(f"v_readfirstlane_b32 s{s_wv}, v{v_t0}")
    e(f"s_and_b32 s{s_tmp}, s2, 7")
    e(f"s_lshr_b32 s{s_tmp2}, s2, 3")
    e(f"s_and_b32 s{s_rb}, s{s_tmp}, 1")
    e(f"s_lshl_b32 s{s_rb}, s{s_rb}, 3")
    e(f"s_and_b32 s{s_tmp3}, s{s_tmp2}, 7")
    e(f"s_add_u32 s{s_rb}, s{s_rb}, s{s_tmp3}")
    e(f"s_lshr_b32 s{s_cg}, s{s_tmp}, 1")
    e(f"s_lshl_b32 s{s_cg}, s{s_cg}, 2")
    e(f"s_lshr_b32 s{s_tmp3}, s{s_tmp2}, 3")
    e(f"s_add_u32 s{s_cg}, s{s_cg}, s{s_tmp3}")
    e(f"s_lshr_b32 s{s_p}, s{s_cg}, 1")
    e(f"s_and_b32 s{s_t}, s{s_cg}, 1")
    e(f"s_lshl_b32 s{s_rb3}, s{s_tmp}, 2")
    e(f"s_and_b32 s{s_tmp3}, s{s_tmp2}, 3")
    e(f"s_add_u32 s{s_rb3}, s{s_rb3}, s{s_tmp3}")
    e(f"s_lshr_b32 s{s_cb3}, s{s_tmp2}, 2")
    e(f"s_and_b32 s{s_rg}, s{s_wv}, 3")
    e(f"s_lshr_b32 s{s_cgp}, s{s_wv}, 2")
    e(f"s_lshl_b32 s{s_ldsw}, s{s_wv}, 11")
    e(f"s_lshl_b32 s{s_xlds}, s{s_wv}, 12")
    e(f"s_lshl_b32 s{s_xbase}, s{s_rb}, 17")
    e(f"s_lshl_b32 s{s_tmp3}, s{s_wv}, 14")
    e(f"s_add_u32 s{s_xbase}, s{s_xbase}, s{s_tmp3}")
    if STAMPS:
        e(f"s_lshl_b32 s{s_tsb}, s2, 3")
        e(f"s_add_u32 s{s_tsb}, s{s_tsb}, s{s_wv}")
        e(f"s_lshl_b32 s{s_tsb}, s{s_tsb}, 7")
        e(f"s_add_u32 s{s_tsb}, s{s_tsb}, {TS}")
    e(f"v_lshrrev_b32 v{v_t0}, 4, v{v_lane}")
    e(f"v_and_b32 v{v_t1}, 15, v{v_lane}")
    e(f"v_xor_b32 v{v_t1}, v{v_t1}, v{v_t0}")
    e(f"v_lshlrev_b32 v{v_t0}, 10, v{v_t0}")
    for t in range(4):
        e(f"v_xor_b32 v{v_t2}, {4*t}, v{v_t1}")
        e(f"v_lshl_add_u32 v{v_xo+t}, v{v_t2}, 4, v{v_t0}")
    e(f"v_lshrrev_b32 v{v_t0}, 3, v{v_lane}")
    e(f"v_and_b32 v{v_t1}, 7, v{v_lane}")
    e(f"v_lshrrev_b32 v{v_t2}, 2, v{v_lane}")
    e(f"v_and_b32 v{v_t2}, 4, v{v_t2}")
    e(f"v_xor_b32 v{v_t1}, v{v_t1}, v{v_t2}")
    e(f"v_lshlrev_b32 v{v_t1}, 4, v{v_t1}")
    e(f"s_movk_i32 s{s_tmp3}, 3072")
    e(f"v_mad_u32_u24 v{v_wq_n}, v{v_t0}, s{s_tmp3}, v{v_t1}")
    e(f"v_lshl_add_u32 v{v_w2_n}, v{v_t0}, 10, v{v_t1}")
    e(f"s_mul_i32 s{s_naroff}, s{s_wv}, {16*3072}")
    e(f"s_lshl_b32 s{s_tmp3}, s{s_p}, 7")
    e(f"s_add_u32 s{s_naroff}, s{s_naroff}, s{s_tmp3}")
    e(f"s_lshl_b32 s{s_tmp3}, s{s_t}, 10")
    e(f"s_add_u32 s{s_naroff}, s{s_naroff}, s{s_tmp3}")
    e(f"s_add_u32 s{s_naroff}, s{s_naroff}, 1024")
    e(f"s_lshl_b32 s{s_tmp3}, s{s_p}, 1")
    e(f"s_add_u32 s{s_tmp3}, s{s_tmp3}, s{s_cgp}")
    e(f"s_lshl_b32 s{s_tmp3}, s{s_tmp3}, 6")
    e(f"s_lshl_b32 s{s_tmp4}, s{s_rb}, 2")
    e(f"s_add_u32 s{s_tmp4}, s{s_tmp4}, s{s_rg}")
    e(f"s_add_u32 s{s_tmp3}, s{s_tmp3}, s{s_tmp4}")
    e(f"s_lshl_b32 s{s_st0}, s{s_tmp3}, 11")
    e(f"s_lshl_b32 s{s_tmp3}, s{s_t}, 21")
    e(f"s_add_u32 s{s_st0}, s{s_st0}, s{s_tmp3}")
    e(f"s_add_u32 s{s_st0}, s{s_st0}, {KF}")
    e(f"s_mul_i32 s{s_tmp4}, s{s_tmp4}, {HROW}")
    e(f"s_add_u32 s{s_tmp4}, s{s_tmp4}, {HF}")
    e(f"s_mul_i32 s{s_tmp3}, s{s_cg}, 3")
    e(f"s_lshl_b32 s{s_st1}, s{s_tmp3}, 11")
    e(f"s_add_u32 s{s_st1}, s{s_st1}, s{s_tmp4}")
    e(f"s_cmp_ge_u32 s{s_tmp3}, 43")
    e(f"s_cselect_b32 s{s_st1}, {OOB}, s{s_st1}")
    e(f"s_cmp_eq_u32 s{s_cgp}, 0")
    e(f"s_cselect_b32 s{s_st1}, {OOB}, s{s_st1}")
    e(f"s_add_u32 s{s_tmp3}, s{s_tmp3}, s{s_cgp}")
    e(f"s_add_u32 s{s_tmp3}, s{s_tmp3}, 1")
    e(f"s_lshl_b32 s{s_st2}, s{s_tmp3}, 11")
    e(f"s_add_u32 s{s_st2}, s{s_st2}, s{s_tmp4}")
    e(f"s_cmp_ge_u32 s{s_tmp3}, 43")
    e(f"s_cselect_b32 s{s_st2}, {OOB}, s{s_st2}")
    e(f"s_lshl_b32 s{s_w2off}, s{s_wv}, 14")
    e(f"s_lshl_b32 s{s_tmp3}, s{s_cb3}, 7")
    e(f"s_add_u32 s{s_w2off}, s{s_w2off}, s{s_tmp3}")
    e("s_waitcnt lgkmcnt(0)")
    e("s_mov_b32 s12, s10"); e("s_mov_b32 s13, s11"); e(f"s_mov_b32 s14, {512*1536*2}"); e("s_mov_b32 s15, 0x00020000")
    e(f"s_mov_b32 s10, {2048*512*2}"); e("s_mov_b32 s11, 0x00020000")
    e("s_mov_b32 s32, s38"); e("s_mov_b32 s33, s39"); e(f"s_mov_b32 s34, {2048*512*2}"); e("s_mov_b32 s35, 0x00020000")
    e("s_mov_b32 s38, 1024"); e("s_mov_b32 s39, 0x00020000")
    e(f"s_mov_b32 s{s_ldsww}, 0")
    e(f"s_mov_b32 s{s_gw}, 0")
    lg_ = a.newlabel("Lgs")
    e(f"s_cmp_lg_u32 s{s_cg}, 15")
    e(f"s_cbranch_scc1 {lg_}")
    e(f"s_cmp_lt_u32 s{s_wv}, 2")
    e(f"s_cbranch_scc1 {lg_}")
    e(f"s_mov_b32 s{s_ldsww}, 0x30000")
    e(f"s_cmp_lg_u32 s{s_wv}, 2")
    e(f"s_cbranch_scc1 {lg_}")
    e(f"s_mov_b32 s{s_gw}, 1")
    e(f"v_lshlrev_b32 v{v_t0}, 1, v{v_lane}")
    for j in range(8):
        e(f"buffer_load_ushort v{GREG+j}, v{v_t0}, {srd(sGW)}, 0 offen offset:{j*128}")
    e(f"s_movk_i32 s{s_tmp3}, 192")
    e(f"v_mul_u32_u24 v{v_g2}, s{s_tmp3}, v{v_lane}")
    a.label(lg_)
    e("s_mov_b32 s20, s18"); e("s_mov_b32 s21, s19"); e(f"s_mov_b32 s22, {1376*512*2}"); e("s_mov_b32 s23, 0x00020000")
    e(f"s_mov_b32 s18, {512*1376*2}"); e("s_mov_b32 s19, 0x00020000")
    if TOUCH in (2, 9): touch(a, (sX, sWQ, sW1), 224)
    if TOUCH == 4: touch_l2(a)
    issue_x_quarter(a, 0)
    issue_piece(a, 0, CFG['init'][0])
    if TOUCH == 3: touch(a, (sX, sWQ, sW1), 224)
    if TOUCH == 5: touch_l2(a)
    e(f"s_mov_b32 s26, {512*512*2}"); e("s_mov_b32 s27, 0x00020000")
    e("s_mov_b32 s28, s42"); e("s_mov_b32 s29, s43"); e(f"s_mov_b32 s30, {WS_BYTES}"); e("s_mov_b32 s31, 0x00020000")
    e("s_mov_b32 s42, 256"); e("s_mov_b32 s43, 0x00020000")
    if env("GEN_TLB", 2): tlb_warm(a, env("GEN_TLB", 2))
    if env("GEN_CPF", 0):
        e(f"s_getpc_b64 s[{s_m2}:{s_m2+1}]")
        a.label("L_pc")
        e(f"s_lshr_b32 s{s_tmp}, s2, 3")
        e(f"s_lshl_b32 s{s_tmp}, s{s_tmp}, 3")
        e(f"s_add_u32 s{s_tmp}, s{s_tmp}, s{s_wv}")
        e(f"s_lshl_b32 s{s_tmp}, s{s_tmp}, 6")
        e(f"s_load_dword s{s_cnt}, s[{s_m2}:{s_m2+1}], s{s_tmp}")
        e(f"s_lshr_b32 s{s_tmp}, s{s_tmp}, 2")
        e(f"s_and_b32 s{s_tmp}, s{s_tmp}, 0xfc0")
        e(f"s_add_u32 s{s_tmp}, s{s_tmp}, 16384")
        e(f"s_min_u32 s{s_tmp}, s{s_tmp}, L_exit-L_pc")
        e(f"s_load_dword s{s_cnt}, s[{s_m2}:{s_m2+1}], s{s_tmp}")
    if TOUCH == 9: touch(a, (sW2, sWO), 240)
    if TOUCH == 7: touch_scalar(a, "xq12o")
    if TOUCH == 8: touch_scalar(a, "xq1")
    stamp(a)
    if env("GEN_ST3",0): stamp(a)
    common_setup(a)
    wide_setup(a)
    if env("GEN_ST3",0): stamp(a)
    kv_flag_setup(a)
    lm_ = a.newlabel("Lmk")
    e(f"s_cmp_lg_u32 s{s_gw}, 0")
    e(f"s_cbranch_scc1 {lm_}")
    build_maskd(a)
    a.label(lm_)
    if env("GEN_ST3",0): stamp(a)
    e("s_barrier")
    issue_x_quarter(a, 1)
    issue_piece(a, 1, CFG['init'][1])
    e(f"s_cmp_lg_u32 s{s_t}, 0")
    e("s_cbranch_scc1 L_s1v")
    w2_slot = run_stage1(a)
    stamp(a)
    attention(a, w2_slot)
    stage3(a, w2_slot)
    a.label("L_exit")
    a.e("s_endpgm")
    return a

def touch(a, srds, T):
    e = a.e
    e(f"s_lshl_b32 s{s_tmp}, s2, 3")
    e(f"s_add_u32 s{s_tmp}, s{s_tmp}, s{s_wv}")
    e(f"s_lshl_b32 s{s_tmp}, s{s_tmp}, 10")
    for i, sr in enumerate(srds):
        a.vmem(f"buffer_load_dwordx4 {vr(T+4*i,4)}, v{v_l16}, {srd(sr)}, s{s_tmp} offen", "TCH")

def touch_l2(a):
    e = a.e
    T = 224
    lx = a.newlabel("Ltx"); lk = a.newlabel("Ltk"); lq = a.newlabel("Ltq"); lj = a.newlabel("Ltj")
    e(f"s_lshr_b32 s{s_tmp}, s2, 3")
    e(f"s_and_b32 s{s_tmp2}, s2, 7")
    e(f"s_lshr_b32 s{s_tmp3}, s{s_tmp2}, 1")
    e(f"s_cmp_lt_u32 s{s_wv}, 4")
    e(f"s_cbranch_scc1 {lx}")
    e(f"s_cmp_eq_u32 s{s_wv}, 4")
    e(f"s_cbranch_scc1 {lk}")
    e(f"s_cmp_eq_u32 s{s_wv}, 5")
    e(f"s_cbranch_scc1 {lq}")
    e(f"s_sub_u32 s{s_tmp4}, s{s_wv}, 6")
    e(f"s_lshl_b32 s{s_tmp4}, s{s_tmp4}, 3")
    e(f"s_lshl_b32 s{s_tmp}, s{s_tmp}, 4")
    e(f"s_add_u32 s{s_tmp}, s{s_tmp}, s{s_tmp4}")
    e(f"s_mul_i32 s{s_tmp}, s{s_tmp}, 2752")
    e(f"s_mul_i32 s{s_tmp3}, s{s_tmp3}, 768")
    e(f"s_add_u32 s{s_tmp}, s{s_tmp}, s{s_tmp3}")
    e(f"v_lshrrev_b32 v{v_t0}, 3, v{v_lane}")
    e(f"s_movk_i32 s{s_tmp4}, 2752")
    e(f"v_mul_u32_u24 v{v_t0}, s{s_tmp4}, v{v_t0}")
    e(f"v_and_b32 v{v_t1}, 7, v{v_lane}")
    e(f"v_min_u32 v{v_t1}, 6, v{v_t1}")
    e(f"v_lshl_add_u32 v{v_t0}, v{v_t1}, 7, v{v_t0}")
    e(f"buffer_load_dword v{T}, v{v_t0}, {srd(sW1)}, s{s_tmp} offen")
    e(f"s_branch {lj}")
    a.label(lx)
    e(f"s_and_b32 s{s_tmp2}, s{s_tmp2}, 1")
    e(f"s_lshl_b32 s{s_tmp2}, s{s_tmp2}, 20")
    e(f"s_lshl_b32 s{s_tmp}, s{s_tmp}, 15")
    e(f"s_add_u32 s{s_tmp}, s{s_tmp}, s{s_tmp2}")
    e(f"s_lshl_b32 s{s_tmp2}, s{s_wv}, 8")
    e(f"s_add_u32 s{s_tmp}, s{s_tmp}, s{s_tmp2}")
    e(f"v_lshrrev_b32 v{v_t0}, 1, v{v_lane}")
    e(f"v_lshlrev_b32 v{v_t0}, 10, v{v_t0}")
    e(f"v_and_b32 v{v_t1}, 1, v{v_lane}")
    e(f"v_lshl_add_u32 v{v_t0}, v{v_t1}, 7, v{v_t0}")
    e(f"buffer_load_dword v{T}, v{v_t0}, {srd(sX)}, s{s_tmp} offen")
    e(f"s_branch {lj}")
    a.label(lk)
    e(f"s_mul_i32 s{s_tmp}, s{s_tmp}, {16*3072}")
    e(f"s_lshl_b32 s{s_tmp3}, s{s_tmp3}, 8")
    e(f"s_add_u32 s{s_tmp}, s{s_tmp}, s{s_tmp3}")
    e(f"s_add_u32 s{s_tmp}, s{s_tmp}, 1024")
    e(f"v_lshrrev_b32 v{v_t0}, 2, v{v_lane}")
    e(f"s_movk_i32 s{s_tmp4}, 3072")
    e(f"v_mul_u32_u24 v{v_t0}, s{s_tmp4}, v{v_t0}")
    e(f"v_and_b32 v{v_t1}, 1, v{v_lane}")
    e(f"v_lshl_add_u32 v{v_t0}, v{v_t1}, 10, v{v_t0}")
    e(f"v_bfe_u32 v{v_t1}, v{v_lane}, 1, 1")
    e(f"v_lshl_add_u32 v{v_t0}, v{v_t1}, 7, v{v_t0}")
    e(f"buffer_load_dword v{T}, v{v_t0}, {srd(sWQ)}, s{s_tmp} offen")
    e(f"s_branch {lj}")
    a.label(lq)
    e(f"s_mul_i32 s{s_tmp}, s{s_tmp}, {16*3072}")
    e(f"s_lshl_b32 s{s_tmp3}, s{s_tmp3}, 8")
    e(f"s_add_u32 s{s_tmp}, s{s_tmp}, s{s_tmp3}")
    e(f"v_bfe_u32 v{v_t0}, v{v_lane}, 1, 4")
    e(f"s_movk_i32 s{s_tmp4}, 3072")
    e(f"v_mul_u32_u24 v{v_t0}, s{s_tmp4}, v{v_t0}")
    e(f"v_and_b32 v{v_t1}, 1, v{v_lane}")
    e(f"v_lshl_add_u32 v{v_t0}, v{v_t1}, 7, v{v_t0}")
    e(f"buffer_load_dword v{T}, v{v_t0}, {srd(sWQ)}, s{s_tmp} offen")
    a.label(lj)
    a.vm.append("TCH")

def touch_l2_s3(a, part, nparts):
    e = a.e
    T = v_xo + 3
    l1 = a.newlabel("Lt3"); lj = a.newlabel("Lt3j")
    n = 64 // nparts
    mask = ((1 << n) - 1) << (n * part)
    e(f"s_lshr_b32 s{s_tmp}, s2, 3")
    e(f"s_lshl_b32 s{s_tmp}, s{s_tmp}, 3")
    e(f"s_add_u32 s{s_tmp}, s{s_tmp}, s{s_wv}")
    e(f"s_mul_i32 s{s_tmp}, s{s_tmp}, {n*128}")
    e(f"s_add_u32 s{s_tmp}, s{s_tmp}, {part * 256 * n * 128 - part*n*128}")
    e(f"v_lshlrev_b32 v{v_t2}, 7, v{v_lane}")
    e(f"s_mov_b32 exec_lo, 0x{mask & 0xffffffff:x}")
    e(f"s_mov_b32 exec_hi, 0x{mask >> 32:x}")
    lim = 1376*1024
    if (part + 1) * 256 * n * 128 <= 0x180000:
        e(f"buffer_load_dword v{T}, v{v_t2}, {srd(sW2)}, s{s_tmp} offen")
    else:
        e(f"s_sub_u32 s{s_tmp}, s{s_tmp}, 0x180000")
        e(f"buffer_load_dword v{T}, v{v_t2}, {srd(sWO)}, s{s_tmp} offen")
    e("s_mov_b64 exec, -1")
    a.vm.append("TCH")

def touch_scalar(a, which):
    e = a.e
    e(f"s_lshl_b32 s{s_tmp}, s2, 3")
    e(f"s_add_u32 s{s_tmp}, s{s_tmp}, s{s_wv}")
    tab = {"x": (sX, 8), "q": (sWQ, 6), "1": (sW1, 6), "2": (sW2, 6), "o": (sWO, 2)}
    for w in which:
        sr, n = tab[w]
        e(f"s_mul_i32 s{s_tmp2}, s{s_tmp}, {n*128}")
        for i in range(n):
            e(f"s_buffer_load_dword s{s_cnt}, {srd(sr)}, s{s_tmp2} offset:{i*128}")

def tlb_warm(a, mode):
    e = a.e
    e(f"s_lshl_b32 s{s_tmp}, s{s_wv}, 21")
    e(f"s_buffer_load_dword s{s_cnt}, {srd(sWS)}, s{s_tmp}")
    e(f"s_add_u32 s{s_tmp}, s{s_tmp}, 0x100000")
    e(f"s_buffer_load_dword s{s_cnt}, {srd(sWS)}, s{s_tmp}")
    e(f"s_lshl_b32 s{s_tmp}, s{s_wv}, 18")
    e(f"s_buffer_load_dword s{s_cnt}, {srd(sOUT)}, s{s_tmp}")
    if mode >= 2:
        e(f"s_buffer_load_dword s{s_cnt}, {srd(sW2)}, s{s_tmp}")
        e(f"s_buffer_load_dword s{s_cnt}, {srd(sWO)}, s{s_tmp}")
        e(f"s_buffer_load_dword s{s_cnt}, {srd(sDBG)}, 128")

HEADER = open(os.path.join(os.path.dirname(os.path.abspath(__file__)), "..", "cdna_kernels", NAME + ".s.ref")).read().split("; Override launch")[0]

def emit_file(path):
    a = gen()
    s = HEADER
    s += "; @launch grid=(256,1,1) block=(512,1,1) lds=163840\n"
    s += f""".amdgcn_target "amdgcn-amd-amdhsa--gfx950"
.text
.globl {NAME}_kernel
.p2align 8
.type {NAME}_kernel,@function
{NAME}_kernel:
"""
    s += "\n".join(a.lines) + "\n"
    s += f""".section .rodata,"a"
.p2align 6
.amdhsa_kernel {NAME}_kernel
  .amdhsa_next_free_vgpr 256
  .amdhsa_next_free_sgpr {NSGPR}
  .amdhsa_accum_offset 256
  .amdhsa_group_segment_fixed_size 0
  .amdhsa_kernarg_size 80
  .amdhsa_user_sgpr_count 2
  .amdhsa_user_sgpr_kernarg_segment_ptr 1
  .amdhsa_system_sgpr_workgroup_id_x 1
.end_amdhsa_kernel
"""
    open(path, "w").write(s)

if __name__ == "__main__":
    out = sys.argv[1] if len(sys.argv) > 1 else os.path.join(os.path.dirname(os.path.abspath(__file__)), "..", "cdna_kernels", NAME + ".s")
    emit_file(out)
```

```python
import sys, math, os, struct

NAME = "gated_mix__sliding_block__dense_activation_relu__prompt"

KF = 0x200000
VF = 0x400000
OF = 0x600000
HF = 0x800000
GB = 0xE00000
FL = 0xF00000
TS = 0xF80000
WS_BYTES = 0x1000000
HROW = 86 * 1024
OOB = 0x40000000
SLOT = 16384

def env(n, d): return int(os.environ.get(n, d))
STAMPS = env("GEN_STAMPS", 0) >= 1
STAMPS2 = env("GEN_STAMPS", 0) >= 2
TOUCH = env("GEN_TOUCH", 2)
NT = env("GEN_NT", 0)
ROT = env("GEN_ROT", 0)

class Asm:
    def __init__(self):
        self.lines = []; self.vm = []; self.uid = 0; self.nstamp = 0
    def e(self, s): self.lines.append("    " + s)
    def label(self, l): self.lines.append(l + ":")
    def c(self, s): self.lines.append("    ; " + s)
    def newlabel(self, p="L"):
        self.uid += 1
        return f"{p}_{self.uid}"
    def vmem(self, s, tag):
        self.e(s); self.vm.append(tag)
    def wait_vm(self, tags, lgkm0=False):
        if isinstance(tags, str): tags = [tags]
        last = -1
        for i, t in enumerate(self.vm):
            if t in tags: last = i
        x = " lgkmcnt(0)" if lgkm0 else ""
        if last < 0:
            if lgkm0: self.e("s_waitcnt lgkmcnt(0)")
            return
        n = len(self.vm) - 1 - last
        assert n <= 63
        self.e(f"s_waitcnt vmcnt({n}){x}")
        self.vm = self.vm[last + 1:]

class Lg:
    def __init__(self, a): self.a = a; self.q = []
    def add(self, tag): self.q.append(tag)
    def wait(self, tags):
        last = -1
        for i, t in enumerate(self.q):
            if t in tags: last = i
        if last < 0: return
        n = min(len(self.q) - 1 - last, 15)
        self.a.e(f"s_waitcnt lgkmcnt({n})")
        self.q = self.q[len(self.q) - n:] if n else []
    def clear(self): self.q = []
    def drain(self):
        if self.q: self.a.e("s_waitcnt lgkmcnt(0)")
        self.q = []

sX, sWQ, sW1, sW2, sWO, sWS, sOUT, sGW, sDBG, sPW = 8, 12, 16, 20, 24, 28, 32, 36, 40, 88
def srd(b): return f"s[{b}:{b+3}]"
s_wv, s_rb, s_cg, s_p, s_t, s_rg, s_cgp, s_rb3, s_cb3, s_xbase = range(44, 54)
s_tmp, s_tmp2, s_wideoff, s_naroff = 54, 55, 56, 57
s_nonce = 58
s_tmp3, s_tmp4, s_st0, s_st1, s_first, s_w2off, s_xlds, s_cnt = range(60, 68)
s_exec = 68
s_m = 70; s_m2 = 72; s_m3 = 74
s_ldsw, s_a3, s_a3o, s_qb = 76, 77, 78, 79
s_vm = 80
s_ts = 82
s_tsb, s_ok, s_ga, s_pstep = 84, 85, 86, 87
s_st2 = 92
s_ldsww = 95
s_gw = 7
s_wbase = 5
GREG = 48
s_fl = 6
s_kvb = 3
s_krd = 4
s_vrdb = 98
s_flh = 99
s_flc = 100
v_kf = 25
NSGPR = 102

v_lane, v_l16 = 1, 2
v_xo = 3
v_wq_n, v_wd0, v_wd1, v_xrd, v_trn, v_trw, v_tr3, v_w2_n = 7, 8, 9, 10, 11, 12, 13, 14
v_t0, v_t1 = 15, 16
v_hi = 17
v_t2, v_t3 = 18, 19
v_non = 20
v_c2 = 20
v_mc = 22
v_g2 = 24
v_omg2 = 26
v_t4, v_t5 = 28, 29
v_trw2, v_tr3b = 30, 31
MASKF = 32
MASKD = 48
BF = 64
ACC = 96
XF = 128
v_fo = 252; v_fd = 254

def vr(b, n): return f"v[{b}:{b+n-1}]"

ORD = os.environ.get("GEN_ORD", "A")
CFG = {
 "A": dict(order=[0,1,2,3,4,5,6,7,8,9,10,11], xslot={0:0,1:4,2:6,3:0}, init={0:2,1:3}, atk=6, atv=4, usplit=4, lg=4,
      sched={0:[("X",2,0),("P",2,8),("P",3,9)], 1:[("X",3,0),("P",4,2)], 2:[("P",5,4),("P",6,5),("P",7,3)],
             3:[("P",8,6),("P",9,7),("P",10,8)], 4:[("P",11,9)], 5:[("Q",0,0),("Q",1,1)], 6:[("Q",2,2)], 9:[("Q",3,3)]},
      sig0=6, kvi=9, kvc=11, post=(8,9), non=2),
 "C": dict(order=[0,1,4,2,5,3,6,7,8,9,10,11], xslot={0:0,1:3,2:8,3:0}, init={0:2,1:5}, atk=3, atv=0, usplit=6, lg=6,
      sched={0:[("P",4,6),("X",2,0),("P",2,7)], 1:[("P",5,2),("X",3,0)], 2:[("P",3,5),("P",6,3),("P",7,4)],
             3:[("P",8,6)], 4:[("P",9,7),("P",10,8),("P",11,9)], 5:[("Q",0,2)], 7:[("Q",1,5)], 10:[("Q",2,6)], 11:[("Q",3,7)]},
      sig0=8, kvi=10, kvc=11, post=(8,9), non=3),
}[ORD]
XSLOT = CFG["xslot"]
ATK = CFG['atk'] * SLOT
ATQ = ATK + 24576
ATV = CFG['atv'] * SLOT

v_st = 27
def stamp(a, final=False):
    if not STAMPS: return
    i = a.nstamp; a.nstamp += 1
    cur = s_ts + 2*(i & 1) if False else (s_ts if (i & 1) == 0 else 96)
    prev = (s_ts if ((i-1) & 1) == 0 else 96)
    if i > 0:
        a.e(f"v_writelane_b32 v{v_st}, s{prev}, {i-1}")
    a.e(f"{'s_memrealtime' if env('GEN_RT',0) else 's_memtime'} s[{cur}:{cur+1}]")
    if final:
        a.e("s_waitcnt lgkmcnt(0)")
        a.e(f"v_writelane_b32 v{v_st}, s{cur}, {i}")
        a.e(f"v_lshlrev_b32 v{v_t3}, 2, v{v_lane}")
        a.e("s_mov_b32 exec_lo, -1")
        a.e("s_mov_b32 exec_hi, 0")
        a.e(f"buffer_store_dword v{v_st}, v{v_t3}, {srd(sWS)}, s{s_tsb} offen")
        if env("GEN_DBG", 0):
            l = a.newlabel("Ldbg")
            a.e(f"s_cmp_lg_u32 s2, {env('GEN_DBG',0)}")
            a.e(f"s_cbranch_scc1 {l}")
            a.e(f"s_cmp_lg_u32 s{s_wv}, 0")
            a.e(f"s_cbranch_scc1 {l}")
            a.e(f"v_readlane_b32 s{s_tmp}, v{v_st}, 0")
            a.e("s_nop 3")
            a.e(f"v_subrev_u32 v{v_st}, s{s_tmp}, v{v_st}")
            a.e("s_mov_b32 exec_lo, 0x3ffe")
            a.e(f"buffer_store_dword v{v_st}, v{v_t3}, {srd(sDBG)}, 0 offen offset:4")
            a.label(l)

def dma(a, voff, srd_b, soff, lds_sgpr, ldsimm, tag, sc1=False):
    a.e(f"s_add_u32 m0, s{lds_sgpr}, {ldsimm}")
    a.e("s_nop 0")
    nt = " nt" if (not sc1 and ((NT & 1) and tag[0] in "XP" or (NT & 2) and tag[0] == "Q")) else ""
    a.vmem(f"buffer_load_dwordx4 v{voff}, {srd(srd_b)}, {soff} offen{' sc1' if sc1 else ''}{nt} lds", tag)

def x_ops(a, j):
    ops = []
    for t in range(4):
        def f(t=t):
            a.e(f"s_add_u32 s{s_tmp}, s{s_xbase}, {t*4096 + j*256}")
            dma(a, v_xo + t, sX, f"s{s_tmp}", s_xlds, XSLOT[j]*SLOT + t*1024, f"X{j}")
        ops.append(f)
    return ops

def piece_ops(a, i, slot):
    ops = []
    for t in range(2):
        if i < 4:
            def f(t=t):
                a.e(f"s_add_u32 s{s_tmp}, s{s_naroff}, {(128*i + 8*t)*3072}")
                dma(a, v_wq_n, sWQ, f"s{s_tmp}", s_ldsw, slot*SLOT + t*1024, f"P{i}")
        else:
            def f(t=t):
                if t == 0:
                    a.e(f"s_mul_i32 s{s_wideoff}, s{s_pstep}, {i-4}")
                    a.e(f"s_add_u32 s{s_wideoff}, s{s_wideoff}, s{s_wbase}")
                a.e(f"s_add_u32 s{s_tmp}, s{s_ldsw}, {slot*SLOT + t*1024}")
                a.e(f"s_max_u32 m0, s{s_tmp}, s{s_ldsww}")
                a.e("s_nop 0")
                a.vmem(f"buffer_load_dwordx4 v{v_wd0 + t}, {srd(sPW)}, s{s_wideoff} offen{' nt' if NT & 1 else ''} lds", f"P{i}")
                if t == 1:
                    l = a.newlabel("Lgw")
                    a.e(f"s_cmp_eq_u32 s{s_gw}, 0")
                    a.e(f"s_cbranch_scc1 {l}")
                    a.e(f"v_add_u32 v{v_t2}, {slot*SLOT + 4096 + 128}, v{v_g2}")
                    a.e(f"ds_write_b16 v{v_t2}, v{GREG + i - 4}")
                    a.label(l)
        ops.append(f)
    return ops

def w2_ops(a, i, slot):
    ops = []
    for t in range(2):
        def f(t=t):
            srdb, r0 = (sW2, 128*i) if i <= 10 else (sWO, 128*(i-11))
            a.e(f"s_add_u32 s{s_tmp}, s{s_w2off}, {(r0 + 8*t) * 1024}")
            dma(a, v_w2_n, srdb, f"s{s_tmp}", s_ldsw, slot*SLOT + t*1024, f"Q{i}")
        ops.append(f)
    return ops

def issue_x_quarter(a, j):
    for f in x_ops(a, j): f()
def issue_piece(a, i, slot):
    for f in piece_ops(a, i, slot): f()
def issue_w2_piece(a, i, slot):
    for f in w2_ops(a, i, slot): f()

def mfma(a, d, x, y, c):
    cs = c if isinstance(c, str) else vr(c, 16)
    a.e(f"v_mfma_f32_32x32x16_bf16 {vr(d,16)}, {vr(x,4)}, {vr(y,4)}, {cs}")

def pack_tile(a, acc, pk, relu):
    for q in range(8):
        a.e(f"v_cvt_pk_bf16_f32 v{pk+q}, v{acc+2*q}, v{acc+2*q+1}")
    if relu:
        for q in range(8):
            a.e(f"v_pk_max_i16 v{pk+q}, v{pk+q}, 0")

def store_pk(a, pk, soff_sgpr, tag):
    a.vmem(f"buffer_store_dwordx4 {vr(pk,4)}, v{v_l16}, {srd(sWS)}, s{soff_sgpr} offen sc1", tag)
    a.vmem(f"buffer_store_dwordx4 {vr(pk+4,4)}, v{v_l16}, {srd(sWS)}, s{soff_sgpr} offen offset:1024 sc1", tag)

def signal(a, phase):
    l = a.newlabel("Lsig")
    a.e(f"s_cmp_lg_u32 s{s_wv}, 0")
    a.e(f"s_cbranch_scc1 {l}")
    a.e(f"v_mov_b32 v{v_t2}, s{s_nonce}")
    a.e(f"v_mov_b32 v{v_t3}, s{s_nonce+1}")
    a.e(f"v_mov_b32 v{v_t1}, {phase*32768}")
    a.e("s_mov_b64 exec, 1")
    a.e(f"buffer_store_dwordx2 v[{v_t2}:{v_t3}], v{v_t1}, {srd(sWS)}, s{s_fl} offen sc1")
    a.e("s_mov_b64 exec, -1")
    a.label(l)

def signal_wave(a):
    a.e(f"v_mov_b32 v{v_t2}, s{s_nonce}")
    a.e(f"v_mov_b32 v{v_t3}, s{s_nonce+1}")
    a.e(f"v_mov_b32 v{v_t1}, 0")
    a.e("s_mov_b64 exec, 1")
    a.vmem(f"buffer_store_dwordx2 v[{v_t2}:{v_t3}], v{v_t1}, {srd(sWS)}, s{s_flh} offen sc1", "SIGH")
    a.e("s_mov_b64 exec, -1")

def cmp_flags4(a, vd):
    a.e(f"v_xor_b32 v{vd}, s{s_nonce}, v{vd}")
    a.e(f"v_xor_b32 v{vd+1}, s{s_nonce+1}, v{vd+1}")
    a.e(f"v_xor_b32 v{vd+2}, s{s_nonce}, v{vd+2}")
    a.e(f"v_xor_b32 v{vd+3}, s{s_nonce+1}, v{vd+3}")
    a.e(f"v_or3_b32 v{vd}, v{vd}, v{vd+1}, v{vd+2}")
    a.e(f"v_or_b32 v{vd}, v{vd}, v{vd+3}")
    a.e(f"v_cmp_ne_u32 vcc, 0, v{vd}")
    a.e("s_nop 3")
    a.e("s_cmp_eq_u64 vcc, 0")

def hflag_issue(a, track=True):
    ins = f"buffer_load_dwordx4 v[252:255], v{v_l16}, {srd(sWS)}, s{s_flc} offen sc1"
    (a.vmem(ins, "FH") if track else a.e(ins))

def hpoll(a):
    lp = a.newlabel("Lpoll"); ld = a.newlabel("Lpolld")
    a.e(f"s_mov_b32 s{s_cnt}, 0")
    a.label(lp)
    hflag_issue(a, False)
    a.e("s_waitcnt vmcnt(0)")
    cmp_flags4(a, 252)
    a.e(f"s_cbranch_scc1 {ld}")
    a.e("s_sleep 1")
    a.e(f"s_add_u32 s{s_cnt}, s{s_cnt}, 1")
    a.e(f"s_cmp_lt_u32 s{s_cnt}, 100000")
    a.e(f"s_cbranch_scc1 {lp}")
    a.label(ld)

def cmp_flags(a, vd):
    a.e(f"v_cmp_eq_u32 s[{s_m2}:{s_m2+1}], s{s_nonce}, v{vd}")
    a.e(f"v_cmp_eq_u32 s[{s_m3}:{s_m3+1}], s{s_nonce+1}, v{vd+1}")
    a.e("s_nop 3")
    a.e(f"s_and_b64 s[{s_m2}:{s_m2+1}], s[{s_m2}:{s_m2+1}], s[{s_m3}:{s_m3+1}]")
    a.e(f"s_and_b64 s[{s_m2}:{s_m2+1}], s[{s_m2}:{s_m2+1}], s[{s_m}:{s_m+1}]")
    a.e(f"s_cmp_eq_u64 s[{s_m2}:{s_m2+1}], s[{s_m}:{s_m+1}]")

def poll(a, voff):
    lp = a.newlabel("Lpoll"); ld = a.newlabel("Lpolld")
    a.e(f"s_mov_b32 s{s_cnt}, 0")
    a.label(lp)
    a.e(f"buffer_load_dwordx2 v[{v_t2}:{v_t3}], v{voff}, {srd(sWS)}, 0 offen sc1")
    a.e("s_waitcnt vmcnt(0)")
    cmp_flags(a, v_t2)
    a.e(f"s_cbranch_scc1 {ld}")
    a.e("s_sleep 1")
    a.e(f"s_add_u32 s{s_cnt}, s{s_cnt}, 1")
    a.e(f"s_cmp_lt_u32 s{s_cnt}, 100000")
    a.e(f"s_cbranch_scc1 {lp}")
    a.label(ld)

def flag_issue(a, voff, vdst, tag, track=True):
    ins = f"buffer_load_dwordx2 v[{vdst}:{vdst+1}], v{voff}, {srd(sWS)}, 0 offen sc1"
    (a.vmem(ins, tag) if track else a.e(ins))

def flag_check(a, vdst, tag, track=True):
    if track: a.wait_vm(tag)
    else: a.e("s_waitcnt vmcnt(0)")
    cmp_flags(a, vdst)

def get_nonce(a):
    a.wait_vm("NON")
    lp = a.newlabel("Lnp"); ld = a.newlabel("Lnd")
    a.e(f"s_mov_b32 s{s_cnt}, 0")
    a.label(lp)
    a.e(f"v_readfirstlane_b32 s{s_nonce}, v{v_non}")
    a.e(f"v_readfirstlane_b32 s{s_nonce+1}, v{v_non+1}")
    a.e("s_nop 3")
    a.e(f"s_cmp_lg_u32 s{s_nonce}, 0")
    a.e(f"s_cbranch_scc1 {ld}")
    a.e("s_sleep 2")
    a.e(f"v_mov_b32 v{v_t2}, 0")
    a.e(f"buffer_load_dwordx2 v[{v_non}:{v_non+1}], v{v_t2}, {srd(sDBG)}, 0 offen sc1")
    a.e("s_waitcnt vmcnt(0)")
    a.e(f"s_add_u32 s{s_cnt}, s{s_cnt}, 1")
    a.e(f"s_cmp_lt_u32 s{s_cnt}, 100000")
    a.e(f"s_cbranch_scc1 {lp}")
    a.label(ld)

def kv_flag_setup(a):
    e = a.e
    e(f"s_lshl_b32 s{s_tmp}, s{s_rb}, 4")
    e(f"s_add_u32 s{s_fl}, s{s_tmp}, s{s_cg}")
    e(f"s_lshl_b32 s{s_fl}, s{s_fl}, 7")
    e(f"s_add_u32 s{s_fl}, s{s_fl}, {FL}")
    e(f"s_lshl_b32 s{s_tmp2}, s{s_p}, 1")
    e(f"s_add_u32 s{s_tmp}, s{s_tmp}, s{s_tmp2}")
    e(f"v_lshrrev_b32 v{v_kf}, 1, v{v_lane}")
    e(f"v_lshlrev_b32 v{v_kf}, 4, v{v_kf}")
    e(f"v_sub_u32 v{v_kf}, s{s_tmp}, v{v_kf}")
    e(f"v_and_b32 v{v_t0}, 1, v{v_lane}")
    e(f"v_add_u32 v{v_kf}, v{v_kf}, v{v_t0}")
    e(f"v_and_b32 v{v_kf}, 255, v{v_kf}")
    e(f"v_lshlrev_b32 v{v_kf}, 7, v{v_kf}")
    e(f"v_add_u32 v{v_kf}, {FL}, v{v_kf}")
    e(f"s_mov_b32 s{s_m}, 63")
    e(f"s_cmp_eq_u32 s{s_rb}, 1")
    e(f"s_cselect_b32 s{s_m}, 15, s{s_m}")
    e(f"s_cmp_eq_u32 s{s_rb}, 0")
    e(f"s_cselect_b32 s{s_m}, 3, s{s_m}")
    e(f"s_mov_b32 s{s_m+1}, 0")
    e(f"s_lshl_b32 s{s_tmp3}, s{s_cg}, 6")
    e(f"s_lshl_b32 s{s_tmp4}, s{s_rb}, 2")
    e(f"s_add_u32 s{s_tmp3}, s{s_tmp3}, s{s_tmp4}")
    e(f"s_lshl_b32 s{s_tmp3}, s{s_tmp3}, 11")
    e(f"s_mul_i32 s{s_tmp4}, s{s_wv}, 3072")
    e(f"s_add_u32 s{s_kvb}, s{s_tmp3}, s{s_tmp4}")
    e(f"s_lshl_b32 s{s_tmp}, s{s_rg}, 11")
    e(f"s_lshl_b32 s{s_tmp2}, s{s_cgp}, 10")
    e(f"s_add_u32 s{s_tmp2}, s{s_tmp2}, s{s_tmp}")
    e(f"s_add_u32 s{s_krd}, s{s_tmp2}, {ATK}")
    e(f"s_lshl_b32 s{s_tmp2}, s{s_cgp}, 8")
    e(f"s_add_u32 s{s_tmp2}, s{s_tmp2}, s{s_tmp}")
    e(f"s_add_u32 s{s_vrdb}, s{s_tmp2}, {ATV}")
    e(f"s_lshl_b32 s{s_qb}, s{s_rb}, 2")
    e(f"s_add_u32 s{s_qb}, s{s_qb}, s{s_rg}")
    e(f"s_sub_i32 s{s_first}, 8, s{s_qb}")
    e(f"s_max_i32 s{s_first}, s{s_first}, 0")
    e(f"s_mov_b32 s{s_vm}, 0xffff")
    e(f"s_mov_b32 s{s_vm+1}, 0xffff")
    s3_addr_setup(a)
    e(f"s_lshl_b32 s{s_tmp}, s{s_cg}, 3")
    e(f"s_add_u32 s{s_tmp}, s{s_tmp}, s{s_wv}")
    e(f"s_lshl_b32 s{s_tmp}, s{s_tmp}, 3")
    e(f"s_lshl_b32 s{s_flh}, s{s_rb}, 10")
    e(f"s_add_u32 s{s_flh}, s{s_flh}, s{s_tmp}")
    e(f"s_add_u32 s{s_flh}, s{s_flh}, {FL + 32768}")
    e(f"s_lshr_b32 s{s_flc}, s{s_rb3}, 1")
    e(f"s_lshl_b32 s{s_flc}, s{s_flc}, 10")
    e(f"s_add_u32 s{s_flc}, s{s_flc}, {FL + 32768}")

def kv_ops(a, guard=True):
    ops = []
    for reg, lds, tag in ((KF, ATK, "AK"), (VF, ATV, "AV")):
        for i in range(3):
            def f(reg=reg, lds=lds, tag=tag, i=i):
                l = None
                if guard:
                    l = a.newlabel("Lkvg")
                    a.e(f"s_cmp_eq_u32 s{s_ok}, 0")
                    a.e(f"s_cbranch_scc1 {l}")
                a.e(f"s_mul_i32 s{s_tmp4}, s{s_wv}, 3072")
                a.e(f"s_add_u32 s{s_tmp}, s{s_kvb}, {reg - 16384 + i*1024}")
                dma(a, v_l16, sWS, f"s{s_tmp}", s_tmp4, lds + i*1024, tag, sc1=True)
                if l: a.label(l)
            ops.append(f)
    return ops

def issue_kv(a, which, track=True):
    sv = list(a.vm)
    for f in kv_ops(a, guard=False): f()
    if not track: a.vm = sv

def s1_items(pieces, slot_of):
    items = []
    for i in pieces:
        sl = slot_of[i]
        if i < 4:
            for s in range(8):
                items.append(dict(pc=i, ks=8*i + s, tl=0, vb=v_trn, off=s*2048, sec=512, sl=sl, xs=s))
        else:
            j = i - 4
            for s in range(4):
                for tl in range(2):
                    items.append(dict(pc=i, ks=4*j + s, tl=tl, vb=(v_trw2 if tl else v_trw), off=None, s=s, sl=sl, xs=None))
    return items

def stage1(a, isv):
    raise NotImplementedError

ORDER = CFG['order']
T3U = env('GEN_T3U', 99)
FLUSH = 1
USPLIT = CFG['usplit']

class S1:
    D = env('GEN_D', 5)
    def __init__(self, a):
        self.a = a; self.lg = Lg(a); self.n = 0
        self.fifo = []
        self.slot_of = dict(CFG["init"])
        self.w2_slot = {}
        self.base = {}
        self.sched = CFG["sched"]
    def sync(self, u, extra_need=(), hook=None):
        a = self.a
        i = ORDER[u]
        need = [f"P{i}"] + ([f"X{i}"] if i < 4 else []) + list(extra_need)
        if FLUSH: self.pump(len(self.fifo))
        if u <= CFG['lg']:
            a.wait_vm(need, lgkm0=True)
            self.lg.clear()
        else:
            a.wait_vm(need)
        a.e("s_barrier")
        if STAMPS2: stamp(a)
        if hook: hook()
        for kind, pc, sl in self.sched.get(u, []):
            if kind == "P": self.slot_of[pc] = sl; self.fifo += piece_ops(a, pc, sl)
            elif kind == "X": self.fifo += x_ops(a, pc)
            else: self.w2_slot[pc] = sl; self.fifo += w2_ops(a, pc, sl)
        self.base = {}
    def pump(self, n=1):
        for _ in range(n):
            if self.fifo: self.fifo.pop(0)()
    def read(self, it):
        a = self.a
        b = BF + (it["n"] % 8) * 4
        sl = it["sl"]
        if it["xs"] is not None:
            s = it["xs"]; xq = it["pc"]
            r = v_t0 + (s & 1)
            a.e(f"v_xor_b32 v{r}, {s*32}, v{v_xrd}")
            off = XSLOT[xq]*SLOT
            if off > 65535:
                a.e(f"v_add_u32 v{r}, {off}, v{r}"); off = 0
            a.e(f"ds_read_b128 {vr(XF + it['ks']*4, 4)}, v{r} offset:{off}")
            self.lg.add(("x", it["ks"]))
        vb = it["vb"]
        if it["pc"] < 4:
            off, sec = it["off"], it["sec"]
            o = sl*SLOT + off
            if o + sec > 65535:
                if vb not in self.base:
                    a.e(f"v_add_u32 v{v_t4}, {sl*SLOT}, v{vb}"); self.base[vb] = v_t4
                vb = self.base[vb]; o = off
            a.e(f"ds_read_b64_tr_b16 {vr(b,2)}, v{vb} offset:{o}")
            a.e(f"ds_read_b64_tr_b16 {vr(b+2,2)}, v{vb} offset:{o + sec}")
        else:
            s = it["s"]; tl = it["tl"]
            if tl == 1:
                o = sl*SLOT + s*16*192; sec = 4*192
                if o + sec > 65535 - 16384:
                    if vb not in self.base:
                        a.e(f"v_add_u32 v{v_t5}, {sl*SLOT}, v{vb}"); self.base[vb] = v_t5
                    vb = self.base[vb]; o = s*16*192
                a.e(f"ds_read_b64_tr_b16 {vr(b,2)}, v{vb} offset:{o}")
                a.e(f"ds_read_b64_tr_b16 {vr(b+2,2)}, v{vb} offset:{o + sec}")
            else:
                if s == 0:
                    a.e(f"v_add_u32 v{v_t4}, {sl*SLOT}, v{v_trw}")
                    a.e(f"v_add_u32 v{v_t0}, {sl*SLOT}, v{v_omg2}")
                else:
                    a.e(f"v_add_u32 v{v_t4}, s{s_k16}, v{v_t4}")
                    a.e(f"v_add_u32 v{v_t0}, s{s_k16}, v{v_t0}")
                a.e(f"ds_read_b64_tr_b16 {vr(b,2)}, v{v_t4}")
                a.e(f"ds_read_b64_tr_b16 {vr(b+2,2)}, v{v_t0}")
        self.lg.add(("b", it["n"])); self.lg.add(("b", it["n"]))
    def mm(self, it, isv):
        a = self.a
        self.lg.wait([("b", it["n"]), ("x", it["ks"])])
        b = BF + (it["n"] % 8) * 4
        if it["pc"] < 4:
            acc = ACC2
            cin = "0" if it["ks"] == 0 else acc
            if isv: mfma(a, acc, XF + it["ks"]*4, b, cin)
            else: mfma(a, acc, b, XF + it["ks"]*4, cin)
        else:
            acc = ACC + 16*it["tl"]
            cin = "0" if it["ks"] == 0 else acc
            mfma(a, acc, b, XF + it["ks"]*4, cin)

ACC2 = MASKF
s_k16 = 93

def build_maskd(a):
    e = a.e
    e(f"v_and_b32 v{v_t2}, 31, v{v_lane}")
    e(f"v_lshlrev_b32 v{v_t3}, 2, v{v_hi}")
    e(f"v_sub_u32 v{v_t2}, v{v_t2}, v{v_t3}")
    e(f"v_mov_b32 v{v_t3}, 0xf149f2ca")
    for r in range(16):
        cr = (r & 3) + 8 * (r >> 2)
        e(f"v_cmp_gt_i32 vcc, {cr}, v{v_t2}")
        e("s_nop 1")
        e(f"v_cndmask_b32 v{MASKD+r}, 0, v{v_t3}, vcc")

PRE = env("GEN_PRE", 2)
def run_stage1(a):
    e = a.e
    a.c("================ stage 1 ================")
    D = S1.D
    base_lines = a.lines
    outs = []
    ns0 = a.nstamp; vm0 = list(a.vm)
    state = {}
    def hook(u, st):
        if u == 1 and TOUCH >= 2 and TOUCH not in (7, 9): touch(a, (sW2, sWO), 240)
        if T3U <= u < T3U + 4: st.fifo.append(lambda u=u: touch_l2_s3(a, u - T3U, 4))
        if u == env("GEN_TLBV", 99): tlb_warm_v(a)
        if u == CFG['non']:
            a.e(f"v_mov_b32 v{v_t2}, 0")
            a.vmem(f"buffer_load_dwordx2 v[{v_non}:{v_non+1}], v{v_t2}, {srd(sDBG)}, 0 offen sc1", "NON")
        if u == SIG0:
            get_nonce(a); signal(a, 0)
        if u == CFG["kvi"]:
            flag_issue(a, v_kf, v_non + 2, "FKV")
        if u == CFG["kvc"]:
            flag_check(a, v_non + 2, "FKV")
            a.e(f"s_cselect_b32 s{s_ok}, 1, 0")
            st.fifo = kv_ops(a) + st.fifo
    def do_mm(st, pend, isv):
        it = pend.pop(0)
        st.mm(it, isv)
        if it["pc"] == 3 and it["ks"] == 31: state["kvdone"] = 0
        elif "kvdone" in state:
            state["kvdone"] += 1
            if state["kvdone"] == 2:
                a.e("s_nop 7")
                pack_tile(a, ACC2, ACC2, False)
                store_pk(a, ACC2, s_st0, "ST0")
        st.pump(1)
    def unit(st, u, pend, n, isv, q0=0, q1=8, items=None):
        pc = ORDER[u]
        if items is None:
            if u <= CFG["lg"]:
                for _ in range(min(PRE, len(pend))): do_mm(st, pend, isv)
            st.sync(u, ["ST0"] if u == SIG0 else [], lambda: hook(u, st))
            items = s1_items([pc], st.slot_of)
            for it in items: it["n"] = n; n += 1
        for q in range(q0, q1):
            st.read(items[q]); pend.append(items[q])
            if len(pend) > D: do_mm(st, pend, isv)
            elif q % 2 == 1 and len(pend) > 2 and u > 0 and pend[0]["pc"] != pc: do_mm(st, pend, isv)
        return n, items
    for isv in (0, 1):
        a.lines = []; a.vm = list(vm0); a.nstamp = ns0; state.clear()
        st = S1(a)
        if isv: a.label("L_s1v")
        pend = []; n = 0
        for u in range(0, USPLIT):
            n, _ = unit(st, u, pend, n, isv)
        n, items = unit(st, USPLIT, pend, n, isv, 0, 0)
        q = 0
        while any(it["pc"] < 4 for it in pend):
            unit(st, USPLIT, pend, n, isv, q, q + 1, items); q += 1
            if q >= 8:
                while any(it["pc"] < 4 for it in pend): do_mm(st, pend, isv)
        st.pump(len(st.fifo))
        if not isv: a.e("s_branch L_s1w")
        outs.append((a.lines, list(a.vm), st, pend, n, items, q, dict(state)))
    assert outs[0][1] == outs[1][1]
    a.lines = base_lines + outs[0][0] + outs[1][0]
    _, vm, st, pend, n, items_s, q0, stt = outs[1]
    a.vm = vm
    a.label("L_s1w")
    unit(st, USPLIT, pend, n, 0, q0, 8, items_s)
    for u in range(USPLIT + 1, 12):
        n, _ = unit(st, u, pend, n, 0)
    while pend: do_mm(st, pend, 0)
    st.pump(len(st.fifo))
    e("s_nop 7"); e("s_nop 3")
    gate(a)
    pack_tile(a, ACC + 16, BF + 8, True)
    store_pk(a, BF + 8, s_st2, "ST1")
    pack_tile(a, ACC, BF, False)
    l = a.newlabel("Lq"); l2 = a.newlabel("Lqd")
    e(f"s_cmp_eq_u32 s{s_cgp}, 0")
    e(f"s_cbranch_scc1 {l}")
    for q in range(8): e(f"v_pk_max_i16 v{BF+q}, v{BF+q}, 0")
    a.label(l)
    store_pk(a, BF, s_st1, "ST1")
    return st.w2_slot

SIG0 = CFG['sig0']

def gate(a):
    e = a.e
    l = a.newlabel("Lgate")
    e(f"s_cmp_lg_u32 s{s_cg}, 15")
    e(f"s_cbranch_scc1 {l}")
    e(f"s_cmp_lg_u32 s{s_cgp}, 1")
    e(f"s_cbranch_scc1 {l}")
    e(f"v_cvt_pk_bf16_f32 v{v_t1}, v{ACC+16}, v{ACC+16}")
    e(f"v_lshlrev_b32 v{v_t1}, 16, v{v_t1}")
    e(f"v_mul_f32 v{v_t1}, 0xbfb8aa3b, v{v_t1}")
    e(f"v_exp_f32 v{v_t1}, v{v_t1}")
    e("s_nop 0")
    e(f"v_add_f32 v{v_t1}, 1.0, v{v_t1}")
    e(f"v_rcp_f32 v{v_t1}, v{v_t1}")
    e("s_nop 0")
    e(f"v_cvt_pk_bf16_f32 v{v_t1}, v{v_t1}, v{v_t1}")
    e(f"v_lshlrev_b32 v{v_t1}, 16, v{v_t1}")
    e(f"v_lshlrev_b32 v{v_t0}, 2, v{v_lane}")
    e(f"s_lshl_b32 s{s_tmp}, s{s_rb}, 2")
    e(f"s_add_u32 s{s_tmp}, s{s_tmp}, s{s_rg}")
    e(f"s_lshl_b32 s{s_tmp}, s{s_tmp}, 7")
    e(f"s_add_u32 s{s_tmp}, s{s_tmp}, {GB}")
    e(f"s_mov_b64 s[{s_exec}:{s_exec+1}], exec")
    e("s_mov_b32 exec_lo, -1")
    e("s_mov_b32 exec_hi, 0")
    e(f"buffer_store_dword v{v_t1}, v{v_t0}, {srd(sWS)}, s{s_tmp} offen sc1")
    e(f"s_mov_b64 exec, s[{s_exec}:{s_exec+1}]")
    a.label(l)

def Sreg(b):
    if b == 0: return MASKF
    if b == 8: return MASKD
    return 64 + 16*(b-1)
KFR = 176; QFR = 212; VROT = 216; OACC = 232
v_max = 248; v_max2 = 249; v_vrd = 250; v_krd = 251

def AFreg(n):
    if n < 10: return 176 + 4*n
    if n < 14: return 48 + 4*(n-10)
    if n < 18: return 160 + 4*(n-14)
    return 144 + 4*(n-18)
def AOreg(n):
    return 128 + 4*n if n < 4 else 32 + 4*(n-4)
BF3 = 64; ACB = 96; ACA = 216

def s3_addr_setup(a):
    e = a.e
    e(f"s_lshl_b32 s{s_tmp3}, s{s_rb3}, 1")
    e(f"s_add_u32 s{s_tmp3}, s{s_tmp3}, s{s_cgp}")
    e(f"s_mul_i32 s{s_a3}, s{s_tmp3}, {HROW}")
    e(f"s_lshl_b32 s{s_tmp}, s{s_rg}, 10")
    e(f"s_add_u32 s{s_a3}, s{s_a3}, s{s_tmp}")
    e(f"s_add_u32 s{s_a3}, s{s_a3}, {HF}")
    e(f"s_lshl_b32 s{s_a3o}, s{s_tmp3}, 15")
    e(f"s_add_u32 s{s_a3o}, s{s_a3o}, s{s_tmp}")
    e(f"s_add_u32 s{s_a3o}, s{s_a3o}, {OF}")
    e(f"s_lshl_b32 s{s_ga}, s{s_tmp3}, 7")
    e(f"s_add_u32 s{s_ga}, s{s_ga}, {GB}")

def h_loads(a, ns, track=True):
    e = a.e
    for n in ns:
        if n == "g":
            e(f"v_and_b32 v{v_t0}, 31, v{v_lane}")
            e(f"v_lshlrev_b32 v{v_t0}, 2, v{v_t0}")
            ins = f"buffer_load_dword v{v_g2}, v{v_t0}, {srd(sWS)}, s{s_ga} offen sc1"
            (a.vmem(ins, "G") if track else e(ins))
            continue
        e(f"s_add_u32 s{s_tmp}, s{s_a3}, {n*4096}")
        if n == 21:
            e(f"s_cmp_ge_u32 s{s_rg}, 2")
            e(f"s_cselect_b32 s{s_tmp}, {OOB}, s{s_tmp}")
        ins = f"buffer_load_dwordx4 {vr(AFreg(n),4)}, v{v_l16}, {srd(sWS)}, s{s_tmp} offen sc1"
        (a.vmem(ins, f"H{n}") if track else e(ins))

def guarded_h_loads(a, ns, track=True):
    l = a.newlabel("Lhl")
    a.e(f"s_cmp_eq_u32 s{s_ok}, 0")
    a.e(f"s_cbranch_scc1 {l}")
    h_loads(a, ns, track)
    a.label(l)

def flags16(a, phase, vdst):
    e = a.e
    e(f"s_lshr_b32 s{s_tmp}, s{s_rb3}, 1")
    e(f"s_lshl_b32 s{s_tmp}, s{s_tmp}, 11")
    e(f"s_add_u32 s{s_tmp}, s{s_tmp}, {FL + phase*32768}")
    e(f"v_and_b32 v{vdst}, 15, v{v_lane}")
    e(f"v_lshlrev_b32 v{vdst}, 7, v{vdst}")
    e(f"v_add_u32 v{vdst}, s{s_tmp}, v{vdst}")
    e(f"s_mov_b32 s{s_m}, 0xffff")
    e(f"s_mov_b32 s{s_m+1}, 0")

SIGB = env('GEN_SIGB', 1)
HB_ISSUE, HB_CHECK = env("GEN_HBI", 5), env("GEN_HBC", 3)

def attention(a, slot_of):
    e = a.e
    a.c("================ attention ================")
    e(f"s_lshl_b32 s{s_tmp}, s{s_rg}, 10")
    e(f"s_add_u32 s{s_tmp}, s{s_tmp}, {ATQ}")
    e(f"v_add_u32 v{v_t0}, s{s_tmp}, v{v_l16}")
    l = a.newlabel("Lqx")
    e(f"s_cmp_lg_u32 s{s_cgp}, 0")
    e(f"s_cbranch_scc1 {l}")
    e(f"ds_write_b128 v{v_t0}, {vr(BF+4,4)}")
    for i in range(4): e(f"v_mov_b32 v{QFR+i}, v{BF+i}")
    a.label(l)
    l = a.newlabel("Lkvok")
    e(f"s_cmp_lg_u32 s{s_ok}, 0")
    e(f"s_cbranch_scc1 {l}")
    poll(a, v_kf)
    issue_kv(a, "KV", track=False)
    e("s_waitcnt vmcnt(0)")
    a.label(l)
    l = a.newlabel("Lgm")
    e(f"s_cmp_eq_u32 s{s_gw}, 0")
    e(f"s_cbranch_scc1 {l}")
    build_maskd(a)
    a.label(l)
    stamp(a)
    e(f"v_add_u32 v{v_krd}, s{s_krd}, v{v_l16}")
    e(f"v_mov_b32 v{v_t3}, 0xf149f2ca")
    for r in range(16):
        e(f"v_sub_f32 v{MASKF+r}, v{v_t3}, v{MASKD+r}")
    a.wait_vm(["AK", "AV"], lgkm0=True)
    e("s_barrier")
    stamp(a)
    lg = Lg(a)
    l = a.newlabel("Lqr")
    e(f"s_cmp_eq_u32 s{s_cgp}, 0")
    e(f"s_cbranch_scc1 {l}")
    e(f"ds_read_b128 {vr(QFR,4)}, v{v_t0}")
    a.label(l)
    for b in range(8, -1, -1):
        e(f"ds_read_b128 {vr(KFR+4*b,4)}, v{v_krd} offset:{b*2048}"); lg.add(("k", b))
    fill = []
    for pc, sl in zip((4, 5), CFG["post"]):
        slot_of[pc] = sl; fill += w2_ops(a, pc, sl)
    c = 0.25 * math.log2(math.e)
    cbits = struct.unpack("<I", struct.pack("<f", c))[0]
    misc = [f"v_mov_b32 v{VROT+i}, 0x3f803f80" for i in range(16)]
    misc += [f"v_mov_b32 v{v_c2}, 0x{cbits:08x}", f"v_mov_b32 v{v_c2+1}, 0x{cbits:08x}", f"v_add_u32 v{v_vrd}, s{s_vrdb}, v{v_l16}"]
    for b in range(8, -1, -1):
        lg.wait([("k", b)])
        S = Sreg(b)
        mfma(a, S, KFR + 4*b, QFR, S if b in (0, 8) else "0")
        for _ in range(3):
            if misc: e(misc.pop(0))
        if fill and b % 2 == 0: fill.pop(0)()
    while misc: e(misc.pop(0))
    while fill: fill.pop(0)()
    if SIGB == 1:
        a.wait_vm("ST1"); signal_wave(a)
    lmax = a.newlabel("Lmaxd")
    e("s_nop 4")
    for b in range(8, -1, -1):
        S = Sreg(b)
        if b < 8:
            e(f"s_cmp_gt_u32 s{s_first}, {b}")
            e(f"s_cbranch_scc1 {lmax}")
        for q in range(8):
            if b == 8 and q == 0:
                e(f"v_max_f32 v{v_max}, v{S}, v{S+1}")
            else:
                e(f"v_max3_f32 v{v_max}, v{S+2*q}, v{S+2*q+1}, v{v_max}")
    a.label(lmax)
    e(f"v_mov_b32 v{v_max2}, v{v_max}")
    e("s_nop 1")
    e(f"v_permlane32_swap_b32 v{v_max}, v{v_max2}")
    e("s_nop 1")
    e(f"v_max_f32 v{v_max}, v{v_max}, v{v_max2}")
    e(f"v_mul_f32 v{v_mc}, v{v_c2}, v{v_max}")
    e(f"v_sub_f32 v{v_mc}, 0, v{v_mc}")
    e(f"v_mov_b32 v{v_mc+1}, v{v_mc}")
    if SIGB == 2:
        a.wait_vm("ST1"); signal_wave(a)
    def softmax_block(b):
        S = Sreg(b)
        for q in range(8):
            e(f"v_pk_fma_f32 v[{S+2*q}:{S+2*q+1}], v[{S+2*q}:{S+2*q+1}], v[{v_c2}:{v_c2+1}], v[{v_mc}:{v_mc+1}]")
        for r in range(16):
            e(f"v_exp_f32 v{S+r}, v{S+r}")
        for q in range(8):
            e(f"v_cvt_pk_bf16_f32 v{S+q}, v{S+2*q}, v{S+2*q+1}")
    softmax_block(8)
    e("s_barrier")
    stamp(a)
    for pc, sl in ((6, CFG['atk']), (7, CFG['atk']+1)):
        slot_of[pc] = sl; issue_w2_piece(a, pc, sl)
    lg = Lg(a)
    def vread(n):
        b = 8 - n//2; m = n % 2
        e(f"ds_read_b128 {vr(VROT + 4*(n%4), 4)}, v{v_vrd} offset:{b*2048 + m*1024}")
        lg.add(("v", n))
    e(f"s_mov_b64 exec, s[{s_vm}:{s_vm+1}]")
    vread(0); vread(1)
    e("s_mov_b64 exec, -1")
    lpv = a.newlabel("Lpvd")
    e(f"s_mov_b32 s{s_ok}, 0")
    skip_labels = {}
    hl = list(range(22)) + ["g"]
    per = -(-len(hl) // (HB_CHECK + 1))
    def post_block(b, track):
        if b == HB_ISSUE: hflag_issue(a, track)
        if b == HB_CHECK:
            if track: a.wait_vm("FH")
            else: e("s_waitcnt vmcnt(0)")
            cmp_flags4(a, 252)
            e(f"s_cselect_b32 s{s_ok}, 1, 0")
        if b <= HB_CHECK:
            i0 = (HB_CHECK - b) * per
            if hl[i0:i0+per]: guarded_h_loads(a, hl[i0:i0+per], track)
    for b in range(8, -1, -1):
        S = Sreg(b)
        n0 = 2*(8 - b)
        if b < 8:
            skip_labels[b] = a.newlabel("Lskip")
            e(f"s_cmp_gt_u32 s{s_first}, {b}")
            e(f"s_cbranch_scc1 {skip_labels[b]}")
        if b > 0:
            e(f"s_mov_b64 exec, s[{s_vm}:{s_vm+1}]")
            vread(n0 + 2); vread(n0 + 3)
            e("s_mov_b64 exec, -1")
        if b < 8: softmax_block(b)
        lg.wait([("v", n0), ("v", n0+1)])
        e("s_nop 0")
        mfma(a, OACC, VROT + 4*(n0 % 4), S, "0" if b == 8 else OACC)
        mfma(a, OACC, VROT + 4*((n0+1) % 4), S + 4, OACC)
        post_block(b, True)
    e(f"s_branch {lpv}")
    for b in range(7, -1, -1):
        a.label(skip_labels[b])
        post_block(b, False)
    a.label(lpv)
    e("s_waitcnt lgkmcnt(0)")
    e("s_nop 7"); e("s_nop 3")
    e(f"v_rcp_f32 v{v_max}, v{OACC+8}")
    e("s_nop 0")
    for r in range(8):
        e(f"v_mul_f32 v{OACC+r}, v{OACC+r}, v{v_max}")
    for q in range(4):
        e(f"v_cvt_pk_bf16_f32 v{248+q}, v{OACC+2*q}, v{OACC+2*q+1}")
    e(f"buffer_store_dwordx4 v[248:251], v{v_l16}, {srd(sWS)}, s{s_oa} offen sc1")
    l = a.newlabel("Lhok")
    e(f"s_cmp_lg_u32 s{s_ok}, 0")
    e(f"s_cbranch_scc1 {l}")
    hpoll(a)
    h_loads(a, list(range(22)) + ["g"], track=False)
    a.label(l)
    stamp(a)
s_oa = 94

def compute3(a, pieces, slot_of, cnt):
    e = a.e
    work = []
    for pc in pieces:
        for u in range(2):
            if pc <= 10: af = AFreg(2*pc + u); tag = f"H{2*pc+u}"; acc = ACB; first = (pc == 0 and u == 0)
            else: af = AOreg(2*(pc-11) + u); tag = f"O{2*(pc-11)+u}"; acc = ACA; first = (pc == 11 and u == 0)
            for ct in range(2):
                work.append((slot_of[pc], u, ct, af, tag, acc + 16*ct, first))
    lg = Lg(a)
    cur = {}
    def rd(w):
        sl, u, ct, af, tag, acc, first = work[w]
        vb = v_tr3b if ct else v_tr3
        off = sl*SLOT + u*8192
        if off + 1024 > 65535:
            r = v_t5 if ct else v_t4
            if cur.get(ct) != sl:
                e(f"v_add_u32 v{r}, {sl*SLOT}, v{vb}")
                cur[ct] = sl
            vb = r; off = u*8192
        b = BF3 + ((cnt[0] + w) % 8)*4
        e(f"ds_read_b64_tr_b16 {vr(b,2)}, v{vb} offset:{off}")
        e(f"ds_read_b64_tr_b16 {vr(b+2,2)}, v{vb} offset:{off + 1024}")
        lg.add(w); lg.add(w)
    D = 4
    for w in range(min(D, len(work))): rd(w)
    for w in range(len(work)):
        if w + D < len(work): rd(w + D)
        sl, u, ct, af, tag, acc, first = work[w]
        a.wait_vm(tag)
        lg.wait([w])
        b = BF3 + ((cnt[0] + w) % 8)*4
        mfma(a, acc, b, af, "0" if first else acc)
    cnt[0] += len(work)
    lg.drain()

S3J = env('GEN_S3J', 1)
def o_loads(a, track=True):
    for n in range(8):
        a.e(f"s_add_u32 s{s_tmp}, s{s_a3o}, {n*4096}")
        ins = f"buffer_load_dwordx4 {vr(AOreg(n),4)}, v{v_l16}, {srd(sWS)}, s{s_tmp} offen sc1"
        (a.vmem(ins, f"O{n}") if track else a.e(ins))

def o_check(a):
    e = a.e
    regs = [AOreg(n) + i for n in range(8) for i in range(4)]
    e(f"v_max3_u32 v{v_t2}, v{regs[0]}, v{regs[1]}, v{regs[2]}")
    i = 3
    while i < len(regs):
        if i + 1 < len(regs):
            e(f"v_max3_u32 v{v_t2}, v{regs[i]}, v{regs[i+1]}, v{v_t2}"); i += 2
        else:
            e(f"v_max_u32 v{v_t2}, v{regs[i]}, v{v_t2}"); i += 1
    e(f"v_cmp_eq_u32 vcc, -1, v{v_t2}")
    e("s_nop 3")
    e("s_cmp_eq_u64 vcc, 0")

def stage3(a, slot_of):
    e = a.e
    a.c("================ stage 3 ================")
    D = 4
    lg = Lg(a)
    fifo = []
    cur = {}
    V0 = CFG["atv"]
    def assign(pc, sl):
        slot_of[pc] = sl
        for f in w2_ops(a, pc, sl):
            f.tag = f"Q{pc}"; fifo.append(f)
    def o_verify():
        a.wait_vm("O7")
        lp = a.newlabel("Lop"); ld = a.newlabel("Lod")
        e(f"s_mov_b32 s{s_cnt}, 0")
        a.label(lp)
        o_check(a)
        e(f"s_cbranch_scc1 {ld}")
        o_loads(a, track=False)
        e("s_waitcnt vmcnt(0)")
        e(f"s_add_u32 s{s_cnt}, s{s_cnt}, 1")
        e(f"s_cmp_lt_u32 s{s_cnt}, 100000")
        e(f"s_cbranch_scc1 {lp}")
        a.label(ld)
        stamp(a)
    def o_ops():
        ops = []
        for n in range(8):
            def f(n=n):
                a.e(f"s_add_u32 s{s_tmp}, s{s_a3o}, {n*4096}")
                a.vmem(f"buffer_load_dwordx4 {vr(AOreg(n),4)}, v{v_l16}, {srd(sWS)}, s{s_tmp} offen sc1", f"O{n}")
            f.tag = f"O{n}"
            ops.append(f)
        return ops
    syncs = {
        S3J: (["Q4", "Q5", "Q6", "Q7"], lambda: (assign(8, V0), assign(9, V0 + 1))),
        4: ([], lambda: (assign(10, slot_of[0]), assign(11, slot_of[1]), assign(12, slot_of[2]))),
        6: ([], lambda: (assign(13, slot_of[3]), assign(14, slot_of[4]), fifo.extend(o_ops()))),
        8: (["Q8", "Q9"], None),
        10: (["Q10", "Q11", "Q12"], None),
        13: (["Q13", "Q14"], None),
    }
    items = []
    for pc in range(15):
        for u in range(2):
            for ct in range(2):
                items.append((pc, u, ct))
    def rd(w):
        pc, u, ct = items[w]
        if u == 0 and ct == 0 and pc in syncs:
            tags, act = syncs[pc]
            while any(f.tag in tags for f in fifo): fifo.pop(0)()
            a.wait_vm(tags)
            e("s_barrier")
            if STAMPS2: stamp(a)
            if act: act()
        sl = slot_of[pc]
        vb = v_tr3b if ct else v_tr3
        off = sl*SLOT + u*8192
        if off + 1024 > 65535:
            r = v_t5 if ct else v_t4
            if cur.get(ct) != sl:
                e(f"v_add_u32 v{r}, {sl*SLOT}, v{vb}")
                cur[ct] = sl
            vb = r; off = u*8192
        b = BF3 + (w % 8)*4
        e(f"ds_read_b64_tr_b16 {vr(b,2)}, v{vb} offset:{off}")
        e(f"ds_read_b64_tr_b16 {vr(b+2,2)}, v{vb} offset:{off + 1024}")
        lg.add(w); lg.add(w)
    done = set(["Q4", "Q5", "Q6", "Q7"])
    for w in range(D): rd(w)
    for w in range(len(items)):
        if w + D < len(items):
            rd(w + D)
        pc, u, ct = items[w]
        if pc <= 10: af = AFreg(2*pc + u); tag = f"H{2*pc+u}"; acc = ACB; first = (pc == 0 and u == 0)
        else: af = AOreg(2*(pc-11) + u); tag = f"O{2*(pc-11)+u}"; acc = ACA; first = (pc == 11 and u == 0)
        if pc == 11 and u == 0 and ct == 0:
            while fifo: fifo.pop(0)()
            o_verify()
        a.wait_vm(tag)
        lg.wait([w])
        b = BF3 + (w % 8)*4
        mfma(a, acc + 16*ct, b, af, "0" if first else acc + 16*ct)
        if fifo: fifo.pop(0)()
        if pc >= 11:
            k = w - 44
            if k == 0:
                a.wait_vm("G")
                e(f"v_sub_f32 v{v_c2}, 1.0, v{v_g2}")
                e(f"v_cvt_pk_bf16_f32 v{v_c2}, v{v_c2}, v{v_c2}")
                e(f"v_lshlrev_b32 v{v_c2}, 16, v{v_c2}")
                e(f"v_mov_b32 v{v_c2+1}, v{v_c2}")
                e(f"v_mov_b32 v{v_g2+1}, v{v_g2}")
            elif 2 <= k < 10:
                for q in (2*(k-2), 2*(k-2)+1):
                    e(f"v_pk_mul_f32 v[{ACB+2*q}:{ACB+2*q+1}], v[{ACB+2*q}:{ACB+2*q+1}], v[{v_c2}:{v_c2+1}]")
    lg.drain()
    stamp(a)
    PS = [slot_of[p] for p in (5, 6, 7, 8)]
    e(f"s_cmp_eq_u32 s{s_rg}, 1"); e(f"s_movk_i32 s{s_tmp}, {PS[0]}"); e(f"s_cselect_b32 s{s_tmp}, {PS[1]}, s{s_tmp}")
    e(f"s_cmp_eq_u32 s{s_rg}, 2"); e(f"s_cselect_b32 s{s_tmp}, {PS[2]}, s{s_tmp}")
    e(f"s_cmp_eq_u32 s{s_rg}, 3"); e(f"s_cselect_b32 s{s_tmp}, {PS[3]}, s{s_tmp}")
    e(f"s_lshl_b32 s{s_tmp}, s{s_tmp}, 14")
    e(f"s_lshl_b32 s{s_tmp2}, s{s_cgp}, 13")
    e(f"s_add_u32 s{s_tmp}, s{s_tmp}, s{s_tmp2}")
    e(f"v_and_b32 v{v_t0}, 31, v{v_lane}")
    e(f"v_and_b32 v{v_t1}, 7, v{v_lane}")
    e(f"v_xor_b32 v{v_t1}, v{v_t1}, v{v_hi}")
    e(f"v_lshlrev_b32 v{v_t1}, 4, v{v_t1}")
    e(f"v_lshl_add_u32 v{v_t0}, v{v_t0}, 8, v{v_t1}")
    e(f"v_add_u32 v{v_t0}, s{s_tmp}, v{v_t0}")
    e("s_nop 4")
    for ct in range(2):
        for g4 in range(4):
            b0 = 16*ct + 4*g4
            for q in range(2):
                e(f"v_pk_fma_f32 v[{ACB+b0+2*q}:{ACB+b0+2*q+1}], v[{ACA+b0+2*q}:{ACA+b0+2*q+1}], v[{v_g2}:{v_g2+1}], v[{ACB+b0+2*q}:{ACB+b0+2*q+1}]")
            r = v_t2 + (g4 & 1)
            e(f"v_xor_b32 v{r}, {g4*32}, v{v_t0}")
            e(f"ds_write_b128 v{r}, {vr(ACB + b0, 4)} offset:{ct*128}")
    e(f"v_lshrrev_b32 v{v_t0}, 3, v0")
    e(f"v_and_b32 v{v_t1}, 7, v0")
    e(f"v_and_b32 v{v_t2}, 7, v{v_t0}")
    e(f"v_lshlrev_b32 v{v_t3}, 1, v{v_t1}")
    e(f"v_xor_b32 v{v_t2}, v{v_t2}, v{v_t3}")
    e(f"v_lshlrev_b32 v{v_t2}, 4, v{v_t2}")
    e(f"v_lshl_add_u32 v{v_t2}, v{v_t0}, 8, v{v_t2}")
    e(f"v_xor_b32 v{v_t3}, 16, v{v_t2}")
    e(f"v_add_u32 v{v_t4}, 0x10000, v{v_t2}")
    e(f"v_add_u32 v{v_t5}, 0x10000, v{v_t3}")
    e(f"v_add_u32 v{v_trn}, 0x20000, v{v_t2}")
    e(f"v_add_u32 v{v_trw}, 0x20000, v{v_t3}")
    e(f"v_lshlrev_b32 v{v_t0}, 10, v{v_t0}")
    e(f"v_lshl_add_u32 v{v_t0}, v{v_t1}, 4, v{v_t0}")
    e(f"s_lshl_b32 s{s_tmp}, s{s_rb3}, 16")
    e(f"s_lshl_b32 s{s_tmp2}, s{s_cb3}, 7")
    e(f"s_add_u32 s{s_tmp}, s{s_tmp}, s{s_tmp2}")
    e("s_waitcnt lgkmcnt(0)")
    e("s_barrier")
    for kq in range(4):
        off = PS[kq]*SLOT
        ra, rb_ = ((v_t2, v_t3), (v_t4, v_t5), (v_trn, v_trw))[off >> 16]
        e(f"ds_read_b128 {vr(64 + 8*kq, 4)}, v{ra} offset:{off & 0xffff}")
        e(f"ds_read_b128 {vr(68 + 8*kq, 4)}, v{rb_} offset:{off & 0xffff}")
    e("s_waitcnt lgkmcnt(4)")
    for q in range(4):
        e(f"v_pk_add_f32 v[{64+2*q}:{65+2*q}], v[{64+2*q}:{65+2*q}], v[{72+2*q}:{73+2*q}]")
    e("s_waitcnt lgkmcnt(0)")
    for q in range(4):
        e(f"v_pk_add_f32 v[{80+2*q}:{81+2*q}], v[{80+2*q}:{81+2*q}], v[{88+2*q}:{89+2*q}]")
    for q in range(4):
        e(f"v_pk_add_f32 v[{64+2*q}:{65+2*q}], v[{64+2*q}:{65+2*q}], v[{80+2*q}:{81+2*q}]")
    for q in range(4):
        e(f"v_cvt_pk_bf16_f32 v{64+q}, v{64+2*q}, v{65+2*q}")
    e(f"buffer_store_dwordx4 v[64:67], v{v_t0}, {srd(sOUT)}, s{s_tmp} offen {os.environ.get('GEN_OST','sc1').replace('_',' ')}")
    stamp(a, final=True)

def common_setup(a):
    e = a.e
    l = a.newlabel("Lcas")
    e(f"s_or_b32 s{s_nonce}, s{s_nonce}, 1")
    e(f"s_or_b32 s{s_tmp}, s{s_wv}, s2")
    e(f"s_cmp_lg_u32 s{s_tmp}, 0")
    e(f"s_cbranch_scc1 {l}")
    e(f"v_mov_b32 v{v_non}, s{s_nonce}")
    e(f"v_mov_b32 v{v_non+1}, s{s_nonce+1}")
    e(f"v_mov_b32 v{v_t4}, 0")
    e(f"s_mov_b64 s[{s_exec}:{s_exec+1}], exec")
    e("s_mov_b64 exec, 1")
    e(f"buffer_store_dwordx2 {vr(v_non,2)}, v{v_t4}, {srd(sDBG)}, 0 offen sc1")
    e(f"s_mov_b64 exec, s[{s_exec}:{s_exec+1}]")
    a.label(l)
    e(f"s_lshl_b32 s{s_tmp}, s{s_rb}, 2")
    e(f"s_add_u32 s{s_tmp}, s{s_tmp}, s{s_rg}")
    e(f"s_lshl_b32 s{s_oa}, s{s_tmp}, 15")
    e(f"s_lshl_b32 s{s_tmp2}, s{s_cg}, 1")
    e(f"s_add_u32 s{s_tmp2}, s{s_tmp2}, s{s_cgp}")
    e(f"s_lshl_b32 s{s_tmp2}, s{s_tmp2}, 10")
    e(f"s_add_u32 s{s_oa}, s{s_oa}, s{s_tmp2}")
    e(f"s_add_u32 s{s_oa}, s{s_oa}, {OF}")
    for i in range(4): e(f"v_mov_b32 v{ACC+i}, -1")
    a.vmem(f"buffer_store_dwordx4 {vr(ACC,4)}, v{v_l16}, {srd(sWS)}, s{s_oa} offen sc1", "SENT")
    e(f"v_and_b32 v{v_t0}, 31, v{v_lane}")
    e(f"v_lshrrev_b32 v{v_hi}, 5, v{v_lane}")
    e(f"v_and_b32 v{v_t1}, 15, v{v_lane}")
    e(f"v_xor_b32 v{v_t1}, v{v_t1}, v{v_hi}")
    e(f"v_lshlrev_b32 v{v_t1}, 4, v{v_t1}")
    e(f"v_lshl_add_u32 v{v_xrd}, v{v_t0}, 8, v{v_t1}")
    e(f"s_lshl_b32 s{s_tmp}, s{s_rg}, 13")
    e(f"v_add_u32 v{v_xrd}, s{s_tmp}, v{v_xrd}")
    e(f"v_and_b32 v{v_t0}, 15, v{v_lane}")
    e(f"v_lshrrev_b32 v{v_t1}, 2, v{v_t0}")
    e(f"v_bfe_u32 v{v_t2}, v{v_lane}, 4, 1")
    e(f"v_bfe_u32 v{v_t3}, v{v_lane}, 1, 1")
    e(f"v_lshl_add_u32 v{v_t2}, v{v_t2}, 1, v{v_t3}")
    e(f"v_and_b32 v{v_t3}, 1, v{v_lane}")
    e(f"v_lshlrev_b32 v{v_t3}, 3, v{v_t3}")
    e(f"v_lshl_add_u32 v{v_t2}, v{v_t2}, 4, v{v_t3}")
    e(f"v_lshrrev_b32 v{v_t3}, 1, v{v_t1}")
    e(f"v_xor_b32 v{v_t4}, s{s_cgp}, v{v_t3}")
    e(f"v_lshl_add_u32 v{v_t4}, v{v_t4}, 6, v{v_t2}")
    e(f"v_lshl_add_u32 v{v_t5}, v{v_hi}, 3, v{v_t1}")
    e(f"v_lshl_add_u32 v{v_trn}, v{v_t5}, 7, v{v_t4}")
    e(f"s_cmp_eq_u32 s{s_cgp}, 0")
    e(f"s_movk_i32 s{s_tmp}, 192")
    e(f"s_cselect_b32 s{s_tmp}, 64, s{s_tmp}")
    e(f"s_lshl_b32 s{s_k16}, s{s_tmp}, 4")
    e(f"s_lshl_b32 s{s_tmp2}, s{s_cgp}, 12")
    e(f"v_mad_u32_u24 v{v_trw}, v{v_t5}, s{s_tmp}, v{v_t2}")
    e(f"v_add_u32 v{v_trw}, s{s_tmp2}, v{v_trw}")
    e(f"s_lshl_b32 s{s_tmp}, s{s_tmp}, 2")
    e(f"v_add_u32 v{v_omg2}, s{s_tmp}, v{v_trw}")
    e(f"s_movk_i32 s{s_tmp}, 192")
    e(f"v_mad_u32_u24 v{v_trw2}, v{v_t5}, s{s_tmp}, v{v_t2}")
    e(f"s_lshl_b32 s{s_tmp2}, s{s_cgp}, 6")
    e(f"s_add_u32 s{s_tmp2}, s{s_tmp2}, {4096 + 64}")
    e(f"v_add_u32 v{v_trw2}, s{s_tmp2}, v{v_trw2}")
    e(f"v_lshl_add_u32 v{v_t4}, v{v_t3}, 6, v{v_t2}")
    e(f"v_lshl_add_u32 v{v_t5}, v{v_hi}, 2, v{v_t1}")
    e(f"v_lshl_add_u32 v{v_tr3}, v{v_t5}, 7, v{v_t4}")
    e(f"s_lshl_b32 s{s_tmp}, s{s_rg}, 11")
    e(f"v_add_u32 v{v_tr3}, s{s_tmp}, v{v_tr3}")
    e(f"v_xor_b32 v{v_tr3b}, 64, v{v_tr3}")

def wide_setup(a):
    e = a.e
    lq = a.newlabel("Lwq"); lj = a.newlabel("Lwj")
    e(f"s_cmp_lt_u32 s{s_wv}, 2")
    e(f"s_cbranch_scc1 {lq}")
    e(f"s_mov_b32 s{sPW}, s{sW1}"); e(f"s_mov_b32 s{sPW+1}, s{sW1+1}"); e(f"s_mov_b32 s{sPW+2}, {512*1376*2}"); e(f"s_mov_b32 s{sPW+3}, 0x00020000")
    e(f"s_sub_u32 s{s_tmp}, s{s_wv}, 2")
    e(f"s_lshl_b32 s{s_tmp}, s{s_tmp}, 7")
    e(f"s_movk_i32 s{s_tmp3}, 2752")
    e(f"s_movk_i32 s{s_tmp4}, 5462")
    for t in range(2):
        e(f"v_add_u32 v{v_t0}, s{s_tmp}, v{v_lane}")
        if t: e(f"v_add_u32 v{v_t0}, 64, v{v_t0}")
        e(f"v_mul_u32_u24 v{v_t1}, s{s_tmp4}, v{v_t0}")
        e(f"v_lshrrev_b32 v{v_t1}, 16, v{v_t1}")
        e(f"v_mul_u32_u24 v{v_t2}, 12, v{v_t1}")
        e(f"v_sub_u32 v{v_t0}, v{v_t0}, v{v_t2}")
        e(f"v_lshlrev_b32 v{v_t0}, 4, v{v_t0}")
        e(f"v_mad_u32_u24 v{v_wd0+t}, v{v_t1}, s{s_tmp3}, v{v_t0}")
    e(f"s_mul_i32 s{s_wbase}, s{s_cg}, 192")
    e(f"s_cmp_eq_u32 s{s_cg}, 15")
    e(f"s_cselect_b32 s{s_wbase}, {OOB}, s{s_wbase}")
    e(f"s_mov_b32 s{s_pstep}, {64*2752}")
    e(f"s_branch {lj}")
    a.label(lq)
    e(f"s_mov_b32 s{sPW}, s{sWQ}"); e(f"s_mov_b32 s{sPW+1}, s{sWQ+1}"); e(f"s_mov_b32 s{sPW+2}, {512*1536*2}"); e(f"s_mov_b32 s{sPW+3}, 0x00020000")
    e(f"s_lshl_b32 s{s_tmp}, s{s_wv}, 5")
    e(f"s_movk_i32 s{s_tmp3}, 3072")
    e(f"v_lshrrev_b32 v{v_t1}, 2, v{v_lane}")
    e(f"v_add_u32 v{v_t1}, s{s_tmp}, v{v_t1}")
    e(f"v_and_b32 v{v_t0}, 3, v{v_lane}")
    e(f"v_lshlrev_b32 v{v_t0}, 4, v{v_t0}")
    e(f"v_mad_u32_u24 v{v_wd0}, v{v_t1}, s{s_tmp3}, v{v_t0}")
    e(f"v_add_u32 v{v_wd1}, {16*3072}, v{v_wd0}")
    e(f"s_lshl_b32 s{s_wbase}, s{s_cg}, 6")
    e(f"s_mov_b32 s{s_pstep}, {64*3072}")
    a.label(lj)

def gen():
    a = Asm()
    e = a.e
    e("s_cmp_ge_u32 s2, 256")
    e("s_cbranch_scc1 L_exit")
    stamp(a)
    e("s_load_dwordx4 s[8:11], s[0:1], 0")
    e("s_load_dwordx2 s[24:25], s[0:1], 16")
    e("s_load_dwordx4 s[16:19], s[0:1], 32")
    e("s_load_dwordx4 s[36:39], s[0:1], 48")
    e("s_load_dwordx4 s[40:43], s[0:1], 64")
    e(f"s_memrealtime s[{s_nonce}:{s_nonce+1}]")
    e(f"v_and_b32 v{v_lane}, 63, v0")
    e(f"v_lshrrev_b32 v{v_t0}, 6, v0")
    e(f"v_lshlrev_b32 v{v_l16}, 4, v{v_lane}")
    e(f"v_readfirstlane_b32 s{s_wv}, v{v_t0}")
    e(f"s_and_b32 s{s_tmp}, s2, 7")
    e(f"s_lshr_b32 s{s_tmp2}, s2, 3")
    e(f"s_and_b32 s{s_rb}, s{s_tmp}, 1")
    e(f"s_lshl_b32 s{s_rb}, s{s_rb}, 3")
    e(f"s_and_b32 s{s_tmp3}, s{s_tmp2}, 7")
    e(f"s_add_u32 s{s_rb}, s{s_rb}, s{s_tmp3}")
    e(f"s_lshr_b32 s{s_cg}, s{s_tmp}, 1")
    e(f"s_lshl_b32 s{s_cg}, s{s_cg}, 2")
    e(f"s_lshr_b32 s{s_tmp3}, s{s_tmp2}, 3")
    e(f"s_add_u32 s{s_cg}, s{s_cg}, s{s_tmp3}")
    e(f"s_lshr_b32 s{s_p}, s{s_cg}, 1")
    e(f"s_and_b32 s{s_t}, s{s_cg}, 1")
    e(f"s_lshl_b32 s{s_rb3}, s{s_tmp}, 2")
    e(f"s_and_b32 s{s_tmp3}, s{s_tmp2}, 3")
    e(f"s_add_u32 s{s_rb3}, s{s_rb3}, s{s_tmp3}")
    e(f"s_lshr_b32 s{s_cb3}, s{s_tmp2}, 2")
    e(f"s_and_b32 s{s_rg}, s{s_wv}, 3")
    e(f"s_lshr_b32 s{s_cgp}, s{s_wv}, 2")
    e(f"s_lshl_b32 s{s_ldsw}, s{s_wv}, 11")
    e(f"s_lshl_b32 s{s_xlds}, s{s_wv}, 12")
    e(f"s_lshl_b32 s{s_xbase}, s{s_rb}, 17")
    e(f"s_lshl_b32 s{s_tmp3}, s{s_wv}, 14")
    e(f"s_add_u32 s{s_xbase}, s{s_xbase}, s{s_tmp3}")
    if STAMPS:
        e(f"s_lshl_b32 s{s_tsb}, s2, 3")
        e(f"s_add_u32 s{s_tsb}, s{s_tsb}, s{s_wv}")
        e(f"s_lshl_b32 s{s_tsb}, s{s_tsb}, 7")
        e(f"s_add_u32 s{s_tsb}, s{s_tsb}, {TS}")
    e(f"v_lshrrev_b32 v{v_t0}, 4, v{v_lane}")
    e(f"v_and_b32 v{v_t1}, 15, v{v_lane}")
    e(f"v_xor_b32 v{v_t1}, v{v_t1}, v{v_t0}")
    e(f"v_lshlrev_b32 v{v_t0}, 10, v{v_t0}")
    for t in range(4):
        e(f"v_xor_b32 v{v_t2}, {4*t}, v{v_t1}")
        e(f"v_lshl_add_u32 v{v_xo+t}, v{v_t2}, 4, v{v_t0}")
    e(f"v_lshrrev_b32 v{v_t0}, 3, v{v_lane}")
    e(f"v_and_b32 v{v_t1}, 7, v{v_lane}")
    e(f"v_lshrrev_b32 v{v_t2}, 2, v{v_lane}")
    e(f"v_and_b32 v{v_t2}, 4, v{v_t2}")
    e(f"v_xor_b32 v{v_t1}, v{v_t1}, v{v_t2}")
    e(f"v_lshlrev_b32 v{v_t1}, 4, v{v_t1}")
    e(f"s_movk_i32 s{s_tmp3}, 3072")
    e(f"v_mad_u32_u24 v{v_wq_n}, v{v_t0}, s{s_tmp3}, v{v_t1}")
    e(f"v_lshl_add_u32 v{v_w2_n}, v{v_t0}, 10, v{v_t1}")
    e(f"s_mul_i32 s{s_naroff}, s{s_wv}, {16*3072}")
    e(f"s_lshl_b32 s{s_tmp3}, s{s_p}, 7")
    e(f"s_add_u32 s{s_naroff}, s{s_naroff}, s{s_tmp3}")
    e(f"s_lshl_b32 s{s_tmp3}, s{s_t}, 10")
    e(f"s_add_u32 s{s_naroff}, s{s_naroff}, s{s_tmp3}")
    e(f"s_add_u32 s{s_naroff}, s{s_naroff}, 1024")
    e(f"s_lshl_b32 s{s_tmp3}, s{s_p}, 1")
    e(f"s_add_u32 s{s_tmp3}, s{s_tmp3}, s{s_cgp}")
    e(f"s_lshl_b32 s{s_tmp3}, s{s_tmp3}, 6")
    e(f"s_lshl_b32 s{s_tmp4}, s{s_rb}, 2")
    e(f"s_add_u32 s{s_tmp4}, s{s_tmp4}, s{s_rg}")
    e(f"s_add_u32 s{s_tmp3}, s{s_tmp3}, s{s_tmp4}")
    e(f"s_lshl_b32 s{s_st0}, s{s_tmp3}, 11")
    e(f"s_lshl_b32 s{s_tmp3}, s{s_t}, 21")
    e(f"s_add_u32 s{s_st0}, s{s_st0}, s{s_tmp3}")
    e(f"s_add_u32 s{s_st0}, s{s_st0}, {KF}")
    e(f"s_mul_i32 s{s_tmp4}, s{s_tmp4}, {HROW}")
    e(f"s_add_u32 s{s_tmp4}, s{s_tmp4}, {HF}")
    e(f"s_mul_i32 s{s_tmp3}, s{s_cg}, 3")
    e(f"s_lshl_b32 s{s_st1}, s{s_tmp3}, 11")
    e(f"s_add_u32 s{s_st1}, s{s_st1}, s{s_tmp4}")
    e(f"s_cmp_ge_u32 s{s_tmp3}, 43")
    e(f"s_cselect_b32 s{s_st1}, {OOB}, s{s_st1}")
    e(f"s_cmp_eq_u32 s{s_cgp}, 0")
    e(f"s_cselect_b32 s{s_st1}, {OOB}, s{s_st1}")
    e(f"s_add_u32 s{s_tmp3}, s{s_tmp3}, s{s_cgp}")
    e(f"s_add_u32 s{s_tmp3}, s{s_tmp3}, 1")
    e(f"s_lshl_b32 s{s_st2}, s{s_tmp3}, 11")
    e(f"s_add_u32 s{s_st2}, s{s_st2}, s{s_tmp4}")
    e(f"s_cmp_ge_u32 s{s_tmp3}, 43")
    e(f"s_cselect_b32 s{s_st2}, {OOB}, s{s_st2}")
    e(f"s_lshl_b32 s{s_w2off}, s{s_wv}, 14")
    e(f"s_lshl_b32 s{s_tmp3}, s{s_cb3}, 7")
    e(f"s_add_u32 s{s_w2off}, s{s_w2off}, s{s_tmp3}")
    e("s_waitcnt lgkmcnt(0)")
    e("s_mov_b32 s12, s10"); e("s_mov_b32 s13, s11"); e(f"s_mov_b32 s14, {512*1536*2}"); e("s_mov_b32 s15, 0x00020000")
    e(f"s_mov_b32 s10, {2048*512*2}"); e("s_mov_b32 s11, 0x00020000")
    e("s_mov_b32 s32, s38"); e("s_mov_b32 s33, s39"); e(f"s_mov_b32 s34, {2048*512*2}"); e("s_mov_b32 s35, 0x00020000")
    e("s_mov_b32 s38, 1024"); e("s_mov_b32 s39, 0x00020000")
    e(f"s_mov_b32 s{s_ldsww}, 0")
    e(f"s_mov_b32 s{s_gw}, 0")
    lg_ = a.newlabel("Lgs")
    e(f"s_cmp_lg_u32 s{s_cg}, 15")
    e(f"s_cbranch_scc1 {lg_}")
    e(f"s_cmp_lt_u32 s{s_wv}, 2")
    e(f"s_cbranch_scc1 {lg_}")
    e(f"s_mov_b32 s{s_ldsww}, 0x30000")
    e(f"s_cmp_lg_u32 s{s_wv}, 2")
    e(f"s_cbranch_scc1 {lg_}")
    e(f"s_mov_b32 s{s_gw}, 1")
    e(f"v_lshlrev_b32 v{v_t0}, 1, v{v_lane}")
    for j in range(8):
        e(f"buffer_load_ushort v{GREG+j}, v{v_t0}, {srd(sGW)}, 0 offen offset:{j*128}")
    e(f"s_movk_i32 s{s_tmp3}, 192")
    e(f"v_mul_u32_u24 v{v_g2}, s{s_tmp3}, v{v_lane}")
    a.label(lg_)
    e("s_mov_b32 s20, s18"); e("s_mov_b32 s21, s19"); e(f"s_mov_b32 s22, {1376*512*2}"); e("s_mov_b32 s23, 0x00020000")
    e(f"s_mov_b32 s18, {512*1376*2}"); e("s_mov_b32 s19, 0x00020000")
    if TOUCH in (2, 9): touch(a, (sX, sWQ, sW1), 224)
    if TOUCH == 4: touch_l2(a)
    issue_x_quarter(a, 0)
    issue_piece(a, 0, CFG['init'][0])
    if TOUCH == 3: touch(a, (sX, sWQ, sW1), 224)
    if TOUCH == 5: touch_l2(a)
    e(f"s_mov_b32 s26, {512*512*2}"); e("s_mov_b32 s27, 0x00020000")
    e("s_mov_b32 s28, s42"); e("s_mov_b32 s29, s43"); e(f"s_mov_b32 s30, {WS_BYTES}"); e("s_mov_b32 s31, 0x00020000")
    e("s_mov_b32 s42, 256"); e("s_mov_b32 s43, 0x00020000")
    if env("GEN_TLB", 2): tlb_warm(a, env("GEN_TLB", 2))
    if env("GEN_CPF", 0):
        e(f"s_getpc_b64 s[{s_m2}:{s_m2+1}]")
        a.label("L_pc")
        e(f"s_lshr_b32 s{s_tmp}, s2, 3")
        e(f"s_lshl_b32 s{s_tmp}, s{s_tmp}, 3")
        e(f"s_add_u32 s{s_tmp}, s{s_tmp}, s{s_wv}")
        e(f"s_lshl_b32 s{s_tmp}, s{s_tmp}, 6")
        e(f"s_load_dword s{s_cnt}, s[{s_m2}:{s_m2+1}], s{s_tmp}")
        e(f"s_lshr_b32 s{s_tmp}, s{s_tmp}, 2")
        e(f"s_and_b32 s{s_tmp}, s{s_tmp}, 0xfc0")
        e(f"s_add_u32 s{s_tmp}, s{s_tmp}, 16384")
        e(f"s_min_u32 s{s_tmp}, s{s_tmp}, L_exit-L_pc")
        e(f"s_load_dword s{s_cnt}, s[{s_m2}:{s_m2+1}], s{s_tmp}")
    if TOUCH == 9: touch(a, (sW2, sWO), 240)
    if TOUCH == 7: touch_scalar(a, "xq12o")
    if TOUCH == 8: touch_scalar(a, "xq1")
    stamp(a)
    if env("GEN_ST3",0): stamp(a)
    common_setup(a)
    wide_setup(a)
    if env("GEN_ST3",0): stamp(a)
    kv_flag_setup(a)
    lm_ = a.newlabel("Lmk")
    e(f"s_cmp_lg_u32 s{s_gw}, 0")
    e(f"s_cbranch_scc1 {lm_}")
    build_maskd(a)
    a.label(lm_)
    if env("GEN_ST3",0): stamp(a)
    e("s_barrier")
    issue_x_quarter(a, 1)
    issue_piece(a, 1, CFG['init'][1])
    e(f"s_cmp_lg_u32 s{s_t}, 0")
    e("s_cbranch_scc1 L_s1v")
    w2_slot = run_stage1(a)
    stamp(a)
    attention(a, w2_slot)
    stage3(a, w2_slot)
    a.label("L_exit")
    a.e("s_endpgm")
    return a

def touch(a, srds, T):
    e = a.e
    e(f"s_lshl_b32 s{s_tmp}, s2, 3")
    e(f"s_add_u32 s{s_tmp}, s{s_tmp}, s{s_wv}")
    e(f"s_lshl_b32 s{s_tmp}, s{s_tmp}, 10")
    for i, sr in enumerate(srds):
        a.vmem(f"buffer_load_dwordx4 {vr(T+4*i,4)}, v{v_l16}, {srd(sr)}, s{s_tmp} offen", "TCH")

def touch_l2(a):
    e = a.e
    T = 224
    lx = a.newlabel("Ltx"); lk = a.newlabel("Ltk"); lq = a.newlabel("Ltq"); lj = a.newlabel("Ltj")
    e(f"s_lshr_b32 s{s_tmp}, s2, 3")
    e(f"s_and_b32 s{s_tmp2}, s2, 7")
    e(f"s_lshr_b32 s{s_tmp3}, s{s_tmp2}, 1")
    e(f"s_cmp_lt_u32 s{s_wv}, 4")
    e(f"s_cbranch_scc1 {lx}")
    e(f"s_cmp_eq_u32 s{s_wv}, 4")
    e(f"s_cbranch_scc1 {lk}")
    e(f"s_cmp_eq_u32 s{s_wv}, 5")
    e(f"s_cbranch_scc1 {lq}")
    e(f"s_sub_u32 s{s_tmp4}, s{s_wv}, 6")
    e(f"s_lshl_b32 s{s_tmp4}, s{s_tmp4}, 3")
    e(f"s_lshl_b32 s{s_tmp}, s{s_tmp}, 4")
    e(f"s_add_u32 s{s_tmp}, s{s_tmp}, s{s_tmp4}")
    e(f"s_mul_i32 s{s_tmp}, s{s_tmp}, 2752")
    e(f"s_mul_i32 s{s_tmp3}, s{s_tmp3}, 768")
    e(f"s_add_u32 s{s_tmp}, s{s_tmp}, s{s_tmp3}")
    e(f"v_lshrrev_b32 v{v_t0}, 3, v{v_lane}")
    e(f"s_movk_i32 s{s_tmp4}, 2752")
    e(f"v_mul_u32_u24 v{v_t0}, s{s_tmp4}, v{v_t0}")
    e(f"v_and_b32 v{v_t1}, 7, v{v_lane}")
    e(f"v_min_u32 v{v_t1}, 6, v{v_t1}")
    e(f"v_lshl_add_u32 v{v_t0}, v{v_t1}, 7, v{v_t0}")
    e(f"buffer_load_dword v{T}, v{v_t0}, {srd(sW1)}, s{s_tmp} offen")
    e(f"s_branch {lj}")
    a.label(lx)
    e(f"s_and_b32 s{s_tmp2}, s{s_tmp2}, 1")
    e(f"s_lshl_b32 s{s_tmp2}, s{s_tmp2}, 20")
    e(f"s_lshl_b32 s{s_tmp}, s{s_tmp}, 15")
    e(f"s_add_u32 s{s_tmp}, s{s_tmp}, s{s_tmp2}")
    e(f"s_lshl_b32 s{s_tmp2}, s{s_wv}, 8")
    e(f"s_add_u32 s{s_tmp}, s{s_tmp}, s{s_tmp2}")
    e(f"v_lshrrev_b32 v{v_t0}, 1, v{v_lane}")
    e(f"v_lshlrev_b32 v{v_t0}, 10, v{v_t0}")
    e(f"v_and_b32 v{v_t1}, 1, v{v_lane}")
    e(f"v_lshl_add_u32 v{v_t0}, v{v_t1}, 7, v{v_t0}")
    e(f"buffer_load_dword v{T}, v{v_t0}, {srd(sX)}, s{s_tmp} offen")
    e(f"s_branch {lj}")
    a.label(lk)
    e(f"s_mul_i32 s{s_tmp}, s{s_tmp}, {16*3072}")
    e(f"s_lshl_b32 s{s_tmp3}, s{s_tmp3}, 8")
    e(f"s_add_u32 s{s_tmp}, s{s_tmp}, s{s_tmp3}")
    e(f"s_add_u32 s{s_tmp}, s{s_tmp}, 1024")
    e(f"v_lshrrev_b32 v{v_t0}, 2, v{v_lane}")
    e(f"s_movk_i32 s{s_tmp4}, 3072")
    e(f"v_mul_u32_u24 v{v_t0}, s{s_tmp4}, v{v_t0}")
    e(f"v_and_b32 v{v_t1}, 1, v{v_lane}")
    e(f"v_lshl_add_u32 v{v_t0}, v{v_t1}, 10, v{v_t0}")
    e(f"v_bfe_u32 v{v_t1}, v{v_lane}, 1, 1")
    e(f"v_lshl_add_u32 v{v_t0}, v{v_t1}, 7, v{v_t0}")
    e(f"buffer_load_dword v{T}, v{v_t0}, {srd(sWQ)}, s{s_tmp} offen")
    e(f"s_branch {lj}")
    a.label(lq)
    e(f"s_mul_i32 s{s_tmp}, s{s_tmp}, {16*3072}")
    e(f"s_lshl_b32 s{s_tmp3}, s{s_tmp3}, 8")
    e(f"s_add_u32 s{s_tmp}, s{s_tmp}, s{s_tmp3}")
    e(f"v_bfe_u32 v{v_t0}, v{v_lane}, 1, 4")
    e(f"s_movk_i32 s{s_tmp4}, 3072")
    e(f"v_mul_u32_u24 v{v_t0}, s{s_tmp4}, v{v_t0}")
    e(f"v_and_b32 v{v_t1}, 1, v{v_lane}")
    e(f"v_lshl_add_u32 v{v_t0}, v{v_t1}, 7, v{v_t0}")
    e(f"buffer_load_dword v{T}, v{v_t0}, {srd(sWQ)}, s{s_tmp} offen")
    a.label(lj)
    a.vm.append("TCH")

def touch_l2_s3(a, part, nparts):
    e = a.e
    T = v_xo + 3
    l1 = a.newlabel("Lt3"); lj = a.newlabel("Lt3j")
    n = 64 // nparts
    mask = ((1 << n) - 1) << (n * part)
    e(f"s_lshr_b32 s{s_tmp}, s2, 3")
    e(f"s_lshl_b32 s{s_tmp}, s{s_tmp}, 3")
    e(f"s_add_u32 s{s_tmp}, s{s_tmp}, s{s_wv}")
    e(f"s_mul_i32 s{s_tmp}, s{s_tmp}, {n*128}")
    e(f"s_add_u32 s{s_tmp}, s{s_tmp}, {part * 256 * n * 128 - part*n*128}")
    e(f"v_lshlrev_b32 v{v_t2}, 7, v{v_lane}")
    e(f"s_mov_b32 exec_lo, 0x{mask & 0xffffffff:x}")
    e(f"s_mov_b32 exec_hi, 0x{mask >> 32:x}")
    lim = 1376*1024
    if (part + 1) * 256 * n * 128 <= 0x180000:
        e(f"buffer_load_dword v{T}, v{v_t2}, {srd(sW2)}, s{s_tmp} offen")
    else:
        e(f"s_sub_u32 s{s_tmp}, s{s_tmp}, 0x180000")
        e(f"buffer_load_dword v{T}, v{v_t2}, {srd(sWO)}, s{s_tmp} offen")
    e("s_mov_b64 exec, -1")
    a.vm.append("TCH")

def touch_scalar(a, which):
    e = a.e
    e(f"s_lshl_b32 s{s_tmp}, s2, 3")
    e(f"s_add_u32 s{s_tmp}, s{s_tmp}, s{s_wv}")
    tab = {"x": (sX, 8), "q": (sWQ, 6), "1": (sW1, 6), "2": (sW2, 6), "o": (sWO, 2)}
    for w in which:
        sr, n = tab[w]
        e(f"s_mul_i32 s{s_tmp2}, s{s_tmp}, {n*128}")
        for i in range(n):
            e(f"s_buffer_load_dword s{s_cnt}, {srd(sr)}, s{s_tmp2} offset:{i*128}")

def tlb_warm(a, mode):
    e = a.e
    e(f"s_lshl_b32 s{s_tmp}, s{s_wv}, 21")
    e(f"s_buffer_load_dword s{s_cnt}, {srd(sWS)}, s{s_tmp}")
    e(f"s_add_u32 s{s_tmp}, s{s_tmp}, 0x100000")
    e(f"s_buffer_load_dword s{s_cnt}, {srd(sWS)}, s{s_tmp}")
    e(f"s_lshl_b32 s{s_tmp}, s{s_wv}, 18")
    e(f"s_buffer_load_dword s{s_cnt}, {srd(sOUT)}, s{s_tmp}")
    if mode >= 2:
        e(f"s_buffer_load_dword s{s_cnt}, {srd(sW2)}, s{s_tmp}")
        e(f"s_buffer_load_dword s{s_cnt}, {srd(sWO)}, s{s_tmp}")
        e(f"s_buffer_load_dword s{s_cnt}, {srd(sDBG)}, 128")

def tlb_warm_v(a):
    e = a.e
    l = a.newlabel("Ltlb")
    e(f"s_cmp_lg_u32 s{s_wv}, 7")
    e(f"s_cbranch_scc1 {l}")
    e(f"v_lshlrev_b32 v{v_t2}, 20, v{v_lane}")
    e("s_mov_b64 exec, 0xffff")
    e(f"buffer_load_dword v{v_xo}, v{v_t2}, {srd(sWS)}, 0 offen")
    e("s_mov_b64 exec, 0xff")
    e(f"v_lshlrev_b32 v{v_t2}, 18, v{v_lane}")
    e(f"buffer_load_dword v{v_xo+1}, v{v_t2}, {srd(sOUT)}, 0 offen")
    e("s_mov_b64 exec, -1")
    a.label(l)

HEADER = open(os.path.join(os.path.dirname(os.path.abspath(__file__)), "..", "cdna_kernels", NAME + ".s.ref")).read().split("; Override launch")[0]

def emit_file(path):
    a = gen()
    s = HEADER
    s += "; @launch grid=(256,1,1) block=(512,1,1) lds=163840\n"
    s += f""".amdgcn_target "amdgcn-amd-amdhsa--gfx950"
.text
.globl {NAME}_kernel
.p2align 8
.type {NAME}_kernel,@function
{NAME}_kernel:
"""
    s += "\n".join(a.lines) + "\n"
    s += f""".section .rodata,"a"
.p2align 6
.amdhsa_kernel {NAME}_kernel
  .amdhsa_next_free_vgpr 256
  .amdhsa_next_free_sgpr {NSGPR}
  .amdhsa_accum_offset 256
  .amdhsa_group_segment_fixed_size 0
  .amdhsa_kernarg_size 80
  .amdhsa_user_sgpr_count 2
  .amdhsa_user_sgpr_kernarg_segment_ptr 1
  .amdhsa_system_sgpr_workgroup_id_x 1
.end_amdhsa_kernel
"""
    open(path, "w").write(s)

if __name__ == "__main__":
    out = sys.argv[1] if len(sys.argv) > 1 else os.path.join(os.path.dirname(os.path.abspath(__file__)), "..", "cdna_kernels", NAME + ".s")
    emit_file(out)
```

```python
import sys, math, os, struct

NAME = "gated_mix__sliding_block__dense_activation_relu__prompt"

KF = 0x200000
VF = 0x400000
OF = 0x600000
HF = 0x800000
GB = 0xE00000
FL = 0xF00000
TS = 0xF80000
WS_BYTES = 0x1000000
HROW = 86 * 1024
OOB = 0x40000000
SLOT = 16384

def env(n, d): return int(os.environ.get(n, d))
STAMPS = env("GEN_STAMPS", 0) >= 1
STAMPS2 = env("GEN_STAMPS", 0) >= 2
TOUCH = env("GEN_TOUCH", 2)
NT = env("GEN_NT", 0)
ROT = env("GEN_ROT", 0)

class Asm:
    def __init__(self):
        self.lines = []; self.vm = []; self.uid = 0; self.nstamp = 0
    def e(self, s): self.lines.append("    " + s)
    def label(self, l): self.lines.append(l + ":")
    def c(self, s): self.lines.append("    ; " + s)
    def newlabel(self, p="L"):
        self.uid += 1
        return f"{p}_{self.uid}"
    def vmem(self, s, tag):
        self.e(s); self.vm.append(tag)
    def wait_vm(self, tags, lgkm0=False):
        if isinstance(tags, str): tags = [tags]
        last = -1
        for i, t in enumerate(self.vm):
            if t in tags: last = i
        x = " lgkmcnt(0)" if lgkm0 else ""
        if last < 0:
            if lgkm0: self.e("s_waitcnt lgkmcnt(0)")
            return
        n = len(self.vm) - 1 - last
        assert n <= 63
        self.e(f"s_waitcnt vmcnt({n}){x}")
        self.vm = self.vm[last + 1:]

class Lg:
    def __init__(self, a): self.a = a; self.q = []
    def add(self, tag): self.q.append(tag)
    def wait(self, tags):
        last = -1
        for i, t in enumerate(self.q):
            if t in tags: last = i
        if last < 0: return
        n = min(len(self.q) - 1 - last, 15)
        self.a.e(f"s_waitcnt lgkmcnt({n})")
        self.q = self.q[len(self.q) - n:] if n else []
    def clear(self): self.q = []
    def drain(self):
        if self.q: self.a.e("s_waitcnt lgkmcnt(0)")
        self.q = []

sX, sWQ, sW1, sW2, sWO, sWS, sOUT, sGW, sDBG, sPW = 8, 12, 16, 20, 24, 28, 32, 36, 40, 88
def srd(b): return f"s[{b}:{b+3}]"
s_wv, s_rb, s_cg, s_p, s_t, s_rg, s_cgp, s_rb3, s_cb3, s_xbase = range(44, 54)
s_tmp, s_tmp2, s_wideoff, s_naroff = 54, 55, 56, 57
s_nonce = 58
s_tmp3, s_tmp4, s_st0, s_st1, s_first, s_w2off, s_xlds, s_cnt = range(60, 68)
s_exec = 68
s_m = 70; s_m2 = 72; s_m3 = 74
s_ldsw, s_a3, s_a3o, s_qb = 76, 77, 78, 79
s_vm = 80
s_ts = 82
s_tsb, s_ok, s_ga, s_pstep = 84, 85, 86, 87
s_st2 = 92
s_ldsww = 95
s_gw = 7
s_wbase = 5
GREG = 48
s_fl = 6
s_kvb = 3
s_krd = 4
s_vrdb = 98
s_flh = 99
s_flc = 100
v_kf = 25
NSGPR = 102

v_lane, v_l16 = 1, 2
v_xo = 3
v_wq_n, v_wd0, v_wd1, v_xrd, v_trn, v_trw, v_tr3, v_w2_n = 7, 8, 9, 10, 11, 12, 13, 14
v_t0, v_t1 = 15, 16
v_hi = 17
v_t2, v_t3 = 18, 19
v_non = 20
v_c2 = 20
v_mc = 22
v_g2 = 24
v_omg2 = 26
v_t4, v_t5 = 28, 29
v_trw2, v_tr3b = 30, 31
MASKF = 32
MASKD = 48
BF = 64
ACC = 96
XF = 128
v_fo = 252; v_fd = 254

def vr(b, n): return f"v[{b}:{b+n-1}]"

ORD = os.environ.get("GEN_ORD", "A")
CFG = {
 "A": dict(order=[0,1,2,3,4,5,6,7,8,9,10,11], xslot={0:0,1:4,2:6,3:0}, init={0:2,1:3}, atk=6, atv=4, usplit=4, lg=4,
      sched={0:[("X",2,0),("P",2,8),("P",3,9)], 1:[("X",3,0),("P",4,2)], 2:[("P",5,4),("P",6,5),("P",7,3)],
             3:[("P",8,6),("P",9,7),("P",10,8)], 4:[("P",11,9)], 5:[("Q",0,0),("Q",1,1)], 6:[("Q",2,2)], 9:[("Q",3,3)]},
      sig0=6, kvi=9, kvc=11, post=(8,9), non=2),
 "C": dict(order=[0,1,4,2,5,3,6,7,8,9,10,11], xslot={0:0,1:3,2:8,3:0}, init={0:2,1:5}, atk=3, atv=0, usplit=6, lg=6,
      sched={0:[("P",4,6),("X",2,0),("P",2,7)], 1:[("P",5,2),("X",3,0)], 2:[("P",3,5),("P",6,3),("P",7,4)],
             3:[("P",8,6)], 4:[("P",9,7),("P",10,8),("P",11,9)], 5:[("Q",0,2)], 7:[("Q",1,5)], 10:[("Q",2,6)], 11:[("Q",3,7)]},
      sig0=8, kvi=10, kvc=11, post=(8,9), non=3),
}[ORD]
XSLOT = CFG["xslot"]
ATK = CFG['atk'] * SLOT
ATQ = ATK + 24576
ATV = CFG['atv'] * SLOT

v_st = 27
def stamp(a, final=False):
    if not STAMPS: return
    i = a.nstamp; a.nstamp += 1
    cur = s_ts + 2*(i & 1) if False else (s_ts if (i & 1) == 0 else 96)
    prev = (s_ts if ((i-1) & 1) == 0 else 96)
    if i > 0:
        a.e(f"v_writelane_b32 v{v_st}, s{prev}, {i-1}")
    a.e(f"{'s_memrealtime' if env('GEN_RT',0) else 's_memtime'} s[{cur}:{cur+1}]")
    if final:
        a.e("s_waitcnt lgkmcnt(0)")
        a.e(f"v_writelane_b32 v{v_st}, s{cur}, {i}")
        a.e(f"v_lshlrev_b32 v{v_t3}, 2, v{v_lane}")
        a.e("s_mov_b32 exec_lo, -1")
        a.e("s_mov_b32 exec_hi, 0")
        a.e(f"buffer_store_dword v{v_st}, v{v_t3}, {srd(sWS)}, s{s_tsb} offen")
        if env("GEN_DBG", 0):
            l = a.newlabel("Ldbg")
            a.e(f"s_cmp_lg_u32 s2, {env('GEN_DBG',0)}")
            a.e(f"s_cbranch_scc1 {l}")
            a.e(f"s_cmp_lg_u32 s{s_wv}, 0")
            a.e(f"s_cbranch_scc1 {l}")
            a.e(f"v_readlane_b32 s{s_tmp}, v{v_st}, 0")
            a.e("s_nop 3")
            a.e(f"v_subrev_u32 v{v_st}, s{s_tmp}, v{v_st}")
            a.e("s_mov_b32 exec_lo, 0x3ffe")
            a.e(f"buffer_store_dword v{v_st}, v{v_t3}, {srd(sDBG)}, 0 offen offset:4")
            a.label(l)

def dma(a, voff, srd_b, soff, lds_sgpr, ldsimm, tag, sc1=False):
    a.e(f"s_add_u32 m0, s{lds_sgpr}, {ldsimm}")
    a.e("s_nop 0")
    nt = " nt" if (not sc1 and ((NT & 1) and tag[0] in "XP" or (NT & 2) and tag[0] == "Q")) else ""
    a.vmem(f"buffer_load_dwordx4 v{voff}, {srd(srd_b)}, {soff} offen{' sc1' if sc1 else ''}{nt} lds", tag)

def x_ops(a, j):
    ops = []
    for t in range(4):
        def f(t=t):
            a.e(f"s_add_u32 s{s_tmp}, s{s_xbase}, {t*4096 + j*256}")
            dma(a, v_xo + t, sX, f"s{s_tmp}", s_xlds, XSLOT[j]*SLOT + t*1024, f"X{j}")
        ops.append(f)
    return ops

def piece_ops(a, i, slot):
    ops = []
    for t in range(2):
        if i < 4:
            def f(t=t):
                a.e(f"s_add_u32 s{s_tmp}, s{s_naroff}, {(128*i + 8*t)*3072}")
                dma(a, v_wq_n, sWQ, f"s{s_tmp}", s_ldsw, slot*SLOT + t*1024, f"P{i}")
        else:
            def f(t=t):
                if t == 0:
                    a.e(f"s_mul_i32 s{s_wideoff}, s{s_pstep}, {i-4}")
                    a.e(f"s_add_u32 s{s_wideoff}, s{s_wideoff}, s{s_wbase}")
                a.e(f"s_add_u32 s{s_tmp}, s{s_ldsw}, {slot*SLOT + t*1024}")
                a.e(f"s_max_u32 m0, s{s_tmp}, s{s_ldsww}")
                a.e("s_nop 0")
                a.vmem(f"buffer_load_dwordx4 v{v_wd0 + t}, {srd(sPW)}, s{s_wideoff} offen{' nt' if NT & 1 else ''} lds", f"P{i}")
                if t == 1:
                    l = a.newlabel("Lgw")
                    a.e(f"s_cmp_eq_u32 s{s_gw}, 0")
                    a.e(f"s_cbranch_scc1 {l}")
                    a.e(f"v_add_u32 v{v_t2}, {slot*SLOT + 4096 + 128}, v{v_g2}")
                    a.e(f"ds_write_b16 v{v_t2}, v{GREG + i - 4}")
                    a.label(l)
        ops.append(f)
    return ops

def w2_ops(a, i, slot):
    ops = []
    for t in range(2):
        def f(t=t):
            srdb, r0 = (sW2, 128*i) if i <= 10 else (sWO, 128*(i-11))
            a.e(f"s_add_u32 s{s_tmp}, s{s_w2off}, {(r0 + 8*t) * 1024}")
            dma(a, v_w2_n, srdb, f"s{s_tmp}", s_ldsw, slot*SLOT + t*1024, f"Q{i}")
        ops.append(f)
    return ops

def issue_x_quarter(a, j):
    for f in x_ops(a, j): f()
def issue_piece(a, i, slot):
    for f in piece_ops(a, i, slot): f()
def issue_w2_piece(a, i, slot):
    for f in w2_ops(a, i, slot): f()

def mfma(a, d, x, y, c):
    cs = c if isinstance(c, str) else vr(c, 16)
    a.e(f"v_mfma_f32_32x32x16_bf16 {vr(d,16)}, {vr(x,4)}, {vr(y,4)}, {cs}")

def pack_tile(a, acc, pk, relu):
    for q in range(8):
        a.e(f"v_cvt_pk_bf16_f32 v{pk+q}, v{acc+2*q}, v{acc+2*q+1}")
    if relu:
        for q in range(8):
            a.e(f"v_pk_max_i16 v{pk+q}, v{pk+q}, 0")

def store_pk(a, pk, soff_sgpr, tag):
    a.vmem(f"buffer_store_dwordx4 {vr(pk,4)}, v{v_l16}, {srd(sWS)}, s{soff_sgpr} offen sc1", tag)
    a.vmem(f"buffer_store_dwordx4 {vr(pk+4,4)}, v{v_l16}, {srd(sWS)}, s{soff_sgpr} offen offset:1024 sc1", tag)

def signal(a, phase):
    l = a.newlabel("Lsig")
    a.e(f"s_cmp_lg_u32 s{s_wv}, 0")
    a.e(f"s_cbranch_scc1 {l}")
    a.e(f"v_mov_b32 v{v_t2}, s{s_nonce}")
    a.e(f"v_mov_b32 v{v_t3}, s{s_nonce+1}")
    a.e(f"v_mov_b32 v{v_t1}, {phase*32768}")
    a.e("s_mov_b64 exec, 1")
    a.e(f"buffer_store_dwordx2 v[{v_t2}:{v_t3}], v{v_t1}, {srd(sWS)}, s{s_fl} offen sc1")
    a.e("s_mov_b64 exec, -1")
    a.label(l)

def signal_wave(a):
    a.e(f"v_mov_b32 v{v_t2}, s{s_nonce}")
    a.e(f"v_mov_b32 v{v_t3}, s{s_nonce+1}")
    a.e(f"v_mov_b32 v{v_t1}, 0")
    a.e("s_mov_b64 exec, 1")
    a.vmem(f"buffer_store_dwordx2 v[{v_t2}:{v_t3}], v{v_t1}, {srd(sWS)}, s{s_flh} offen sc1", "SIGH")
    a.e("s_mov_b64 exec, -1")

def cmp_flags4(a, vd):
    a.e(f"v_xor_b32 v{vd}, s{s_nonce}, v{vd}")
    a.e(f"v_xor_b32 v{vd+1}, s{s_nonce+1}, v{vd+1}")
    a.e(f"v_xor_b32 v{vd+2}, s{s_nonce}, v{vd+2}")
    a.e(f"v_xor_b32 v{vd+3}, s{s_nonce+1}, v{vd+3}")
    a.e(f"v_or3_b32 v{vd}, v{vd}, v{vd+1}, v{vd+2}")
    a.e(f"v_or_b32 v{vd}, v{vd}, v{vd+3}")
    a.e(f"v_cmp_ne_u32 vcc, 0, v{vd}")
    a.e("s_nop 3")
    a.e("s_cmp_eq_u64 vcc, 0")

def hflag_issue(a, track=True):
    ins = f"buffer_load_dwordx4 v[252:255], v{v_l16}, {srd(sWS)}, s{s_flc} offen sc1"
    (a.vmem(ins, "FH") if track else a.e(ins))

def hpoll(a):
    lp = a.newlabel("Lpoll"); ld = a.newlabel("Lpolld")
    a.e(f"s_mov_b32 s{s_cnt}, 0")
    a.label(lp)
    hflag_issue(a, False)
    a.e("s_waitcnt vmcnt(0)")
    cmp_flags4(a, 252)
    a.e(f"s_cbranch_scc1 {ld}")
    a.e("s_sleep 1")
    a.e(f"s_add_u32 s{s_cnt}, s{s_cnt}, 1")
    a.e(f"s_cmp_lt_u32 s{s_cnt}, 100000")
    a.e(f"s_cbranch_scc1 {lp}")
    a.label(ld)

def cmp_flags(a, vd):
    a.e(f"v_cmp_eq_u32 s[{s_m2}:{s_m2+1}], s{s_nonce}, v{vd}")
    a.e(f"v_cmp_eq_u32 s[{s_m3}:{s_m3+1}], s{s_nonce+1}, v{vd+1}")
    a.e("s_nop 3")
    a.e(f"s_and_b64 s[{s_m2}:{s_m2+1}], s[{s_m2}:{s_m2+1}], s[{s_m3}:{s_m3+1}]")
    a.e(f"s_and_b64 s[{s_m2}:{s_m2+1}], s[{s_m2}:{s_m2+1}], s[{s_m}:{s_m+1}]")
    a.e(f"s_cmp_eq_u64 s[{s_m2}:{s_m2+1}], s[{s_m}:{s_m+1}]")

def poll(a, voff):
    lp = a.newlabel("Lpoll"); ld = a.newlabel("Lpolld")
    a.e(f"s_mov_b32 s{s_cnt}, 0")
    a.label(lp)
    a.e(f"buffer_load_dwordx2 v[{v_t2}:{v_t3}], v{voff}, {srd(sWS)}, 0 offen sc1")
    a.e("s_waitcnt vmcnt(0)")
    cmp_flags(a, v_t2)
    a.e(f"s_cbranch_scc1 {ld}")
    a.e("s_sleep 1")
    a.e(f"s_add_u32 s{s_cnt}, s{s_cnt}, 1")
    a.e(f"s_cmp_lt_u32 s{s_cnt}, 100000")
    a.e(f"s_cbranch_scc1 {lp}")
    a.label(ld)

def flag_issue(a, voff, vdst, tag, track=True):
    ins = f"buffer_load_dwordx2 v[{vdst}:{vdst+1}], v{voff}, {srd(sWS)}, 0 offen sc1"
    (a.vmem(ins, tag) if track else a.e(ins))

def flag_check(a, vdst, tag, track=True):
    if track: a.wait_vm(tag)
    else: a.e("s_waitcnt vmcnt(0)")
    cmp_flags(a, vdst)

def get_nonce(a):
    a.wait_vm("NON")
    lp = a.newlabel("Lnp"); ld = a.newlabel("Lnd")
    a.e(f"s_mov_b32 s{s_cnt}, 0")
    a.label(lp)
    a.e(f"v_readfirstlane_b32 s{s_nonce}, v{v_non}")
    a.e(f"v_readfirstlane_b32 s{s_nonce+1}, v{v_non+1}")
    a.e("s_nop 3")
    a.e(f"s_cmp_lg_u32 s{s_nonce}, 0")
    a.e(f"s_cbranch_scc1 {ld}")
    a.e("s_sleep 2")
    a.e(f"v_mov_b32 v{v_t2}, 0")
    a.e(f"buffer_load_dwordx2 v[{v_non}:{v_non+1}], v{v_t2}, {srd(sDBG)}, 0 offen sc1")
    a.e("s_waitcnt vmcnt(0)")
    a.e(f"s_add_u32 s{s_cnt}, s{s_cnt}, 1")
    a.e(f"s_cmp_lt_u32 s{s_cnt}, 100000")
    a.e(f"s_cbranch_scc1 {lp}")
    a.label(ld)

def kv_flag_setup(a):
    e = a.e
    e(f"s_lshl_b32 s{s_tmp}, s{s_rb}, 4")
    e(f"s_add_u32 s{s_fl}, s{s_tmp}, s{s_cg}")
    e(f"s_lshl_b32 s{s_fl}, s{s_fl}, 7")
    e(f"s_add_u32 s{s_fl}, s{s_fl}, {FL}")
    e(f"s_lshl_b32 s{s_tmp2}, s{s_p}, 1")
    e(f"s_add_u32 s{s_tmp}, s{s_tmp}, s{s_tmp2}")
    e(f"v_lshrrev_b32 v{v_kf}, 1, v{v_lane}")
    e(f"v_lshlrev_b32 v{v_kf}, 4, v{v_kf}")
    e(f"v_sub_u32 v{v_kf}, s{s_tmp}, v{v_kf}")
    e(f"v_and_b32 v{v_t0}, 1, v{v_lane}")
    e(f"v_add_u32 v{v_kf}, v{v_kf}, v{v_t0}")
    e(f"v_and_b32 v{v_kf}, 255, v{v_kf}")
    e(f"v_lshlrev_b32 v{v_kf}, 7, v{v_kf}")
    e(f"v_add_u32 v{v_kf}, {FL}, v{v_kf}")
    e(f"s_mov_b32 s{s_m}, 63")
    e(f"s_cmp_eq_u32 s{s_rb}, 1")
    e(f"s_cselect_b32 s{s_m}, 15, s{s_m}")
    e(f"s_cmp_eq_u32 s{s_rb}, 0")
    e(f"s_cselect_b32 s{s_m}, 3, s{s_m}")
    e(f"s_mov_b32 s{s_m+1}, 0")
    e(f"s_lshl_b32 s{s_tmp3}, s{s_cg}, 6")
    e(f"s_lshl_b32 s{s_tmp4}, s{s_rb}, 2")
    e(f"s_add_u32 s{s_tmp3}, s{s_tmp3}, s{s_tmp4}")
    e(f"s_lshl_b32 s{s_tmp3}, s{s_tmp3}, 11")
    e(f"s_mul_i32 s{s_tmp4}, s{s_wv}, 3072")
    e(f"s_add_u32 s{s_kvb}, s{s_tmp3}, s{s_tmp4}")
    e(f"s_lshl_b32 s{s_tmp}, s{s_rg}, 11")
    e(f"s_lshl_b32 s{s_tmp2}, s{s_cgp}, 10")
    e(f"s_add_u32 s{s_tmp2}, s{s_tmp2}, s{s_tmp}")
    e(f"s_add_u32 s{s_krd}, s{s_tmp2}, {ATK}")
    e(f"s_lshl_b32 s{s_tmp2}, s{s_cgp}, 8")
    e(f"s_add_u32 s{s_tmp2}, s{s_tmp2}, s{s_tmp}")
    e(f"s_add_u32 s{s_vrdb}, s{s_tmp2}, {ATV}")
    e(f"s_lshl_b32 s{s_qb}, s{s_rb}, 2")
    e(f"s_add_u32 s{s_qb}, s{s_qb}, s{s_rg}")
    e(f"s_sub_i32 s{s_first}, 8, s{s_qb}")
    e(f"s_max_i32 s{s_first}, s{s_first}, 0")
    e(f"s_mov_b32 s{s_vm}, 0xffff")
    e(f"s_mov_b32 s{s_vm+1}, 0xffff")
    s3_addr_setup(a)
    e(f"s_lshl_b32 s{s_tmp}, s{s_cg}, 3")
    e(f"s_add_u32 s{s_tmp}, s{s_tmp}, s{s_wv}")
    e(f"s_lshl_b32 s{s_tmp}, s{s_tmp}, 3")
    e(f"s_lshl_b32 s{s_flh}, s{s_rb}, 10")
    e(f"s_add_u32 s{s_flh}, s{s_flh}, s{s_tmp}")
    e(f"s_add_u32 s{s_flh}, s{s_flh}, {FL + 32768}")
    e(f"s_lshr_b32 s{s_flc}, s{s_rb3}, 1")
    e(f"s_lshl_b32 s{s_flc}, s{s_flc}, 10")
    e(f"s_add_u32 s{s_flc}, s{s_flc}, {FL + 32768}")

def kv_ops(a, guard=True):
    ops = []
    for reg, lds, tag in ((KF, ATK, "AK"), (VF, ATV, "AV")):
        for i in range(3):
            def f(reg=reg, lds=lds, tag=tag, i=i):
                l = None
                if guard:
                    l = a.newlabel("Lkvg")
                    a.e(f"s_cmp_eq_u32 s{s_ok}, 0")
                    a.e(f"s_cbranch_scc1 {l}")
                a.e(f"s_mul_i32 s{s_tmp4}, s{s_wv}, 3072")
                a.e(f"s_add_u32 s{s_tmp}, s{s_kvb}, {reg - 16384 + i*1024}")
                dma(a, v_l16, sWS, f"s{s_tmp}", s_tmp4, lds + i*1024, tag, sc1=True)
                if l: a.label(l)
            ops.append(f)
    return ops

def issue_kv(a, which, track=True):
    sv = list(a.vm)
    for f in kv_ops(a, guard=False): f()
    if not track: a.vm = sv

def s1_items(pieces, slot_of):
    items = []
    for i in pieces:
        sl = slot_of[i]
        if i < 4:
            for s in range(8):
                items.append(dict(pc=i, ks=8*i + s, tl=0, vb=v_trn, off=s*2048, sec=512, sl=sl, xs=s))
        else:
            j = i - 4
            for s in range(4):
                for tl in range(2):
                    items.append(dict(pc=i, ks=4*j + s, tl=tl, vb=(v_trw2 if tl else v_trw), off=None, s=s, sl=sl, xs=None))
    return items

def stage1(a, isv):
    raise NotImplementedError

ORDER = CFG['order']
T3U = env('GEN_T3U', 99)
FLUSH = 1
USPLIT = CFG['usplit']

class S1:
    D = env('GEN_D', 5)
    def __init__(self, a):
        self.a = a; self.lg = Lg(a); self.n = 0
        self.fifo = []
        self.slot_of = dict(CFG["init"])
        self.w2_slot = {}
        self.base = {}
        self.sched = CFG["sched"]
    def sync(self, u, extra_need=(), hook=None):
        a = self.a
        i = ORDER[u]
        need = [f"P{i}"] + ([f"X{i}"] if i < 4 else []) + list(extra_need)
        if FLUSH: self.pump(len(self.fifo))
        if u <= CFG['lg']:
            a.wait_vm(need, lgkm0=True)
            self.lg.clear()
        else:
            a.wait_vm(need)
        a.e("s_barrier")
        if STAMPS2: stamp(a)
        if hook: hook()
        for kind, pc, sl in self.sched.get(u, []):
            if kind == "P": self.slot_of[pc] = sl; self.fifo += piece_ops(a, pc, sl)
            elif kind == "X": self.fifo += x_ops(a, pc)
            else: self.w2_slot[pc] = sl; self.fifo += w2_ops(a, pc, sl)
        self.base = {}
    def pump(self, n=1):
        for _ in range(n):
            if self.fifo: self.fifo.pop(0)()
    def read(self, it):
        a = self.a
        b = BF + (it["n"] % 8) * 4
        sl = it["sl"]
        if it["xs"] is not None:
            s = it["xs"]; xq = it["pc"]
            r = v_t0 + (s & 1)
            a.e(f"v_xor_b32 v{r}, {s*32}, v{v_xrd}")
            off = XSLOT[xq]*SLOT
            if off > 65535:
                a.e(f"v_add_u32 v{r}, {off}, v{r}"); off = 0
            a.e(f"ds_read_b128 {vr(XF + it['ks']*4, 4)}, v{r} offset:{off}")
            self.lg.add(("x", it["ks"]))
        vb = it["vb"]
        if it["pc"] < 4:
            off, sec = it["off"], it["sec"]
            o = sl*SLOT + off
            if o + sec > 65535:
                if vb not in self.base:
                    a.e(f"v_add_u32 v{v_t4}, {sl*SLOT}, v{vb}"); self.base[vb] = v_t4
                vb = self.base[vb]; o = off
            a.e(f"ds_read_b64_tr_b16 {vr(b,2)}, v{vb} offset:{o}")
            a.e(f"ds_read_b64_tr_b16 {vr(b+2,2)}, v{vb} offset:{o + sec}")
        else:
            s = it["s"]; tl = it["tl"]
            if tl == 1:
                o = sl*SLOT + s*16*192; sec = 4*192
                if o + sec > 65535 - 16384:
                    if vb not in self.base:
                        a.e(f"v_add_u32 v{v_t5}, {sl*SLOT}, v{vb}"); self.base[vb] = v_t5
                    vb = self.base[vb]; o = s*16*192
                a.e(f"ds_read_b64_tr_b16 {vr(b,2)}, v{vb} offset:{o}")
                a.e(f"ds_read_b64_tr_b16 {vr(b+2,2)}, v{vb} offset:{o + sec}")
            else:
                if s == 0:
                    a.e(f"v_add_u32 v{v_t4}, {sl*SLOT}, v{v_trw}")
                    a.e(f"v_add_u32 v{v_t0}, {sl*SLOT}, v{v_omg2}")
                else:
                    a.e(f"v_add_u32 v{v_t4}, s{s_k16}, v{v_t4}")
                    a.e(f"v_add_u32 v{v_t0}, s{s_k16}, v{v_t0}")
                a.e(f"ds_read_b64_tr_b16 {vr(b,2)}, v{v_t4}")
                a.e(f"ds_read_b64_tr_b16 {vr(b+2,2)}, v{v_t0}")
        self.lg.add(("b", it["n"])); self.lg.add(("b", it["n"]))
    def mm(self, it, isv):
        a = self.a
        self.lg.wait([("b", it["n"]), ("x", it["ks"])])
        b = BF + (it["n"] % 8) * 4
        if it["pc"] < 4:
            acc = ACC2
            cin = "0" if it["ks"] == 0 else acc
            if isv: mfma(a, acc, XF + it["ks"]*4, b, cin)
            else: mfma(a, acc, b, XF + it["ks"]*4, cin)
        else:
            acc = ACC + 16*it["tl"]
            cin = "0" if it["ks"] == 0 else acc
            mfma(a, acc, b, XF + it["ks"]*4, cin)

ACC2 = MASKF
s_k16 = 93

def build_maskd(a):
    e = a.e
    e(f"v_and_b32 v{v_t2}, 31, v{v_lane}")
    e(f"v_lshlrev_b32 v{v_t3}, 2, v{v_hi}")
    e(f"v_sub_u32 v{v_t2}, v{v_t2}, v{v_t3}")
    e(f"v_mov_b32 v{v_t3}, 0xf149f2ca")
    for r in range(16):
        cr = (r & 3) + 8 * (r >> 2)
        e(f"v_cmp_gt_i32 vcc, {cr}, v{v_t2}")
        e("s_nop 1")
        e(f"v_cndmask_b32 v{MASKD+r}, 0, v{v_t3}, vcc")

PRE = env("GEN_PRE", 2)
def run_stage1(a):
    e = a.e
    a.c("================ stage 1 ================")
    D = S1.D
    base_lines = a.lines
    outs = []
    ns0 = a.nstamp; vm0 = list(a.vm)
    state = {}
    def hook(u, st):
        if u == 1 and TOUCH >= 2 and TOUCH not in (7, 9): touch(a, (sW2, sWO), 240)
        if T3U <= u < T3U + 4: st.fifo.append(lambda u=u: touch_l2_s3(a, u - T3U, 4))
        if u == env("GEN_TLBV", 3): tlb_warm_v(a)
        if u == CFG['non']:
            a.e(f"v_mov_b32 v{v_t2}, 0")
            a.vmem(f"buffer_load_dwordx2 v[{v_non}:{v_non+1}], v{v_t2}, {srd(sDBG)}, 0 offen sc1", "NON")
        if u == SIG0:
            get_nonce(a); signal(a, 0)
        VE = env("GEN_VE", 0)
        if u == CFG["kvi"] - VE:
            flag_issue(a, v_kf, v_non + 2, "FKV")
        if u == CFG["kvc"] - VE:
            flag_check(a, v_non + 2, "FKV")
            a.e(f"s_cselect_b32 s{s_ok}, 1, 0")
            ops = kv_ops(a)
            if VE: st.fifo = ops[3:] + st.fifo
            else: st.fifo = ops + st.fifo
        if VE and u == CFG["kvc"]:
            st.fifo = kv_ops(a)[:3] + st.fifo
    def do_mm(st, pend, isv):
        it = pend.pop(0)
        st.mm(it, isv)
        if it["pc"] == 3 and it["ks"] == 31: state["kvdone"] = 0
        elif "kvdone" in state:
            state["kvdone"] += 1
            if state["kvdone"] == 2:
                a.e("s_nop 7")
                pack_tile(a, ACC2, ACC2, False)
                store_pk(a, ACC2, s_st0, "ST0")
        st.pump(1)
    def unit(st, u, pend, n, isv, q0=0, q1=8, items=None):
        pc = ORDER[u]
        if items is None:
            if u <= CFG["lg"]:
                for _ in range(min(PRE, len(pend))): do_mm(st, pend, isv)
            st.sync(u, ["ST0"] if u == SIG0 else [], lambda: hook(u, st))
            items = s1_items([pc], st.slot_of)
            for it in items: it["n"] = n; n += 1
        for q in range(q0, q1):
            st.read(items[q]); pend.append(items[q])
            if len(pend) > D: do_mm(st, pend, isv)
            elif q % 2 == 1 and len(pend) > 2 and u > 0 and pend[0]["pc"] != pc: do_mm(st, pend, isv)
        return n, items
    for isv in (0, 1):
        a.lines = []; a.vm = list(vm0); a.nstamp = ns0; state.clear()
        st = S1(a)
        if isv: a.label("L_s1v")
        pend = []; n = 0
        for u in range(0, USPLIT):
            n, _ = unit(st, u, pend, n, isv)
        n, items = unit(st, USPLIT, pend, n, isv, 0, 0)
        q = 0
        while any(it["pc"] < 4 for it in pend):
            unit(st, USPLIT, pend, n, isv, q, q + 1, items); q += 1
            if q >= 8:
                while any(it["pc"] < 4 for it in pend): do_mm(st, pend, isv)
        st.pump(len(st.fifo))
        if not isv: a.e("s_branch L_s1w")
        outs.append((a.lines, list(a.vm), st, pend, n, items, q, dict(state)))
    assert outs[0][1] == outs[1][1]
    a.lines = base_lines + outs[0][0] + outs[1][0]
    _, vm, st, pend, n, items_s, q0, stt = outs[1]
    a.vm = vm
    a.label("L_s1w")
    unit(st, USPLIT, pend, n, 0, q0, 8, items_s)
    for u in range(USPLIT + 1, 12):
        n, _ = unit(st, u, pend, n, 0)
    while pend: do_mm(st, pend, 0)
    st.pump(len(st.fifo))
    e("s_nop 7"); e("s_nop 3")
    gate(a)
    pack_tile(a, ACC + 16, BF + 8, True)
    store_pk(a, BF + 8, s_st2, "ST1")
    pack_tile(a, ACC, BF, False)
    l = a.newlabel("Lq"); l2 = a.newlabel("Lqd")
    e(f"s_cmp_eq_u32 s{s_cgp}, 0")
    e(f"s_cbranch_scc1 {l}")
    for q in range(8): e(f"v_pk_max_i16 v{BF+q}, v{BF+q}, 0")
    a.label(l)
    store_pk(a, BF, s_st1, "ST1")
    return st.w2_slot

SIG0 = CFG['sig0']

def gate(a):
    e = a.e
    l = a.newlabel("Lgate")
    e(f"s_cmp_lg_u32 s{s_cg}, 15")
    e(f"s_cbranch_scc1 {l}")
    e(f"s_cmp_lg_u32 s{s_cgp}, 1")
    e(f"s_cbranch_scc1 {l}")
    e(f"v_cvt_pk_bf16_f32 v{v_t1}, v{ACC+16}, v{ACC+16}")
    e(f"v_lshlrev_b32 v{v_t1}, 16, v{v_t1}")
    e(f"v_mul_f32 v{v_t1}, 0xbfb8aa3b, v{v_t1}")
    e(f"v_exp_f32 v{v_t1}, v{v_t1}")
    e("s_nop 0")
    e(f"v_add_f32 v{v_t1}, 1.0, v{v_t1}")
    e(f"v_rcp_f32 v{v_t1}, v{v_t1}")
    e("s_nop 0")
    e(f"v_cvt_pk_bf16_f32 v{v_t1}, v{v_t1}, v{v_t1}")
    e(f"v_lshlrev_b32 v{v_t1}, 16, v{v_t1}")
    e(f"v_lshlrev_b32 v{v_t0}, 2, v{v_lane}")
    e(f"s_lshl_b32 s{s_tmp}, s{s_rb}, 2")
    e(f"s_add_u32 s{s_tmp}, s{s_tmp}, s{s_rg}")
    e(f"s_lshl_b32 s{s_tmp}, s{s_tmp}, 7")
    e(f"s_add_u32 s{s_tmp}, s{s_tmp}, {GB}")
    e(f"s_mov_b64 s[{s_exec}:{s_exec+1}], exec")
    e("s_mov_b32 exec_lo, -1")
    e("s_mov_b32 exec_hi, 0")
    e(f"buffer_store_dword v{v_t1}, v{v_t0}, {srd(sWS)}, s{s_tmp} offen sc1")
    e(f"s_mov_b64 exec, s[{s_exec}:{s_exec+1}]")
    a.label(l)

def Sreg(b):
    if b == 0: return MASKF
    if b == 8: return MASKD
    return 64 + 16*(b-1)
KFR = 176; QFR = 212; VROT = 216; OACC = 232
v_max = 248; v_max2 = 249; v_vrd = 250; v_krd = 251

def AFreg(n):
    if n < 10: return 176 + 4*n
    if n < 14: return 48 + 4*(n-10)
    if n < 18: return 160 + 4*(n-14)
    return 144 + 4*(n-18)
def AOreg(n):
    return 128 + 4*n if n < 4 else 32 + 4*(n-4)
BF3 = 64; ACB = 96; ACA = 216

def s3_addr_setup(a):
    e = a.e
    e(f"s_lshl_b32 s{s_tmp3}, s{s_rb3}, 1")
    e(f"s_add_u32 s{s_tmp3}, s{s_tmp3}, s{s_cgp}")
    e(f"s_mul_i32 s{s_a3}, s{s_tmp3}, {HROW}")
    e(f"s_lshl_b32 s{s_tmp}, s{s_rg}, 10")
    e(f"s_add_u32 s{s_a3}, s{s_a3}, s{s_tmp}")
    e(f"s_add_u32 s{s_a3}, s{s_a3}, {HF}")
    e(f"s_lshl_b32 s{s_a3o}, s{s_tmp3}, 15")
    e(f"s_add_u32 s{s_a3o}, s{s_a3o}, s{s_tmp}")
    e(f"s_add_u32 s{s_a3o}, s{s_a3o}, {OF}")
    e(f"s_lshl_b32 s{s_ga}, s{s_tmp3}, 7")
    e(f"s_add_u32 s{s_ga}, s{s_ga}, {GB}")

def h_loads(a, ns, track=True):
    e = a.e
    for n in ns:
        if n == "g":
            e(f"v_and_b32 v{v_t0}, 31, v{v_lane}")
            e(f"v_lshlrev_b32 v{v_t0}, 2, v{v_t0}")
            ins = f"buffer_load_dword v{v_g2}, v{v_t0}, {srd(sWS)}, s{s_ga} offen sc1"
            (a.vmem(ins, "G") if track else e(ins))
            continue
        e(f"s_add_u32 s{s_tmp}, s{s_a3}, {n*4096}")
        if n == 21:
            e(f"s_cmp_ge_u32 s{s_rg}, 2")
            e(f"s_cselect_b32 s{s_tmp}, {OOB}, s{s_tmp}")
        ins = f"buffer_load_dwordx4 {vr(AFreg(n),4)}, v{v_l16}, {srd(sWS)}, s{s_tmp} offen sc1"
        (a.vmem(ins, f"H{n}") if track else e(ins))

def guarded_h_loads(a, ns, track=True):
    l = a.newlabel("Lhl")
    a.e(f"s_cmp_eq_u32 s{s_ok}, 0")
    a.e(f"s_cbranch_scc1 {l}")
    h_loads(a, ns, track)
    a.label(l)

def flags16(a, phase, vdst):
    e = a.e
    e(f"s_lshr_b32 s{s_tmp}, s{s_rb3}, 1")
    e(f"s_lshl_b32 s{s_tmp}, s{s_tmp}, 11")
    e(f"s_add_u32 s{s_tmp}, s{s_tmp}, {FL + phase*32768}")
    e(f"v_and_b32 v{vdst}, 15, v{v_lane}")
    e(f"v_lshlrev_b32 v{vdst}, 7, v{vdst}")
    e(f"v_add_u32 v{vdst}, s{s_tmp}, v{vdst}")
    e(f"s_mov_b32 s{s_m}, 0xffff")
    e(f"s_mov_b32 s{s_m+1}, 0")

SIGB = env('GEN_SIGB', 1)
HB_ISSUE, HB_CHECK = env("GEN_HBI", 5), env("GEN_HBC", 3)

def attention(a, slot_of):
    e = a.e
    a.c("================ attention ================")
    e(f"s_lshl_b32 s{s_tmp}, s{s_rg}, 10")
    e(f"s_add_u32 s{s_tmp}, s{s_tmp}, {ATQ}")
    e(f"v_add_u32 v{v_t0}, s{s_tmp}, v{v_l16}")
    l = a.newlabel("Lqx")
    e(f"s_cmp_lg_u32 s{s_cgp}, 0")
    e(f"s_cbranch_scc1 {l}")
    e(f"ds_write_b128 v{v_t0}, {vr(BF+4,4)}")
    for i in range(4): e(f"v_mov_b32 v{QFR+i}, v{BF+i}")
    a.label(l)
    l = a.newlabel("Lkvok")
    e(f"s_cmp_lg_u32 s{s_ok}, 0")
    e(f"s_cbranch_scc1 {l}")
    poll(a, v_kf)
    issue_kv(a, "KV", track=False)
    e("s_waitcnt vmcnt(0)")
    a.label(l)
    l = a.newlabel("Lgm")
    e(f"s_cmp_eq_u32 s{s_gw}, 0")
    e(f"s_cbranch_scc1 {l}")
    build_maskd(a)
    a.label(l)
    stamp(a)
    e(f"v_add_u32 v{v_krd}, s{s_krd}, v{v_l16}")
    e(f"v_mov_b32 v{v_t3}, 0xf149f2ca")
    for r in range(16):
        e(f"v_sub_f32 v{MASKF+r}, v{v_t3}, v{MASKD+r}")
    a.wait_vm(["AK", "AV"], lgkm0=True)
    e("s_barrier")
    stamp(a)
    lg = Lg(a)
    l = a.newlabel("Lqr")
    e(f"s_cmp_eq_u32 s{s_cgp}, 0")
    e(f"s_cbranch_scc1 {l}")
    e(f"ds_read_b128 {vr(QFR,4)}, v{v_t0}")
    a.label(l)
    for b in range(8, -1, -1):
        e(f"ds_read_b128 {vr(KFR+4*b,4)}, v{v_krd} offset:{b*2048}"); lg.add(("k", b))
    fill = []
    for pc, sl in zip((4, 5), CFG["post"]):
        slot_of[pc] = sl; fill += w2_ops(a, pc, sl)
    c = 0.25 * math.log2(math.e)
    cbits = struct.unpack("<I", struct.pack("<f", c))[0]
    misc = [f"v_mov_b32 v{VROT+i}, 0x3f803f80" for i in range(16)]
    misc += [f"v_mov_b32 v{v_c2}, 0x{cbits:08x}", f"v_mov_b32 v{v_c2+1}, 0x{cbits:08x}", f"v_add_u32 v{v_vrd}, s{s_vrdb}, v{v_l16}"]
    for b in range(8, -1, -1):
        lg.wait([("k", b)])
        S = Sreg(b)
        mfma(a, S, KFR + 4*b, QFR, S if b in (0, 8) else "0")
        for _ in range(3):
            if misc: e(misc.pop(0))
        if fill and b % 2 == 0: fill.pop(0)()
    while misc: e(misc.pop(0))
    while fill: fill.pop(0)()
    if SIGB == 1:
        a.wait_vm("ST1"); signal_wave(a)
    lmax = a.newlabel("Lmaxd")
    e("s_nop 4")
    for b in range(8, -1, -1):
        S = Sreg(b)
        if b < 8:
            e(f"s_cmp_gt_u32 s{s_first}, {b}")
            e(f"s_cbranch_scc1 {lmax}")
        for q in range(8):
            if b == 8 and q == 0:
                e(f"v_max_f32 v{v_max}, v{S}, v{S+1}")
            else:
                e(f"v_max3_f32 v{v_max}, v{S+2*q}, v{S+2*q+1}, v{v_max}")
    a.label(lmax)
    e(f"v_mov_b32 v{v_max2}, v{v_max}")
    e("s_nop 1")
    e(f"v_permlane32_swap_b32 v{v_max}, v{v_max2}")
    e("s_nop 1")
    e(f"v_max_f32 v{v_max}, v{v_max}, v{v_max2}")
    e(f"v_mul_f32 v{v_mc}, v{v_c2}, v{v_max}")
    e(f"v_sub_f32 v{v_mc}, 0, v{v_mc}")
    e(f"v_mov_b32 v{v_mc+1}, v{v_mc}")
    if SIGB == 2:
        a.wait_vm("ST1"); signal_wave(a)
    def softmax_block(b):
        S = Sreg(b)
        for q in range(8):
            e(f"v_pk_fma_f32 v[{S+2*q}:{S+2*q+1}], v[{S+2*q}:{S+2*q+1}], v[{v_c2}:{v_c2+1}], v[{v_mc}:{v_mc+1}]")
        for r in range(16):
            e(f"v_exp_f32 v{S+r}, v{S+r}")
        for q in range(8):
            e(f"v_cvt_pk_bf16_f32 v{S+q}, v{S+2*q}, v{S+2*q+1}")
    softmax_block(8)
    e("s_barrier")
    stamp(a)
    for pc, sl in ((6, CFG['atk']), (7, CFG['atk']+1)):
        slot_of[pc] = sl; issue_w2_piece(a, pc, sl)
    lg = Lg(a)
    def vread(n):
        b = 8 - n//2; m = n % 2
        e(f"ds_read_b128 {vr(VROT + 4*(n%4), 4)}, v{v_vrd} offset:{b*2048 + m*1024}")
        lg.add(("v", n))
    e(f"s_mov_b64 exec, s[{s_vm}:{s_vm+1}]")
    vread(0); vread(1)
    e("s_mov_b64 exec, -1")
    lpv = a.newlabel("Lpvd")
    e(f"s_mov_b32 s{s_ok}, 0")
    skip_labels = {}
    hl = list(range(22)) + ["g"]
    per = -(-len(hl) // (HB_CHECK + 1))
    def post_block(b, track):
        if b == HB_ISSUE: hflag_issue(a, track)
        if b == HB_CHECK:
            if track: a.wait_vm("FH")
            else: e("s_waitcnt vmcnt(0)")
            cmp_flags4(a, 252)
            e(f"s_cselect_b32 s{s_ok}, 1, 0")
        if b <= HB_CHECK:
            i0 = (HB_CHECK - b) * per
            if hl[i0:i0+per]: guarded_h_loads(a, hl[i0:i0+per], track)
    for b in range(8, -1, -1):
        S = Sreg(b)
        n0 = 2*(8 - b)
        if b < 8:
            skip_labels[b] = a.newlabel("Lskip")
            e(f"s_cmp_gt_u32 s{s_first}, {b}")
            e(f"s_cbranch_scc1 {skip_labels[b]}")
        if b > 0:
            e(f"s_mov_b64 exec, s[{s_vm}:{s_vm+1}]")
            vread(n0 + 2); vread(n0 + 3)
            e("s_mov_b64 exec, -1")
        if b < 8: softmax_block(b)
        lg.wait([("v", n0), ("v", n0+1)])
        e("s_nop 0")
        mfma(a, OACC, VROT + 4*(n0 % 4), S, "0" if b == 8 else OACC)
        mfma(a, OACC, VROT + 4*((n0+1) % 4), S + 4, OACC)
        post_block(b, True)
    e(f"s_branch {lpv}")
    for b in range(7, -1, -1):
        a.label(skip_labels[b])
        post_block(b, False)
    a.label(lpv)
    e("s_waitcnt lgkmcnt(0)")
    e("s_nop 7"); e("s_nop 3")
    e(f"v_rcp_f32 v{v_max}, v{OACC+8}")
    e("s_nop 0")
    for r in range(8):
        e(f"v_mul_f32 v{OACC+r}, v{OACC+r}, v{v_max}")
    for q in range(4):
        e(f"v_cvt_pk_bf16_f32 v{248+q}, v{OACC+2*q}, v{OACC+2*q+1}")
    e(f"buffer_store_dwordx4 v[248:251], v{v_l16}, {srd(sWS)}, s{s_oa} offen sc1")
    l = a.newlabel("Lhok")
    e(f"s_cmp_lg_u32 s{s_ok}, 0")
    e(f"s_cbranch_scc1 {l}")
    hpoll(a)
    h_loads(a, list(range(22)) + ["g"], track=False)
    a.label(l)
    stamp(a)
s_oa = 94

def compute3(a, pieces, slot_of, cnt):
    e = a.e
    work = []
    for pc in pieces:
        for u in range(2):
            if pc <= 10: af = AFreg(2*pc + u); tag = f"H{2*pc+u}"; acc = ACB; first = (pc == 0 and u == 0)
            else: af = AOreg(2*(pc-11) + u); tag = f"O{2*(pc-11)+u}"; acc = ACA; first = (pc == 11 and u == 0)
            for ct in range(2):
                work.append((slot_of[pc], u, ct, af, tag, acc + 16*ct, first))
    lg = Lg(a)
    cur = {}
    def rd(w):
        sl, u, ct, af, tag, acc, first = work[w]
        vb = v_tr3b if ct else v_tr3
        off = sl*SLOT + u*8192
        if off + 1024 > 65535:
            r = v_t5 if ct else v_t4
            if cur.get(ct) != sl:
                e(f"v_add_u32 v{r}, {sl*SLOT}, v{vb}")
                cur[ct] = sl
            vb = r; off = u*8192
        b = BF3 + ((cnt[0] + w) % 8)*4
        e(f"ds_read_b64_tr_b16 {vr(b,2)}, v{vb} offset:{off}")
        e(f"ds_read_b64_tr_b16 {vr(b+2,2)}, v{vb} offset:{off + 1024}")
        lg.add(w); lg.add(w)
    D = 4
    for w in range(min(D, len(work))): rd(w)
    for w in range(len(work)):
        if w + D < len(work): rd(w + D)
        sl, u, ct, af, tag, acc, first = work[w]
        a.wait_vm(tag)
        lg.wait([w])
        b = BF3 + ((cnt[0] + w) % 8)*4
        mfma(a, acc, b, af, "0" if first else acc)
    cnt[0] += len(work)
    lg.drain()

S3J = env('GEN_S3J', 1)
def o_loads(a, track=True):
    for n in range(8):
        a.e(f"s_add_u32 s{s_tmp}, s{s_a3o}, {n*4096}")
        ins = f"buffer_load_dwordx4 {vr(AOreg(n),4)}, v{v_l16}, {srd(sWS)}, s{s_tmp} offen sc1"
        (a.vmem(ins, f"O{n}") if track else a.e(ins))

def o_check(a):
    e = a.e
    regs = [AOreg(n) + i for n in range(8) for i in range(4)]
    e(f"v_max3_u32 v{v_t2}, v{regs[0]}, v{regs[1]}, v{regs[2]}")
    i = 3
    while i < len(regs):
        if i + 1 < len(regs):
            e(f"v_max3_u32 v{v_t2}, v{regs[i]}, v{regs[i+1]}, v{v_t2}"); i += 2
        else:
            e(f"v_max_u32 v{v_t2}, v{regs[i]}, v{v_t2}"); i += 1
    e(f"v_cmp_eq_u32 vcc, -1, v{v_t2}")
    e("s_nop 3")
    e("s_cmp_eq_u64 vcc, 0")

def stage3(a, slot_of):
    e = a.e
    a.c("================ stage 3 ================")
    D = 4
    lg = Lg(a)
    fifo = []
    cur = {}
    V0 = CFG["atv"]
    def assign(pc, sl):
        slot_of[pc] = sl
        for f in w2_ops(a, pc, sl):
            f.tag = f"Q{pc}"; fifo.append(f)
    def o_verify():
        a.wait_vm("O7")
        lp = a.newlabel("Lop"); ld = a.newlabel("Lod")
        e(f"s_mov_b32 s{s_cnt}, 0")
        a.label(lp)
        o_check(a)
        e(f"s_cbranch_scc1 {ld}")
        o_loads(a, track=False)
        e("s_waitcnt vmcnt(0)")
        e(f"s_add_u32 s{s_cnt}, s{s_cnt}, 1")
        e(f"s_cmp_lt_u32 s{s_cnt}, 100000")
        e(f"s_cbranch_scc1 {lp}")
        a.label(ld)
        stamp(a)
    def o_ops():
        ops = []
        for n in range(8):
            def f(n=n):
                a.e(f"s_add_u32 s{s_tmp}, s{s_a3o}, {n*4096}")
                a.vmem(f"buffer_load_dwordx4 {vr(AOreg(n),4)}, v{v_l16}, {srd(sWS)}, s{s_tmp} offen sc1", f"O{n}")
            f.tag = f"O{n}"
            ops.append(f)
        return ops
    syncs = {
        S3J: (["Q4", "Q5", "Q6", "Q7"], lambda: (assign(8, V0), assign(9, V0 + 1))),
        4: ([], lambda: (assign(10, slot_of[0]), assign(11, slot_of[1]), assign(12, slot_of[2]))),
        6: ([], lambda: (assign(13, slot_of[3]), assign(14, slot_of[4]), fifo.extend(o_ops()))),
        8: (["Q8", "Q9"], None),
        10: (["Q10", "Q11", "Q12"], None),
        13: (["Q13", "Q14"], None),
    }
    items = []
    for pc in range(15):
        for u in range(2):
            for ct in range(2):
                items.append((pc, u, ct))
    def rd(w):
        pc, u, ct = items[w]
        if u == 0 and ct == 0 and pc in syncs:
            tags, act = syncs[pc]
            while any(f.tag in tags for f in fifo): fifo.pop(0)()
            a.wait_vm(tags)
            e("s_barrier")
            if STAMPS2: stamp(a)
            if act: act()
        sl = slot_of[pc]
        vb = v_tr3b if ct else v_tr3
        off = sl*SLOT + u*8192
        if off + 1024 > 65535:
            r = v_t5 if ct else v_t4
            if cur.get(ct) != sl:
                e(f"v_add_u32 v{r}, {sl*SLOT}, v{vb}")
                cur[ct] = sl
            vb = r; off = u*8192
        b = BF3 + (w % 8)*4
        e(f"ds_read_b64_tr_b16 {vr(b,2)}, v{vb} offset:{off}")
        e(f"ds_read_b64_tr_b16 {vr(b+2,2)}, v{vb} offset:{off + 1024}")
        lg.add(w); lg.add(w)
    done = set(["Q4", "Q5", "Q6", "Q7"])
    for w in range(D): rd(w)
    for w in range(len(items)):
        if w + D < len(items):
            rd(w + D)
        pc, u, ct = items[w]
        if pc <= 10: af = AFreg(2*pc + u); tag = f"H{2*pc+u}"; acc = ACB; first = (pc == 0 and u == 0)
        else: af = AOreg(2*(pc-11) + u); tag = f"O{2*(pc-11)+u}"; acc = ACA; first = (pc == 11 and u == 0)
        if pc == 11 and u == 0 and ct == 0:
            while fifo: fifo.pop(0)()
            o_verify()
        a.wait_vm(tag)
        lg.wait([w])
        b = BF3 + (w % 8)*4
        mfma(a, acc + 16*ct, b, af, "0" if first else acc + 16*ct)
        if fifo: fifo.pop(0)()
        if pc >= 11:
            k = w - 44
            if k == 0:
                a.wait_vm("G")
                e(f"v_sub_f32 v{v_c2}, 1.0, v{v_g2}")
                e(f"v_cvt_pk_bf16_f32 v{v_c2}, v{v_c2}, v{v_c2}")
                e(f"v_lshlrev_b32 v{v_c2}, 16, v{v_c2}")
                e(f"v_mov_b32 v{v_c2+1}, v{v_c2}")
                e(f"v_mov_b32 v{v_g2+1}, v{v_g2}")
            elif 2 <= k < 10:
                for q in (2*(k-2), 2*(k-2)+1):
                    e(f"v_pk_mul_f32 v[{ACB+2*q}:{ACB+2*q+1}], v[{ACB+2*q}:{ACB+2*q+1}], v[{v_c2}:{v_c2+1}]")
    lg.drain()
    stamp(a)
    PS = [slot_of[p] for p in (5, 6, 7, 8)]
    e(f"s_cmp_eq_u32 s{s_rg}, 1"); e(f"s_movk_i32 s{s_tmp}, {PS[0]}"); e(f"s_cselect_b32 s{s_tmp}, {PS[1]}, s{s_tmp}")
    e(f"s_cmp_eq_u32 s{s_rg}, 2"); e(f"s_cselect_b32 s{s_tmp}, {PS[2]}, s{s_tmp}")
    e(f"s_cmp_eq_u32 s{s_rg}, 3"); e(f"s_cselect_b32 s{s_tmp}, {PS[3]}, s{s_tmp}")
    e(f"s_lshl_b32 s{s_tmp}, s{s_tmp}, 14")
    e(f"s_lshl_b32 s{s_tmp2}, s{s_cgp}, 13")
    e(f"s_add_u32 s{s_tmp}, s{s_tmp}, s{s_tmp2}")
    e(f"v_and_b32 v{v_t0}, 31, v{v_lane}")
    e(f"v_and_b32 v{v_t1}, 7, v{v_lane}")
    e(f"v_xor_b32 v{v_t1}, v{v_t1}, v{v_hi}")
    e(f"v_lshlrev_b32 v{v_t1}, 4, v{v_t1}")
    e(f"v_lshl_add_u32 v{v_t0}, v{v_t0}, 8, v{v_t1}")
    e(f"v_add_u32 v{v_t0}, s{s_tmp}, v{v_t0}")
    e("s_nop 4")
    for ct in range(2):
        for g4 in range(4):
            b0 = 16*ct + 4*g4
            for q in range(2):
                e(f"v_pk_fma_f32 v[{ACB+b0+2*q}:{ACB+b0+2*q+1}], v[{ACA+b0+2*q}:{ACA+b0+2*q+1}], v[{v_g2}:{v_g2+1}], v[{ACB+b0+2*q}:{ACB+b0+2*q+1}]")
            r = v_t2 + (g4 & 1)
            e(f"v_xor_b32 v{r}, {g4*32}, v{v_t0}")
            e(f"ds_write_b128 v{r}, {vr(ACB + b0, 4)} offset:{ct*128}")
    e(f"v_lshrrev_b32 v{v_t0}, 3, v0")
    e(f"v_and_b32 v{v_t1}, 7, v0")
    e(f"v_and_b32 v{v_t2}, 7, v{v_t0}")
    e(f"v_lshlrev_b32 v{v_t3}, 1, v{v_t1}")
    e(f"v_xor_b32 v{v_t2}, v{v_t2}, v{v_t3}")
    e(f"v_lshlrev_b32 v{v_t2}, 4, v{v_t2}")
    e(f"v_lshl_add_u32 v{v_t2}, v{v_t0}, 8, v{v_t2}")
    e(f"v_xor_b32 v{v_t3}, 16, v{v_t2}")
    e(f"v_add_u32 v{v_t4}, 0x10000, v{v_t2}")
    e(f"v_add_u32 v{v_t5}, 0x10000, v{v_t3}")
    e(f"v_add_u32 v{v_trn}, 0x20000, v{v_t2}")
    e(f"v_add_u32 v{v_trw}, 0x20000, v{v_t3}")
    e(f"v_lshlrev_b32 v{v_t0}, 10, v{v_t0}")
    e(f"v_lshl_add_u32 v{v_t0}, v{v_t1}, 4, v{v_t0}")
    e(f"s_lshl_b32 s{s_tmp}, s{s_rb3}, 16")
    e(f"s_lshl_b32 s{s_tmp2}, s{s_cb3}, 7")
    e(f"s_add_u32 s{s_tmp}, s{s_tmp}, s{s_tmp2}")
    e("s_waitcnt lgkmcnt(0)")
    e("s_barrier")
    for kq in range(4):
        off = PS[kq]*SLOT
        ra, rb_ = ((v_t2, v_t3), (v_t4, v_t5), (v_trn, v_trw))[off >> 16]
        e(f"ds_read_b128 {vr(64 + 8*kq, 4)}, v{ra} offset:{off & 0xffff}")
        e(f"ds_read_b128 {vr(68 + 8*kq, 4)}, v{rb_} offset:{off & 0xffff}")
    e("s_waitcnt lgkmcnt(4)")
    for q in range(4):
        e(f"v_pk_add_f32 v[{64+2*q}:{65+2*q}], v[{64+2*q}:{65+2*q}], v[{72+2*q}:{73+2*q}]")
    e("s_waitcnt lgkmcnt(0)")
    for q in range(4):
        e(f"v_pk_add_f32 v[{80+2*q}:{81+2*q}], v[{80+2*q}:{81+2*q}], v[{88+2*q}:{89+2*q}]")
    for q in range(4):
        e(f"v_pk_add_f32 v[{64+2*q}:{65+2*q}], v[{64+2*q}:{65+2*q}], v[{80+2*q}:{81+2*q}]")
    for q in range(4):
        e(f"v_cvt_pk_bf16_f32 v{64+q}, v{64+2*q}, v{65+2*q}")
    e(f"buffer_store_dwordx4 v[64:67], v{v_t0}, {srd(sOUT)}, s{s_tmp} offen {os.environ.get('GEN_OST','sc1').replace('_',' ')}")
    stamp(a, final=True)

def common_setup(a):
    e = a.e
    l = a.newlabel("Lcas")
    e(f"s_or_b32 s{s_nonce}, s{s_nonce}, 1")
    e(f"s_or_b32 s{s_tmp}, s{s_wv}, s2")
    e(f"s_cmp_lg_u32 s{s_tmp}, 0")
    e(f"s_cbranch_scc1 {l}")
    e(f"v_mov_b32 v{v_non}, s{s_nonce}")
    e(f"v_mov_b32 v{v_non+1}, s{s_nonce+1}")
    e(f"v_mov_b32 v{v_t4}, 0")
    e(f"s_mov_b64 s[{s_exec}:{s_exec+1}], exec")
    e("s_mov_b64 exec, 1")
    e(f"buffer_store_dwordx2 {vr(v_non,2)}, v{v_t4}, {srd(sDBG)}, 0 offen sc1")
    e(f"s_mov_b64 exec, s[{s_exec}:{s_exec+1}]")
    a.label(l)
    e(f"s_lshl_b32 s{s_tmp}, s{s_rb}, 2")
    e(f"s_add_u32 s{s_tmp}, s{s_tmp}, s{s_rg}")
    e(f"s_lshl_b32 s{s_oa}, s{s_tmp}, 15")
    e(f"s_lshl_b32 s{s_tmp2}, s{s_cg}, 1")
    e(f"s_add_u32 s{s_tmp2}, s{s_tmp2}, s{s_cgp}")
    e(f"s_lshl_b32 s{s_tmp2}, s{s_tmp2}, 10")
    e(f"s_add_u32 s{s_oa}, s{s_oa}, s{s_tmp2}")
    e(f"s_add_u32 s{s_oa}, s{s_oa}, {OF}")
    for i in range(4): e(f"v_mov_b32 v{ACC+i}, -1")
    a.vmem(f"buffer_store_dwordx4 {vr(ACC,4)}, v{v_l16}, {srd(sWS)}, s{s_oa} offen sc1", "SENT")
    e(f"v_and_b32 v{v_t0}, 31, v{v_lane}")
    e(f"v_lshrrev_b32 v{v_hi}, 5, v{v_lane}")
    e(f"v_and_b32 v{v_t1}, 15, v{v_lane}")
    e(f"v_xor_b32 v{v_t1}, v{v_t1}, v{v_hi}")
    e(f"v_lshlrev_b32 v{v_t1}, 4, v{v_t1}")
    e(f"v_lshl_add_u32 v{v_xrd}, v{v_t0}, 8, v{v_t1}")
    e(f"s_lshl_b32 s{s_tmp}, s{s_rg}, 13")
    e(f"v_add_u32 v{v_xrd}, s{s_tmp}, v{v_xrd}")
    e(f"v_and_b32 v{v_t0}, 15, v{v_lane}")
    e(f"v_lshrrev_b32 v{v_t1}, 2, v{v_t0}")
    e(f"v_bfe_u32 v{v_t2}, v{v_lane}, 4, 1")
    e(f"v_bfe_u32 v{v_t3}, v{v_lane}, 1, 1")
    e(f"v_lshl_add_u32 v{v_t2}, v{v_t2}, 1, v{v_t3}")
    e(f"v_and_b32 v{v_t3}, 1, v{v_lane}")
    e(f"v_lshlrev_b32 v{v_t3}, 3, v{v_t3}")
    e(f"v_lshl_add_u32 v{v_t2}, v{v_t2}, 4, v{v_t3}")
    e(f"v_lshrrev_b32 v{v_t3}, 1, v{v_t1}")
    e(f"v_xor_b32 v{v_t4}, s{s_cgp}, v{v_t3}")
    e(f"v_lshl_add_u32 v{v_t4}, v{v_t4}, 6, v{v_t2}")
    e(f"v_lshl_add_u32 v{v_t5}, v{v_hi}, 3, v{v_t1}")
    e(f"v_lshl_add_u32 v{v_trn}, v{v_t5}, 7, v{v_t4}")
    e(f"s_cmp_eq_u32 s{s_cgp}, 0")
    e(f"s_movk_i32 s{s_tmp}, 192")
    e(f"s_cselect_b32 s{s_tmp}, 64, s{s_tmp}")
    e(f"s_lshl_b32 s{s_k16}, s{s_tmp}, 4")
    e(f"s_lshl_b32 s{s_tmp2}, s{s_cgp}, 12")
    e(f"v_mad_u32_u24 v{v_trw}, v{v_t5}, s{s_tmp}, v{v_t2}")
    e(f"v_add_u32 v{v_trw}, s{s_tmp2}, v{v_trw}")
    e(f"s_lshl_b32 s{s_tmp}, s{s_tmp}, 2")
    e(f"v_add_u32 v{v_omg2}, s{s_tmp}, v{v_trw}")
    e(f"s_movk_i32 s{s_tmp}, 192")
    e(f"v_mad_u32_u24 v{v_trw2}, v{v_t5}, s{s_tmp}, v{v_t2}")
    e(f"s_lshl_b32 s{s_tmp2}, s{s_cgp}, 6")
    e(f"s_add_u32 s{s_tmp2}, s{s_tmp2}, {4096 + 64}")
    e(f"v_add_u32 v{v_trw2}, s{s_tmp2}, v{v_trw2}")
    e(f"v_lshl_add_u32 v{v_t4}, v{v_t3}, 6, v{v_t2}")
    e(f"v_lshl_add_u32 v{v_t5}, v{v_hi}, 2, v{v_t1}")
    e(f"v_lshl_add_u32 v{v_tr3}, v{v_t5}, 7, v{v_t4}")
    e(f"s_lshl_b32 s{s_tmp}, s{s_rg}, 11")
    e(f"v_add_u32 v{v_tr3}, s{s_tmp}, v{v_tr3}")
    e(f"v_xor_b32 v{v_tr3b}, 64, v{v_tr3}")

def wide_setup(a):
    e = a.e
    lq = a.newlabel("Lwq"); lj = a.newlabel("Lwj")
    e(f"s_cmp_lt_u32 s{s_wv}, 2")
    e(f"s_cbranch_scc1 {lq}")
    e(f"s_mov_b32 s{sPW}, s{sW1}"); e(f"s_mov_b32 s{sPW+1}, s{sW1+1}"); e(f"s_mov_b32 s{sPW+2}, {512*1376*2}"); e(f"s_mov_b32 s{sPW+3}, 0x00020000")
    e(f"s_sub_u32 s{s_tmp}, s{s_wv}, 2")
    e(f"s_lshl_b32 s{s_tmp}, s{s_tmp}, 7")
    e(f"s_movk_i32 s{s_tmp3}, 2752")
    e(f"s_movk_i32 s{s_tmp4}, 5462")
    for t in range(2):
        e(f"v_add_u32 v{v_t0}, s{s_tmp}, v{v_lane}")
        if t: e(f"v_add_u32 v{v_t0}, 64, v{v_t0}")
        e(f"v_mul_u32_u24 v{v_t1}, s{s_tmp4}, v{v_t0}")
        e(f"v_lshrrev_b32 v{v_t1}, 16, v{v_t1}")
        e(f"v_mul_u32_u24 v{v_t2}, 12, v{v_t1}")
        e(f"v_sub_u32 v{v_t0}, v{v_t0}, v{v_t2}")
        e(f"v_lshlrev_b32 v{v_t0}, 4, v{v_t0}")
        e(f"v_mad_u32_u24 v{v_wd0+t}, v{v_t1}, s{s_tmp3}, v{v_t0}")
    e(f"s_mul_i32 s{s_wbase}, s{s_cg}, 192")
    e(f"s_cmp_eq_u32 s{s_cg}, 15")
    e(f"s_cselect_b32 s{s_wbase}, {OOB}, s{s_wbase}")
    e(f"s_mov_b32 s{s_pstep}, {64*2752}")
    e(f"s_branch {lj}")
    a.label(lq)
    e(f"s_mov_b32 s{sPW}, s{sWQ}"); e(f"s_mov_b32 s{sPW+1}, s{sWQ+1}"); e(f"s_mov_b32 s{sPW+2}, {512*1536*2}"); e(f"s_mov_b32 s{sPW+3}, 0x00020000")
    e(f"s_lshl_b32 s{s_tmp}, s{s_wv}, 5")
    e(f"s_movk_i32 s{s_tmp3}, 3072")
    e(f"v_lshrrev_b32 v{v_t1}, 2, v{v_lane}")
    e(f"v_add_u32 v{v_t1}, s{s_tmp}, v{v_t1}")
    e(f"v_and_b32 v{v_t0}, 3, v{v_lane}")
    e(f"v_lshlrev_b32 v{v_t0}, 4, v{v_t0}")
    e(f"v_mad_u32_u24 v{v_wd0}, v{v_t1}, s{s_tmp3}, v{v_t0}")
    e(f"v_add_u32 v{v_wd1}, {16*3072}, v{v_wd0}")
    e(f"s_lshl_b32 s{s_wbase}, s{s_cg}, 6")
    e(f"s_mov_b32 s{s_pstep}, {64*3072}")
    a.label(lj)

def gen():
    a = Asm()
    e = a.e
    e("s_cmp_ge_u32 s2, 256")
    e("s_cbranch_scc1 L_exit")
    stamp(a)
    e("s_load_dwordx4 s[8:11], s[0:1], 0")
    e("s_load_dwordx2 s[24:25], s[0:1], 16")
    e("s_load_dwordx4 s[16:19], s[0:1], 32")
    e("s_load_dwordx4 s[36:39], s[0:1], 48")
    e("s_load_dwordx4 s[40:43], s[0:1], 64")
    e(f"s_memrealtime s[{s_nonce}:{s_nonce+1}]")
    e(f"v_and_b32 v{v_lane}, 63, v0")
    e(f"v_lshrrev_b32 v{v_t0}, 6, v0")
    e(f"v_lshlrev_b32 v{v_l16}, 4, v{v_lane}")
    e(f"v_readfirstlane_b32 s{s_wv}, v{v_t0}")
    e(f"s_and_b32 s{s_tmp}, s2, 7")
    e(f"s_lshr_b32 s{s_tmp2}, s2, 3")
    e(f"s_and_b32 s{s_rb}, s{s_tmp}, 1")
    e(f"s_lshl_b32 s{s_rb}, s{s_rb}, 3")
    e(f"s_and_b32 s{s_tmp3}, s{s_tmp2}, 7")
    e(f"s_add_u32 s{s_rb}, s{s_rb}, s{s_tmp3}")
    e(f"s_lshr_b32 s{s_cg}, s{s_tmp}, 1")
    e(f"s_lshl_b32 s{s_cg}, s{s_cg}, 2")
    e(f"s_lshr_b32 s{s_tmp3}, s{s_tmp2}, 3")
    e(f"s_add_u32 s{s_cg}, s{s_cg}, s{s_tmp3}")
    e(f"s_lshr_b32 s{s_p}, s{s_cg}, 1")
    e(f"s_and_b32 s{s_t}, s{s_cg}, 1")
    e(f"s_lshl_b32 s{s_rb3}, s{s_tmp}, 2")
    e(f"s_and_b32 s{s_tmp3}, s{s_tmp2}, 3")
    e(f"s_add_u32 s{s_rb3}, s{s_rb3}, s{s_tmp3}")
    e(f"s_lshr_b32 s{s_cb3}, s{s_tmp2}, 2")
    e(f"s_and_b32 s{s_rg}, s{s_wv}, 3")
    e(f"s_lshr_b32 s{s_cgp}, s{s_wv}, 2")
    e(f"s_lshl_b32 s{s_ldsw}, s{s_wv}, 11")
    e(f"s_lshl_b32 s{s_xlds}, s{s_wv}, 12")
    e(f"s_lshl_b32 s{s_xbase}, s{s_rb}, 17")
    e(f"s_lshl_b32 s{s_tmp3}, s{s_wv}, 14")
    e(f"s_add_u32 s{s_xbase}, s{s_xbase}, s{s_tmp3}")
    if STAMPS:
        e(f"s_lshl_b32 s{s_tsb}, s2, 3")
        e(f"s_add_u32 s{s_tsb}, s{s_tsb}, s{s_wv}")
        e(f"s_lshl_b32 s{s_tsb}, s{s_tsb}, 7")
        e(f"s_add_u32 s{s_tsb}, s{s_tsb}, {TS}")
    e(f"v_lshrrev_b32 v{v_t0}, 4, v{v_lane}")
    e(f"v_and_b32 v{v_t1}, 15, v{v_lane}")
    e(f"v_xor_b32 v{v_t1}, v{v_t1}, v{v_t0}")
    e(f"v_lshlrev_b32 v{v_t0}, 10, v{v_t0}")
    for t in range(4):
        e(f"v_xor_b32 v{v_t2}, {4*t}, v{v_t1}")
        e(f"v_lshl_add_u32 v{v_xo+t}, v{v_t2}, 4, v{v_t0}")
    e(f"v_lshrrev_b32 v{v_t0}, 3, v{v_lane}")
    e(f"v_and_b32 v{v_t1}, 7, v{v_lane}")
    e(f"v_lshrrev_b32 v{v_t2}, 2, v{v_lane}")
    e(f"v_and_b32 v{v_t2}, 4, v{v_t2}")
    e(f"v_xor_b32 v{v_t1}, v{v_t1}, v{v_t2}")
    e(f"v_lshlrev_b32 v{v_t1}, 4, v{v_t1}")
    e(f"s_movk_i32 s{s_tmp3}, 3072")
    e(f"v_mad_u32_u24 v{v_wq_n}, v{v_t0}, s{s_tmp3}, v{v_t1}")
    e(f"v_lshl_add_u32 v{v_w2_n}, v{v_t0}, 10, v{v_t1}")
    e(f"s_mul_i32 s{s_naroff}, s{s_wv}, {16*3072}")
    e(f"s_lshl_b32 s{s_tmp3}, s{s_p}, 7")
    e(f"s_add_u32 s{s_naroff}, s{s_naroff}, s{s_tmp3}")
    e(f"s_lshl_b32 s{s_tmp3}, s{s_t}, 10")
    e(f"s_add_u32 s{s_naroff}, s{s_naroff}, s{s_tmp3}")
    e(f"s_add_u32 s{s_naroff}, s{s_naroff}, 1024")
    e(f"s_lshl_b32 s{s_tmp3}, s{s_p}, 1")
    e(f"s_add_u32 s{s_tmp3}, s{s_tmp3}, s{s_cgp}")
    e(f"s_lshl_b32 s{s_tmp3}, s{s_tmp3}, 6")
    e(f"s_lshl_b32 s{s_tmp4}, s{s_rb}, 2")
    e(f"s_add_u32 s{s_tmp4}, s{s_tmp4}, s{s_rg}")
    e(f"s_add_u32 s{s_tmp3}, s{s_tmp3}, s{s_tmp4}")
    e(f"s_lshl_b32 s{s_st0}, s{s_tmp3}, 11")
    e(f"s_lshl_b32 s{s_tmp3}, s{s_t}, 21")
    e(f"s_add_u32 s{s_st0}, s{s_st0}, s{s_tmp3}")
    e(f"s_add_u32 s{s_st0}, s{s_st0}, {KF}")
    e(f"s_mul_i32 s{s_tmp4}, s{s_tmp4}, {HROW}")
    e(f"s_add_u32 s{s_tmp4}, s{s_tmp4}, {HF}")
    e(f"s_mul_i32 s{s_tmp3}, s{s_cg}, 3")
    e(f"s_lshl_b32 s{s_st1}, s{s_tmp3}, 11")
    e(f"s_add_u32 s{s_st1}, s{s_st1}, s{s_tmp4}")
    e(f"s_cmp_ge_u32 s{s_tmp3}, 43")
    e(f"s_cselect_b32 s{s_st1}, {OOB}, s{s_st1}")
    e(f"s_cmp_eq_u32 s{s_cgp}, 0")
    e(f"s_cselect_b32 s{s_st1}, {OOB}, s{s_st1}")
    e(f"s_add_u32 s{s_tmp3}, s{s_tmp3}, s{s_cgp}")
    e(f"s_add_u32 s{s_tmp3}, s{s_tmp3}, 1")
    e(f"s_lshl_b32 s{s_st2}, s{s_tmp3}, 11")
    e(f"s_add_u32 s{s_st2}, s{s_st2}, s{s_tmp4}")
    e(f"s_cmp_ge_u32 s{s_tmp3}, 43")
    e(f"s_cselect_b32 s{s_st2}, {OOB}, s{s_st2}")
    e(f"s_lshl_b32 s{s_w2off}, s{s_wv}, 14")
    e(f"s_lshl_b32 s{s_tmp3}, s{s_cb3}, 7")
    e(f"s_add_u32 s{s_w2off}, s{s_w2off}, s{s_tmp3}")
    e("s_waitcnt lgkmcnt(0)")
    e("s_mov_b32 s12, s10"); e("s_mov_b32 s13, s11"); e(f"s_mov_b32 s14, {512*1536*2}"); e("s_mov_b32 s15, 0x00020000")
    e(f"s_mov_b32 s10, {2048*512*2}"); e("s_mov_b32 s11, 0x00020000")
    e("s_mov_b32 s32, s38"); e("s_mov_b32 s33, s39"); e(f"s_mov_b32 s34, {2048*512*2}"); e("s_mov_b32 s35, 0x00020000")
    e("s_mov_b32 s38, 1024"); e("s_mov_b32 s39, 0x00020000")
    e(f"s_mov_b32 s{s_ldsww}, 0")
    e(f"s_mov_b32 s{s_gw}, 0")
    lg_ = a.newlabel("Lgs")
    e(f"s_cmp_lg_u32 s{s_cg}, 15")
    e(f"s_cbranch_scc1 {lg_}")
    e(f"s_cmp_lt_u32 s{s_wv}, 2")
    e(f"s_cbranch_scc1 {lg_}")
    e(f"s_mov_b32 s{s_ldsww}, 0x30000")
    e(f"s_cmp_lg_u32 s{s_wv}, 2")
    e(f"s_cbranch_scc1 {lg_}")
    e(f"s_mov_b32 s{s_gw}, 1")
    e(f"v_lshlrev_b32 v{v_t0}, 1, v{v_lane}")
    for j in range(8):
        e(f"buffer_load_ushort v{GREG+j}, v{v_t0}, {srd(sGW)}, 0 offen offset:{j*128}")
    e(f"s_movk_i32 s{s_tmp3}, 192")
    e(f"v_mul_u32_u24 v{v_g2}, s{s_tmp3}, v{v_lane}")
    a.label(lg_)
    e("s_mov_b32 s20, s18"); e("s_mov_b32 s21, s19"); e(f"s_mov_b32 s22, {1376*512*2}"); e("s_mov_b32 s23, 0x00020000")
    e(f"s_mov_b32 s18, {512*1376*2}"); e("s_mov_b32 s19, 0x00020000")
    if TOUCH in (2, 9): touch(a, (sWQ, sW1) if env('GEN_NOX',0) else (sX, sWQ, sW1), 224)
    if TOUCH == 4: touch_l2(a)
    issue_x_quarter(a, 0)
    issue_piece(a, 0, CFG['init'][0])
    if TOUCH == 3: touch(a, (sX, sWQ, sW1), 224)
    if TOUCH == 5: touch_l2(a)
    e(f"s_mov_b32 s26, {512*512*2}"); e("s_mov_b32 s27, 0x00020000")
    e("s_mov_b32 s28, s42"); e("s_mov_b32 s29, s43"); e(f"s_mov_b32 s30, {WS_BYTES}"); e("s_mov_b32 s31, 0x00020000")
    e("s_mov_b32 s42, 256"); e("s_mov_b32 s43, 0x00020000")
    if env("GEN_TLB", 2): tlb_warm(a, env("GEN_TLB", 2))
    if env("GEN_CPF", 0):
        e(f"s_getpc_b64 s[{s_m2}:{s_m2+1}]")
        a.label("L_pc")
        e(f"s_lshr_b32 s{s_tmp}, s2, 3")
        e(f"s_lshl_b32 s{s_tmp}, s{s_tmp}, 3")
        e(f"s_add_u32 s{s_tmp}, s{s_tmp}, s{s_wv}")
        e(f"s_lshl_b32 s{s_tmp}, s{s_tmp}, 6")
        e(f"s_load_dword s{s_cnt}, s[{s_m2}:{s_m2+1}], s{s_tmp}")
        e(f"s_lshr_b32 s{s_tmp}, s{s_tmp}, 2")
        e(f"s_and_b32 s{s_tmp}, s{s_tmp}, 0xfc0")
        e(f"s_add_u32 s{s_tmp}, s{s_tmp}, 16384")
        e(f"s_min_u32 s{s_tmp}, s{s_tmp}, L_exit-L_pc")
        e(f"s_load_dword s{s_cnt}, s[{s_m2}:{s_m2+1}], s{s_tmp}")
    if TOUCH == 9: touch(a, (sW2, sWO), 240)
    if TOUCH == 7: touch_scalar(a, "xq12o")
    if TOUCH == 8: touch_scalar(a, "xq1")
    stamp(a)
    if env("GEN_ST3",0): stamp(a)
    common_setup(a)
    wide_setup(a)
    if env("GEN_ST3",0): stamp(a)
    kv_flag_setup(a)
    lm_ = a.newlabel("Lmk")
    e(f"s_cmp_lg_u32 s{s_gw}, 0")
    e(f"s_cbranch_scc1 {lm_}")
    build_maskd(a)
    a.label(lm_)
    if env("GEN_ST3",0): stamp(a)
    e("s_barrier")
    issue_x_quarter(a, 1)
    issue_piece(a, 1, CFG['init'][1])
    e(f"s_cmp_lg_u32 s{s_t}, 0")
    e("s_cbranch_scc1 L_s1v")
    w2_slot = run_stage1(a)
    stamp(a)
    attention(a, w2_slot)
    stage3(a, w2_slot)
    a.label("L_exit")
    a.e("s_endpgm")
    return a

def touch(a, srds, T):
    e = a.e
    e(f"s_lshl_b32 s{s_tmp}, s2, 3")
    e(f"s_add_u32 s{s_tmp}, s{s_tmp}, s{s_wv}")
    e(f"s_lshl_b32 s{s_tmp}, s{s_tmp}, 10")
    for i, sr in enumerate(srds):
        a.vmem(f"buffer_load_dwordx4 {vr(T+4*i,4)}, v{v_l16}, {srd(sr)}, s{s_tmp} offen", "TCH")

def touch_l2(a):
    e = a.e
    T = 224
    lx = a.newlabel("Ltx"); lk = a.newlabel("Ltk"); lq = a.newlabel("Ltq"); lj = a.newlabel("Ltj")
    e(f"s_lshr_b32 s{s_tmp}, s2, 3")
    e(f"s_and_b32 s{s_tmp2}, s2, 7")
    e(f"s_lshr_b32 s{s_tmp3}, s{s_tmp2}, 1")
    e(f"s_cmp_lt_u32 s{s_wv}, 4")
    e(f"s_cbranch_scc1 {lx}")
    e(f"s_cmp_eq_u32 s{s_wv}, 4")
    e(f"s_cbranch_scc1 {lk}")
    e(f"s_cmp_eq_u32 s{s_wv}, 5")
    e(f"s_cbranch_scc1 {lq}")
    e(f"s_sub_u32 s{s_tmp4}, s{s_wv}, 6")
    e(f"s_lshl_b32 s{s_tmp4}, s{s_tmp4}, 3")
    e(f"s_lshl_b32 s{s_tmp}, s{s_tmp}, 4")
    e(f"s_add_u32 s{s_tmp}, s{s_tmp}, s{s_tmp4}")
    e(f"s_mul_i32 s{s_tmp}, s{s_tmp}, 2752")
    e(f"s_mul_i32 s{s_tmp3}, s{s_tmp3}, 768")
    e(f"s_add_u32 s{s_tmp}, s{s_tmp}, s{s_tmp3}")
    e(f"v_lshrrev_b32 v{v_t0}, 3, v{v_lane}")
    e(f"s_movk_i32 s{s_tmp4}, 2752")
    e(f"v_mul_u32_u24 v{v_t0}, s{s_tmp4}, v{v_t0}")
    e(f"v_and_b32 v{v_t1}, 7, v{v_lane}")
    e(f"v_min_u32 v{v_t1}, 6, v{v_t1}")
    e(f"v_lshl_add_u32 v{v_t0}, v{v_t1}, 7, v{v_t0}")
    e(f"buffer_load_dword v{T}, v{v_t0}, {srd(sW1)}, s{s_tmp} offen")
    e(f"s_branch {lj}")
    a.label(lx)
    e(f"s_and_b32 s{s_tmp2}, s{s_tmp2}, 1")
    e(f"s_lshl_b32 s{s_tmp2}, s{s_tmp2}, 20")
    e(f"s_lshl_b32 s{s_tmp}, s{s_tmp}, 15")
    e(f"s_add_u32 s{s_tmp}, s{s_tmp}, s{s_tmp2}")
    e(f"s_lshl_b32 s{s_tmp2}, s{s_wv}, 8")
    e(f"s_add_u32 s{s_tmp}, s{s_tmp}, s{s_tmp2}")
    e(f"v_lshrrev_b32 v{v_t0}, 1, v{v_lane}")
    e(f"v_lshlrev_b32 v{v_t0}, 10, v{v_t0}")
    e(f"v_and_b32 v{v_t1}, 1, v{v_lane}")
    e(f"v_lshl_add_u32 v{v_t0}, v{v_t1}, 7, v{v_t0}")
    e(f"buffer_load_dword v{T}, v{v_t0}, {srd(sX)}, s{s_tmp} offen")
    e(f"s_branch {lj}")
    a.label(lk)
    e(f"s_mul_i32 s{s_tmp}, s{s_tmp}, {16*3072}")
    e(f"s_lshl_b32 s{s_tmp3}, s{s_tmp3}, 8")
    e(f"s_add_u32 s{s_tmp}, s{s_tmp}, s{s_tmp3}")
    e(f"s_add_u32 s{s_tmp}, s{s_tmp}, 1024")
    e(f"v_lshrrev_b32 v{v_t0}, 2, v{v_lane}")
    e(f"s_movk_i32 s{s_tmp4}, 3072")
    e(f"v_mul_u32_u24 v{v_t0}, s{s_tmp4}, v{v_t0}")
    e(f"v_and_b32 v{v_t1}, 1, v{v_lane}")
    e(f"v_lshl_add_u32 v{v_t0}, v{v_t1}, 10, v{v_t0}")
    e(f"v_bfe_u32 v{v_t1}, v{v_lane}, 1, 1")
    e(f"v_lshl_add_u32 v{v_t0}, v{v_t1}, 7, v{v_t0}")
    e(f"buffer_load_dword v{T}, v{v_t0}, {srd(sWQ)}, s{s_tmp} offen")
    e(f"s_branch {lj}")
    a.label(lq)
    e(f"s_mul_i32 s{s_tmp}, s{s_tmp}, {16*3072}")
    e(f"s_lshl_b32 s{s_tmp3}, s{s_tmp3}, 8")
    e(f"s_add_u32 s{s_tmp}, s{s_tmp}, s{s_tmp3}")
    e(f"v_bfe_u32 v{v_t0}, v{v_lane}, 1, 4")
    e(f"s_movk_i32 s{s_tmp4}, 3072")
    e(f"v_mul_u32_u24 v{v_t0}, s{s_tmp4}, v{v_t0}")
    e(f"v_and_b32 v{v_t1}, 1, v{v_lane}")
    e(f"v_lshl_add_u32 v{v_t0}, v{v_t1}, 7, v{v_t0}")
    e(f"buffer_load_dword v{T}, v{v_t0}, {srd(sWQ)}, s{s_tmp} offen")
    a.label(lj)
    a.vm.append("TCH")

def touch_l2_s3(a, part, nparts):
    e = a.e
    T = v_xo + 3
    l1 = a.newlabel("Lt3"); lj = a.newlabel("Lt3j")
    n = 64 // nparts
    mask = ((1 << n) - 1) << (n * part)
    e(f"s_lshr_b32 s{s_tmp}, s2, 3")
    e(f"s_lshl_b32 s{s_tmp}, s{s_tmp}, 3")
    e(f"s_add_u32 s{s_tmp}, s{s_tmp}, s{s_wv}")
    e(f"s_mul_i32 s{s_tmp}, s{s_tmp}, {n*128}")
    e(f"s_add_u32 s{s_tmp}, s{s_tmp}, {part * 256 * n * 128 - part*n*128}")
    e(f"v_lshlrev_b32 v{v_t2}, 7, v{v_lane}")
    e(f"s_mov_b32 exec_lo, 0x{mask & 0xffffffff:x}")
    e(f"s_mov_b32 exec_hi, 0x{mask >> 32:x}")
    lim = 1376*1024
    if (part + 1) * 256 * n * 128 <= 0x180000:
        e(f"buffer_load_dword v{T}, v{v_t2}, {srd(sW2)}, s{s_tmp} offen")
    else:
        e(f"s_sub_u32 s{s_tmp}, s{s_tmp}, 0x180000")
        e(f"buffer_load_dword v{T}, v{v_t2}, {srd(sWO)}, s{s_tmp} offen")
    e("s_mov_b64 exec, -1")
    a.vm.append("TCH")

def touch_scalar(a, which):
    e = a.e
    e(f"s_lshl_b32 s{s_tmp}, s2, 3")
    e(f"s_add_u32 s{s_tmp}, s{s_tmp}, s{s_wv}")
    tab = {"x": (sX, 8), "q": (sWQ, 6), "1": (sW1, 6), "2": (sW2, 6), "o": (sWO, 2)}
    for w in which:
        sr, n = tab[w]
        e(f"s_mul_i32 s{s_tmp2}, s{s_tmp}, {n*128}")
        for i in range(n):
            e(f"s_buffer_load_dword s{s_cnt}, {srd(sr)}, s{s_tmp2} offset:{i*128}")

def tlb_warm(a, mode):
    e = a.e
    e(f"s_lshl_b32 s{s_tmp}, s{s_wv}, 21")
    e(f"s_buffer_load_dword s{s_cnt}, {srd(sWS)}, s{s_tmp}")
    e(f"s_add_u32 s{s_tmp}, s{s_tmp}, 0x100000")
    e(f"s_buffer_load_dword s{s_cnt}, {srd(sWS)}, s{s_tmp}")
    e(f"s_lshl_b32 s{s_tmp}, s{s_wv}, 18")
    e(f"s_buffer_load_dword s{s_cnt}, {srd(sOUT)}, s{s_tmp}")
    if mode >= 2:
        e(f"s_buffer_load_dword s{s_cnt}, {srd(sW2)}, s{s_tmp}")
        e(f"s_buffer_load_dword s{s_cnt}, {srd(sWO)}, s{s_tmp}")
        e(f"s_buffer_load_dword s{s_cnt}, {srd(sDBG)}, 128")

def tlb_warm_v(a):
    e = a.e
    l = a.newlabel("Ltlb")
    e(f"s_cmp_lg_u32 s{s_wv}, 7")
    e(f"s_cbranch_scc1 {l}")
    e(f"v_lshlrev_b32 v{v_t2}, 20, v{v_lane}")
    e("s_mov_b64 exec, 0xffff")
    e(f"buffer_load_dword v{v_xo}, v{v_t2}, {srd(sWS)}, 0 offen")
    e("s_mov_b64 exec, 0xff")
    e(f"v_lshlrev_b32 v{v_t2}, 18, v{v_lane}")
    e(f"buffer_load_dword v{v_xo+1}, v{v_t2}, {srd(sOUT)}, 0 offen")
    e("s_mov_b64 exec, -1")
    a.label(l)

HEADER = open(os.path.join(os.path.dirname(os.path.abspath(__file__)), "..", "cdna_kernels", NAME + ".s.ref")).read().split("; Override launch")[0]

def emit_file(path):
    a = gen()
    s = HEADER
    s += "; @launch grid=(256,1,1) block=(512,1,1) lds=163840\n"
    s += f""".amdgcn_target "amdgcn-amd-amdhsa--gfx950"
.text
.globl {NAME}_kernel
.p2align 8
.type {NAME}_kernel,@function
{NAME}_kernel:
"""
    s += "\n".join(a.lines) + "\n"
    s += f""".section .rodata,"a"
.p2align 6
.amdhsa_kernel {NAME}_kernel
  .amdhsa_next_free_vgpr 256
  .amdhsa_next_free_sgpr {NSGPR}
  .amdhsa_accum_offset 256
  .amdhsa_group_segment_fixed_size 0
  .amdhsa_kernarg_size 80
  .amdhsa_user_sgpr_count 2
  .amdhsa_user_sgpr_kernarg_segment_ptr 1
  .amdhsa_system_sgpr_workgroup_id_x 1
.end_amdhsa_kernel
"""
    open(path, "w").write(s)

if __name__ == "__main__":
    out = sys.argv[1] if len(sys.argv) > 1 else os.path.join(os.path.dirname(os.path.abspath(__file__)), "..", "cdna_kernels", NAME + ".s")
    emit_file(out)
```

```python
import sys, math, os, struct

NAME = "gated_mix__sliding_block__dense_activation_relu__prompt"

KF = 0x200000
VF = 0x400000
OF = 0x600000
HF = 0x800000
GB = 0xE00000
FL = 0xF00000
TS = 0xF80000
WS_BYTES = 0x1000000
HROW = 86 * 1024
OOB = 0x40000000
SLOT = 16384

def env(n, d): return int(os.environ.get(n, d))
STAMPS = env("GEN_STAMPS", 0) >= 1
STAMPS2 = env("GEN_STAMPS", 0) >= 2
TOUCH = env("GEN_TOUCH", 2)
NT = env("GEN_NT", 0)
HROT = env("GEN_HROT", 0)
ROT = env("GEN_ROT", 0)

class Asm:
    def __init__(self):
        self.lines = []; self.vm = []; self.uid = 0; self.nstamp = 0
    def e(self, s): self.lines.append("    " + s)
    def label(self, l): self.lines.append(l + ":")
    def c(self, s): self.lines.append("    ; " + s)
    def newlabel(self, p="L"):
        self.uid += 1
        return f"{p}_{self.uid}"
    def vmem(self, s, tag):
        self.e(s); self.vm.append(tag)
    def wait_vm(self, tags, lgkm0=False):
        if isinstance(tags, str): tags = [tags]
        last = -1
        for i, t in enumerate(self.vm):
            if t in tags: last = i
        x = " lgkmcnt(0)" if lgkm0 else ""
        if last < 0:
            if lgkm0: self.e("s_waitcnt lgkmcnt(0)")
            return
        n = len(self.vm) - 1 - last
        assert n <= 63
        self.e(f"s_waitcnt vmcnt({n}){x}")
        self.vm = self.vm[last + 1:]

class Lg:
    def __init__(self, a): self.a = a; self.q = []
    def add(self, tag): self.q.append(tag)
    def wait(self, tags):
        last = -1
        for i, t in enumerate(self.q):
            if t in tags: last = i
        if last < 0: return
        n = min(len(self.q) - 1 - last, 15)
        self.a.e(f"s_waitcnt lgkmcnt({n})")
        self.q = self.q[len(self.q) - n:] if n else []
    def clear(self): self.q = []
    def drain(self):
        if self.q: self.a.e("s_waitcnt lgkmcnt(0)")
        self.q = []

sX, sWQ, sW1, sW2, sWO, sWS, sOUT, sGW, sDBG, sPW = 8, 12, 16, 20, 24, 28, 32, 36, 40, 88
def srd(b): return f"s[{b}:{b+3}]"
s_wv, s_rb, s_cg, s_p, s_t, s_rg, s_cgp, s_rb3, s_cb3, s_xbase = range(44, 54)
s_tmp, s_tmp2, s_wideoff, s_naroff = 54, 55, 56, 57
s_nonce = 58
s_tmp3, s_tmp4, s_st0, s_st1, s_first, s_w2off, s_xlds, s_cnt = range(60, 68)
s_exec = 68
s_m = 70; s_m2 = 72; s_m3 = 74
s_ldsw, s_a3, s_a3o, s_qb = 76, 77, 78, 79
s_vm = 80
s_ts = 82
s_tsb, s_ok, s_ga, s_pstep = 84, 85, 86, 87
s_st2 = 92
s_ldsww = 95
s_gw = 7
s_wbase = 5
GREG = 48
s_fl = 6
s_kvb = 3
s_krd = 4
s_vrdb = 98
s_flh = 99
s_r3 = 101
s_flc = 100
v_kf = 25
NSGPR = 102

v_lane, v_l16 = 1, 2
v_xo = 3
v_wq_n, v_wd0, v_wd1, v_xrd, v_trn, v_trw, v_tr3, v_w2_n = 7, 8, 9, 10, 11, 12, 13, 14
v_t0, v_t1 = 15, 16
v_hi = 17
v_t2, v_t3 = 18, 19
v_non = 20
v_c2 = 20
v_mc = 22
v_g2 = 24
v_omg2 = 26
v_t4, v_t5 = 28, 29
v_trw2, v_tr3b = 30, 31
MASKF = 32
MASKD = 48
BF = 64
ACC = 96
XF = 128
v_fo = 252; v_fd = 254

def vr(b, n): return f"v[{b}:{b+n-1}]"

ORD = os.environ.get("GEN_ORD", "A")
CFG = {
 "A": dict(order=[0,1,2,3,4,5,6,7,8,9,10,11], xslot={0:0,1:4,2:6,3:0}, init={0:2,1:3}, atk=6, atv=4, usplit=4, lg=4,
      sched={0:[("X",2,0),("P",2,8),("P",3,9)], 1:[("X",3,0),("P",4,2)], 2:[("P",5,4),("P",6,5),("P",7,3)],
             3:[("P",8,6),("P",9,7),("P",10,8)], 4:[("P",11,9)], 5:[("Q",0,0),("Q",1,1)], 6:[("Q",2,2)], 9:[("Q",3,3)]},
      sig0=6, kvi=9, kvc=11, post=(8,9), non=2),
 "C": dict(order=[0,1,4,2,5,3,6,7,8,9,10,11], xslot={0:0,1:3,2:8,3:0}, init={0:2,1:5}, atk=3, atv=0, usplit=6, lg=6,
      sched={0:[("P",4,6),("X",2,0),("P",2,7)], 1:[("P",5,2),("X",3,0)], 2:[("P",3,5),("P",6,3),("P",7,4)],
             3:[("P",8,6)], 4:[("P",9,7),("P",10,8),("P",11,9)], 5:[("Q",0,2)], 7:[("Q",1,5)], 10:[("Q",2,6)], 11:[("Q",3,7)]},
      sig0=8, kvi=10, kvc=11, post=(8,9), non=3),
}[ORD]
XSLOT = CFG["xslot"]
ATK = CFG['atk'] * SLOT
ATQ = ATK + 24576
ATV = CFG['atv'] * SLOT

v_st = 27
def stamp(a, final=False):
    if not STAMPS: return
    i = a.nstamp; a.nstamp += 1
    cur = s_ts + 2*(i & 1) if False else (s_ts if (i & 1) == 0 else 96)
    prev = (s_ts if ((i-1) & 1) == 0 else 96)
    if i > 0:
        a.e(f"v_writelane_b32 v{v_st}, s{prev}, {i-1}")
    a.e(f"{'s_memrealtime' if env('GEN_RT',0) else 's_memtime'} s[{cur}:{cur+1}]")
    if final:
        a.e("s_waitcnt lgkmcnt(0)")
        a.e(f"v_writelane_b32 v{v_st}, s{cur}, {i}")
        a.e(f"v_lshlrev_b32 v{v_t3}, 2, v{v_lane}")
        a.e("s_mov_b32 exec_lo, -1")
        a.e("s_mov_b32 exec_hi, 0")
        a.e(f"buffer_store_dword v{v_st}, v{v_t3}, {srd(sWS)}, s{s_tsb} offen")
        if env("GEN_DBG", 0):
            l = a.newlabel("Ldbg")
            a.e(f"s_cmp_lg_u32 s2, {env('GEN_DBG',0)}")
            a.e(f"s_cbranch_scc1 {l}")
            a.e(f"s_cmp_lg_u32 s{s_wv}, 0")
            a.e(f"s_cbranch_scc1 {l}")
            a.e(f"v_readlane_b32 s{s_tmp}, v{v_st}, 0")
            a.e("s_nop 3")
            a.e(f"v_subrev_u32 v{v_st}, s{s_tmp}, v{v_st}")
            a.e("s_mov_b32 exec_lo, 0x3ffe")
            a.e(f"buffer_store_dword v{v_st}, v{v_t3}, {srd(sDBG)}, 0 offen offset:4")
            a.label(l)

def dma(a, voff, srd_b, soff, lds_sgpr, ldsimm, tag, sc1=False):
    a.e(f"s_add_u32 m0, s{lds_sgpr}, {ldsimm}")
    a.e("s_nop 0")
    nt = " nt" if (not sc1 and ((NT & 1) and tag[0] in "XP" or (NT & 2) and tag[0] == "Q")) else ""
    a.vmem(f"buffer_load_dwordx4 v{voff}, {srd(srd_b)}, {soff} offen{' sc1' if sc1 else ''}{nt} lds", tag)

def x_ops(a, j):
    ops = []
    for t in range(4):
        def f(t=t):
            a.e(f"s_add_u32 s{s_tmp}, s{s_xbase}, {t*4096 + j*256}")
            dma(a, v_xo + t, sX, f"s{s_tmp}", s_xlds, XSLOT[j]*SLOT + t*1024, f"X{j}")
        ops.append(f)
    return ops

def piece_ops(a, i, slot):
    ops = []
    for t in range(2):
        if i < 4:
            def f(t=t):
                a.e(f"s_add_u32 s{s_tmp}, s{s_naroff}, {(128*i + 8*t)*3072}")
                dma(a, v_wq_n, sWQ, f"s{s_tmp}", s_ldsw, slot*SLOT + t*1024, f"P{i}")
        else:
            def f(t=t):
                if t == 0:
                    a.e(f"s_mul_i32 s{s_wideoff}, s{s_pstep}, {i-4}")
                    a.e(f"s_add_u32 s{s_wideoff}, s{s_wideoff}, s{s_wbase}")
                a.e(f"s_add_u32 s{s_tmp}, s{s_ldsw}, {slot*SLOT + t*1024}")
                a.e(f"s_max_u32 m0, s{s_tmp}, s{s_ldsww}")
                a.e("s_nop 0")
                a.vmem(f"buffer_load_dwordx4 v{v_wd0 + t}, {srd(sPW)}, s{s_wideoff} offen{' nt' if NT & 1 else ''} lds", f"P{i}")
                if t == 1:
                    l = a.newlabel("Lgw")
                    a.e(f"s_cmp_eq_u32 s{s_gw}, 0")
                    a.e(f"s_cbranch_scc1 {l}")
                    a.e(f"v_add_u32 v{v_t2}, {slot*SLOT + 4096 + 128}, v{v_g2}")
                    a.e(f"ds_write_b16 v{v_t2}, v{GREG + i - 4}")
                    a.label(l)
        ops.append(f)
    return ops

def w2_ops(a, i, slot):
    ops = []
    for t in range(2):
        def f(t=t):
            srdb, r0 = (sW2, 128*i) if i <= 10 else (sWO, 128*(i-11))
            if HROT and i <= 10:
                a.e(f"s_add_u32 s{s_tmp}, s{s_p}, {r0*1024}")
                a.e(f"s_sub_u32 s{s_tmp2}, s{s_tmp}, {11*128*1024}")
                a.e(f"s_cselect_b32 s{s_tmp}, s{s_tmp}, s{s_tmp2}")
                a.e(f"s_add_u32 s{s_tmp}, s{s_tmp}, s{s_w2off}")
                if t: a.e(f"s_add_u32 s{s_tmp}, s{s_tmp}, {8*1024}")
            else:
                a.e(f"s_add_u32 s{s_tmp}, s{s_w2off}, {(r0 + 8*t) * 1024}")
            dma(a, v_w2_n, srdb, f"s{s_tmp}", s_ldsw, slot*SLOT + t*1024, f"Q{i}")
        ops.append(f)
    return ops

def issue_x_quarter(a, j):
    for f in x_ops(a, j): f()
def issue_piece(a, i, slot):
    for f in piece_ops(a, i, slot): f()
def issue_w2_piece(a, i, slot):
    for f in w2_ops(a, i, slot): f()

def mfma(a, d, x, y, c):
    cs = c if isinstance(c, str) else vr(c, 16)
    a.e(f"v_mfma_f32_32x32x16_bf16 {vr(d,16)}, {vr(x,4)}, {vr(y,4)}, {cs}")

def pack_tile(a, acc, pk, relu):
    for q in range(8):
        a.e(f"v_cvt_pk_bf16_f32 v{pk+q}, v{acc+2*q}, v{acc+2*q+1}")
    if relu:
        for q in range(8):
            a.e(f"v_pk_max_i16 v{pk+q}, v{pk+q}, 0")

def store_pk(a, pk, soff_sgpr, tag):
    a.vmem(f"buffer_store_dwordx4 {vr(pk,4)}, v{v_l16}, {srd(sWS)}, s{soff_sgpr} offen sc1", tag)
    a.vmem(f"buffer_store_dwordx4 {vr(pk+4,4)}, v{v_l16}, {srd(sWS)}, s{soff_sgpr} offen offset:1024 sc1", tag)

def signal(a, phase):
    l = a.newlabel("Lsig")
    a.e(f"s_cmp_lg_u32 s{s_wv}, 0")
    a.e(f"s_cbranch_scc1 {l}")
    a.e(f"v_mov_b32 v{v_t2}, s{s_nonce}")
    a.e(f"v_mov_b32 v{v_t3}, s{s_nonce+1}")
    a.e(f"v_mov_b32 v{v_t1}, {phase*32768}")
    a.e("s_mov_b64 exec, 1")
    a.e(f"buffer_store_dwordx2 v[{v_t2}:{v_t3}], v{v_t1}, {srd(sWS)}, s{s_fl} offen sc1")
    a.e("s_mov_b64 exec, -1")
    a.label(l)

def signal_wave(a):
    a.e(f"v_mov_b32 v{v_t2}, s{s_nonce}")
    a.e(f"v_mov_b32 v{v_t3}, s{s_nonce+1}")
    a.e(f"v_mov_b32 v{v_t1}, 0")
    a.e("s_mov_b64 exec, 1")
    a.vmem(f"buffer_store_dwordx2 v[{v_t2}:{v_t3}], v{v_t1}, {srd(sWS)}, s{s_flh} offen sc1", "SIGH")
    a.e("s_mov_b64 exec, -1")

def cmp_flags4(a, vd):
    a.e(f"v_xor_b32 v{vd}, s{s_nonce}, v{vd}")
    a.e(f"v_xor_b32 v{vd+1}, s{s_nonce+1}, v{vd+1}")
    a.e(f"v_xor_b32 v{vd+2}, s{s_nonce}, v{vd+2}")
    a.e(f"v_xor_b32 v{vd+3}, s{s_nonce+1}, v{vd+3}")
    a.e(f"v_or3_b32 v{vd}, v{vd}, v{vd+1}, v{vd+2}")
    a.e(f"v_or_b32 v{vd}, v{vd}, v{vd+3}")
    a.e(f"v_cmp_ne_u32 vcc, 0, v{vd}")
    a.e("s_nop 3")
    a.e("s_cmp_eq_u64 vcc, 0")

def hflag_issue(a, track=True):
    ins = f"buffer_load_dwordx4 v[252:255], v{v_l16}, {srd(sWS)}, s{s_flc} offen sc1"
    (a.vmem(ins, "FH") if track else a.e(ins))

def hpoll(a):
    lp = a.newlabel("Lpoll"); ld = a.newlabel("Lpolld")
    a.e(f"s_mov_b32 s{s_cnt}, 0")
    a.label(lp)
    hflag_issue(a, False)
    a.e("s_waitcnt vmcnt(0)")
    cmp_flags4(a, 252)
    a.e(f"s_cbranch_scc1 {ld}")
    a.e("s_sleep 1")
    a.e(f"s_add_u32 s{s_cnt}, s{s_cnt}, 1")
    a.e(f"s_cmp_lt_u32 s{s_cnt}, 100000")
    a.e(f"s_cbranch_scc1 {lp}")
    a.label(ld)

def cmp_flags(a, vd):
    a.e(f"v_cmp_eq_u32 s[{s_m2}:{s_m2+1}], s{s_nonce}, v{vd}")
    a.e(f"v_cmp_eq_u32 s[{s_m3}:{s_m3+1}], s{s_nonce+1}, v{vd+1}")
    a.e("s_nop 3")
    a.e(f"s_and_b64 s[{s_m2}:{s_m2+1}], s[{s_m2}:{s_m2+1}], s[{s_m3}:{s_m3+1}]")
    a.e(f"s_and_b64 s[{s_m2}:{s_m2+1}], s[{s_m2}:{s_m2+1}], s[{s_m}:{s_m+1}]")
    a.e(f"s_cmp_eq_u64 s[{s_m2}:{s_m2+1}], s[{s_m}:{s_m+1}]")

def poll(a, voff):
    lp = a.newlabel("Lpoll"); ld = a.newlabel("Lpolld")
    a.e(f"s_mov_b32 s{s_cnt}, 0")
    a.label(lp)
    a.e(f"buffer_load_dwordx2 v[{v_t2}:{v_t3}], v{voff}, {srd(sWS)}, 0 offen sc1")
    a.e("s_waitcnt vmcnt(0)")
    cmp_flags(a, v_t2)
    a.e(f"s_cbranch_scc1 {ld}")
    a.e("s_sleep 1")
    a.e(f"s_add_u32 s{s_cnt}, s{s_cnt}, 1")
    a.e(f"s_cmp_lt_u32 s{s_cnt}, 100000")
    a.e(f"s_cbranch_scc1 {lp}")
    a.label(ld)

def flag_issue(a, voff, vdst, tag, track=True):
    ins = f"buffer_load_dwordx2 v[{vdst}:{vdst+1}], v{voff}, {srd(sWS)}, 0 offen sc1"
    (a.vmem(ins, tag) if track else a.e(ins))

def flag_check(a, vdst, tag, track=True):
    if track: a.wait_vm(tag)
    else: a.e("s_waitcnt vmcnt(0)")
    cmp_flags(a, vdst)

def get_nonce(a):
    a.wait_vm("NON")
    lp = a.newlabel("Lnp"); ld = a.newlabel("Lnd")
    a.e(f"s_mov_b32 s{s_cnt}, 0")
    a.label(lp)
    a.e(f"v_readfirstlane_b32 s{s_nonce}, v{v_non}")
    a.e(f"v_readfirstlane_b32 s{s_nonce+1}, v{v_non+1}")
    a.e("s_nop 3")
    a.e(f"s_cmp_lg_u32 s{s_nonce}, 0")
    a.e(f"s_cbranch_scc1 {ld}")
    a.e("s_sleep 2")
    a.e(f"v_mov_b32 v{v_t2}, 0")
    a.e(f"buffer_load_dwordx2 v[{v_non}:{v_non+1}], v{v_t2}, {srd(sDBG)}, 0 offen sc1")
    a.e("s_waitcnt vmcnt(0)")
    a.e(f"s_add_u32 s{s_cnt}, s{s_cnt}, 1")
    a.e(f"s_cmp_lt_u32 s{s_cnt}, 100000")
    a.e(f"s_cbranch_scc1 {lp}")
    a.label(ld)

def kv_flag_setup(a):
    e = a.e
    e(f"s_lshl_b32 s{s_tmp}, s{s_rb}, 4")
    e(f"s_add_u32 s{s_fl}, s{s_tmp}, s{s_cg}")
    e(f"s_lshl_b32 s{s_fl}, s{s_fl}, 7")
    e(f"s_add_u32 s{s_fl}, s{s_fl}, {FL}")
    e(f"s_lshl_b32 s{s_tmp2}, s{s_p}, 1")
    e(f"s_add_u32 s{s_tmp}, s{s_tmp}, s{s_tmp2}")
    e(f"v_lshrrev_b32 v{v_kf}, 1, v{v_lane}")
    e(f"v_lshlrev_b32 v{v_kf}, 4, v{v_kf}")
    e(f"v_sub_u32 v{v_kf}, s{s_tmp}, v{v_kf}")
    e(f"v_and_b32 v{v_t0}, 1, v{v_lane}")
    e(f"v_add_u32 v{v_kf}, v{v_kf}, v{v_t0}")
    e(f"v_and_b32 v{v_kf}, 255, v{v_kf}")
    e(f"v_lshlrev_b32 v{v_kf}, 7, v{v_kf}")
    e(f"v_add_u32 v{v_kf}, {FL}, v{v_kf}")
    e(f"s_mov_b32 s{s_m}, 63")
    e(f"s_cmp_eq_u32 s{s_rb}, 1")
    e(f"s_cselect_b32 s{s_m}, 15, s{s_m}")
    e(f"s_cmp_eq_u32 s{s_rb}, 0")
    e(f"s_cselect_b32 s{s_m}, 3, s{s_m}")
    e(f"s_mov_b32 s{s_m+1}, 0")
    e(f"s_lshl_b32 s{s_tmp3}, s{s_cg}, 6")
    e(f"s_lshl_b32 s{s_tmp4}, s{s_rb}, 2")
    e(f"s_add_u32 s{s_tmp3}, s{s_tmp3}, s{s_tmp4}")
    e(f"s_lshl_b32 s{s_tmp3}, s{s_tmp3}, 11")
    e(f"s_mul_i32 s{s_tmp4}, s{s_wv}, 3072")
    e(f"s_add_u32 s{s_kvb}, s{s_tmp3}, s{s_tmp4}")
    e(f"s_lshl_b32 s{s_tmp}, s{s_rg}, 11")
    e(f"s_lshl_b32 s{s_tmp2}, s{s_cgp}, 10")
    e(f"s_add_u32 s{s_tmp2}, s{s_tmp2}, s{s_tmp}")
    e(f"s_add_u32 s{s_krd}, s{s_tmp2}, {ATK}")
    e(f"s_lshl_b32 s{s_tmp2}, s{s_cgp}, 8")
    e(f"s_add_u32 s{s_tmp2}, s{s_tmp2}, s{s_tmp}")
    e(f"s_add_u32 s{s_vrdb}, s{s_tmp2}, {ATV}")
    e(f"s_lshl_b32 s{s_qb}, s{s_rb}, 2")
    e(f"s_add_u32 s{s_qb}, s{s_qb}, s{s_rg}")
    e(f"s_sub_i32 s{s_first}, 8, s{s_qb}")
    e(f"s_max_i32 s{s_first}, s{s_first}, 0")
    e(f"s_mov_b32 s{s_vm}, 0xffff")
    e(f"s_mov_b32 s{s_vm+1}, 0xffff")
    s3_addr_setup(a)
    e(f"s_lshl_b32 s{s_tmp}, s{s_cg}, 3")
    e(f"s_add_u32 s{s_tmp}, s{s_tmp}, s{s_wv}")
    e(f"s_lshl_b32 s{s_tmp}, s{s_tmp}, 3")
    e(f"s_lshl_b32 s{s_flh}, s{s_rb}, 10")
    e(f"s_add_u32 s{s_flh}, s{s_flh}, s{s_tmp}")
    e(f"s_add_u32 s{s_flh}, s{s_flh}, {FL + 32768}")
    e(f"s_lshr_b32 s{s_flc}, s{s_rb3}, 1")
    e(f"s_lshl_b32 s{s_flc}, s{s_flc}, 10")
    e(f"s_add_u32 s{s_flc}, s{s_flc}, {FL + 32768}")

def kv_ops(a, guard=True):
    ops = []
    for reg, lds, tag in ((KF, ATK, "AK"), (VF, ATV, "AV")):
        for i in range(3):
            def f(reg=reg, lds=lds, tag=tag, i=i):
                l = None
                if guard:
                    l = a.newlabel("Lkvg")
                    a.e(f"s_cmp_eq_u32 s{s_ok}, 0")
                    a.e(f"s_cbranch_scc1 {l}")
                a.e(f"s_mul_i32 s{s_tmp4}, s{s_wv}, 3072")
                a.e(f"s_add_u32 s{s_tmp}, s{s_kvb}, {reg - 16384 + i*1024}")
                dma(a, v_l16, sWS, f"s{s_tmp}", s_tmp4, lds + i*1024, tag, sc1=True)
                if l: a.label(l)
            ops.append(f)
    return ops

def issue_kv(a, which, track=True):
    sv = list(a.vm)
    for f in kv_ops(a, guard=False): f()
    if not track: a.vm = sv

def s1_items(pieces, slot_of):
    items = []
    for i in pieces:
        sl = slot_of[i]
        if i < 4:
            for s in range(8):
                items.append(dict(pc=i, ks=8*i + s, tl=0, vb=v_trn, off=s*2048, sec=512, sl=sl, xs=s))
        else:
            j = i - 4
            for s in range(4):
                for tl in range(2):
                    items.append(dict(pc=i, ks=4*j + s, tl=tl, vb=(v_trw2 if tl else v_trw), off=None, s=s, sl=sl, xs=None))
    return items

def stage1(a, isv):
    raise NotImplementedError

ORDER = CFG['order']
T3U = env('GEN_T3U', 99)
FLUSH = 1
USPLIT = CFG['usplit']

class S1:
    D = env('GEN_D', 5)
    def __init__(self, a):
        self.a = a; self.lg = Lg(a); self.n = 0
        self.fifo = []
        self.slot_of = dict(CFG["init"])
        self.w2_slot = {}
        self.base = {}
        self.sched = CFG["sched"]
    def sync(self, u, extra_need=(), hook=None):
        a = self.a
        i = ORDER[u]
        need = [f"P{i}"] + ([f"X{i}"] if i < 4 else []) + list(extra_need)
        if FLUSH: self.pump(len(self.fifo))
        if u <= CFG['lg']:
            a.wait_vm(need, lgkm0=True)
            self.lg.clear()
        else:
            a.wait_vm(need)
        a.e("s_barrier")
        if STAMPS2: stamp(a)
        if hook: hook()
        for kind, pc, sl in self.sched.get(u, []):
            if kind == "P": self.slot_of[pc] = sl; self.fifo += piece_ops(a, pc, sl)
            elif kind == "X": self.fifo += x_ops(a, pc)
            else: self.w2_slot[pc] = sl; self.fifo += w2_ops(a, pc, sl)
        self.base = {}
    def pump(self, n=1):
        for _ in range(n):
            if self.fifo: self.fifo.pop(0)()
    def read(self, it):
        a = self.a
        b = BF + (it["n"] % 8) * 4
        sl = it["sl"]
        if it["xs"] is not None:
            s = it["xs"]; xq = it["pc"]
            r = v_t0 + (s & 1)
            a.e(f"v_xor_b32 v{r}, {s*32}, v{v_xrd}")
            off = XSLOT[xq]*SLOT
            if off > 65535:
                a.e(f"v_add_u32 v{r}, {off}, v{r}"); off = 0
            a.e(f"ds_read_b128 {vr(XF + it['ks']*4, 4)}, v{r} offset:{off}")
            self.lg.add(("x", it["ks"]))
        vb = it["vb"]
        if it["pc"] < 4:
            off, sec = it["off"], it["sec"]
            o = sl*SLOT + off
            if o + sec > 65535:
                if vb not in self.base:
                    a.e(f"v_add_u32 v{v_t4}, {sl*SLOT}, v{vb}"); self.base[vb] = v_t4
                vb = self.base[vb]; o = off
            a.e(f"ds_read_b64_tr_b16 {vr(b,2)}, v{vb} offset:{o}")
            a.e(f"ds_read_b64_tr_b16 {vr(b+2,2)}, v{vb} offset:{o + sec}")
        else:
            s = it["s"]; tl = it["tl"]
            if tl == 1:
                o = sl*SLOT + s*16*192; sec = 4*192
                if o + sec > 65535 - 16384:
                    if vb not in self.base:
                        a.e(f"v_add_u32 v{v_t5}, {sl*SLOT}, v{vb}"); self.base[vb] = v_t5
                    vb = self.base[vb]; o = s*16*192
                a.e(f"ds_read_b64_tr_b16 {vr(b,2)}, v{vb} offset:{o}")
                a.e(f"ds_read_b64_tr_b16 {vr(b+2,2)}, v{vb} offset:{o + sec}")
            else:
                if s == 0:
                    a.e(f"v_add_u32 v{v_t4}, {sl*SLOT}, v{v_trw}")
                    a.e(f"v_add_u32 v{v_t0}, {sl*SLOT}, v{v_omg2}")
                else:
                    a.e(f"v_add_u32 v{v_t4}, s{s_k16}, v{v_t4}")
                    a.e(f"v_add_u32 v{v_t0}, s{s_k16}, v{v_t0}")
                a.e(f"ds_read_b64_tr_b16 {vr(b,2)}, v{v_t4}")
                a.e(f"ds_read_b64_tr_b16 {vr(b+2,2)}, v{v_t0}")
        self.lg.add(("b", it["n"])); self.lg.add(("b", it["n"]))
    def mm(self, it, isv):
        a = self.a
        self.lg.wait([("b", it["n"]), ("x", it["ks"])])
        b = BF + (it["n"] % 8) * 4
        if it["pc"] < 4:
            acc = ACC2
            cin = "0" if it["ks"] == 0 else acc
            if isv: mfma(a, acc, XF + it["ks"]*4, b, cin)
            else: mfma(a, acc, b, XF + it["ks"]*4, cin)
        else:
            acc = ACC + 16*it["tl"]
            cin = "0" if it["ks"] == 0 else acc
            mfma(a, acc, b, XF + it["ks"]*4, cin)

ACC2 = MASKF
s_k16 = 93

def build_maskd(a):
    e = a.e
    e(f"v_and_b32 v{v_t2}, 31, v{v_lane}")
    e(f"v_lshlrev_b32 v{v_t3}, 2, v{v_hi}")
    e(f"v_sub_u32 v{v_t2}, v{v_t2}, v{v_t3}")
    e(f"v_mov_b32 v{v_t3}, 0xf149f2ca")
    for r in range(16):
        cr = (r & 3) + 8 * (r >> 2)
        e(f"v_cmp_gt_i32 vcc, {cr}, v{v_t2}")
        e("s_nop 1")
        e(f"v_cndmask_b32 v{MASKD+r}, 0, v{v_t3}, vcc")

PRE = env("GEN_PRE", 2)
def run_stage1(a):
    e = a.e
    a.c("================ stage 1 ================")
    D = S1.D
    base_lines = a.lines
    outs = []
    ns0 = a.nstamp; vm0 = list(a.vm)
    state = {}
    def hook(u, st):
        if u == 1 and TOUCH >= 2 and TOUCH not in (7, 9): touch(a, (sW2, sWO), 240)
        if T3U <= u < T3U + 4: st.fifo.append(lambda u=u: touch_l2_s3(a, u - T3U, 4))
        if u == env("GEN_TLBV", 3): tlb_warm_v(a)
        if u == CFG['non']:
            a.e(f"v_mov_b32 v{v_t2}, 0")
            a.vmem(f"buffer_load_dwordx2 v[{v_non}:{v_non+1}], v{v_t2}, {srd(sDBG)}, 0 offen sc1", "NON")
        if u == SIG0:
            get_nonce(a); signal(a, 0)
        VE = env("GEN_VE", 0)
        if u == CFG["kvi"] - VE:
            flag_issue(a, v_kf, v_non + 2, "FKV")
        if u == CFG["kvc"] - VE:
            flag_check(a, v_non + 2, "FKV")
            a.e(f"s_cselect_b32 s{s_ok}, 1, 0")
            ops = kv_ops(a)
            if VE: st.fifo = ops[3:] + st.fifo
            else: st.fifo = ops + st.fifo
        if VE and u == CFG["kvc"]:
            st.fifo = kv_ops(a)[:3] + st.fifo
    def do_mm(st, pend, isv):
        it = pend.pop(0)
        st.mm(it, isv)
        if it["pc"] == 3 and it["ks"] == 31: state["kvdone"] = 0
        elif "kvdone" in state:
            state["kvdone"] += 1
            if state["kvdone"] == 2:
                a.e("s_nop 7")
                pack_tile(a, ACC2, ACC2, False)
                store_pk(a, ACC2, s_st0, "ST0")
        st.pump(1)
    def unit(st, u, pend, n, isv, q0=0, q1=8, items=None):
        pc = ORDER[u]
        if items is None:
            if u <= CFG["lg"]:
                for _ in range(min(PRE, len(pend))): do_mm(st, pend, isv)
            st.sync(u, ["ST0"] if u == SIG0 else [], lambda: hook(u, st))
            items = s1_items([pc], st.slot_of)
            for it in items: it["n"] = n; n += 1
        for q in range(q0, q1):
            st.read(items[q]); pend.append(items[q])
            if len(pend) > D: do_mm(st, pend, isv)
            elif q % 2 == 1 and len(pend) > 2 and u > 0 and pend[0]["pc"] != pc: do_mm(st, pend, isv)
        return n, items
    for isv in (0, 1):
        a.lines = []; a.vm = list(vm0); a.nstamp = ns0; state.clear()
        st = S1(a)
        if isv: a.label("L_s1v")
        pend = []; n = 0
        for u in range(0, USPLIT):
            n, _ = unit(st, u, pend, n, isv)
        n, items = unit(st, USPLIT, pend, n, isv, 0, 0)
        q = 0
        while any(it["pc"] < 4 for it in pend):
            unit(st, USPLIT, pend, n, isv, q, q + 1, items); q += 1
            if q >= 8:
                while any(it["pc"] < 4 for it in pend): do_mm(st, pend, isv)
        st.pump(len(st.fifo))
        if not isv: a.e("s_branch L_s1w")
        outs.append((a.lines, list(a.vm), st, pend, n, items, q, dict(state)))
    assert outs[0][1] == outs[1][1]
    a.lines = base_lines + outs[0][0] + outs[1][0]
    _, vm, st, pend, n, items_s, q0, stt = outs[1]
    a.vm = vm
    a.label("L_s1w")
    unit(st, USPLIT, pend, n, 0, q0, 8, items_s)
    for u in range(USPLIT + 1, 12):
        n, _ = unit(st, u, pend, n, 0)
    while pend: do_mm(st, pend, 0)
    st.pump(len(st.fifo))
    e("s_nop 7"); e("s_nop 3")
    gate(a)
    pack_tile(a, ACC + 16, BF + 8, True)
    store_pk(a, BF + 8, s_st2, "ST1")
    pack_tile(a, ACC, BF, False)
    l = a.newlabel("Lq"); l2 = a.newlabel("Lqd")
    e(f"s_cmp_eq_u32 s{s_cgp}, 0")
    e(f"s_cbranch_scc1 {l}")
    for q in range(8): e(f"v_pk_max_i16 v{BF+q}, v{BF+q}, 0")
    a.label(l)
    store_pk(a, BF, s_st1, "ST1")
    return st.w2_slot

SIG0 = CFG['sig0']

def gate(a):
    e = a.e
    l = a.newlabel("Lgate")
    e(f"s_cmp_lg_u32 s{s_cg}, 15")
    e(f"s_cbranch_scc1 {l}")
    e(f"s_cmp_lg_u32 s{s_cgp}, 1")
    e(f"s_cbranch_scc1 {l}")
    e(f"v_cvt_pk_bf16_f32 v{v_t1}, v{ACC+16}, v{ACC+16}")
    e(f"v_lshlrev_b32 v{v_t1}, 16, v{v_t1}")
    e(f"v_mul_f32 v{v_t1}, 0xbfb8aa3b, v{v_t1}")
    e(f"v_exp_f32 v{v_t1}, v{v_t1}")
    e("s_nop 0")
    e(f"v_add_f32 v{v_t1}, 1.0, v{v_t1}")
    e(f"v_rcp_f32 v{v_t1}, v{v_t1}")
    e("s_nop 0")
    e(f"v_cvt_pk_bf16_f32 v{v_t1}, v{v_t1}, v{v_t1}")
    e(f"v_lshlrev_b32 v{v_t1}, 16, v{v_t1}")
    e(f"v_lshlrev_b32 v{v_t0}, 2, v{v_lane}")
    e(f"s_lshl_b32 s{s_tmp}, s{s_rb}, 2")
    e(f"s_add_u32 s{s_tmp}, s{s_tmp}, s{s_rg}")
    e(f"s_lshl_b32 s{s_tmp}, s{s_tmp}, 7")
    e(f"s_add_u32 s{s_tmp}, s{s_tmp}, {GB}")
    e(f"s_mov_b64 s[{s_exec}:{s_exec+1}], exec")
    e("s_mov_b32 exec_lo, -1")
    e("s_mov_b32 exec_hi, 0")
    e(f"buffer_store_dword v{v_t1}, v{v_t0}, {srd(sWS)}, s{s_tmp} offen sc1")
    e(f"s_mov_b64 exec, s[{s_exec}:{s_exec+1}]")
    a.label(l)

def Sreg(b):
    if b == 0: return MASKF
    if b == 8: return MASKD
    return 64 + 16*(b-1)
KFR = 176; QFR = 212; VROT = 216; OACC = 232
v_max = 248; v_max2 = 249; v_vrd = 250; v_krd = 251

def AFreg(n):
    if n < 10: return 176 + 4*n
    if n < 14: return 48 + 4*(n-10)
    if n < 18: return 160 + 4*(n-14)
    return 144 + 4*(n-18)
def AOreg(n):
    return 128 + 4*n if n < 4 else 32 + 4*(n-4)
BF3 = 64; ACB = 96; ACA = 216

def s3_addr_setup(a):
    e = a.e
    e(f"s_lshl_b32 s{s_tmp3}, s{s_rb3}, 1")
    e(f"s_add_u32 s{s_tmp3}, s{s_tmp3}, s{s_cgp}")
    e(f"s_mul_i32 s{s_a3}, s{s_tmp3}, {HROW}")
    e(f"s_lshl_b32 s{s_tmp}, s{s_rg}, 10")
    if HROT:
        e(f"s_mul_i32 s{s_r3}, s{s_cb3}, 11")
        e(f"s_lshr_b32 s{s_r3}, s{s_r3}, 3")
        e(f"s_lshl_b32 s{s_p}, s{s_r3}, 17")
        e(f"s_lshl_b32 s{s_r3}, s{s_r3}, 13")
        e(f"s_add_u32 s{s_r3}, s{s_r3}, s{s_tmp}")
    else:
        e(f"s_add_u32 s{s_a3}, s{s_a3}, s{s_tmp}")
    e(f"s_add_u32 s{s_a3}, s{s_a3}, {HF}")
    e(f"s_lshl_b32 s{s_a3o}, s{s_tmp3}, 15")
    e(f"s_add_u32 s{s_a3o}, s{s_a3o}, s{s_tmp}")
    e(f"s_add_u32 s{s_a3o}, s{s_a3o}, {OF}")
    e(f"s_lshl_b32 s{s_ga}, s{s_tmp3}, 7")
    e(f"s_add_u32 s{s_ga}, s{s_ga}, {GB}")

def h_loads(a, ns, track=True):
    e = a.e
    for n in ns:
        if n == "g":
            e(f"v_and_b32 v{v_t0}, 31, v{v_lane}")
            e(f"v_lshlrev_b32 v{v_t0}, 2, v{v_t0}")
            ins = f"buffer_load_dword v{v_g2}, v{v_t0}, {srd(sWS)}, s{s_ga} offen sc1"
            (a.vmem(ins, "G") if track else e(ins))
            continue
        if HROT:
            e(f"s_add_u32 s{s_tmp}, s{s_r3}, {n*4096}")
            e(f"s_sub_u32 s{s_tmp2}, s{s_tmp}, {22*4096}")
            e(f"s_cselect_b32 s{s_tmp}, s{s_tmp}, s{s_tmp2}")
            e(f"s_cmp_ge_u32 s{s_tmp}, {HROW}")
            e(f"s_cselect_b32 s{s_tmp}, {OOB}, s{s_tmp}")
            e(f"s_add_u32 s{s_tmp}, s{s_tmp}, s{s_a3}")
        else:
            e(f"s_add_u32 s{s_tmp}, s{s_a3}, {n*4096}")
            if n == 21:
                e(f"s_cmp_ge_u32 s{s_rg}, 2")
                e(f"s_cselect_b32 s{s_tmp}, {OOB}, s{s_tmp}")
        ins = f"buffer_load_dwordx4 {vr(AFreg(n),4)}, v{v_l16}, {srd(sWS)}, s{s_tmp} offen sc1"
        (a.vmem(ins, f"H{n}") if track else e(ins))

def guarded_h_loads(a, ns, track=True):
    l = a.newlabel("Lhl")
    a.e(f"s_cmp_eq_u32 s{s_ok}, 0")
    a.e(f"s_cbranch_scc1 {l}")
    h_loads(a, ns, track)
    a.label(l)

def flags16(a, phase, vdst):
    e = a.e
    e(f"s_lshr_b32 s{s_tmp}, s{s_rb3}, 1")
    e(f"s_lshl_b32 s{s_tmp}, s{s_tmp}, 11")
    e(f"s_add_u32 s{s_tmp}, s{s_tmp}, {FL + phase*32768}")
    e(f"v_and_b32 v{vdst}, 15, v{v_lane}")
    e(f"v_lshlrev_b32 v{vdst}, 7, v{vdst}")
    e(f"v_add_u32 v{vdst}, s{s_tmp}, v{vdst}")
    e(f"s_mov_b32 s{s_m}, 0xffff")
    e(f"s_mov_b32 s{s_m+1}, 0")

SIGB = env('GEN_SIGB', 1)
HB_ISSUE, HB_CHECK = env("GEN_HBI", 5), env("GEN_HBC", 3)

def attention(a, slot_of):
    e = a.e
    a.c("================ attention ================")
    e(f"s_lshl_b32 s{s_tmp}, s{s_rg}, 10")
    e(f"s_add_u32 s{s_tmp}, s{s_tmp}, {ATQ}")
    e(f"v_add_u32 v{v_t0}, s{s_tmp}, v{v_l16}")
    l = a.newlabel("Lqx")
    e(f"s_cmp_lg_u32 s{s_cgp}, 0")
    e(f"s_cbranch_scc1 {l}")
    e(f"ds_write_b128 v{v_t0}, {vr(BF+4,4)}")
    for i in range(4): e(f"v_mov_b32 v{QFR+i}, v{BF+i}")
    a.label(l)
    l = a.newlabel("Lkvok")
    e(f"s_cmp_lg_u32 s{s_ok}, 0")
    e(f"s_cbranch_scc1 {l}")
    poll(a, v_kf)
    issue_kv(a, "KV", track=False)
    e("s_waitcnt vmcnt(0)")
    a.label(l)
    l = a.newlabel("Lgm")
    e(f"s_cmp_eq_u32 s{s_gw}, 0")
    e(f"s_cbranch_scc1 {l}")
    build_maskd(a)
    a.label(l)
    stamp(a)
    e(f"v_add_u32 v{v_krd}, s{s_krd}, v{v_l16}")
    e(f"v_mov_b32 v{v_t3}, 0xf149f2ca")
    for r in range(16):
        e(f"v_sub_f32 v{MASKF+r}, v{v_t3}, v{MASKD+r}")
    a.wait_vm(["AK", "AV"], lgkm0=True)
    e("s_barrier")
    stamp(a)
    lg = Lg(a)
    l = a.newlabel("Lqr")
    e(f"s_cmp_eq_u32 s{s_cgp}, 0")
    e(f"s_cbranch_scc1 {l}")
    e(f"ds_read_b128 {vr(QFR,4)}, v{v_t0}")
    a.label(l)
    for b in range(8, -1, -1):
        e(f"ds_read_b128 {vr(KFR+4*b,4)}, v{v_krd} offset:{b*2048}"); lg.add(("k", b))
    fill = []
    for pc, sl in zip((4, 5), CFG["post"]):
        slot_of[pc] = sl; fill += w2_ops(a, pc, sl)
    c = 0.25 * math.log2(math.e)
    cbits = struct.unpack("<I", struct.pack("<f", c))[0]
    misc = [f"v_mov_b32 v{VROT+i}, 0x3f803f80" for i in range(16)]
    misc += [f"v_mov_b32 v{v_c2}, 0x{cbits:08x}", f"v_mov_b32 v{v_c2+1}, 0x{cbits:08x}", f"v_add_u32 v{v_vrd}, s{s_vrdb}, v{v_l16}"]
    for b in range(8, -1, -1):
        lg.wait([("k", b)])
        S = Sreg(b)
        mfma(a, S, KFR + 4*b, QFR, S if b in (0, 8) else "0")
        for _ in range(3):
            if misc: e(misc.pop(0))
        if fill and b % 2 == 0: fill.pop(0)()
    while misc: e(misc.pop(0))
    while fill: fill.pop(0)()
    if SIGB == 1:
        a.wait_vm("ST1"); signal_wave(a)
    lmax = a.newlabel("Lmaxd")
    e("s_nop 4")
    for b in range(8, -1, -1):
        S = Sreg(b)
        if b < 8:
            e(f"s_cmp_gt_u32 s{s_first}, {b}")
            e(f"s_cbranch_scc1 {lmax}")
        for q in range(8):
            if b == 8 and q == 0:
                e(f"v_max_f32 v{v_max}, v{S}, v{S+1}")
            else:
                e(f"v_max3_f32 v{v_max}, v{S+2*q}, v{S+2*q+1}, v{v_max}")
    a.label(lmax)
    e(f"v_mov_b32 v{v_max2}, v{v_max}")
    e("s_nop 1")
    e(f"v_permlane32_swap_b32 v{v_max}, v{v_max2}")
    e("s_nop 1")
    e(f"v_max_f32 v{v_max}, v{v_max}, v{v_max2}")
    e(f"v_mul_f32 v{v_mc}, v{v_c2}, v{v_max}")
    e(f"v_sub_f32 v{v_mc}, 0, v{v_mc}")
    e(f"v_mov_b32 v{v_mc+1}, v{v_mc}")
    if SIGB == 2:
        a.wait_vm("ST1"); signal_wave(a)
    def softmax_block(b):
        S = Sreg(b)
        for q in range(8):
            e(f"v_pk_fma_f32 v[{S+2*q}:{S+2*q+1}], v[{S+2*q}:{S+2*q+1}], v[{v_c2}:{v_c2+1}], v[{v_mc}:{v_mc+1}]")
        for r in range(16):
            e(f"v_exp_f32 v{S+r}, v{S+r}")
        for q in range(8):
            e(f"v_cvt_pk_bf16_f32 v{S+q}, v{S+2*q}, v{S+2*q+1}")
    softmax_block(8)
    e("s_barrier")
    stamp(a)
    for pc, sl in ((6, CFG['atk']), (7, CFG['atk']+1)):
        slot_of[pc] = sl; issue_w2_piece(a, pc, sl)
    lg = Lg(a)
    def vread(n):
        b = 8 - n//2; m = n % 2
        e(f"ds_read_b128 {vr(VROT + 4*(n%4), 4)}, v{v_vrd} offset:{b*2048 + m*1024}")
        lg.add(("v", n))
    e(f"s_mov_b64 exec, s[{s_vm}:{s_vm+1}]")
    vread(0); vread(1)
    e("s_mov_b64 exec, -1")
    lpv = a.newlabel("Lpvd")
    e(f"s_mov_b32 s{s_ok}, 0")
    skip_labels = {}
    hl = list(range(22)) + ["g"]
    per = -(-len(hl) // (HB_CHECK + 1))
    def post_block(b, track):
        if b == HB_ISSUE: hflag_issue(a, track)
        if b == HB_CHECK:
            if track: a.wait_vm("FH")
            else: e("s_waitcnt vmcnt(0)")
            cmp_flags4(a, 252)
            e(f"s_cselect_b32 s{s_ok}, 1, 0")
        if b <= HB_CHECK:
            i0 = (HB_CHECK - b) * per
            if hl[i0:i0+per]: guarded_h_loads(a, hl[i0:i0+per], track)
    for b in range(8, -1, -1):
        S = Sreg(b)
        n0 = 2*(8 - b)
        if b < 8:
            skip_labels[b] = a.newlabel("Lskip")
            e(f"s_cmp_gt_u32 s{s_first}, {b}")
            e(f"s_cbranch_scc1 {skip_labels[b]}")
        if b > 0:
            e(f"s_mov_b64 exec, s[{s_vm}:{s_vm+1}]")
            vread(n0 + 2); vread(n0 + 3)
            e("s_mov_b64 exec, -1")
        if b < 8: softmax_block(b)
        lg.wait([("v", n0), ("v", n0+1)])
        e("s_nop 0")
        mfma(a, OACC, VROT + 4*(n0 % 4), S, "0" if b == 8 else OACC)
        mfma(a, OACC, VROT + 4*((n0+1) % 4), S + 4, OACC)
        post_block(b, True)
    e(f"s_branch {lpv}")
    for b in range(7, -1, -1):
        a.label(skip_labels[b])
        post_block(b, False)
    a.label(lpv)
    e("s_waitcnt lgkmcnt(0)")
    e("s_nop 7"); e("s_nop 3")
    e(f"v_rcp_f32 v{v_max}, v{OACC+8}")
    e("s_nop 0")
    for r in range(8):
        e(f"v_mul_f32 v{OACC+r}, v{OACC+r}, v{v_max}")
    for q in range(4):
        e(f"v_cvt_pk_bf16_f32 v{248+q}, v{OACC+2*q}, v{OACC+2*q+1}")
    e(f"buffer_store_dwordx4 v[248:251], v{v_l16}, {srd(sWS)}, s{s_oa} offen sc1")
    l = a.newlabel("Lhok")
    e(f"s_cmp_lg_u32 s{s_ok}, 0")
    e(f"s_cbranch_scc1 {l}")
    hpoll(a)
    h_loads(a, list(range(22)) + ["g"], track=False)
    a.label(l)
    stamp(a)
s_oa = 94

def compute3(a, pieces, slot_of, cnt):
    e = a.e
    work = []
    for pc in pieces:
        for u in range(2):
            if pc <= 10: af = AFreg(2*pc + u); tag = f"H{2*pc+u}"; acc = ACB; first = (pc == 0 and u == 0)
            else: af = AOreg(2*(pc-11) + u); tag = f"O{2*(pc-11)+u}"; acc = ACA; first = (pc == 11 and u == 0)
            for ct in range(2):
                work.append((slot_of[pc], u, ct, af, tag, acc + 16*ct, first))
    lg = Lg(a)
    cur = {}
    def rd(w):
        sl, u, ct, af, tag, acc, first = work[w]
        vb = v_tr3b if ct else v_tr3
        off = sl*SLOT + u*8192
        if off + 1024 > 65535:
            r = v_t5 if ct else v_t4
            if cur.get(ct) != sl:
                e(f"v_add_u32 v{r}, {sl*SLOT}, v{vb}")
                cur[ct] = sl
            vb = r; off = u*8192
        b = BF3 + ((cnt[0] + w) % 8)*4
        e(f"ds_read_b64_tr_b16 {vr(b,2)}, v{vb} offset:{off}")
        e(f"ds_read_b64_tr_b16 {vr(b+2,2)}, v{vb} offset:{off + 1024}")
        lg.add(w); lg.add(w)
    D = 4
    for w in range(min(D, len(work))): rd(w)
    for w in range(len(work)):
        if w + D < len(work): rd(w + D)
        sl, u, ct, af, tag, acc, first = work[w]
        a.wait_vm(tag)
        lg.wait([w])
        b = BF3 + ((cnt[0] + w) % 8)*4
        mfma(a, acc, b, af, "0" if first else acc)
    cnt[0] += len(work)
    lg.drain()

S3J = env('GEN_S3J', 1)
def o_loads(a, track=True):
    for n in range(8):
        a.e(f"s_add_u32 s{s_tmp}, s{s_a3o}, {n*4096}")
        ins = f"buffer_load_dwordx4 {vr(AOreg(n),4)}, v{v_l16}, {srd(sWS)}, s{s_tmp} offen sc1"
        (a.vmem(ins, f"O{n}") if track else a.e(ins))

def o_check(a):
    e = a.e
    regs = [AOreg(n) + i for n in range(8) for i in range(4)]
    e(f"v_max3_u32 v{v_t2}, v{regs[0]}, v{regs[1]}, v{regs[2]}")
    i = 3
    while i < len(regs):
        if i + 1 < len(regs):
            e(f"v_max3_u32 v{v_t2}, v{regs[i]}, v{regs[i+1]}, v{v_t2}"); i += 2
        else:
            e(f"v_max_u32 v{v_t2}, v{regs[i]}, v{v_t2}"); i += 1
    e(f"v_cmp_eq_u32 vcc, -1, v{v_t2}")
    e("s_nop 3")
    e("s_cmp_eq_u64 vcc, 0")

def stage3(a, slot_of):
    e = a.e
    a.c("================ stage 3 ================")
    D = 4
    lg = Lg(a)
    fifo = []
    cur = {}
    V0 = CFG["atv"]
    def assign(pc, sl):
        slot_of[pc] = sl
        for f in w2_ops(a, pc, sl):
            f.tag = f"Q{pc}"; fifo.append(f)
    def o_verify():
        a.wait_vm("O7")
        lp = a.newlabel("Lop"); ld = a.newlabel("Lod")
        e(f"s_mov_b32 s{s_cnt}, 0")
        a.label(lp)
        o_check(a)
        e(f"s_cbranch_scc1 {ld}")
        o_loads(a, track=False)
        e("s_waitcnt vmcnt(0)")
        e(f"s_add_u32 s{s_cnt}, s{s_cnt}, 1")
        e(f"s_cmp_lt_u32 s{s_cnt}, 100000")
        e(f"s_cbranch_scc1 {lp}")
        a.label(ld)
        stamp(a)
    def o_ops():
        ops = []
        for n in range(8):
            def f(n=n):
                a.e(f"s_add_u32 s{s_tmp}, s{s_a3o}, {n*4096}")
                a.vmem(f"buffer_load_dwordx4 {vr(AOreg(n),4)}, v{v_l16}, {srd(sWS)}, s{s_tmp} offen sc1", f"O{n}")
            f.tag = f"O{n}"
            ops.append(f)
        return ops
    syncs = {
        S3J: (["Q4", "Q5", "Q6", "Q7"], lambda: (assign(8, V0), assign(9, V0 + 1))),
        4: ([], lambda: (assign(10, slot_of[0]), assign(11, slot_of[1]), assign(12, slot_of[2]))),
        6: ([], lambda: (assign(13, slot_of[3]), assign(14, slot_of[4]), fifo.extend(o_ops()))),
        8: (["Q8", "Q9"], None),
        10: (["Q10", "Q11", "Q12"], None),
        13: (["Q13", "Q14"], None),
    }
    items = []
    for pc in range(15):
        for u in range(2):
            for ct in range(2):
                items.append((pc, u, ct))
    def rd(w):
        pc, u, ct = items[w]
        if u == 0 and ct == 0 and pc in syncs:
            tags, act = syncs[pc]
            while any(f.tag in tags for f in fifo): fifo.pop(0)()
            a.wait_vm(tags)
            e("s_barrier")
            if STAMPS2: stamp(a)
            if act: act()
        sl = slot_of[pc]
        vb = v_tr3b if ct else v_tr3
        off = sl*SLOT + u*8192
        if off + 1024 > 65535:
            r = v_t5 if ct else v_t4
            if cur.get(ct) != sl:
                e(f"v_add_u32 v{r}, {sl*SLOT}, v{vb}")
                cur[ct] = sl
            vb = r; off = u*8192
        b = BF3 + (w % 8)*4
        e(f"ds_read_b64_tr_b16 {vr(b,2)}, v{vb} offset:{off}")
        e(f"ds_read_b64_tr_b16 {vr(b+2,2)}, v{vb} offset:{off + 1024}")
        lg.add(w); lg.add(w)
    done = set(["Q4", "Q5", "Q6", "Q7"])
    for w in range(D): rd(w)
    for w in range(len(items)):
        if w + D < len(items):
            rd(w + D)
        pc, u, ct = items[w]
        if pc <= 10: af = AFreg(2*pc + u); tag = f"H{2*pc+u}"; acc = ACB; first = (pc == 0 and u == 0)
        else: af = AOreg(2*(pc-11) + u); tag = f"O{2*(pc-11)+u}"; acc = ACA; first = (pc == 11 and u == 0)
        if pc == 11 and u == 0 and ct == 0:
            while fifo: fifo.pop(0)()
            o_verify()
        a.wait_vm(tag)
        lg.wait([w])
        b = BF3 + (w % 8)*4
        mfma(a, acc + 16*ct, b, af, "0" if first else acc + 16*ct)
        if fifo: fifo.pop(0)()
        if pc >= 11:
            k = w - 44
            if k == 0:
                a.wait_vm("G")
                e(f"v_sub_f32 v{v_c2}, 1.0, v{v_g2}")
                e(f"v_cvt_pk_bf16_f32 v{v_c2}, v{v_c2}, v{v_c2}")
                e(f"v_lshlrev_b32 v{v_c2}, 16, v{v_c2}")
                e(f"v_mov_b32 v{v_c2+1}, v{v_c2}")
                e(f"v_mov_b32 v{v_g2+1}, v{v_g2}")
            elif 2 <= k < 10:
                for q in (2*(k-2), 2*(k-2)+1):
                    e(f"v_pk_mul_f32 v[{ACB+2*q}:{ACB+2*q+1}], v[{ACB+2*q}:{ACB+2*q+1}], v[{v_c2}:{v_c2+1}]")
    lg.drain()
    stamp(a)
    PS = [slot_of[p] for p in (5, 6, 7, 8)]
    e(f"s_cmp_eq_u32 s{s_rg}, 1"); e(f"s_movk_i32 s{s_tmp}, {PS[0]}"); e(f"s_cselect_b32 s{s_tmp}, {PS[1]}, s{s_tmp}")
    e(f"s_cmp_eq_u32 s{s_rg}, 2"); e(f"s_cselect_b32 s{s_tmp}, {PS[2]}, s{s_tmp}")
    e(f"s_cmp_eq_u32 s{s_rg}, 3"); e(f"s_cselect_b32 s{s_tmp}, {PS[3]}, s{s_tmp}")
    e(f"s_lshl_b32 s{s_tmp}, s{s_tmp}, 14")
    e(f"s_lshl_b32 s{s_tmp2}, s{s_cgp}, 13")
    e(f"s_add_u32 s{s_tmp}, s{s_tmp}, s{s_tmp2}")
    e(f"v_and_b32 v{v_t0}, 31, v{v_lane}")
    e(f"v_and_b32 v{v_t1}, 7, v{v_lane}")
    e(f"v_xor_b32 v{v_t1}, v{v_t1}, v{v_hi}")
    e(f"v_lshlrev_b32 v{v_t1}, 4, v{v_t1}")
    e(f"v_lshl_add_u32 v{v_t0}, v{v_t0}, 8, v{v_t1}")
    e(f"v_add_u32 v{v_t0}, s{s_tmp}, v{v_t0}")
    e("s_nop 4")
    for ct in range(2):
        for g4 in range(4):
            b0 = 16*ct + 4*g4
            for q in range(2):
                e(f"v_pk_fma_f32 v[{ACB+b0+2*q}:{ACB+b0+2*q+1}], v[{ACA+b0+2*q}:{ACA+b0+2*q+1}], v[{v_g2}:{v_g2+1}], v[{ACB+b0+2*q}:{ACB+b0+2*q+1}]")
            r = v_t2 + (g4 & 1)
            e(f"v_xor_b32 v{r}, {g4*32}, v{v_t0}")
            e(f"ds_write_b128 v{r}, {vr(ACB + b0, 4)} offset:{ct*128}")
    e(f"v_lshrrev_b32 v{v_t0}, 3, v0")
    e(f"v_and_b32 v{v_t1}, 7, v0")
    e(f"v_and_b32 v{v_t2}, 7, v{v_t0}")
    e(f"v_lshlrev_b32 v{v_t3}, 1, v{v_t1}")
    e(f"v_xor_b32 v{v_t2}, v{v_t2}, v{v_t3}")
    e(f"v_lshlrev_b32 v{v_t2}, 4, v{v_t2}")
    e(f"v_lshl_add_u32 v{v_t2}, v{v_t0}, 8, v{v_t2}")
    e(f"v_xor_b32 v{v_t3}, 16, v{v_t2}")
    e(f"v_add_u32 v{v_t4}, 0x10000, v{v_t2}")
    e(f"v_add_u32 v{v_t5}, 0x10000, v{v_t3}")
    e(f"v_add_u32 v{v_trn}, 0x20000, v{v_t2}")
    e(f"v_add_u32 v{v_trw}, 0x20000, v{v_t3}")
    e(f"v_lshlrev_b32 v{v_t0}, 10, v{v_t0}")
    e(f"v_lshl_add_u32 v{v_t0}, v{v_t1}, 4, v{v_t0}")
    e(f"s_lshl_b32 s{s_tmp}, s{s_rb3}, 16")
    e(f"s_lshl_b32 s{s_tmp2}, s{s_cb3}, 7")
    e(f"s_add_u32 s{s_tmp}, s{s_tmp}, s{s_tmp2}")
    e("s_waitcnt lgkmcnt(0)")
    e("s_barrier")
    for kq in range(4):
        off = PS[kq]*SLOT
        ra, rb_ = ((v_t2, v_t3), (v_t4, v_t5), (v_trn, v_trw))[off >> 16]
        e(f"ds_read_b128 {vr(64 + 8*kq, 4)}, v{ra} offset:{off & 0xffff}")
        e(f"ds_read_b128 {vr(68 + 8*kq, 4)}, v{rb_} offset:{off & 0xffff}")
    e("s_waitcnt lgkmcnt(4)")
    for q in range(4):
        e(f"v_pk_add_f32 v[{64+2*q}:{65+2*q}], v[{64+2*q}:{65+2*q}], v[{72+2*q}:{73+2*q}]")
    e("s_waitcnt lgkmcnt(0)")
    for q in range(4):
        e(f"v_pk_add_f32 v[{80+2*q}:{81+2*q}], v[{80+2*q}:{81+2*q}], v[{88+2*q}:{89+2*q}]")
    for q in range(4):
        e(f"v_pk_add_f32 v[{64+2*q}:{65+2*q}], v[{64+2*q}:{65+2*q}], v[{80+2*q}:{81+2*q}]")
    for q in range(4):
        e(f"v_cvt_pk_bf16_f32 v{64+q}, v{64+2*q}, v{65+2*q}")
    e(f"buffer_store_dwordx4 v[64:67], v{v_t0}, {srd(sOUT)}, s{s_tmp} offen {os.environ.get('GEN_OST','sc1').replace('_',' ')}")
    stamp(a, final=True)

def common_setup(a):
    e = a.e
    l = a.newlabel("Lcas")
    e(f"s_or_b32 s{s_nonce}, s{s_nonce}, 1")
    e(f"s_or_b32 s{s_tmp}, s{s_wv}, s2")
    e(f"s_cmp_lg_u32 s{s_tmp}, 0")
    e(f"s_cbranch_scc1 {l}")
    e(f"v_mov_b32 v{v_non}, s{s_nonce}")
    e(f"v_mov_b32 v{v_non+1}, s{s_nonce+1}")
    e(f"v_mov_b32 v{v_t4}, 0")
    e(f"s_mov_b64 s[{s_exec}:{s_exec+1}], exec")
    e("s_mov_b64 exec, 1")
    e(f"buffer_store_dwordx2 {vr(v_non,2)}, v{v_t4}, {srd(sDBG)}, 0 offen sc1")
    e(f"s_mov_b64 exec, s[{s_exec}:{s_exec+1}]")
    a.label(l)
    e(f"s_lshl_b32 s{s_tmp}, s{s_rb}, 2")
    e(f"s_add_u32 s{s_tmp}, s{s_tmp}, s{s_rg}")
    e(f"s_lshl_b32 s{s_oa}, s{s_tmp}, 15")
    e(f"s_lshl_b32 s{s_tmp2}, s{s_cg}, 1")
    e(f"s_add_u32 s{s_tmp2}, s{s_tmp2}, s{s_cgp}")
    e(f"s_lshl_b32 s{s_tmp2}, s{s_tmp2}, 10")
    e(f"s_add_u32 s{s_oa}, s{s_oa}, s{s_tmp2}")
    e(f"s_add_u32 s{s_oa}, s{s_oa}, {OF}")
    for i in range(4): e(f"v_mov_b32 v{ACC+i}, -1")
    a.vmem(f"buffer_store_dwordx4 {vr(ACC,4)}, v{v_l16}, {srd(sWS)}, s{s_oa} offen sc1", "SENT")
    e(f"v_and_b32 v{v_t0}, 31, v{v_lane}")
    e(f"v_lshrrev_b32 v{v_hi}, 5, v{v_lane}")
    e(f"v_and_b32 v{v_t1}, 15, v{v_lane}")
    e(f"v_xor_b32 v{v_t1}, v{v_t1}, v{v_hi}")
    e(f"v_lshlrev_b32 v{v_t1}, 4, v{v_t1}")
    e(f"v_lshl_add_u32 v{v_xrd}, v{v_t0}, 8, v{v_t1}")
    e(f"s_lshl_b32 s{s_tmp}, s{s_rg}, 13")
    e(f"v_add_u32 v{v_xrd}, s{s_tmp}, v{v_xrd}")
    e(f"v_and_b32 v{v_t0}, 15, v{v_lane}")
    e(f"v_lshrrev_b32 v{v_t1}, 2, v{v_t0}")
    e(f"v_bfe_u32 v{v_t2}, v{v_lane}, 4, 1")
    e(f"v_bfe_u32 v{v_t3}, v{v_lane}, 1, 1")
    e(f"v_lshl_add_u32 v{v_t2}, v{v_t2}, 1, v{v_t3}")
    e(f"v_and_b32 v{v_t3}, 1, v{v_lane}")
    e(f"v_lshlrev_b32 v{v_t3}, 3, v{v_t3}")
    e(f"v_lshl_add_u32 v{v_t2}, v{v_t2}, 4, v{v_t3}")
    e(f"v_lshrrev_b32 v{v_t3}, 1, v{v_t1}")
    e(f"v_xor_b32 v{v_t4}, s{s_cgp}, v{v_t3}")
    e(f"v_lshl_add_u32 v{v_t4}, v{v_t4}, 6, v{v_t2}")
    e(f"v_lshl_add_u32 v{v_t5}, v{v_hi}, 3, v{v_t1}")
    e(f"v_lshl_add_u32 v{v_trn}, v{v_t5}, 7, v{v_t4}")
    e(f"s_cmp_eq_u32 s{s_cgp}, 0")
    e(f"s_movk_i32 s{s_tmp}, 192")
    e(f"s_cselect_b32 s{s_tmp}, 64, s{s_tmp}")
    e(f"s_lshl_b32 s{s_k16}, s{s_tmp}, 4")
    e(f"s_lshl_b32 s{s_tmp2}, s{s_cgp}, 12")
    e(f"v_mad_u32_u24 v{v_trw}, v{v_t5}, s{s_tmp}, v{v_t2}")
    e(f"v_add_u32 v{v_trw}, s{s_tmp2}, v{v_trw}")
    e(f"s_lshl_b32 s{s_tmp}, s{s_tmp}, 2")
    e(f"v_add_u32 v{v_omg2}, s{s_tmp}, v{v_trw}")
    e(f"s_movk_i32 s{s_tmp}, 192")
    e(f"v_mad_u32_u24 v{v_trw2}, v{v_t5}, s{s_tmp}, v{v_t2}")
    e(f"s_lshl_b32 s{s_tmp2}, s{s_cgp}, 6")
    e(f"s_add_u32 s{s_tmp2}, s{s_tmp2}, {4096 + 64}")
    e(f"v_add_u32 v{v_trw2}, s{s_tmp2}, v{v_trw2}")
    e(f"v_lshl_add_u32 v{v_t4}, v{v_t3}, 6, v{v_t2}")
    e(f"v_lshl_add_u32 v{v_t5}, v{v_hi}, 2, v{v_t1}")
    e(f"v_lshl_add_u32 v{v_tr3}, v{v_t5}, 7, v{v_t4}")
    e(f"s_lshl_b32 s{s_tmp}, s{s_rg}, 11")
    e(f"v_add_u32 v{v_tr3}, s{s_tmp}, v{v_tr3}")
    e(f"v_xor_b32 v{v_tr3b}, 64, v{v_tr3}")

def wide_setup(a):
    e = a.e
    lq = a.newlabel("Lwq"); lj = a.newlabel("Lwj")
    e(f"s_cmp_lt_u32 s{s_wv}, 2")
    e(f"s_cbranch_scc1 {lq}")
    e(f"s_mov_b32 s{sPW}, s{sW1}"); e(f"s_mov_b32 s{sPW+1}, s{sW1+1}"); e(f"s_mov_b32 s{sPW+2}, {512*1376*2}"); e(f"s_mov_b32 s{sPW+3}, 0x00020000")
    e(f"s_sub_u32 s{s_tmp}, s{s_wv}, 2")
    e(f"s_lshl_b32 s{s_tmp}, s{s_tmp}, 7")
    e(f"s_movk_i32 s{s_tmp3}, 2752")
    e(f"s_movk_i32 s{s_tmp4}, 5462")
    for t in range(2):
        e(f"v_add_u32 v{v_t0}, s{s_tmp}, v{v_lane}")
        if t: e(f"v_add_u32 v{v_t0}, 64, v{v_t0}")
        e(f"v_mul_u32_u24 v{v_t1}, s{s_tmp4}, v{v_t0}")
        e(f"v_lshrrev_b32 v{v_t1}, 16, v{v_t1}")
        e(f"v_mul_u32_u24 v{v_t2}, 12, v{v_t1}")
        e(f"v_sub_u32 v{v_t0}, v{v_t0}, v{v_t2}")
        e(f"v_lshlrev_b32 v{v_t0}, 4, v{v_t0}")
        e(f"v_mad_u32_u24 v{v_wd0+t}, v{v_t1}, s{s_tmp3}, v{v_t0}")
    e(f"s_mul_i32 s{s_wbase}, s{s_cg}, 192")
    e(f"s_cmp_eq_u32 s{s_cg}, 15")
    e(f"s_cselect_b32 s{s_wbase}, {OOB}, s{s_wbase}")
    e(f"s_mov_b32 s{s_pstep}, {64*2752}")
    e(f"s_branch {lj}")
    a.label(lq)
    e(f"s_mov_b32 s{sPW}, s{sWQ}"); e(f"s_mov_b32 s{sPW+1}, s{sWQ+1}"); e(f"s_mov_b32 s{sPW+2}, {512*1536*2}"); e(f"s_mov_b32 s{sPW+3}, 0x00020000")
    e(f"s_lshl_b32 s{s_tmp}, s{s_wv}, 5")
    e(f"s_movk_i32 s{s_tmp3}, 3072")
    e(f"v_lshrrev_b32 v{v_t1}, 2, v{v_lane}")
    e(f"v_add_u32 v{v_t1}, s{s_tmp}, v{v_t1}")
    e(f"v_and_b32 v{v_t0}, 3, v{v_lane}")
    e(f"v_lshlrev_b32 v{v_t0}, 4, v{v_t0}")
    e(f"v_mad_u32_u24 v{v_wd0}, v{v_t1}, s{s_tmp3}, v{v_t0}")
    e(f"v_add_u32 v{v_wd1}, {16*3072}, v{v_wd0}")
    e(f"s_lshl_b32 s{s_wbase}, s{s_cg}, 6")
    e(f"s_mov_b32 s{s_pstep}, {64*3072}")
    a.label(lj)

def gen():
    a = Asm()
    e = a.e
    e("s_cmp_ge_u32 s2, 256")
    e("s_cbranch_scc1 L_exit")
    stamp(a)
    e("s_load_dwordx4 s[8:11], s[0:1], 0")
    e("s_load_dwordx2 s[24:25], s[0:1], 16")
    e("s_load_dwordx4 s[16:19], s[0:1], 32")
    e("s_load_dwordx4 s[36:39], s[0:1], 48")
    e("s_load_dwordx4 s[40:43], s[0:1], 64")
    e(f"s_memrealtime s[{s_nonce}:{s_nonce+1}]")
    e(f"v_and_b32 v{v_lane}, 63, v0")
    e(f"v_lshrrev_b32 v{v_t0}, 6, v0")
    e(f"v_lshlrev_b32 v{v_l16}, 4, v{v_lane}")
    e(f"v_readfirstlane_b32 s{s_wv}, v{v_t0}")
    e(f"s_and_b32 s{s_tmp}, s2, 7")
    e(f"s_lshr_b32 s{s_tmp2}, s2, 3")
    e(f"s_and_b32 s{s_rb}, s{s_tmp}, 1")
    e(f"s_lshl_b32 s{s_rb}, s{s_rb}, 3")
    e(f"s_and_b32 s{s_tmp3}, s{s_tmp2}, 7")
    e(f"s_add_u32 s{s_rb}, s{s_rb}, s{s_tmp3}")
    e(f"s_lshr_b32 s{s_cg}, s{s_tmp}, 1")
    e(f"s_lshl_b32 s{s_cg}, s{s_cg}, 2")
    e(f"s_lshr_b32 s{s_tmp3}, s{s_tmp2}, 3")
    e(f"s_add_u32 s{s_cg}, s{s_cg}, s{s_tmp3}")
    e(f"s_lshr_b32 s{s_p}, s{s_cg}, 1")
    e(f"s_and_b32 s{s_t}, s{s_cg}, 1")
    e(f"s_lshl_b32 s{s_rb3}, s{s_tmp}, 2")
    e(f"s_and_b32 s{s_tmp3}, s{s_tmp2}, 3")
    e(f"s_add_u32 s{s_rb3}, s{s_rb3}, s{s_tmp3}")
    e(f"s_lshr_b32 s{s_cb3}, s{s_tmp2}, 2")
    e(f"s_and_b32 s{s_rg}, s{s_wv}, 3")
    e(f"s_lshr_b32 s{s_cgp}, s{s_wv}, 2")
    e(f"s_lshl_b32 s{s_ldsw}, s{s_wv}, 11")
    e(f"s_lshl_b32 s{s_xlds}, s{s_wv}, 12")
    e(f"s_lshl_b32 s{s_xbase}, s{s_rb}, 17")
    e(f"s_lshl_b32 s{s_tmp3}, s{s_wv}, 14")
    e(f"s_add_u32 s{s_xbase}, s{s_xbase}, s{s_tmp3}")
    if STAMPS:
        e(f"s_lshl_b32 s{s_tsb}, s2, 3")
        e(f"s_add_u32 s{s_tsb}, s{s_tsb}, s{s_wv}")
        e(f"s_lshl_b32 s{s_tsb}, s{s_tsb}, 7")
        e(f"s_add_u32 s{s_tsb}, s{s_tsb}, {TS}")
    e(f"v_lshrrev_b32 v{v_t0}, 4, v{v_lane}")
    e(f"v_and_b32 v{v_t1}, 15, v{v_lane}")
    e(f"v_xor_b32 v{v_t1}, v{v_t1}, v{v_t0}")
    e(f"v_lshlrev_b32 v{v_t0}, 10, v{v_t0}")
    for t in range(4):
        e(f"v_xor_b32 v{v_t2}, {4*t}, v{v_t1}")
        e(f"v_lshl_add_u32 v{v_xo+t}, v{v_t2}, 4, v{v_t0}")
    e(f"v_lshrrev_b32 v{v_t0}, 3, v{v_lane}")
    e(f"v_and_b32 v{v_t1}, 7, v{v_lane}")
    e(f"v_lshrrev_b32 v{v_t2}, 2, v{v_lane}")
    e(f"v_and_b32 v{v_t2}, 4, v{v_t2}")
    e(f"v_xor_b32 v{v_t1}, v{v_t1}, v{v_t2}")
    e(f"v_lshlrev_b32 v{v_t1}, 4, v{v_t1}")
    e(f"s_movk_i32 s{s_tmp3}, 3072")
    e(f"v_mad_u32_u24 v{v_wq_n}, v{v_t0}, s{s_tmp3}, v{v_t1}")
    e(f"v_lshl_add_u32 v{v_w2_n}, v{v_t0}, 10, v{v_t1}")
    e(f"s_mul_i32 s{s_naroff}, s{s_wv}, {16*3072}")
    e(f"s_lshl_b32 s{s_tmp3}, s{s_p}, 7")
    e(f"s_add_u32 s{s_naroff}, s{s_naroff}, s{s_tmp3}")
    e(f"s_lshl_b32 s{s_tmp3}, s{s_t}, 10")
    e(f"s_add_u32 s{s_naroff}, s{s_naroff}, s{s_tmp3}")
    e(f"s_add_u32 s{s_naroff}, s{s_naroff}, 1024")
    e(f"s_lshl_b32 s{s_tmp3}, s{s_p}, 1")
    e(f"s_add_u32 s{s_tmp3}, s{s_tmp3}, s{s_cgp}")
    e(f"s_lshl_b32 s{s_tmp3}, s{s_tmp3}, 6")
    e(f"s_lshl_b32 s{s_tmp4}, s{s_rb}, 2")
    e(f"s_add_u32 s{s_tmp4}, s{s_tmp4}, s{s_rg}")
    e(f"s_add_u32 s{s_tmp3}, s{s_tmp3}, s{s_tmp4}")
    e(f"s_lshl_b32 s{s_st0}, s{s_tmp3}, 11")
    e(f"s_lshl_b32 s{s_tmp3}, s{s_t}, 21")
    e(f"s_add_u32 s{s_st0}, s{s_st0}, s{s_tmp3}")
    e(f"s_add_u32 s{s_st0}, s{s_st0}, {KF}")
    e(f"s_mul_i32 s{s_tmp4}, s{s_tmp4}, {HROW}")
    e(f"s_add_u32 s{s_tmp4}, s{s_tmp4}, {HF}")
    e(f"s_mul_i32 s{s_tmp3}, s{s_cg}, 3")
    e(f"s_lshl_b32 s{s_st1}, s{s_tmp3}, 11")
    e(f"s_add_u32 s{s_st1}, s{s_st1}, s{s_tmp4}")
    e(f"s_cmp_ge_u32 s{s_tmp3}, 43")
    e(f"s_cselect_b32 s{s_st1}, {OOB}, s{s_st1}")
    e(f"s_cmp_eq_u32 s{s_cgp}, 0")
    e(f"s_cselect_b32 s{s_st1}, {OOB}, s{s_st1}")
    e(f"s_add_u32 s{s_tmp3}, s{s_tmp3}, s{s_cgp}")
    e(f"s_add_u32 s{s_tmp3}, s{s_tmp3}, 1")
    e(f"s_lshl_b32 s{s_st2}, s{s_tmp3}, 11")
    e(f"s_add_u32 s{s_st2}, s{s_st2}, s{s_tmp4}")
    e(f"s_cmp_ge_u32 s{s_tmp3}, 43")
    e(f"s_cselect_b32 s{s_st2}, {OOB}, s{s_st2}")
    e(f"s_lshl_b32 s{s_w2off}, s{s_wv}, 14")
    e(f"s_lshl_b32 s{s_tmp3}, s{s_cb3}, 7")
    e(f"s_add_u32 s{s_w2off}, s{s_w2off}, s{s_tmp3}")
    e("s_waitcnt lgkmcnt(0)")
    e("s_mov_b32 s12, s10"); e("s_mov_b32 s13, s11"); e(f"s_mov_b32 s14, {512*1536*2}"); e("s_mov_b32 s15, 0x00020000")
    e(f"s_mov_b32 s10, {2048*512*2}"); e("s_mov_b32 s11, 0x00020000")
    e("s_mov_b32 s32, s38"); e("s_mov_b32 s33, s39"); e(f"s_mov_b32 s34, {2048*512*2}"); e("s_mov_b32 s35, 0x00020000")
    e("s_mov_b32 s38, 1024"); e("s_mov_b32 s39, 0x00020000")
    e(f"s_mov_b32 s{s_ldsww}, 0")
    e(f"s_mov_b32 s{s_gw}, 0")
    lg_ = a.newlabel("Lgs")
    e(f"s_cmp_lg_u32 s{s_cg}, 15")
    e(f"s_cbranch_scc1 {lg_}")
    e(f"s_cmp_lt_u32 s{s_wv}, 2")
    e(f"s_cbranch_scc1 {lg_}")
    e(f"s_mov_b32 s{s_ldsww}, 0x30000")
    e(f"s_cmp_lg_u32 s{s_wv}, 2")
    e(f"s_cbranch_scc1 {lg_}")
    e(f"s_mov_b32 s{s_gw}, 1")
    e(f"v_lshlrev_b32 v{v_t0}, 1, v{v_lane}")
    for j in range(8):
        e(f"buffer_load_ushort v{GREG+j}, v{v_t0}, {srd(sGW)}, 0 offen offset:{j*128}")
    e(f"s_movk_i32 s{s_tmp3}, 192")
    e(f"v_mul_u32_u24 v{v_g2}, s{s_tmp3}, v{v_lane}")
    a.label(lg_)
    e("s_mov_b32 s20, s18"); e("s_mov_b32 s21, s19"); e(f"s_mov_b32 s22, {1376*512*2}"); e("s_mov_b32 s23, 0x00020000")
    e(f"s_mov_b32 s18, {512*1376*2}"); e("s_mov_b32 s19, 0x00020000")
    if TOUCH in (2, 9): touch(a, (sWQ, sW1) if env('GEN_NOX',0) else (sX, sWQ, sW1), 224)
    if TOUCH == 4: touch_l2(a)
    issue_x_quarter(a, 0)
    issue_piece(a, 0, CFG['init'][0])
    if TOUCH == 3: touch(a, (sX, sWQ, sW1), 224)
    if TOUCH == 5: touch_l2(a)
    e(f"s_mov_b32 s26, {512*512*2}"); e("s_mov_b32 s27, 0x00020000")
    e("s_mov_b32 s28, s42"); e("s_mov_b32 s29, s43"); e(f"s_mov_b32 s30, {WS_BYTES}"); e("s_mov_b32 s31, 0x00020000")
    e("s_mov_b32 s42, 256"); e("s_mov_b32 s43, 0x00020000")
    if env("GEN_TLB", 2): tlb_warm(a, env("GEN_TLB", 2))
    if env("GEN_CPF", 0):
        e(f"s_getpc_b64 s[{s_m2}:{s_m2+1}]")
        a.label("L_pc")
        e(f"s_lshr_b32 s{s_tmp}, s2, 3")
        e(f"s_lshl_b32 s{s_tmp}, s{s_tmp}, 3")
        e(f"s_add_u32 s{s_tmp}, s{s_tmp}, s{s_wv}")
        e(f"s_lshl_b32 s{s_tmp}, s{s_tmp}, 6")
        e(f"s_load_dword s{s_cnt}, s[{s_m2}:{s_m2+1}], s{s_tmp}")
        e(f"s_lshr_b32 s{s_tmp}, s{s_tmp}, 2")
        e(f"s_and_b32 s{s_tmp}, s{s_tmp}, 0xfc0")
        e(f"s_add_u32 s{s_tmp}, s{s_tmp}, 16384")
        e(f"s_min_u32 s{s_tmp}, s{s_tmp}, L_exit-L_pc")
        e(f"s_load_dword s{s_cnt}, s[{s_m2}:{s_m2+1}], s{s_tmp}")
    if TOUCH == 9: touch(a, (sW2, sWO), 240)
    if TOUCH == 7: touch_scalar(a, "xq12o")
    if TOUCH == 8: touch_scalar(a, "xq1")
    stamp(a)
    if env("GEN_ST3",0): stamp(a)
    common_setup(a)
    wide_setup(a)
    if env("GEN_ST3",0): stamp(a)
    kv_flag_setup(a)
    lm_ = a.newlabel("Lmk")
    e(f"s_cmp_lg_u32 s{s_gw}, 0")
    e(f"s_cbranch_scc1 {lm_}")
    build_maskd(a)
    a.label(lm_)
    if env("GEN_ST3",0): stamp(a)
    e("s_barrier")
    issue_x_quarter(a, 1)
    issue_piece(a, 1, CFG['init'][1])
    e(f"s_cmp_lg_u32 s{s_t}, 0")
    e("s_cbranch_scc1 L_s1v")
    w2_slot = run_stage1(a)
    stamp(a)
    attention(a, w2_slot)
    stage3(a, w2_slot)
    a.label("L_exit")
    a.e("s_endpgm")
    return a

def touch(a, srds, T):
    e = a.e
    e(f"s_lshl_b32 s{s_tmp}, s2, 3")
    e(f"s_add_u32 s{s_tmp}, s{s_tmp}, s{s_wv}")
    e(f"s_lshl_b32 s{s_tmp}, s{s_tmp}, 10")
    for i, sr in enumerate(srds):
        a.vmem(f"buffer_load_dwordx4 {vr(T+4*i,4)}, v{v_l16}, {srd(sr)}, s{s_tmp} offen", "TCH")

def touch_l2(a):
    e = a.e
    T = 224
    lx = a.newlabel("Ltx"); lk = a.newlabel("Ltk"); lq = a.newlabel("Ltq"); lj = a.newlabel("Ltj")
    e(f"s_lshr_b32 s{s_tmp}, s2, 3")
    e(f"s_and_b32 s{s_tmp2}, s2, 7")
    e(f"s_lshr_b32 s{s_tmp3}, s{s_tmp2}, 1")
    e(f"s_cmp_lt_u32 s{s_wv}, 4")
    e(f"s_cbranch_scc1 {lx}")
    e(f"s_cmp_eq_u32 s{s_wv}, 4")
    e(f"s_cbranch_scc1 {lk}")
    e(f"s_cmp_eq_u32 s{s_wv}, 5")
    e(f"s_cbranch_scc1 {lq}")
    e(f"s_sub_u32 s{s_tmp4}, s{s_wv}, 6")
    e(f"s_lshl_b32 s{s_tmp4}, s{s_tmp4}, 3")
    e(f"s_lshl_b32 s{s_tmp}, s{s_tmp}, 4")
    e(f"s_add_u32 s{s_tmp}, s{s_tmp}, s{s_tmp4}")
    e(f"s_mul_i32 s{s_tmp}, s{s_tmp}, 2752")
    e(f"s_mul_i32 s{s_tmp3}, s{s_tmp3}, 768")
    e(f"s_add_u32 s{s_tmp}, s{s_tmp}, s{s_tmp3}")
    e(f"v_lshrrev_b32 v{v_t0}, 3, v{v_lane}")
    e(f"s_movk_i32 s{s_tmp4}, 2752")
    e(f"v_mul_u32_u24 v{v_t0}, s{s_tmp4}, v{v_t0}")
    e(f"v_and_b32 v{v_t1}, 7, v{v_lane}")
    e(f"v_min_u32 v{v_t1}, 6, v{v_t1}")
    e(f"v_lshl_add_u32 v{v_t0}, v{v_t1}, 7, v{v_t0}")
    e(f"buffer_load_dword v{T}, v{v_t0}, {srd(sW1)}, s{s_tmp} offen")
    e(f"s_branch {lj}")
    a.label(lx)
    e(f"s_and_b32 s{s_tmp2}, s{s_tmp2}, 1")
    e(f"s_lshl_b32 s{s_tmp2}, s{s_tmp2}, 20")
    e(f"s_lshl_b32 s{s_tmp}, s{s_tmp}, 15")
    e(f"s_add_u32 s{s_tmp}, s{s_tmp}, s{s_tmp2}")
    e(f"s_lshl_b32 s{s_tmp2}, s{s_wv}, 8")
    e(f"s_add_u32 s{s_tmp}, s{s_tmp}, s{s_tmp2}")
    e(f"v_lshrrev_b32 v{v_t0}, 1, v{v_lane}")
    e(f"v_lshlrev_b32 v{v_t0}, 10, v{v_t0}")
    e(f"v_and_b32 v{v_t1}, 1, v{v_lane}")
    e(f"v_lshl_add_u32 v{v_t0}, v{v_t1}, 7, v{v_t0}")
    e(f"buffer_load_dword v{T}, v{v_t0}, {srd(sX)}, s{s_tmp} offen")
    e(f"s_branch {lj}")
    a.label(lk)
    e(f"s_mul_i32 s{s_tmp}, s{s_tmp}, {16*3072}")
    e(f"s_lshl_b32 s{s_tmp3}, s{s_tmp3}, 8")
    e(f"s_add_u32 s{s_tmp}, s{s_tmp}, s{s_tmp3}")
    e(f"s_add_u32 s{s_tmp}, s{s_tmp}, 1024")
    e(f"v_lshrrev_b32 v{v_t0}, 2, v{v_lane}")
    e(f"s_movk_i32 s{s_tmp4}, 3072")
    e(f"v_mul_u32_u24 v{v_t0}, s{s_tmp4}, v{v_t0}")
    e(f"v_and_b32 v{v_t1}, 1, v{v_lane}")
    e(f"v_lshl_add_u32 v{v_t0}, v{v_t1}, 10, v{v_t0}")
    e(f"v_bfe_u32 v{v_t1}, v{v_lane}, 1, 1")
    e(f"v_lshl_add_u32 v{v_t0}, v{v_t1}, 7, v{v_t0}")
    e(f"buffer_load_dword v{T}, v{v_t0}, {srd(sWQ)}, s{s_tmp} offen")
    e(f"s_branch {lj}")
    a.label(lq)
    e(f"s_mul_i32 s{s_tmp}, s{s_tmp}, {16*3072}")
    e(f"s_lshl_b32 s{s_tmp3}, s{s_tmp3}, 8")
    e(f"s_add_u32 s{s_tmp}, s{s_tmp}, s{s_tmp3}")
    e(f"v_bfe_u32 v{v_t0}, v{v_lane}, 1, 4")
    e(f"s_movk_i32 s{s_tmp4}, 3072")
    e(f"v_mul_u32_u24 v{v_t0}, s{s_tmp4}, v{v_t0}")
    e(f"v_and_b32 v{v_t1}, 1, v{v_lane}")
    e(f"v_lshl_add_u32 v{v_t0}, v{v_t1}, 7, v{v_t0}")
    e(f"buffer_load_dword v{T}, v{v_t0}, {srd(sWQ)}, s{s_tmp} offen")
    a.label(lj)
    a.vm.append("TCH")

def touch_l2_s3(a, part, nparts):
    e = a.e
    T = v_xo + 3
    l1 = a.newlabel("Lt3"); lj = a.newlabel("Lt3j")
    n = 64 // nparts
    mask = ((1 << n) - 1) << (n * part)
    e(f"s_lshr_b32 s{s_tmp}, s2, 3")
    e(f"s_lshl_b32 s{s_tmp}, s{s_tmp}, 3")
    e(f"s_add_u32 s{s_tmp}, s{s_tmp}, s{s_wv}")
    e(f"s_mul_i32 s{s_tmp}, s{s_tmp}, {n*128}")
    e(f"s_add_u32 s{s_tmp}, s{s_tmp}, {part * 256 * n * 128 - part*n*128}")
    e(f"v_lshlrev_b32 v{v_t2}, 7, v{v_lane}")
    e(f"s_mov_b32 exec_lo, 0x{mask & 0xffffffff:x}")
    e(f"s_mov_b32 exec_hi, 0x{mask >> 32:x}")
    lim = 1376*1024
    if (part + 1) * 256 * n * 128 <= 0x180000:
        e(f"buffer_load_dword v{T}, v{v_t2}, {srd(sW2)}, s{s_tmp} offen")
    else:
        e(f"s_sub_u32 s{s_tmp}, s{s_tmp}, 0x180000")
        e(f"buffer_load_dword v{T}, v{v_t2}, {srd(sWO)}, s{s_tmp} offen")
    e("s_mov_b64 exec, -1")
    a.vm.append("TCH")

def touch_scalar(a, which):
    e = a.e
    e(f"s_lshl_b32 s{s_tmp}, s2, 3")
    e(f"s_add_u32 s{s_tmp}, s{s_tmp}, s{s_wv}")
    tab = {"x": (sX, 8), "q": (sWQ, 6), "1": (sW1, 6), "2": (sW2, 6), "o": (sWO, 2)}
    for w in which:
        sr, n = tab[w]
        e(f"s_mul_i32 s{s_tmp2}, s{s_tmp}, {n*128}")
        for i in range(n):
            e(f"s_buffer_load_dword s{s_cnt}, {srd(sr)}, s{s_tmp2} offset:{i*128}")

def tlb_warm(a, mode):
    e = a.e
    e(f"s_lshl_b32 s{s_tmp}, s{s_wv}, 21")
    e(f"s_buffer_load_dword s{s_cnt}, {srd(sWS)}, s{s_tmp}")
    e(f"s_add_u32 s{s_tmp}, s{s_tmp}, 0x100000")
    e(f"s_buffer_load_dword s{s_cnt}, {srd(sWS)}, s{s_tmp}")
    e(f"s_lshl_b32 s{s_tmp}, s{s_wv}, 18")
    e(f"s_buffer_load_dword s{s_cnt}, {srd(sOUT)}, s{s_tmp}")
    if mode >= 2:
        e(f"s_buffer_load_dword s{s_cnt}, {srd(sW2)}, s{s_tmp}")
        e(f"s_buffer_load_dword s{s_cnt}, {srd(sWO)}, s{s_tmp}")
        e(f"s_buffer_load_dword s{s_cnt}, {srd(sDBG)}, 128")

def tlb_warm_v(a):
    e = a.e
    l = a.newlabel("Ltlb")
    e(f"s_cmp_lg_u32 s{s_wv}, 7")
    e(f"s_cbranch_scc1 {l}")
    e(f"v_lshlrev_b32 v{v_t2}, 20, v{v_lane}")
    e("s_mov_b64 exec, 0xffff")
    e(f"buffer_load_dword v{v_xo}, v{v_t2}, {srd(sWS)}, 0 offen")
    e("s_mov_b64 exec, 0xff")
    e(f"v_lshlrev_b32 v{v_t2}, 18, v{v_lane}")
    e(f"buffer_load_dword v{v_xo+1}, v{v_t2}, {srd(sOUT)}, 0 offen")
    e("s_mov_b64 exec, -1")
    a.label(l)

HEADER = open(os.path.join(os.path.dirname(os.path.abspath(__file__)), "..", "cdna_kernels", NAME + ".s.ref")).read().split("; Override launch")[0]

def emit_file(path):
    a = gen()
    s = HEADER
    s += "; @launch grid=(256,1,1) block=(512,1,1) lds=163840\n"
    s += f""".amdgcn_target "amdgcn-amd-amdhsa--gfx950"
.text
.globl {NAME}_kernel
.p2align 8
.type {NAME}_kernel,@function
{NAME}_kernel:
"""
    s += "\n".join(a.lines) + "\n"
    s += f""".section .rodata,"a"
.p2align 6
.amdhsa_kernel {NAME}_kernel
  .amdhsa_next_free_vgpr 256
  .amdhsa_next_free_sgpr {NSGPR}
  .amdhsa_accum_offset 256
  .amdhsa_group_segment_fixed_size 0
  .amdhsa_kernarg_size 80
  .amdhsa_user_sgpr_count 2
  .amdhsa_user_sgpr_kernarg_segment_ptr 1
  .amdhsa_system_sgpr_workgroup_id_x 1
.end_amdhsa_kernel
"""
    open(path, "w").write(s)

if __name__ == "__main__":
    out = sys.argv[1] if len(sys.argv) > 1 else os.path.join(os.path.dirname(os.path.abspath(__file__)), "..", "cdna_kernels", NAME + ".s")
    emit_file(out)
```

```python
import sys, math, os, struct

NAME = "gated_mix__sliding_block__dense_activation_relu__prompt"

KF = 0x200000
VF = 0x400000
OF = 0x600000
HF = 0x800000
GB = 0xE00000
FL = 0xF00000
TS = 0xF80000
WS_BYTES = 0x1000000
HROW = 86 * 1024
OOB = 0x40000000
SLOT = 16384

def env(n, d): return int(os.environ.get(n, d))
STAMPS = env("GEN_STAMPS", 0) >= 1
STAMPS2 = env("GEN_STAMPS", 0) >= 2
TOUCH = env("GEN_TOUCH", 10)
NT = env("GEN_NT", 0)
HROT = env("GEN_HROT", 0)
ROT = env("GEN_ROT", 0)

class Asm:
    def __init__(self):
        self.lines = []; self.vm = []; self.uid = 0; self.nstamp = 0
    def e(self, s): self.lines.append("    " + s)
    def label(self, l): self.lines.append(l + ":")
    def c(self, s): self.lines.append("    ; " + s)
    def newlabel(self, p="L"):
        self.uid += 1
        return f"{p}_{self.uid}"
    def vmem(self, s, tag):
        self.e(s); self.vm.append(tag)
    def wait_vm(self, tags, lgkm0=False):
        if isinstance(tags, str): tags = [tags]
        last = -1
        for i, t in enumerate(self.vm):
            if t in tags: last = i
        x = " lgkmcnt(0)" if lgkm0 else ""
        if last < 0:
            if lgkm0: self.e("s_waitcnt lgkmcnt(0)")
            return
        n = len(self.vm) - 1 - last
        assert n <= 63
        self.e(f"s_waitcnt vmcnt({n}){x}")
        self.vm = self.vm[last + 1:]

class Lg:
    def __init__(self, a): self.a = a; self.q = []
    def add(self, tag): self.q.append(tag)
    def wait(self, tags):
        last = -1
        for i, t in enumerate(self.q):
            if t in tags: last = i
        if last < 0: return
        n = min(len(self.q) - 1 - last, 15)
        self.a.e(f"s_waitcnt lgkmcnt({n})")
        self.q = self.q[len(self.q) - n:] if n else []
    def clear(self): self.q = []
    def drain(self):
        if self.q: self.a.e("s_waitcnt lgkmcnt(0)")
        self.q = []

sX, sWQ, sW1, sW2, sWO, sWS, sOUT, sGW, sDBG, sPW = 8, 12, 16, 20, 24, 28, 32, 36, 40, 88
def srd(b): return f"s[{b}:{b+3}]"
s_wv, s_rb, s_cg, s_p, s_t, s_rg, s_cgp, s_rb3, s_cb3, s_xbase = range(44, 54)
s_tmp, s_tmp2, s_wideoff, s_naroff = 54, 55, 56, 57
s_nonce = 58
s_tmp3, s_tmp4, s_st0, s_st1, s_first, s_w2off, s_xlds, s_cnt = range(60, 68)
s_exec = 68
s_m = 70; s_m2 = 72; s_m3 = 74
s_ldsw, s_a3, s_a3o, s_qb = 76, 77, 78, 79
s_vm = 80
s_ts = 82
s_tsb, s_ok, s_ga, s_pstep = 84, 85, 86, 87
s_st2 = 92
s_ldsww = 95
s_gw = 7
s_wbase = 5
GREG = 48
s_fl = 6
s_kvb = 3
s_krd = 4
s_vrdb = 98
s_flh = 99
s_r3 = 101
s_flc = 100
v_kf = 25
NSGPR = 102

v_lane, v_l16 = 1, 2
v_xo = 3
v_wq_n, v_wd0, v_wd1, v_xrd, v_trn, v_trw, v_tr3, v_w2_n = 7, 8, 9, 10, 11, 12, 13, 14
v_t0, v_t1 = 15, 16
v_hi = 17
v_t2, v_t3 = 18, 19
v_non = 20
v_c2 = 20
v_mc = 22
v_g2 = 24
v_omg2 = 26
v_t4, v_t5 = 28, 29
v_trw2, v_tr3b = 30, 31
MASKF = 32
MASKD = 48
BF = 64
ACC = 96
XF = 128
v_fo = 252; v_fd = 254

def vr(b, n): return f"v[{b}:{b+n-1}]"

ORD = os.environ.get("GEN_ORD", "A")
CFG = {
 "A": dict(order=[0,1,2,3,4,5,6,7,8,9,10,11], xslot={0:0,1:4,2:6,3:0}, init={0:2,1:3}, atk=6, atv=4, usplit=4, lg=4,
      sched={0:[("X",2,0),("P",2,8),("P",3,9)], 1:[("X",3,0),("P",4,2)], 2:[("P",5,4),("P",6,5),("P",7,3)],
             3:[("P",8,6),("P",9,7),("P",10,8)], 4:[("P",11,9)], 5:[("Q",0,0),("Q",1,1)], 6:[("Q",2,2)], 9:[("Q",3,3)]},
      sig0=6, kvi=9, kvc=11, post=(8,9), non=2),
 "C": dict(order=[0,1,4,2,5,3,6,7,8,9,10,11], xslot={0:0,1:3,2:8,3:0}, init={0:2,1:5}, atk=3, atv=0, usplit=6, lg=6,
      sched={0:[("P",4,6),("X",2,0),("P",2,7)], 1:[("P",5,2),("X",3,0)], 2:[("P",3,5),("P",6,3),("P",7,4)],
             3:[("P",8,6)], 4:[("P",9,7),("P",10,8),("P",11,9)], 5:[("Q",0,2)], 7:[("Q",1,5)], 10:[("Q",2,6)], 11:[("Q",3,7)]},
      sig0=8, kvi=10, kvc=11, post=(8,9), non=3),
}[ORD]
XSLOT = CFG["xslot"]
ATK = CFG['atk'] * SLOT
ATQ = ATK + 24576
ATV = CFG['atv'] * SLOT

v_st = 27
def stamp(a, final=False):
    if not STAMPS: return
    i = a.nstamp; a.nstamp += 1
    cur = s_ts + 2*(i & 1) if False else (s_ts if (i & 1) == 0 else 96)
    prev = (s_ts if ((i-1) & 1) == 0 else 96)
    if i > 0:
        a.e(f"v_writelane_b32 v{v_st}, s{prev}, {i-1}")
    a.e(f"{'s_memrealtime' if env('GEN_RT',0) else 's_memtime'} s[{cur}:{cur+1}]")
    if final:
        a.e("s_waitcnt lgkmcnt(0)")
        a.e(f"v_writelane_b32 v{v_st}, s{cur}, {i}")
        a.e(f"v_lshlrev_b32 v{v_t3}, 2, v{v_lane}")
        a.e("s_mov_b32 exec_lo, -1")
        a.e("s_mov_b32 exec_hi, 0")
        a.e(f"buffer_store_dword v{v_st}, v{v_t3}, {srd(sWS)}, s{s_tsb} offen")
        if env("GEN_DBG", 0):
            l = a.newlabel("Ldbg")
            a.e(f"s_cmp_lg_u32 s2, {env('GEN_DBG',0)}")
            a.e(f"s_cbranch_scc1 {l}")
            a.e(f"s_cmp_lg_u32 s{s_wv}, 0")
            a.e(f"s_cbranch_scc1 {l}")
            a.e(f"v_readlane_b32 s{s_tmp}, v{v_st}, 0")
            a.e("s_nop 3")
            a.e(f"v_subrev_u32 v{v_st}, s{s_tmp}, v{v_st}")
            a.e("s_mov_b32 exec_lo, 0x3ffe")
            a.e(f"buffer_store_dword v{v_st}, v{v_t3}, {srd(sDBG)}, 0 offen offset:4")
            a.label(l)

def dma(a, voff, srd_b, soff, lds_sgpr, ldsimm, tag, sc1=False):
    a.e(f"s_add_u32 m0, s{lds_sgpr}, {ldsimm}")
    a.e("s_nop 0")
    nt = " nt" if (not sc1 and ((NT & 1) and tag[0] in "XP" or (NT & 2) and tag[0] == "Q" or (NT & 4) and tag in ("X0", "P0") or (NT & 8) and tag in ("X1", "P1"))) else ""
    a.vmem(f"buffer_load_dwordx4 v{voff}, {srd(srd_b)}, {soff} offen{' sc1' if sc1 else ''}{nt} lds", tag)

def x_ops(a, j):
    ops = []
    for t in range(4):
        def f(t=t):
            a.e(f"s_add_u32 s{s_tmp}, s{s_xbase}, {t*4096 + j*256}")
            dma(a, v_xo + t, sX, f"s{s_tmp}", s_xlds, XSLOT[j]*SLOT + t*1024, f"X{j}")
        ops.append(f)
    return ops

def piece_ops(a, i, slot):
    ops = []
    for t in range(2):
        if i < 4:
            def f(t=t):
                a.e(f"s_add_u32 s{s_tmp}, s{s_naroff}, {(128*i + 8*t)*3072}")
                dma(a, v_wq_n, sWQ, f"s{s_tmp}", s_ldsw, slot*SLOT + t*1024, f"P{i}")
        else:
            def f(t=t):
                if t == 0:
                    a.e(f"s_mul_i32 s{s_wideoff}, s{s_pstep}, {i-4}")
                    a.e(f"s_add_u32 s{s_wideoff}, s{s_wideoff}, s{s_wbase}")
                a.e(f"s_add_u32 s{s_tmp}, s{s_ldsw}, {slot*SLOT + t*1024}")
                a.e(f"s_max_u32 m0, s{s_tmp}, s{s_ldsww}")
                a.e("s_nop 0")
                a.vmem(f"buffer_load_dwordx4 v{v_wd0 + t}, {srd(sPW)}, s{s_wideoff} offen{' nt' if NT & 1 else ''} lds", f"P{i}")
                if t == 1:
                    l = a.newlabel("Lgw")
                    a.e(f"s_cmp_eq_u32 s{s_gw}, 0")
                    a.e(f"s_cbranch_scc1 {l}")
                    a.e(f"v_add_u32 v{v_t2}, {slot*SLOT + 4096 + 128}, v{v_g2}")
                    a.e(f"ds_write_b16 v{v_t2}, v{GREG + i - 4}")
                    a.label(l)
        ops.append(f)
    return ops

def w2_ops(a, i, slot):
    ops = []
    for t in range(2):
        def f(t=t):
            srdb, r0 = (sW2, 128*i) if i <= 10 else (sWO, 128*(i-11))
            if HROT and i <= 10:
                a.e(f"s_add_u32 s{s_tmp}, s{s_p}, {r0*1024}")
                a.e(f"s_sub_u32 s{s_tmp2}, s{s_tmp}, {11*128*1024}")
                a.e(f"s_cselect_b32 s{s_tmp}, s{s_tmp}, s{s_tmp2}")
                a.e(f"s_add_u32 s{s_tmp}, s{s_tmp}, s{s_w2off}")
                if t: a.e(f"s_add_u32 s{s_tmp}, s{s_tmp}, {8*1024}")
            else:
                a.e(f"s_add_u32 s{s_tmp}, s{s_w2off}, {(r0 + 8*t) * 1024}")
            dma(a, v_w2_n, srdb, f"s{s_tmp}", s_ldsw, slot*SLOT + t*1024, f"Q{i}")
        ops.append(f)
    return ops

def issue_x_quarter(a, j):
    for f in x_ops(a, j): f()
def issue_piece(a, i, slot):
    for f in piece_ops(a, i, slot): f()
def issue_w2_piece(a, i, slot):
    for f in w2_ops(a, i, slot): f()

def mfma(a, d, x, y, c):
    cs = c if isinstance(c, str) else vr(c, 16)
    a.e(f"v_mfma_f32_32x32x16_bf16 {vr(d,16)}, {vr(x,4)}, {vr(y,4)}, {cs}")

def pack_tile(a, acc, pk, relu):
    for q in range(8):
        a.e(f"v_cvt_pk_bf16_f32 v{pk+q}, v{acc+2*q}, v{acc+2*q+1}")
    if relu:
        for q in range(8):
            a.e(f"v_pk_max_i16 v{pk+q}, v{pk+q}, 0")

def store_pk(a, pk, soff_sgpr, tag):
    a.vmem(f"buffer_store_dwordx4 {vr(pk,4)}, v{v_l16}, {srd(sWS)}, s{soff_sgpr} offen sc1", tag)
    a.vmem(f"buffer_store_dwordx4 {vr(pk+4,4)}, v{v_l16}, {srd(sWS)}, s{soff_sgpr} offen offset:1024 sc1", tag)

def signal(a, phase):
    l = a.newlabel("Lsig")
    a.e(f"s_cmp_lg_u32 s{s_wv}, 0")
    a.e(f"s_cbranch_scc1 {l}")
    a.e(f"v_mov_b32 v{v_t2}, s{s_nonce}")
    a.e(f"v_mov_b32 v{v_t3}, s{s_nonce+1}")
    a.e(f"v_mov_b32 v{v_t1}, {phase*32768}")
    a.e("s_mov_b64 exec, 1")
    a.e(f"buffer_store_dwordx2 v[{v_t2}:{v_t3}], v{v_t1}, {srd(sWS)}, s{s_fl} offen sc1")
    a.e("s_mov_b64 exec, -1")
    a.label(l)

def signal_wave(a):
    a.e(f"v_mov_b32 v{v_t2}, s{s_nonce}")
    a.e(f"v_mov_b32 v{v_t3}, s{s_nonce+1}")
    a.e(f"v_mov_b32 v{v_t1}, 0")
    a.e("s_mov_b64 exec, 1")
    a.vmem(f"buffer_store_dwordx2 v[{v_t2}:{v_t3}], v{v_t1}, {srd(sWS)}, s{s_flh} offen sc1", "SIGH")
    a.e("s_mov_b64 exec, -1")

def cmp_flags4(a, vd):
    a.e(f"v_xor_b32 v{vd}, s{s_nonce}, v{vd}")
    a.e(f"v_xor_b32 v{vd+1}, s{s_nonce+1}, v{vd+1}")
    a.e(f"v_xor_b32 v{vd+2}, s{s_nonce}, v{vd+2}")
    a.e(f"v_xor_b32 v{vd+3}, s{s_nonce+1}, v{vd+3}")
    a.e(f"v_or3_b32 v{vd}, v{vd}, v{vd+1}, v{vd+2}")
    a.e(f"v_or_b32 v{vd}, v{vd}, v{vd+3}")
    a.e(f"v_cmp_ne_u32 vcc, 0, v{vd}")
    a.e("s_nop 3")
    a.e("s_cmp_eq_u64 vcc, 0")

def hflag_issue(a, track=True):
    ins = f"buffer_load_dwordx4 v[252:255], v{v_l16}, {srd(sWS)}, s{s_flc} offen sc1"
    (a.vmem(ins, "FH") if track else a.e(ins))

def hpoll(a):
    lp = a.newlabel("Lpoll"); ld = a.newlabel("Lpolld")
    a.e(f"s_mov_b32 s{s_cnt}, 0")
    a.label(lp)
    hflag_issue(a, False)
    a.e("s_waitcnt vmcnt(0)")
    cmp_flags4(a, 252)
    a.e(f"s_cbranch_scc1 {ld}")
    a.e("s_sleep 1")
    a.e(f"s_add_u32 s{s_cnt}, s{s_cnt}, 1")
    a.e(f"s_cmp_lt_u32 s{s_cnt}, 100000")
    a.e(f"s_cbranch_scc1 {lp}")
    a.label(ld)

def cmp_flags(a, vd):
    a.e(f"v_cmp_eq_u32 s[{s_m2}:{s_m2+1}], s{s_nonce}, v{vd}")
    a.e(f"v_cmp_eq_u32 s[{s_m3}:{s_m3+1}], s{s_nonce+1}, v{vd+1}")
    a.e("s_nop 3")
    a.e(f"s_and_b64 s[{s_m2}:{s_m2+1}], s[{s_m2}:{s_m2+1}], s[{s_m3}:{s_m3+1}]")
    a.e(f"s_and_b64 s[{s_m2}:{s_m2+1}], s[{s_m2}:{s_m2+1}], s[{s_m}:{s_m+1}]")
    a.e(f"s_cmp_eq_u64 s[{s_m2}:{s_m2+1}], s[{s_m}:{s_m+1}]")

def poll(a, voff):
    lp = a.newlabel("Lpoll"); ld = a.newlabel("Lpolld")
    a.e(f"s_mov_b32 s{s_cnt}, 0")
    a.label(lp)
    a.e(f"buffer_load_dwordx2 v[{v_t2}:{v_t3}], v{voff}, {srd(sWS)}, 0 offen sc1")
    a.e("s_waitcnt vmcnt(0)")
    cmp_flags(a, v_t2)
    a.e(f"s_cbranch_scc1 {ld}")
    a.e("s_sleep 1")
    a.e(f"s_add_u32 s{s_cnt}, s{s_cnt}, 1")
    a.e(f"s_cmp_lt_u32 s{s_cnt}, 100000")
    a.e(f"s_cbranch_scc1 {lp}")
    a.label(ld)

def flag_issue(a, voff, vdst, tag, track=True):
    ins = f"buffer_load_dwordx2 v[{vdst}:{vdst+1}], v{voff}, {srd(sWS)}, 0 offen sc1"
    (a.vmem(ins, tag) if track else a.e(ins))

def flag_check(a, vdst, tag, track=True):
    if track: a.wait_vm(tag)
    else: a.e("s_waitcnt vmcnt(0)")
    cmp_flags(a, vdst)

def get_nonce(a):
    a.wait_vm("NON")
    lp = a.newlabel("Lnp"); ld = a.newlabel("Lnd")
    a.e(f"s_mov_b32 s{s_cnt}, 0")
    a.label(lp)
    a.e(f"v_readfirstlane_b32 s{s_nonce}, v{v_non}")
    a.e(f"v_readfirstlane_b32 s{s_nonce+1}, v{v_non+1}")
    a.e("s_nop 3")
    a.e(f"s_cmp_lg_u32 s{s_nonce}, 0")
    a.e(f"s_cbranch_scc1 {ld}")
    a.e("s_sleep 2")
    a.e(f"v_mov_b32 v{v_t2}, 0")
    a.e(f"buffer_load_dwordx2 v[{v_non}:{v_non+1}], v{v_t2}, {srd(sDBG)}, 0 offen sc1")
    a.e("s_waitcnt vmcnt(0)")
    a.e(f"s_add_u32 s{s_cnt}, s{s_cnt}, 1")
    a.e(f"s_cmp_lt_u32 s{s_cnt}, 100000")
    a.e(f"s_cbranch_scc1 {lp}")
    a.label(ld)

def kv_flag_setup(a):
    e = a.e
    e(f"s_lshl_b32 s{s_tmp}, s{s_rb}, 4")
    e(f"s_add_u32 s{s_fl}, s{s_tmp}, s{s_cg}")
    e(f"s_lshl_b32 s{s_fl}, s{s_fl}, 7")
    e(f"s_add_u32 s{s_fl}, s{s_fl}, {FL}")
    e(f"s_lshl_b32 s{s_tmp2}, s{s_p}, 1")
    e(f"s_add_u32 s{s_tmp}, s{s_tmp}, s{s_tmp2}")
    e(f"v_lshrrev_b32 v{v_kf}, 1, v{v_lane}")
    e(f"v_lshlrev_b32 v{v_kf}, 4, v{v_kf}")
    e(f"v_sub_u32 v{v_kf}, s{s_tmp}, v{v_kf}")
    e(f"v_and_b32 v{v_t0}, 1, v{v_lane}")
    e(f"v_add_u32 v{v_kf}, v{v_kf}, v{v_t0}")
    e(f"v_and_b32 v{v_kf}, 255, v{v_kf}")
    e(f"v_lshlrev_b32 v{v_kf}, 7, v{v_kf}")
    e(f"v_add_u32 v{v_kf}, {FL}, v{v_kf}")
    e(f"s_mov_b32 s{s_m}, 63")
    e(f"s_cmp_eq_u32 s{s_rb}, 1")
    e(f"s_cselect_b32 s{s_m}, 15, s{s_m}")
    e(f"s_cmp_eq_u32 s{s_rb}, 0")
    e(f"s_cselect_b32 s{s_m}, 3, s{s_m}")
    e(f"s_mov_b32 s{s_m+1}, 0")
    e(f"s_lshl_b32 s{s_tmp3}, s{s_cg}, 6")
    e(f"s_lshl_b32 s{s_tmp4}, s{s_rb}, 2")
    e(f"s_add_u32 s{s_tmp3}, s{s_tmp3}, s{s_tmp4}")
    e(f"s_lshl_b32 s{s_tmp3}, s{s_tmp3}, 11")
    e(f"s_mul_i32 s{s_tmp4}, s{s_wv}, 3072")
    e(f"s_add_u32 s{s_kvb}, s{s_tmp3}, s{s_tmp4}")
    e(f"s_lshl_b32 s{s_tmp}, s{s_rg}, 11")
    e(f"s_lshl_b32 s{s_tmp2}, s{s_cgp}, 10")
    e(f"s_add_u32 s{s_tmp2}, s{s_tmp2}, s{s_tmp}")
    e(f"s_add_u32 s{s_krd}, s{s_tmp2}, {ATK}")
    e(f"s_lshl_b32 s{s_tmp2}, s{s_cgp}, 8")
    e(f"s_add_u32 s{s_tmp2}, s{s_tmp2}, s{s_tmp}")
    e(f"s_add_u32 s{s_vrdb}, s{s_tmp2}, {ATV}")
    e(f"s_lshl_b32 s{s_qb}, s{s_rb}, 2")
    e(f"s_add_u32 s{s_qb}, s{s_qb}, s{s_rg}")
    e(f"s_sub_i32 s{s_first}, 8, s{s_qb}")
    e(f"s_max_i32 s{s_first}, s{s_first}, 0")
    e(f"s_mov_b32 s{s_vm}, 0xffff")
    e(f"s_mov_b32 s{s_vm+1}, 0xffff")
    s3_addr_setup(a)
    e(f"s_lshl_b32 s{s_tmp}, s{s_cg}, 3")
    e(f"s_add_u32 s{s_tmp}, s{s_tmp}, s{s_wv}")
    e(f"s_lshl_b32 s{s_tmp}, s{s_tmp}, 3")
    e(f"s_lshl_b32 s{s_flh}, s{s_rb}, 10")
    e(f"s_add_u32 s{s_flh}, s{s_flh}, s{s_tmp}")
    e(f"s_add_u32 s{s_flh}, s{s_flh}, {FL + 32768}")
    e(f"s_lshr_b32 s{s_flc}, s{s_rb3}, 1")
    e(f"s_lshl_b32 s{s_flc}, s{s_flc}, 10")
    e(f"s_add_u32 s{s_flc}, s{s_flc}, {FL + 32768}")

def kv_ops(a, guard=True):
    ops = []
    for reg, lds, tag in ((KF, ATK, "AK"), (VF, ATV, "AV")):
        for i in range(3):
            def f(reg=reg, lds=lds, tag=tag, i=i):
                l = None
                if guard:
                    l = a.newlabel("Lkvg")
                    a.e(f"s_cmp_eq_u32 s{s_ok}, 0")
                    a.e(f"s_cbranch_scc1 {l}")
                a.e(f"s_mul_i32 s{s_tmp4}, s{s_wv}, 3072")
                a.e(f"s_add_u32 s{s_tmp}, s{s_kvb}, {reg - 16384 + i*1024}")
                dma(a, v_l16, sWS, f"s{s_tmp}", s_tmp4, lds + i*1024, tag, sc1=True)
                if l: a.label(l)
            ops.append(f)
    return ops

def issue_kv(a, which, track=True):
    sv = list(a.vm)
    for f in kv_ops(a, guard=False): f()
    if not track: a.vm = sv

def s1_items(pieces, slot_of):
    items = []
    for i in pieces:
        sl = slot_of[i]
        if i < 4:
            for s in range(8):
                items.append(dict(pc=i, ks=8*i + s, tl=0, vb=v_trn, off=s*2048, sec=512, sl=sl, xs=s))
        else:
            j = i - 4
            for s in range(4):
                for tl in range(2):
                    items.append(dict(pc=i, ks=4*j + s, tl=tl, vb=(v_trw2 if tl else v_trw), off=None, s=s, sl=sl, xs=None))
    return items

def stage1(a, isv):
    raise NotImplementedError

ORDER = CFG['order']
T3U = env('GEN_T3U', 99)
FLUSH = 1
USPLIT = CFG['usplit']

class S1:
    D = env('GEN_D', 5)
    def __init__(self, a):
        self.a = a; self.lg = Lg(a); self.n = 0
        self.fifo = []
        self.slot_of = dict(CFG["init"])
        self.w2_slot = {}
        self.base = {}
        self.sched = CFG["sched"]
    def sync(self, u, extra_need=(), hook=None):
        a = self.a
        i = ORDER[u]
        need = [f"P{i}"] + ([f"X{i}"] if i < 4 else []) + list(extra_need)
        if FLUSH: self.pump(len(self.fifo))
        if u <= CFG['lg']:
            a.wait_vm(need, lgkm0=True)
            self.lg.clear()
        else:
            a.wait_vm(need)
        a.e("s_barrier")
        if STAMPS2: stamp(a)
        if hook: hook()
        for kind, pc, sl in self.sched.get(u, []):
            if kind == "P": self.slot_of[pc] = sl; self.fifo += piece_ops(a, pc, sl)
            elif kind == "X": self.fifo += x_ops(a, pc)
            else: self.w2_slot[pc] = sl; self.fifo += w2_ops(a, pc, sl)
        self.base = {}
    def pump(self, n=1):
        for _ in range(n):
            if self.fifo: self.fifo.pop(0)()
    def read(self, it):
        a = self.a
        b = BF + (it["n"] % 8) * 4
        sl = it["sl"]
        if it["xs"] is not None:
            s = it["xs"]; xq = it["pc"]
            r = v_t0 + (s & 1)
            a.e(f"v_xor_b32 v{r}, {s*32}, v{v_xrd}")
            off = XSLOT[xq]*SLOT
            if off > 65535:
                a.e(f"v_add_u32 v{r}, {off}, v{r}"); off = 0
            a.e(f"ds_read_b128 {vr(XF + it['ks']*4, 4)}, v{r} offset:{off}")
            self.lg.add(("x", it["ks"]))
        vb = it["vb"]
        if it["pc"] < 4:
            off, sec = it["off"], it["sec"]
            o = sl*SLOT + off
            if o + sec > 65535:
                if vb not in self.base:
                    a.e(f"v_add_u32 v{v_t4}, {sl*SLOT}, v{vb}"); self.base[vb] = v_t4
                vb = self.base[vb]; o = off
            a.e(f"ds_read_b64_tr_b16 {vr(b,2)}, v{vb} offset:{o}")
            a.e(f"ds_read_b64_tr_b16 {vr(b+2,2)}, v{vb} offset:{o + sec}")
        else:
            s = it["s"]; tl = it["tl"]
            if tl == 1:
                o = sl*SLOT + s*16*192; sec = 4*192
                if o + sec > 65535 - 16384:
                    if vb not in self.base:
                        a.e(f"v_add_u32 v{v_t5}, {sl*SLOT}, v{vb}"); self.base[vb] = v_t5
                    vb = self.base[vb]; o = s*16*192
                a.e(f"ds_read_b64_tr_b16 {vr(b,2)}, v{vb} offset:{o}")
                a.e(f"ds_read_b64_tr_b16 {vr(b+2,2)}, v{vb} offset:{o + sec}")
            else:
                if s == 0:
                    a.e(f"v_add_u32 v{v_t4}, {sl*SLOT}, v{v_trw}")
                    a.e(f"v_add_u32 v{v_t0}, {sl*SLOT}, v{v_omg2}")
                else:
                    a.e(f"v_add_u32 v{v_t4}, s{s_k16}, v{v_t4}")
                    a.e(f"v_add_u32 v{v_t0}, s{s_k16}, v{v_t0}")
                a.e(f"ds_read_b64_tr_b16 {vr(b,2)}, v{v_t4}")
                a.e(f"ds_read_b64_tr_b16 {vr(b+2,2)}, v{v_t0}")
        self.lg.add(("b", it["n"])); self.lg.add(("b", it["n"]))
    def mm(self, it, isv):
        a = self.a
        self.lg.wait([("b", it["n"]), ("x", it["ks"])])
        b = BF + (it["n"] % 8) * 4
        if it["pc"] < 4:
            acc = ACC2
            cin = "0" if it["ks"] == 0 else acc
            if isv: mfma(a, acc, XF + it["ks"]*4, b, cin)
            else: mfma(a, acc, b, XF + it["ks"]*4, cin)
        else:
            acc = ACC + 16*it["tl"]
            cin = "0" if it["ks"] == 0 else acc
            mfma(a, acc, b, XF + it["ks"]*4, cin)

ACC2 = MASKF
s_k16 = 93

def build_maskd(a):
    e = a.e
    e(f"v_and_b32 v{v_t2}, 31, v{v_lane}")
    e(f"v_lshlrev_b32 v{v_t3}, 2, v{v_hi}")
    e(f"v_sub_u32 v{v_t2}, v{v_t2}, v{v_t3}")
    e(f"v_mov_b32 v{v_t3}, 0xf149f2ca")
    for r in range(16):
        cr = (r & 3) + 8 * (r >> 2)
        e(f"v_cmp_gt_i32 vcc, {cr}, v{v_t2}")
        e("s_nop 1")
        e(f"v_cndmask_b32 v{MASKD+r}, 0, v{v_t3}, vcc")

PRE = env("GEN_PRE", 2)
def run_stage1(a):
    e = a.e
    a.c("================ stage 1 ================")
    D = S1.D
    base_lines = a.lines
    outs = []
    ns0 = a.nstamp; vm0 = list(a.vm)
    state = {}
    def hook(u, st):
        if u == 1 and TOUCH >= 2 and TOUCH not in (7, 9): touch(a, (sW2, sWO), 240)
        if T3U <= u < T3U + 4: st.fifo.append(lambda u=u: touch_l2_s3(a, u - T3U, 4))
        if u == env("GEN_TLBV", 3): tlb_warm_v(a)
        if u == CFG['non']:
            a.e(f"v_mov_b32 v{v_t2}, 0")
            a.vmem(f"buffer_load_dwordx2 v[{v_non}:{v_non+1}], v{v_t2}, {srd(sDBG)}, 0 offen sc1", "NON")
        if u == SIG0:
            get_nonce(a); signal(a, 0)
        VE = env("GEN_VE", 0)
        if u == CFG["kvi"] - VE:
            flag_issue(a, v_kf, v_non + 2, "FKV")
        if u == CFG["kvc"] - VE:
            flag_check(a, v_non + 2, "FKV")
            a.e(f"s_cselect_b32 s{s_ok}, 1, 0")
            ops = kv_ops(a)
            if VE: st.fifo = ops[3:] + st.fifo
            else: st.fifo = ops + st.fifo
        if VE and u == CFG["kvc"]:
            st.fifo = kv_ops(a)[:3] + st.fifo
    def do_mm(st, pend, isv):
        it = pend.pop(0)
        st.mm(it, isv)
        if it["pc"] == 3 and it["ks"] == 31: state["kvdone"] = 0
        elif "kvdone" in state:
            state["kvdone"] += 1
            if state["kvdone"] == 2:
                a.e("s_nop 7")
                pack_tile(a, ACC2, ACC2, False)
                store_pk(a, ACC2, s_st0, "ST0")
        st.pump(1)
    def unit(st, u, pend, n, isv, q0=0, q1=8, items=None):
        pc = ORDER[u]
        if items is None:
            if u <= CFG["lg"]:
                for _ in range(min(PRE, len(pend))): do_mm(st, pend, isv)
            st.sync(u, ["ST0"] if u == SIG0 else [], lambda: hook(u, st))
            items = s1_items([pc], st.slot_of)
            for it in items: it["n"] = n; n += 1
        for q in range(q0, q1):
            st.read(items[q]); pend.append(items[q])
            if len(pend) > D: do_mm(st, pend, isv)
            elif q % 2 == 1 and len(pend) > 2 and u > 0 and pend[0]["pc"] != pc: do_mm(st, pend, isv)
        return n, items
    for isv in (0, 1):
        a.lines = []; a.vm = list(vm0); a.nstamp = ns0; state.clear()
        st = S1(a)
        if isv: a.label("L_s1v")
        pend = []; n = 0
        for u in range(0, USPLIT):
            n, _ = unit(st, u, pend, n, isv)
        n, items = unit(st, USPLIT, pend, n, isv, 0, 0)
        q = 0
        while any(it["pc"] < 4 for it in pend):
            unit(st, USPLIT, pend, n, isv, q, q + 1, items); q += 1
            if q >= 8:
                while any(it["pc"] < 4 for it in pend): do_mm(st, pend, isv)
        st.pump(len(st.fifo))
        if not isv: a.e("s_branch L_s1w")
        outs.append((a.lines, list(a.vm), st, pend, n, items, q, dict(state)))
    assert outs[0][1] == outs[1][1]
    a.lines = base_lines + outs[0][0] + outs[1][0]
    _, vm, st, pend, n, items_s, q0, stt = outs[1]
    a.vm = vm
    a.label("L_s1w")
    unit(st, USPLIT, pend, n, 0, q0, 8, items_s)
    for u in range(USPLIT + 1, 12):
        n, _ = unit(st, u, pend, n, 0)
    while pend: do_mm(st, pend, 0)
    st.pump(len(st.fifo))
    e("s_nop 7"); e("s_nop 3")
    gate(a)
    pack_tile(a, ACC + 16, BF + 8, True)
    store_pk(a, BF + 8, s_st2, "ST1")
    pack_tile(a, ACC, BF, False)
    l = a.newlabel("Lq"); l2 = a.newlabel("Lqd")
    e(f"s_cmp_eq_u32 s{s_cgp}, 0")
    e(f"s_cbranch_scc1 {l}")
    for q in range(8): e(f"v_pk_max_i16 v{BF+q}, v{BF+q}, 0")
    a.label(l)
    store_pk(a, BF, s_st1, "ST1")
    return st.w2_slot

SIG0 = CFG['sig0']

def gate(a):
    e = a.e
    l = a.newlabel("Lgate")
    e(f"s_cmp_lg_u32 s{s_cg}, 15")
    e(f"s_cbranch_scc1 {l}")
    e(f"s_cmp_lg_u32 s{s_cgp}, 1")
    e(f"s_cbranch_scc1 {l}")
    e(f"v_cvt_pk_bf16_f32 v{v_t1}, v{ACC+16}, v{ACC+16}")
    e(f"v_lshlrev_b32 v{v_t1}, 16, v{v_t1}")
    e(f"v_mul_f32 v{v_t1}, 0xbfb8aa3b, v{v_t1}")
    e(f"v_exp_f32 v{v_t1}, v{v_t1}")
    e("s_nop 0")
    e(f"v_add_f32 v{v_t1}, 1.0, v{v_t1}")
    e(f"v_rcp_f32 v{v_t1}, v{v_t1}")
    e("s_nop 0")
    e(f"v_cvt_pk_bf16_f32 v{v_t1}, v{v_t1}, v{v_t1}")
    e(f"v_lshlrev_b32 v{v_t1}, 16, v{v_t1}")
    e(f"v_lshlrev_b32 v{v_t0}, 2, v{v_lane}")
    e(f"s_lshl_b32 s{s_tmp}, s{s_rb}, 2")
    e(f"s_add_u32 s{s_tmp}, s{s_tmp}, s{s_rg}")
    e(f"s_lshl_b32 s{s_tmp}, s{s_tmp}, 7")
    e(f"s_add_u32 s{s_tmp}, s{s_tmp}, {GB}")
    e(f"s_mov_b64 s[{s_exec}:{s_exec+1}], exec")
    e("s_mov_b32 exec_lo, -1")
    e("s_mov_b32 exec_hi, 0")
    e(f"buffer_store_dword v{v_t1}, v{v_t0}, {srd(sWS)}, s{s_tmp} offen sc1")
    e(f"s_mov_b64 exec, s[{s_exec}:{s_exec+1}]")
    a.label(l)

def Sreg(b):
    if b == 0: return MASKF
    if b == 8: return MASKD
    return 64 + 16*(b-1)
KFR = 176; QFR = 212; VROT = 216; OACC = 232
v_max = 248; v_max2 = 249; v_vrd = 250; v_krd = 251

def AFreg(n):
    if n < 10: return 176 + 4*n
    if n < 14: return 48 + 4*(n-10)
    if n < 18: return 160 + 4*(n-14)
    return 144 + 4*(n-18)
def AOreg(n):
    return 128 + 4*n if n < 4 else 32 + 4*(n-4)
BF3 = 64; ACB = 96; ACA = 216

def s3_addr_setup(a):
    e = a.e
    e(f"s_lshl_b32 s{s_tmp3}, s{s_rb3}, 1")
    e(f"s_add_u32 s{s_tmp3}, s{s_tmp3}, s{s_cgp}")
    e(f"s_mul_i32 s{s_a3}, s{s_tmp3}, {HROW}")
    e(f"s_lshl_b32 s{s_tmp}, s{s_rg}, 10")
    if HROT:
        e(f"s_mul_i32 s{s_r3}, s{s_cb3}, 11")
        e(f"s_lshr_b32 s{s_r3}, s{s_r3}, 3")
        e(f"s_lshl_b32 s{s_p}, s{s_r3}, 17")
        e(f"s_lshl_b32 s{s_r3}, s{s_r3}, 13")
        e(f"s_add_u32 s{s_r3}, s{s_r3}, s{s_tmp}")
    else:
        e(f"s_add_u32 s{s_a3}, s{s_a3}, s{s_tmp}")
    e(f"s_add_u32 s{s_a3}, s{s_a3}, {HF}")
    e(f"s_lshl_b32 s{s_a3o}, s{s_tmp3}, 15")
    e(f"s_add_u32 s{s_a3o}, s{s_a3o}, s{s_tmp}")
    e(f"s_add_u32 s{s_a3o}, s{s_a3o}, {OF}")
    e(f"s_lshl_b32 s{s_ga}, s{s_tmp3}, 7")
    e(f"s_add_u32 s{s_ga}, s{s_ga}, {GB}")

def h_loads(a, ns, track=True):
    e = a.e
    for n in ns:
        if n == "g":
            e(f"v_and_b32 v{v_t0}, 31, v{v_lane}")
            e(f"v_lshlrev_b32 v{v_t0}, 2, v{v_t0}")
            ins = f"buffer_load_dword v{v_g2}, v{v_t0}, {srd(sWS)}, s{s_ga} offen sc1"
            (a.vmem(ins, "G") if track else e(ins))
            continue
        if HROT:
            e(f"s_add_u32 s{s_tmp}, s{s_r3}, {n*4096}")
            e(f"s_sub_u32 s{s_tmp2}, s{s_tmp}, {22*4096}")
            e(f"s_cselect_b32 s{s_tmp}, s{s_tmp}, s{s_tmp2}")
            e(f"s_cmp_ge_u32 s{s_tmp}, {HROW}")
            e(f"s_cselect_b32 s{s_tmp}, {OOB}, s{s_tmp}")
            e(f"s_add_u32 s{s_tmp}, s{s_tmp}, s{s_a3}")
        else:
            e(f"s_add_u32 s{s_tmp}, s{s_a3}, {n*4096}")
            if n == 21:
                e(f"s_cmp_ge_u32 s{s_rg}, 2")
                e(f"s_cselect_b32 s{s_tmp}, {OOB}, s{s_tmp}")
        ins = f"buffer_load_dwordx4 {vr(AFreg(n),4)}, v{v_l16}, {srd(sWS)}, s{s_tmp} offen sc1"
        (a.vmem(ins, f"H{n}") if track else e(ins))

def guarded_h_loads(a, ns, track=True):
    l = a.newlabel("Lhl")
    a.e(f"s_cmp_eq_u32 s{s_ok}, 0")
    a.e(f"s_cbranch_scc1 {l}")
    h_loads(a, ns, track)
    a.label(l)

def flags16(a, phase, vdst):
    e = a.e
    e(f"s_lshr_b32 s{s_tmp}, s{s_rb3}, 1")
    e(f"s_lshl_b32 s{s_tmp}, s{s_tmp}, 11")
    e(f"s_add_u32 s{s_tmp}, s{s_tmp}, {FL + phase*32768}")
    e(f"v_and_b32 v{vdst}, 15, v{v_lane}")
    e(f"v_lshlrev_b32 v{vdst}, 7, v{vdst}")
    e(f"v_add_u32 v{vdst}, s{s_tmp}, v{vdst}")
    e(f"s_mov_b32 s{s_m}, 0xffff")
    e(f"s_mov_b32 s{s_m+1}, 0")

SIGB = env('GEN_SIGB', 1)
HB_ISSUE, HB_CHECK = env("GEN_HBI", 5), env("GEN_HBC", 3)

def attention(a, slot_of):
    e = a.e
    a.c("================ attention ================")
    e(f"s_lshl_b32 s{s_tmp}, s{s_rg}, 10")
    e(f"s_add_u32 s{s_tmp}, s{s_tmp}, {ATQ}")
    e(f"v_add_u32 v{v_t0}, s{s_tmp}, v{v_l16}")
    l = a.newlabel("Lqx")
    e(f"s_cmp_lg_u32 s{s_cgp}, 0")
    e(f"s_cbranch_scc1 {l}")
    e(f"ds_write_b128 v{v_t0}, {vr(BF+4,4)}")
    for i in range(4): e(f"v_mov_b32 v{QFR+i}, v{BF+i}")
    a.label(l)
    l = a.newlabel("Lkvok")
    e(f"s_cmp_lg_u32 s{s_ok}, 0")
    e(f"s_cbranch_scc1 {l}")
    poll(a, v_kf)
    issue_kv(a, "KV", track=False)
    e("s_waitcnt vmcnt(0)")
    a.label(l)
    l = a.newlabel("Lgm")
    e(f"s_cmp_eq_u32 s{s_gw}, 0")
    e(f"s_cbranch_scc1 {l}")
    build_maskd(a)
    a.label(l)
    stamp(a)
    e(f"v_add_u32 v{v_krd}, s{s_krd}, v{v_l16}")
    e(f"v_mov_b32 v{v_t3}, 0xf149f2ca")
    for r in range(16):
        e(f"v_sub_f32 v{MASKF+r}, v{v_t3}, v{MASKD+r}")
    a.wait_vm(["AK", "AV"], lgkm0=True)
    e("s_barrier")
    stamp(a)
    lg = Lg(a)
    l = a.newlabel("Lqr")
    e(f"s_cmp_eq_u32 s{s_cgp}, 0")
    e(f"s_cbranch_scc1 {l}")
    e(f"ds_read_b128 {vr(QFR,4)}, v{v_t0}")
    a.label(l)
    for b in range(8, -1, -1):
        e(f"ds_read_b128 {vr(KFR+4*b,4)}, v{v_krd} offset:{b*2048}"); lg.add(("k", b))
    fill = []
    for pc, sl in zip((4, 5), CFG["post"]):
        slot_of[pc] = sl; fill += w2_ops(a, pc, sl)
    c = 0.25 * math.log2(math.e)
    cbits = struct.unpack("<I", struct.pack("<f", c))[0]
    misc = [f"v_mov_b32 v{VROT+i}, 0x3f803f80" for i in range(16)]
    misc += [f"v_mov_b32 v{v_c2}, 0x{cbits:08x}", f"v_mov_b32 v{v_c2+1}, 0x{cbits:08x}", f"v_add_u32 v{v_vrd}, s{s_vrdb}, v{v_l16}"]
    for b in range(8, -1, -1):
        lg.wait([("k", b)])
        S = Sreg(b)
        mfma(a, S, KFR + 4*b, QFR, S if b in (0, 8) else "0")
        for _ in range(3):
            if misc: e(misc.pop(0))
        if fill and b % 2 == 0: fill.pop(0)()
    while misc: e(misc.pop(0))
    while fill: fill.pop(0)()
    if SIGB == 1:
        a.wait_vm("ST1"); signal_wave(a)
    lmax = a.newlabel("Lmaxd")
    e("s_nop 4")
    for b in range(8, -1, -1):
        S = Sreg(b)
        if b < 8:
            e(f"s_cmp_gt_u32 s{s_first}, {b}")
            e(f"s_cbranch_scc1 {lmax}")
        for q in range(8):
            if b == 8 and q == 0:
                e(f"v_max_f32 v{v_max}, v{S}, v{S+1}")
            else:
                e(f"v_max3_f32 v{v_max}, v{S+2*q}, v{S+2*q+1}, v{v_max}")
    a.label(lmax)
    e(f"v_mov_b32 v{v_max2}, v{v_max}")
    e("s_nop 1")
    e(f"v_permlane32_swap_b32 v{v_max}, v{v_max2}")
    e("s_nop 1")
    e(f"v_max_f32 v{v_max}, v{v_max}, v{v_max2}")
    e(f"v_mul_f32 v{v_mc}, v{v_c2}, v{v_max}")
    e(f"v_sub_f32 v{v_mc}, 0, v{v_mc}")
    e(f"v_mov_b32 v{v_mc+1}, v{v_mc}")
    if SIGB == 2:
        a.wait_vm("ST1"); signal_wave(a)
    def softmax_block(b):
        S = Sreg(b)
        for q in range(8):
            e(f"v_pk_fma_f32 v[{S+2*q}:{S+2*q+1}], v[{S+2*q}:{S+2*q+1}], v[{v_c2}:{v_c2+1}], v[{v_mc}:{v_mc+1}]")
        for r in range(16):
            e(f"v_exp_f32 v{S+r}, v{S+r}")
        for q in range(8):
            e(f"v_cvt_pk_bf16_f32 v{S+q}, v{S+2*q}, v{S+2*q+1}")
    softmax_block(8)
    e("s_barrier")
    stamp(a)
    for pc, sl in ((6, CFG['atk']), (7, CFG['atk']+1)):
        slot_of[pc] = sl; issue_w2_piece(a, pc, sl)
    lg = Lg(a)
    def vread(n):
        b = 8 - n//2; m = n % 2
        e(f"ds_read_b128 {vr(VROT + 4*(n%4), 4)}, v{v_vrd} offset:{b*2048 + m*1024}")
        lg.add(("v", n))
    e(f"s_mov_b64 exec, s[{s_vm}:{s_vm+1}]")
    vread(0); vread(1)
    e("s_mov_b64 exec, -1")
    lpv = a.newlabel("Lpvd")
    e(f"s_mov_b32 s{s_ok}, 0")
    skip_labels = {}
    hl = list(range(22)) + ["g"]
    per = -(-len(hl) // (HB_CHECK + 1))
    def post_block(b, track):
        if b == HB_ISSUE: hflag_issue(a, track)
        if b == HB_CHECK:
            if track: a.wait_vm("FH")
            else: e("s_waitcnt vmcnt(0)")
            cmp_flags4(a, 252)
            e(f"s_cselect_b32 s{s_ok}, 1, 0")
        if b <= HB_CHECK:
            i0 = (HB_CHECK - b) * per
            if hl[i0:i0+per]: guarded_h_loads(a, hl[i0:i0+per], track)
    for b in range(8, -1, -1):
        S = Sreg(b)
        n0 = 2*(8 - b)
        if b < 8:
            skip_labels[b] = a.newlabel("Lskip")
            e(f"s_cmp_gt_u32 s{s_first}, {b}")
            e(f"s_cbranch_scc1 {skip_labels[b]}")
        if b > 0:
            e(f"s_mov_b64 exec, s[{s_vm}:{s_vm+1}]")
            vread(n0 + 2); vread(n0 + 3)
            e("s_mov_b64 exec, -1")
        if b < 8: softmax_block(b)
        lg.wait([("v", n0), ("v", n0+1)])
        e("s_nop 0")
        mfma(a, OACC, VROT + 4*(n0 % 4), S, "0" if b == 8 else OACC)
        mfma(a, OACC, VROT + 4*((n0+1) % 4), S + 4, OACC)
        post_block(b, True)
    e(f"s_branch {lpv}")
    for b in range(7, -1, -1):
        a.label(skip_labels[b])
        post_block(b, False)
    a.label(lpv)
    e("s_waitcnt lgkmcnt(0)")
    e("s_nop 7"); e("s_nop 3")
    e(f"v_rcp_f32 v{v_max}, v{OACC+8}")
    e("s_nop 0")
    for r in range(8):
        e(f"v_mul_f32 v{OACC+r}, v{OACC+r}, v{v_max}")
    for q in range(4):
        e(f"v_cvt_pk_bf16_f32 v{248+q}, v{OACC+2*q}, v{OACC+2*q+1}")
    e(f"buffer_store_dwordx4 v[248:251], v{v_l16}, {srd(sWS)}, s{s_oa} offen sc1")
    l = a.newlabel("Lhok")
    e(f"s_cmp_lg_u32 s{s_ok}, 0")
    e(f"s_cbranch_scc1 {l}")
    hpoll(a)
    h_loads(a, list(range(22)) + ["g"], track=False)
    a.label(l)
    stamp(a)
s_oa = 94

def compute3(a, pieces, slot_of, cnt):
    e = a.e
    work = []
    for pc in pieces:
        for u in range(2):
            if pc <= 10: af = AFreg(2*pc + u); tag = f"H{2*pc+u}"; acc = ACB; first = (pc == 0 and u == 0)
            else: af = AOreg(2*(pc-11) + u); tag = f"O{2*(pc-11)+u}"; acc = ACA; first = (pc == 11 and u == 0)
            for ct in range(2):
                work.append((slot_of[pc], u, ct, af, tag, acc + 16*ct, first))
    lg = Lg(a)
    cur = {}
    def rd(w):
        sl, u, ct, af, tag, acc, first = work[w]
        vb = v_tr3b if ct else v_tr3
        off = sl*SLOT + u*8192
        if off + 1024 > 65535:
            r = v_t5 if ct else v_t4
            if cur.get(ct) != sl:
                e(f"v_add_u32 v{r}, {sl*SLOT}, v{vb}")
                cur[ct] = sl
            vb = r; off = u*8192
        b = BF3 + ((cnt[0] + w) % 8)*4
        e(f"ds_read_b64_tr_b16 {vr(b,2)}, v{vb} offset:{off}")
        e(f"ds_read_b64_tr_b16 {vr(b+2,2)}, v{vb} offset:{off + 1024}")
        lg.add(w); lg.add(w)
    D = 4
    for w in range(min(D, len(work))): rd(w)
    for w in range(len(work)):
        if w + D < len(work): rd(w + D)
        sl, u, ct, af, tag, acc, first = work[w]
        a.wait_vm(tag)
        lg.wait([w])
        b = BF3 + ((cnt[0] + w) % 8)*4
        mfma(a, acc, b, af, "0" if first else acc)
    cnt[0] += len(work)
    lg.drain()

S3J = env('GEN_S3J', 1)
def o_loads(a, track=True):
    for n in range(8):
        a.e(f"s_add_u32 s{s_tmp}, s{s_a3o}, {n*4096}")
        ins = f"buffer_load_dwordx4 {vr(AOreg(n),4)}, v{v_l16}, {srd(sWS)}, s{s_tmp} offen sc1"
        (a.vmem(ins, f"O{n}") if track else a.e(ins))

def o_check(a):
    e = a.e
    regs = [AOreg(n) + i for n in range(8) for i in range(4)]
    e(f"v_max3_u32 v{v_t2}, v{regs[0]}, v{regs[1]}, v{regs[2]}")
    i = 3
    while i < len(regs):
        if i + 1 < len(regs):
            e(f"v_max3_u32 v{v_t2}, v{regs[i]}, v{regs[i+1]}, v{v_t2}"); i += 2
        else:
            e(f"v_max_u32 v{v_t2}, v{regs[i]}, v{v_t2}"); i += 1
    e(f"v_cmp_eq_u32 vcc, -1, v{v_t2}")
    e("s_nop 3")
    e("s_cmp_eq_u64 vcc, 0")

def stage3(a, slot_of):
    e = a.e
    a.c("================ stage 3 ================")
    D = 4
    lg = Lg(a)
    fifo = []
    cur = {}
    V0 = CFG["atv"]
    def assign(pc, sl):
        slot_of[pc] = sl
        for f in w2_ops(a, pc, sl):
            f.tag = f"Q{pc}"; fifo.append(f)
    def o_verify():
        a.wait_vm("O7")
        lp = a.newlabel("Lop"); ld = a.newlabel("Lod")
        e(f"s_mov_b32 s{s_cnt}, 0")
        a.label(lp)
        o_check(a)
        e(f"s_cbranch_scc1 {ld}")
        o_loads(a, track=False)
        e("s_waitcnt vmcnt(0)")
        e(f"s_add_u32 s{s_cnt}, s{s_cnt}, 1")
        e(f"s_cmp_lt_u32 s{s_cnt}, 100000")
        e(f"s_cbranch_scc1 {lp}")
        a.label(ld)
        stamp(a)
    def o_ops():
        ops = []
        for n in range(8):
            def f(n=n):
                a.e(f"s_add_u32 s{s_tmp}, s{s_a3o}, {n*4096}")
                a.vmem(f"buffer_load_dwordx4 {vr(AOreg(n),4)}, v{v_l16}, {srd(sWS)}, s{s_tmp} offen sc1", f"O{n}")
            f.tag = f"O{n}"
            ops.append(f)
        return ops
    syncs = {
        S3J: (["Q4", "Q5", "Q6", "Q7"], lambda: (assign(8, V0), assign(9, V0 + 1))),
        4: ([], lambda: (assign(10, slot_of[0]), assign(11, slot_of[1]), assign(12, slot_of[2]))),
        6: ([], lambda: (assign(13, slot_of[3]), assign(14, slot_of[4]), fifo.extend(o_ops()))),
        8: (["Q8", "Q9"], None),
        10: (["Q10", "Q11", "Q12"], None),
        13: (["Q13", "Q14"], None),
    }
    items = []
    for pc in range(15):
        for u in range(2):
            for ct in range(2):
                items.append((pc, u, ct))
    def rd(w):
        pc, u, ct = items[w]
        if u == 0 and ct == 0 and pc in syncs:
            tags, act = syncs[pc]
            while any(f.tag in tags for f in fifo): fifo.pop(0)()
            a.wait_vm(tags)
            e("s_barrier")
            if STAMPS2: stamp(a)
            if act: act()
        sl = slot_of[pc]
        vb = v_tr3b if ct else v_tr3
        off = sl*SLOT + u*8192
        if off + 1024 > 65535:
            r = v_t5 if ct else v_t4
            if cur.get(ct) != sl:
                e(f"v_add_u32 v{r}, {sl*SLOT}, v{vb}")
                cur[ct] = sl
            vb = r; off = u*8192
        b = BF3 + (w % 8)*4
        e(f"ds_read_b64_tr_b16 {vr(b,2)}, v{vb} offset:{off}")
        e(f"ds_read_b64_tr_b16 {vr(b+2,2)}, v{vb} offset:{off + 1024}")
        lg.add(w); lg.add(w)
    done = set(["Q4", "Q5", "Q6", "Q7"])
    for w in range(D): rd(w)
    for w in range(len(items)):
        if w + D < len(items):
            rd(w + D)
        pc, u, ct = items[w]
        if pc <= 10: af = AFreg(2*pc + u); tag = f"H{2*pc+u}"; acc = ACB; first = (pc == 0 and u == 0)
        else: af = AOreg(2*(pc-11) + u); tag = f"O{2*(pc-11)+u}"; acc = ACA; first = (pc == 11 and u == 0)
        if pc == 11 and u == 0 and ct == 0:
            while fifo: fifo.pop(0)()
            o_verify()
        a.wait_vm(tag)
        lg.wait([w])
        b = BF3 + (w % 8)*4
        mfma(a, acc + 16*ct, b, af, "0" if first else acc + 16*ct)
        if fifo: fifo.pop(0)()
        if pc >= 11:
            k = w - 44
            if k == 0:
                a.wait_vm("G")
                e(f"v_sub_f32 v{v_c2}, 1.0, v{v_g2}")
                e(f"v_cvt_pk_bf16_f32 v{v_c2}, v{v_c2}, v{v_c2}")
                e(f"v_lshlrev_b32 v{v_c2}, 16, v{v_c2}")
                e(f"v_mov_b32 v{v_c2+1}, v{v_c2}")
                e(f"v_mov_b32 v{v_g2+1}, v{v_g2}")
            elif 2 <= k < 10:
                for q in (2*(k-2), 2*(k-2)+1):
                    e(f"v_pk_mul_f32 v[{ACB+2*q}:{ACB+2*q+1}], v[{ACB+2*q}:{ACB+2*q+1}], v[{v_c2}:{v_c2+1}]")
    lg.drain()
    stamp(a)
    PS = [slot_of[p] for p in (5, 6, 7, 8)]
    e(f"s_cmp_eq_u32 s{s_rg}, 1"); e(f"s_movk_i32 s{s_tmp}, {PS[0]}"); e(f"s_cselect_b32 s{s_tmp}, {PS[1]}, s{s_tmp}")
    e(f"s_cmp_eq_u32 s{s_rg}, 2"); e(f"s_cselect_b32 s{s_tmp}, {PS[2]}, s{s_tmp}")
    e(f"s_cmp_eq_u32 s{s_rg}, 3"); e(f"s_cselect_b32 s{s_tmp}, {PS[3]}, s{s_tmp}")
    e(f"s_lshl_b32 s{s_tmp}, s{s_tmp}, 14")
    e(f"s_lshl_b32 s{s_tmp2}, s{s_cgp}, 13")
    e(f"s_add_u32 s{s_tmp}, s{s_tmp}, s{s_tmp2}")
    e(f"v_and_b32 v{v_t0}, 31, v{v_lane}")
    e(f"v_and_b32 v{v_t1}, 7, v{v_lane}")
    e(f"v_xor_b32 v{v_t1}, v{v_t1}, v{v_hi}")
    e(f"v_lshlrev_b32 v{v_t1}, 4, v{v_t1}")
    e(f"v_lshl_add_u32 v{v_t0}, v{v_t0}, 8, v{v_t1}")
    e(f"v_add_u32 v{v_t0}, s{s_tmp}, v{v_t0}")
    e("s_nop 4")
    for ct in range(2):
        for g4 in range(4):
            b0 = 16*ct + 4*g4
            for q in range(2):
                e(f"v_pk_fma_f32 v[{ACB+b0+2*q}:{ACB+b0+2*q+1}], v[{ACA+b0+2*q}:{ACA+b0+2*q+1}], v[{v_g2}:{v_g2+1}], v[{ACB+b0+2*q}:{ACB+b0+2*q+1}]")
            r = v_t2 + (g4 & 1)
            e(f"v_xor_b32 v{r}, {g4*32}, v{v_t0}")
            e(f"ds_write_b128 v{r}, {vr(ACB + b0, 4)} offset:{ct*128}")
    e(f"v_lshrrev_b32 v{v_t0}, 3, v0")
    e(f"v_and_b32 v{v_t1}, 7, v0")
    e(f"v_and_b32 v{v_t2}, 7, v{v_t0}")
    e(f"v_lshlrev_b32 v{v_t3}, 1, v{v_t1}")
    e(f"v_xor_b32 v{v_t2}, v{v_t2}, v{v_t3}")
    e(f"v_lshlrev_b32 v{v_t2}, 4, v{v_t2}")
    e(f"v_lshl_add_u32 v{v_t2}, v{v_t0}, 8, v{v_t2}")
    e(f"v_xor_b32 v{v_t3}, 16, v{v_t2}")
    e(f"v_add_u32 v{v_t4}, 0x10000, v{v_t2}")
    e(f"v_add_u32 v{v_t5}, 0x10000, v{v_t3}")
    e(f"v_add_u32 v{v_trn}, 0x20000, v{v_t2}")
    e(f"v_add_u32 v{v_trw}, 0x20000, v{v_t3}")
    e(f"v_lshlrev_b32 v{v_t0}, 10, v{v_t0}")
    e(f"v_lshl_add_u32 v{v_t0}, v{v_t1}, 4, v{v_t0}")
    e(f"s_lshl_b32 s{s_tmp}, s{s_rb3}, 16")
    e(f"s_lshl_b32 s{s_tmp2}, s{s_cb3}, 7")
    e(f"s_add_u32 s{s_tmp}, s{s_tmp}, s{s_tmp2}")
    e("s_waitcnt lgkmcnt(0)")
    e("s_barrier")
    for kq in range(4):
        off = PS[kq]*SLOT
        ra, rb_ = ((v_t2, v_t3), (v_t4, v_t5), (v_trn, v_trw))[off >> 16]
        e(f"ds_read_b128 {vr(64 + 8*kq, 4)}, v{ra} offset:{off & 0xffff}")
        e(f"ds_read_b128 {vr(68 + 8*kq, 4)}, v{rb_} offset:{off & 0xffff}")
    e("s_waitcnt lgkmcnt(4)")
    for q in range(4):
        e(f"v_pk_add_f32 v[{64+2*q}:{65+2*q}], v[{64+2*q}:{65+2*q}], v[{72+2*q}:{73+2*q}]")
    e("s_waitcnt lgkmcnt(0)")
    for q in range(4):
        e(f"v_pk_add_f32 v[{80+2*q}:{81+2*q}], v[{80+2*q}:{81+2*q}], v[{88+2*q}:{89+2*q}]")
    for q in range(4):
        e(f"v_pk_add_f32 v[{64+2*q}:{65+2*q}], v[{64+2*q}:{65+2*q}], v[{80+2*q}:{81+2*q}]")
    for q in range(4):
        e(f"v_cvt_pk_bf16_f32 v{64+q}, v{64+2*q}, v{65+2*q}")
    e(f"buffer_store_dwordx4 v[64:67], v{v_t0}, {srd(sOUT)}, s{s_tmp} offen {os.environ.get('GEN_OST','sc1').replace('_',' ')}")
    stamp(a, final=True)

def common_setup(a):
    e = a.e
    l = a.newlabel("Lcas")
    e(f"s_or_b32 s{s_nonce}, s{s_nonce}, 1")
    e(f"s_or_b32 s{s_tmp}, s{s_wv}, s2")
    e(f"s_cmp_lg_u32 s{s_tmp}, 0")
    e(f"s_cbranch_scc1 {l}")
    e(f"v_mov_b32 v{v_non}, s{s_nonce}")
    e(f"v_mov_b32 v{v_non+1}, s{s_nonce+1}")
    e(f"v_mov_b32 v{v_t4}, 0")
    e(f"s_mov_b64 s[{s_exec}:{s_exec+1}], exec")
    e("s_mov_b64 exec, 1")
    e(f"buffer_store_dwordx2 {vr(v_non,2)}, v{v_t4}, {srd(sDBG)}, 0 offen sc1")
    e(f"s_mov_b64 exec, s[{s_exec}:{s_exec+1}]")
    a.label(l)
    e(f"s_lshl_b32 s{s_tmp}, s{s_rb}, 2")
    e(f"s_add_u32 s{s_tmp}, s{s_tmp}, s{s_rg}")
    e(f"s_lshl_b32 s{s_oa}, s{s_tmp}, 15")
    e(f"s_lshl_b32 s{s_tmp2}, s{s_cg}, 1")
    e(f"s_add_u32 s{s_tmp2}, s{s_tmp2}, s{s_cgp}")
    e(f"s_lshl_b32 s{s_tmp2}, s{s_tmp2}, 10")
    e(f"s_add_u32 s{s_oa}, s{s_oa}, s{s_tmp2}")
    e(f"s_add_u32 s{s_oa}, s{s_oa}, {OF}")
    for i in range(4): e(f"v_mov_b32 v{ACC+i}, -1")
    a.vmem(f"buffer_store_dwordx4 {vr(ACC,4)}, v{v_l16}, {srd(sWS)}, s{s_oa} offen sc1", "SENT")
    e(f"v_and_b32 v{v_t0}, 31, v{v_lane}")
    e(f"v_lshrrev_b32 v{v_hi}, 5, v{v_lane}")
    e(f"v_and_b32 v{v_t1}, 15, v{v_lane}")
    e(f"v_xor_b32 v{v_t1}, v{v_t1}, v{v_hi}")
    e(f"v_lshlrev_b32 v{v_t1}, 4, v{v_t1}")
    e(f"v_lshl_add_u32 v{v_xrd}, v{v_t0}, 8, v{v_t1}")
    e(f"s_lshl_b32 s{s_tmp}, s{s_rg}, 13")
    e(f"v_add_u32 v{v_xrd}, s{s_tmp}, v{v_xrd}")
    e(f"v_and_b32 v{v_t0}, 15, v{v_lane}")
    e(f"v_lshrrev_b32 v{v_t1}, 2, v{v_t0}")
    e(f"v_bfe_u32 v{v_t2}, v{v_lane}, 4, 1")
    e(f"v_bfe_u32 v{v_t3}, v{v_lane}, 1, 1")
    e(f"v_lshl_add_u32 v{v_t2}, v{v_t2}, 1, v{v_t3}")
    e(f"v_and_b32 v{v_t3}, 1, v{v_lane}")
    e(f"v_lshlrev_b32 v{v_t3}, 3, v{v_t3}")
    e(f"v_lshl_add_u32 v{v_t2}, v{v_t2}, 4, v{v_t3}")
    e(f"v_lshrrev_b32 v{v_t3}, 1, v{v_t1}")
    e(f"v_xor_b32 v{v_t4}, s{s_cgp}, v{v_t3}")
    e(f"v_lshl_add_u32 v{v_t4}, v{v_t4}, 6, v{v_t2}")
    e(f"v_lshl_add_u32 v{v_t5}, v{v_hi}, 3, v{v_t1}")
    e(f"v_lshl_add_u32 v{v_trn}, v{v_t5}, 7, v{v_t4}")
    e(f"s_cmp_eq_u32 s{s_cgp}, 0")
    e(f"s_movk_i32 s{s_tmp}, 192")
    e(f"s_cselect_b32 s{s_tmp}, 64, s{s_tmp}")
    e(f"s_lshl_b32 s{s_k16}, s{s_tmp}, 4")
    e(f"s_lshl_b32 s{s_tmp2}, s{s_cgp}, 12")
    e(f"v_mad_u32_u24 v{v_trw}, v{v_t5}, s{s_tmp}, v{v_t2}")
    e(f"v_add_u32 v{v_trw}, s{s_tmp2}, v{v_trw}")
    e(f"s_lshl_b32 s{s_tmp}, s{s_tmp}, 2")
    e(f"v_add_u32 v{v_omg2}, s{s_tmp}, v{v_trw}")
    e(f"s_movk_i32 s{s_tmp}, 192")
    e(f"v_mad_u32_u24 v{v_trw2}, v{v_t5}, s{s_tmp}, v{v_t2}")
    e(f"s_lshl_b32 s{s_tmp2}, s{s_cgp}, 6")
    e(f"s_add_u32 s{s_tmp2}, s{s_tmp2}, {4096 + 64}")
    e(f"v_add_u32 v{v_trw2}, s{s_tmp2}, v{v_trw2}")
    e(f"v_lshl_add_u32 v{v_t4}, v{v_t3}, 6, v{v_t2}")
    e(f"v_lshl_add_u32 v{v_t5}, v{v_hi}, 2, v{v_t1}")
    e(f"v_lshl_add_u32 v{v_tr3}, v{v_t5}, 7, v{v_t4}")
    e(f"s_lshl_b32 s{s_tmp}, s{s_rg}, 11")
    e(f"v_add_u32 v{v_tr3}, s{s_tmp}, v{v_tr3}")
    e(f"v_xor_b32 v{v_tr3b}, 64, v{v_tr3}")

def wide_setup(a):
    e = a.e
    lq = a.newlabel("Lwq"); lj = a.newlabel("Lwj")
    e(f"s_cmp_lt_u32 s{s_wv}, 2")
    e(f"s_cbranch_scc1 {lq}")
    e(f"s_mov_b32 s{sPW}, s{sW1}"); e(f"s_mov_b32 s{sPW+1}, s{sW1+1}"); e(f"s_mov_b32 s{sPW+2}, {512*1376*2}"); e(f"s_mov_b32 s{sPW+3}, 0x00020000")
    e(f"s_sub_u32 s{s_tmp}, s{s_wv}, 2")
    e(f"s_lshl_b32 s{s_tmp}, s{s_tmp}, 7")
    e(f"s_movk_i32 s{s_tmp3}, 2752")
    e(f"s_movk_i32 s{s_tmp4}, 5462")
    for t in range(2):
        e(f"v_add_u32 v{v_t0}, s{s_tmp}, v{v_lane}")
        if t: e(f"v_add_u32 v{v_t0}, 64, v{v_t0}")
        e(f"v_mul_u32_u24 v{v_t1}, s{s_tmp4}, v{v_t0}")
        e(f"v_lshrrev_b32 v{v_t1}, 16, v{v_t1}")
        e(f"v_mul_u32_u24 v{v_t2}, 12, v{v_t1}")
        e(f"v_sub_u32 v{v_t0}, v{v_t0}, v{v_t2}")
        e(f"v_lshlrev_b32 v{v_t0}, 4, v{v_t0}")
        e(f"v_mad_u32_u24 v{v_wd0+t}, v{v_t1}, s{s_tmp3}, v{v_t0}")
    e(f"s_mul_i32 s{s_wbase}, s{s_cg}, 192")
    e(f"s_cmp_eq_u32 s{s_cg}, 15")
    e(f"s_cselect_b32 s{s_wbase}, {OOB}, s{s_wbase}")
    e(f"s_mov_b32 s{s_pstep}, {64*2752}")
    e(f"s_branch {lj}")
    a.label(lq)
    e(f"s_mov_b32 s{sPW}, s{sWQ}"); e(f"s_mov_b32 s{sPW+1}, s{sWQ+1}"); e(f"s_mov_b32 s{sPW+2}, {512*1536*2}"); e(f"s_mov_b32 s{sPW+3}, 0x00020000")
    e(f"s_lshl_b32 s{s_tmp}, s{s_wv}, 5")
    e(f"s_movk_i32 s{s_tmp3}, 3072")
    e(f"v_lshrrev_b32 v{v_t1}, 2, v{v_lane}")
    e(f"v_add_u32 v{v_t1}, s{s_tmp}, v{v_t1}")
    e(f"v_and_b32 v{v_t0}, 3, v{v_lane}")
    e(f"v_lshlrev_b32 v{v_t0}, 4, v{v_t0}")
    e(f"v_mad_u32_u24 v{v_wd0}, v{v_t1}, s{s_tmp3}, v{v_t0}")
    e(f"v_add_u32 v{v_wd1}, {16*3072}, v{v_wd0}")
    e(f"s_lshl_b32 s{s_wbase}, s{s_cg}, 6")
    e(f"s_mov_b32 s{s_pstep}, {64*3072}")
    a.label(lj)

def gen():
    a = Asm()
    e = a.e
    e("s_cmp_ge_u32 s2, 256")
    e("s_cbranch_scc1 L_exit")
    stamp(a)
    e("s_load_dwordx4 s[8:11], s[0:1], 0")
    e("s_load_dwordx2 s[24:25], s[0:1], 16")
    e("s_load_dwordx4 s[16:19], s[0:1], 32")
    e("s_load_dwordx4 s[36:39], s[0:1], 48")
    e("s_load_dwordx4 s[40:43], s[0:1], 64")
    e(f"s_memrealtime s[{s_nonce}:{s_nonce+1}]")
    e(f"v_and_b32 v{v_lane}, 63, v0")
    e(f"v_lshrrev_b32 v{v_t0}, 6, v0")
    e(f"v_lshlrev_b32 v{v_l16}, 4, v{v_lane}")
    e(f"v_readfirstlane_b32 s{s_wv}, v{v_t0}")
    e(f"s_and_b32 s{s_tmp}, s2, 7")
    e(f"s_lshr_b32 s{s_tmp2}, s2, 3")
    e(f"s_and_b32 s{s_rb}, s{s_tmp}, 1")
    e(f"s_lshl_b32 s{s_rb}, s{s_rb}, 3")
    e(f"s_and_b32 s{s_tmp3}, s{s_tmp2}, 7")
    e(f"s_add_u32 s{s_rb}, s{s_rb}, s{s_tmp3}")
    e(f"s_lshr_b32 s{s_cg}, s{s_tmp}, 1")
    e(f"s_lshl_b32 s{s_cg}, s{s_cg}, 2")
    e(f"s_lshr_b32 s{s_tmp3}, s{s_tmp2}, 3")
    e(f"s_add_u32 s{s_cg}, s{s_cg}, s{s_tmp3}")
    e(f"s_lshr_b32 s{s_p}, s{s_cg}, 1")
    e(f"s_and_b32 s{s_t}, s{s_cg}, 1")
    e(f"s_lshl_b32 s{s_rb3}, s{s_tmp}, 2")
    e(f"s_and_b32 s{s_tmp3}, s{s_tmp2}, 3")
    e(f"s_add_u32 s{s_rb3}, s{s_rb3}, s{s_tmp3}")
    e(f"s_lshr_b32 s{s_cb3}, s{s_tmp2}, 2")
    e(f"s_and_b32 s{s_rg}, s{s_wv}, 3")
    e(f"s_lshr_b32 s{s_cgp}, s{s_wv}, 2")
    e(f"s_lshl_b32 s{s_ldsw}, s{s_wv}, 11")
    e(f"s_lshl_b32 s{s_xlds}, s{s_wv}, 12")
    e(f"s_lshl_b32 s{s_xbase}, s{s_rb}, 17")
    e(f"s_lshl_b32 s{s_tmp3}, s{s_wv}, 14")
    e(f"s_add_u32 s{s_xbase}, s{s_xbase}, s{s_tmp3}")
    if STAMPS:
        e(f"s_lshl_b32 s{s_tsb}, s2, 3")
        e(f"s_add_u32 s{s_tsb}, s{s_tsb}, s{s_wv}")
        e(f"s_lshl_b32 s{s_tsb}, s{s_tsb}, 7")
        e(f"s_add_u32 s{s_tsb}, s{s_tsb}, {TS}")
    e(f"v_lshrrev_b32 v{v_t0}, 4, v{v_lane}")
    e(f"v_and_b32 v{v_t1}, 15, v{v_lane}")
    e(f"v_xor_b32 v{v_t1}, v{v_t1}, v{v_t0}")
    e(f"v_lshlrev_b32 v{v_t0}, 10, v{v_t0}")
    for t in range(4):
        e(f"v_xor_b32 v{v_t2}, {4*t}, v{v_t1}")
        e(f"v_lshl_add_u32 v{v_xo+t}, v{v_t2}, 4, v{v_t0}")
    e(f"v_lshrrev_b32 v{v_t0}, 3, v{v_lane}")
    e(f"v_and_b32 v{v_t1}, 7, v{v_lane}")
    e(f"v_lshrrev_b32 v{v_t2}, 2, v{v_lane}")
    e(f"v_and_b32 v{v_t2}, 4, v{v_t2}")
    e(f"v_xor_b32 v{v_t1}, v{v_t1}, v{v_t2}")
    e(f"v_lshlrev_b32 v{v_t1}, 4, v{v_t1}")
    e(f"s_movk_i32 s{s_tmp3}, 3072")
    e(f"v_mad_u32_u24 v{v_wq_n}, v{v_t0}, s{s_tmp3}, v{v_t1}")
    e(f"v_lshl_add_u32 v{v_w2_n}, v{v_t0}, 10, v{v_t1}")
    e(f"s_mul_i32 s{s_naroff}, s{s_wv}, {16*3072}")
    e(f"s_lshl_b32 s{s_tmp3}, s{s_p}, 7")
    e(f"s_add_u32 s{s_naroff}, s{s_naroff}, s{s_tmp3}")
    e(f"s_lshl_b32 s{s_tmp3}, s{s_t}, 10")
    e(f"s_add_u32 s{s_naroff}, s{s_naroff}, s{s_tmp3}")
    e(f"s_add_u32 s{s_naroff}, s{s_naroff}, 1024")
    e(f"s_lshl_b32 s{s_tmp3}, s{s_p}, 1")
    e(f"s_add_u32 s{s_tmp3}, s{s_tmp3}, s{s_cgp}")
    e(f"s_lshl_b32 s{s_tmp3}, s{s_tmp3}, 6")
    e(f"s_lshl_b32 s{s_tmp4}, s{s_rb}, 2")
    e(f"s_add_u32 s{s_tmp4}, s{s_tmp4}, s{s_rg}")
    e(f"s_add_u32 s{s_tmp3}, s{s_tmp3}, s{s_tmp4}")
    e(f"s_lshl_b32 s{s_st0}, s{s_tmp3}, 11")
    e(f"s_lshl_b32 s{s_tmp3}, s{s_t}, 21")
    e(f"s_add_u32 s{s_st0}, s{s_st0}, s{s_tmp3}")
    e(f"s_add_u32 s{s_st0}, s{s_st0}, {KF}")
    e(f"s_mul_i32 s{s_tmp4}, s{s_tmp4}, {HROW}")
    e(f"s_add_u32 s{s_tmp4}, s{s_tmp4}, {HF}")
    e(f"s_mul_i32 s{s_tmp3}, s{s_cg}, 3")
    e(f"s_lshl_b32 s{s_st1}, s{s_tmp3}, 11")
    e(f"s_add_u32 s{s_st1}, s{s_st1}, s{s_tmp4}")
    e(f"s_cmp_ge_u32 s{s_tmp3}, 43")
    e(f"s_cselect_b32 s{s_st1}, {OOB}, s{s_st1}")
    e(f"s_cmp_eq_u32 s{s_cgp}, 0")
    e(f"s_cselect_b32 s{s_st1}, {OOB}, s{s_st1}")
    e(f"s_add_u32 s{s_tmp3}, s{s_tmp3}, s{s_cgp}")
    e(f"s_add_u32 s{s_tmp3}, s{s_tmp3}, 1")
    e(f"s_lshl_b32 s{s_st2}, s{s_tmp3}, 11")
    e(f"s_add_u32 s{s_st2}, s{s_st2}, s{s_tmp4}")
    e(f"s_cmp_ge_u32 s{s_tmp3}, 43")
    e(f"s_cselect_b32 s{s_st2}, {OOB}, s{s_st2}")
    e(f"s_lshl_b32 s{s_w2off}, s{s_wv}, 14")
    e(f"s_lshl_b32 s{s_tmp3}, s{s_cb3}, 7")
    e(f"s_add_u32 s{s_w2off}, s{s_w2off}, s{s_tmp3}")
    e("s_waitcnt lgkmcnt(0)")
    e("s_mov_b32 s12, s10"); e("s_mov_b32 s13, s11"); e(f"s_mov_b32 s14, {512*1536*2}"); e("s_mov_b32 s15, 0x00020000")
    e(f"s_mov_b32 s10, {2048*512*2}"); e("s_mov_b32 s11, 0x00020000")
    e("s_mov_b32 s32, s38"); e("s_mov_b32 s33, s39"); e(f"s_mov_b32 s34, {2048*512*2}"); e("s_mov_b32 s35, 0x00020000")
    e("s_mov_b32 s38, 1024"); e("s_mov_b32 s39, 0x00020000")
    e(f"s_mov_b32 s{s_ldsww}, 0")
    e(f"s_mov_b32 s{s_gw}, 0")
    lg_ = a.newlabel("Lgs")
    e(f"s_cmp_lg_u32 s{s_cg}, 15")
    e(f"s_cbranch_scc1 {lg_}")
    e(f"s_cmp_lt_u32 s{s_wv}, 2")
    e(f"s_cbranch_scc1 {lg_}")
    e(f"s_mov_b32 s{s_ldsww}, 0x30000")
    e(f"s_cmp_lg_u32 s{s_wv}, 2")
    e(f"s_cbranch_scc1 {lg_}")
    e(f"s_mov_b32 s{s_gw}, 1")
    e(f"v_lshlrev_b32 v{v_t0}, 1, v{v_lane}")
    for j in range(8):
        e(f"buffer_load_ushort v{GREG+j}, v{v_t0}, {srd(sGW)}, 0 offen offset:{j*128}")
    e(f"s_movk_i32 s{s_tmp3}, 192")
    e(f"v_mul_u32_u24 v{v_g2}, s{s_tmp3}, v{v_lane}")
    a.label(lg_)
    e("s_mov_b32 s20, s18"); e("s_mov_b32 s21, s19"); e(f"s_mov_b32 s22, {1376*512*2}"); e("s_mov_b32 s23, 0x00020000")
    e(f"s_mov_b32 s18, {512*1376*2}"); e("s_mov_b32 s19, 0x00020000")
    if TOUCH in (2, 9): touch(a, (sWQ, sW1) if env('GEN_NOX',0) else (sX, sWQ, sW1), 224)
    if TOUCH == 4: touch_l2(a)
    if TOUCH == 10: touch_xcd(a)
    issue_x_quarter(a, 0)
    issue_piece(a, 0, CFG['init'][0])
    if TOUCH == 3: touch(a, (sX, sWQ, sW1), 224)
    if TOUCH == 5: touch_l2(a)
    if TOUCH == 11: touch_xcd(a)
    e(f"s_mov_b32 s26, {512*512*2}"); e("s_mov_b32 s27, 0x00020000")
    e("s_mov_b32 s28, s42"); e("s_mov_b32 s29, s43"); e(f"s_mov_b32 s30, {WS_BYTES}"); e("s_mov_b32 s31, 0x00020000")
    e("s_mov_b32 s42, 256"); e("s_mov_b32 s43, 0x00020000")
    if env("GEN_TLB", 2): tlb_warm(a, env("GEN_TLB", 2))
    if env("GEN_CPF", 0):
        e(f"s_getpc_b64 s[{s_m2}:{s_m2+1}]")
        a.label("L_pc")
        e(f"s_lshr_b32 s{s_tmp}, s2, 3")
        e(f"s_lshl_b32 s{s_tmp}, s{s_tmp}, 3")
        e(f"s_add_u32 s{s_tmp}, s{s_tmp}, s{s_wv}")
        e(f"s_lshl_b32 s{s_tmp}, s{s_tmp}, 6")
        e(f"s_load_dword s{s_cnt}, s[{s_m2}:{s_m2+1}], s{s_tmp}")
        e(f"s_lshr_b32 s{s_tmp}, s{s_tmp}, 2")
        e(f"s_and_b32 s{s_tmp}, s{s_tmp}, 0xfc0")
        e(f"s_add_u32 s{s_tmp}, s{s_tmp}, 16384")
        e(f"s_min_u32 s{s_tmp}, s{s_tmp}, L_exit-L_pc")
        e(f"s_load_dword s{s_cnt}, s[{s_m2}:{s_m2+1}], s{s_tmp}")
    if TOUCH == 9: touch(a, (sW2, sWO), 240)
    if TOUCH == 7: touch_scalar(a, "xq12o")
    if TOUCH == 8: touch_scalar(a, "xq1")
    stamp(a)
    if env("GEN_ST3",0): stamp(a)
    common_setup(a)
    wide_setup(a)
    if env("GEN_ST3",0): stamp(a)
    kv_flag_setup(a)
    lm_ = a.newlabel("Lmk")
    e(f"s_cmp_lg_u32 s{s_gw}, 0")
    e(f"s_cbranch_scc1 {lm_}")
    build_maskd(a)
    a.label(lm_)
    if env("GEN_ST3",0): stamp(a)
    e("s_barrier")
    issue_x_quarter(a, 1)
    issue_piece(a, 1, CFG['init'][1])
    e(f"s_cmp_lg_u32 s{s_t}, 0")
    e("s_cbranch_scc1 L_s1v")
    w2_slot = run_stage1(a)
    stamp(a)
    attention(a, w2_slot)
    stage3(a, w2_slot)
    a.label("L_exit")
    a.e("s_endpgm")
    return a

def touch(a, srds, T):
    e = a.e
    e(f"s_lshl_b32 s{s_tmp}, s2, 3")
    e(f"s_add_u32 s{s_tmp}, s{s_tmp}, s{s_wv}")
    e(f"s_lshl_b32 s{s_tmp}, s{s_tmp}, 10")
    for i, sr in enumerate(srds):
        a.vmem(f"buffer_load_dwordx4 {vr(T+4*i,4)}, v{v_l16}, {srd(sr)}, s{s_tmp} offen", "TCH")

def touch_l2(a):
    e = a.e
    T = 224
    lx = a.newlabel("Ltx"); lk = a.newlabel("Ltk"); lq = a.newlabel("Ltq"); lj = a.newlabel("Ltj")
    e(f"s_lshr_b32 s{s_tmp}, s2, 3")
    e(f"s_and_b32 s{s_tmp2}, s2, 7")
    e(f"s_lshr_b32 s{s_tmp3}, s{s_tmp2}, 1")
    e(f"s_cmp_lt_u32 s{s_wv}, 4")
    e(f"s_cbranch_scc1 {lx}")
    e(f"s_cmp_eq_u32 s{s_wv}, 4")
    e(f"s_cbranch_scc1 {lk}")
    e(f"s_cmp_eq_u32 s{s_wv}, 5")
    e(f"s_cbranch_scc1 {lq}")
    e(f"s_sub_u32 s{s_tmp4}, s{s_wv}, 6")
    e(f"s_lshl_b32 s{s_tmp4}, s{s_tmp4}, 3")
    e(f"s_lshl_b32 s{s_tmp}, s{s_tmp}, 4")
    e(f"s_add_u32 s{s_tmp}, s{s_tmp}, s{s_tmp4}")
    e(f"s_mul_i32 s{s_tmp}, s{s_tmp}, 2752")
    e(f"s_mul_i32 s{s_tmp3}, s{s_tmp3}, 768")
    e(f"s_add_u32 s{s_tmp}, s{s_tmp}, s{s_tmp3}")
    e(f"v_lshrrev_b32 v{v_t0}, 3, v{v_lane}")
    e(f"s_movk_i32 s{s_tmp4}, 2752")
    e(f"v_mul_u32_u24 v{v_t0}, s{s_tmp4}, v{v_t0}")
    e(f"v_and_b32 v{v_t1}, 7, v{v_lane}")
    e(f"v_min_u32 v{v_t1}, 6, v{v_t1}")
    e(f"v_lshl_add_u32 v{v_t0}, v{v_t1}, 7, v{v_t0}")
    e(f"buffer_load_dword v{T}, v{v_t0}, {srd(sW1)}, s{s_tmp} offen")
    e(f"s_branch {lj}")
    a.label(lx)
    e(f"s_and_b32 s{s_tmp2}, s{s_tmp2}, 1")
    e(f"s_lshl_b32 s{s_tmp2}, s{s_tmp2}, 20")
    e(f"s_lshl_b32 s{s_tmp}, s{s_tmp}, 15")
    e(f"s_add_u32 s{s_tmp}, s{s_tmp}, s{s_tmp2}")
    e(f"s_lshl_b32 s{s_tmp2}, s{s_wv}, 8")
    e(f"s_add_u32 s{s_tmp}, s{s_tmp}, s{s_tmp2}")
    e(f"v_lshrrev_b32 v{v_t0}, 1, v{v_lane}")
    e(f"v_lshlrev_b32 v{v_t0}, 10, v{v_t0}")
    e(f"v_and_b32 v{v_t1}, 1, v{v_lane}")
    e(f"v_lshl_add_u32 v{v_t0}, v{v_t1}, 7, v{v_t0}")
    e(f"buffer_load_dword v{T}, v{v_t0}, {srd(sX)}, s{s_tmp} offen")
    e(f"s_branch {lj}")
    a.label(lk)
    e(f"s_mul_i32 s{s_tmp}, s{s_tmp}, {16*3072}")
    e(f"s_lshl_b32 s{s_tmp3}, s{s_tmp3}, 8")
    e(f"s_add_u32 s{s_tmp}, s{s_tmp}, s{s_tmp3}")
    e(f"s_add_u32 s{s_tmp}, s{s_tmp}, 1024")
    e(f"v_lshrrev_b32 v{v_t0}, 2, v{v_lane}")
    e(f"s_movk_i32 s{s_tmp4}, 3072")
    e(f"v_mul_u32_u24 v{v_t0}, s{s_tmp4}, v{v_t0}")
    e(f"v_and_b32 v{v_t1}, 1, v{v_lane}")
    e(f"v_lshl_add_u32 v{v_t0}, v{v_t1}, 10, v{v_t0}")
    e(f"v_bfe_u32 v{v_t1}, v{v_lane}, 1, 1")
    e(f"v_lshl_add_u32 v{v_t0}, v{v_t1}, 7, v{v_t0}")
    e(f"buffer_load_dword v{T}, v{v_t0}, {srd(sWQ)}, s{s_tmp} offen")
    e(f"s_branch {lj}")
    a.label(lq)
    e(f"s_mul_i32 s{s_tmp}, s{s_tmp}, {16*3072}")
    e(f"s_lshl_b32 s{s_tmp3}, s{s_tmp3}, 8")
    e(f"s_add_u32 s{s_tmp}, s{s_tmp}, s{s_tmp3}")
    e(f"v_bfe_u32 v{v_t0}, v{v_lane}, 1, 4")
    e(f"s_movk_i32 s{s_tmp4}, 3072")
    e(f"v_mul_u32_u24 v{v_t0}, s{s_tmp4}, v{v_t0}")
    e(f"v_and_b32 v{v_t1}, 1, v{v_lane}")
    e(f"v_lshl_add_u32 v{v_t0}, v{v_t1}, 7, v{v_t0}")
    e(f"buffer_load_dword v{T}, v{v_t0}, {srd(sWQ)}, s{s_tmp} offen")
    a.label(lj)
    a.vm.append("TCH")

def touch_l2_s3(a, part, nparts):
    e = a.e
    T = v_xo + 3
    l1 = a.newlabel("Lt3"); lj = a.newlabel("Lt3j")
    n = 64 // nparts
    mask = ((1 << n) - 1) << (n * part)
    e(f"s_lshr_b32 s{s_tmp}, s2, 3")
    e(f"s_lshl_b32 s{s_tmp}, s{s_tmp}, 3")
    e(f"s_add_u32 s{s_tmp}, s{s_tmp}, s{s_wv}")
    e(f"s_mul_i32 s{s_tmp}, s{s_tmp}, {n*128}")
    e(f"s_add_u32 s{s_tmp}, s{s_tmp}, {part * 256 * n * 128 - part*n*128}")
    e(f"v_lshlrev_b32 v{v_t2}, 7, v{v_lane}")
    e(f"s_mov_b32 exec_lo, 0x{mask & 0xffffffff:x}")
    e(f"s_mov_b32 exec_hi, 0x{mask >> 32:x}")
    lim = 1376*1024
    if (part + 1) * 256 * n * 128 <= 0x180000:
        e(f"buffer_load_dword v{T}, v{v_t2}, {srd(sW2)}, s{s_tmp} offen")
    else:
        e(f"s_sub_u32 s{s_tmp}, s{s_tmp}, 0x180000")
        e(f"buffer_load_dword v{T}, v{v_t2}, {srd(sWO)}, s{s_tmp} offen")
    e("s_mov_b64 exec, -1")
    a.vm.append("TCH")

def touch_scalar(a, which):
    e = a.e
    e(f"s_lshl_b32 s{s_tmp}, s2, 3")
    e(f"s_add_u32 s{s_tmp}, s{s_tmp}, s{s_wv}")
    tab = {"x": (sX, 8), "q": (sWQ, 6), "1": (sW1, 6), "2": (sW2, 6), "o": (sWO, 2)}
    for w in which:
        sr, n = tab[w]
        e(f"s_mul_i32 s{s_tmp2}, s{s_tmp}, {n*128}")
        for i in range(n):
            e(f"s_buffer_load_dword s{s_cnt}, {srd(sr)}, s{s_tmp2} offset:{i*128}")

def tlb_warm(a, mode):
    e = a.e
    e(f"s_lshl_b32 s{s_tmp}, s{s_wv}, 21")
    e(f"s_buffer_load_dword s{s_cnt}, {srd(sWS)}, s{s_tmp}")
    e(f"s_add_u32 s{s_tmp}, s{s_tmp}, 0x100000")
    e(f"s_buffer_load_dword s{s_cnt}, {srd(sWS)}, s{s_tmp}")
    e(f"s_lshl_b32 s{s_tmp}, s{s_wv}, 18")
    e(f"s_buffer_load_dword s{s_cnt}, {srd(sOUT)}, s{s_tmp}")
    if mode >= 2:
        e(f"s_buffer_load_dword s{s_cnt}, {srd(sW2)}, s{s_tmp}")
        e(f"s_buffer_load_dword s{s_cnt}, {srd(sWO)}, s{s_tmp}")
        e(f"s_buffer_load_dword s{s_cnt}, {srd(sDBG)}, 128")

def tlb_warm_v(a):
    e = a.e
    l = a.newlabel("Ltlb")
    e(f"s_cmp_lg_u32 s{s_wv}, 7")
    e(f"s_cbranch_scc1 {l}")
    e(f"v_lshlrev_b32 v{v_t2}, 20, v{v_lane}")
    e("s_mov_b64 exec, 0xffff")
    e(f"buffer_load_dword v{v_xo}, v{v_t2}, {srd(sWS)}, 0 offen")
    e("s_mov_b64 exec, 0xff")
    e(f"v_lshlrev_b32 v{v_t2}, 18, v{v_lane}")
    e(f"buffer_load_dword v{v_xo+1}, v{v_t2}, {srd(sOUT)}, 0 offen")
    e("s_mov_b64 exec, -1")
    a.label(l)

def touch_xcd(a):
    e = a.e
    T = 224
    e(f"s_lshr_b32 s{s_tmp}, s2, 3")
    e(f"s_lshl_b32 s{s_tmp}, s{s_tmp}, 3")
    e(f"s_add_u32 s{s_tmp}, s{s_tmp}, s{s_wv}")
    e(f"s_and_b32 s{s_tmp2}, s2, 1")
    e(f"s_bfe_u32 s{s_tmp3}, s2, 0x20001")
    e(f"s_lshl_b32 s{s_tmp4}, s{s_tmp2}, 2")
    e(f"s_add_u32 s{s_tmp4}, s{s_tmp4}, s{s_tmp3}")
    e(f"s_lshl_b32 s{s_tmp4}, s{s_tmp4}, 8")
    e(f"s_add_u32 s{s_tmp4}, s{s_tmp4}, s{s_tmp}")
    e(f"s_lshl_b32 s{s_tmp4}, s{s_tmp4}, 10")
    a.vmem(f"buffer_load_dwordx4 {vr(T,4)}, v{v_l16}, {srd(sX)}, s{s_tmp4} offen", "TCH")
    e(f"v_lshrrev_b32 v{v_t0}, 4, v{v_lane}")
    e(f"s_movk_i32 s{s_tmp4}, 3072")
    e(f"v_mul_u32_u24 v{v_t0}, s{s_tmp4}, v{v_t0}")
    e(f"v_and_b32 v{v_t1}, 15, v{v_lane}")
    e(f"v_lshl_add_u32 v{v_t0}, v{v_t1}, 4, v{v_t0}")
    e(f"s_and_b32 s{s_tmp4}, s{s_tmp}, 63")
    e(f"s_lshl_b32 s{s_cnt}, s{s_tmp2}, 6")
    e(f"s_add_u32 s{s_tmp4}, s{s_tmp4}, s{s_cnt}")
    e(f"s_mul_i32 s{s_tmp4}, s{s_tmp4}, {4*3072}")
    e(f"s_lshr_b32 s{s_cnt}, s{s_tmp}, 6")
    e(f"s_sub_u32 s{s_cnt}, 2, s{s_cnt}")
    e(f"s_lshl_b32 s{s_cnt}, s{s_cnt}, 10")
    e(f"s_add_u32 s{s_tmp4}, s{s_tmp4}, s{s_cnt}")
    e(f"s_lshl_b32 s{s_cnt}, s{s_tmp3}, 8")
    e(f"s_add_u32 s{s_tmp4}, s{s_tmp4}, s{s_cnt}")
    e(f"s_cmp_ge_u32 s{s_tmp}, 192")
    e(f"s_cselect_b32 s{s_tmp4}, {OOB}, s{s_tmp4}")
    a.vmem(f"buffer_load_dwordx4 {vr(T+4,4)}, v{v_t0}, {srd(sWQ)}, s{s_tmp4} offen", "TCH")
    e(f"s_lshl_b32 s{s_tmp4}, s{s_tmp2}, 8")
    e(f"s_add_u32 s{s_tmp4}, s{s_tmp4}, s{s_tmp}")
    e(f"s_mul_i32 s{s_tmp4}, s{s_tmp4}, 2752")
    e(f"s_mul_i32 s{s_cnt}, s{s_tmp3}, 768")
    e(f"s_add_u32 s{s_tmp4}, s{s_tmp4}, s{s_cnt}")
    e(f"s_and_b32 s{s_tmp4}, s{s_tmp4}, 0xffffff80")
    e("s_mov_b32 exec_hi, 0xffffff")
    a.vmem(f"buffer_load_dwordx4 {vr(T+8,4)}, v{v_l16}, {srd(sW1)}, s{s_tmp4} offen", "TCH")
    e("s_mov_b32 exec_hi, -1")

HEADER = open(os.path.join(os.path.dirname(os.path.abspath(__file__)), "..", "cdna_kernels", NAME + ".s.ref")).read().split("; Override launch")[0]

def emit_file(path):
    a = gen()
    s = HEADER
    s += "; @launch grid=(256,1,1) block=(512,1,1) lds=163840\n"
    s += f""".amdgcn_target "amdgcn-amd-amdhsa--gfx950"
.text
.globl {NAME}_kernel
.p2align 8
.type {NAME}_kernel,@function
{NAME}_kernel:
"""
    s += "\n".join(a.lines) + "\n"
    s += f""".section .rodata,"a"
.p2align 6
.amdhsa_kernel {NAME}_kernel
  .amdhsa_next_free_vgpr 256
  .amdhsa_next_free_sgpr {NSGPR}
  .amdhsa_accum_offset 256
  .amdhsa_group_segment_fixed_size 0
  .amdhsa_kernarg_size 80
  .amdhsa_user_sgpr_count 2
  .amdhsa_user_sgpr_kernarg_segment_ptr 1
  .amdhsa_system_sgpr_workgroup_id_x 1
.end_amdhsa_kernel
"""
    open(path, "w").write(s)

if __name__ == "__main__":
    out = sys.argv[1] if len(sys.argv) > 1 else os.path.join(os.path.dirname(os.path.abspath(__file__)), "..", "cdna_kernels", NAME + ".s")
    emit_file(out)
```

```python
import sys, math, os, struct

NAME = "gated_mix__sliding_block__dense_activation_relu__prompt"

KF = 0x200000
VF = 0x400000
OF = 0x600000
HF = 0x800000
GB = 0xE00000
FL = 0xF00000
TS = 0xF80000
WS_BYTES = 0x1000000
HROW = 86 * 1024
OOB = 0x40000000
SLOT = 16384

def env(n, d): return int(os.environ.get(n, d))
STAMPS = env("GEN_STAMPS", 0) >= 1
STAMPS2 = env("GEN_STAMPS", 0) >= 2
TOUCH = env("GEN_TOUCH", 10)
NT = env("GEN_NT", 0)
HROT = env("GEN_HROT", 0)
ROT = env("GEN_ROT", 0)

class Asm:
    def __init__(self):
        self.lines = []; self.vm = []; self.uid = 0; self.nstamp = 0
    def e(self, s): self.lines.append("    " + s)
    def label(self, l): self.lines.append(l + ":")
    def c(self, s): self.lines.append("    ; " + s)
    def newlabel(self, p="L"):
        self.uid += 1
        return f"{p}_{self.uid}"
    def vmem(self, s, tag):
        self.e(s); self.vm.append(tag)
    def wait_vm(self, tags, lgkm0=False):
        if isinstance(tags, str): tags = [tags]
        last = -1
        for i, t in enumerate(self.vm):
            if t in tags: last = i
        x = " lgkmcnt(0)" if lgkm0 else ""
        if last < 0:
            if lgkm0: self.e("s_waitcnt lgkmcnt(0)")
            return
        n = len(self.vm) - 1 - last
        assert n <= 63
        self.e(f"s_waitcnt vmcnt({n}){x}")
        self.vm = self.vm[last + 1:]

class Lg:
    def __init__(self, a): self.a = a; self.q = []
    def add(self, tag): self.q.append(tag)
    def wait(self, tags):
        last = -1
        for i, t in enumerate(self.q):
            if t in tags: last = i
        if last < 0: return
        n = min(len(self.q) - 1 - last, 15)
        self.a.e(f"s_waitcnt lgkmcnt({n})")
        self.q = self.q[len(self.q) - n:] if n else []
    def clear(self): self.q = []
    def drain(self):
        if self.q: self.a.e("s_waitcnt lgkmcnt(0)")
        self.q = []

sX, sWQ, sW1, sW2, sWO, sWS, sOUT, sGW, sDBG, sPW = 8, 12, 16, 20, 24, 28, 32, 36, 40, 88
def srd(b): return f"s[{b}:{b+3}]"
s_wv, s_rb, s_cg, s_p, s_t, s_rg, s_cgp, s_rb3, s_cb3, s_xbase = range(44, 54)
s_tmp, s_tmp2, s_wideoff, s_naroff = 54, 55, 56, 57
s_nonce = 58
s_tmp3, s_tmp4, s_st0, s_st1, s_first, s_w2off, s_xlds, s_cnt = range(60, 68)
s_exec = 68
s_m = 70; s_m2 = 72; s_m3 = 74
s_ldsw, s_a3, s_a3o, s_qb = 76, 77, 78, 79
s_vm = 80
s_ts = 82
s_tsb, s_ok, s_ga, s_pstep = 84, 85, 86, 87
s_st2 = 92
s_ldsww = 95
s_gw = 7
s_wbase = 5
GREG = 48
s_fl = 6
s_kvb = 3
s_krd = 4
s_vrdb = 98
s_flh = 99
s_r3 = 101
s_flc = 100
v_kf = 25
NSGPR = 102

v_lane, v_l16 = 1, 2
v_xo = 3
v_wq_n, v_wd0, v_wd1, v_xrd, v_trn, v_trw, v_tr3, v_w2_n = 7, 8, 9, 10, 11, 12, 13, 14
v_t0, v_t1 = 15, 16
v_hi = 17
v_t2, v_t3 = 18, 19
v_non = 20
v_c2 = 20
v_mc = 22
v_g2 = 24
v_omg2 = 26
v_t4, v_t5 = 28, 29
v_trw2, v_tr3b = 30, 31
MASKF = 32
MASKD = 48
BF = 64
ACC = 96
XF = 128
v_fo = 252; v_fd = 254

def vr(b, n): return f"v[{b}:{b+n-1}]"

ORD = os.environ.get("GEN_ORD", "A")
CFG = {
 "A": dict(order=[0,1,2,3,4,5,6,7,8,9,10,11], xslot={0:0,1:4,2:6,3:0}, init={0:2,1:3}, atk=6, atv=4, usplit=4, lg=4,
      sched={0:[("X",2,0),("P",2,8),("P",3,9)], 1:[("X",3,0),("P",4,2)], 2:[("P",5,4),("P",6,5),("P",7,3)],
             3:[("P",8,6),("P",9,7),("P",10,8)], 4:[("P",11,9)], 5:[("Q",0,0),("Q",1,1)], 6:[("Q",2,2)], 9:[("Q",3,3)]},
      sig0=6, kvi=9, kvc=11, post=(8,9), non=2),
 "C": dict(order=[0,1,4,2,5,3,6,7,8,9,10,11], xslot={0:0,1:3,2:8,3:0}, init={0:2,1:5}, atk=3, atv=0, usplit=6, lg=6,
      sched={0:[("P",4,6),("X",2,0),("P",2,7)], 1:[("P",5,2),("X",3,0)], 2:[("P",3,5),("P",6,3),("P",7,4)],
             3:[("P",8,6)], 4:[("P",9,7),("P",10,8),("P",11,9)], 5:[("Q",0,2)], 7:[("Q",1,5)], 10:[("Q",2,6)], 11:[("Q",3,7)]},
      sig0=8, kvi=10, kvc=11, post=(8,9), non=3),
}[ORD]
XSLOT = CFG["xslot"]
ATK = CFG['atk'] * SLOT
ATQ = ATK + 24576
ATV = CFG['atv'] * SLOT

v_st = 27
def stamp(a, final=False):
    if not STAMPS: return
    i = a.nstamp; a.nstamp += 1
    cur = s_ts + 2*(i & 1) if False else (s_ts if (i & 1) == 0 else 96)
    prev = (s_ts if ((i-1) & 1) == 0 else 96)
    if i > 0:
        a.e(f"v_writelane_b32 v{v_st}, s{prev}, {i-1}")
    a.e(f"{'s_memrealtime' if env('GEN_RT',0) else 's_memtime'} s[{cur}:{cur+1}]")
    if final:
        a.e("s_waitcnt lgkmcnt(0)")
        a.e(f"v_writelane_b32 v{v_st}, s{cur}, {i}")
        a.e(f"v_lshlrev_b32 v{v_t3}, 2, v{v_lane}")
        a.e("s_mov_b32 exec_lo, -1")
        a.e("s_mov_b32 exec_hi, 0")
        a.e(f"buffer_store_dword v{v_st}, v{v_t3}, {srd(sWS)}, s{s_tsb} offen")
        if env("GEN_DBG", 0):
            l = a.newlabel("Ldbg")
            a.e(f"s_cmp_lg_u32 s2, {env('GEN_DBG',0)}")
            a.e(f"s_cbranch_scc1 {l}")
            a.e(f"s_cmp_lg_u32 s{s_wv}, 0")
            a.e(f"s_cbranch_scc1 {l}")
            a.e(f"v_readlane_b32 s{s_tmp}, v{v_st}, 0")
            a.e("s_nop 3")
            a.e(f"v_subrev_u32 v{v_st}, s{s_tmp}, v{v_st}")
            a.e("s_mov_b32 exec_lo, 0x3ffe")
            a.e(f"buffer_store_dword v{v_st}, v{v_t3}, {srd(sDBG)}, 0 offen offset:4")
            a.label(l)

def dma(a, voff, srd_b, soff, lds_sgpr, ldsimm, tag, sc1=False):
    a.e(f"s_add_u32 m0, s{lds_sgpr}, {ldsimm}")
    a.e("s_nop 0")
    nt = " nt" if (not sc1 and ((NT & 1) and tag[0] in "XP" or (NT & 2) and tag[0] == "Q" or (NT & 4) and tag in ("X0", "P0") or (NT & 8) and tag in ("X1", "P1"))) else ""
    a.vmem(f"buffer_load_dwordx4 v{voff}, {srd(srd_b)}, {soff} offen{' sc1' if sc1 else ''}{nt} lds", tag)

def x_ops(a, j):
    ops = []
    for t in range(4):
        def f(t=t):
            a.e(f"s_add_u32 s{s_tmp}, s{s_xbase}, {t*4096 + j*256}")
            dma(a, v_xo + t, sX, f"s{s_tmp}", s_xlds, XSLOT[j]*SLOT + t*1024, f"X{j}")
        ops.append(f)
    return ops

def piece_ops(a, i, slot):
    ops = []
    for t in range(2):
        if i < 4:
            def f(t=t):
                a.e(f"s_add_u32 s{s_tmp}, s{s_naroff}, {(128*i + 8*t)*3072}")
                dma(a, v_wq_n, sWQ, f"s{s_tmp}", s_ldsw, slot*SLOT + t*1024, f"P{i}")
        else:
            def f(t=t):
                if t == 0:
                    a.e(f"s_mul_i32 s{s_wideoff}, s{s_pstep}, {i-4}")
                    a.e(f"s_add_u32 s{s_wideoff}, s{s_wideoff}, s{s_wbase}")
                a.e(f"s_add_u32 s{s_tmp}, s{s_ldsw}, {slot*SLOT + t*1024}")
                a.e(f"s_max_u32 m0, s{s_tmp}, s{s_ldsww}")
                a.e("s_nop 0")
                a.vmem(f"buffer_load_dwordx4 v{v_wd0 + t}, {srd(sPW)}, s{s_wideoff} offen{' nt' if NT & 1 else ''} lds", f"P{i}")
                if t == 1:
                    l = a.newlabel("Lgw")
                    a.e(f"s_cmp_eq_u32 s{s_gw}, 0")
                    a.e(f"s_cbranch_scc1 {l}")
                    a.e(f"v_add_u32 v{v_t2}, {slot*SLOT + 4096 + 128}, v{v_g2}")
                    a.e(f"ds_write_b16 v{v_t2}, v{GREG + i - 4}")
                    a.label(l)
        ops.append(f)
    return ops

def w2_ops(a, i, slot):
    ops = []
    for t in range(2):
        def f(t=t):
            srdb, r0 = (sW2, 128*i) if i <= 10 else (sWO, 128*(i-11))
            if HROT and i <= 10:
                a.e(f"s_add_u32 s{s_tmp}, s{s_p}, {r0*1024}")
                a.e(f"s_sub_u32 s{s_tmp2}, s{s_tmp}, {11*128*1024}")
                a.e(f"s_cselect_b32 s{s_tmp}, s{s_tmp}, s{s_tmp2}")
                a.e(f"s_add_u32 s{s_tmp}, s{s_tmp}, s{s_w2off}")
                if t: a.e(f"s_add_u32 s{s_tmp}, s{s_tmp}, {8*1024}")
            else:
                a.e(f"s_add_u32 s{s_tmp}, s{s_w2off}, {(r0 + 8*t) * 1024}")
            dma(a, v_w2_n, srdb, f"s{s_tmp}", s_ldsw, slot*SLOT + t*1024, f"Q{i}")
        ops.append(f)
    return ops

def issue_x_quarter(a, j):
    for f in x_ops(a, j): f()
def issue_piece(a, i, slot):
    for f in piece_ops(a, i, slot): f()
def issue_w2_piece(a, i, slot):
    for f in w2_ops(a, i, slot): f()

def mfma(a, d, x, y, c):
    cs = c if isinstance(c, str) else vr(c, 16)
    a.e(f"v_mfma_f32_32x32x16_bf16 {vr(d,16)}, {vr(x,4)}, {vr(y,4)}, {cs}")

def pack_tile(a, acc, pk, relu):
    for q in range(8):
        a.e(f"v_cvt_pk_bf16_f32 v{pk+q}, v{acc+2*q}, v{acc+2*q+1}")
    if relu:
        for q in range(8):
            a.e(f"v_pk_max_i16 v{pk+q}, v{pk+q}, 0")

def store_pk(a, pk, soff_sgpr, tag):
    a.vmem(f"buffer_store_dwordx4 {vr(pk,4)}, v{v_l16}, {srd(sWS)}, s{soff_sgpr} offen sc1", tag)
    a.vmem(f"buffer_store_dwordx4 {vr(pk+4,4)}, v{v_l16}, {srd(sWS)}, s{soff_sgpr} offen offset:1024 sc1", tag)

def signal(a, phase):
    l = a.newlabel("Lsig")
    a.e(f"s_cmp_lg_u32 s{s_wv}, 0")
    a.e(f"s_cbranch_scc1 {l}")
    a.e(f"v_mov_b32 v{v_t2}, s{s_nonce}")
    a.e(f"v_mov_b32 v{v_t3}, s{s_nonce+1}")
    a.e(f"v_mov_b32 v{v_t1}, {phase*32768}")
    a.e("s_mov_b64 exec, 1")
    a.e(f"buffer_store_dwordx2 v[{v_t2}:{v_t3}], v{v_t1}, {srd(sWS)}, s{s_fl} offen sc1")
    a.e("s_mov_b64 exec, -1")
    a.label(l)

def signal_wave(a):
    a.e(f"v_mov_b32 v{v_t2}, s{s_nonce}")
    a.e(f"v_mov_b32 v{v_t3}, s{s_nonce+1}")
    a.e(f"v_mov_b32 v{v_t1}, 0")
    a.e("s_mov_b64 exec, 1")
    a.vmem(f"buffer_store_dwordx2 v[{v_t2}:{v_t3}], v{v_t1}, {srd(sWS)}, s{s_flh} offen sc1", "SIGH")
    a.e("s_mov_b64 exec, -1")

def cmp_flags4(a, vd):
    a.e(f"v_xor_b32 v{vd}, s{s_nonce}, v{vd}")
    a.e(f"v_xor_b32 v{vd+1}, s{s_nonce+1}, v{vd+1}")
    a.e(f"v_xor_b32 v{vd+2}, s{s_nonce}, v{vd+2}")
    a.e(f"v_xor_b32 v{vd+3}, s{s_nonce+1}, v{vd+3}")
    a.e(f"v_or3_b32 v{vd}, v{vd}, v{vd+1}, v{vd+2}")
    a.e(f"v_or_b32 v{vd}, v{vd}, v{vd+3}")
    a.e(f"v_cmp_ne_u32 vcc, 0, v{vd}")
    a.e("s_nop 3")
    a.e("s_cmp_eq_u64 vcc, 0")

def hflag_issue(a, track=True):
    ins = f"buffer_load_dwordx4 v[252:255], v{v_l16}, {srd(sWS)}, s{s_flc} offen sc1"
    (a.vmem(ins, "FH") if track else a.e(ins))

def hpoll(a):
    lp = a.newlabel("Lpoll"); ld = a.newlabel("Lpolld")
    a.e(f"s_mov_b32 s{s_cnt}, 0")
    a.label(lp)
    hflag_issue(a, False)
    a.e("s_waitcnt vmcnt(0)")
    cmp_flags4(a, 252)
    a.e(f"s_cbranch_scc1 {ld}")
    a.e("s_sleep 1")
    a.e(f"s_add_u32 s{s_cnt}, s{s_cnt}, 1")
    a.e(f"s_cmp_lt_u32 s{s_cnt}, 100000")
    a.e(f"s_cbranch_scc1 {lp}")
    a.label(ld)

def cmp_flags(a, vd):
    a.e(f"v_cmp_eq_u32 s[{s_m2}:{s_m2+1}], s{s_nonce}, v{vd}")
    a.e(f"v_cmp_eq_u32 s[{s_m3}:{s_m3+1}], s{s_nonce+1}, v{vd+1}")
    a.e("s_nop 3")
    a.e(f"s_and_b64 s[{s_m2}:{s_m2+1}], s[{s_m2}:{s_m2+1}], s[{s_m3}:{s_m3+1}]")
    a.e(f"s_and_b64 s[{s_m2}:{s_m2+1}], s[{s_m2}:{s_m2+1}], s[{s_m}:{s_m+1}]")
    a.e(f"s_cmp_eq_u64 s[{s_m2}:{s_m2+1}], s[{s_m}:{s_m+1}]")

def poll(a, voff):
    lp = a.newlabel("Lpoll"); ld = a.newlabel("Lpolld")
    a.e(f"s_mov_b32 s{s_cnt}, 0")
    a.label(lp)
    a.e(f"buffer_load_dwordx2 v[{v_t2}:{v_t3}], v{voff}, {srd(sWS)}, 0 offen sc1")
    a.e("s_waitcnt vmcnt(0)")
    cmp_flags(a, v_t2)
    a.e(f"s_cbranch_scc1 {ld}")
    a.e("s_sleep 1")
    a.e(f"s_add_u32 s{s_cnt}, s{s_cnt}, 1")
    a.e(f"s_cmp_lt_u32 s{s_cnt}, 100000")
    a.e(f"s_cbranch_scc1 {lp}")
    a.label(ld)

def flag_issue(a, voff, vdst, tag, track=True):
    ins = f"buffer_load_dwordx2 v[{vdst}:{vdst+1}], v{voff}, {srd(sWS)}, 0 offen sc1"
    (a.vmem(ins, tag) if track else a.e(ins))

def flag_check(a, vdst, tag, track=True):
    if track: a.wait_vm(tag)
    else: a.e("s_waitcnt vmcnt(0)")
    cmp_flags(a, vdst)

def get_nonce(a):
    a.wait_vm("NON")
    lp = a.newlabel("Lnp"); ld = a.newlabel("Lnd")
    a.e(f"s_mov_b32 s{s_cnt}, 0")
    a.label(lp)
    a.e(f"v_readfirstlane_b32 s{s_nonce}, v{v_non}")
    a.e(f"v_readfirstlane_b32 s{s_nonce+1}, v{v_non+1}")
    a.e("s_nop 3")
    a.e(f"s_cmp_lg_u32 s{s_nonce}, 0")
    a.e(f"s_cbranch_scc1 {ld}")
    a.e("s_sleep 2")
    a.e(f"v_mov_b32 v{v_t2}, 0")
    a.e(f"buffer_load_dwordx2 v[{v_non}:{v_non+1}], v{v_t2}, {srd(sDBG)}, 0 offen sc1")
    a.e("s_waitcnt vmcnt(0)")
    a.e(f"s_add_u32 s{s_cnt}, s{s_cnt}, 1")
    a.e(f"s_cmp_lt_u32 s{s_cnt}, 100000")
    a.e(f"s_cbranch_scc1 {lp}")
    a.label(ld)

def kv_flag_setup(a):
    e = a.e
    e(f"s_lshl_b32 s{s_tmp}, s{s_rb}, 4")
    e(f"s_add_u32 s{s_fl}, s{s_tmp}, s{s_cg}")
    e(f"s_lshl_b32 s{s_fl}, s{s_fl}, 7")
    e(f"s_add_u32 s{s_fl}, s{s_fl}, {FL}")
    e(f"s_lshl_b32 s{s_tmp2}, s{s_p}, 1")
    e(f"s_add_u32 s{s_tmp}, s{s_tmp}, s{s_tmp2}")
    e(f"v_lshrrev_b32 v{v_kf}, 1, v{v_lane}")
    e(f"v_lshlrev_b32 v{v_kf}, 4, v{v_kf}")
    e(f"v_sub_u32 v{v_kf}, s{s_tmp}, v{v_kf}")
    e(f"v_and_b32 v{v_t0}, 1, v{v_lane}")
    e(f"v_add_u32 v{v_kf}, v{v_kf}, v{v_t0}")
    e(f"v_and_b32 v{v_kf}, 255, v{v_kf}")
    e(f"v_lshlrev_b32 v{v_kf}, 7, v{v_kf}")
    e(f"v_add_u32 v{v_kf}, {FL}, v{v_kf}")
    e(f"s_mov_b32 s{s_m}, 63")
    e(f"s_cmp_eq_u32 s{s_rb}, 1")
    e(f"s_cselect_b32 s{s_m}, 15, s{s_m}")
    e(f"s_cmp_eq_u32 s{s_rb}, 0")
    e(f"s_cselect_b32 s{s_m}, 3, s{s_m}")
    e(f"s_mov_b32 s{s_m+1}, 0")
    e(f"s_lshl_b32 s{s_tmp3}, s{s_cg}, 6")
    e(f"s_lshl_b32 s{s_tmp4}, s{s_rb}, 2")
    e(f"s_add_u32 s{s_tmp3}, s{s_tmp3}, s{s_tmp4}")
    e(f"s_lshl_b32 s{s_tmp3}, s{s_tmp3}, 11")
    e(f"s_mul_i32 s{s_tmp4}, s{s_wv}, 3072")
    e(f"s_add_u32 s{s_kvb}, s{s_tmp3}, s{s_tmp4}")
    e(f"s_lshl_b32 s{s_tmp}, s{s_rg}, 11")
    e(f"s_lshl_b32 s{s_tmp2}, s{s_cgp}, 10")
    e(f"s_add_u32 s{s_tmp2}, s{s_tmp2}, s{s_tmp}")
    e(f"s_add_u32 s{s_krd}, s{s_tmp2}, {ATK}")
    e(f"s_lshl_b32 s{s_tmp2}, s{s_cgp}, 8")
    e(f"s_add_u32 s{s_tmp2}, s{s_tmp2}, s{s_tmp}")
    e(f"s_add_u32 s{s_vrdb}, s{s_tmp2}, {ATV}")
    e(f"s_lshl_b32 s{s_qb}, s{s_rb}, 2")
    e(f"s_add_u32 s{s_qb}, s{s_qb}, s{s_rg}")
    e(f"s_sub_i32 s{s_first}, 8, s{s_qb}")
    e(f"s_max_i32 s{s_first}, s{s_first}, 0")
    e(f"s_mov_b32 s{s_vm}, 0xffff")
    e(f"s_mov_b32 s{s_vm+1}, 0xffff")
    s3_addr_setup(a)
    e(f"s_lshl_b32 s{s_tmp}, s{s_cg}, 3")
    e(f"s_add_u32 s{s_tmp}, s{s_tmp}, s{s_wv}")
    e(f"s_lshl_b32 s{s_tmp}, s{s_tmp}, 3")
    e(f"s_lshl_b32 s{s_flh}, s{s_rb}, 10")
    e(f"s_add_u32 s{s_flh}, s{s_flh}, s{s_tmp}")
    e(f"s_add_u32 s{s_flh}, s{s_flh}, {FL + 32768}")
    e(f"s_lshr_b32 s{s_flc}, s{s_rb3}, 1")
    e(f"s_lshl_b32 s{s_flc}, s{s_flc}, 10")
    e(f"s_add_u32 s{s_flc}, s{s_flc}, {FL + 32768}")

def kv_ops(a, guard=True):
    ops = []
    for reg, lds, tag in ((KF, ATK, "AK"), (VF, ATV, "AV")):
        for i in range(3):
            def f(reg=reg, lds=lds, tag=tag, i=i):
                l = None
                if guard:
                    l = a.newlabel("Lkvg")
                    a.e(f"s_cmp_eq_u32 s{s_ok}, 0")
                    a.e(f"s_cbranch_scc1 {l}")
                a.e(f"s_mul_i32 s{s_tmp4}, s{s_wv}, 3072")
                a.e(f"s_add_u32 s{s_tmp}, s{s_kvb}, {reg - 16384 + i*1024}")
                dma(a, v_l16, sWS, f"s{s_tmp}", s_tmp4, lds + i*1024, tag, sc1=True)
                if l: a.label(l)
            ops.append(f)
    return ops

def issue_kv(a, which, track=True):
    sv = list(a.vm)
    for f in kv_ops(a, guard=False): f()
    if not track: a.vm = sv

def s1_items(pieces, slot_of):
    items = []
    for i in pieces:
        sl = slot_of[i]
        if i < 4:
            for s in range(8):
                items.append(dict(pc=i, ks=8*i + s, tl=0, vb=v_trn, off=s*2048, sec=512, sl=sl, xs=s))
        else:
            j = i - 4
            for s in range(4):
                for tl in range(2):
                    items.append(dict(pc=i, ks=4*j + s, tl=tl, vb=(v_trw2 if tl else v_trw), off=None, s=s, sl=sl, xs=None))
    return items

def stage1(a, isv):
    raise NotImplementedError

ORDER = CFG['order']
T3U = env('GEN_T3U', 99)
FLUSH = 1
USPLIT = CFG['usplit']

class S1:
    D = env('GEN_D', 5)
    def __init__(self, a):
        self.a = a; self.lg = Lg(a); self.n = 0
        self.fifo = []
        self.slot_of = dict(CFG["init"])
        self.w2_slot = {}
        self.base = {}
        self.sched = CFG["sched"]
    def sync(self, u, extra_need=(), hook=None):
        a = self.a
        i = ORDER[u]
        need = [f"P{i}"] + ([f"X{i}"] if i < 4 else []) + list(extra_need)
        if FLUSH: self.pump(len(self.fifo))
        if u <= CFG['lg']:
            a.wait_vm(need, lgkm0=True)
            self.lg.clear()
        else:
            a.wait_vm(need)
        a.e("s_barrier")
        if STAMPS2: stamp(a)
        if hook: hook()
        for kind, pc, sl in self.sched.get(u, []):
            if kind == "P": self.slot_of[pc] = sl; self.fifo += piece_ops(a, pc, sl)
            elif kind == "X": self.fifo += x_ops(a, pc)
            else: self.w2_slot[pc] = sl; self.fifo += w2_ops(a, pc, sl)
        self.base = {}
    def pump(self, n=1):
        for _ in range(n):
            if self.fifo: self.fifo.pop(0)()
    def read(self, it):
        a = self.a
        b = BF + (it["n"] % 8) * 4
        sl = it["sl"]
        if it["xs"] is not None:
            s = it["xs"]; xq = it["pc"]
            r = v_t0 + (s & 1)
            a.e(f"v_xor_b32 v{r}, {s*32}, v{v_xrd}")
            off = XSLOT[xq]*SLOT
            if off > 65535:
                a.e(f"v_add_u32 v{r}, {off}, v{r}"); off = 0
            a.e(f"ds_read_b128 {vr(XF + it['ks']*4, 4)}, v{r} offset:{off}")
            self.lg.add(("x", it["ks"]))
        vb = it["vb"]
        if it["pc"] < 4:
            off, sec = it["off"], it["sec"]
            o = sl*SLOT + off
            if o + sec > 65535:
                if vb not in self.base:
                    a.e(f"v_add_u32 v{v_t4}, {sl*SLOT}, v{vb}"); self.base[vb] = v_t4
                vb = self.base[vb]; o = off
            a.e(f"ds_read_b64_tr_b16 {vr(b,2)}, v{vb} offset:{o}")
            a.e(f"ds_read_b64_tr_b16 {vr(b+2,2)}, v{vb} offset:{o + sec}")
        else:
            s = it["s"]; tl = it["tl"]
            if tl == 1:
                o = sl*SLOT + s*16*192; sec = 4*192
                if o + sec > 65535 - 16384:
                    if vb not in self.base:
                        a.e(f"v_add_u32 v{v_t5}, {sl*SLOT}, v{vb}"); self.base[vb] = v_t5
                    vb = self.base[vb]; o = s*16*192
                a.e(f"ds_read_b64_tr_b16 {vr(b,2)}, v{vb} offset:{o}")
                a.e(f"ds_read_b64_tr_b16 {vr(b+2,2)}, v{vb} offset:{o + sec}")
            else:
                if s == 0:
                    a.e(f"v_add_u32 v{v_t4}, {sl*SLOT}, v{v_trw}")
                    a.e(f"v_add_u32 v{v_t0}, {sl*SLOT}, v{v_omg2}")
                else:
                    a.e(f"v_add_u32 v{v_t4}, s{s_k16}, v{v_t4}")
                    a.e(f"v_add_u32 v{v_t0}, s{s_k16}, v{v_t0}")
                a.e(f"ds_read_b64_tr_b16 {vr(b,2)}, v{v_t4}")
                a.e(f"ds_read_b64_tr_b16 {vr(b+2,2)}, v{v_t0}")
        self.lg.add(("b", it["n"])); self.lg.add(("b", it["n"]))
    def mm(self, it, isv):
        a = self.a
        self.lg.wait([("b", it["n"]), ("x", it["ks"])])
        b = BF + (it["n"] % 8) * 4
        if it["pc"] < 4:
            acc = ACC2
            cin = "0" if it["ks"] == 0 else acc
            if isv: mfma(a, acc, XF + it["ks"]*4, b, cin)
            else: mfma(a, acc, b, XF + it["ks"]*4, cin)
        else:
            acc = ACC + 16*it["tl"]
            cin = "0" if it["ks"] == 0 else acc
            mfma(a, acc, b, XF + it["ks"]*4, cin)

ACC2 = MASKF
s_k16 = 93

def build_maskd(a):
    e = a.e
    e(f"v_and_b32 v{v_t2}, 31, v{v_lane}")
    e(f"v_lshlrev_b32 v{v_t3}, 2, v{v_hi}")
    e(f"v_sub_u32 v{v_t2}, v{v_t2}, v{v_t3}")
    e(f"v_mov_b32 v{v_t3}, 0xf149f2ca")
    for r in range(16):
        cr = (r & 3) + 8 * (r >> 2)
        e(f"v_cmp_gt_i32 vcc, {cr}, v{v_t2}")
        e("s_nop 1")
        e(f"v_cndmask_b32 v{MASKD+r}, 0, v{v_t3}, vcc")

PRE = env("GEN_PRE", 2)
def run_stage1(a):
    e = a.e
    a.c("================ stage 1 ================")
    D = S1.D
    base_lines = a.lines
    outs = []
    ns0 = a.nstamp; vm0 = list(a.vm)
    state = {}
    def hook(u, st):
        if u == 1 and TOUCH >= 2 and TOUCH not in (7, 9): touch(a, (sW2, sWO), 240)
        if T3U <= u < T3U + 4: st.fifo.append(lambda u=u: touch_l2_s3(a, u - T3U, 4))
        if u == env("GEN_TLBV", 3): tlb_warm_v(a)
        if u == CFG['non']:
            a.e(f"v_mov_b32 v{v_t2}, 0")
            a.vmem(f"buffer_load_dwordx2 v[{v_non}:{v_non+1}], v{v_t2}, {srd(sDBG)}, 0 offen sc1", "NON")
        if u == SIG0:
            get_nonce(a); signal(a, 0)
        VE = env("GEN_VE", 0)
        if u == CFG["kvi"] - VE:
            flag_issue(a, v_kf, v_non + 2, "FKV")
        if u == CFG["kvc"] - VE:
            flag_check(a, v_non + 2, "FKV")
            a.e(f"s_cselect_b32 s{s_ok}, 1, 0")
            ops = kv_ops(a)
            if VE: st.fifo = ops[3:] + st.fifo
            else: st.fifo = ops + st.fifo
        if VE and u == CFG["kvc"]:
            st.fifo = kv_ops(a)[:3] + st.fifo
    def do_mm(st, pend, isv):
        it = pend.pop(0)
        st.mm(it, isv)
        if it["pc"] == 3 and it["ks"] == 31: state["kvdone"] = 0
        elif "kvdone" in state:
            state["kvdone"] += 1
            if state["kvdone"] == 2:
                a.e("s_nop 7")
                pack_tile(a, ACC2, ACC2, False)
                store_pk(a, ACC2, s_st0, "ST0")
        st.pump(1)
    def unit(st, u, pend, n, isv, q0=0, q1=8, items=None):
        pc = ORDER[u]
        if items is None:
            if u <= CFG["lg"]:
                for _ in range(min(PRE, len(pend))): do_mm(st, pend, isv)
            st.sync(u, ["ST0"] if u == SIG0 else [], lambda: hook(u, st))
            items = s1_items([pc], st.slot_of)
            for it in items: it["n"] = n; n += 1
        for q in range(q0, q1):
            st.read(items[q]); pend.append(items[q])
            if len(pend) > D: do_mm(st, pend, isv)
            elif q % 2 == 1 and len(pend) > 2 and u > 0 and pend[0]["pc"] != pc: do_mm(st, pend, isv)
        return n, items
    for isv in (0, 1):
        a.lines = []; a.vm = list(vm0); a.nstamp = ns0; state.clear()
        st = S1(a)
        if isv: a.label("L_s1v")
        pend = []; n = 0
        for u in range(0, USPLIT):
            n, _ = unit(st, u, pend, n, isv)
        n, items = unit(st, USPLIT, pend, n, isv, 0, 0)
        q = 0
        while any(it["pc"] < 4 for it in pend):
            unit(st, USPLIT, pend, n, isv, q, q + 1, items); q += 1
            if q >= 8:
                while any(it["pc"] < 4 for it in pend): do_mm(st, pend, isv)
        st.pump(len(st.fifo))
        if not isv: a.e("s_branch L_s1w")
        outs.append((a.lines, list(a.vm), st, pend, n, items, q, dict(state)))
    assert outs[0][1] == outs[1][1]
    a.lines = base_lines + outs[0][0] + outs[1][0]
    _, vm, st, pend, n, items_s, q0, stt = outs[1]
    a.vm = vm
    a.label("L_s1w")
    unit(st, USPLIT, pend, n, 0, q0, 8, items_s)
    for u in range(USPLIT + 1, 12):
        n, _ = unit(st, u, pend, n, 0)
    while pend: do_mm(st, pend, 0)
    st.pump(len(st.fifo))
    e("s_nop 7"); e("s_nop 3")
    gate(a)
    pack_tile(a, ACC + 16, BF + 8, True)
    store_pk(a, BF + 8, s_st2, "ST1")
    pack_tile(a, ACC, BF, False)
    l = a.newlabel("Lq"); l2 = a.newlabel("Lqd")
    e(f"s_cmp_eq_u32 s{s_cgp}, 0")
    e(f"s_cbranch_scc1 {l}")
    for q in range(8): e(f"v_pk_max_i16 v{BF+q}, v{BF+q}, 0")
    a.label(l)
    store_pk(a, BF, s_st1, "ST1")
    return st.w2_slot

SIG0 = CFG['sig0']

def gate(a):
    e = a.e
    l = a.newlabel("Lgate")
    e(f"s_cmp_lg_u32 s{s_cg}, 15")
    e(f"s_cbranch_scc1 {l}")
    e(f"s_cmp_lg_u32 s{s_cgp}, 1")
    e(f"s_cbranch_scc1 {l}")
    e(f"v_cvt_pk_bf16_f32 v{v_t1}, v{ACC+16}, v{ACC+16}")
    e(f"v_lshlrev_b32 v{v_t1}, 16, v{v_t1}")
    e(f"v_mul_f32 v{v_t1}, 0xbfb8aa3b, v{v_t1}")
    e(f"v_exp_f32 v{v_t1}, v{v_t1}")
    e("s_nop 0")
    e(f"v_add_f32 v{v_t1}, 1.0, v{v_t1}")
    e(f"v_rcp_f32 v{v_t1}, v{v_t1}")
    e("s_nop 0")
    e(f"v_cvt_pk_bf16_f32 v{v_t1}, v{v_t1}, v{v_t1}")
    e(f"v_lshlrev_b32 v{v_t1}, 16, v{v_t1}")
    e(f"v_lshlrev_b32 v{v_t0}, 2, v{v_lane}")
    e(f"s_lshl_b32 s{s_tmp}, s{s_rb}, 2")
    e(f"s_add_u32 s{s_tmp}, s{s_tmp}, s{s_rg}")
    e(f"s_lshl_b32 s{s_tmp}, s{s_tmp}, 7")
    e(f"s_add_u32 s{s_tmp}, s{s_tmp}, {GB}")
    e(f"s_mov_b64 s[{s_exec}:{s_exec+1}], exec")
    e("s_mov_b32 exec_lo, -1")
    e("s_mov_b32 exec_hi, 0")
    e(f"buffer_store_dword v{v_t1}, v{v_t0}, {srd(sWS)}, s{s_tmp} offen sc1")
    e(f"s_mov_b64 exec, s[{s_exec}:{s_exec+1}]")
    a.label(l)

def Sreg(b):
    if b == 0: return MASKF
    if b == 8: return MASKD
    return 64 + 16*(b-1)
KFR = 176; QFR = 212; VROT = 216; OACC = 232
v_max = 248; v_max2 = 249; v_vrd = 250; v_krd = 251

def AFreg(n):
    if n < 10: return 176 + 4*n
    if n < 14: return 48 + 4*(n-10)
    if n < 18: return 160 + 4*(n-14)
    return 144 + 4*(n-18)
def AOreg(n):
    return 128 + 4*n if n < 4 else 32 + 4*(n-4)
BF3 = 64; ACB = 96; ACA = 216

def s3_addr_setup(a):
    e = a.e
    e(f"s_lshl_b32 s{s_tmp3}, s{s_rb3}, 1")
    e(f"s_add_u32 s{s_tmp3}, s{s_tmp3}, s{s_cgp}")
    e(f"s_mul_i32 s{s_a3}, s{s_tmp3}, {HROW}")
    e(f"s_lshl_b32 s{s_tmp}, s{s_rg}, 10")
    if HROT:
        e(f"s_mul_i32 s{s_r3}, s{s_cb3}, 11")
        e(f"s_lshr_b32 s{s_r3}, s{s_r3}, 3")
        e(f"s_lshl_b32 s{s_p}, s{s_r3}, 17")
        e(f"s_lshl_b32 s{s_r3}, s{s_r3}, 13")
        e(f"s_add_u32 s{s_r3}, s{s_r3}, s{s_tmp}")
    else:
        e(f"s_add_u32 s{s_a3}, s{s_a3}, s{s_tmp}")
    e(f"s_add_u32 s{s_a3}, s{s_a3}, {HF}")
    e(f"s_lshl_b32 s{s_a3o}, s{s_tmp3}, 15")
    e(f"s_add_u32 s{s_a3o}, s{s_a3o}, s{s_tmp}")
    e(f"s_add_u32 s{s_a3o}, s{s_a3o}, {OF}")
    e(f"s_lshl_b32 s{s_ga}, s{s_tmp3}, 7")
    e(f"s_add_u32 s{s_ga}, s{s_ga}, {GB}")

def h_loads(a, ns, track=True):
    e = a.e
    for n in ns:
        if n == "g":
            e(f"v_and_b32 v{v_t0}, 31, v{v_lane}")
            e(f"v_lshlrev_b32 v{v_t0}, 2, v{v_t0}")
            ins = f"buffer_load_dword v{v_g2}, v{v_t0}, {srd(sWS)}, s{s_ga} offen sc1"
            (a.vmem(ins, "G") if track else e(ins))
            continue
        if HROT:
            e(f"s_add_u32 s{s_tmp}, s{s_r3}, {n*4096}")
            e(f"s_sub_u32 s{s_tmp2}, s{s_tmp}, {22*4096}")
            e(f"s_cselect_b32 s{s_tmp}, s{s_tmp}, s{s_tmp2}")
            e(f"s_cmp_ge_u32 s{s_tmp}, {HROW}")
            e(f"s_cselect_b32 s{s_tmp}, {OOB}, s{s_tmp}")
            e(f"s_add_u32 s{s_tmp}, s{s_tmp}, s{s_a3}")
        else:
            e(f"s_add_u32 s{s_tmp}, s{s_a3}, {n*4096}")
            if n == 21:
                e(f"s_cmp_ge_u32 s{s_rg}, 2")
                e(f"s_cselect_b32 s{s_tmp}, {OOB}, s{s_tmp}")
        ins = f"buffer_load_dwordx4 {vr(AFreg(n),4)}, v{v_l16}, {srd(sWS)}, s{s_tmp} offen sc1"
        (a.vmem(ins, f"H{n}") if track else e(ins))

def guarded_h_loads(a, ns, track=True):
    l = a.newlabel("Lhl")
    a.e(f"s_cmp_eq_u32 s{s_ok}, 0")
    a.e(f"s_cbranch_scc1 {l}")
    h_loads(a, ns, track)
    a.label(l)

def flags16(a, phase, vdst):
    e = a.e
    e(f"s_lshr_b32 s{s_tmp}, s{s_rb3}, 1")
    e(f"s_lshl_b32 s{s_tmp}, s{s_tmp}, 11")
    e(f"s_add_u32 s{s_tmp}, s{s_tmp}, {FL + phase*32768}")
    e(f"v_and_b32 v{vdst}, 15, v{v_lane}")
    e(f"v_lshlrev_b32 v{vdst}, 7, v{vdst}")
    e(f"v_add_u32 v{vdst}, s{s_tmp}, v{vdst}")
    e(f"s_mov_b32 s{s_m}, 0xffff")
    e(f"s_mov_b32 s{s_m+1}, 0")

SIGB = env('GEN_SIGB', 1)
HB_ISSUE, HB_CHECK = env("GEN_HBI", 5), env("GEN_HBC", 3)

def attention(a, slot_of):
    e = a.e
    a.c("================ attention ================")
    e(f"s_lshl_b32 s{s_tmp}, s{s_rg}, 10")
    e(f"s_add_u32 s{s_tmp}, s{s_tmp}, {ATQ}")
    e(f"v_add_u32 v{v_t0}, s{s_tmp}, v{v_l16}")
    l = a.newlabel("Lqx")
    e(f"s_cmp_lg_u32 s{s_cgp}, 0")
    e(f"s_cbranch_scc1 {l}")
    e(f"ds_write_b128 v{v_t0}, {vr(BF+4,4)}")
    for i in range(4): e(f"v_mov_b32 v{QFR+i}, v{BF+i}")
    a.label(l)
    l = a.newlabel("Lkvok")
    e(f"s_cmp_lg_u32 s{s_ok}, 0")
    e(f"s_cbranch_scc1 {l}")
    poll(a, v_kf)
    issue_kv(a, "KV", track=False)
    e("s_waitcnt vmcnt(0)")
    a.label(l)
    l = a.newlabel("Lgm")
    e(f"s_cmp_eq_u32 s{s_gw}, 0")
    e(f"s_cbranch_scc1 {l}")
    build_maskd(a)
    a.label(l)
    stamp(a)
    e(f"v_add_u32 v{v_krd}, s{s_krd}, v{v_l16}")
    e(f"v_mov_b32 v{v_t3}, 0xf149f2ca")
    for r in range(16):
        e(f"v_sub_f32 v{MASKF+r}, v{v_t3}, v{MASKD+r}")
    a.wait_vm(["AK", "AV"], lgkm0=True)
    e("s_barrier")
    stamp(a)
    lg = Lg(a)
    l = a.newlabel("Lqr")
    e(f"s_cmp_eq_u32 s{s_cgp}, 0")
    e(f"s_cbranch_scc1 {l}")
    e(f"ds_read_b128 {vr(QFR,4)}, v{v_t0}")
    a.label(l)
    for b in range(8, -1, -1):
        e(f"ds_read_b128 {vr(KFR+4*b,4)}, v{v_krd} offset:{b*2048}"); lg.add(("k", b))
    fill = []
    for pc, sl in zip((4, 5), CFG["post"]):
        slot_of[pc] = sl; fill += w2_ops(a, pc, sl)
    c = 0.25 * math.log2(math.e)
    cbits = struct.unpack("<I", struct.pack("<f", c))[0]
    misc = [f"v_mov_b32 v{VROT+i}, 0x3f803f80" for i in range(16)]
    misc += [f"v_mov_b32 v{v_c2}, 0x{cbits:08x}", f"v_mov_b32 v{v_c2+1}, 0x{cbits:08x}", f"v_add_u32 v{v_vrd}, s{s_vrdb}, v{v_l16}"]
    for b in range(8, -1, -1):
        lg.wait([("k", b)])
        S = Sreg(b)
        mfma(a, S, KFR + 4*b, QFR, S if b in (0, 8) else "0")
        for _ in range(3):
            if misc: e(misc.pop(0))
        if fill and b % 2 == 0: fill.pop(0)()
    while misc: e(misc.pop(0))
    while fill: fill.pop(0)()
    if SIGB == 1:
        a.wait_vm("ST1"); signal_wave(a)
    lmax = a.newlabel("Lmaxd")
    e("s_nop 4")
    for b in range(8, -1, -1):
        S = Sreg(b)
        if b < 8:
            e(f"s_cmp_gt_u32 s{s_first}, {b}")
            e(f"s_cbranch_scc1 {lmax}")
        for q in range(8):
            if b == 8 and q == 0:
                e(f"v_max_f32 v{v_max}, v{S}, v{S+1}")
            else:
                e(f"v_max3_f32 v{v_max}, v{S+2*q}, v{S+2*q+1}, v{v_max}")
    a.label(lmax)
    e(f"v_mov_b32 v{v_max2}, v{v_max}")
    e("s_nop 1")
    e(f"v_permlane32_swap_b32 v{v_max}, v{v_max2}")
    e("s_nop 1")
    e(f"v_max_f32 v{v_max}, v{v_max}, v{v_max2}")
    e(f"v_mul_f32 v{v_mc}, v{v_c2}, v{v_max}")
    e(f"v_sub_f32 v{v_mc}, 0, v{v_mc}")
    e(f"v_mov_b32 v{v_mc+1}, v{v_mc}")
    if SIGB == 2:
        a.wait_vm("ST1"); signal_wave(a)
    def softmax_block(b):
        S = Sreg(b)
        for q in range(8):
            e(f"v_pk_fma_f32 v[{S+2*q}:{S+2*q+1}], v[{S+2*q}:{S+2*q+1}], v[{v_c2}:{v_c2+1}], v[{v_mc}:{v_mc+1}]")
        for r in range(16):
            e(f"v_exp_f32 v{S+r}, v{S+r}")
        for q in range(8):
            e(f"v_cvt_pk_bf16_f32 v{S+q}, v{S+2*q}, v{S+2*q+1}")
    softmax_block(8)
    e("s_barrier")
    stamp(a)
    for pc, sl in ((6, CFG['atk']), (7, CFG['atk']+1)):
        slot_of[pc] = sl; issue_w2_piece(a, pc, sl)
    lg = Lg(a)
    def vread(n):
        b = 8 - n//2; m = n % 2
        e(f"ds_read_b128 {vr(VROT + 4*(n%4), 4)}, v{v_vrd} offset:{b*2048 + m*1024}")
        lg.add(("v", n))
    e(f"s_mov_b64 exec, s[{s_vm}:{s_vm+1}]")
    vread(0); vread(1)
    e("s_mov_b64 exec, -1")
    lpv = a.newlabel("Lpvd")
    e(f"s_mov_b32 s{s_ok}, 0")
    skip_labels = {}
    hl = list(range(22)) + ["g"]
    CH = eval(os.environ.get("GEN_CH", "[(7,5),(5,3),(3,1)]"))
    def peek_wait(tag):
        sv = list(a.vm); a.wait_vm(tag); a.vm = sv
    def post_block(b, track):
        for i, (bi, bc) in enumerate(CH):
            if b == bc:
                l = a.newlabel("Lch")
                e(f"s_cmp_lg_u32 s{s_ok}, 0")
                e(f"s_cbranch_scc1 {l}")
                e("s_waitcnt vmcnt(0)")
                cmp_flags4(a, 252)
                e(f"s_cselect_b32 s{s_ok}, {i+1}, 0")
                a.label(l)
        for i, (bi, bc) in enumerate(CH):
            if b == bi:
                l = a.newlabel("Lci")
                e(f"s_cmp_lg_u32 s{s_ok}, 0")
                e(f"s_cbranch_scc1 {l}")
                hflag_issue(a, False)
                a.label(l)
        for i, (bi, bc) in enumerate(CH):
            if b <= bc:
                per = -(-len(hl) // (bc + 1))
                i0 = (bc - b) * per
                if hl[i0:i0+per]:
                    l = a.newlabel("Lhl")
                    e(f"s_cmp_lg_u32 s{s_ok}, {i+1}")
                    e(f"s_cbranch_scc1 {l}")
                    h_loads(a, hl[i0:i0+per], track and i == len(CH) - 1)
                    a.label(l)
    for b in range(8, -1, -1):
        S = Sreg(b)
        n0 = 2*(8 - b)
        if b < 8:
            skip_labels[b] = a.newlabel("Lskip")
            e(f"s_cmp_gt_u32 s{s_first}, {b}")
            e(f"s_cbranch_scc1 {skip_labels[b]}")
        if b > 0:
            e(f"s_mov_b64 exec, s[{s_vm}:{s_vm+1}]")
            vread(n0 + 2); vread(n0 + 3)
            e("s_mov_b64 exec, -1")
        if b < 8: softmax_block(b)
        lg.wait([("v", n0), ("v", n0+1)])
        e("s_nop 0")
        mfma(a, OACC, VROT + 4*(n0 % 4), S, "0" if b == 8 else OACC)
        mfma(a, OACC, VROT + 4*((n0+1) % 4), S + 4, OACC)
        post_block(b, True)
    e(f"s_branch {lpv}")
    for b in range(7, -1, -1):
        a.label(skip_labels[b])
        post_block(b, False)
    a.label(lpv)
    e("s_waitcnt lgkmcnt(0)")
    e("s_nop 7"); e("s_nop 3")
    e(f"v_rcp_f32 v{v_max}, v{OACC+8}")
    e("s_nop 0")
    for r in range(8):
        e(f"v_mul_f32 v{OACC+r}, v{OACC+r}, v{v_max}")
    for q in range(4):
        e(f"v_cvt_pk_bf16_f32 v{248+q}, v{OACC+2*q}, v{OACC+2*q+1}")
    e(f"buffer_store_dwordx4 v[248:251], v{v_l16}, {srd(sWS)}, s{s_oa} offen sc1")
    l = a.newlabel("Lhok")
    e(f"s_cmp_lg_u32 s{s_ok}, 0")
    e(f"s_cbranch_scc1 {l}")
    hpoll(a)
    h_loads(a, list(range(22)) + ["g"], track=False)
    a.label(l)
    stamp(a)
s_oa = 94

def compute3(a, pieces, slot_of, cnt):
    e = a.e
    work = []
    for pc in pieces:
        for u in range(2):
            if pc <= 10: af = AFreg(2*pc + u); tag = f"H{2*pc+u}"; acc = ACB; first = (pc == 0 and u == 0)
            else: af = AOreg(2*(pc-11) + u); tag = f"O{2*(pc-11)+u}"; acc = ACA; first = (pc == 11 and u == 0)
            for ct in range(2):
                work.append((slot_of[pc], u, ct, af, tag, acc + 16*ct, first))
    lg = Lg(a)
    cur = {}
    def rd(w):
        sl, u, ct, af, tag, acc, first = work[w]
        vb = v_tr3b if ct else v_tr3
        off = sl*SLOT + u*8192
        if off + 1024 > 65535:
            r = v_t5 if ct else v_t4
            if cur.get(ct) != sl:
                e(f"v_add_u32 v{r}, {sl*SLOT}, v{vb}")
                cur[ct] = sl
            vb = r; off = u*8192
        b = BF3 + ((cnt[0] + w) % 8)*4
        e(f"ds_read_b64_tr_b16 {vr(b,2)}, v{vb} offset:{off}")
        e(f"ds_read_b64_tr_b16 {vr(b+2,2)}, v{vb} offset:{off + 1024}")
        lg.add(w); lg.add(w)
    D = 4
    for w in range(min(D, len(work))): rd(w)
    for w in range(len(work)):
        if w + D < len(work): rd(w + D)
        sl, u, ct, af, tag, acc, first = work[w]
        a.wait_vm(tag)
        lg.wait([w])
        b = BF3 + ((cnt[0] + w) % 8)*4
        mfma(a, acc, b, af, "0" if first else acc)
    cnt[0] += len(work)
    lg.drain()

S3J = env('GEN_S3J', 1)
def o_loads(a, track=True):
    for n in range(8):
        a.e(f"s_add_u32 s{s_tmp}, s{s_a3o}, {n*4096}")
        ins = f"buffer_load_dwordx4 {vr(AOreg(n),4)}, v{v_l16}, {srd(sWS)}, s{s_tmp} offen sc1"
        (a.vmem(ins, f"O{n}") if track else a.e(ins))

def o_check(a):
    e = a.e
    regs = [AOreg(n) + i for n in range(8) for i in range(4)]
    e(f"v_max3_u32 v{v_t2}, v{regs[0]}, v{regs[1]}, v{regs[2]}")
    i = 3
    while i < len(regs):
        if i + 1 < len(regs):
            e(f"v_max3_u32 v{v_t2}, v{regs[i]}, v{regs[i+1]}, v{v_t2}"); i += 2
        else:
            e(f"v_max_u32 v{v_t2}, v{regs[i]}, v{v_t2}"); i += 1
    e(f"v_cmp_eq_u32 vcc, -1, v{v_t2}")
    e("s_nop 3")
    e("s_cmp_eq_u64 vcc, 0")

def stage3(a, slot_of):
    e = a.e
    a.c("================ stage 3 ================")
    D = 4
    lg = Lg(a)
    fifo = []
    cur = {}
    V0 = CFG["atv"]
    def assign(pc, sl):
        slot_of[pc] = sl
        for f in w2_ops(a, pc, sl):
            f.tag = f"Q{pc}"; fifo.append(f)
    def o_verify():
        a.wait_vm("O7")
        lp = a.newlabel("Lop"); ld = a.newlabel("Lod")
        e(f"s_mov_b32 s{s_cnt}, 0")
        a.label(lp)
        o_check(a)
        e(f"s_cbranch_scc1 {ld}")
        o_loads(a, track=False)
        e("s_waitcnt vmcnt(0)")
        e(f"s_add_u32 s{s_cnt}, s{s_cnt}, 1")
        e(f"s_cmp_lt_u32 s{s_cnt}, 100000")
        e(f"s_cbranch_scc1 {lp}")
        a.label(ld)
        stamp(a)
    def o_ops():
        ops = []
        for n in range(8):
            def f(n=n):
                a.e(f"s_add_u32 s{s_tmp}, s{s_a3o}, {n*4096}")
                a.vmem(f"buffer_load_dwordx4 {vr(AOreg(n),4)}, v{v_l16}, {srd(sWS)}, s{s_tmp} offen sc1", f"O{n}")
            f.tag = f"O{n}"
            ops.append(f)
        return ops
    syncs = {
        S3J: (["Q4", "Q5", "Q6", "Q7"], lambda: (assign(8, V0), assign(9, V0 + 1))),
        4: ([], lambda: (assign(10, slot_of[0]), assign(11, slot_of[1]), assign(12, slot_of[2]))),
        6: ([], lambda: (assign(13, slot_of[3]), assign(14, slot_of[4]), fifo.extend(o_ops()))),
        8: (["Q8", "Q9"], None),
        10: (["Q10", "Q11", "Q12"], None),
        13: (["Q13", "Q14"], None),
    }
    items = []
    for pc in range(15):
        for u in range(2):
            for ct in range(2):
                items.append((pc, u, ct))
    def rd(w):
        pc, u, ct = items[w]
        if u == 0 and ct == 0 and pc in syncs:
            tags, act = syncs[pc]
            while any(f.tag in tags for f in fifo): fifo.pop(0)()
            a.wait_vm(tags)
            e("s_barrier")
            if STAMPS2: stamp(a)
            if act: act()
        sl = slot_of[pc]
        vb = v_tr3b if ct else v_tr3
        off = sl*SLOT + u*8192
        if off + 1024 > 65535:
            r = v_t5 if ct else v_t4
            if cur.get(ct) != sl:
                e(f"v_add_u32 v{r}, {sl*SLOT}, v{vb}")
                cur[ct] = sl
            vb = r; off = u*8192
        b = BF3 + (w % 8)*4
        e(f"ds_read_b64_tr_b16 {vr(b,2)}, v{vb} offset:{off}")
        e(f"ds_read_b64_tr_b16 {vr(b+2,2)}, v{vb} offset:{off + 1024}")
        lg.add(w); lg.add(w)
    done = set(["Q4", "Q5", "Q6", "Q7"])
    for w in range(D): rd(w)
    for w in range(len(items)):
        if w + D < len(items):
            rd(w + D)
        pc, u, ct = items[w]
        if pc <= 10: af = AFreg(2*pc + u); tag = f"H{2*pc+u}"; acc = ACB; first = (pc == 0 and u == 0)
        else: af = AOreg(2*(pc-11) + u); tag = f"O{2*(pc-11)+u}"; acc = ACA; first = (pc == 11 and u == 0)
        if pc == 11 and u == 0 and ct == 0:
            while fifo: fifo.pop(0)()
            o_verify()
        a.wait_vm(tag)
        lg.wait([w])
        b = BF3 + (w % 8)*4
        mfma(a, acc + 16*ct, b, af, "0" if first else acc + 16*ct)
        if fifo: fifo.pop(0)()
        if pc >= 11:
            k = w - 44
            if k == 0:
                a.wait_vm("G")
                e(f"v_sub_f32 v{v_c2}, 1.0, v{v_g2}")
                e(f"v_cvt_pk_bf16_f32 v{v_c2}, v{v_c2}, v{v_c2}")
                e(f"v_lshlrev_b32 v{v_c2}, 16, v{v_c2}")
                e(f"v_mov_b32 v{v_c2+1}, v{v_c2}")
                e(f"v_mov_b32 v{v_g2+1}, v{v_g2}")
            elif 2 <= k < 10:
                for q in (2*(k-2), 2*(k-2)+1):
                    e(f"v_pk_mul_f32 v[{ACB+2*q}:{ACB+2*q+1}], v[{ACB+2*q}:{ACB+2*q+1}], v[{v_c2}:{v_c2+1}]")
    lg.drain()
    stamp(a)
    PS = [slot_of[p] for p in (5, 6, 7, 8)]
    e(f"s_cmp_eq_u32 s{s_rg}, 1"); e(f"s_movk_i32 s{s_tmp}, {PS[0]}"); e(f"s_cselect_b32 s{s_tmp}, {PS[1]}, s{s_tmp}")
    e(f"s_cmp_eq_u32 s{s_rg}, 2"); e(f"s_cselect_b32 s{s_tmp}, {PS[2]}, s{s_tmp}")
    e(f"s_cmp_eq_u32 s{s_rg}, 3"); e(f"s_cselect_b32 s{s_tmp}, {PS[3]}, s{s_tmp}")
    e(f"s_lshl_b32 s{s_tmp}, s{s_tmp}, 14")
    e(f"s_lshl_b32 s{s_tmp2}, s{s_cgp}, 13")
    e(f"s_add_u32 s{s_tmp}, s{s_tmp}, s{s_tmp2}")
    e(f"v_and_b32 v{v_t0}, 31, v{v_lane}")
    e(f"v_and_b32 v{v_t1}, 7, v{v_lane}")
    e(f"v_xor_b32 v{v_t1}, v{v_t1}, v{v_hi}")
    e(f"v_lshlrev_b32 v{v_t1}, 4, v{v_t1}")
    e(f"v_lshl_add_u32 v{v_t0}, v{v_t0}, 8, v{v_t1}")
    e(f"v_add_u32 v{v_t0}, s{s_tmp}, v{v_t0}")
    e("s_nop 4")
    for ct in range(2):
        for g4 in range(4):
            b0 = 16*ct + 4*g4
            for q in range(2):
                e(f"v_pk_fma_f32 v[{ACB+b0+2*q}:{ACB+b0+2*q+1}], v[{ACA+b0+2*q}:{ACA+b0+2*q+1}], v[{v_g2}:{v_g2+1}], v[{ACB+b0+2*q}:{ACB+b0+2*q+1}]")
            r = v_t2 + (g4 & 1)
            e(f"v_xor_b32 v{r}, {g4*32}, v{v_t0}")
            e(f"ds_write_b128 v{r}, {vr(ACB + b0, 4)} offset:{ct*128}")
    e(f"v_lshrrev_b32 v{v_t0}, 3, v0")
    e(f"v_and_b32 v{v_t1}, 7, v0")
    e(f"v_and_b32 v{v_t2}, 7, v{v_t0}")
    e(f"v_lshlrev_b32 v{v_t3}, 1, v{v_t1}")
    e(f"v_xor_b32 v{v_t2}, v{v_t2}, v{v_t3}")
    e(f"v_lshlrev_b32 v{v_t2}, 4, v{v_t2}")
    e(f"v_lshl_add_u32 v{v_t2}, v{v_t0}, 8, v{v_t2}")
    e(f"v_xor_b32 v{v_t3}, 16, v{v_t2}")
    e(f"v_add_u32 v{v_t4}, 0x10000, v{v_t2}")
    e(f"v_add_u32 v{v_t5}, 0x10000, v{v_t3}")
    e(f"v_add_u32 v{v_trn}, 0x20000, v{v_t2}")
    e(f"v_add_u32 v{v_trw}, 0x20000, v{v_t3}")
    e(f"v_lshlrev_b32 v{v_t0}, 10, v{v_t0}")
    e(f"v_lshl_add_u32 v{v_t0}, v{v_t1}, 4, v{v_t0}")
    e(f"s_lshl_b32 s{s_tmp}, s{s_rb3}, 16")
    e(f"s_lshl_b32 s{s_tmp2}, s{s_cb3}, 7")
    e(f"s_add_u32 s{s_tmp}, s{s_tmp}, s{s_tmp2}")
    e("s_waitcnt lgkmcnt(0)")
    e("s_barrier")
    for kq in range(4):
        off = PS[kq]*SLOT
        ra, rb_ = ((v_t2, v_t3), (v_t4, v_t5), (v_trn, v_trw))[off >> 16]
        e(f"ds_read_b128 {vr(64 + 8*kq, 4)}, v{ra} offset:{off & 0xffff}")
        e(f"ds_read_b128 {vr(68 + 8*kq, 4)}, v{rb_} offset:{off & 0xffff}")
    e("s_waitcnt lgkmcnt(4)")
    for q in range(4):
        e(f"v_pk_add_f32 v[{64+2*q}:{65+2*q}], v[{64+2*q}:{65+2*q}], v[{72+2*q}:{73+2*q}]")
    e("s_waitcnt lgkmcnt(0)")
    for q in range(4):
        e(f"v_pk_add_f32 v[{80+2*q}:{81+2*q}], v[{80+2*q}:{81+2*q}], v[{88+2*q}:{89+2*q}]")
    for q in range(4):
        e(f"v_pk_add_f32 v[{64+2*q}:{65+2*q}], v[{64+2*q}:{65+2*q}], v[{80+2*q}:{81+2*q}]")
    for q in range(4):
        e(f"v_cvt_pk_bf16_f32 v{64+q}, v{64+2*q}, v{65+2*q}")
    e(f"buffer_store_dwordx4 v[64:67], v{v_t0}, {srd(sOUT)}, s{s_tmp} offen {os.environ.get('GEN_OST','sc1').replace('_',' ')}")
    stamp(a, final=True)

def common_setup(a):
    e = a.e
    l = a.newlabel("Lcas")
    e(f"s_or_b32 s{s_nonce}, s{s_nonce}, 1")
    e(f"s_or_b32 s{s_tmp}, s{s_wv}, s2")
    e(f"s_cmp_lg_u32 s{s_tmp}, 0")
    e(f"s_cbranch_scc1 {l}")
    e(f"v_mov_b32 v{v_non}, s{s_nonce}")
    e(f"v_mov_b32 v{v_non+1}, s{s_nonce+1}")
    e(f"v_mov_b32 v{v_t4}, 0")
    e(f"s_mov_b64 s[{s_exec}:{s_exec+1}], exec")
    e("s_mov_b64 exec, 1")
    e(f"buffer_store_dwordx2 {vr(v_non,2)}, v{v_t4}, {srd(sDBG)}, 0 offen sc1")
    e(f"s_mov_b64 exec, s[{s_exec}:{s_exec+1}]")
    a.label(l)
    e(f"s_lshl_b32 s{s_tmp}, s{s_rb}, 2")
    e(f"s_add_u32 s{s_tmp}, s{s_tmp}, s{s_rg}")
    e(f"s_lshl_b32 s{s_oa}, s{s_tmp}, 15")
    e(f"s_lshl_b32 s{s_tmp2}, s{s_cg}, 1")
    e(f"s_add_u32 s{s_tmp2}, s{s_tmp2}, s{s_cgp}")
    e(f"s_lshl_b32 s{s_tmp2}, s{s_tmp2}, 10")
    e(f"s_add_u32 s{s_oa}, s{s_oa}, s{s_tmp2}")
    e(f"s_add_u32 s{s_oa}, s{s_oa}, {OF}")
    for i in range(4): e(f"v_mov_b32 v{ACC+i}, -1")
    a.vmem(f"buffer_store_dwordx4 {vr(ACC,4)}, v{v_l16}, {srd(sWS)}, s{s_oa} offen sc1", "SENT")
    e(f"v_and_b32 v{v_t0}, 31, v{v_lane}")
    e(f"v_lshrrev_b32 v{v_hi}, 5, v{v_lane}")
    e(f"v_and_b32 v{v_t1}, 15, v{v_lane}")
    e(f"v_xor_b32 v{v_t1}, v{v_t1}, v{v_hi}")
    e(f"v_lshlrev_b32 v{v_t1}, 4, v{v_t1}")
    e(f"v_lshl_add_u32 v{v_xrd}, v{v_t0}, 8, v{v_t1}")
    e(f"s_lshl_b32 s{s_tmp}, s{s_rg}, 13")
    e(f"v_add_u32 v{v_xrd}, s{s_tmp}, v{v_xrd}")
    e(f"v_and_b32 v{v_t0}, 15, v{v_lane}")
    e(f"v_lshrrev_b32 v{v_t1}, 2, v{v_t0}")
    e(f"v_bfe_u32 v{v_t2}, v{v_lane}, 4, 1")
    e(f"v_bfe_u32 v{v_t3}, v{v_lane}, 1, 1")
    e(f"v_lshl_add_u32 v{v_t2}, v{v_t2}, 1, v{v_t3}")
    e(f"v_and_b32 v{v_t3}, 1, v{v_lane}")
    e(f"v_lshlrev_b32 v{v_t3}, 3, v{v_t3}")
    e(f"v_lshl_add_u32 v{v_t2}, v{v_t2}, 4, v{v_t3}")
    e(f"v_lshrrev_b32 v{v_t3}, 1, v{v_t1}")
    e(f"v_xor_b32 v{v_t4}, s{s_cgp}, v{v_t3}")
    e(f"v_lshl_add_u32 v{v_t4}, v{v_t4}, 6, v{v_t2}")
    e(f"v_lshl_add_u32 v{v_t5}, v{v_hi}, 3, v{v_t1}")
    e(f"v_lshl_add_u32 v{v_trn}, v{v_t5}, 7, v{v_t4}")
    e(f"s_cmp_eq_u32 s{s_cgp}, 0")
    e(f"s_movk_i32 s{s_tmp}, 192")
    e(f"s_cselect_b32 s{s_tmp}, 64, s{s_tmp}")
    e(f"s_lshl_b32 s{s_k16}, s{s_tmp}, 4")
    e(f"s_lshl_b32 s{s_tmp2}, s{s_cgp}, 12")
    e(f"v_mad_u32_u24 v{v_trw}, v{v_t5}, s{s_tmp}, v{v_t2}")
    e(f"v_add_u32 v{v_trw}, s{s_tmp2}, v{v_trw}")
    e(f"s_lshl_b32 s{s_tmp}, s{s_tmp}, 2")
    e(f"v_add_u32 v{v_omg2}, s{s_tmp}, v{v_trw}")
    e(f"s_movk_i32 s{s_tmp}, 192")
    e(f"v_mad_u32_u24 v{v_trw2}, v{v_t5}, s{s_tmp}, v{v_t2}")
    e(f"s_lshl_b32 s{s_tmp2}, s{s_cgp}, 6")
    e(f"s_add_u32 s{s_tmp2}, s{s_tmp2}, {4096 + 64}")
    e(f"v_add_u32 v{v_trw2}, s{s_tmp2}, v{v_trw2}")
    e(f"v_lshl_add_u32 v{v_t4}, v{v_t3}, 6, v{v_t2}")
    e(f"v_lshl_add_u32 v{v_t5}, v{v_hi}, 2, v{v_t1}")
    e(f"v_lshl_add_u32 v{v_tr3}, v{v_t5}, 7, v{v_t4}")
    e(f"s_lshl_b32 s{s_tmp}, s{s_rg}, 11")
    e(f"v_add_u32 v{v_tr3}, s{s_tmp}, v{v_tr3}")
    e(f"v_xor_b32 v{v_tr3b}, 64, v{v_tr3}")

def wide_setup(a):
    e = a.e
    lq = a.newlabel("Lwq"); lj = a.newlabel("Lwj")
    e(f"s_cmp_lt_u32 s{s_wv}, 2")
    e(f"s_cbranch_scc1 {lq}")
    e(f"s_mov_b32 s{sPW}, s{sW1}"); e(f"s_mov_b32 s{sPW+1}, s{sW1+1}"); e(f"s_mov_b32 s{sPW+2}, {512*1376*2}"); e(f"s_mov_b32 s{sPW+3}, 0x00020000")
    e(f"s_sub_u32 s{s_tmp}, s{s_wv}, 2")
    e(f"s_lshl_b32 s{s_tmp}, s{s_tmp}, 7")
    e(f"s_movk_i32 s{s_tmp3}, 2752")
    e(f"s_movk_i32 s{s_tmp4}, 5462")
    for t in range(2):
        e(f"v_add_u32 v{v_t0}, s{s_tmp}, v{v_lane}")
        if t: e(f"v_add_u32 v{v_t0}, 64, v{v_t0}")
        e(f"v_mul_u32_u24 v{v_t1}, s{s_tmp4}, v{v_t0}")
        e(f"v_lshrrev_b32 v{v_t1}, 16, v{v_t1}")
        e(f"v_mul_u32_u24 v{v_t2}, 12, v{v_t1}")
        e(f"v_sub_u32 v{v_t0}, v{v_t0}, v{v_t2}")
        e(f"v_lshlrev_b32 v{v_t0}, 4, v{v_t0}")
        e(f"v_mad_u32_u24 v{v_wd0+t}, v{v_t1}, s{s_tmp3}, v{v_t0}")
    e(f"s_mul_i32 s{s_wbase}, s{s_cg}, 192")
    e(f"s_cmp_eq_u32 s{s_cg}, 15")
    e(f"s_cselect_b32 s{s_wbase}, {OOB}, s{s_wbase}")
    e(f"s_mov_b32 s{s_pstep}, {64*2752}")
    e(f"s_branch {lj}")
    a.label(lq)
    e(f"s_mov_b32 s{sPW}, s{sWQ}"); e(f"s_mov_b32 s{sPW+1}, s{sWQ+1}"); e(f"s_mov_b32 s{sPW+2}, {512*1536*2}"); e(f"s_mov_b32 s{sPW+3}, 0x00020000")
    e(f"s_lshl_b32 s{s_tmp}, s{s_wv}, 5")
    e(f"s_movk_i32 s{s_tmp3}, 3072")
    e(f"v_lshrrev_b32 v{v_t1}, 2, v{v_lane}")
    e(f"v_add_u32 v{v_t1}, s{s_tmp}, v{v_t1}")
    e(f"v_and_b32 v{v_t0}, 3, v{v_lane}")
    e(f"v_lshlrev_b32 v{v_t0}, 4, v{v_t0}")
    e(f"v_mad_u32_u24 v{v_wd0}, v{v_t1}, s{s_tmp3}, v{v_t0}")
    e(f"v_add_u32 v{v_wd1}, {16*3072}, v{v_wd0}")
    e(f"s_lshl_b32 s{s_wbase}, s{s_cg}, 6")
    e(f"s_mov_b32 s{s_pstep}, {64*3072}")
    a.label(lj)

def gen():
    a = Asm()
    e = a.e
    e("s_cmp_ge_u32 s2, 256")
    e("s_cbranch_scc1 L_exit")
    stamp(a)
    e("s_load_dwordx4 s[8:11], s[0:1], 0")
    e("s_load_dwordx2 s[24:25], s[0:1], 16")
    e("s_load_dwordx4 s[16:19], s[0:1], 32")
    e("s_load_dwordx4 s[36:39], s[0:1], 48")
    e("s_load_dwordx4 s[40:43], s[0:1], 64")
    e(f"s_memrealtime s[{s_nonce}:{s_nonce+1}]")
    e(f"v_and_b32 v{v_lane}, 63, v0")
    e(f"v_lshrrev_b32 v{v_t0}, 6, v0")
    e(f"v_lshlrev_b32 v{v_l16}, 4, v{v_lane}")
    e(f"v_readfirstlane_b32 s{s_wv}, v{v_t0}")
    e(f"s_and_b32 s{s_tmp}, s2, 7")
    e(f"s_lshr_b32 s{s_tmp2}, s2, 3")
    e(f"s_and_b32 s{s_rb}, s{s_tmp}, 1")
    e(f"s_lshl_b32 s{s_rb}, s{s_rb}, 3")
    e(f"s_and_b32 s{s_tmp3}, s{s_tmp2}, 7")
    e(f"s_add_u32 s{s_rb}, s{s_rb}, s{s_tmp3}")
    e(f"s_lshr_b32 s{s_cg}, s{s_tmp}, 1")
    e(f"s_lshl_b32 s{s_cg}, s{s_cg}, 2")
    e(f"s_lshr_b32 s{s_tmp3}, s{s_tmp2}, 3")
    e(f"s_add_u32 s{s_cg}, s{s_cg}, s{s_tmp3}")
    e(f"s_lshr_b32 s{s_p}, s{s_cg}, 1")
    e(f"s_and_b32 s{s_t}, s{s_cg}, 1")
    e(f"s_lshl_b32 s{s_rb3}, s{s_tmp}, 2")
    e(f"s_and_b32 s{s_tmp3}, s{s_tmp2}, 3")
    e(f"s_add_u32 s{s_rb3}, s{s_rb3}, s{s_tmp3}")
    e(f"s_lshr_b32 s{s_cb3}, s{s_tmp2}, 2")
    e(f"s_and_b32 s{s_rg}, s{s_wv}, 3")
    e(f"s_lshr_b32 s{s_cgp}, s{s_wv}, 2")
    e(f"s_lshl_b32 s{s_ldsw}, s{s_wv}, 11")
    e(f"s_lshl_b32 s{s_xlds}, s{s_wv}, 12")
    e(f"s_lshl_b32 s{s_xbase}, s{s_rb}, 17")
    e(f"s_lshl_b32 s{s_tmp3}, s{s_wv}, 14")
    e(f"s_add_u32 s{s_xbase}, s{s_xbase}, s{s_tmp3}")
    if STAMPS:
        e(f"s_lshl_b32 s{s_tsb}, s2, 3")
        e(f"s_add_u32 s{s_tsb}, s{s_tsb}, s{s_wv}")
        e(f"s_lshl_b32 s{s_tsb}, s{s_tsb}, 7")
        e(f"s_add_u32 s{s_tsb}, s{s_tsb}, {TS}")
    e(f"v_lshrrev_b32 v{v_t0}, 4, v{v_lane}")
    e(f"v_and_b32 v{v_t1}, 15, v{v_lane}")
    e(f"v_xor_b32 v{v_t1}, v{v_t1}, v{v_t0}")
    e(f"v_lshlrev_b32 v{v_t0}, 10, v{v_t0}")
    for t in range(4):
        e(f"v_xor_b32 v{v_t2}, {4*t}, v{v_t1}")
        e(f"v_lshl_add_u32 v{v_xo+t}, v{v_t2}, 4, v{v_t0}")
    e(f"v_lshrrev_b32 v{v_t0}, 3, v{v_lane}")
    e(f"v_and_b32 v{v_t1}, 7, v{v_lane}")
    e(f"v_lshrrev_b32 v{v_t2}, 2, v{v_lane}")
    e(f"v_and_b32 v{v_t2}, 4, v{v_t2}")
    e(f"v_xor_b32 v{v_t1}, v{v_t1}, v{v_t2}")
    e(f"v_lshlrev_b32 v{v_t1}, 4, v{v_t1}")
    e(f"s_movk_i32 s{s_tmp3}, 3072")
    e(f"v_mad_u32_u24 v{v_wq_n}, v{v_t0}, s{s_tmp3}, v{v_t1}")
    e(f"v_lshl_add_u32 v{v_w2_n}, v{v_t0}, 10, v{v_t1}")
    e(f"s_mul_i32 s{s_naroff}, s{s_wv}, {16*3072}")
    e(f"s_lshl_b32 s{s_tmp3}, s{s_p}, 7")
    e(f"s_add_u32 s{s_naroff}, s{s_naroff}, s{s_tmp3}")
    e(f"s_lshl_b32 s{s_tmp3}, s{s_t}, 10")
    e(f"s_add_u32 s{s_naroff}, s{s_naroff}, s{s_tmp3}")
    e(f"s_add_u32 s{s_naroff}, s{s_naroff}, 1024")
    e(f"s_lshl_b32 s{s_tmp3}, s{s_p}, 1")
    e(f"s_add_u32 s{s_tmp3}, s{s_tmp3}, s{s_cgp}")
    e(f"s_lshl_b32 s{s_tmp3}, s{s_tmp3}, 6")
    e(f"s_lshl_b32 s{s_tmp4}, s{s_rb}, 2")
    e(f"s_add_u32 s{s_tmp4}, s{s_tmp4}, s{s_rg}")
    e(f"s_add_u32 s{s_tmp3}, s{s_tmp3}, s{s_tmp4}")
    e(f"s_lshl_b32 s{s_st0}, s{s_tmp3}, 11")
    e(f"s_lshl_b32 s{s_tmp3}, s{s_t}, 21")
    e(f"s_add_u32 s{s_st0}, s{s_st0}, s{s_tmp3}")
    e(f"s_add_u32 s{s_st0}, s{s_st0}, {KF}")
    e(f"s_mul_i32 s{s_tmp4}, s{s_tmp4}, {HROW}")
    e(f"s_add_u32 s{s_tmp4}, s{s_tmp4}, {HF}")
    e(f"s_mul_i32 s{s_tmp3}, s{s_cg}, 3")
    e(f"s_lshl_b32 s{s_st1}, s{s_tmp3}, 11")
    e(f"s_add_u32 s{s_st1}, s{s_st1}, s{s_tmp4}")
    e(f"s_cmp_ge_u32 s{s_tmp3}, 43")
    e(f"s_cselect_b32 s{s_st1}, {OOB}, s{s_st1}")
    e(f"s_cmp_eq_u32 s{s_cgp}, 0")
    e(f"s_cselect_b32 s{s_st1}, {OOB}, s{s_st1}")
    e(f"s_add_u32 s{s_tmp3}, s{s_tmp3}, s{s_cgp}")
    e(f"s_add_u32 s{s_tmp3}, s{s_tmp3}, 1")
    e(f"s_lshl_b32 s{s_st2}, s{s_tmp3}, 11")
    e(f"s_add_u32 s{s_st2}, s{s_st2}, s{s_tmp4}")
    e(f"s_cmp_ge_u32 s{s_tmp3}, 43")
    e(f"s_cselect_b32 s{s_st2}, {OOB}, s{s_st2}")
    e(f"s_lshl_b32 s{s_w2off}, s{s_wv}, 14")
    e(f"s_lshl_b32 s{s_tmp3}, s{s_cb3}, 7")
    e(f"s_add_u32 s{s_w2off}, s{s_w2off}, s{s_tmp3}")
    e("s_waitcnt lgkmcnt(0)")
    e("s_mov_b32 s12, s10"); e("s_mov_b32 s13, s11"); e(f"s_mov_b32 s14, {512*1536*2}"); e("s_mov_b32 s15, 0x00020000")
    e(f"s_mov_b32 s10, {2048*512*2}"); e("s_mov_b32 s11, 0x00020000")
    e("s_mov_b32 s32, s38"); e("s_mov_b32 s33, s39"); e(f"s_mov_b32 s34, {2048*512*2}"); e("s_mov_b32 s35, 0x00020000")
    e("s_mov_b32 s38, 1024"); e("s_mov_b32 s39, 0x00020000")
    e(f"s_mov_b32 s{s_ldsww}, 0")
    e(f"s_mov_b32 s{s_gw}, 0")
    lg_ = a.newlabel("Lgs")
    e(f"s_cmp_lg_u32 s{s_cg}, 15")
    e(f"s_cbranch_scc1 {lg_}")
    e(f"s_cmp_lt_u32 s{s_wv}, 2")
    e(f"s_cbranch_scc1 {lg_}")
    e(f"s_mov_b32 s{s_ldsww}, 0x30000")
    e(f"s_cmp_lg_u32 s{s_wv}, 2")
    e(f"s_cbranch_scc1 {lg_}")
    e(f"s_mov_b32 s{s_gw}, 1")
    e(f"v_lshlrev_b32 v{v_t0}, 1, v{v_lane}")
    for j in range(8):
        e(f"buffer_load_ushort v{GREG+j}, v{v_t0}, {srd(sGW)}, 0 offen offset:{j*128}")
    e(f"s_movk_i32 s{s_tmp3}, 192")
    e(f"v_mul_u32_u24 v{v_g2}, s{s_tmp3}, v{v_lane}")
    a.label(lg_)
    e("s_mov_b32 s20, s18"); e("s_mov_b32 s21, s19"); e(f"s_mov_b32 s22, {1376*512*2}"); e("s_mov_b32 s23, 0x00020000")
    e(f"s_mov_b32 s18, {512*1376*2}"); e("s_mov_b32 s19, 0x00020000")
    if TOUCH in (2, 9): touch(a, (sWQ, sW1) if env('GEN_NOX',0) else (sX, sWQ, sW1), 224)
    if TOUCH == 4: touch_l2(a)
    if TOUCH == 10: touch_xcd(a)
    issue_x_quarter(a, 0)
    issue_piece(a, 0, CFG['init'][0])
    if TOUCH == 3: touch(a, (sX, sWQ, sW1), 224)
    if TOUCH == 5: touch_l2(a)
    if TOUCH == 11: touch_xcd(a)
    e(f"s_mov_b32 s26, {512*512*2}"); e("s_mov_b32 s27, 0x00020000")
    e("s_mov_b32 s28, s42"); e("s_mov_b32 s29, s43"); e(f"s_mov_b32 s30, {WS_BYTES}"); e("s_mov_b32 s31, 0x00020000")
    e("s_mov_b32 s42, 256"); e("s_mov_b32 s43, 0x00020000")
    if env("GEN_TLB", 2): tlb_warm(a, env("GEN_TLB", 2))
    if env("GEN_CPF", 0):
        e(f"s_getpc_b64 s[{s_m2}:{s_m2+1}]")
        a.label("L_pc")
        e(f"s_lshr_b32 s{s_tmp}, s2, 3")
        e(f"s_lshl_b32 s{s_tmp}, s{s_tmp}, 3")
        e(f"s_add_u32 s{s_tmp}, s{s_tmp}, s{s_wv}")
        e(f"s_lshl_b32 s{s_tmp}, s{s_tmp}, 6")
        e(f"s_load_dword s{s_cnt}, s[{s_m2}:{s_m2+1}], s{s_tmp}")
        e(f"s_lshr_b32 s{s_tmp}, s{s_tmp}, 2")
        e(f"s_and_b32 s{s_tmp}, s{s_tmp}, 0xfc0")
        e(f"s_add_u32 s{s_tmp}, s{s_tmp}, 16384")
        e(f"s_min_u32 s{s_tmp}, s{s_tmp}, L_exit-L_pc")
        e(f"s_load_dword s{s_cnt}, s[{s_m2}:{s_m2+1}], s{s_tmp}")
    if TOUCH == 9: touch(a, (sW2, sWO), 240)
    if TOUCH == 7: touch_scalar(a, "xq12o")
    if TOUCH == 8: touch_scalar(a, "xq1")
    stamp(a)
    if env("GEN_ST3",0): stamp(a)
    common_setup(a)
    wide_setup(a)
    if env("GEN_ST3",0): stamp(a)
    kv_flag_setup(a)
    lm_ = a.newlabel("Lmk")
    e(f"s_cmp_lg_u32 s{s_gw}, 0")
    e(f"s_cbranch_scc1 {lm_}")
    build_maskd(a)
    a.label(lm_)
    if env("GEN_ST3",0): stamp(a)
    e("s_barrier")
    issue_x_quarter(a, 1)
    issue_piece(a, 1, CFG['init'][1])
    e(f"s_cmp_lg_u32 s{s_t}, 0")
    e("s_cbranch_scc1 L_s1v")
    w2_slot = run_stage1(a)
    stamp(a)
    attention(a, w2_slot)
    stage3(a, w2_slot)
    a.label("L_exit")
    a.e("s_endpgm")
    return a

def touch(a, srds, T):
    e = a.e
    e(f"s_lshl_b32 s{s_tmp}, s2, 3")
    e(f"s_add_u32 s{s_tmp}, s{s_tmp}, s{s_wv}")
    e(f"s_lshl_b32 s{s_tmp}, s{s_tmp}, 10")
    for i, sr in enumerate(srds):
        a.vmem(f"buffer_load_dwordx4 {vr(T+4*i,4)}, v{v_l16}, {srd(sr)}, s{s_tmp} offen", "TCH")

def touch_l2(a):
    e = a.e
    T = 224
    lx = a.newlabel("Ltx"); lk = a.newlabel("Ltk"); lq = a.newlabel("Ltq"); lj = a.newlabel("Ltj")
    e(f"s_lshr_b32 s{s_tmp}, s2, 3")
    e(f"s_and_b32 s{s_tmp2}, s2, 7")
    e(f"s_lshr_b32 s{s_tmp3}, s{s_tmp2}, 1")
    e(f"s_cmp_lt_u32 s{s_wv}, 4")
    e(f"s_cbranch_scc1 {lx}")
    e(f"s_cmp_eq_u32 s{s_wv}, 4")
    e(f"s_cbranch_scc1 {lk}")
    e(f"s_cmp_eq_u32 s{s_wv}, 5")
    e(f"s_cbranch_scc1 {lq}")
    e(f"s_sub_u32 s{s_tmp4}, s{s_wv}, 6")
    e(f"s_lshl_b32 s{s_tmp4}, s{s_tmp4}, 3")
    e(f"s_lshl_b32 s{s_tmp}, s{s_tmp}, 4")
    e(f"s_add_u32 s{s_tmp}, s{s_tmp}, s{s_tmp4}")
    e(f"s_mul_i32 s{s_tmp}, s{s_tmp}, 2752")
    e(f"s_mul_i32 s{s_tmp3}, s{s_tmp3}, 768")
    e(f"s_add_u32 s{s_tmp}, s{s_tmp}, s{s_tmp3}")
    e(f"v_lshrrev_b32 v{v_t0}, 3, v{v_lane}")
    e(f"s_movk_i32 s{s_tmp4}, 2752")
    e(f"v_mul_u32_u24 v{v_t0}, s{s_tmp4}, v{v_t0}")
    e(f"v_and_b32 v{v_t1}, 7, v{v_lane}")
    e(f"v_min_u32 v{v_t1}, 6, v{v_t1}")
    e(f"v_lshl_add_u32 v{v_t0}, v{v_t1}, 7, v{v_t0}")
    e(f"buffer_load_dword v{T}, v{v_t0}, {srd(sW1)}, s{s_tmp} offen")
    e(f"s_branch {lj}")
    a.label(lx)
    e(f"s_and_b32 s{s_tmp2}, s{s_tmp2}, 1")
    e(f"s_lshl_b32 s{s_tmp2}, s{s_tmp2}, 20")
    e(f"s_lshl_b32 s{s_tmp}, s{s_tmp}, 15")
    e(f"s_add_u32 s{s_tmp}, s{s_tmp}, s{s_tmp2}")
    e(f"s_lshl_b32 s{s_tmp2}, s{s_wv}, 8")
    e(f"s_add_u32 s{s_tmp}, s{s_tmp}, s{s_tmp2}")
    e(f"v_lshrrev_b32 v{v_t0}, 1, v{v_lane}")
    e(f"v_lshlrev_b32 v{v_t0}, 10, v{v_t0}")
    e(f"v_and_b32 v{v_t1}, 1, v{v_lane}")
    e(f"v_lshl_add_u32 v{v_t0}, v{v_t1}, 7, v{v_t0}")
    e(f"buffer_load_dword v{T}, v{v_t0}, {srd(sX)}, s{s_tmp} offen")
    e(f"s_branch {lj}")
    a.label(lk)
    e(f"s_mul_i32 s{s_tmp}, s{s_tmp}, {16*3072}")
    e(f"s_lshl_b32 s{s_tmp3}, s{s_tmp3}, 8")
    e(f"s_add_u32 s{s_tmp}, s{s_tmp}, s{s_tmp3}")
    e(f"s_add_u32 s{s_tmp}, s{s_tmp}, 1024")
    e(f"v_lshrrev_b32 v{v_t0}, 2, v{v_lane}")
    e(f"s_movk_i32 s{s_tmp4}, 3072")
    e(f"v_mul_u32_u24 v{v_t0}, s{s_tmp4}, v{v_t0}")
    e(f"v_and_b32 v{v_t1}, 1, v{v_lane}")
    e(f"v_lshl_add_u32 v{v_t0}, v{v_t1}, 10, v{v_t0}")
    e(f"v_bfe_u32 v{v_t1}, v{v_lane}, 1, 1")
    e(f"v_lshl_add_u32 v{v_t0}, v{v_t1}, 7, v{v_t0}")
    e(f"buffer_load_dword v{T}, v{v_t0}, {srd(sWQ)}, s{s_tmp} offen")
    e(f"s_branch {lj}")
    a.label(lq)
    e(f"s_mul_i32 s{s_tmp}, s{s_tmp}, {16*3072}")
    e(f"s_lshl_b32 s{s_tmp3}, s{s_tmp3}, 8")
    e(f"s_add_u32 s{s_tmp}, s{s_tmp}, s{s_tmp3}")
    e(f"v_bfe_u32 v{v_t0}, v{v_lane}, 1, 4")
    e(f"s_movk_i32 s{s_tmp4}, 3072")
    e(f"v_mul_u32_u24 v{v_t0}, s{s_tmp4}, v{v_t0}")
    e(f"v_and_b32 v{v_t1}, 1, v{v_lane}")
    e(f"v_lshl_add_u32 v{v_t0}, v{v_t1}, 7, v{v_t0}")
    e(f"buffer_load_dword v{T}, v{v_t0}, {srd(sWQ)}, s{s_tmp} offen")
    a.label(lj)
    a.vm.append("TCH")

def touch_l2_s3(a, part, nparts):
    e = a.e
    T = v_xo + 3
    l1 = a.newlabel("Lt3"); lj = a.newlabel("Lt3j")
    n = 64 // nparts
    mask = ((1 << n) - 1) << (n * part)
    e(f"s_lshr_b32 s{s_tmp}, s2, 3")
    e(f"s_lshl_b32 s{s_tmp}, s{s_tmp}, 3")
    e(f"s_add_u32 s{s_tmp}, s{s_tmp}, s{s_wv}")
    e(f"s_mul_i32 s{s_tmp}, s{s_tmp}, {n*128}")
    e(f"s_add_u32 s{s_tmp}, s{s_tmp}, {part * 256 * n * 128 - part*n*128}")
    e(f"v_lshlrev_b32 v{v_t2}, 7, v{v_lane}")
    e(f"s_mov_b32 exec_lo, 0x{mask & 0xffffffff:x}")
    e(f"s_mov_b32 exec_hi, 0x{mask >> 32:x}")
    lim = 1376*1024
    if (part + 1) * 256 * n * 128 <= 0x180000:
        e(f"buffer_load_dword v{T}, v{v_t2}, {srd(sW2)}, s{s_tmp} offen")
    else:
        e(f"s_sub_u32 s{s_tmp}, s{s_tmp}, 0x180000")
        e(f"buffer_load_dword v{T}, v{v_t2}, {srd(sWO)}, s{s_tmp} offen")
    e("s_mov_b64 exec, -1")
    a.vm.append("TCH")

def touch_scalar(a, which):
    e = a.e
    e(f"s_lshl_b32 s{s_tmp}, s2, 3")
    e(f"s_add_u32 s{s_tmp}, s{s_tmp}, s{s_wv}")
    tab = {"x": (sX, 8), "q": (sWQ, 6), "1": (sW1, 6), "2": (sW2, 6), "o": (sWO, 2)}
    for w in which:
        sr, n = tab[w]
        e(f"s_mul_i32 s{s_tmp2}, s{s_tmp}, {n*128}")
        for i in range(n):
            e(f"s_buffer_load_dword s{s_cnt}, {srd(sr)}, s{s_tmp2} offset:{i*128}")

def tlb_warm(a, mode):
    e = a.e
    e(f"s_lshl_b32 s{s_tmp}, s{s_wv}, 21")
    e(f"s_buffer_load_dword s{s_cnt}, {srd(sWS)}, s{s_tmp}")
    e(f"s_add_u32 s{s_tmp}, s{s_tmp}, 0x100000")
    e(f"s_buffer_load_dword s{s_cnt}, {srd(sWS)}, s{s_tmp}")
    e(f"s_lshl_b32 s{s_tmp}, s{s_wv}, 18")
    e(f"s_buffer_load_dword s{s_cnt}, {srd(sOUT)}, s{s_tmp}")
    if mode >= 2:
        e(f"s_buffer_load_dword s{s_cnt}, {srd(sW2)}, s{s_tmp}")
        e(f"s_buffer_load_dword s{s_cnt}, {srd(sWO)}, s{s_tmp}")
        e(f"s_buffer_load_dword s{s_cnt}, {srd(sDBG)}, 128")

def tlb_warm_v(a):
    e = a.e
    l = a.newlabel("Ltlb")
    e(f"s_cmp_lg_u32 s{s_wv}, 7")
    e(f"s_cbranch_scc1 {l}")
    e(f"v_lshlrev_b32 v{v_t2}, 20, v{v_lane}")
    e("s_mov_b64 exec, 0xffff")
    e(f"buffer_load_dword v{v_xo}, v{v_t2}, {srd(sWS)}, 0 offen")
    e("s_mov_b64 exec, 0xff")
    e(f"v_lshlrev_b32 v{v_t2}, 18, v{v_lane}")
    e(f"buffer_load_dword v{v_xo+1}, v{v_t2}, {srd(sOUT)}, 0 offen")
    e("s_mov_b64 exec, -1")
    a.label(l)

def touch_xcd(a):
    e = a.e
    T = 224
    e(f"s_lshr_b32 s{s_tmp}, s2, 3")
    e(f"s_lshl_b32 s{s_tmp}, s{s_tmp}, 3")
    e(f"s_add_u32 s{s_tmp}, s{s_tmp}, s{s_wv}")
    e(f"s_and_b32 s{s_tmp2}, s2, 1")
    e(f"s_bfe_u32 s{s_tmp3}, s2, 0x20001")
    e(f"s_lshl_b32 s{s_tmp4}, s{s_tmp2}, 2")
    e(f"s_add_u32 s{s_tmp4}, s{s_tmp4}, s{s_tmp3}")
    e(f"s_lshl_b32 s{s_tmp4}, s{s_tmp4}, 8")
    e(f"s_add_u32 s{s_tmp4}, s{s_tmp4}, s{s_tmp}")
    e(f"s_lshl_b32 s{s_tmp4}, s{s_tmp4}, 10")
    a.vmem(f"buffer_load_dwordx4 {vr(T,4)}, v{v_l16}, {srd(sX)}, s{s_tmp4} offen", "TCH")
    e(f"v_lshrrev_b32 v{v_t0}, 4, v{v_lane}")
    e(f"s_movk_i32 s{s_tmp4}, 3072")
    e(f"v_mul_u32_u24 v{v_t0}, s{s_tmp4}, v{v_t0}")
    e(f"v_and_b32 v{v_t1}, 15, v{v_lane}")
    e(f"v_lshl_add_u32 v{v_t0}, v{v_t1}, 4, v{v_t0}")
    e(f"s_and_b32 s{s_tmp4}, s{s_tmp}, 63")
    e(f"s_lshl_b32 s{s_cnt}, s{s_tmp2}, 6")
    e(f"s_add_u32 s{s_tmp4}, s{s_tmp4}, s{s_cnt}")
    e(f"s_mul_i32 s{s_tmp4}, s{s_tmp4}, {4*3072}")
    e(f"s_lshr_b32 s{s_cnt}, s{s_tmp}, 6")
    e(f"s_sub_u32 s{s_cnt}, 2, s{s_cnt}")
    e(f"s_lshl_b32 s{s_cnt}, s{s_cnt}, 10")
    e(f"s_add_u32 s{s_tmp4}, s{s_tmp4}, s{s_cnt}")
    e(f"s_lshl_b32 s{s_cnt}, s{s_tmp3}, 8")
    e(f"s_add_u32 s{s_tmp4}, s{s_tmp4}, s{s_cnt}")
    e(f"s_cmp_ge_u32 s{s_tmp}, 192")
    e(f"s_cselect_b32 s{s_tmp4}, {OOB}, s{s_tmp4}")
    a.vmem(f"buffer_load_dwordx4 {vr(T+4,4)}, v{v_t0}, {srd(sWQ)}, s{s_tmp4} offen", "TCH")
    e(f"s_lshl_b32 s{s_tmp4}, s{s_tmp2}, 8")
    e(f"s_add_u32 s{s_tmp4}, s{s_tmp4}, s{s_tmp}")
    e(f"s_mul_i32 s{s_tmp4}, s{s_tmp4}, 2752")
    e(f"s_mul_i32 s{s_cnt}, s{s_tmp3}, 768")
    e(f"s_add_u32 s{s_tmp4}, s{s_tmp4}, s{s_cnt}")
    e(f"s_and_b32 s{s_tmp4}, s{s_tmp4}, 0xffffff80")
    e("s_mov_b32 exec_hi, 0xffffff")
    a.vmem(f"buffer_load_dwordx4 {vr(T+8,4)}, v{v_l16}, {srd(sW1)}, s{s_tmp4} offen", "TCH")
    e("s_mov_b32 exec_hi, -1")

HEADER = open(os.path.join(os.path.dirname(os.path.abspath(__file__)), "..", "cdna_kernels", NAME + ".s.ref")).read().split("; Override launch")[0]

def emit_file(path):
    a = gen()
    s = HEADER
    s += "; @launch grid=(256,1,1) block=(512,1,1) lds=163840\n"
    s += f""".amdgcn_target "amdgcn-amd-amdhsa--gfx950"
.text
.globl {NAME}_kernel
.p2align 8
.type {NAME}_kernel,@function
{NAME}_kernel:
"""
    s += "\n".join(a.lines) + "\n"
    s += f""".section .rodata,"a"
.p2align 6
.amdhsa_kernel {NAME}_kernel
  .amdhsa_next_free_vgpr 256
  .amdhsa_next_free_sgpr {NSGPR}
  .amdhsa_accum_offset 256
  .amdhsa_group_segment_fixed_size 0
  .amdhsa_kernarg_size 80
  .amdhsa_user_sgpr_count 2
  .amdhsa_user_sgpr_kernarg_segment_ptr 1
  .amdhsa_system_sgpr_workgroup_id_x 1
.end_amdhsa_kernel
"""
    open(path, "w").write(s)

if __name__ == "__main__":
    out = sys.argv[1] if len(sys.argv) > 1 else os.path.join(os.path.dirname(os.path.abspath(__file__)), "..", "cdna_kernels", NAME + ".s")
    emit_file(out)
```

```python
import sys, math, os, struct

NAME = "gated_mix__sliding_block__dense_activation_relu__prompt"

KF = 0x200000
VF = 0x400000
OF = 0x600000
HF = 0x800000
GB = 0xE00000
FL = 0xF00000
TS = 0xF80000
WS_BYTES = 0x1000000
HROW = 86 * 1024
OOB = 0x40000000
SLOT = 16384

def env(n, d): return int(os.environ.get(n, d))
STAMPS = env("GEN_STAMPS", 0) >= 1
STAMPS2 = env("GEN_STAMPS", 0) >= 2
TOUCH = env("GEN_TOUCH", 10)
NT = env("GEN_NT", 0)
HROT = env("GEN_HROT", 0)
ROT = env("GEN_ROT", 0)

class Asm:
    def __init__(self):
        self.lines = []; self.vm = []; self.uid = 0; self.nstamp = 0
    def e(self, s): self.lines.append("    " + s)
    def label(self, l): self.lines.append(l + ":")
    def c(self, s): self.lines.append("    ; " + s)
    def newlabel(self, p="L"):
        self.uid += 1
        return f"{p}_{self.uid}"
    def vmem(self, s, tag):
        self.e(s); self.vm.append(tag)
    def wait_vm(self, tags, lgkm0=False):
        if isinstance(tags, str): tags = [tags]
        last = -1
        for i, t in enumerate(self.vm):
            if t in tags: last = i
        x = " lgkmcnt(0)" if lgkm0 else ""
        if last < 0:
            if lgkm0: self.e("s_waitcnt lgkmcnt(0)")
            return
        n = len(self.vm) - 1 - last
        assert n <= 63
        self.e(f"s_waitcnt vmcnt({n}){x}")
        self.vm = self.vm[last + 1:]

class Lg:
    def __init__(self, a): self.a = a; self.q = []
    def add(self, tag): self.q.append(tag)
    def wait(self, tags):
        last = -1
        for i, t in enumerate(self.q):
            if t in tags: last = i
        if last < 0: return
        n = min(len(self.q) - 1 - last, 15)
        self.a.e(f"s_waitcnt lgkmcnt({n})")
        self.q = self.q[len(self.q) - n:] if n else []
    def clear(self): self.q = []
    def drain(self):
        if self.q: self.a.e("s_waitcnt lgkmcnt(0)")
        self.q = []

sX, sWQ, sW1, sW2, sWO, sWS, sOUT, sGW, sDBG, sPW = 8, 12, 16, 20, 24, 28, 32, 36, 40, 88
def srd(b): return f"s[{b}:{b+3}]"
s_wv, s_rb, s_cg, s_p, s_t, s_rg, s_cgp, s_rb3, s_cb3, s_xbase = range(44, 54)
s_tmp, s_tmp2, s_wideoff, s_naroff = 54, 55, 56, 57
s_nonce = 58
s_tmp3, s_tmp4, s_st0, s_st1, s_first, s_w2off, s_xlds, s_cnt = range(60, 68)
s_exec = 68
s_m = 70; s_m2 = 72; s_m3 = 74
s_ldsw, s_a3, s_a3o, s_qb = 76, 77, 78, 79
s_vm = 80
s_ts = 82
s_tsb, s_ok, s_ga, s_pstep = 84, 85, 86, 87
s_st2 = 92
s_ldsww = 95
s_gw = 7
s_wbase = 5
GREG = 48
s_fl = 6
s_kvb = 3
s_krd = 4
s_vrdb = 98
s_flh = 99
s_r3 = 101
s_flc = 100
v_kf = 25
NSGPR = 102

v_lane, v_l16 = 1, 2
v_xo = 3
v_wq_n, v_wd0, v_wd1, v_xrd, v_trn, v_trw, v_tr3, v_w2_n = 7, 8, 9, 10, 11, 12, 13, 14
v_t0, v_t1 = 15, 16
v_hi = 17
v_t2, v_t3 = 18, 19
v_non = 20
v_c2 = 20
v_mc = 22
v_g2 = 24
v_omg2 = 26
v_t4, v_t5 = 28, 29
v_trw2, v_tr3b = 30, 31
MASKF = 32
MASKD = 48
BF = 64
ACC = 96
XF = 128
v_fo = 252; v_fd = 254

def vr(b, n): return f"v[{b}:{b+n-1}]"

ORD = os.environ.get("GEN_ORD", "A")
CFG = {
 "A": dict(order=[0,1,2,3,4,5,6,7,8,9,10,11], xslot={0:0,1:4,2:6,3:0}, init={0:2,1:3}, atk=6, atv=4, usplit=4, lg=4,
      sched={0:[("X",2,0),("P",2,8),("P",3,9)], 1:[("X",3,0),("P",4,2)], 2:[("P",5,4),("P",6,5),("P",7,3)],
             3:[("P",8,6),("P",9,7),("P",10,8)], 4:[("P",11,9)], 5:[("Q",0,0),("Q",1,1)], 6:[("Q",2,2)], 9:[("Q",3,3)]},
      sig0=6, kvi=9, kvc=11, post=(8,9), non=2),
 "C": dict(order=[0,1,4,2,5,3,6,7,8,9,10,11], xslot={0:0,1:3,2:8,3:0}, init={0:2,1:5}, atk=3, atv=0, usplit=6, lg=6,
      sched={0:[("P",4,6),("X",2,0),("P",2,7)], 1:[("P",5,2),("X",3,0)], 2:[("P",3,5),("P",6,3),("P",7,4)],
             3:[("P",8,6)], 4:[("P",9,7),("P",10,8),("P",11,9)], 5:[("Q",0,2)], 7:[("Q",1,5)], 10:[("Q",2,6)], 11:[("Q",3,7)]},
      sig0=8, kvi=10, kvc=11, post=(8,9), non=3),
}[ORD]
XSLOT = CFG["xslot"]
ATK = CFG['atk'] * SLOT
ATQ = ATK + 24576
ATV = CFG['atv'] * SLOT

v_st = 27
def stamp(a, final=False):
    if not STAMPS: return
    i = a.nstamp; a.nstamp += 1
    cur = s_ts + 2*(i & 1) if False else (s_ts if (i & 1) == 0 else 96)
    prev = (s_ts if ((i-1) & 1) == 0 else 96)
    if i > 0:
        a.e(f"v_writelane_b32 v{v_st}, s{prev}, {i-1}")
    a.e(f"{'s_memrealtime' if env('GEN_RT',0) else 's_memtime'} s[{cur}:{cur+1}]")
    if final:
        a.e("s_waitcnt lgkmcnt(0)")
        a.e(f"v_writelane_b32 v{v_st}, s{cur}, {i}")
        a.e(f"v_lshlrev_b32 v{v_t3}, 2, v{v_lane}")
        a.e("s_mov_b32 exec_lo, -1")
        a.e("s_mov_b32 exec_hi, 0")
        a.e(f"buffer_store_dword v{v_st}, v{v_t3}, {srd(sWS)}, s{s_tsb} offen")
        if env("GEN_DBG", 0):
            l = a.newlabel("Ldbg")
            a.e(f"s_cmp_lg_u32 s2, {env('GEN_DBG',0)}")
            a.e(f"s_cbranch_scc1 {l}")
            a.e(f"s_cmp_lg_u32 s{s_wv}, 0")
            a.e(f"s_cbranch_scc1 {l}")
            a.e(f"v_readlane_b32 s{s_tmp}, v{v_st}, 0")
            a.e("s_nop 3")
            a.e(f"v_subrev_u32 v{v_st}, s{s_tmp}, v{v_st}")
            a.e("s_mov_b32 exec_lo, 0x3ffe")
            a.e(f"buffer_store_dword v{v_st}, v{v_t3}, {srd(sDBG)}, 0 offen offset:4")
            a.label(l)

def dma(a, voff, srd_b, soff, lds_sgpr, ldsimm, tag, sc1=False):
    a.e(f"s_add_u32 m0, s{lds_sgpr}, {ldsimm}")
    a.e("s_nop 0")
    nt = " nt" if (not sc1 and ((NT & 1) and tag[0] in "XP" or (NT & 2) and tag[0] == "Q" or (NT & 4) and tag in ("X0", "P0") or (NT & 8) and tag in ("X1", "P1"))) else ""
    a.vmem(f"buffer_load_dwordx4 v{voff}, {srd(srd_b)}, {soff} offen{' sc1' if sc1 else ''}{nt} lds", tag)

def x_ops(a, j):
    ops = []
    for t in range(4):
        def f(t=t):
            a.e(f"s_add_u32 s{s_tmp}, s{s_xbase}, {t*4096 + j*256}")
            dma(a, v_xo + t, sX, f"s{s_tmp}", s_xlds, XSLOT[j]*SLOT + t*1024, f"X{j}")
        ops.append(f)
    return ops

def piece_ops(a, i, slot):
    ops = []
    for t in range(2):
        if i < 4:
            def f(t=t):
                a.e(f"s_add_u32 s{s_tmp}, s{s_naroff}, {(128*i + 8*t)*3072}")
                dma(a, v_wq_n, sWQ, f"s{s_tmp}", s_ldsw, slot*SLOT + t*1024, f"P{i}")
        else:
            def f(t=t):
                if t == 0:
                    a.e(f"s_mul_i32 s{s_wideoff}, s{s_pstep}, {i-4}")
                    a.e(f"s_add_u32 s{s_wideoff}, s{s_wideoff}, s{s_wbase}")
                a.e(f"s_add_u32 s{s_tmp}, s{s_ldsw}, {slot*SLOT + t*1024}")
                a.e(f"s_max_u32 m0, s{s_tmp}, s{s_ldsww}")
                a.e("s_nop 0")
                a.vmem(f"buffer_load_dwordx4 v{v_wd0 + t}, {srd(sPW)}, s{s_wideoff} offen{' nt' if NT & 1 else ''} lds", f"P{i}")
                if t == 1:
                    l = a.newlabel("Lgw")
                    a.e(f"s_cmp_eq_u32 s{s_gw}, 0")
                    a.e(f"s_cbranch_scc1 {l}")
                    a.e(f"v_add_u32 v{v_t2}, {slot*SLOT + 4096 + 128}, v{v_g2}")
                    a.e(f"ds_write_b16 v{v_t2}, v{GREG + i - 4}")
                    a.label(l)
        ops.append(f)
    return ops

def w2_ops(a, i, slot):
    ops = []
    for t in range(2):
        def f(t=t):
            srdb, r0 = (sW2, 128*i) if i <= 10 else (sWO, 128*(i-11))
            if HROT and i <= 10:
                a.e(f"s_add_u32 s{s_tmp}, s{s_p}, {r0*1024}")
                a.e(f"s_sub_u32 s{s_tmp2}, s{s_tmp}, {11*128*1024}")
                a.e(f"s_cselect_b32 s{s_tmp}, s{s_tmp}, s{s_tmp2}")
                a.e(f"s_add_u32 s{s_tmp}, s{s_tmp}, s{s_w2off}")
                if t: a.e(f"s_add_u32 s{s_tmp}, s{s_tmp}, {8*1024}")
            else:
                a.e(f"s_add_u32 s{s_tmp}, s{s_w2off}, {(r0 + 8*t) * 1024}")
            dma(a, v_w2_n, srdb, f"s{s_tmp}", s_ldsw, slot*SLOT + t*1024, f"Q{i}")
        ops.append(f)
    return ops

def issue_x_quarter(a, j):
    for f in x_ops(a, j): f()
def issue_piece(a, i, slot):
    for f in piece_ops(a, i, slot): f()
def issue_w2_piece(a, i, slot):
    for f in w2_ops(a, i, slot): f()

def mfma(a, d, x, y, c):
    cs = c if isinstance(c, str) else vr(c, 16)
    a.e(f"v_mfma_f32_32x32x16_bf16 {vr(d,16)}, {vr(x,4)}, {vr(y,4)}, {cs}")

def pack_tile(a, acc, pk, relu):
    for q in range(8):
        a.e(f"v_cvt_pk_bf16_f32 v{pk+q}, v{acc+2*q}, v{acc+2*q+1}")
    if relu:
        for q in range(8):
            a.e(f"v_pk_max_i16 v{pk+q}, v{pk+q}, 0")

def store_pk(a, pk, soff_sgpr, tag):
    a.vmem(f"buffer_store_dwordx4 {vr(pk,4)}, v{v_l16}, {srd(sWS)}, s{soff_sgpr} offen sc1", tag)
    a.vmem(f"buffer_store_dwordx4 {vr(pk+4,4)}, v{v_l16}, {srd(sWS)}, s{soff_sgpr} offen offset:1024 sc1", tag)

def signal(a, phase):
    l = a.newlabel("Lsig")
    a.e(f"s_cmp_lg_u32 s{s_wv}, 0")
    a.e(f"s_cbranch_scc1 {l}")
    a.e(f"v_mov_b32 v{v_t2}, s{s_nonce}")
    a.e(f"v_mov_b32 v{v_t3}, s{s_nonce+1}")
    a.e(f"v_mov_b32 v{v_t1}, {phase*32768}")
    a.e("s_mov_b64 exec, 1")
    a.e(f"buffer_store_dwordx2 v[{v_t2}:{v_t3}], v{v_t1}, {srd(sWS)}, s{s_fl} offen sc1")
    a.e("s_mov_b64 exec, -1")
    a.label(l)

def signal_wave(a):
    a.e(f"v_mov_b32 v{v_t2}, s{s_nonce}")
    a.e(f"v_mov_b32 v{v_t3}, s{s_nonce+1}")
    a.e(f"v_mov_b32 v{v_t1}, 0")
    a.e("s_mov_b64 exec, 1")
    a.vmem(f"buffer_store_dwordx2 v[{v_t2}:{v_t3}], v{v_t1}, {srd(sWS)}, s{s_flh} offen sc1", "SIGH")
    a.e("s_mov_b64 exec, -1")

def cmp_flags4(a, vd):
    a.e(f"v_xor_b32 v{vd}, s{s_nonce}, v{vd}")
    a.e(f"v_xor_b32 v{vd+1}, s{s_nonce+1}, v{vd+1}")
    a.e(f"v_xor_b32 v{vd+2}, s{s_nonce}, v{vd+2}")
    a.e(f"v_xor_b32 v{vd+3}, s{s_nonce+1}, v{vd+3}")
    a.e(f"v_or3_b32 v{vd}, v{vd}, v{vd+1}, v{vd+2}")
    a.e(f"v_or_b32 v{vd}, v{vd}, v{vd+3}")
    a.e(f"v_cmp_ne_u32 vcc, 0, v{vd}")
    a.e("s_nop 3")
    a.e("s_cmp_eq_u64 vcc, 0")

def hflag_issue(a, track=True):
    ins = f"buffer_load_dwordx4 v[252:255], v{v_l16}, {srd(sWS)}, s{s_flc} offen sc1"
    (a.vmem(ins, "FH") if track else a.e(ins))

def hpoll(a):
    lp = a.newlabel("Lpoll"); ld = a.newlabel("Lpolld")
    a.e(f"s_mov_b32 s{s_cnt}, 0")
    a.label(lp)
    hflag_issue(a, False)
    a.e("s_waitcnt vmcnt(0)")
    cmp_flags4(a, 252)
    a.e(f"s_cbranch_scc1 {ld}")
    a.e("s_sleep 1")
    a.e(f"s_add_u32 s{s_cnt}, s{s_cnt}, 1")
    a.e(f"s_cmp_lt_u32 s{s_cnt}, 100000")
    a.e(f"s_cbranch_scc1 {lp}")
    a.label(ld)

def cmp_flags(a, vd):
    a.e(f"v_cmp_eq_u32 s[{s_m2}:{s_m2+1}], s{s_nonce}, v{vd}")
    a.e(f"v_cmp_eq_u32 s[{s_m3}:{s_m3+1}], s{s_nonce+1}, v{vd+1}")
    a.e("s_nop 3")
    a.e(f"s_and_b64 s[{s_m2}:{s_m2+1}], s[{s_m2}:{s_m2+1}], s[{s_m3}:{s_m3+1}]")
    a.e(f"s_and_b64 s[{s_m2}:{s_m2+1}], s[{s_m2}:{s_m2+1}], s[{s_m}:{s_m+1}]")
    a.e(f"s_cmp_eq_u64 s[{s_m2}:{s_m2+1}], s[{s_m}:{s_m+1}]")

def poll(a, voff):
    lp = a.newlabel("Lpoll"); ld = a.newlabel("Lpolld")
    a.e(f"s_mov_b32 s{s_cnt}, 0")
    a.label(lp)
    a.e(f"buffer_load_dwordx2 v[{v_t2}:{v_t3}], v{voff}, {srd(sWS)}, 0 offen sc1")
    a.e("s_waitcnt vmcnt(0)")
    cmp_flags(a, v_t2)
    a.e(f"s_cbranch_scc1 {ld}")
    a.e("s_sleep 1")
    a.e(f"s_add_u32 s{s_cnt}, s{s_cnt}, 1")
    a.e(f"s_cmp_lt_u32 s{s_cnt}, 100000")
    a.e(f"s_cbranch_scc1 {lp}")
    a.label(ld)

def flag_issue(a, voff, vdst, tag, track=True):
    ins = f"buffer_load_dwordx2 v[{vdst}:{vdst+1}], v{voff}, {srd(sWS)}, 0 offen sc1"
    (a.vmem(ins, tag) if track else a.e(ins))

def flag_check(a, vdst, tag, track=True):
    if track: a.wait_vm(tag)
    else: a.e("s_waitcnt vmcnt(0)")
    cmp_flags(a, vdst)

def get_nonce(a):
    a.wait_vm("NON")
    lp = a.newlabel("Lnp"); ld = a.newlabel("Lnd")
    a.e(f"s_mov_b32 s{s_cnt}, 0")
    a.label(lp)
    a.e(f"v_readfirstlane_b32 s{s_nonce}, v{v_non}")
    a.e(f"v_readfirstlane_b32 s{s_nonce+1}, v{v_non+1}")
    a.e("s_nop 3")
    a.e(f"s_cmp_lg_u32 s{s_nonce}, 0")
    a.e(f"s_cbranch_scc1 {ld}")
    a.e("s_sleep 2")
    a.e(f"v_mov_b32 v{v_t2}, 0")
    a.e(f"buffer_load_dwordx2 v[{v_non}:{v_non+1}], v{v_t2}, {srd(sDBG)}, 0 offen sc1")
    a.e("s_waitcnt vmcnt(0)")
    a.e(f"s_add_u32 s{s_cnt}, s{s_cnt}, 1")
    a.e(f"s_cmp_lt_u32 s{s_cnt}, 100000")
    a.e(f"s_cbranch_scc1 {lp}")
    a.label(ld)

def kv_flag_setup(a):
    e = a.e
    e(f"s_lshl_b32 s{s_tmp}, s{s_rb}, 4")
    e(f"s_add_u32 s{s_fl}, s{s_tmp}, s{s_cg}")
    e(f"s_lshl_b32 s{s_fl}, s{s_fl}, 7")
    e(f"s_add_u32 s{s_fl}, s{s_fl}, {FL}")
    e(f"s_lshl_b32 s{s_tmp2}, s{s_p}, 1")
    e(f"s_add_u32 s{s_tmp}, s{s_tmp}, s{s_tmp2}")
    e(f"v_lshrrev_b32 v{v_kf}, 1, v{v_lane}")
    e(f"v_lshlrev_b32 v{v_kf}, 4, v{v_kf}")
    e(f"v_sub_u32 v{v_kf}, s{s_tmp}, v{v_kf}")
    e(f"v_and_b32 v{v_t0}, 1, v{v_lane}")
    e(f"v_add_u32 v{v_kf}, v{v_kf}, v{v_t0}")
    e(f"v_and_b32 v{v_kf}, 255, v{v_kf}")
    e(f"v_lshlrev_b32 v{v_kf}, 7, v{v_kf}")
    e(f"v_add_u32 v{v_kf}, {FL}, v{v_kf}")
    e(f"s_mov_b32 s{s_m}, 63")
    e(f"s_cmp_eq_u32 s{s_rb}, 1")
    e(f"s_cselect_b32 s{s_m}, 15, s{s_m}")
    e(f"s_cmp_eq_u32 s{s_rb}, 0")
    e(f"s_cselect_b32 s{s_m}, 3, s{s_m}")
    e(f"s_mov_b32 s{s_m+1}, 0")
    e(f"s_lshl_b32 s{s_tmp3}, s{s_cg}, 6")
    e(f"s_lshl_b32 s{s_tmp4}, s{s_rb}, 2")
    e(f"s_add_u32 s{s_tmp3}, s{s_tmp3}, s{s_tmp4}")
    e(f"s_lshl_b32 s{s_tmp3}, s{s_tmp3}, 11")
    e(f"s_mul_i32 s{s_tmp4}, s{s_wv}, 3072")
    e(f"s_add_u32 s{s_kvb}, s{s_tmp3}, s{s_tmp4}")
    e(f"s_lshl_b32 s{s_tmp}, s{s_rg}, 11")
    e(f"s_lshl_b32 s{s_tmp2}, s{s_cgp}, 10")
    e(f"s_add_u32 s{s_tmp2}, s{s_tmp2}, s{s_tmp}")
    e(f"s_add_u32 s{s_krd}, s{s_tmp2}, {ATK}")
    e(f"s_lshl_b32 s{s_tmp2}, s{s_cgp}, 8")
    e(f"s_add_u32 s{s_tmp2}, s{s_tmp2}, s{s_tmp}")
    e(f"s_add_u32 s{s_vrdb}, s{s_tmp2}, {ATV}")
    e(f"s_lshl_b32 s{s_qb}, s{s_rb}, 2")
    e(f"s_add_u32 s{s_qb}, s{s_qb}, s{s_rg}")
    e(f"s_sub_i32 s{s_first}, 8, s{s_qb}")
    e(f"s_max_i32 s{s_first}, s{s_first}, 0")
    e(f"s_mov_b32 s{s_vm}, 0xffff")
    e(f"s_mov_b32 s{s_vm+1}, 0xffff")
    s3_addr_setup(a)
    e(f"s_lshl_b32 s{s_tmp}, s{s_cg}, 3")
    e(f"s_add_u32 s{s_tmp}, s{s_tmp}, s{s_wv}")
    e(f"s_lshl_b32 s{s_tmp}, s{s_tmp}, 3")
    e(f"s_lshl_b32 s{s_flh}, s{s_rb}, 10")
    e(f"s_add_u32 s{s_flh}, s{s_flh}, s{s_tmp}")
    e(f"s_add_u32 s{s_flh}, s{s_flh}, {FL + 32768}")
    e(f"s_lshr_b32 s{s_flc}, s{s_rb3}, 1")
    e(f"s_lshl_b32 s{s_flc}, s{s_flc}, 10")
    e(f"s_add_u32 s{s_flc}, s{s_flc}, {FL + 32768}")

def kv_ops(a, guard=True):
    ops = []
    for reg, lds, tag in ((KF, ATK, "AK"), (VF, ATV, "AV")):
        for i in range(3):
            def f(reg=reg, lds=lds, tag=tag, i=i):
                l = None
                if guard:
                    l = a.newlabel("Lkvg")
                    a.e(f"s_cmp_eq_u32 s{s_ok}, 0")
                    a.e(f"s_cbranch_scc1 {l}")
                a.e(f"s_mul_i32 s{s_tmp4}, s{s_wv}, 3072")
                a.e(f"s_add_u32 s{s_tmp}, s{s_kvb}, {reg - 16384 + i*1024}")
                dma(a, v_l16, sWS, f"s{s_tmp}", s_tmp4, lds + i*1024, tag, sc1=True)
                if l: a.label(l)
            ops.append(f)
    return ops

def issue_kv(a, which, track=True):
    sv = list(a.vm)
    for f in kv_ops(a, guard=False): f()
    if not track: a.vm = sv

def s1_items(pieces, slot_of):
    items = []
    for i in pieces:
        sl = slot_of[i]
        if i < 4:
            for s in range(8):
                items.append(dict(pc=i, ks=8*i + s, tl=0, vb=v_trn, off=s*2048, sec=512, sl=sl, xs=s))
        else:
            j = i - 4
            for s in range(4):
                for tl in range(2):
                    items.append(dict(pc=i, ks=4*j + s, tl=tl, vb=(v_trw2 if tl else v_trw), off=None, s=s, sl=sl, xs=None))
    return items

def stage1(a, isv):
    raise NotImplementedError

ORDER = CFG['order']
T3U = env('GEN_T3U', 99)
FLUSH = 1
USPLIT = CFG['usplit']

class S1:
    D = env('GEN_D', 5)
    def __init__(self, a):
        self.a = a; self.lg = Lg(a); self.n = 0
        self.fifo = []
        self.slot_of = dict(CFG["init"])
        self.w2_slot = {}
        self.base = {}
        self.sched = CFG["sched"]
    def sync(self, u, extra_need=(), hook=None):
        a = self.a
        i = ORDER[u]
        need = [f"P{i}"] + ([f"X{i}"] if i < 4 else []) + list(extra_need)
        if FLUSH: self.pump(len(self.fifo))
        if u <= CFG['lg']:
            a.wait_vm(need, lgkm0=True)
            self.lg.clear()
        else:
            a.wait_vm(need)
        a.e("s_barrier")
        if STAMPS2: stamp(a)
        if hook: hook()
        for kind, pc, sl in self.sched.get(u, []):
            if kind == "P": self.slot_of[pc] = sl; self.fifo += piece_ops(a, pc, sl)
            elif kind == "X": self.fifo += x_ops(a, pc)
            else: self.w2_slot[pc] = sl; self.fifo += w2_ops(a, pc, sl)
        self.base = {}
    def pump(self, n=1):
        for _ in range(n):
            if self.fifo: self.fifo.pop(0)()
    def read(self, it):
        a = self.a
        b = BF + (it["n"] % 8) * 4
        sl = it["sl"]
        if it["xs"] is not None:
            s = it["xs"]; xq = it["pc"]
            r = v_t0 + (s & 1)
            a.e(f"v_xor_b32 v{r}, {s*32}, v{v_xrd}")
            off = XSLOT[xq]*SLOT
            if off > 65535:
                a.e(f"v_add_u32 v{r}, {off}, v{r}"); off = 0
            a.e(f"ds_read_b128 {vr(XF + it['ks']*4, 4)}, v{r} offset:{off}")
            self.lg.add(("x", it["ks"]))
        vb = it["vb"]
        if it["pc"] < 4:
            off, sec = it["off"], it["sec"]
            o = sl*SLOT + off
            if o + sec > 65535:
                if vb not in self.base:
                    a.e(f"v_add_u32 v{v_t4}, {sl*SLOT}, v{vb}"); self.base[vb] = v_t4
                vb = self.base[vb]; o = off
            a.e(f"ds_read_b64_tr_b16 {vr(b,2)}, v{vb} offset:{o}")
            a.e(f"ds_read_b64_tr_b16 {vr(b+2,2)}, v{vb} offset:{o + sec}")
        else:
            s = it["s"]; tl = it["tl"]
            if tl == 1:
                o = sl*SLOT + s*16*192; sec = 4*192
                if o + sec > 65535 - 16384:
                    if vb not in self.base:
                        a.e(f"v_add_u32 v{v_t5}, {sl*SLOT}, v{vb}"); self.base[vb] = v_t5
                    vb = self.base[vb]; o = s*16*192
                a.e(f"ds_read_b64_tr_b16 {vr(b,2)}, v{vb} offset:{o}")
                a.e(f"ds_read_b64_tr_b16 {vr(b+2,2)}, v{vb} offset:{o + sec}")
            else:
                if s == 0:
                    a.e(f"v_add_u32 v{v_t4}, {sl*SLOT}, v{v_trw}")
                    a.e(f"v_add_u32 v{v_t0}, {sl*SLOT}, v{v_omg2}")
                else:
                    a.e(f"v_add_u32 v{v_t4}, s{s_k16}, v{v_t4}")
                    a.e(f"v_add_u32 v{v_t0}, s{s_k16}, v{v_t0}")
                a.e(f"ds_read_b64_tr_b16 {vr(b,2)}, v{v_t4}")
                a.e(f"ds_read_b64_tr_b16 {vr(b+2,2)}, v{v_t0}")
        self.lg.add(("b", it["n"])); self.lg.add(("b", it["n"]))
    def mm(self, it, isv):
        a = self.a
        self.lg.wait([("b", it["n"]), ("x", it["ks"])])
        b = BF + (it["n"] % 8) * 4
        if it["pc"] < 4:
            acc = ACC2
            cin = "0" if it["ks"] == 0 else acc
            if isv: mfma(a, acc, XF + it["ks"]*4, b, cin)
            else: mfma(a, acc, b, XF + it["ks"]*4, cin)
        else:
            acc = ACC + 16*it["tl"]
            cin = "0" if it["ks"] == 0 else acc
            mfma(a, acc, b, XF + it["ks"]*4, cin)

ACC2 = MASKF
s_k16 = 93

def build_maskd(a):
    e = a.e
    e(f"v_and_b32 v{v_t2}, 31, v{v_lane}")
    e(f"v_lshlrev_b32 v{v_t3}, 2, v{v_hi}")
    e(f"v_sub_u32 v{v_t2}, v{v_t2}, v{v_t3}")
    e(f"v_mov_b32 v{v_t3}, 0xf149f2ca")
    for r in range(16):
        cr = (r & 3) + 8 * (r >> 2)
        e(f"v_cmp_gt_i32 vcc, {cr}, v{v_t2}")
        e("s_nop 1")
        e(f"v_cndmask_b32 v{MASKD+r}, 0, v{v_t3}, vcc")

PRE = env("GEN_PRE", 2)
def run_stage1(a):
    e = a.e
    a.c("================ stage 1 ================")
    D = S1.D
    base_lines = a.lines
    outs = []
    ns0 = a.nstamp; vm0 = list(a.vm)
    state = {}
    def hook(u, st):
        if u == 1 and TOUCH >= 2 and TOUCH not in (7, 9): touch(a, (sW2, sWO), 240)
        if T3U <= u < T3U + 4: st.fifo.append(lambda u=u: touch_l2_s3(a, u - T3U, 4))
        if u == env("GEN_TLBV", 3): tlb_warm_v(a)
        if u == CFG['non']:
            a.e(f"v_mov_b32 v{v_t2}, 0")
            a.vmem(f"buffer_load_dwordx2 v[{v_non}:{v_non+1}], v{v_t2}, {srd(sDBG)}, 0 offen sc1", "NON")
        if u == SIG0:
            get_nonce(a); signal(a, 0)
        VE = env("GEN_VE", 0)
        if u == CFG["kvi"] - VE:
            flag_issue(a, v_kf, v_non + 2, "FKV")
        if u == CFG["kvc"] - VE:
            flag_check(a, v_non + 2, "FKV")
            a.e(f"s_cselect_b32 s{s_ok}, 1, 0")
            l2 = a.newlabel("Lkv2")
            a.e(f"s_cbranch_scc1 {l2}")
            flag_issue(a, v_kf, v_non + 2, "FKV", track=False)
            a.label(l2)
            ops = kv_ops(a)
            if VE: st.fifo = ops[3:] + st.fifo
            else: st.fifo = ops + st.fifo
        if VE and u == CFG["kvc"]:
            st.fifo = kv_ops(a)[:3] + st.fifo
    def do_mm(st, pend, isv):
        it = pend.pop(0)
        st.mm(it, isv)
        if it["pc"] == 3 and it["ks"] == 31: state["kvdone"] = 0
        elif "kvdone" in state:
            state["kvdone"] += 1
            if state["kvdone"] == 2:
                a.e("s_nop 7")
                pack_tile(a, ACC2, ACC2, False)
                store_pk(a, ACC2, s_st0, "ST0")
        st.pump(1)
    def unit(st, u, pend, n, isv, q0=0, q1=8, items=None):
        pc = ORDER[u]
        if items is None:
            if u <= CFG["lg"]:
                for _ in range(min(PRE, len(pend))): do_mm(st, pend, isv)
            st.sync(u, ["ST0"] if u == SIG0 else [], lambda: hook(u, st))
            items = s1_items([pc], st.slot_of)
            for it in items: it["n"] = n; n += 1
        for q in range(q0, q1):
            st.read(items[q]); pend.append(items[q])
            if len(pend) > D: do_mm(st, pend, isv)
            elif q % 2 == 1 and len(pend) > 2 and u > 0 and pend[0]["pc"] != pc: do_mm(st, pend, isv)
        return n, items
    for isv in (0, 1):
        a.lines = []; a.vm = list(vm0); a.nstamp = ns0; state.clear()
        st = S1(a)
        if isv: a.label("L_s1v")
        pend = []; n = 0
        for u in range(0, USPLIT):
            n, _ = unit(st, u, pend, n, isv)
        n, items = unit(st, USPLIT, pend, n, isv, 0, 0)
        q = 0
        while any(it["pc"] < 4 for it in pend):
            unit(st, USPLIT, pend, n, isv, q, q + 1, items); q += 1
            if q >= 8:
                while any(it["pc"] < 4 for it in pend): do_mm(st, pend, isv)
        st.pump(len(st.fifo))
        if not isv: a.e("s_branch L_s1w")
        outs.append((a.lines, list(a.vm), st, pend, n, items, q, dict(state)))
    assert outs[0][1] == outs[1][1]
    a.lines = base_lines + outs[0][0] + outs[1][0]
    _, vm, st, pend, n, items_s, q0, stt = outs[1]
    a.vm = vm
    a.label("L_s1w")
    unit(st, USPLIT, pend, n, 0, q0, 8, items_s)
    for u in range(USPLIT + 1, 12):
        n, _ = unit(st, u, pend, n, 0)
    while pend: do_mm(st, pend, 0)
    st.pump(len(st.fifo))
    e("s_nop 7"); e("s_nop 3")
    gate(a)
    pack_tile(a, ACC + 16, BF + 8, True)
    store_pk(a, BF + 8, s_st2, "ST1")
    pack_tile(a, ACC, BF, False)
    l = a.newlabel("Lq"); l2 = a.newlabel("Lqd")
    e(f"s_cmp_eq_u32 s{s_cgp}, 0")
    e(f"s_cbranch_scc1 {l}")
    for q in range(8): e(f"v_pk_max_i16 v{BF+q}, v{BF+q}, 0")
    a.label(l)
    store_pk(a, BF, s_st1, "ST1")
    return st.w2_slot

SIG0 = CFG['sig0']

def gate(a):
    e = a.e
    l = a.newlabel("Lgate")
    e(f"s_cmp_lg_u32 s{s_cg}, 15")
    e(f"s_cbranch_scc1 {l}")
    e(f"s_cmp_lg_u32 s{s_cgp}, 1")
    e(f"s_cbranch_scc1 {l}")
    e(f"v_cvt_pk_bf16_f32 v{v_t1}, v{ACC+16}, v{ACC+16}")
    e(f"v_lshlrev_b32 v{v_t1}, 16, v{v_t1}")
    e(f"v_mul_f32 v{v_t1}, 0xbfb8aa3b, v{v_t1}")
    e(f"v_exp_f32 v{v_t1}, v{v_t1}")
    e("s_nop 0")
    e(f"v_add_f32 v{v_t1}, 1.0, v{v_t1}")
    e(f"v_rcp_f32 v{v_t1}, v{v_t1}")
    e("s_nop 0")
    e(f"v_cvt_pk_bf16_f32 v{v_t1}, v{v_t1}, v{v_t1}")
    e(f"v_lshlrev_b32 v{v_t1}, 16, v{v_t1}")
    e(f"v_lshlrev_b32 v{v_t0}, 2, v{v_lane}")
    e(f"s_lshl_b32 s{s_tmp}, s{s_rb}, 2")
    e(f"s_add_u32 s{s_tmp}, s{s_tmp}, s{s_rg}")
    e(f"s_lshl_b32 s{s_tmp}, s{s_tmp}, 7")
    e(f"s_add_u32 s{s_tmp}, s{s_tmp}, {GB}")
    e(f"s_mov_b64 s[{s_exec}:{s_exec+1}], exec")
    e("s_mov_b32 exec_lo, -1")
    e("s_mov_b32 exec_hi, 0")
    e(f"buffer_store_dword v{v_t1}, v{v_t0}, {srd(sWS)}, s{s_tmp} offen sc1")
    e(f"s_mov_b64 exec, s[{s_exec}:{s_exec+1}]")
    a.label(l)

def Sreg(b):
    if b == 0: return MASKF
    if b == 8: return MASKD
    return 64 + 16*(b-1)
KFR = 176; QFR = 212; VROT = 216; OACC = 232
v_max = 248; v_max2 = 249; v_vrd = 250; v_krd = 251

def AFreg(n):
    if n < 10: return 176 + 4*n
    if n < 14: return 48 + 4*(n-10)
    if n < 18: return 160 + 4*(n-14)
    return 144 + 4*(n-18)
def AOreg(n):
    return 128 + 4*n if n < 4 else 32 + 4*(n-4)
BF3 = 64; ACB = 96; ACA = 216

def s3_addr_setup(a):
    e = a.e
    e(f"s_lshl_b32 s{s_tmp3}, s{s_rb3}, 1")
    e(f"s_add_u32 s{s_tmp3}, s{s_tmp3}, s{s_cgp}")
    e(f"s_mul_i32 s{s_a3}, s{s_tmp3}, {HROW}")
    e(f"s_lshl_b32 s{s_tmp}, s{s_rg}, 10")
    if HROT:
        e(f"s_mul_i32 s{s_r3}, s{s_cb3}, 11")
        e(f"s_lshr_b32 s{s_r3}, s{s_r3}, 3")
        e(f"s_lshl_b32 s{s_p}, s{s_r3}, 17")
        e(f"s_lshl_b32 s{s_r3}, s{s_r3}, 13")
        e(f"s_add_u32 s{s_r3}, s{s_r3}, s{s_tmp}")
    else:
        e(f"s_add_u32 s{s_a3}, s{s_a3}, s{s_tmp}")
    e(f"s_add_u32 s{s_a3}, s{s_a3}, {HF}")
    e(f"s_lshl_b32 s{s_a3o}, s{s_tmp3}, 15")
    e(f"s_add_u32 s{s_a3o}, s{s_a3o}, s{s_tmp}")
    e(f"s_add_u32 s{s_a3o}, s{s_a3o}, {OF}")
    e(f"s_lshl_b32 s{s_ga}, s{s_tmp3}, 7")
    e(f"s_add_u32 s{s_ga}, s{s_ga}, {GB}")

def h_loads(a, ns, track=True):
    e = a.e
    for n in ns:
        if n == "g":
            e(f"v_and_b32 v{v_t0}, 31, v{v_lane}")
            e(f"v_lshlrev_b32 v{v_t0}, 2, v{v_t0}")
            ins = f"buffer_load_dword v{v_g2}, v{v_t0}, {srd(sWS)}, s{s_ga} offen sc1"
            (a.vmem(ins, "G") if track else e(ins))
            continue
        if HROT:
            e(f"s_add_u32 s{s_tmp}, s{s_r3}, {n*4096}")
            e(f"s_sub_u32 s{s_tmp2}, s{s_tmp}, {22*4096}")
            e(f"s_cselect_b32 s{s_tmp}, s{s_tmp}, s{s_tmp2}")
            e(f"s_cmp_ge_u32 s{s_tmp}, {HROW}")
            e(f"s_cselect_b32 s{s_tmp}, {OOB}, s{s_tmp}")
            e(f"s_add_u32 s{s_tmp}, s{s_tmp}, s{s_a3}")
        else:
            e(f"s_add_u32 s{s_tmp}, s{s_a3}, {n*4096}")
            if n == 21:
                e(f"s_cmp_ge_u32 s{s_rg}, 2")
                e(f"s_cselect_b32 s{s_tmp}, {OOB}, s{s_tmp}")
        ins = f"buffer_load_dwordx4 {vr(AFreg(n),4)}, v{v_l16}, {srd(sWS)}, s{s_tmp} offen sc1"
        (a.vmem(ins, f"H{n}") if track else e(ins))

def guarded_h_loads(a, ns, track=True):
    l = a.newlabel("Lhl")
    a.e(f"s_cmp_eq_u32 s{s_ok}, 0")
    a.e(f"s_cbranch_scc1 {l}")
    h_loads(a, ns, track)
    a.label(l)

def flags16(a, phase, vdst):
    e = a.e
    e(f"s_lshr_b32 s{s_tmp}, s{s_rb3}, 1")
    e(f"s_lshl_b32 s{s_tmp}, s{s_tmp}, 11")
    e(f"s_add_u32 s{s_tmp}, s{s_tmp}, {FL + phase*32768}")
    e(f"v_and_b32 v{vdst}, 15, v{v_lane}")
    e(f"v_lshlrev_b32 v{vdst}, 7, v{vdst}")
    e(f"v_add_u32 v{vdst}, s{s_tmp}, v{vdst}")
    e(f"s_mov_b32 s{s_m}, 0xffff")
    e(f"s_mov_b32 s{s_m+1}, 0")

SIGB = env('GEN_SIGB', 1)
HB_ISSUE, HB_CHECK = env("GEN_HBI", 5), env("GEN_HBC", 3)

def attention(a, slot_of):
    e = a.e
    a.c("================ attention ================")
    e(f"s_lshl_b32 s{s_tmp}, s{s_rg}, 10")
    e(f"s_add_u32 s{s_tmp}, s{s_tmp}, {ATQ}")
    e(f"v_add_u32 v{v_t0}, s{s_tmp}, v{v_l16}")
    l = a.newlabel("Lqx")
    e(f"s_cmp_lg_u32 s{s_cgp}, 0")
    e(f"s_cbranch_scc1 {l}")
    e(f"ds_write_b128 v{v_t0}, {vr(BF+4,4)}")
    for i in range(4): e(f"v_mov_b32 v{QFR+i}, v{BF+i}")
    a.label(l)
    l = a.newlabel("Lkvok")
    e(f"s_cmp_lg_u32 s{s_ok}, 0")
    e(f"s_cbranch_scc1 {l}")
    l2 = a.newlabel("Lkv3")
    flag_check(a, v_non + 2, "FKV", track=False)
    e(f"s_cbranch_scc1 {l2}")
    poll(a, v_kf)
    a.label(l2)
    issue_kv(a, "KV", track=False)
    e("s_waitcnt vmcnt(0)")
    a.label(l)
    l = a.newlabel("Lgm")
    e(f"s_cmp_eq_u32 s{s_gw}, 0")
    e(f"s_cbranch_scc1 {l}")
    build_maskd(a)
    a.label(l)
    stamp(a)
    e(f"v_add_u32 v{v_krd}, s{s_krd}, v{v_l16}")
    e(f"v_mov_b32 v{v_t3}, 0xf149f2ca")
    for r in range(16):
        e(f"v_sub_f32 v{MASKF+r}, v{v_t3}, v{MASKD+r}")
    a.wait_vm(["AK", "AV"], lgkm0=True)
    e("s_barrier")
    stamp(a)
    lg = Lg(a)
    l = a.newlabel("Lqr")
    e(f"s_cmp_eq_u32 s{s_cgp}, 0")
    e(f"s_cbranch_scc1 {l}")
    e(f"ds_read_b128 {vr(QFR,4)}, v{v_t0}")
    a.label(l)
    for b in range(8, -1, -1):
        e(f"ds_read_b128 {vr(KFR+4*b,4)}, v{v_krd} offset:{b*2048}"); lg.add(("k", b))
    fill = []
    for pc, sl in zip((4, 5), CFG["post"]):
        slot_of[pc] = sl; fill += w2_ops(a, pc, sl)
    c = 0.25 * math.log2(math.e)
    cbits = struct.unpack("<I", struct.pack("<f", c))[0]
    misc = [f"v_mov_b32 v{VROT+i}, 0x3f803f80" for i in range(16)]
    misc += [f"v_mov_b32 v{v_c2}, 0x{cbits:08x}", f"v_mov_b32 v{v_c2+1}, 0x{cbits:08x}", f"v_add_u32 v{v_vrd}, s{s_vrdb}, v{v_l16}"]
    for b in range(8, -1, -1):
        lg.wait([("k", b)])
        S = Sreg(b)
        mfma(a, S, KFR + 4*b, QFR, S if b in (0, 8) else "0")
        for _ in range(3):
            if misc: e(misc.pop(0))
        if fill and b % 2 == 0: fill.pop(0)()
    while misc: e(misc.pop(0))
    while fill: fill.pop(0)()
    if SIGB == 1:
        a.wait_vm("ST1"); signal_wave(a)
    lmax = a.newlabel("Lmaxd")
    e("s_nop 4")
    for b in range(8, -1, -1):
        S = Sreg(b)
        if b < 8:
            e(f"s_cmp_gt_u32 s{s_first}, {b}")
            e(f"s_cbranch_scc1 {lmax}")
        for q in range(8):
            if b == 8 and q == 0:
                e(f"v_max_f32 v{v_max}, v{S}, v{S+1}")
            else:
                e(f"v_max3_f32 v{v_max}, v{S+2*q}, v{S+2*q+1}, v{v_max}")
    a.label(lmax)
    e(f"v_mov_b32 v{v_max2}, v{v_max}")
    e("s_nop 1")
    e(f"v_permlane32_swap_b32 v{v_max}, v{v_max2}")
    e("s_nop 1")
    e(f"v_max_f32 v{v_max}, v{v_max}, v{v_max2}")
    e(f"v_mul_f32 v{v_mc}, v{v_c2}, v{v_max}")
    e(f"v_sub_f32 v{v_mc}, 0, v{v_mc}")
    e(f"v_mov_b32 v{v_mc+1}, v{v_mc}")
    if SIGB == 2:
        a.wait_vm("ST1"); signal_wave(a)
    def softmax_block(b):
        S = Sreg(b)
        for q in range(8):
            e(f"v_pk_fma_f32 v[{S+2*q}:{S+2*q+1}], v[{S+2*q}:{S+2*q+1}], v[{v_c2}:{v_c2+1}], v[{v_mc}:{v_mc+1}]")
        for r in range(16):
            e(f"v_exp_f32 v{S+r}, v{S+r}")
        for q in range(8):
            e(f"v_cvt_pk_bf16_f32 v{S+q}, v{S+2*q}, v{S+2*q+1}")
    softmax_block(8)
    e("s_barrier")
    stamp(a)
    for pc, sl in ((6, CFG['atk']), (7, CFG['atk']+1)):
        slot_of[pc] = sl; issue_w2_piece(a, pc, sl)
    lg = Lg(a)
    def vread(n):
        b = 8 - n//2; m = n % 2
        e(f"ds_read_b128 {vr(VROT + 4*(n%4), 4)}, v{v_vrd} offset:{b*2048 + m*1024}")
        lg.add(("v", n))
    e(f"s_mov_b64 exec, s[{s_vm}:{s_vm+1}]")
    vread(0); vread(1)
    e("s_mov_b64 exec, -1")
    lpv = a.newlabel("Lpvd")
    e(f"s_mov_b32 s{s_ok}, 0")
    skip_labels = {}
    hl = list(range(22)) + ["g"]
    CH = eval(os.environ.get("GEN_CH", "[(7,5),(5,3),(3,1)]"))
    def peek_wait(tag):
        sv = list(a.vm); a.wait_vm(tag); a.vm = sv
    def post_block(b, track):
        for i, (bi, bc) in enumerate(CH):
            if b == bc:
                l = a.newlabel("Lch")
                e(f"s_cmp_lg_u32 s{s_ok}, 0")
                e(f"s_cbranch_scc1 {l}")
                e("s_waitcnt vmcnt(0)")
                cmp_flags4(a, 252)
                e(f"s_cselect_b32 s{s_ok}, {i+1}, 0")
                a.label(l)
        for i, (bi, bc) in enumerate(CH):
            if b == bi:
                l = a.newlabel("Lci")
                e(f"s_cmp_lg_u32 s{s_ok}, 0")
                e(f"s_cbranch_scc1 {l}")
                hflag_issue(a, False)
                a.label(l)
        for i, (bi, bc) in enumerate(CH):
            if b <= bc:
                per = -(-len(hl) // (bc + 1))
                i0 = (bc - b) * per
                if hl[i0:i0+per]:
                    l = a.newlabel("Lhl")
                    e(f"s_cmp_lg_u32 s{s_ok}, {i+1}")
                    e(f"s_cbranch_scc1 {l}")
                    h_loads(a, hl[i0:i0+per], track and i == len(CH) - 1)
                    a.label(l)
    for b in range(8, -1, -1):
        S = Sreg(b)
        n0 = 2*(8 - b)
        if b < 8:
            skip_labels[b] = a.newlabel("Lskip")
            e(f"s_cmp_gt_u32 s{s_first}, {b}")
            e(f"s_cbranch_scc1 {skip_labels[b]}")
        if b > 0:
            e(f"s_mov_b64 exec, s[{s_vm}:{s_vm+1}]")
            vread(n0 + 2); vread(n0 + 3)
            e("s_mov_b64 exec, -1")
        if b < 8: softmax_block(b)
        lg.wait([("v", n0), ("v", n0+1)])
        e("s_nop 0")
        mfma(a, OACC, VROT + 4*(n0 % 4), S, "0" if b == 8 else OACC)
        mfma(a, OACC, VROT + 4*((n0+1) % 4), S + 4, OACC)
        post_block(b, True)
    e(f"s_branch {lpv}")
    for b in range(7, -1, -1):
        a.label(skip_labels[b])
        post_block(b, False)
    a.label(lpv)
    e("s_waitcnt lgkmcnt(0)")
    e("s_nop 7"); e("s_nop 3")
    e(f"v_rcp_f32 v{v_max}, v{OACC+8}")
    e("s_nop 0")
    for r in range(8):
        e(f"v_mul_f32 v{OACC+r}, v{OACC+r}, v{v_max}")
    for q in range(4):
        e(f"v_cvt_pk_bf16_f32 v{248+q}, v{OACC+2*q}, v{OACC+2*q+1}")
    e(f"buffer_store_dwordx4 v[248:251], v{v_l16}, {srd(sWS)}, s{s_oa} offen sc1")
    l = a.newlabel("Lhok")
    e(f"s_cmp_lg_u32 s{s_ok}, 0")
    e(f"s_cbranch_scc1 {l}")
    hpoll(a)
    h_loads(a, list(range(22)) + ["g"], track=False)
    a.label(l)
    stamp(a)
s_oa = 94

def compute3(a, pieces, slot_of, cnt):
    e = a.e
    work = []
    for pc in pieces:
        for u in range(2):
            if pc <= 10: af = AFreg(2*pc + u); tag = f"H{2*pc+u}"; acc = ACB; first = (pc == 0 and u == 0)
            else: af = AOreg(2*(pc-11) + u); tag = f"O{2*(pc-11)+u}"; acc = ACA; first = (pc == 11 and u == 0)
            for ct in range(2):
                work.append((slot_of[pc], u, ct, af, tag, acc + 16*ct, first))
    lg = Lg(a)
    cur = {}
    def rd(w):
        sl, u, ct, af, tag, acc, first = work[w]
        vb = v_tr3b if ct else v_tr3
        off = sl*SLOT + u*8192
        if off + 1024 > 65535:
            r = v_t5 if ct else v_t4
            if cur.get(ct) != sl:
                e(f"v_add_u32 v{r}, {sl*SLOT}, v{vb}")
                cur[ct] = sl
            vb = r; off = u*8192
        b = BF3 + ((cnt[0] + w) % 8)*4
        e(f"ds_read_b64_tr_b16 {vr(b,2)}, v{vb} offset:{off}")
        e(f"ds_read_b64_tr_b16 {vr(b+2,2)}, v{vb} offset:{off + 1024}")
        lg.add(w); lg.add(w)
    D = 4
    for w in range(min(D, len(work))): rd(w)
    for w in range(len(work)):
        if w + D < len(work): rd(w + D)
        sl, u, ct, af, tag, acc, first = work[w]
        a.wait_vm(tag)
        lg.wait([w])
        b = BF3 + ((cnt[0] + w) % 8)*4
        mfma(a, acc, b, af, "0" if first else acc)
    cnt[0] += len(work)
    lg.drain()

S3J = env('GEN_S3J', 1)
def o_loads(a, track=True):
    for n in range(8):
        a.e(f"s_add_u32 s{s_tmp}, s{s_a3o}, {n*4096}")
        ins = f"buffer_load_dwordx4 {vr(AOreg(n),4)}, v{v_l16}, {srd(sWS)}, s{s_tmp} offen sc1"
        (a.vmem(ins, f"O{n}") if track else a.e(ins))

def o_check(a):
    e = a.e
    regs = [AOreg(n) + i for n in range(8) for i in range(4)]
    e(f"v_max3_u32 v{v_t2}, v{regs[0]}, v{regs[1]}, v{regs[2]}")
    i = 3
    while i < len(regs):
        if i + 1 < len(regs):
            e(f"v_max3_u32 v{v_t2}, v{regs[i]}, v{regs[i+1]}, v{v_t2}"); i += 2
        else:
            e(f"v_max_u32 v{v_t2}, v{regs[i]}, v{v_t2}"); i += 1
    e(f"v_cmp_eq_u32 vcc, -1, v{v_t2}")
    e("s_nop 3")
    e("s_cmp_eq_u64 vcc, 0")

def stage3(a, slot_of):
    e = a.e
    a.c("================ stage 3 ================")
    D = 4
    lg = Lg(a)
    fifo = []
    cur = {}
    V0 = CFG["atv"]
    def assign(pc, sl):
        slot_of[pc] = sl
        for f in w2_ops(a, pc, sl):
            f.tag = f"Q{pc}"; fifo.append(f)
    def o_verify():
        a.wait_vm("O7")
        lp = a.newlabel("Lop"); ld = a.newlabel("Lod")
        e(f"s_mov_b32 s{s_cnt}, 0")
        a.label(lp)
        o_check(a)
        e(f"s_cbranch_scc1 {ld}")
        o_loads(a, track=False)
        e("s_waitcnt vmcnt(0)")
        e(f"s_add_u32 s{s_cnt}, s{s_cnt}, 1")
        e(f"s_cmp_lt_u32 s{s_cnt}, 100000")
        e(f"s_cbranch_scc1 {lp}")
        a.label(ld)
        stamp(a)
    def o_ops():
        ops = []
        for n in range(8):
            def f(n=n):
                a.e(f"s_add_u32 s{s_tmp}, s{s_a3o}, {n*4096}")
                a.vmem(f"buffer_load_dwordx4 {vr(AOreg(n),4)}, v{v_l16}, {srd(sWS)}, s{s_tmp} offen sc1", f"O{n}")
            f.tag = f"O{n}"
            ops.append(f)
        return ops
    syncs = {
        S3J: (["Q4", "Q5", "Q6", "Q7"], lambda: (assign(8, V0), assign(9, V0 + 1))),
        4: ([], lambda: (assign(10, slot_of[0]), assign(11, slot_of[1]), assign(12, slot_of[2]))),
        6: ([], lambda: (assign(13, slot_of[3]), assign(14, slot_of[4]), fifo.extend(o_ops()))),
        8: (["Q8", "Q9"], None),
        10: (["Q10", "Q11", "Q12"], None),
        13: (["Q13", "Q14"], None),
    }
    items = []
    for pc in range(15):
        for u in range(2):
            for ct in range(2):
                items.append((pc, u, ct))
    def rd(w):
        pc, u, ct = items[w]
        if u == 0 and ct == 0 and pc in syncs:
            tags, act = syncs[pc]
            while any(f.tag in tags for f in fifo): fifo.pop(0)()
            a.wait_vm(tags)
            e("s_barrier")
            if STAMPS2: stamp(a)
            if act: act()
        sl = slot_of[pc]
        vb = v_tr3b if ct else v_tr3
        off = sl*SLOT + u*8192
        if off + 1024 > 65535:
            r = v_t5 if ct else v_t4
            if cur.get(ct) != sl:
                e(f"v_add_u32 v{r}, {sl*SLOT}, v{vb}")
                cur[ct] = sl
            vb = r; off = u*8192
        b = BF3 + (w % 8)*4
        e(f"ds_read_b64_tr_b16 {vr(b,2)}, v{vb} offset:{off}")
        e(f"ds_read_b64_tr_b16 {vr(b+2,2)}, v{vb} offset:{off + 1024}")
        lg.add(w); lg.add(w)
    done = set(["Q4", "Q5", "Q6", "Q7"])
    for w in range(D): rd(w)
    for w in range(len(items)):
        if w + D < len(items):
            rd(w + D)
        pc, u, ct = items[w]
        if pc <= 10: af = AFreg(2*pc + u); tag = f"H{2*pc+u}"; acc = ACB; first = (pc == 0 and u == 0)
        else: af = AOreg(2*(pc-11) + u); tag = f"O{2*(pc-11)+u}"; acc = ACA; first = (pc == 11 and u == 0)
        if pc == 11 and u == 0 and ct == 0:
            while fifo: fifo.pop(0)()
            o_verify()
        a.wait_vm(tag)
        lg.wait([w])
        b = BF3 + (w % 8)*4
        mfma(a, acc + 16*ct, b, af, "0" if first else acc + 16*ct)
        if fifo: fifo.pop(0)()
        if pc >= 11:
            k = w - 44
            if k == 0:
                a.wait_vm("G")
                e(f"v_sub_f32 v{v_c2}, 1.0, v{v_g2}")
                e(f"v_cvt_pk_bf16_f32 v{v_c2}, v{v_c2}, v{v_c2}")
                e(f"v_lshlrev_b32 v{v_c2}, 16, v{v_c2}")
                e(f"v_mov_b32 v{v_c2+1}, v{v_c2}")
                e(f"v_mov_b32 v{v_g2+1}, v{v_g2}")
            elif 2 <= k < 10:
                for q in (2*(k-2), 2*(k-2)+1):
                    e(f"v_pk_mul_f32 v[{ACB+2*q}:{ACB+2*q+1}], v[{ACB+2*q}:{ACB+2*q+1}], v[{v_c2}:{v_c2+1}]")
    lg.drain()
    stamp(a)
    PS = [slot_of[p] for p in (5, 6, 7, 8)]
    e(f"s_cmp_eq_u32 s{s_rg}, 1"); e(f"s_movk_i32 s{s_tmp}, {PS[0]}"); e(f"s_cselect_b32 s{s_tmp}, {PS[1]}, s{s_tmp}")
    e(f"s_cmp_eq_u32 s{s_rg}, 2"); e(f"s_cselect_b32 s{s_tmp}, {PS[2]}, s{s_tmp}")
    e(f"s_cmp_eq_u32 s{s_rg}, 3"); e(f"s_cselect_b32 s{s_tmp}, {PS[3]}, s{s_tmp}")
    e(f"s_lshl_b32 s{s_tmp}, s{s_tmp}, 14")
    e(f"s_lshl_b32 s{s_tmp2}, s{s_cgp}, 13")
    e(f"s_add_u32 s{s_tmp}, s{s_tmp}, s{s_tmp2}")
    e(f"v_and_b32 v{v_t0}, 31, v{v_lane}")
    e(f"v_and_b32 v{v_t1}, 7, v{v_lane}")
    e(f"v_xor_b32 v{v_t1}, v{v_t1}, v{v_hi}")
    e(f"v_lshlrev_b32 v{v_t1}, 4, v{v_t1}")
    e(f"v_lshl_add_u32 v{v_t0}, v{v_t0}, 8, v{v_t1}")
    e(f"v_add_u32 v{v_t0}, s{s_tmp}, v{v_t0}")
    e("s_nop 4")
    for ct in range(2):
        for g4 in range(4):
            b0 = 16*ct + 4*g4
            for q in range(2):
                e(f"v_pk_fma_f32 v[{ACB+b0+2*q}:{ACB+b0+2*q+1}], v[{ACA+b0+2*q}:{ACA+b0+2*q+1}], v[{v_g2}:{v_g2+1}], v[{ACB+b0+2*q}:{ACB+b0+2*q+1}]")
            r = v_t2 + (g4 & 1)
            e(f"v_xor_b32 v{r}, {g4*32}, v{v_t0}")
            e(f"ds_write_b128 v{r}, {vr(ACB + b0, 4)} offset:{ct*128}")
    e(f"v_lshrrev_b32 v{v_t0}, 3, v0")
    e(f"v_and_b32 v{v_t1}, 7, v0")
    e(f"v_and_b32 v{v_t2}, 7, v{v_t0}")
    e(f"v_lshlrev_b32 v{v_t3}, 1, v{v_t1}")
    e(f"v_xor_b32 v{v_t2}, v{v_t2}, v{v_t3}")
    e(f"v_lshlrev_b32 v{v_t2}, 4, v{v_t2}")
    e(f"v_lshl_add_u32 v{v_t2}, v{v_t0}, 8, v{v_t2}")
    e(f"v_xor_b32 v{v_t3}, 16, v{v_t2}")
    e(f"v_add_u32 v{v_t4}, 0x10000, v{v_t2}")
    e(f"v_add_u32 v{v_t5}, 0x10000, v{v_t3}")
    e(f"v_add_u32 v{v_trn}, 0x20000, v{v_t2}")
    e(f"v_add_u32 v{v_trw}, 0x20000, v{v_t3}")
    e(f"v_lshlrev_b32 v{v_t0}, 10, v{v_t0}")
    e(f"v_lshl_add_u32 v{v_t0}, v{v_t1}, 4, v{v_t0}")
    e(f"s_lshl_b32 s{s_tmp}, s{s_rb3}, 16")
    e(f"s_lshl_b32 s{s_tmp2}, s{s_cb3}, 7")
    e(f"s_add_u32 s{s_tmp}, s{s_tmp}, s{s_tmp2}")
    e("s_waitcnt lgkmcnt(0)")
    e("s_barrier")
    for kq in range(4):
        off = PS[kq]*SLOT
        ra, rb_ = ((v_t2, v_t3), (v_t4, v_t5), (v_trn, v_trw))[off >> 16]
        e(f"ds_read_b128 {vr(64 + 8*kq, 4)}, v{ra} offset:{off & 0xffff}")
        e(f"ds_read_b128 {vr(68 + 8*kq, 4)}, v{rb_} offset:{off & 0xffff}")
    e("s_waitcnt lgkmcnt(4)")
    for q in range(4):
        e(f"v_pk_add_f32 v[{64+2*q}:{65+2*q}], v[{64+2*q}:{65+2*q}], v[{72+2*q}:{73+2*q}]")
    e("s_waitcnt lgkmcnt(0)")
    for q in range(4):
        e(f"v_pk_add_f32 v[{80+2*q}:{81+2*q}], v[{80+2*q}:{81+2*q}], v[{88+2*q}:{89+2*q}]")
    for q in range(4):
        e(f"v_pk_add_f32 v[{64+2*q}:{65+2*q}], v[{64+2*q}:{65+2*q}], v[{80+2*q}:{81+2*q}]")
    for q in range(4):
        e(f"v_cvt_pk_bf16_f32 v{64+q}, v{64+2*q}, v{65+2*q}")
    e(f"buffer_store_dwordx4 v[64:67], v{v_t0}, {srd(sOUT)}, s{s_tmp} offen {os.environ.get('GEN_OST','sc1').replace('_',' ')}")
    stamp(a, final=True)

def common_setup(a):
    e = a.e
    l = a.newlabel("Lcas")
    e(f"s_or_b32 s{s_nonce}, s{s_nonce}, 1")
    e(f"s_or_b32 s{s_tmp}, s{s_wv}, s2")
    e(f"s_cmp_lg_u32 s{s_tmp}, 0")
    e(f"s_cbranch_scc1 {l}")
    e(f"v_mov_b32 v{v_non}, s{s_nonce}")
    e(f"v_mov_b32 v{v_non+1}, s{s_nonce+1}")
    e(f"v_mov_b32 v{v_t4}, 0")
    e(f"s_mov_b64 s[{s_exec}:{s_exec+1}], exec")
    e("s_mov_b64 exec, 1")
    e(f"buffer_store_dwordx2 {vr(v_non,2)}, v{v_t4}, {srd(sDBG)}, 0 offen sc1")
    e(f"s_mov_b64 exec, s[{s_exec}:{s_exec+1}]")
    a.label(l)
    e(f"s_lshl_b32 s{s_tmp}, s{s_rb}, 2")
    e(f"s_add_u32 s{s_tmp}, s{s_tmp}, s{s_rg}")
    e(f"s_lshl_b32 s{s_oa}, s{s_tmp}, 15")
    e(f"s_lshl_b32 s{s_tmp2}, s{s_cg}, 1")
    e(f"s_add_u32 s{s_tmp2}, s{s_tmp2}, s{s_cgp}")
    e(f"s_lshl_b32 s{s_tmp2}, s{s_tmp2}, 10")
    e(f"s_add_u32 s{s_oa}, s{s_oa}, s{s_tmp2}")
    e(f"s_add_u32 s{s_oa}, s{s_oa}, {OF}")
    for i in range(4): e(f"v_mov_b32 v{ACC+i}, -1")
    a.vmem(f"buffer_store_dwordx4 {vr(ACC,4)}, v{v_l16}, {srd(sWS)}, s{s_oa} offen sc1", "SENT")
    e(f"v_and_b32 v{v_t0}, 31, v{v_lane}")
    e(f"v_lshrrev_b32 v{v_hi}, 5, v{v_lane}")
    e(f"v_and_b32 v{v_t1}, 15, v{v_lane}")
    e(f"v_xor_b32 v{v_t1}, v{v_t1}, v{v_hi}")
    e(f"v_lshlrev_b32 v{v_t1}, 4, v{v_t1}")
    e(f"v_lshl_add_u32 v{v_xrd}, v{v_t0}, 8, v{v_t1}")
    e(f"s_lshl_b32 s{s_tmp}, s{s_rg}, 13")
    e(f"v_add_u32 v{v_xrd}, s{s_tmp}, v{v_xrd}")
    e(f"v_and_b32 v{v_t0}, 15, v{v_lane}")
    e(f"v_lshrrev_b32 v{v_t1}, 2, v{v_t0}")
    e(f"v_bfe_u32 v{v_t2}, v{v_lane}, 4, 1")
    e(f"v_bfe_u32 v{v_t3}, v{v_lane}, 1, 1")
    e(f"v_lshl_add_u32 v{v_t2}, v{v_t2}, 1, v{v_t3}")
    e(f"v_and_b32 v{v_t3}, 1, v{v_lane}")
    e(f"v_lshlrev_b32 v{v_t3}, 3, v{v_t3}")
    e(f"v_lshl_add_u32 v{v_t2}, v{v_t2}, 4, v{v_t3}")
    e(f"v_lshrrev_b32 v{v_t3}, 1, v{v_t1}")
    e(f"v_xor_b32 v{v_t4}, s{s_cgp}, v{v_t3}")
    e(f"v_lshl_add_u32 v{v_t4}, v{v_t4}, 6, v{v_t2}")
    e(f"v_lshl_add_u32 v{v_t5}, v{v_hi}, 3, v{v_t1}")
    e(f"v_lshl_add_u32 v{v_trn}, v{v_t5}, 7, v{v_t4}")
    e(f"s_cmp_eq_u32 s{s_cgp}, 0")
    e(f"s_movk_i32 s{s_tmp}, 192")
    e(f"s_cselect_b32 s{s_tmp}, 64, s{s_tmp}")
    e(f"s_lshl_b32 s{s_k16}, s{s_tmp}, 4")
    e(f"s_lshl_b32 s{s_tmp2}, s{s_cgp}, 12")
    e(f"v_mad_u32_u24 v{v_trw}, v{v_t5}, s{s_tmp}, v{v_t2}")
    e(f"v_add_u32 v{v_trw}, s{s_tmp2}, v{v_trw}")
    e(f"s_lshl_b32 s{s_tmp}, s{s_tmp}, 2")
    e(f"v_add_u32 v{v_omg2}, s{s_tmp}, v{v_trw}")
    e(f"s_movk_i32 s{s_tmp}, 192")
    e(f"v_mad_u32_u24 v{v_trw2}, v{v_t5}, s{s_tmp}, v{v_t2}")
    e(f"s_lshl_b32 s{s_tmp2}, s{s_cgp}, 6")
    e(f"s_add_u32 s{s_tmp2}, s{s_tmp2}, {4096 + 64}")
    e(f"v_add_u32 v{v_trw2}, s{s_tmp2}, v{v_trw2}")
    e(f"v_lshl_add_u32 v{v_t4}, v{v_t3}, 6, v{v_t2}")
    e(f"v_lshl_add_u32 v{v_t5}, v{v_hi}, 2, v{v_t1}")
    e(f"v_lshl_add_u32 v{v_tr3}, v{v_t5}, 7, v{v_t4}")
    e(f"s_lshl_b32 s{s_tmp}, s{s_rg}, 11")
    e(f"v_add_u32 v{v_tr3}, s{s_tmp}, v{v_tr3}")
    e(f"v_xor_b32 v{v_tr3b}, 64, v{v_tr3}")

def wide_setup(a):
    e = a.e
    lq = a.newlabel("Lwq"); lj = a.newlabel("Lwj")
    e(f"s_cmp_lt_u32 s{s_wv}, 2")
    e(f"s_cbranch_scc1 {lq}")
    e(f"s_mov_b32 s{sPW}, s{sW1}"); e(f"s_mov_b32 s{sPW+1}, s{sW1+1}"); e(f"s_mov_b32 s{sPW+2}, {512*1376*2}"); e(f"s_mov_b32 s{sPW+3}, 0x00020000")
    e(f"s_sub_u32 s{s_tmp}, s{s_wv}, 2")
    e(f"s_lshl_b32 s{s_tmp}, s{s_tmp}, 7")
    e(f"s_movk_i32 s{s_tmp3}, 2752")
    e(f"s_movk_i32 s{s_tmp4}, 5462")
    for t in range(2):
        e(f"v_add_u32 v{v_t0}, s{s_tmp}, v{v_lane}")
        if t: e(f"v_add_u32 v{v_t0}, 64, v{v_t0}")
        e(f"v_mul_u32_u24 v{v_t1}, s{s_tmp4}, v{v_t0}")
        e(f"v_lshrrev_b32 v{v_t1}, 16, v{v_t1}")
        e(f"v_mul_u32_u24 v{v_t2}, 12, v{v_t1}")
        e(f"v_sub_u32 v{v_t0}, v{v_t0}, v{v_t2}")
        e(f"v_lshlrev_b32 v{v_t0}, 4, v{v_t0}")
        e(f"v_mad_u32_u24 v{v_wd0+t}, v{v_t1}, s{s_tmp3}, v{v_t0}")
    e(f"s_mul_i32 s{s_wbase}, s{s_cg}, 192")
    e(f"s_cmp_eq_u32 s{s_cg}, 15")
    e(f"s_cselect_b32 s{s_wbase}, {OOB}, s{s_wbase}")
    e(f"s_mov_b32 s{s_pstep}, {64*2752}")
    e(f"s_branch {lj}")
    a.label(lq)
    e(f"s_mov_b32 s{sPW}, s{sWQ}"); e(f"s_mov_b32 s{sPW+1}, s{sWQ+1}"); e(f"s_mov_b32 s{sPW+2}, {512*1536*2}"); e(f"s_mov_b32 s{sPW+3}, 0x00020000")
    e(f"s_lshl_b32 s{s_tmp}, s{s_wv}, 5")
    e(f"s_movk_i32 s{s_tmp3}, 3072")
    e(f"v_lshrrev_b32 v{v_t1}, 2, v{v_lane}")
    e(f"v_add_u32 v{v_t1}, s{s_tmp}, v{v_t1}")
    e(f"v_and_b32 v{v_t0}, 3, v{v_lane}")
    e(f"v_lshlrev_b32 v{v_t0}, 4, v{v_t0}")
    e(f"v_mad_u32_u24 v{v_wd0}, v{v_t1}, s{s_tmp3}, v{v_t0}")
    e(f"v_add_u32 v{v_wd1}, {16*3072}, v{v_wd0}")
    e(f"s_lshl_b32 s{s_wbase}, s{s_cg}, 6")
    e(f"s_mov_b32 s{s_pstep}, {64*3072}")
    a.label(lj)

def gen():
    a = Asm()
    e = a.e
    e("s_cmp_ge_u32 s2, 256")
    e("s_cbranch_scc1 L_exit")
    stamp(a)
    e("s_load_dwordx4 s[8:11], s[0:1], 0")
    e("s_load_dwordx2 s[24:25], s[0:1], 16")
    e("s_load_dwordx4 s[16:19], s[0:1], 32")
    e("s_load_dwordx4 s[36:39], s[0:1], 48")
    e("s_load_dwordx4 s[40:43], s[0:1], 64")
    e(f"s_memrealtime s[{s_nonce}:{s_nonce+1}]")
    e(f"v_and_b32 v{v_lane}, 63, v0")
    e(f"v_lshrrev_b32 v{v_t0}, 6, v0")
    e(f"v_lshlrev_b32 v{v_l16}, 4, v{v_lane}")
    e(f"v_readfirstlane_b32 s{s_wv}, v{v_t0}")
    e(f"s_and_b32 s{s_tmp}, s2, 7")
    e(f"s_lshr_b32 s{s_tmp2}, s2, 3")
    e(f"s_and_b32 s{s_rb}, s{s_tmp}, 1")
    e(f"s_lshl_b32 s{s_rb}, s{s_rb}, 3")
    e(f"s_and_b32 s{s_tmp3}, s{s_tmp2}, 7")
    e(f"s_add_u32 s{s_rb}, s{s_rb}, s{s_tmp3}")
    e(f"s_lshr_b32 s{s_cg}, s{s_tmp}, 1")
    e(f"s_lshl_b32 s{s_cg}, s{s_cg}, 2")
    e(f"s_lshr_b32 s{s_tmp3}, s{s_tmp2}, 3")
    e(f"s_add_u32 s{s_cg}, s{s_cg}, s{s_tmp3}")
    e(f"s_lshr_b32 s{s_p}, s{s_cg}, 1")
    e(f"s_and_b32 s{s_t}, s{s_cg}, 1")
    e(f"s_lshl_b32 s{s_rb3}, s{s_tmp}, 2")
    e(f"s_and_b32 s{s_tmp3}, s{s_tmp2}, 3")
    e(f"s_add_u32 s{s_rb3}, s{s_rb3}, s{s_tmp3}")
    e(f"s_lshr_b32 s{s_cb3}, s{s_tmp2}, 2")
    e(f"s_and_b32 s{s_rg}, s{s_wv}, 3")
    e(f"s_lshr_b32 s{s_cgp}, s{s_wv}, 2")
    e(f"s_lshl_b32 s{s_ldsw}, s{s_wv}, 11")
    e(f"s_lshl_b32 s{s_xlds}, s{s_wv}, 12")
    e(f"s_lshl_b32 s{s_xbase}, s{s_rb}, 17")
    e(f"s_lshl_b32 s{s_tmp3}, s{s_wv}, 14")
    e(f"s_add_u32 s{s_xbase}, s{s_xbase}, s{s_tmp3}")
    if STAMPS:
        e(f"s_lshl_b32 s{s_tsb}, s2, 3")
        e(f"s_add_u32 s{s_tsb}, s{s_tsb}, s{s_wv}")
        e(f"s_lshl_b32 s{s_tsb}, s{s_tsb}, 7")
        e(f"s_add_u32 s{s_tsb}, s{s_tsb}, {TS}")
    e(f"v_lshrrev_b32 v{v_t0}, 4, v{v_lane}")
    e(f"v_and_b32 v{v_t1}, 15, v{v_lane}")
    e(f"v_xor_b32 v{v_t1}, v{v_t1}, v{v_t0}")
    e(f"v_lshlrev_b32 v{v_t0}, 10, v{v_t0}")
    for t in range(4):
        e(f"v_xor_b32 v{v_t2}, {4*t}, v{v_t1}")
        e(f"v_lshl_add_u32 v{v_xo+t}, v{v_t2}, 4, v{v_t0}")
    e(f"v_lshrrev_b32 v{v_t0}, 3, v{v_lane}")
    e(f"v_and_b32 v{v_t1}, 7, v{v_lane}")
    e(f"v_lshrrev_b32 v{v_t2}, 2, v{v_lane}")
    e(f"v_and_b32 v{v_t2}, 4, v{v_t2}")
    e(f"v_xor_b32 v{v_t1}, v{v_t1}, v{v_t2}")
    e(f"v_lshlrev_b32 v{v_t1}, 4, v{v_t1}")
    e(f"s_movk_i32 s{s_tmp3}, 3072")
    e(f"v_mad_u32_u24 v{v_wq_n}, v{v_t0}, s{s_tmp3}, v{v_t1}")
    e(f"v_lshl_add_u32 v{v_w2_n}, v{v_t0}, 10, v{v_t1}")
    e(f"s_mul_i32 s{s_naroff}, s{s_wv}, {16*3072}")
    e(f"s_lshl_b32 s{s_tmp3}, s{s_p}, 7")
    e(f"s_add_u32 s{s_naroff}, s{s_naroff}, s{s_tmp3}")
    e(f"s_lshl_b32 s{s_tmp3}, s{s_t}, 10")
    e(f"s_add_u32 s{s_naroff}, s{s_naroff}, s{s_tmp3}")
    e(f"s_add_u32 s{s_naroff}, s{s_naroff}, 1024")
    e(f"s_lshl_b32 s{s_tmp3}, s{s_p}, 1")
    e(f"s_add_u32 s{s_tmp3}, s{s_tmp3}, s{s_cgp}")
    e(f"s_lshl_b32 s{s_tmp3}, s{s_tmp3}, 6")
    e(f"s_lshl_b32 s{s_tmp4}, s{s_rb}, 2")
    e(f"s_add_u32 s{s_tmp4}, s{s_tmp4}, s{s_rg}")
    e(f"s_add_u32 s{s_tmp3}, s{s_tmp3}, s{s_tmp4}")
    e(f"s_lshl_b32 s{s_st0}, s{s_tmp3}, 11")
    e(f"s_lshl_b32 s{s_tmp3}, s{s_t}, 21")
    e(f"s_add_u32 s{s_st0}, s{s_st0}, s{s_tmp3}")
    e(f"s_add_u32 s{s_st0}, s{s_st0}, {KF}")
    e(f"s_mul_i32 s{s_tmp4}, s{s_tmp4}, {HROW}")
    e(f"s_add_u32 s{s_tmp4}, s{s_tmp4}, {HF}")
    e(f"s_mul_i32 s{s_tmp3}, s{s_cg}, 3")
    e(f"s_lshl_b32 s{s_st1}, s{s_tmp3}, 11")
    e(f"s_add_u32 s{s_st1}, s{s_st1}, s{s_tmp4}")
    e(f"s_cmp_ge_u32 s{s_tmp3}, 43")
    e(f"s_cselect_b32 s{s_st1}, {OOB}, s{s_st1}")
    e(f"s_cmp_eq_u32 s{s_cgp}, 0")
    e(f"s_cselect_b32 s{s_st1}, {OOB}, s{s_st1}")
    e(f"s_add_u32 s{s_tmp3}, s{s_tmp3}, s{s_cgp}")
    e(f"s_add_u32 s{s_tmp3}, s{s_tmp3}, 1")
    e(f"s_lshl_b32 s{s_st2}, s{s_tmp3}, 11")
    e(f"s_add_u32 s{s_st2}, s{s_st2}, s{s_tmp4}")
    e(f"s_cmp_ge_u32 s{s_tmp3}, 43")
    e(f"s_cselect_b32 s{s_st2}, {OOB}, s{s_st2}")
    e(f"s_lshl_b32 s{s_w2off}, s{s_wv}, 14")
    e(f"s_lshl_b32 s{s_tmp3}, s{s_cb3}, 7")
    e(f"s_add_u32 s{s_w2off}, s{s_w2off}, s{s_tmp3}")
    e("s_waitcnt lgkmcnt(0)")
    e("s_mov_b32 s12, s10"); e("s_mov_b32 s13, s11"); e(f"s_mov_b32 s14, {512*1536*2}"); e("s_mov_b32 s15, 0x00020000")
    e(f"s_mov_b32 s10, {2048*512*2}"); e("s_mov_b32 s11, 0x00020000")
    e("s_mov_b32 s32, s38"); e("s_mov_b32 s33, s39"); e(f"s_mov_b32 s34, {2048*512*2}"); e("s_mov_b32 s35, 0x00020000")
    e("s_mov_b32 s38, 1024"); e("s_mov_b32 s39, 0x00020000")
    e(f"s_mov_b32 s{s_ldsww}, 0")
    e(f"s_mov_b32 s{s_gw}, 0")
    lg_ = a.newlabel("Lgs")
    e(f"s_cmp_lg_u32 s{s_cg}, 15")
    e(f"s_cbranch_scc1 {lg_}")
    e(f"s_cmp_lt_u32 s{s_wv}, 2")
    e(f"s_cbranch_scc1 {lg_}")
    e(f"s_mov_b32 s{s_ldsww}, 0x30000")
    e(f"s_cmp_lg_u32 s{s_wv}, 2")
    e(f"s_cbranch_scc1 {lg_}")
    e(f"s_mov_b32 s{s_gw}, 1")
    e(f"v_lshlrev_b32 v{v_t0}, 1, v{v_lane}")
    for j in range(8):
        e(f"buffer_load_ushort v{GREG+j}, v{v_t0}, {srd(sGW)}, 0 offen offset:{j*128}")
    e(f"s_movk_i32 s{s_tmp3}, 192")
    e(f"v_mul_u32_u24 v{v_g2}, s{s_tmp3}, v{v_lane}")
    a.label(lg_)
    e("s_mov_b32 s20, s18"); e("s_mov_b32 s21, s19"); e(f"s_mov_b32 s22, {1376*512*2}"); e("s_mov_b32 s23, 0x00020000")
    e(f"s_mov_b32 s18, {512*1376*2}"); e("s_mov_b32 s19, 0x00020000")
    if TOUCH in (2, 9): touch(a, (sWQ, sW1) if env('GEN_NOX',0) else (sX, sWQ, sW1), 224)
    if TOUCH == 4: touch_l2(a)
    if TOUCH == 10: touch_xcd(a)
    issue_x_quarter(a, 0)
    issue_piece(a, 0, CFG['init'][0])
    if TOUCH == 3: touch(a, (sX, sWQ, sW1), 224)
    if TOUCH == 5: touch_l2(a)
    if TOUCH == 11: touch_xcd(a)
    e(f"s_mov_b32 s26, {512*512*2}"); e("s_mov_b32 s27, 0x00020000")
    e("s_mov_b32 s28, s42"); e("s_mov_b32 s29, s43"); e(f"s_mov_b32 s30, {WS_BYTES}"); e("s_mov_b32 s31, 0x00020000")
    e("s_mov_b32 s42, 256"); e("s_mov_b32 s43, 0x00020000")
    if env("GEN_TLB", 2): tlb_warm(a, env("GEN_TLB", 2))
    if env("GEN_CPF", 0):
        e(f"s_getpc_b64 s[{s_m2}:{s_m2+1}]")
        a.label("L_pc")
        e(f"s_lshr_b32 s{s_tmp}, s2, 3")
        e(f"s_lshl_b32 s{s_tmp}, s{s_tmp}, 3")
        e(f"s_add_u32 s{s_tmp}, s{s_tmp}, s{s_wv}")
        e(f"s_lshl_b32 s{s_tmp}, s{s_tmp}, 6")
        e(f"s_load_dword s{s_cnt}, s[{s_m2}:{s_m2+1}], s{s_tmp}")
        e(f"s_lshr_b32 s{s_tmp}, s{s_tmp}, 2")
        e(f"s_and_b32 s{s_tmp}, s{s_tmp}, 0xfc0")
        e(f"s_add_u32 s{s_tmp}, s{s_tmp}, 16384")
        e(f"s_min_u32 s{s_tmp}, s{s_tmp}, L_exit-L_pc")
        e(f"s_load_dword s{s_cnt}, s[{s_m2}:{s_m2+1}], s{s_tmp}")
    if TOUCH == 9: touch(a, (sW2, sWO), 240)
    if TOUCH == 7: touch_scalar(a, "xq12o")
    if TOUCH == 8: touch_scalar(a, "xq1")
    stamp(a)
    if env("GEN_ST3",0): stamp(a)
    common_setup(a)
    wide_setup(a)
    if env("GEN_ST3",0): stamp(a)
    kv_flag_setup(a)
    lm_ = a.newlabel("Lmk")
    e(f"s_cmp_lg_u32 s{s_gw}, 0")
    e(f"s_cbranch_scc1 {lm_}")
    build_maskd(a)
    a.label(lm_)
    if env("GEN_ST3",0): stamp(a)
    e("s_barrier")
    issue_x_quarter(a, 1)
    issue_piece(a, 1, CFG['init'][1])
    e(f"s_cmp_lg_u32 s{s_t}, 0")
    e("s_cbranch_scc1 L_s1v")
    w2_slot = run_stage1(a)
    stamp(a)
    attention(a, w2_slot)
    stage3(a, w2_slot)
    a.label("L_exit")
    a.e("s_endpgm")
    return a

def touch(a, srds, T):
    e = a.e
    e(f"s_lshl_b32 s{s_tmp}, s2, 3")
    e(f"s_add_u32 s{s_tmp}, s{s_tmp}, s{s_wv}")
    e(f"s_lshl_b32 s{s_tmp}, s{s_tmp}, 10")
    for i, sr in enumerate(srds):
        a.vmem(f"buffer_load_dwordx4 {vr(T+4*i,4)}, v{v_l16}, {srd(sr)}, s{s_tmp} offen", "TCH")

def touch_l2(a):
    e = a.e
    T = 224
    lx = a.newlabel("Ltx"); lk = a.newlabel("Ltk"); lq = a.newlabel("Ltq"); lj = a.newlabel("Ltj")
    e(f"s_lshr_b32 s{s_tmp}, s2, 3")
    e(f"s_and_b32 s{s_tmp2}, s2, 7")
    e(f"s_lshr_b32 s{s_tmp3}, s{s_tmp2}, 1")
    e(f"s_cmp_lt_u32 s{s_wv}, 4")
    e(f"s_cbranch_scc1 {lx}")
    e(f"s_cmp_eq_u32 s{s_wv}, 4")
    e(f"s_cbranch_scc1 {lk}")
    e(f"s_cmp_eq_u32 s{s_wv}, 5")
    e(f"s_cbranch_scc1 {lq}")
    e(f"s_sub_u32 s{s_tmp4}, s{s_wv}, 6")
    e(f"s_lshl_b32 s{s_tmp4}, s{s_tmp4}, 3")
    e(f"s_lshl_b32 s{s_tmp}, s{s_tmp}, 4")
    e(f"s_add_u32 s{s_tmp}, s{s_tmp}, s{s_tmp4}")
    e(f"s_mul_i32 s{s_tmp}, s{s_tmp}, 2752")
    e(f"s_mul_i32 s{s_tmp3}, s{s_tmp3}, 768")
    e(f"s_add_u32 s{s_tmp}, s{s_tmp}, s{s_tmp3}")
    e(f"v_lshrrev_b32 v{v_t0}, 3, v{v_lane}")
    e(f"s_movk_i32 s{s_tmp4}, 2752")
    e(f"v_mul_u32_u24 v{v_t0}, s{s_tmp4}, v{v_t0}")
    e(f"v_and_b32 v{v_t1}, 7, v{v_lane}")
    e(f"v_min_u32 v{v_t1}, 6, v{v_t1}")
    e(f"v_lshl_add_u32 v{v_t0}, v{v_t1}, 7, v{v_t0}")
    e(f"buffer_load_dword v{T}, v{v_t0}, {srd(sW1)}, s{s_tmp} offen")
    e(f"s_branch {lj}")
    a.label(lx)
    e(f"s_and_b32 s{s_tmp2}, s{s_tmp2}, 1")
    e(f"s_lshl_b32 s{s_tmp2}, s{s_tmp2}, 20")
    e(f"s_lshl_b32 s{s_tmp}, s{s_tmp}, 15")
    e(f"s_add_u32 s{s_tmp}, s{s_tmp}, s{s_tmp2}")
    e(f"s_lshl_b32 s{s_tmp2}, s{s_wv}, 8")
    e(f"s_add_u32 s{s_tmp}, s{s_tmp}, s{s_tmp2}")
    e(f"v_lshrrev_b32 v{v_t0}, 1, v{v_lane}")
    e(f"v_lshlrev_b32 v{v_t0}, 10, v{v_t0}")
    e(f"v_and_b32 v{v_t1}, 1, v{v_lane}")
    e(f"v_lshl_add_u32 v{v_t0}, v{v_t1}, 7, v{v_t0}")
    e(f"buffer_load_dword v{T}, v{v_t0}, {srd(sX)}, s{s_tmp} offen")
    e(f"s_branch {lj}")
    a.label(lk)
    e(f"s_mul_i32 s{s_tmp}, s{s_tmp}, {16*3072}")
    e(f"s_lshl_b32 s{s_tmp3}, s{s_tmp3}, 8")
    e(f"s_add_u32 s{s_tmp}, s{s_tmp}, s{s_tmp3}")
    e(f"s_add_u32 s{s_tmp}, s{s_tmp}, 1024")
    e(f"v_lshrrev_b32 v{v_t0}, 2, v{v_lane}")
    e(f"s_movk_i32 s{s_tmp4}, 3072")
    e(f"v_mul_u32_u24 v{v_t0}, s{s_tmp4}, v{v_t0}")
    e(f"v_and_b32 v{v_t1}, 1, v{v_lane}")
    e(f"v_lshl_add_u32 v{v_t0}, v{v_t1}, 10, v{v_t0}")
    e(f"v_bfe_u32 v{v_t1}, v{v_lane}, 1, 1")
    e(f"v_lshl_add_u32 v{v_t0}, v{v_t1}, 7, v{v_t0}")
    e(f"buffer_load_dword v{T}, v{v_t0}, {srd(sWQ)}, s{s_tmp} offen")
    e(f"s_branch {lj}")
    a.label(lq)
    e(f"s_mul_i32 s{s_tmp}, s{s_tmp}, {16*3072}")
    e(f"s_lshl_b32 s{s_tmp3}, s{s_tmp3}, 8")
    e(f"s_add_u32 s{s_tmp}, s{s_tmp}, s{s_tmp3}")
    e(f"v_bfe_u32 v{v_t0}, v{v_lane}, 1, 4")
    e(f"s_movk_i32 s{s_tmp4}, 3072")
    e(f"v_mul_u32_u24 v{v_t0}, s{s_tmp4}, v{v_t0}")
    e(f"v_and_b32 v{v_t1}, 1, v{v_lane}")
    e(f"v_lshl_add_u32 v{v_t0}, v{v_t1}, 7, v{v_t0}")
    e(f"buffer_load_dword v{T}, v{v_t0}, {srd(sWQ)}, s{s_tmp} offen")
    a.label(lj)
    a.vm.append("TCH")

def touch_l2_s3(a, part, nparts):
    e = a.e
    T = v_xo + 3
    l1 = a.newlabel("Lt3"); lj = a.newlabel("Lt3j")
    n = 64 // nparts
    mask = ((1 << n) - 1) << (n * part)
    e(f"s_lshr_b32 s{s_tmp}, s2, 3")
    e(f"s_lshl_b32 s{s_tmp}, s{s_tmp}, 3")
    e(f"s_add_u32 s{s_tmp}, s{s_tmp}, s{s_wv}")
    e(f"s_mul_i32 s{s_tmp}, s{s_tmp}, {n*128}")
    e(f"s_add_u32 s{s_tmp}, s{s_tmp}, {part * 256 * n * 128 - part*n*128}")
    e(f"v_lshlrev_b32 v{v_t2}, 7, v{v_lane}")
    e(f"s_mov_b32 exec_lo, 0x{mask & 0xffffffff:x}")
    e(f"s_mov_b32 exec_hi, 0x{mask >> 32:x}")
    lim = 1376*1024
    if (part + 1) * 256 * n * 128 <= 0x180000:
        e(f"buffer_load_dword v{T}, v{v_t2}, {srd(sW2)}, s{s_tmp} offen")
    else:
        e(f"s_sub_u32 s{s_tmp}, s{s_tmp}, 0x180000")
        e(f"buffer_load_dword v{T}, v{v_t2}, {srd(sWO)}, s{s_tmp} offen")
    e("s_mov_b64 exec, -1")
    a.vm.append("TCH")

def touch_scalar(a, which):
    e = a.e
    e(f"s_lshl_b32 s{s_tmp}, s2, 3")
    e(f"s_add_u32 s{s_tmp}, s{s_tmp}, s{s_wv}")
    tab = {"x": (sX, 8), "q": (sWQ, 6), "1": (sW1, 6), "2": (sW2, 6), "o": (sWO, 2)}
    for w in which:
        sr, n = tab[w]
        e(f"s_mul_i32 s{s_tmp2}, s{s_tmp}, {n*128}")
        for i in range(n):
            e(f"s_buffer_load_dword s{s_cnt}, {srd(sr)}, s{s_tmp2} offset:{i*128}")

def tlb_warm(a, mode):
    e = a.e
    e(f"s_lshl_b32 s{s_tmp}, s{s_wv}, 21")
    e(f"s_buffer_load_dword s{s_cnt}, {srd(sWS)}, s{s_tmp}")
    e(f"s_add_u32 s{s_tmp}, s{s_tmp}, 0x100000")
    e(f"s_buffer_load_dword s{s_cnt}, {srd(sWS)}, s{s_tmp}")
    e(f"s_lshl_b32 s{s_tmp}, s{s_wv}, 18")
    e(f"s_buffer_load_dword s{s_cnt}, {srd(sOUT)}, s{s_tmp}")
    if mode >= 2:
        e(f"s_buffer_load_dword s{s_cnt}, {srd(sW2)}, s{s_tmp}")
        e(f"s_buffer_load_dword s{s_cnt}, {srd(sWO)}, s{s_tmp}")
        e(f"s_buffer_load_dword s{s_cnt}, {srd(sDBG)}, 128")

def tlb_warm_v(a):
    e = a.e
    l = a.newlabel("Ltlb")
    e(f"s_cmp_lg_u32 s{s_wv}, 7")
    e(f"s_cbranch_scc1 {l}")
    e(f"v_lshlrev_b32 v{v_t2}, 20, v{v_lane}")
    e("s_mov_b64 exec, 0xffff")
    e(f"buffer_load_dword v{v_xo}, v{v_t2}, {srd(sWS)}, 0 offen")
    e("s_mov_b64 exec, 0xff")
    e(f"v_lshlrev_b32 v{v_t2}, 18, v{v_lane}")
    e(f"buffer_load_dword v{v_xo+1}, v{v_t2}, {srd(sOUT)}, 0 offen")
    e("s_mov_b64 exec, -1")
    a.label(l)

def touch_xcd(a):
    e = a.e
    T = 224
    e(f"s_lshr_b32 s{s_tmp}, s2, 3")
    e(f"s_lshl_b32 s{s_tmp}, s{s_tmp}, 3")
    e(f"s_add_u32 s{s_tmp}, s{s_tmp}, s{s_wv}")
    e(f"s_and_b32 s{s_tmp2}, s2, 1")
    e(f"s_bfe_u32 s{s_tmp3}, s2, 0x20001")
    e(f"s_lshl_b32 s{s_tmp4}, s{s_tmp2}, 2")
    e(f"s_add_u32 s{s_tmp4}, s{s_tmp4}, s{s_tmp3}")
    e(f"s_lshl_b32 s{s_tmp4}, s{s_tmp4}, 8")
    e(f"s_add_u32 s{s_tmp4}, s{s_tmp4}, s{s_tmp}")
    e(f"s_lshl_b32 s{s_tmp4}, s{s_tmp4}, 10")
    a.vmem(f"buffer_load_dwordx4 {vr(T,4)}, v{v_l16}, {srd(sX)}, s{s_tmp4} offen", "TCH")
    e(f"v_lshrrev_b32 v{v_t0}, 4, v{v_lane}")
    e(f"s_movk_i32 s{s_tmp4}, 3072")
    e(f"v_mul_u32_u24 v{v_t0}, s{s_tmp4}, v{v_t0}")
    e(f"v_and_b32 v{v_t1}, 15, v{v_lane}")
    e(f"v_lshl_add_u32 v{v_t0}, v{v_t1}, 4, v{v_t0}")
    e(f"s_and_b32 s{s_tmp4}, s{s_tmp}, 63")
    e(f"s_lshl_b32 s{s_cnt}, s{s_tmp2}, 6")
    e(f"s_add_u32 s{s_tmp4}, s{s_tmp4}, s{s_cnt}")
    e(f"s_mul_i32 s{s_tmp4}, s{s_tmp4}, {4*3072}")
    e(f"s_lshr_b32 s{s_cnt}, s{s_tmp}, 6")
    e(f"s_sub_u32 s{s_cnt}, 2, s{s_cnt}")
    e(f"s_lshl_b32 s{s_cnt}, s{s_cnt}, 10")
    e(f"s_add_u32 s{s_tmp4}, s{s_tmp4}, s{s_cnt}")
    e(f"s_lshl_b32 s{s_cnt}, s{s_tmp3}, 8")
    e(f"s_add_u32 s{s_tmp4}, s{s_tmp4}, s{s_cnt}")
    e(f"s_cmp_ge_u32 s{s_tmp}, 192")
    e(f"s_cselect_b32 s{s_tmp4}, {OOB}, s{s_tmp4}")
    a.vmem(f"buffer_load_dwordx4 {vr(T+4,4)}, v{v_t0}, {srd(sWQ)}, s{s_tmp4} offen", "TCH")
    e(f"s_lshl_b32 s{s_tmp4}, s{s_tmp2}, 8")
    e(f"s_add_u32 s{s_tmp4}, s{s_tmp4}, s{s_tmp}")
    e(f"s_mul_i32 s{s_tmp4}, s{s_tmp4}, 2752")
    e(f"s_mul_i32 s{s_cnt}, s{s_tmp3}, 768")
    e(f"s_add_u32 s{s_tmp4}, s{s_tmp4}, s{s_cnt}")
    e(f"s_and_b32 s{s_tmp4}, s{s_tmp4}, 0xffffff80")
    e("s_mov_b32 exec_hi, 0xffffff")
    a.vmem(f"buffer_load_dwordx4 {vr(T+8,4)}, v{v_l16}, {srd(sW1)}, s{s_tmp4} offen", "TCH")
    e("s_mov_b32 exec_hi, -1")

HEADER = open(os.path.join(os.path.dirname(os.path.abspath(__file__)), "..", "cdna_kernels", NAME + ".s.ref")).read().split("; Override launch")[0]

def emit_file(path):
    a = gen()
    s = HEADER
    s += "; @launch grid=(256,1,1) block=(512,1,1) lds=163840\n"
    s += f""".amdgcn_target "amdgcn-amd-amdhsa--gfx950"
.text
.globl {NAME}_kernel
.p2align 8
.type {NAME}_kernel,@function
{NAME}_kernel:
"""
    s += "\n".join(a.lines) + "\n"
    s += f""".section .rodata,"a"
.p2align 6
.amdhsa_kernel {NAME}_kernel
  .amdhsa_next_free_vgpr 256
  .amdhsa_next_free_sgpr {NSGPR}
  .amdhsa_accum_offset 256
  .amdhsa_group_segment_fixed_size 0
  .amdhsa_kernarg_size 80
  .amdhsa_user_sgpr_count 2
  .amdhsa_user_sgpr_kernarg_segment_ptr 1
  .amdhsa_system_sgpr_workgroup_id_x 1
.end_amdhsa_kernel
"""
    open(path, "w").write(s)

if __name__ == "__main__":
    out = sys.argv[1] if len(sys.argv) > 1 else os.path.join(os.path.dirname(os.path.abspath(__file__)), "..", "cdna_kernels", NAME + ".s")
    emit_file(out)
```

```python
import sys, math, os, struct

NAME = "gated_mix__sliding_block__dense_activation_relu__prompt"

KF = 0x200000
VF = 0x400000
OF = 0x600000
HF = 0x800000
GB = 0xE00000
FL = 0xF00000
TS = 0xF80000
WS_BYTES = 0x1000000
HROW = 86 * 1024
OOB = 0x40000000
SLOT = 16384

def env(n, d): return int(os.environ.get(n, d))
STAMPS = env("GEN_STAMPS", 0) >= 1
STAMPS2 = env("GEN_STAMPS", 0) >= 2
TOUCH = env("GEN_TOUCH", 10)
NT = env("GEN_NT", 0)
HROT = env("GEN_HROT", 0)
ROT = env("GEN_ROT", 0)

class Asm:
    def __init__(self):
        self.lines = []; self.vm = []; self.uid = 0; self.nstamp = 0
    def e(self, s): self.lines.append("    " + s)
    def label(self, l): self.lines.append(l + ":")
    def c(self, s): self.lines.append("    ; " + s)
    def newlabel(self, p="L"):
        self.uid += 1
        return f"{p}_{self.uid}"
    def vmem(self, s, tag):
        self.e(s); self.vm.append(tag)
    def wait_vm(self, tags, lgkm0=False):
        if isinstance(tags, str): tags = [tags]
        last = -1
        for i, t in enumerate(self.vm):
            if t in tags: last = i
        x = " lgkmcnt(0)" if lgkm0 else ""
        if last < 0:
            if lgkm0: self.e("s_waitcnt lgkmcnt(0)")
            return
        n = len(self.vm) - 1 - last
        assert n <= 63
        self.e(f"s_waitcnt vmcnt({n}){x}")
        self.vm = self.vm[last + 1:]

class Lg:
    def __init__(self, a): self.a = a; self.q = []
    def add(self, tag): self.q.append(tag)
    def wait(self, tags):
        last = -1
        for i, t in enumerate(self.q):
            if t in tags: last = i
        if last < 0: return
        n = min(len(self.q) - 1 - last, 15)
        self.a.e(f"s_waitcnt lgkmcnt({n})")
        self.q = self.q[len(self.q) - n:] if n else []
    def clear(self): self.q = []
    def drain(self):
        if self.q: self.a.e("s_waitcnt lgkmcnt(0)")
        self.q = []

sX, sWQ, sW1, sW2, sWO, sWS, sOUT, sGW, sDBG, sPW = 8, 12, 16, 20, 24, 28, 32, 36, 40, 88
def srd(b): return f"s[{b}:{b+3}]"
s_wv, s_rb, s_cg, s_p, s_t, s_rg, s_cgp, s_rb3, s_cb3, s_xbase = range(44, 54)
s_tmp, s_tmp2, s_wideoff, s_naroff = 54, 55, 56, 57
s_nonce = 58
s_tmp3, s_tmp4, s_st0, s_st1, s_first, s_w2off, s_xlds, s_cnt = range(60, 68)
s_exec = 68
s_m = 70; s_m2 = 72; s_m3 = 74
s_ldsw, s_a3, s_a3o, s_qb = 76, 77, 78, 79
s_vm = 80
s_ts = 82
s_tsb, s_ok, s_ga, s_pstep = 84, 85, 86, 87
s_st2 = 92
s_ldsww = 95
s_gw = 7
s_wbase = 5
GREG = 48
s_fl = 6
s_kvb = 3
s_krd = 4
s_vrdb = 98
s_flh = 99
s_r3 = 101
s_flc = 100
v_kf = 25
NSGPR = 102

v_lane, v_l16 = 1, 2
v_xo = 3
v_wq_n, v_wd0, v_wd1, v_xrd, v_trn, v_trw, v_tr3, v_w2_n = 7, 8, 9, 10, 11, 12, 13, 14
v_t0, v_t1 = 15, 16
v_hi = 17
v_t2, v_t3 = 18, 19
v_non = 20
v_c2 = 20
v_mc = 22
v_g2 = 24
v_omg2 = 26
v_t4, v_t5 = 28, 29
v_trw2, v_tr3b = 30, 31
MASKF = 32
MASKD = 48
BF = 64
ACC = 96
XF = 128
v_fo = 252; v_fd = 254

def vr(b, n): return f"v[{b}:{b+n-1}]"

ORD = os.environ.get("GEN_ORD", "A")
CFG = {
 "A": dict(order=[0,1,2,3,4,5,6,7,8,9,10,11], xslot={0:0,1:4,2:6,3:0}, init={0:2,1:3}, atk=6, atv=4, usplit=4, lg=4,
      sched={0:[("X",2,0),("P",2,8),("P",3,9)], 1:[("X",3,0),("P",4,2)], 2:[("P",5,4),("P",6,5),("P",7,3)],
             3:[("P",8,6),("P",9,7),("P",10,8)], 4:[("P",11,9)], 5:[("Q",0,0),("Q",1,1)], 6:[("Q",2,2)], 9:[("Q",3,3)]},
      sig0=6, kvi=9, kvc=11, post=(8,9), non=2),
 "C": dict(order=[0,1,4,2,5,3,6,7,8,9,10,11], xslot={0:0,1:3,2:8,3:0}, init={0:2,1:5}, atk=3, atv=0, usplit=6, lg=6,
      sched={0:[("P",4,6),("X",2,0),("P",2,7)], 1:[("P",5,2),("X",3,0)], 2:[("P",3,5),("P",6,3),("P",7,4)],
             3:[("P",8,6)], 4:[("P",9,7),("P",10,8),("P",11,9)], 5:[("Q",0,2)], 7:[("Q",1,5)], 10:[("Q",2,6)], 11:[("Q",3,7)]},
      sig0=8, kvi=10, kvc=11, post=(8,9), non=3),
}[ORD]
XSLOT = CFG["xslot"]
ATK = CFG['atk'] * SLOT
ATQ = ATK + 24576
ATV = CFG['atv'] * SLOT

v_st = 27
def stamp(a, final=False):
    if not STAMPS: return
    i = a.nstamp; a.nstamp += 1
    cur = s_ts + 2*(i & 1) if False else (s_ts if (i & 1) == 0 else 96)
    prev = (s_ts if ((i-1) & 1) == 0 else 96)
    if i > 0:
        a.e(f"v_writelane_b32 v{v_st}, s{prev}, {i-1}")
    a.e(f"{'s_memrealtime' if env('GEN_RT',0) else 's_memtime'} s[{cur}:{cur+1}]")
    if final:
        a.e("s_waitcnt lgkmcnt(0)")
        a.e(f"v_writelane_b32 v{v_st}, s{cur}, {i}")
        a.e(f"v_lshlrev_b32 v{v_t3}, 2, v{v_lane}")
        a.e("s_mov_b32 exec_lo, -1")
        a.e("s_mov_b32 exec_hi, 0")
        a.e(f"buffer_store_dword v{v_st}, v{v_t3}, {srd(sWS)}, s{s_tsb} offen")
        if env("GEN_DBG", 0):
            l = a.newlabel("Ldbg")
            a.e(f"s_cmp_lg_u32 s2, {env('GEN_DBG',0)}")
            a.e(f"s_cbranch_scc1 {l}")
            a.e(f"s_cmp_lg_u32 s{s_wv}, 0")
            a.e(f"s_cbranch_scc1 {l}")
            a.e(f"v_readlane_b32 s{s_tmp}, v{v_st}, 0")
            a.e("s_nop 3")
            a.e(f"v_subrev_u32 v{v_st}, s{s_tmp}, v{v_st}")
            a.e("s_mov_b32 exec_lo, 0x3ffe")
            a.e(f"buffer_store_dword v{v_st}, v{v_t3}, {srd(sDBG)}, 0 offen offset:4")
            a.label(l)

def dma(a, voff, srd_b, soff, lds_sgpr, ldsimm, tag, sc1=False):
    a.e(f"s_add_u32 m0, s{lds_sgpr}, {ldsimm}")
    a.e("s_nop 0")
    nt = " nt" if (not sc1 and ((NT & 1) and tag[0] in "XP" or (NT & 2) and tag[0] == "Q" or (NT & 4) and tag in ("X0", "P0") or (NT & 8) and tag in ("X1", "P1"))) else ""
    a.vmem(f"buffer_load_dwordx4 v{voff}, {srd(srd_b)}, {soff} offen{' sc1' if sc1 else ''}{nt} lds", tag)

def x_ops(a, j):
    ops = []
    for t in range(4):
        def f(t=t):
            a.e(f"s_add_u32 s{s_tmp}, s{s_xbase}, {t*4096 + j*256}")
            dma(a, v_xo + t, sX, f"s{s_tmp}", s_xlds, XSLOT[j]*SLOT + t*1024, f"X{j}")
        ops.append(f)
    return ops

def piece_ops(a, i, slot):
    ops = []
    for t in range(2):
        if i < 4:
            def f(t=t):
                a.e(f"s_add_u32 s{s_tmp}, s{s_naroff}, {(128*i + 8*t)*3072}")
                dma(a, v_wq_n, sWQ, f"s{s_tmp}", s_ldsw, slot*SLOT + t*1024, f"P{i}")
        else:
            def f(t=t):
                if t == 0:
                    a.e(f"s_mul_i32 s{s_wideoff}, s{s_pstep}, {i-4}")
                    a.e(f"s_add_u32 s{s_wideoff}, s{s_wideoff}, s{s_wbase}")
                a.e(f"s_add_u32 s{s_tmp}, s{s_ldsw}, {slot*SLOT + t*1024}")
                a.e(f"s_max_u32 m0, s{s_tmp}, s{s_ldsww}")
                a.e("s_nop 0")
                a.vmem(f"buffer_load_dwordx4 v{v_wd0 + t}, {srd(sPW)}, s{s_wideoff} offen{' nt' if NT & 1 else ''} lds", f"P{i}")
                if t == 1:
                    l = a.newlabel("Lgw")
                    a.e(f"s_cmp_eq_u32 s{s_gw}, 0")
                    a.e(f"s_cbranch_scc1 {l}")
                    a.e(f"v_add_u32 v{v_t2}, {slot*SLOT + 4096 + 128}, v{v_g2}")
                    a.e(f"ds_write_b16 v{v_t2}, v{GREG + i - 4}")
                    a.label(l)
        ops.append(f)
    return ops

def w2_ops(a, i, slot):
    ops = []
    for t in range(2):
        def f(t=t):
            srdb, r0 = (sW2, 128*i) if i <= 10 else (sWO, 128*(i-11))
            if HROT and i <= 10:
                a.e(f"s_add_u32 s{s_tmp}, s{s_p}, {r0*1024}")
                a.e(f"s_sub_u32 s{s_tmp2}, s{s_tmp}, {11*128*1024}")
                a.e(f"s_cselect_b32 s{s_tmp}, s{s_tmp}, s{s_tmp2}")
                a.e(f"s_add_u32 s{s_tmp}, s{s_tmp}, s{s_w2off}")
                if t: a.e(f"s_add_u32 s{s_tmp}, s{s_tmp}, {8*1024}")
            else:
                a.e(f"s_add_u32 s{s_tmp}, s{s_w2off}, {(r0 + 8*t) * 1024}")
            dma(a, v_w2_n, srdb, f"s{s_tmp}", s_ldsw, slot*SLOT + t*1024, f"Q{i}")
        ops.append(f)
    return ops

def issue_x_quarter(a, j):
    for f in x_ops(a, j): f()
def issue_piece(a, i, slot):
    for f in piece_ops(a, i, slot): f()
def issue_w2_piece(a, i, slot):
    for f in w2_ops(a, i, slot): f()

def mfma(a, d, x, y, c):
    cs = c if isinstance(c, str) else vr(c, 16)
    a.e(f"v_mfma_f32_32x32x16_bf16 {vr(d,16)}, {vr(x,4)}, {vr(y,4)}, {cs}")

def pack_tile(a, acc, pk, relu):
    for q in range(8):
        a.e(f"v_cvt_pk_bf16_f32 v{pk+q}, v{acc+2*q}, v{acc+2*q+1}")
    if relu:
        for q in range(8):
            a.e(f"v_pk_max_i16 v{pk+q}, v{pk+q}, 0")

def store_pk(a, pk, soff_sgpr, tag):
    a.vmem(f"buffer_store_dwordx4 {vr(pk,4)}, v{v_l16}, {srd(sWS)}, s{soff_sgpr} offen sc1", tag)
    a.vmem(f"buffer_store_dwordx4 {vr(pk+4,4)}, v{v_l16}, {srd(sWS)}, s{soff_sgpr} offen offset:1024 sc1", tag)

def signal(a, phase):
    l = a.newlabel("Lsig")
    a.e(f"s_cmp_lg_u32 s{s_wv}, 0")
    a.e(f"s_cbranch_scc1 {l}")
    a.e(f"v_mov_b32 v{v_t2}, s{s_nonce}")
    a.e(f"v_mov_b32 v{v_t3}, s{s_nonce+1}")
    a.e(f"v_mov_b32 v{v_t1}, {phase*32768}")
    a.e("s_mov_b64 exec, 1")
    a.e(f"buffer_store_dwordx2 v[{v_t2}:{v_t3}], v{v_t1}, {srd(sWS)}, s{s_fl} offen sc1")
    a.e("s_mov_b64 exec, -1")
    a.label(l)

def signal_wave(a):
    a.e(f"v_mov_b32 v{v_t2}, s{s_nonce}")
    a.e(f"v_mov_b32 v{v_t3}, s{s_nonce+1}")
    a.e(f"v_mov_b32 v{v_t1}, 0")
    a.e("s_mov_b64 exec, 1")
    a.vmem(f"buffer_store_dwordx2 v[{v_t2}:{v_t3}], v{v_t1}, {srd(sWS)}, s{s_flh} offen sc1", "SIGH")
    a.e("s_mov_b64 exec, -1")

def cmp_flags4(a, vd):
    a.e(f"v_xor_b32 v{vd}, s{s_nonce}, v{vd}")
    a.e(f"v_xor_b32 v{vd+1}, s{s_nonce+1}, v{vd+1}")
    a.e(f"v_xor_b32 v{vd+2}, s{s_nonce}, v{vd+2}")
    a.e(f"v_xor_b32 v{vd+3}, s{s_nonce+1}, v{vd+3}")
    a.e(f"v_or3_b32 v{vd}, v{vd}, v{vd+1}, v{vd+2}")
    a.e(f"v_or_b32 v{vd}, v{vd}, v{vd+3}")
    a.e(f"v_cmp_ne_u32 vcc, 0, v{vd}")
    a.e("s_nop 3")
    a.e("s_cmp_eq_u64 vcc, 0")

def hflag_issue(a, track=True):
    ins = f"buffer_load_dwordx4 v[252:255], v{v_l16}, {srd(sWS)}, s{s_flc} offen sc1"
    (a.vmem(ins, "FH") if track else a.e(ins))

def hpoll(a):
    lp = a.newlabel("Lpoll"); ld = a.newlabel("Lpolld")
    a.e(f"s_mov_b32 s{s_cnt}, 0")
    a.label(lp)
    hflag_issue(a, False)
    a.e("s_waitcnt vmcnt(0)")
    cmp_flags4(a, 252)
    a.e(f"s_cbranch_scc1 {ld}")
    a.e("s_sleep 1")
    a.e(f"s_add_u32 s{s_cnt}, s{s_cnt}, 1")
    a.e(f"s_cmp_lt_u32 s{s_cnt}, 100000")
    a.e(f"s_cbranch_scc1 {lp}")
    a.label(ld)

def cmp_flags(a, vd):
    a.e(f"v_cmp_eq_u32 s[{s_m2}:{s_m2+1}], s{s_nonce}, v{vd}")
    a.e(f"v_cmp_eq_u32 s[{s_m3}:{s_m3+1}], s{s_nonce+1}, v{vd+1}")
    a.e("s_nop 3")
    a.e(f"s_and_b64 s[{s_m2}:{s_m2+1}], s[{s_m2}:{s_m2+1}], s[{s_m3}:{s_m3+1}]")
    a.e(f"s_and_b64 s[{s_m2}:{s_m2+1}], s[{s_m2}:{s_m2+1}], s[{s_m}:{s_m+1}]")
    a.e(f"s_cmp_eq_u64 s[{s_m2}:{s_m2+1}], s[{s_m}:{s_m+1}]")

def poll(a, voff):
    lp = a.newlabel("Lpoll"); ld = a.newlabel("Lpolld")
    a.e(f"s_mov_b32 s{s_cnt}, 0")
    a.label(lp)
    a.e(f"buffer_load_dwordx2 v[{v_t2}:{v_t3}], v{voff}, {srd(sWS)}, 0 offen sc1")
    a.e("s_waitcnt vmcnt(0)")
    cmp_flags(a, v_t2)
    a.e(f"s_cbranch_scc1 {ld}")
    a.e("s_sleep 1")
    a.e(f"s_add_u32 s{s_cnt}, s{s_cnt}, 1")
    a.e(f"s_cmp_lt_u32 s{s_cnt}, 100000")
    a.e(f"s_cbranch_scc1 {lp}")
    a.label(ld)

def flag_issue(a, voff, vdst, tag, track=True):
    ins = f"buffer_load_dwordx2 v[{vdst}:{vdst+1}], v{voff}, {srd(sWS)}, 0 offen sc1"
    (a.vmem(ins, tag) if track else a.e(ins))

def flag_check(a, vdst, tag, track=True):
    if track: a.wait_vm(tag)
    else: a.e("s_waitcnt vmcnt(0)")
    cmp_flags(a, vdst)

def get_nonce(a):
    a.wait_vm("NON")
    lp = a.newlabel("Lnp"); ld = a.newlabel("Lnd")
    a.e(f"s_mov_b32 s{s_cnt}, 0")
    a.label(lp)
    a.e(f"v_readfirstlane_b32 s{s_nonce}, v{v_non}")
    a.e(f"v_readfirstlane_b32 s{s_nonce+1}, v{v_non+1}")
    a.e("s_nop 3")
    a.e(f"s_cmp_lg_u32 s{s_nonce}, 0")
    a.e(f"s_cbranch_scc1 {ld}")
    a.e("s_sleep 2")
    a.e(f"v_mov_b32 v{v_t2}, 0")
    a.e(f"buffer_load_dwordx2 v[{v_non}:{v_non+1}], v{v_t2}, {srd(sDBG)}, 0 offen sc1")
    a.e("s_waitcnt vmcnt(0)")
    a.e(f"s_add_u32 s{s_cnt}, s{s_cnt}, 1")
    a.e(f"s_cmp_lt_u32 s{s_cnt}, 100000")
    a.e(f"s_cbranch_scc1 {lp}")
    a.label(ld)

def kv_flag_setup(a):
    e = a.e
    e(f"s_lshl_b32 s{s_tmp}, s{s_rb}, 4")
    e(f"s_add_u32 s{s_fl}, s{s_tmp}, s{s_cg}")
    e(f"s_lshl_b32 s{s_fl}, s{s_fl}, 7")
    e(f"s_add_u32 s{s_fl}, s{s_fl}, {FL}")
    e(f"s_lshl_b32 s{s_tmp2}, s{s_p}, 1")
    e(f"s_add_u32 s{s_tmp}, s{s_tmp}, s{s_tmp2}")
    e(f"v_lshrrev_b32 v{v_kf}, 1, v{v_lane}")
    e(f"v_lshlrev_b32 v{v_kf}, 4, v{v_kf}")
    e(f"v_sub_u32 v{v_kf}, s{s_tmp}, v{v_kf}")
    e(f"v_and_b32 v{v_t0}, 1, v{v_lane}")
    e(f"v_add_u32 v{v_kf}, v{v_kf}, v{v_t0}")
    e(f"v_and_b32 v{v_kf}, 255, v{v_kf}")
    e(f"v_lshlrev_b32 v{v_kf}, 7, v{v_kf}")
    e(f"v_add_u32 v{v_kf}, {FL}, v{v_kf}")
    e(f"s_mov_b32 s{s_m}, 63")
    e(f"s_cmp_eq_u32 s{s_rb}, 1")
    e(f"s_cselect_b32 s{s_m}, 15, s{s_m}")
    e(f"s_cmp_eq_u32 s{s_rb}, 0")
    e(f"s_cselect_b32 s{s_m}, 3, s{s_m}")
    e(f"s_mov_b32 s{s_m+1}, 0")
    e(f"s_lshl_b32 s{s_tmp3}, s{s_cg}, 6")
    e(f"s_lshl_b32 s{s_tmp4}, s{s_rb}, 2")
    e(f"s_add_u32 s{s_tmp3}, s{s_tmp3}, s{s_tmp4}")
    e(f"s_lshl_b32 s{s_tmp3}, s{s_tmp3}, 11")
    e(f"s_mul_i32 s{s_tmp4}, s{s_wv}, 3072")
    e(f"s_add_u32 s{s_kvb}, s{s_tmp3}, s{s_tmp4}")
    e(f"s_lshl_b32 s{s_tmp}, s{s_rg}, 11")
    e(f"s_lshl_b32 s{s_tmp2}, s{s_cgp}, 10")
    e(f"s_add_u32 s{s_tmp2}, s{s_tmp2}, s{s_tmp}")
    e(f"s_add_u32 s{s_krd}, s{s_tmp2}, {ATK}")
    e(f"s_lshl_b32 s{s_tmp2}, s{s_cgp}, 8")
    e(f"s_add_u32 s{s_tmp2}, s{s_tmp2}, s{s_tmp}")
    e(f"s_add_u32 s{s_vrdb}, s{s_tmp2}, {ATV}")
    e(f"s_lshl_b32 s{s_qb}, s{s_rb}, 2")
    e(f"s_add_u32 s{s_qb}, s{s_qb}, s{s_rg}")
    e(f"s_sub_i32 s{s_first}, 8, s{s_qb}")
    e(f"s_max_i32 s{s_first}, s{s_first}, 0")
    e(f"s_mov_b32 s{s_vm}, 0xffff")
    e(f"s_mov_b32 s{s_vm+1}, 0xffff")
    s3_addr_setup(a)
    e(f"s_lshl_b32 s{s_tmp}, s{s_cg}, 3")
    e(f"s_add_u32 s{s_tmp}, s{s_tmp}, s{s_wv}")
    e(f"s_lshl_b32 s{s_tmp}, s{s_tmp}, 3")
    e(f"s_lshl_b32 s{s_flh}, s{s_rb}, 10")
    e(f"s_add_u32 s{s_flh}, s{s_flh}, s{s_tmp}")
    e(f"s_add_u32 s{s_flh}, s{s_flh}, {FL + 32768}")
    e(f"s_lshr_b32 s{s_flc}, s{s_rb3}, 1")
    e(f"s_lshl_b32 s{s_flc}, s{s_flc}, 10")
    e(f"s_add_u32 s{s_flc}, s{s_flc}, {FL + 32768}")

def kv_ops(a, guard=True):
    ops = []
    for reg, lds, tag in ((KF, ATK, "AK"), (VF, ATV, "AV")):
        for i in range(3):
            def f(reg=reg, lds=lds, tag=tag, i=i):
                l = None
                if guard:
                    l = a.newlabel("Lkvg")
                    a.e(f"s_cmp_eq_u32 s{s_ok}, 0")
                    a.e(f"s_cbranch_scc1 {l}")
                a.e(f"s_mul_i32 s{s_tmp4}, s{s_wv}, 3072")
                a.e(f"s_add_u32 s{s_tmp}, s{s_kvb}, {reg - 16384 + i*1024}")
                dma(a, v_l16, sWS, f"s{s_tmp}", s_tmp4, lds + i*1024, tag, sc1=True)
                if l: a.label(l)
            ops.append(f)
    return ops

def issue_kv(a, which, track=True):
    sv = list(a.vm)
    for f in kv_ops(a, guard=False): f()
    if not track: a.vm = sv

def s1_items(pieces, slot_of):
    items = []
    for i in pieces:
        sl = slot_of[i]
        if i < 4:
            for s in range(8):
                items.append(dict(pc=i, ks=8*i + s, tl=0, vb=v_trn, off=s*2048, sec=512, sl=sl, xs=s))
        else:
            j = i - 4
            for s in range(4):
                for tl in range(2):
                    items.append(dict(pc=i, ks=4*j + s, tl=tl, vb=(v_trw2 if tl else v_trw), off=None, s=s, sl=sl, xs=None))
    return items

def stage1(a, isv):
    raise NotImplementedError

ORDER = CFG['order']
T3U = env('GEN_T3U', 99)
FLUSH = 1
USPLIT = CFG['usplit']

class S1:
    D = env('GEN_D', 5)
    def __init__(self, a):
        self.a = a; self.lg = Lg(a); self.n = 0
        self.fifo = []
        self.slot_of = dict(CFG["init"])
        self.w2_slot = {}
        self.base = {}
        self.sched = CFG["sched"]
    def sync(self, u, extra_need=(), hook=None):
        a = self.a
        i = ORDER[u]
        need = [f"P{i}"] + ([f"X{i}"] if i < 4 else []) + list(extra_need)
        if FLUSH: self.pump(len(self.fifo))
        if u <= CFG['lg']:
            a.wait_vm(need, lgkm0=True)
            self.lg.clear()
        else:
            a.wait_vm(need)
        a.e("s_barrier")
        if STAMPS2: stamp(a)
        if hook: hook()
        for kind, pc, sl in self.sched.get(u, []):
            if kind == "P": self.slot_of[pc] = sl; self.fifo += piece_ops(a, pc, sl)
            elif kind == "X": self.fifo += x_ops(a, pc)
            else: self.w2_slot[pc] = sl; self.fifo += w2_ops(a, pc, sl)
        self.base = {}
    def pump(self, n=1):
        for _ in range(n):
            if self.fifo: self.fifo.pop(0)()
    def read(self, it):
        a = self.a
        b = BF + (it["n"] % 8) * 4
        sl = it["sl"]
        if it["xs"] is not None:
            s = it["xs"]; xq = it["pc"]
            r = v_t0 + (s & 1)
            a.e(f"v_xor_b32 v{r}, {s*32}, v{v_xrd}")
            off = XSLOT[xq]*SLOT
            if off > 65535:
                a.e(f"v_add_u32 v{r}, {off}, v{r}"); off = 0
            a.e(f"ds_read_b128 {vr(XF + it['ks']*4, 4)}, v{r} offset:{off}")
            self.lg.add(("x", it["ks"]))
        vb = it["vb"]
        if it["pc"] < 4:
            off, sec = it["off"], it["sec"]
            o = sl*SLOT + off
            if o + sec > 65535:
                if vb not in self.base:
                    a.e(f"v_add_u32 v{v_t4}, {sl*SLOT}, v{vb}"); self.base[vb] = v_t4
                vb = self.base[vb]; o = off
            a.e(f"ds_read_b64_tr_b16 {vr(b,2)}, v{vb} offset:{o}")
            a.e(f"ds_read_b64_tr_b16 {vr(b+2,2)}, v{vb} offset:{o + sec}")
        else:
            s = it["s"]; tl = it["tl"]
            if tl == 1:
                o = sl*SLOT + s*16*192; sec = 4*192
                if o + sec > 65535 - 16384:
                    if vb not in self.base:
                        a.e(f"v_add_u32 v{v_t5}, {sl*SLOT}, v{vb}"); self.base[vb] = v_t5
                    vb = self.base[vb]; o = s*16*192
                a.e(f"ds_read_b64_tr_b16 {vr(b,2)}, v{vb} offset:{o}")
                a.e(f"ds_read_b64_tr_b16 {vr(b+2,2)}, v{vb} offset:{o + sec}")
            else:
                if s == 0:
                    a.e(f"v_add_u32 v{v_t4}, {sl*SLOT}, v{v_trw}")
                    a.e(f"v_add_u32 v{v_t0}, {sl*SLOT}, v{v_omg2}")
                else:
                    a.e(f"v_add_u32 v{v_t4}, s{s_k16}, v{v_t4}")
                    a.e(f"v_add_u32 v{v_t0}, s{s_k16}, v{v_t0}")
                a.e(f"ds_read_b64_tr_b16 {vr(b,2)}, v{v_t4}")
                a.e(f"ds_read_b64_tr_b16 {vr(b+2,2)}, v{v_t0}")
        self.lg.add(("b", it["n"])); self.lg.add(("b", it["n"]))
    def mm(self, it, isv):
        a = self.a
        self.lg.wait([("b", it["n"]), ("x", it["ks"])])
        b = BF + (it["n"] % 8) * 4
        if it["pc"] < 4:
            acc = ACC2
            cin = "0" if it["ks"] == 0 else acc
            if isv: mfma(a, acc, XF + it["ks"]*4, b, cin)
            else: mfma(a, acc, b, XF + it["ks"]*4, cin)
        else:
            acc = ACC + 16*it["tl"]
            cin = "0" if it["ks"] == 0 else acc
            mfma(a, acc, b, XF + it["ks"]*4, cin)

ACC2 = MASKF
s_k16 = 93

def build_maskd(a):
    e = a.e
    e(f"v_and_b32 v{v_t2}, 31, v{v_lane}")
    e(f"v_lshlrev_b32 v{v_t3}, 2, v{v_hi}")
    e(f"v_sub_u32 v{v_t2}, v{v_t2}, v{v_t3}")
    e(f"v_mov_b32 v{v_t3}, 0xf149f2ca")
    for r in range(16):
        cr = (r & 3) + 8 * (r >> 2)
        e(f"v_cmp_gt_i32 vcc, {cr}, v{v_t2}")
        e("s_nop 1")
        e(f"v_cndmask_b32 v{MASKD+r}, 0, v{v_t3}, vcc")

PRE = env("GEN_PRE", 2)
def run_stage1(a):
    e = a.e
    a.c("================ stage 1 ================")
    D = S1.D
    base_lines = a.lines
    outs = []
    ns0 = a.nstamp; vm0 = list(a.vm)
    state = {}
    def hook(u, st):
        if u == 1 and TOUCH >= 2 and TOUCH not in (7, 9): touch(a, (sW2, sWO), 240)
        if T3U <= u < T3U + 4: st.fifo.append(lambda u=u: touch_l2_s3(a, u - T3U, 4))
        if u == env("GEN_TLBV", 3): tlb_warm_v(a)
        if u == env("GEN_SENTU", 0) and u > 0:
            for i in range(4): a.e(f"v_mov_b32 v{4+i}, -1")
            a.vmem(f"buffer_store_dwordx4 v[4:7], v{v_l16}, {srd(sWS)}, s{s_oa} offen sc1", "SENT")
        if u == CFG['non']:
            a.e(f"v_mov_b32 v{v_t2}, 0")
            a.vmem(f"buffer_load_dwordx2 v[{v_non}:{v_non+1}], v{v_t2}, {srd(sDBG)}, 0 offen sc1", "NON")
        if u == SIG0:
            get_nonce(a); signal(a, 0)
        VE = env("GEN_VE", 0)
        if u == CFG["kvi"] - VE:
            flag_issue(a, v_kf, v_non + 2, "FKV")
        if u == CFG["kvc"] - VE:
            flag_check(a, v_non + 2, "FKV")
            a.e(f"s_cselect_b32 s{s_ok}, 1, 0")
            l2 = a.newlabel("Lkv2")
            a.e(f"s_cbranch_scc1 {l2}")
            flag_issue(a, v_kf, v_non + 2, "FKV", track=False)
            a.label(l2)
            ops = kv_ops(a)
            if VE: st.fifo = ops[3:] + st.fifo
            else: st.fifo = ops + st.fifo
        if VE and u == CFG["kvc"]:
            st.fifo = kv_ops(a)[:3] + st.fifo
    def do_mm(st, pend, isv):
        it = pend.pop(0)
        st.mm(it, isv)
        if it["pc"] == 3 and it["ks"] == 31: state["kvdone"] = 0
        elif "kvdone" in state:
            state["kvdone"] += 1
            if state["kvdone"] == 2:
                a.e("s_nop 7")
                pack_tile(a, ACC2, ACC2, False)
                store_pk(a, ACC2, s_st0, "ST0")
        st.pump(1)
    def unit(st, u, pend, n, isv, q0=0, q1=8, items=None):
        pc = ORDER[u]
        if items is None:
            if u <= CFG["lg"]:
                for _ in range(min(PRE, len(pend))): do_mm(st, pend, isv)
            st.sync(u, ["ST0"] if u == SIG0 else [], lambda: hook(u, st))
            items = s1_items([pc], st.slot_of)
            for it in items: it["n"] = n; n += 1
        for q in range(q0, q1):
            st.read(items[q]); pend.append(items[q])
            if len(pend) > D: do_mm(st, pend, isv)
            elif q % 2 == 1 and len(pend) > 2 and u > 0 and pend[0]["pc"] != pc: do_mm(st, pend, isv)
        return n, items
    for isv in (0, 1):
        a.lines = []; a.vm = list(vm0); a.nstamp = ns0; state.clear()
        st = S1(a)
        if isv: a.label("L_s1v")
        pend = []; n = 0
        for u in range(0, USPLIT):
            n, _ = unit(st, u, pend, n, isv)
        n, items = unit(st, USPLIT, pend, n, isv, 0, 0)
        q = 0
        while any(it["pc"] < 4 for it in pend):
            unit(st, USPLIT, pend, n, isv, q, q + 1, items); q += 1
            if q >= 8:
                while any(it["pc"] < 4 for it in pend): do_mm(st, pend, isv)
        st.pump(len(st.fifo))
        if not isv: a.e("s_branch L_s1w")
        outs.append((a.lines, list(a.vm), st, pend, n, items, q, dict(state)))
    assert outs[0][1] == outs[1][1]
    a.lines = base_lines + outs[0][0] + outs[1][0]
    _, vm, st, pend, n, items_s, q0, stt = outs[1]
    a.vm = vm
    a.label("L_s1w")
    unit(st, USPLIT, pend, n, 0, q0, 8, items_s)
    for u in range(USPLIT + 1, 12):
        n, _ = unit(st, u, pend, n, 0)
    while pend: do_mm(st, pend, 0)
    st.pump(len(st.fifo))
    e("s_nop 7"); e("s_nop 3")
    gate(a)
    pack_tile(a, ACC + 16, BF + 8, True)
    store_pk(a, BF + 8, s_st2, "ST1")
    pack_tile(a, ACC, BF, False)
    l = a.newlabel("Lq"); l2 = a.newlabel("Lqd")
    e(f"s_cmp_eq_u32 s{s_cgp}, 0")
    e(f"s_cbranch_scc1 {l}")
    for q in range(8): e(f"v_pk_max_i16 v{BF+q}, v{BF+q}, 0")
    a.label(l)
    store_pk(a, BF, s_st1, "ST1")
    return st.w2_slot

SIG0 = CFG['sig0']

def gate(a):
    e = a.e
    l = a.newlabel("Lgate")
    e(f"s_cmp_lg_u32 s{s_cg}, 15")
    e(f"s_cbranch_scc1 {l}")
    e(f"s_cmp_lg_u32 s{s_cgp}, 1")
    e(f"s_cbranch_scc1 {l}")
    e(f"v_cvt_pk_bf16_f32 v{v_t1}, v{ACC+16}, v{ACC+16}")
    e(f"v_lshlrev_b32 v{v_t1}, 16, v{v_t1}")
    e(f"v_mul_f32 v{v_t1}, 0xbfb8aa3b, v{v_t1}")
    e(f"v_exp_f32 v{v_t1}, v{v_t1}")
    e("s_nop 0")
    e(f"v_add_f32 v{v_t1}, 1.0, v{v_t1}")
    e(f"v_rcp_f32 v{v_t1}, v{v_t1}")
    e("s_nop 0")
    e(f"v_cvt_pk_bf16_f32 v{v_t1}, v{v_t1}, v{v_t1}")
    e(f"v_lshlrev_b32 v{v_t1}, 16, v{v_t1}")
    e(f"v_lshlrev_b32 v{v_t0}, 2, v{v_lane}")
    e(f"s_lshl_b32 s{s_tmp}, s{s_rb}, 2")
    e(f"s_add_u32 s{s_tmp}, s{s_tmp}, s{s_rg}")
    e(f"s_lshl_b32 s{s_tmp}, s{s_tmp}, 7")
    e(f"s_add_u32 s{s_tmp}, s{s_tmp}, {GB}")
    e(f"s_mov_b64 s[{s_exec}:{s_exec+1}], exec")
    e("s_mov_b32 exec_lo, -1")
    e("s_mov_b32 exec_hi, 0")
    e(f"buffer_store_dword v{v_t1}, v{v_t0}, {srd(sWS)}, s{s_tmp} offen sc1")
    e(f"s_mov_b64 exec, s[{s_exec}:{s_exec+1}]")
    a.label(l)

def Sreg(b):
    if b == 0: return MASKF
    if b == 8: return MASKD
    return 64 + 16*(b-1)
KFR = 176; QFR = 212; VROT = 216; OACC = 232
v_max = 248; v_max2 = 249; v_vrd = 250; v_krd = 251

def AFreg(n):
    if n < 10: return 176 + 4*n
    if n < 14: return 48 + 4*(n-10)
    if n < 18: return 160 + 4*(n-14)
    return 144 + 4*(n-18)
def AOreg(n):
    return 128 + 4*n if n < 4 else 32 + 4*(n-4)
BF3 = 64; ACB = 96; ACA = 216

def s3_addr_setup(a):
    e = a.e
    e(f"s_lshl_b32 s{s_tmp3}, s{s_rb3}, 1")
    e(f"s_add_u32 s{s_tmp3}, s{s_tmp3}, s{s_cgp}")
    e(f"s_mul_i32 s{s_a3}, s{s_tmp3}, {HROW}")
    e(f"s_lshl_b32 s{s_tmp}, s{s_rg}, 10")
    if HROT:
        e(f"s_mul_i32 s{s_r3}, s{s_cb3}, 11")
        e(f"s_lshr_b32 s{s_r3}, s{s_r3}, 3")
        e(f"s_lshl_b32 s{s_p}, s{s_r3}, 17")
        e(f"s_lshl_b32 s{s_r3}, s{s_r3}, 13")
        e(f"s_add_u32 s{s_r3}, s{s_r3}, s{s_tmp}")
    else:
        e(f"s_add_u32 s{s_a3}, s{s_a3}, s{s_tmp}")
    e(f"s_add_u32 s{s_a3}, s{s_a3}, {HF}")
    e(f"s_lshl_b32 s{s_a3o}, s{s_tmp3}, 15")
    e(f"s_add_u32 s{s_a3o}, s{s_a3o}, s{s_tmp}")
    e(f"s_add_u32 s{s_a3o}, s{s_a3o}, {OF}")
    e(f"s_lshl_b32 s{s_ga}, s{s_tmp3}, 7")
    e(f"s_add_u32 s{s_ga}, s{s_ga}, {GB}")

def h_loads(a, ns, track=True):
    e = a.e
    for n in ns:
        if n == "g":
            e(f"v_and_b32 v{v_t0}, 31, v{v_lane}")
            e(f"v_lshlrev_b32 v{v_t0}, 2, v{v_t0}")
            ins = f"buffer_load_dword v{v_g2}, v{v_t0}, {srd(sWS)}, s{s_ga} offen sc1"
            (a.vmem(ins, "G") if track else e(ins))
            continue
        if HROT:
            e(f"s_add_u32 s{s_tmp}, s{s_r3}, {n*4096}")
            e(f"s_sub_u32 s{s_tmp2}, s{s_tmp}, {22*4096}")
            e(f"s_cselect_b32 s{s_tmp}, s{s_tmp}, s{s_tmp2}")
            e(f"s_cmp_ge_u32 s{s_tmp}, {HROW}")
            e(f"s_cselect_b32 s{s_tmp}, {OOB}, s{s_tmp}")
            e(f"s_add_u32 s{s_tmp}, s{s_tmp}, s{s_a3}")
        else:
            e(f"s_add_u32 s{s_tmp}, s{s_a3}, {n*4096}")
            if n == 21:
                e(f"s_cmp_ge_u32 s{s_rg}, 2")
                e(f"s_cselect_b32 s{s_tmp}, {OOB}, s{s_tmp}")
        ins = f"buffer_load_dwordx4 {vr(AFreg(n),4)}, v{v_l16}, {srd(sWS)}, s{s_tmp} offen sc1"
        (a.vmem(ins, f"H{n}") if track else e(ins))

def guarded_h_loads(a, ns, track=True):
    l = a.newlabel("Lhl")
    a.e(f"s_cmp_eq_u32 s{s_ok}, 0")
    a.e(f"s_cbranch_scc1 {l}")
    h_loads(a, ns, track)
    a.label(l)

def flags16(a, phase, vdst):
    e = a.e
    e(f"s_lshr_b32 s{s_tmp}, s{s_rb3}, 1")
    e(f"s_lshl_b32 s{s_tmp}, s{s_tmp}, 11")
    e(f"s_add_u32 s{s_tmp}, s{s_tmp}, {FL + phase*32768}")
    e(f"v_and_b32 v{vdst}, 15, v{v_lane}")
    e(f"v_lshlrev_b32 v{vdst}, 7, v{vdst}")
    e(f"v_add_u32 v{vdst}, s{s_tmp}, v{vdst}")
    e(f"s_mov_b32 s{s_m}, 0xffff")
    e(f"s_mov_b32 s{s_m+1}, 0")

SIGB = env('GEN_SIGB', 1)
HB_ISSUE, HB_CHECK = env("GEN_HBI", 5), env("GEN_HBC", 3)

def attention(a, slot_of):
    e = a.e
    a.c("================ attention ================")
    e(f"s_lshl_b32 s{s_tmp}, s{s_rg}, 10")
    e(f"s_add_u32 s{s_tmp}, s{s_tmp}, {ATQ}")
    e(f"v_add_u32 v{v_t0}, s{s_tmp}, v{v_l16}")
    l = a.newlabel("Lqx")
    e(f"s_cmp_lg_u32 s{s_cgp}, 0")
    e(f"s_cbranch_scc1 {l}")
    e(f"ds_write_b128 v{v_t0}, {vr(BF+4,4)}")
    for i in range(4): e(f"v_mov_b32 v{QFR+i}, v{BF+i}")
    a.label(l)
    l = a.newlabel("Lkvok")
    e(f"s_cmp_lg_u32 s{s_ok}, 0")
    e(f"s_cbranch_scc1 {l}")
    l2 = a.newlabel("Lkv3")
    flag_check(a, v_non + 2, "FKV", track=False)
    e(f"s_cbranch_scc1 {l2}")
    poll(a, v_kf)
    a.label(l2)
    issue_kv(a, "KV", track=False)
    e("s_waitcnt vmcnt(0)")
    a.label(l)
    l = a.newlabel("Lgm")
    e(f"s_cmp_eq_u32 s{s_gw}, 0")
    e(f"s_cbranch_scc1 {l}")
    build_maskd(a)
    a.label(l)
    stamp(a)
    e(f"v_add_u32 v{v_krd}, s{s_krd}, v{v_l16}")
    e(f"v_mov_b32 v{v_t3}, 0xf149f2ca")
    for r in range(16):
        e(f"v_sub_f32 v{MASKF+r}, v{v_t3}, v{MASKD+r}")
    a.wait_vm(["AK", "AV"], lgkm0=True)
    e("s_barrier")
    stamp(a)
    lg = Lg(a)
    l = a.newlabel("Lqr")
    e(f"s_cmp_eq_u32 s{s_cgp}, 0")
    e(f"s_cbranch_scc1 {l}")
    e(f"ds_read_b128 {vr(QFR,4)}, v{v_t0}")
    a.label(l)
    for b in range(8, -1, -1):
        e(f"ds_read_b128 {vr(KFR+4*b,4)}, v{v_krd} offset:{b*2048}"); lg.add(("k", b))
    fill = []
    for pc, sl in zip((4, 5), CFG["post"]):
        slot_of[pc] = sl; fill += w2_ops(a, pc, sl)
    c = 0.25 * math.log2(math.e)
    cbits = struct.unpack("<I", struct.pack("<f", c))[0]
    misc = [f"v_mov_b32 v{VROT+i}, 0x3f803f80" for i in range(16)]
    misc += [f"v_mov_b32 v{v_c2}, 0x{cbits:08x}", f"v_mov_b32 v{v_c2+1}, 0x{cbits:08x}", f"v_add_u32 v{v_vrd}, s{s_vrdb}, v{v_l16}"]
    for b in range(8, -1, -1):
        lg.wait([("k", b)])
        S = Sreg(b)
        mfma(a, S, KFR + 4*b, QFR, S if b in (0, 8) else "0")
        for _ in range(3):
            if misc: e(misc.pop(0))
        if fill and b % 2 == 0: fill.pop(0)()
    while misc: e(misc.pop(0))
    while fill: fill.pop(0)()
    if SIGB == 1:
        a.wait_vm("ST1"); signal_wave(a)
    lmax = a.newlabel("Lmaxd")
    e("s_nop 4")
    for b in range(8, -1, -1):
        S = Sreg(b)
        if b < 8:
            e(f"s_cmp_gt_u32 s{s_first}, {b}")
            e(f"s_cbranch_scc1 {lmax}")
        for q in range(8):
            if b == 8 and q == 0:
                e(f"v_max_f32 v{v_max}, v{S}, v{S+1}")
            else:
                e(f"v_max3_f32 v{v_max}, v{S+2*q}, v{S+2*q+1}, v{v_max}")
    a.label(lmax)
    e(f"v_mov_b32 v{v_max2}, v{v_max}")
    e("s_nop 1")
    e(f"v_permlane32_swap_b32 v{v_max}, v{v_max2}")
    e("s_nop 1")
    e(f"v_max_f32 v{v_max}, v{v_max}, v{v_max2}")
    e(f"v_mul_f32 v{v_mc}, v{v_c2}, v{v_max}")
    e(f"v_sub_f32 v{v_mc}, 0, v{v_mc}")
    e(f"v_mov_b32 v{v_mc+1}, v{v_mc}")
    if SIGB == 2:
        a.wait_vm("ST1"); signal_wave(a)
    def softmax_block(b):
        S = Sreg(b)
        for q in range(8):
            e(f"v_pk_fma_f32 v[{S+2*q}:{S+2*q+1}], v[{S+2*q}:{S+2*q+1}], v[{v_c2}:{v_c2+1}], v[{v_mc}:{v_mc+1}]")
        for r in range(16):
            e(f"v_exp_f32 v{S+r}, v{S+r}")
        for q in range(8):
            e(f"v_cvt_pk_bf16_f32 v{S+q}, v{S+2*q}, v{S+2*q+1}")
    softmax_block(8)
    e("s_barrier")
    stamp(a)
    for pc, sl in ((6, CFG['atk']), (7, CFG['atk']+1)):
        slot_of[pc] = sl; issue_w2_piece(a, pc, sl)
    lg = Lg(a)
    def vread(n):
        b = 8 - n//2; m = n % 2
        e(f"ds_read_b128 {vr(VROT + 4*(n%4), 4)}, v{v_vrd} offset:{b*2048 + m*1024}")
        lg.add(("v", n))
    e(f"s_mov_b64 exec, s[{s_vm}:{s_vm+1}]")
    vread(0); vread(1)
    e("s_mov_b64 exec, -1")
    lpv = a.newlabel("Lpvd")
    e(f"s_mov_b32 s{s_ok}, 0")
    skip_labels = {}
    hl = list(range(22)) + ["g"]
    CH = eval(os.environ.get("GEN_CH", "[(7,5),(5,3),(3,1)]"))
    def peek_wait(tag):
        sv = list(a.vm); a.wait_vm(tag); a.vm = sv
    def post_block(b, track):
        for i, (bi, bc) in enumerate(CH):
            if b == bc:
                l = a.newlabel("Lch")
                e(f"s_cmp_lg_u32 s{s_ok}, 0")
                e(f"s_cbranch_scc1 {l}")
                e("s_waitcnt vmcnt(0)")
                cmp_flags4(a, 252)
                e(f"s_cselect_b32 s{s_ok}, {i+1}, 0")
                a.label(l)
        for i, (bi, bc) in enumerate(CH):
            if b == bi:
                l = a.newlabel("Lci")
                e(f"s_cmp_lg_u32 s{s_ok}, 0")
                e(f"s_cbranch_scc1 {l}")
                hflag_issue(a, False)
                a.label(l)
        for i, (bi, bc) in enumerate(CH):
            if b <= bc:
                per = -(-len(hl) // (bc + 1))
                i0 = (bc - b) * per
                if hl[i0:i0+per]:
                    l = a.newlabel("Lhl")
                    e(f"s_cmp_lg_u32 s{s_ok}, {i+1}")
                    e(f"s_cbranch_scc1 {l}")
                    h_loads(a, hl[i0:i0+per], track and i == len(CH) - 1)
                    a.label(l)
    for b in range(8, -1, -1):
        S = Sreg(b)
        n0 = 2*(8 - b)
        if b < 8:
            skip_labels[b] = a.newlabel("Lskip")
            e(f"s_cmp_gt_u32 s{s_first}, {b}")
            e(f"s_cbranch_scc1 {skip_labels[b]}")
        if b > 0:
            e(f"s_mov_b64 exec, s[{s_vm}:{s_vm+1}]")
            vread(n0 + 2); vread(n0 + 3)
            e("s_mov_b64 exec, -1")
        if b < 8: softmax_block(b)
        lg.wait([("v", n0), ("v", n0+1)])
        e("s_nop 0")
        mfma(a, OACC, VROT + 4*(n0 % 4), S, "0" if b == 8 else OACC)
        mfma(a, OACC, VROT + 4*((n0+1) % 4), S + 4, OACC)
        post_block(b, True)
    e(f"s_branch {lpv}")
    for b in range(7, -1, -1):
        a.label(skip_labels[b])
        post_block(b, False)
    a.label(lpv)
    e("s_waitcnt lgkmcnt(0)")
    e("s_nop 7"); e("s_nop 3")
    e(f"v_rcp_f32 v{v_max}, v{OACC+8}")
    e("s_nop 0")
    for r in range(8):
        e(f"v_mul_f32 v{OACC+r}, v{OACC+r}, v{v_max}")
    for q in range(4):
        e(f"v_cvt_pk_bf16_f32 v{248+q}, v{OACC+2*q}, v{OACC+2*q+1}")
    e(f"buffer_store_dwordx4 v[248:251], v{v_l16}, {srd(sWS)}, s{s_oa} offen sc1")
    l = a.newlabel("Lhok")
    e(f"s_cmp_lg_u32 s{s_ok}, 0")
    e(f"s_cbranch_scc1 {l}")
    hpoll(a)
    h_loads(a, list(range(22)) + ["g"], track=False)
    a.label(l)
    stamp(a)
s_oa = 94

def compute3(a, pieces, slot_of, cnt):
    e = a.e
    work = []
    for pc in pieces:
        for u in range(2):
            if pc <= 10: af = AFreg(2*pc + u); tag = f"H{2*pc+u}"; acc = ACB; first = (pc == 0 and u == 0)
            else: af = AOreg(2*(pc-11) + u); tag = f"O{2*(pc-11)+u}"; acc = ACA; first = (pc == 11 and u == 0)
            for ct in range(2):
                work.append((slot_of[pc], u, ct, af, tag, acc + 16*ct, first))
    lg = Lg(a)
    cur = {}
    def rd(w):
        sl, u, ct, af, tag, acc, first = work[w]
        vb = v_tr3b if ct else v_tr3
        off = sl*SLOT + u*8192
        if off + 1024 > 65535:
            r = v_t5 if ct else v_t4
            if cur.get(ct) != sl:
                e(f"v_add_u32 v{r}, {sl*SLOT}, v{vb}")
                cur[ct] = sl
            vb = r; off = u*8192
        b = BF3 + ((cnt[0] + w) % 8)*4
        e(f"ds_read_b64_tr_b16 {vr(b,2)}, v{vb} offset:{off}")
        e(f"ds_read_b64_tr_b16 {vr(b+2,2)}, v{vb} offset:{off + 1024}")
        lg.add(w); lg.add(w)
    D = 4
    for w in range(min(D, len(work))): rd(w)
    for w in range(len(work)):
        if w + D < len(work): rd(w + D)
        sl, u, ct, af, tag, acc, first = work[w]
        a.wait_vm(tag)
        lg.wait([w])
        b = BF3 + ((cnt[0] + w) % 8)*4
        mfma(a, acc, b, af, "0" if first else acc)
    cnt[0] += len(work)
    lg.drain()

S3J = env('GEN_S3J', 1)
def o_loads(a, track=True):
    for n in range(8):
        a.e(f"s_add_u32 s{s_tmp}, s{s_a3o}, {n*4096}")
        ins = f"buffer_load_dwordx4 {vr(AOreg(n),4)}, v{v_l16}, {srd(sWS)}, s{s_tmp} offen sc1"
        (a.vmem(ins, f"O{n}") if track else a.e(ins))

def o_check(a):
    e = a.e
    regs = [AOreg(n) + i for n in range(8) for i in range(4)]
    e(f"v_max3_u32 v{v_t2}, v{regs[0]}, v{regs[1]}, v{regs[2]}")
    i = 3
    while i < len(regs):
        if i + 1 < len(regs):
            e(f"v_max3_u32 v{v_t2}, v{regs[i]}, v{regs[i+1]}, v{v_t2}"); i += 2
        else:
            e(f"v_max_u32 v{v_t2}, v{regs[i]}, v{v_t2}"); i += 1
    e(f"v_cmp_eq_u32 vcc, -1, v{v_t2}")
    e("s_nop 3")
    e("s_cmp_eq_u64 vcc, 0")

def stage3(a, slot_of):
    e = a.e
    a.c("================ stage 3 ================")
    D = 4
    lg = Lg(a)
    fifo = []
    cur = {}
    V0 = CFG["atv"]
    def assign(pc, sl):
        slot_of[pc] = sl
        for f in w2_ops(a, pc, sl):
            f.tag = f"Q{pc}"; fifo.append(f)
    def o_verify():
        a.wait_vm("O7")
        lp = a.newlabel("Lop"); ld = a.newlabel("Lod")
        e(f"s_mov_b32 s{s_cnt}, 0")
        a.label(lp)
        o_check(a)
        e(f"s_cbranch_scc1 {ld}")
        o_loads(a, track=False)
        e("s_waitcnt vmcnt(0)")
        e(f"s_add_u32 s{s_cnt}, s{s_cnt}, 1")
        e(f"s_cmp_lt_u32 s{s_cnt}, 100000")
        e(f"s_cbranch_scc1 {lp}")
        a.label(ld)
        stamp(a)
    def o_ops():
        ops = []
        for n in range(8):
            def f(n=n):
                a.e(f"s_add_u32 s{s_tmp}, s{s_a3o}, {n*4096}")
                a.vmem(f"buffer_load_dwordx4 {vr(AOreg(n),4)}, v{v_l16}, {srd(sWS)}, s{s_tmp} offen sc1", f"O{n}")
            f.tag = f"O{n}"
            ops.append(f)
        return ops
    syncs = {
        S3J: (["Q4", "Q5", "Q6", "Q7"], lambda: (assign(8, V0), assign(9, V0 + 1))),
        4: ([], lambda: (assign(10, slot_of[0]), assign(11, slot_of[1]), assign(12, slot_of[2]))),
        6: ([], lambda: (assign(13, slot_of[3]), assign(14, slot_of[4]), fifo.extend(o_ops()))),
        8: (["Q8", "Q9"], None),
        10: (["Q10", "Q11", "Q12"], None),
        13: (["Q13", "Q14"], None),
    }
    items = []
    for pc in range(15):
        for u in range(2):
            for ct in range(2):
                items.append((pc, u, ct))
    def rd(w):
        pc, u, ct = items[w]
        if u == 0 and ct == 0 and pc in syncs:
            tags, act = syncs[pc]
            while any(f.tag in tags for f in fifo): fifo.pop(0)()
            a.wait_vm(tags)
            e("s_barrier")
            if STAMPS2: stamp(a)
            if act: act()
        sl = slot_of[pc]
        vb = v_tr3b if ct else v_tr3
        off = sl*SLOT + u*8192
        if off + 1024 > 65535:
            r = v_t5 if ct else v_t4
            if cur.get(ct) != sl:
                e(f"v_add_u32 v{r}, {sl*SLOT}, v{vb}")
                cur[ct] = sl
            vb = r; off = u*8192
        b = BF3 + (w % 8)*4
        e(f"ds_read_b64_tr_b16 {vr(b,2)}, v{vb} offset:{off}")
        e(f"ds_read_b64_tr_b16 {vr(b+2,2)}, v{vb} offset:{off + 1024}")
        lg.add(w); lg.add(w)
    done = set(["Q4", "Q5", "Q6", "Q7"])
    for w in range(D): rd(w)
    for w in range(len(items)):
        if w + D < len(items):
            rd(w + D)
        pc, u, ct = items[w]
        if pc <= 10: af = AFreg(2*pc + u); tag = f"H{2*pc+u}"; acc = ACB; first = (pc == 0 and u == 0)
        else: af = AOreg(2*(pc-11) + u); tag = f"O{2*(pc-11)+u}"; acc = ACA; first = (pc == 11 and u == 0)
        if pc == 11 and u == 0 and ct == 0:
            while fifo: fifo.pop(0)()
            o_verify()
        a.wait_vm(tag)
        lg.wait([w])
        b = BF3 + (w % 8)*4
        mfma(a, acc + 16*ct, b, af, "0" if first else acc + 16*ct)
        if fifo: fifo.pop(0)()
        if pc >= 11:
            k = w - 44
            if k == 0:
                a.wait_vm("G")
                e(f"v_sub_f32 v{v_c2}, 1.0, v{v_g2}")
                e(f"v_cvt_pk_bf16_f32 v{v_c2}, v{v_c2}, v{v_c2}")
                e(f"v_lshlrev_b32 v{v_c2}, 16, v{v_c2}")
                e(f"v_mov_b32 v{v_c2+1}, v{v_c2}")
                e(f"v_mov_b32 v{v_g2+1}, v{v_g2}")
            elif 2 <= k < 10:
                for q in (2*(k-2), 2*(k-2)+1):
                    e(f"v_pk_mul_f32 v[{ACB+2*q}:{ACB+2*q+1}], v[{ACB+2*q}:{ACB+2*q+1}], v[{v_c2}:{v_c2+1}]")
    lg.drain()
    stamp(a)
    PS = [slot_of[p] for p in (5, 6, 7, 8)]
    e(f"s_cmp_eq_u32 s{s_rg}, 1"); e(f"s_movk_i32 s{s_tmp}, {PS[0]}"); e(f"s_cselect_b32 s{s_tmp}, {PS[1]}, s{s_tmp}")
    e(f"s_cmp_eq_u32 s{s_rg}, 2"); e(f"s_cselect_b32 s{s_tmp}, {PS[2]}, s{s_tmp}")
    e(f"s_cmp_eq_u32 s{s_rg}, 3"); e(f"s_cselect_b32 s{s_tmp}, {PS[3]}, s{s_tmp}")
    e(f"s_lshl_b32 s{s_tmp}, s{s_tmp}, 14")
    e(f"s_lshl_b32 s{s_tmp2}, s{s_cgp}, 13")
    e(f"s_add_u32 s{s_tmp}, s{s_tmp}, s{s_tmp2}")
    e(f"v_and_b32 v{v_t0}, 31, v{v_lane}")
    e(f"v_and_b32 v{v_t1}, 7, v{v_lane}")
    e(f"v_xor_b32 v{v_t1}, v{v_t1}, v{v_hi}")
    e(f"v_lshlrev_b32 v{v_t1}, 4, v{v_t1}")
    e(f"v_lshl_add_u32 v{v_t0}, v{v_t0}, 8, v{v_t1}")
    e(f"v_add_u32 v{v_t0}, s{s_tmp}, v{v_t0}")
    e("s_nop 4")
    for ct in range(2):
        for g4 in range(4):
            b0 = 16*ct + 4*g4
            for q in range(2):
                e(f"v_pk_fma_f32 v[{ACB+b0+2*q}:{ACB+b0+2*q+1}], v[{ACA+b0+2*q}:{ACA+b0+2*q+1}], v[{v_g2}:{v_g2+1}], v[{ACB+b0+2*q}:{ACB+b0+2*q+1}]")
            r = v_t2 + (g4 & 1)
            e(f"v_xor_b32 v{r}, {g4*32}, v{v_t0}")
            e(f"ds_write_b128 v{r}, {vr(ACB + b0, 4)} offset:{ct*128}")
    e(f"v_lshrrev_b32 v{v_t0}, 3, v0")
    e(f"v_and_b32 v{v_t1}, 7, v0")
    e(f"v_and_b32 v{v_t2}, 7, v{v_t0}")
    e(f"v_lshlrev_b32 v{v_t3}, 1, v{v_t1}")
    e(f"v_xor_b32 v{v_t2}, v{v_t2}, v{v_t3}")
    e(f"v_lshlrev_b32 v{v_t2}, 4, v{v_t2}")
    e(f"v_lshl_add_u32 v{v_t2}, v{v_t0}, 8, v{v_t2}")
    e(f"v_xor_b32 v{v_t3}, 16, v{v_t2}")
    e(f"v_add_u32 v{v_t4}, 0x10000, v{v_t2}")
    e(f"v_add_u32 v{v_t5}, 0x10000, v{v_t3}")
    e(f"v_add_u32 v{v_trn}, 0x20000, v{v_t2}")
    e(f"v_add_u32 v{v_trw}, 0x20000, v{v_t3}")
    e(f"v_lshlrev_b32 v{v_t0}, 10, v{v_t0}")
    e(f"v_lshl_add_u32 v{v_t0}, v{v_t1}, 4, v{v_t0}")
    e(f"s_lshl_b32 s{s_tmp}, s{s_rb3}, 16")
    e(f"s_lshl_b32 s{s_tmp2}, s{s_cb3}, 7")
    e(f"s_add_u32 s{s_tmp}, s{s_tmp}, s{s_tmp2}")
    e("s_waitcnt lgkmcnt(0)")
    e("s_barrier")
    for kq in range(4):
        off = PS[kq]*SLOT
        ra, rb_ = ((v_t2, v_t3), (v_t4, v_t5), (v_trn, v_trw))[off >> 16]
        e(f"ds_read_b128 {vr(64 + 8*kq, 4)}, v{ra} offset:{off & 0xffff}")
        e(f"ds_read_b128 {vr(68 + 8*kq, 4)}, v{rb_} offset:{off & 0xffff}")
    e("s_waitcnt lgkmcnt(4)")
    for q in range(4):
        e(f"v_pk_add_f32 v[{64+2*q}:{65+2*q}], v[{64+2*q}:{65+2*q}], v[{72+2*q}:{73+2*q}]")
    e("s_waitcnt lgkmcnt(0)")
    for q in range(4):
        e(f"v_pk_add_f32 v[{80+2*q}:{81+2*q}], v[{80+2*q}:{81+2*q}], v[{88+2*q}:{89+2*q}]")
    for q in range(4):
        e(f"v_pk_add_f32 v[{64+2*q}:{65+2*q}], v[{64+2*q}:{65+2*q}], v[{80+2*q}:{81+2*q}]")
    for q in range(4):
        e(f"v_cvt_pk_bf16_f32 v{64+q}, v{64+2*q}, v{65+2*q}")
    e(f"buffer_store_dwordx4 v[64:67], v{v_t0}, {srd(sOUT)}, s{s_tmp} offen {os.environ.get('GEN_OST','sc1').replace('_',' ')}")
    stamp(a, final=True)

def common_setup(a):
    e = a.e
    l = a.newlabel("Lcas")
    e(f"s_or_b32 s{s_nonce}, s{s_nonce}, 1")
    e(f"s_or_b32 s{s_tmp}, s{s_wv}, s2")
    e(f"s_cmp_lg_u32 s{s_tmp}, 0")
    e(f"s_cbranch_scc1 {l}")
    e(f"v_mov_b32 v{v_non}, s{s_nonce}")
    e(f"v_mov_b32 v{v_non+1}, s{s_nonce+1}")
    e(f"v_mov_b32 v{v_t4}, 0")
    e(f"s_mov_b64 s[{s_exec}:{s_exec+1}], exec")
    e("s_mov_b64 exec, 1")
    e(f"buffer_store_dwordx2 {vr(v_non,2)}, v{v_t4}, {srd(sDBG)}, 0 offen sc1")
    e(f"s_mov_b64 exec, s[{s_exec}:{s_exec+1}]")
    a.label(l)
    e(f"s_lshl_b32 s{s_tmp}, s{s_rb}, 2")
    e(f"s_add_u32 s{s_tmp}, s{s_tmp}, s{s_rg}")
    e(f"s_lshl_b32 s{s_oa}, s{s_tmp}, 15")
    e(f"s_lshl_b32 s{s_tmp2}, s{s_cg}, 1")
    e(f"s_add_u32 s{s_tmp2}, s{s_tmp2}, s{s_cgp}")
    e(f"s_lshl_b32 s{s_tmp2}, s{s_tmp2}, 10")
    e(f"s_add_u32 s{s_oa}, s{s_oa}, s{s_tmp2}")
    e(f"s_add_u32 s{s_oa}, s{s_oa}, {OF}")
    if env("GEN_SENTU", 0) == 0:
        for i in range(4): e(f"v_mov_b32 v{ACC+i}, -1")
        a.vmem(f"buffer_store_dwordx4 {vr(ACC,4)}, v{v_l16}, {srd(sWS)}, s{s_oa} offen sc1", "SENT")
    e(f"v_and_b32 v{v_t0}, 31, v{v_lane}")
    e(f"v_lshrrev_b32 v{v_hi}, 5, v{v_lane}")
    e(f"v_and_b32 v{v_t1}, 15, v{v_lane}")
    e(f"v_xor_b32 v{v_t1}, v{v_t1}, v{v_hi}")
    e(f"v_lshlrev_b32 v{v_t1}, 4, v{v_t1}")
    e(f"v_lshl_add_u32 v{v_xrd}, v{v_t0}, 8, v{v_t1}")
    e(f"s_lshl_b32 s{s_tmp}, s{s_rg}, 13")
    e(f"v_add_u32 v{v_xrd}, s{s_tmp}, v{v_xrd}")
    e(f"v_and_b32 v{v_t0}, 15, v{v_lane}")
    e(f"v_lshrrev_b32 v{v_t1}, 2, v{v_t0}")
    e(f"v_bfe_u32 v{v_t2}, v{v_lane}, 4, 1")
    e(f"v_bfe_u32 v{v_t3}, v{v_lane}, 1, 1")
    e(f"v_lshl_add_u32 v{v_t2}, v{v_t2}, 1, v{v_t3}")
    e(f"v_and_b32 v{v_t3}, 1, v{v_lane}")
    e(f"v_lshlrev_b32 v{v_t3}, 3, v{v_t3}")
    e(f"v_lshl_add_u32 v{v_t2}, v{v_t2}, 4, v{v_t3}")
    e(f"v_lshrrev_b32 v{v_t3}, 1, v{v_t1}")
    e(f"v_xor_b32 v{v_t4}, s{s_cgp}, v{v_t3}")
    e(f"v_lshl_add_u32 v{v_t4}, v{v_t4}, 6, v{v_t2}")
    e(f"v_lshl_add_u32 v{v_t5}, v{v_hi}, 3, v{v_t1}")
    e(f"v_lshl_add_u32 v{v_trn}, v{v_t5}, 7, v{v_t4}")
    e(f"s_cmp_eq_u32 s{s_cgp}, 0")
    e(f"s_movk_i32 s{s_tmp}, 192")
    e(f"s_cselect_b32 s{s_tmp}, 64, s{s_tmp}")
    e(f"s_lshl_b32 s{s_k16}, s{s_tmp}, 4")
    e(f"s_lshl_b32 s{s_tmp2}, s{s_cgp}, 12")
    e(f"v_mad_u32_u24 v{v_trw}, v{v_t5}, s{s_tmp}, v{v_t2}")
    e(f"v_add_u32 v{v_trw}, s{s_tmp2}, v{v_trw}")
    e(f"s_lshl_b32 s{s_tmp}, s{s_tmp}, 2")
    e(f"v_add_u32 v{v_omg2}, s{s_tmp}, v{v_trw}")
    e(f"s_movk_i32 s{s_tmp}, 192")
    e(f"v_mad_u32_u24 v{v_trw2}, v{v_t5}, s{s_tmp}, v{v_t2}")
    e(f"s_lshl_b32 s{s_tmp2}, s{s_cgp}, 6")
    e(f"s_add_u32 s{s_tmp2}, s{s_tmp2}, {4096 + 64}")
    e(f"v_add_u32 v{v_trw2}, s{s_tmp2}, v{v_trw2}")
    e(f"v_lshl_add_u32 v{v_t4}, v{v_t3}, 6, v{v_t2}")
    e(f"v_lshl_add_u32 v{v_t5}, v{v_hi}, 2, v{v_t1}")
    e(f"v_lshl_add_u32 v{v_tr3}, v{v_t5}, 7, v{v_t4}")
    e(f"s_lshl_b32 s{s_tmp}, s{s_rg}, 11")
    e(f"v_add_u32 v{v_tr3}, s{s_tmp}, v{v_tr3}")
    e(f"v_xor_b32 v{v_tr3b}, 64, v{v_tr3}")

def wide_setup(a):
    e = a.e
    lq = a.newlabel("Lwq"); lj = a.newlabel("Lwj")
    e(f"s_cmp_lt_u32 s{s_wv}, 2")
    e(f"s_cbranch_scc1 {lq}")
    e(f"s_mov_b32 s{sPW}, s{sW1}"); e(f"s_mov_b32 s{sPW+1}, s{sW1+1}"); e(f"s_mov_b32 s{sPW+2}, {512*1376*2}"); e(f"s_mov_b32 s{sPW+3}, 0x00020000")
    e(f"s_sub_u32 s{s_tmp}, s{s_wv}, 2")
    e(f"s_lshl_b32 s{s_tmp}, s{s_tmp}, 7")
    e(f"s_movk_i32 s{s_tmp3}, 2752")
    e(f"s_movk_i32 s{s_tmp4}, 5462")
    for t in range(2):
        e(f"v_add_u32 v{v_t0}, s{s_tmp}, v{v_lane}")
        if t: e(f"v_add_u32 v{v_t0}, 64, v{v_t0}")
        e(f"v_mul_u32_u24 v{v_t1}, s{s_tmp4}, v{v_t0}")
        e(f"v_lshrrev_b32 v{v_t1}, 16, v{v_t1}")
        e(f"v_mul_u32_u24 v{v_t2}, 12, v{v_t1}")
        e(f"v_sub_u32 v{v_t0}, v{v_t0}, v{v_t2}")
        e(f"v_lshlrev_b32 v{v_t0}, 4, v{v_t0}")
        e(f"v_mad_u32_u24 v{v_wd0+t}, v{v_t1}, s{s_tmp3}, v{v_t0}")
    e(f"s_mul_i32 s{s_wbase}, s{s_cg}, 192")
    e(f"s_cmp_eq_u32 s{s_cg}, 15")
    e(f"s_cselect_b32 s{s_wbase}, {OOB}, s{s_wbase}")
    e(f"s_mov_b32 s{s_pstep}, {64*2752}")
    e(f"s_branch {lj}")
    a.label(lq)
    e(f"s_mov_b32 s{sPW}, s{sWQ}"); e(f"s_mov_b32 s{sPW+1}, s{sWQ+1}"); e(f"s_mov_b32 s{sPW+2}, {512*1536*2}"); e(f"s_mov_b32 s{sPW+3}, 0x00020000")
    e(f"s_lshl_b32 s{s_tmp}, s{s_wv}, 5")
    e(f"s_movk_i32 s{s_tmp3}, 3072")
    e(f"v_lshrrev_b32 v{v_t1}, 2, v{v_lane}")
    e(f"v_add_u32 v{v_t1}, s{s_tmp}, v{v_t1}")
    e(f"v_and_b32 v{v_t0}, 3, v{v_lane}")
    e(f"v_lshlrev_b32 v{v_t0}, 4, v{v_t0}")
    e(f"v_mad_u32_u24 v{v_wd0}, v{v_t1}, s{s_tmp3}, v{v_t0}")
    e(f"v_add_u32 v{v_wd1}, {16*3072}, v{v_wd0}")
    e(f"s_lshl_b32 s{s_wbase}, s{s_cg}, 6")
    e(f"s_mov_b32 s{s_pstep}, {64*3072}")
    a.label(lj)

def gen():
    a = Asm()
    e = a.e
    e("s_cmp_ge_u32 s2, 256")
    e("s_cbranch_scc1 L_exit")
    stamp(a)
    e("s_load_dwordx4 s[8:11], s[0:1], 0")
    e("s_load_dwordx2 s[24:25], s[0:1], 16")
    e("s_load_dwordx4 s[16:19], s[0:1], 32")
    e("s_load_dwordx4 s[36:39], s[0:1], 48")
    e("s_load_dwordx4 s[40:43], s[0:1], 64")
    e(f"s_memrealtime s[{s_nonce}:{s_nonce+1}]")
    e(f"v_and_b32 v{v_lane}, 63, v0")
    e(f"v_lshrrev_b32 v{v_t0}, 6, v0")
    e(f"v_lshlrev_b32 v{v_l16}, 4, v{v_lane}")
    e(f"v_readfirstlane_b32 s{s_wv}, v{v_t0}")
    e(f"s_and_b32 s{s_tmp}, s2, 7")
    e(f"s_lshr_b32 s{s_tmp2}, s2, 3")
    e(f"s_and_b32 s{s_rb}, s{s_tmp}, 1")
    e(f"s_lshl_b32 s{s_rb}, s{s_rb}, 3")
    e(f"s_and_b32 s{s_tmp3}, s{s_tmp2}, 7")
    e(f"s_add_u32 s{s_rb}, s{s_rb}, s{s_tmp3}")
    e(f"s_lshr_b32 s{s_cg}, s{s_tmp}, 1")
    e(f"s_lshl_b32 s{s_cg}, s{s_cg}, 2")
    e(f"s_lshr_b32 s{s_tmp3}, s{s_tmp2}, 3")
    e(f"s_add_u32 s{s_cg}, s{s_cg}, s{s_tmp3}")
    e(f"s_lshr_b32 s{s_p}, s{s_cg}, 1")
    e(f"s_and_b32 s{s_t}, s{s_cg}, 1")
    e(f"s_lshl_b32 s{s_rb3}, s{s_tmp}, 2")
    e(f"s_and_b32 s{s_tmp3}, s{s_tmp2}, 3")
    e(f"s_add_u32 s{s_rb3}, s{s_rb3}, s{s_tmp3}")
    e(f"s_lshr_b32 s{s_cb3}, s{s_tmp2}, 2")
    e(f"s_and_b32 s{s_rg}, s{s_wv}, 3")
    e(f"s_lshr_b32 s{s_cgp}, s{s_wv}, 2")
    e(f"s_lshl_b32 s{s_ldsw}, s{s_wv}, 11")
    e(f"s_lshl_b32 s{s_xlds}, s{s_wv}, 12")
    e(f"s_lshl_b32 s{s_xbase}, s{s_rb}, 17")
    e(f"s_lshl_b32 s{s_tmp3}, s{s_wv}, 14")
    e(f"s_add_u32 s{s_xbase}, s{s_xbase}, s{s_tmp3}")
    if STAMPS:
        e(f"s_lshl_b32 s{s_tsb}, s2, 3")
        e(f"s_add_u32 s{s_tsb}, s{s_tsb}, s{s_wv}")
        e(f"s_lshl_b32 s{s_tsb}, s{s_tsb}, 7")
        e(f"s_add_u32 s{s_tsb}, s{s_tsb}, {TS}")
    e(f"v_lshrrev_b32 v{v_t0}, 4, v{v_lane}")
    e(f"v_and_b32 v{v_t1}, 15, v{v_lane}")
    e(f"v_xor_b32 v{v_t1}, v{v_t1}, v{v_t0}")
    e(f"v_lshlrev_b32 v{v_t0}, 10, v{v_t0}")
    for t in range(4):
        e(f"v_xor_b32 v{v_t2}, {4*t}, v{v_t1}")
        e(f"v_lshl_add_u32 v{v_xo+t}, v{v_t2}, 4, v{v_t0}")
    e(f"v_lshrrev_b32 v{v_t0}, 3, v{v_lane}")
    e(f"v_and_b32 v{v_t1}, 7, v{v_lane}")
    e(f"v_lshrrev_b32 v{v_t2}, 2, v{v_lane}")
    e(f"v_and_b32 v{v_t2}, 4, v{v_t2}")
    e(f"v_xor_b32 v{v_t1}, v{v_t1}, v{v_t2}")
    e(f"v_lshlrev_b32 v{v_t1}, 4, v{v_t1}")
    e(f"s_movk_i32 s{s_tmp3}, 3072")
    e(f"v_mad_u32_u24 v{v_wq_n}, v{v_t0}, s{s_tmp3}, v{v_t1}")
    e(f"v_lshl_add_u32 v{v_w2_n}, v{v_t0}, 10, v{v_t1}")
    e(f"s_mul_i32 s{s_naroff}, s{s_wv}, {16*3072}")
    e(f"s_lshl_b32 s{s_tmp3}, s{s_p}, 7")
    e(f"s_add_u32 s{s_naroff}, s{s_naroff}, s{s_tmp3}")
    e(f"s_lshl_b32 s{s_tmp3}, s{s_t}, 10")
    e(f"s_add_u32 s{s_naroff}, s{s_naroff}, s{s_tmp3}")
    e(f"s_add_u32 s{s_naroff}, s{s_naroff}, 1024")
    e(f"s_lshl_b32 s{s_tmp3}, s{s_p}, 1")
    e(f"s_add_u32 s{s_tmp3}, s{s_tmp3}, s{s_cgp}")
    e(f"s_lshl_b32 s{s_tmp3}, s{s_tmp3}, 6")
    e(f"s_lshl_b32 s{s_tmp4}, s{s_rb}, 2")
    e(f"s_add_u32 s{s_tmp4}, s{s_tmp4}, s{s_rg}")
    e(f"s_add_u32 s{s_tmp3}, s{s_tmp3}, s{s_tmp4}")
    e(f"s_lshl_b32 s{s_st0}, s{s_tmp3}, 11")
    e(f"s_lshl_b32 s{s_tmp3}, s{s_t}, 21")
    e(f"s_add_u32 s{s_st0}, s{s_st0}, s{s_tmp3}")
    e(f"s_add_u32 s{s_st0}, s{s_st0}, {KF}")
    e(f"s_mul_i32 s{s_tmp4}, s{s_tmp4}, {HROW}")
    e(f"s_add_u32 s{s_tmp4}, s{s_tmp4}, {HF}")
    e(f"s_mul_i32 s{s_tmp3}, s{s_cg}, 3")
    e(f"s_lshl_b32 s{s_st1}, s{s_tmp3}, 11")
    e(f"s_add_u32 s{s_st1}, s{s_st1}, s{s_tmp4}")
    e(f"s_cmp_ge_u32 s{s_tmp3}, 43")
    e(f"s_cselect_b32 s{s_st1}, {OOB}, s{s_st1}")
    e(f"s_cmp_eq_u32 s{s_cgp}, 0")
    e(f"s_cselect_b32 s{s_st1}, {OOB}, s{s_st1}")
    e(f"s_add_u32 s{s_tmp3}, s{s_tmp3}, s{s_cgp}")
    e(f"s_add_u32 s{s_tmp3}, s{s_tmp3}, 1")
    e(f"s_lshl_b32 s{s_st2}, s{s_tmp3}, 11")
    e(f"s_add_u32 s{s_st2}, s{s_st2}, s{s_tmp4}")
    e(f"s_cmp_ge_u32 s{s_tmp3}, 43")
    e(f"s_cselect_b32 s{s_st2}, {OOB}, s{s_st2}")
    e(f"s_lshl_b32 s{s_w2off}, s{s_wv}, 14")
    e(f"s_lshl_b32 s{s_tmp3}, s{s_cb3}, 7")
    e(f"s_add_u32 s{s_w2off}, s{s_w2off}, s{s_tmp3}")
    e("s_waitcnt lgkmcnt(0)")
    e("s_mov_b32 s12, s10"); e("s_mov_b32 s13, s11"); e(f"s_mov_b32 s14, {512*1536*2}"); e("s_mov_b32 s15, 0x00020000")
    e(f"s_mov_b32 s10, {2048*512*2}"); e("s_mov_b32 s11, 0x00020000")
    e("s_mov_b32 s32, s38"); e("s_mov_b32 s33, s39"); e(f"s_mov_b32 s34, {2048*512*2}"); e("s_mov_b32 s35, 0x00020000")
    e("s_mov_b32 s38, 1024"); e("s_mov_b32 s39, 0x00020000")
    e(f"s_mov_b32 s{s_ldsww}, 0")
    e(f"s_mov_b32 s{s_gw}, 0")
    lg_ = a.newlabel("Lgs")
    e(f"s_cmp_lg_u32 s{s_cg}, 15")
    e(f"s_cbranch_scc1 {lg_}")
    e(f"s_cmp_lt_u32 s{s_wv}, 2")
    e(f"s_cbranch_scc1 {lg_}")
    e(f"s_mov_b32 s{s_ldsww}, 0x30000")
    e(f"s_cmp_lg_u32 s{s_wv}, 2")
    e(f"s_cbranch_scc1 {lg_}")
    e(f"s_mov_b32 s{s_gw}, 1")
    e(f"v_lshlrev_b32 v{v_t0}, 1, v{v_lane}")
    for j in range(8):
        e(f"buffer_load_ushort v{GREG+j}, v{v_t0}, {srd(sGW)}, 0 offen offset:{j*128}")
    e(f"s_movk_i32 s{s_tmp3}, 192")
    e(f"v_mul_u32_u24 v{v_g2}, s{s_tmp3}, v{v_lane}")
    a.label(lg_)
    e("s_mov_b32 s20, s18"); e("s_mov_b32 s21, s19"); e(f"s_mov_b32 s22, {1376*512*2}"); e("s_mov_b32 s23, 0x00020000")
    e(f"s_mov_b32 s18, {512*1376*2}"); e("s_mov_b32 s19, 0x00020000")
    if TOUCH in (2, 9): touch(a, (sWQ, sW1) if env('GEN_NOX',0) else (sX, sWQ, sW1), 224)
    if TOUCH == 4: touch_l2(a)
    if TOUCH == 10: touch_xcd(a)
    issue_x_quarter(a, 0)
    issue_piece(a, 0, CFG['init'][0])
    if TOUCH == 3: touch(a, (sX, sWQ, sW1), 224)
    if TOUCH == 5: touch_l2(a)
    if TOUCH == 11: touch_xcd(a)
    e(f"s_mov_b32 s26, {512*512*2}"); e("s_mov_b32 s27, 0x00020000")
    e("s_mov_b32 s28, s42"); e("s_mov_b32 s29, s43"); e(f"s_mov_b32 s30, {WS_BYTES}"); e("s_mov_b32 s31, 0x00020000")
    e("s_mov_b32 s42, 256"); e("s_mov_b32 s43, 0x00020000")
    if env("GEN_TLB", 2): tlb_warm(a, env("GEN_TLB", 2))
    if env("GEN_CPF", 0):
        e(f"s_getpc_b64 s[{s_m2}:{s_m2+1}]")
        a.label("L_pc")
        e(f"s_lshr_b32 s{s_tmp}, s2, 3")
        e(f"s_lshl_b32 s{s_tmp}, s{s_tmp}, 3")
        e(f"s_add_u32 s{s_tmp}, s{s_tmp}, s{s_wv}")
        e(f"s_lshl_b32 s{s_tmp}, s{s_tmp}, 6")
        e(f"s_load_dword s{s_cnt}, s[{s_m2}:{s_m2+1}], s{s_tmp}")
        e(f"s_lshr_b32 s{s_tmp}, s{s_tmp}, 2")
        e(f"s_and_b32 s{s_tmp}, s{s_tmp}, 0xfc0")
        e(f"s_add_u32 s{s_tmp}, s{s_tmp}, 16384")
        e(f"s_min_u32 s{s_tmp}, s{s_tmp}, L_exit-L_pc")
        e(f"s_load_dword s{s_cnt}, s[{s_m2}:{s_m2+1}], s{s_tmp}")
    if TOUCH == 9: touch(a, (sW2, sWO), 240)
    if TOUCH == 7: touch_scalar(a, "xq12o")
    if TOUCH == 8: touch_scalar(a, "xq1")
    stamp(a)
    if env("GEN_ST3",0): stamp(a)
    common_setup(a)
    wide_setup(a)
    if env("GEN_ST3",0): stamp(a)
    kv_flag_setup(a)
    lm_ = a.newlabel("Lmk")
    e(f"s_cmp_lg_u32 s{s_gw}, 0")
    e(f"s_cbranch_scc1 {lm_}")
    build_maskd(a)
    a.label(lm_)
    if env("GEN_ST3",0): stamp(a)
    e("s_barrier")
    issue_x_quarter(a, 1)
    issue_piece(a, 1, CFG['init'][1])
    e(f"s_cmp_lg_u32 s{s_t}, 0")
    e("s_cbranch_scc1 L_s1v")
    w2_slot = run_stage1(a)
    stamp(a)
    attention(a, w2_slot)
    stage3(a, w2_slot)
    a.label("L_exit")
    a.e("s_endpgm")
    return a

def touch(a, srds, T):
    e = a.e
    e(f"s_lshl_b32 s{s_tmp}, s2, 3")
    e(f"s_add_u32 s{s_tmp}, s{s_tmp}, s{s_wv}")
    e(f"s_lshl_b32 s{s_tmp}, s{s_tmp}, 10")
    for i, sr in enumerate(srds):
        a.vmem(f"buffer_load_dwordx4 {vr(T+4*i,4)}, v{v_l16}, {srd(sr)}, s{s_tmp} offen", "TCH")

def touch_l2(a):
    e = a.e
    T = 224
    lx = a.newlabel("Ltx"); lk = a.newlabel("Ltk"); lq = a.newlabel("Ltq"); lj = a.newlabel("Ltj")
    e(f"s_lshr_b32 s{s_tmp}, s2, 3")
    e(f"s_and_b32 s{s_tmp2}, s2, 7")
    e(f"s_lshr_b32 s{s_tmp3}, s{s_tmp2}, 1")
    e(f"s_cmp_lt_u32 s{s_wv}, 4")
    e(f"s_cbranch_scc1 {lx}")
    e(f"s_cmp_eq_u32 s{s_wv}, 4")
    e(f"s_cbranch_scc1 {lk}")
    e(f"s_cmp_eq_u32 s{s_wv}, 5")
    e(f"s_cbranch_scc1 {lq}")
    e(f"s_sub_u32 s{s_tmp4}, s{s_wv}, 6")
    e(f"s_lshl_b32 s{s_tmp4}, s{s_tmp4}, 3")
    e(f"s_lshl_b32 s{s_tmp}, s{s_tmp}, 4")
    e(f"s_add_u32 s{s_tmp}, s{s_tmp}, s{s_tmp4}")
    e(f"s_mul_i32 s{s_tmp}, s{s_tmp}, 2752")
    e(f"s_mul_i32 s{s_tmp3}, s{s_tmp3}, 768")
    e(f"s_add_u32 s{s_tmp}, s{s_tmp}, s{s_tmp3}")
    e(f"v_lshrrev_b32 v{v_t0}, 3, v{v_lane}")
    e(f"s_movk_i32 s{s_tmp4}, 2752")
    e(f"v_mul_u32_u24 v{v_t0}, s{s_tmp4}, v{v_t0}")
    e(f"v_and_b32 v{v_t1}, 7, v{v_lane}")
    e(f"v_min_u32 v{v_t1}, 6, v{v_t1}")
    e(f"v_lshl_add_u32 v{v_t0}, v{v_t1}, 7, v{v_t0}")
    e(f"buffer_load_dword v{T}, v{v_t0}, {srd(sW1)}, s{s_tmp} offen")
    e(f"s_branch {lj}")
    a.label(lx)
    e(f"s_and_b32 s{s_tmp2}, s{s_tmp2}, 1")
    e(f"s_lshl_b32 s{s_tmp2}, s{s_tmp2}, 20")
    e(f"s_lshl_b32 s{s_tmp}, s{s_tmp}, 15")
    e(f"s_add_u32 s{s_tmp}, s{s_tmp}, s{s_tmp2}")
    e(f"s_lshl_b32 s{s_tmp2}, s{s_wv}, 8")
    e(f"s_add_u32 s{s_tmp}, s{s_tmp}, s{s_tmp2}")
    e(f"v_lshrrev_b32 v{v_t0}, 1, v{v_lane}")
    e(f"v_lshlrev_b32 v{v_t0}, 10, v{v_t0}")
    e(f"v_and_b32 v{v_t1}, 1, v{v_lane}")
    e(f"v_lshl_add_u32 v{v_t0}, v{v_t1}, 7, v{v_t0}")
    e(f"buffer_load_dword v{T}, v{v_t0}, {srd(sX)}, s{s_tmp} offen")
    e(f"s_branch {lj}")
    a.label(lk)
    e(f"s_mul_i32 s{s_tmp}, s{s_tmp}, {16*3072}")
    e(f"s_lshl_b32 s{s_tmp3}, s{s_tmp3}, 8")
    e(f"s_add_u32 s{s_tmp}, s{s_tmp}, s{s_tmp3}")
    e(f"s_add_u32 s{s_tmp}, s{s_tmp}, 1024")
    e(f"v_lshrrev_b32 v{v_t0}, 2, v{v_lane}")
    e(f"s_movk_i32 s{s_tmp4}, 3072")
    e(f"v_mul_u32_u24 v{v_t0}, s{s_tmp4}, v{v_t0}")
    e(f"v_and_b32 v{v_t1}, 1, v{v_lane}")
    e(f"v_lshl_add_u32 v{v_t0}, v{v_t1}, 10, v{v_t0}")
    e(f"v_bfe_u32 v{v_t1}, v{v_lane}, 1, 1")
    e(f"v_lshl_add_u32 v{v_t0}, v{v_t1}, 7, v{v_t0}")
    e(f"buffer_load_dword v{T}, v{v_t0}, {srd(sWQ)}, s{s_tmp} offen")
    e(f"s_branch {lj}")
    a.label(lq)
    e(f"s_mul_i32 s{s_tmp}, s{s_tmp}, {16*3072}")
    e(f"s_lshl_b32 s{s_tmp3}, s{s_tmp3}, 8")
    e(f"s_add_u32 s{s_tmp}, s{s_tmp}, s{s_tmp3}")
    e(f"v_bfe_u32 v{v_t0}, v{v_lane}, 1, 4")
    e(f"s_movk_i32 s{s_tmp4}, 3072")
    e(f"v_mul_u32_u24 v{v_t0}, s{s_tmp4}, v{v_t0}")
    e(f"v_and_b32 v{v_t1}, 1, v{v_lane}")
    e(f"v_lshl_add_u32 v{v_t0}, v{v_t1}, 7, v{v_t0}")
    e(f"buffer_load_dword v{T}, v{v_t0}, {srd(sWQ)}, s{s_tmp} offen")
    a.label(lj)
    a.vm.append("TCH")

def touch_l2_s3(a, part, nparts):
    e = a.e
    T = v_xo + 3
    l1 = a.newlabel("Lt3"); lj = a.newlabel("Lt3j")
    n = 64 // nparts
    mask = ((1 << n) - 1) << (n * part)
    e(f"s_lshr_b32 s{s_tmp}, s2, 3")
    e(f"s_lshl_b32 s{s_tmp}, s{s_tmp}, 3")
    e(f"s_add_u32 s{s_tmp}, s{s_tmp}, s{s_wv}")
    e(f"s_mul_i32 s{s_tmp}, s{s_tmp}, {n*128}")
    e(f"s_add_u32 s{s_tmp}, s{s_tmp}, {part * 256 * n * 128 - part*n*128}")
    e(f"v_lshlrev_b32 v{v_t2}, 7, v{v_lane}")
    e(f"s_mov_b32 exec_lo, 0x{mask & 0xffffffff:x}")
    e(f"s_mov_b32 exec_hi, 0x{mask >> 32:x}")
    lim = 1376*1024
    if (part + 1) * 256 * n * 128 <= 0x180000:
        e(f"buffer_load_dword v{T}, v{v_t2}, {srd(sW2)}, s{s_tmp} offen")
    else:
        e(f"s_sub_u32 s{s_tmp}, s{s_tmp}, 0x180000")
        e(f"buffer_load_dword v{T}, v{v_t2}, {srd(sWO)}, s{s_tmp} offen")
    e("s_mov_b64 exec, -1")
    a.vm.append("TCH")

def touch_scalar(a, which):
    e = a.e
    e(f"s_lshl_b32 s{s_tmp}, s2, 3")
    e(f"s_add_u32 s{s_tmp}, s{s_tmp}, s{s_wv}")
    tab = {"x": (sX, 8), "q": (sWQ, 6), "1": (sW1, 6), "2": (sW2, 6), "o": (sWO, 2)}
    for w in which:
        sr, n = tab[w]
        e(f"s_mul_i32 s{s_tmp2}, s{s_tmp}, {n*128}")
        for i in range(n):
            e(f"s_buffer_load_dword s{s_cnt}, {srd(sr)}, s{s_tmp2} offset:{i*128}")

def tlb_warm(a, mode):
    e = a.e
    e(f"s_lshl_b32 s{s_tmp}, s{s_wv}, 21")
    e(f"s_buffer_load_dword s{s_cnt}, {srd(sWS)}, s{s_tmp}")
    e(f"s_add_u32 s{s_tmp}, s{s_tmp}, 0x100000")
    e(f"s_buffer_load_dword s{s_cnt}, {srd(sWS)}, s{s_tmp}")
    e(f"s_lshl_b32 s{s_tmp}, s{s_wv}, 18")
    e(f"s_buffer_load_dword s{s_cnt}, {srd(sOUT)}, s{s_tmp}")
    if mode >= 2:
        e(f"s_buffer_load_dword s{s_cnt}, {srd(sW2)}, s{s_tmp}")
        e(f"s_buffer_load_dword s{s_cnt}, {srd(sWO)}, s{s_tmp}")
        e(f"s_buffer_load_dword s{s_cnt}, {srd(sDBG)}, 128")

def tlb_warm_v(a):
    e = a.e
    l = a.newlabel("Ltlb")
    e(f"s_cmp_lg_u32 s{s_wv}, 7")
    e(f"s_cbranch_scc1 {l}")
    e(f"v_lshlrev_b32 v{v_t2}, 20, v{v_lane}")
    e("s_mov_b64 exec, 0xffff")
    e(f"buffer_load_dword v{v_xo}, v{v_t2}, {srd(sWS)}, 0 offen")
    e("s_mov_b64 exec, 0xff")
    e(f"v_lshlrev_b32 v{v_t2}, 18, v{v_lane}")
    e(f"buffer_load_dword v{v_xo+1}, v{v_t2}, {srd(sOUT)}, 0 offen")
    e("s_mov_b64 exec, -1")
    a.label(l)

def touch_xcd(a):
    e = a.e
    T = 224
    e(f"s_lshr_b32 s{s_tmp}, s2, 3")
    e(f"s_lshl_b32 s{s_tmp}, s{s_tmp}, 3")
    e(f"s_add_u32 s{s_tmp}, s{s_tmp}, s{s_wv}")
    e(f"s_and_b32 s{s_tmp2}, s2, 1")
    e(f"s_bfe_u32 s{s_tmp3}, s2, 0x20001")
    e(f"s_lshl_b32 s{s_tmp4}, s{s_tmp2}, 2")
    e(f"s_add_u32 s{s_tmp4}, s{s_tmp4}, s{s_tmp3}")
    e(f"s_lshl_b32 s{s_tmp4}, s{s_tmp4}, 8")
    e(f"s_add_u32 s{s_tmp4}, s{s_tmp4}, s{s_tmp}")
    e(f"s_lshl_b32 s{s_tmp4}, s{s_tmp4}, 10")
    a.vmem(f"buffer_load_dwordx4 {vr(T,4)}, v{v_l16}, {srd(sX)}, s{s_tmp4} offen", "TCH")
    e(f"v_lshrrev_b32 v{v_t0}, 4, v{v_lane}")
    e(f"s_movk_i32 s{s_tmp4}, 3072")
    e(f"v_mul_u32_u24 v{v_t0}, s{s_tmp4}, v{v_t0}")
    e(f"v_and_b32 v{v_t1}, 15, v{v_lane}")
    e(f"v_lshl_add_u32 v{v_t0}, v{v_t1}, 4, v{v_t0}")
    e(f"s_and_b32 s{s_tmp4}, s{s_tmp}, 63")
    e(f"s_lshl_b32 s{s_cnt}, s{s_tmp2}, 6")
    e(f"s_add_u32 s{s_tmp4}, s{s_tmp4}, s{s_cnt}")
    e(f"s_mul_i32 s{s_tmp4}, s{s_tmp4}, {4*3072}")
    e(f"s_lshr_b32 s{s_cnt}, s{s_tmp}, 6")
    e(f"s_sub_u32 s{s_cnt}, 2, s{s_cnt}")
    e(f"s_lshl_b32 s{s_cnt}, s{s_cnt}, 10")
    e(f"s_add_u32 s{s_tmp4}, s{s_tmp4}, s{s_cnt}")
    e(f"s_lshl_b32 s{s_cnt}, s{s_tmp3}, 8")
    e(f"s_add_u32 s{s_tmp4}, s{s_tmp4}, s{s_cnt}")
    e(f"s_cmp_ge_u32 s{s_tmp}, 192")
    e(f"s_cselect_b32 s{s_tmp4}, {OOB}, s{s_tmp4}")
    a.vmem(f"buffer_load_dwordx4 {vr(T+4,4)}, v{v_t0}, {srd(sWQ)}, s{s_tmp4} offen", "TCH")
    e(f"s_lshl_b32 s{s_tmp4}, s{s_tmp2}, 8")
    e(f"s_add_u32 s{s_tmp4}, s{s_tmp4}, s{s_tmp}")
    e(f"s_mul_i32 s{s_tmp4}, s{s_tmp4}, 2752")
    e(f"s_mul_i32 s{s_cnt}, s{s_tmp3}, 768")
    e(f"s_add_u32 s{s_tmp4}, s{s_tmp4}, s{s_cnt}")
    e(f"s_and_b32 s{s_tmp4}, s{s_tmp4}, 0xffffff80")
    e("s_mov_b32 exec_hi, 0xffffff")
    a.vmem(f"buffer_load_dwordx4 {vr(T+8,4)}, v{v_l16}, {srd(sW1)}, s{s_tmp4} offen", "TCH")
    e("s_mov_b32 exec_hi, -1")

HEADER = open(os.path.join(os.path.dirname(os.path.abspath(__file__)), "..", "cdna_kernels", NAME + ".s.ref")).read().split("; Override launch")[0]

def emit_file(path):
    a = gen()
    s = HEADER
    s += "; @launch grid=(256,1,1) block=(512,1,1) lds=163840\n"
    s += f""".amdgcn_target "amdgcn-amd-amdhsa--gfx950"
.text
.globl {NAME}_kernel
.p2align 8
.type {NAME}_kernel,@function
{NAME}_kernel:
"""
    s += "\n".join(a.lines) + "\n"
    s += f""".section .rodata,"a"
.p2align 6
.amdhsa_kernel {NAME}_kernel
  .amdhsa_next_free_vgpr 256
  .amdhsa_next_free_sgpr {NSGPR}
  .amdhsa_accum_offset 256
  .amdhsa_group_segment_fixed_size 0
  .amdhsa_kernarg_size 80
  .amdhsa_user_sgpr_count 2
  .amdhsa_user_sgpr_kernarg_segment_ptr 1
  .amdhsa_system_sgpr_workgroup_id_x 1
.end_amdhsa_kernel
"""
    open(path, "w").write(s)

if __name__ == "__main__":
    out = sys.argv[1] if len(sys.argv) > 1 else os.path.join(os.path.dirname(os.path.abspath(__file__)), "..", "cdna_kernels", NAME + ".s")
    emit_file(out)
```

```python
import sys, math, os, struct

NAME = "gated_mix__sliding_block__dense_activation_relu__prompt"

KF = 0x200000
VF = 0x400000
OF = 0x600000
HF = 0x800000
GB = 0xE00000
FL = 0xF00000
TS = 0xF80000
WS_BYTES = 0x1000000
HROW = 86 * 1024
OOB = 0x40000000
SLOT = 16384

def env(n, d): return int(os.environ.get(n, d))
STAMPS = env("GEN_STAMPS", 0) >= 1
STAMPS2 = env("GEN_STAMPS", 0) >= 2
TOUCH = env("GEN_TOUCH", 10)
NT = env("GEN_NT", 0)
HROT = env("GEN_HROT", 0)
ROT = env("GEN_ROT", 0)

class Asm:
    def __init__(self):
        self.lines = []; self.vm = []; self.uid = 0; self.nstamp = 0
    def e(self, s): self.lines.append("    " + s)
    def label(self, l): self.lines.append(l + ":")
    def c(self, s): self.lines.append("    ; " + s)
    def newlabel(self, p="L"):
        self.uid += 1
        return f"{p}_{self.uid}"
    def vmem(self, s, tag):
        self.e(s); self.vm.append(tag)
    def wait_vm(self, tags, lgkm0=False):
        if isinstance(tags, str): tags = [tags]
        last = -1
        for i, t in enumerate(self.vm):
            if t in tags: last = i
        x = " lgkmcnt(0)" if lgkm0 else ""
        if last < 0:
            if lgkm0: self.e("s_waitcnt lgkmcnt(0)")
            return
        n = len(self.vm) - 1 - last
        assert n <= 63
        self.e(f"s_waitcnt vmcnt({n}){x}")
        self.vm = self.vm[last + 1:]

class Lg:
    def __init__(self, a): self.a = a; self.q = []
    def add(self, tag): self.q.append(tag)
    def wait(self, tags):
        last = -1
        for i, t in enumerate(self.q):
            if t in tags: last = i
        if last < 0: return
        n = min(len(self.q) - 1 - last, 15)
        self.a.e(f"s_waitcnt lgkmcnt({n})")
        self.q = self.q[len(self.q) - n:] if n else []
    def clear(self): self.q = []
    def drain(self):
        if self.q: self.a.e("s_waitcnt lgkmcnt(0)")
        self.q = []

sX, sWQ, sW1, sW2, sWO, sWS, sOUT, sGW, sDBG, sPW = 8, 12, 16, 20, 24, 28, 32, 36, 40, 88
def srd(b): return f"s[{b}:{b+3}]"
s_wv, s_rb, s_cg, s_p, s_t, s_rg, s_cgp, s_rb3, s_cb3, s_xbase = range(44, 54)
s_tmp, s_tmp2, s_wideoff, s_naroff = 54, 55, 56, 57
s_nonce = 58
s_tmp3, s_tmp4, s_st0, s_st1, s_first, s_w2off, s_xlds, s_cnt = range(60, 68)
s_exec = 68
s_m = 70; s_m2 = 72; s_m3 = 74
s_ldsw, s_a3, s_a3o, s_qb = 76, 77, 78, 79
s_vm = 80
s_ts = 82
s_tsb, s_ok, s_ga, s_pstep = 84, 85, 86, 87
s_st2 = 92
s_ldsww = 95
s_gw = 7
s_wbase = 5
GREG = 48
s_fl = 6
s_kvb = 3
s_krd = 4
s_vrdb = 98
s_flh = 99
s_r3 = 101
s_flc = 100
v_kf = 25
NSGPR = 102

v_lane, v_l16 = 1, 2
v_xo = 3
v_wq_n, v_wd0, v_wd1, v_xrd, v_trn, v_trw, v_tr3, v_w2_n = 7, 8, 9, 10, 11, 12, 13, 14
v_t0, v_t1 = 15, 16
v_hi = 17
v_t2, v_t3 = 18, 19
v_non = 20
v_c2 = 20
v_mc = 22
v_g2 = 24
v_omg2 = 26
v_t4, v_t5 = 28, 29
v_trw2, v_tr3b = 30, 31
MASKF = 32
MASKD = 48
BF = 64
ACC = 96
XF = 128
v_fo = 252; v_fd = 254

def vr(b, n): return f"v[{b}:{b+n-1}]"

ORD = os.environ.get("GEN_ORD", "A")
CFG = {
 "A": dict(order=[0,1,2,3,4,5,6,7,8,9,10,11], xslot={0:0,1:4,2:6,3:0}, init={0:2,1:3}, atk=6, atv=4, usplit=4, lg=4,
      sched={0:[("X",2,0),("P",2,8),("P",3,9)], 1:[("X",3,0),("P",4,2)], 2:[("P",5,4),("P",6,5),("P",7,3)],
             3:[("P",8,6),("P",9,7),("P",10,8)], 4:[("P",11,9)], 5:[("Q",0,0),("Q",1,1)], 6:[("Q",2,2)], 9:[("Q",3,3)]},
      sig0=6, kvi=9, kvc=11, post=(8,9), non=2),
 "C": dict(order=[0,1,4,2,5,3,6,7,8,9,10,11], xslot={0:0,1:3,2:8,3:0}, init={0:2,1:5}, atk=3, atv=0, usplit=6, lg=6,
      sched={0:[("P",4,6),("X",2,0),("P",2,7)], 1:[("P",5,2),("X",3,0)], 2:[("P",3,5),("P",6,3),("P",7,4)],
             3:[("P",8,6)], 4:[("P",9,7),("P",10,8),("P",11,9)], 5:[("Q",0,2)], 7:[("Q",1,5)], 10:[("Q",2,6)], 11:[("Q",3,7)]},
      sig0=8, kvi=10, kvc=11, post=(8,9), non=3),
}[ORD]
XSLOT = CFG["xslot"]
ATK = CFG['atk'] * SLOT
ATQ = ATK + 24576
ATV = CFG['atv'] * SLOT

v_st = 27
def stamp(a, final=False):
    if not STAMPS: return
    i = a.nstamp; a.nstamp += 1
    cur = s_ts + 2*(i & 1) if False else (s_ts if (i & 1) == 0 else 96)
    prev = (s_ts if ((i-1) & 1) == 0 else 96)
    if i > 0:
        a.e(f"v_writelane_b32 v{v_st}, s{prev}, {i-1}")
    a.e(f"{'s_memrealtime' if env('GEN_RT',0) else 's_memtime'} s[{cur}:{cur+1}]")
    if final:
        a.e("s_waitcnt lgkmcnt(0)")
        a.e(f"v_writelane_b32 v{v_st}, s{cur}, {i}")
        a.e(f"v_lshlrev_b32 v{v_t3}, 2, v{v_lane}")
        a.e("s_mov_b32 exec_lo, -1")
        a.e("s_mov_b32 exec_hi, 0")
        a.e(f"buffer_store_dword v{v_st}, v{v_t3}, {srd(sWS)}, s{s_tsb} offen")
        if env("GEN_DBG", 0):
            l = a.newlabel("Ldbg")
            a.e(f"s_cmp_lg_u32 s2, {env('GEN_DBG',0)}")
            a.e(f"s_cbranch_scc1 {l}")
            a.e(f"s_cmp_lg_u32 s{s_wv}, 0")
            a.e(f"s_cbranch_scc1 {l}")
            a.e(f"v_readlane_b32 s{s_tmp}, v{v_st}, 0")
            a.e("s_nop 3")
            a.e(f"v_subrev_u32 v{v_st}, s{s_tmp}, v{v_st}")
            a.e("s_mov_b32 exec_lo, 0x3ffe")
            a.e(f"buffer_store_dword v{v_st}, v{v_t3}, {srd(sDBG)}, 0 offen offset:4")
            a.label(l)

def dma(a, voff, srd_b, soff, lds_sgpr, ldsimm, tag, sc1=False):
    a.e(f"s_add_u32 m0, s{lds_sgpr}, {ldsimm}")
    a.e("s_nop 0")
    nt = " nt" if (not sc1 and ((NT & 1) and tag[0] in "XP" or (NT & 2) and tag[0] == "Q" or (NT & 4) and tag in ("X0", "P0") or (NT & 8) and tag in ("X1", "P1"))) else ""
    a.vmem(f"buffer_load_dwordx4 v{voff}, {srd(srd_b)}, {soff} offen{' sc1' if sc1 else ''}{nt} lds", tag)

def x_ops(a, j):
    ops = []
    for t in range(4):
        def f(t=t):
            a.e(f"s_add_u32 s{s_tmp}, s{s_xbase}, {t*4096 + j*256}")
            dma(a, v_xo + t, sX, f"s{s_tmp}", s_xlds, XSLOT[j]*SLOT + t*1024, f"X{j}")
        ops.append(f)
    return ops

def piece_ops(a, i, slot):
    ops = []
    for t in range(2):
        if i < 4:
            def f(t=t):
                a.e(f"s_add_u32 s{s_tmp}, s{s_naroff}, {(128*i + 8*t)*3072}")
                dma(a, v_wq_n, sWQ, f"s{s_tmp}", s_ldsw, slot*SLOT + t*1024, f"P{i}")
        else:
            def f(t=t):
                if t == 0:
                    a.e(f"s_mul_i32 s{s_wideoff}, s{s_pstep}, {i-4}")
                    a.e(f"s_add_u32 s{s_wideoff}, s{s_wideoff}, s{s_wbase}")
                a.e(f"s_add_u32 s{s_tmp}, s{s_ldsw}, {slot*SLOT + t*1024}")
                a.e(f"s_max_u32 m0, s{s_tmp}, s{s_ldsww}")
                a.e("s_nop 0")
                a.vmem(f"buffer_load_dwordx4 v{v_wd0 + t}, {srd(sPW)}, s{s_wideoff} offen{' nt' if NT & 1 else ''} lds", f"P{i}")
                if t == 1:
                    l = a.newlabel("Lgw")
                    a.e(f"s_cmp_eq_u32 s{s_gw}, 0")
                    a.e(f"s_cbranch_scc1 {l}")
                    a.e(f"v_add_u32 v{v_t2}, {slot*SLOT + 4096 + 128}, v{v_g2}")
                    a.e(f"ds_write_b16 v{v_t2}, v{GREG + i - 4}")
                    a.label(l)
        ops.append(f)
    return ops

def w2_ops(a, i, slot):
    ops = []
    for t in range(2):
        def f(t=t):
            srdb, r0 = (sW2, 128*i) if i <= 10 else (sWO, 128*(i-11))
            if HROT and i <= 10:
                a.e(f"s_add_u32 s{s_tmp}, s{s_p}, {r0*1024}")
                a.e(f"s_sub_u32 s{s_tmp2}, s{s_tmp}, {11*128*1024}")
                a.e(f"s_cselect_b32 s{s_tmp}, s{s_tmp}, s{s_tmp2}")
                a.e(f"s_add_u32 s{s_tmp}, s{s_tmp}, s{s_w2off}")
                if t: a.e(f"s_add_u32 s{s_tmp}, s{s_tmp}, {8*1024}")
            else:
                a.e(f"s_add_u32 s{s_tmp}, s{s_w2off}, {(r0 + 8*t) * 1024}")
            dma(a, v_w2_n, srdb, f"s{s_tmp}", s_ldsw, slot*SLOT + t*1024, f"Q{i}")
        ops.append(f)
    return ops

def issue_x_quarter(a, j):
    for f in x_ops(a, j): f()
def issue_piece(a, i, slot):
    for f in piece_ops(a, i, slot): f()
def issue_w2_piece(a, i, slot):
    for f in w2_ops(a, i, slot): f()

def mfma(a, d, x, y, c):
    cs = c if isinstance(c, str) else vr(c, 16)
    a.e(f"v_mfma_f32_32x32x16_bf16 {vr(d,16)}, {vr(x,4)}, {vr(y,4)}, {cs}")

def pack_tile(a, acc, pk, relu):
    for q in range(8):
        a.e(f"v_cvt_pk_bf16_f32 v{pk+q}, v{acc+2*q}, v{acc+2*q+1}")
    if relu:
        for q in range(8):
            a.e(f"v_pk_max_i16 v{pk+q}, v{pk+q}, 0")

def store_pk(a, pk, soff_sgpr, tag):
    a.vmem(f"buffer_store_dwordx4 {vr(pk,4)}, v{v_l16}, {srd(sWS)}, s{soff_sgpr} offen sc1", tag)
    a.vmem(f"buffer_store_dwordx4 {vr(pk+4,4)}, v{v_l16}, {srd(sWS)}, s{soff_sgpr} offen offset:1024 sc1", tag)

def signal(a, phase):
    l = a.newlabel("Lsig")
    a.e(f"s_cmp_lg_u32 s{s_wv}, 0")
    a.e(f"s_cbranch_scc1 {l}")
    a.e(f"v_mov_b32 v{v_t2}, s{s_nonce}")
    a.e(f"v_mov_b32 v{v_t3}, s{s_nonce+1}")
    a.e(f"v_mov_b32 v{v_t1}, {phase*32768}")
    a.e("s_mov_b64 exec, 1")
    a.e(f"buffer_store_dwordx2 v[{v_t2}:{v_t3}], v{v_t1}, {srd(sWS)}, s{s_fl} offen sc1")
    a.e("s_mov_b64 exec, -1")
    a.label(l)

def signal_wave(a):
    a.e(f"v_mov_b32 v{v_t2}, s{s_nonce}")
    a.e(f"v_mov_b32 v{v_t3}, s{s_nonce+1}")
    a.e(f"v_mov_b32 v{v_t1}, 0")
    a.e("s_mov_b64 exec, 1")
    a.vmem(f"buffer_store_dwordx2 v[{v_t2}:{v_t3}], v{v_t1}, {srd(sWS)}, s{s_flh} offen sc1", "SIGH")
    a.e("s_mov_b64 exec, -1")

def cmp_flags4(a, vd):
    a.e(f"v_xor_b32 v{vd}, s{s_nonce}, v{vd}")
    a.e(f"v_xor_b32 v{vd+1}, s{s_nonce+1}, v{vd+1}")
    a.e(f"v_xor_b32 v{vd+2}, s{s_nonce}, v{vd+2}")
    a.e(f"v_xor_b32 v{vd+3}, s{s_nonce+1}, v{vd+3}")
    a.e(f"v_or3_b32 v{vd}, v{vd}, v{vd+1}, v{vd+2}")
    a.e(f"v_or_b32 v{vd}, v{vd}, v{vd+3}")
    a.e(f"v_cmp_ne_u32 vcc, 0, v{vd}")
    a.e("s_nop 3")
    a.e("s_cmp_eq_u64 vcc, 0")

def hflag_issue(a, track=True):
    ins = f"buffer_load_dwordx4 v[252:255], v{v_l16}, {srd(sWS)}, s{s_flc} offen sc1"
    (a.vmem(ins, "FH") if track else a.e(ins))

def hpoll(a):
    lp = a.newlabel("Lpoll"); ld = a.newlabel("Lpolld")
    a.e(f"s_mov_b32 s{s_cnt}, 0")
    a.label(lp)
    hflag_issue(a, False)
    a.e("s_waitcnt vmcnt(0)")
    cmp_flags4(a, 252)
    a.e(f"s_cbranch_scc1 {ld}")
    a.e("s_sleep 1")
    a.e(f"s_add_u32 s{s_cnt}, s{s_cnt}, 1")
    a.e(f"s_cmp_lt_u32 s{s_cnt}, 100000")
    a.e(f"s_cbranch_scc1 {lp}")
    a.label(ld)

def cmp_flags(a, vd):
    a.e(f"v_cmp_eq_u32 s[{s_m2}:{s_m2+1}], s{s_nonce}, v{vd}")
    a.e(f"v_cmp_eq_u32 s[{s_m3}:{s_m3+1}], s{s_nonce+1}, v{vd+1}")
    a.e("s_nop 3")
    a.e(f"s_and_b64 s[{s_m2}:{s_m2+1}], s[{s_m2}:{s_m2+1}], s[{s_m3}:{s_m3+1}]")
    a.e(f"s_and_b64 s[{s_m2}:{s_m2+1}], s[{s_m2}:{s_m2+1}], s[{s_m}:{s_m+1}]")
    a.e(f"s_cmp_eq_u64 s[{s_m2}:{s_m2+1}], s[{s_m}:{s_m+1}]")

def poll(a, voff):
    lp = a.newlabel("Lpoll"); ld = a.newlabel("Lpolld")
    a.e(f"s_mov_b32 s{s_cnt}, 0")
    a.label(lp)
    a.e(f"buffer_load_dwordx2 v[{v_t2}:{v_t3}], v{voff}, {srd(sWS)}, 0 offen sc1")
    a.e("s_waitcnt vmcnt(0)")
    cmp_flags(a, v_t2)
    a.e(f"s_cbranch_scc1 {ld}")
    a.e("s_sleep 1")
    a.e(f"s_add_u32 s{s_cnt}, s{s_cnt}, 1")
    a.e(f"s_cmp_lt_u32 s{s_cnt}, 100000")
    a.e(f"s_cbranch_scc1 {lp}")
    a.label(ld)

def flag_issue(a, voff, vdst, tag, track=True):
    ins = f"buffer_load_dwordx2 v[{vdst}:{vdst+1}], v{voff}, {srd(sWS)}, 0 offen sc1"
    (a.vmem(ins, tag) if track else a.e(ins))

def flag_check(a, vdst, tag, track=True):
    if track: a.wait_vm(tag)
    else: a.e("s_waitcnt vmcnt(0)")
    cmp_flags(a, vdst)

def get_nonce(a):
    a.wait_vm("NON")
    lp = a.newlabel("Lnp"); ld = a.newlabel("Lnd")
    a.e(f"s_mov_b32 s{s_cnt}, 0")
    a.label(lp)
    a.e(f"v_readfirstlane_b32 s{s_nonce}, v{v_non}")
    a.e(f"v_readfirstlane_b32 s{s_nonce+1}, v{v_non+1}")
    a.e("s_nop 3")
    a.e(f"s_cmp_lg_u32 s{s_nonce}, 0")
    a.e(f"s_cbranch_scc1 {ld}")
    a.e("s_sleep 2")
    a.e(f"v_mov_b32 v{v_t2}, 0")
    a.e(f"buffer_load_dwordx2 v[{v_non}:{v_non+1}], v{v_t2}, {srd(sDBG)}, 0 offen sc1")
    a.e("s_waitcnt vmcnt(0)")
    a.e(f"s_add_u32 s{s_cnt}, s{s_cnt}, 1")
    a.e(f"s_cmp_lt_u32 s{s_cnt}, 100000")
    a.e(f"s_cbranch_scc1 {lp}")
    a.label(ld)

def kv_flag_setup(a):
    e = a.e
    e(f"s_lshl_b32 s{s_tmp}, s{s_rb}, 4")
    e(f"s_add_u32 s{s_fl}, s{s_tmp}, s{s_cg}")
    e(f"s_lshl_b32 s{s_fl}, s{s_fl}, 7")
    e(f"s_add_u32 s{s_fl}, s{s_fl}, {FL}")
    e(f"s_lshl_b32 s{s_tmp2}, s{s_p}, 1")
    e(f"s_add_u32 s{s_tmp}, s{s_tmp}, s{s_tmp2}")
    e(f"v_lshrrev_b32 v{v_kf}, 1, v{v_lane}")
    e(f"v_lshlrev_b32 v{v_kf}, 4, v{v_kf}")
    e(f"v_sub_u32 v{v_kf}, s{s_tmp}, v{v_kf}")
    e(f"v_and_b32 v{v_t0}, 1, v{v_lane}")
    e(f"v_add_u32 v{v_kf}, v{v_kf}, v{v_t0}")
    e(f"v_and_b32 v{v_kf}, 255, v{v_kf}")
    e(f"v_lshlrev_b32 v{v_kf}, 7, v{v_kf}")
    e(f"v_add_u32 v{v_kf}, {FL}, v{v_kf}")
    e(f"s_mov_b32 s{s_m}, 63")
    e(f"s_cmp_eq_u32 s{s_rb}, 1")
    e(f"s_cselect_b32 s{s_m}, 15, s{s_m}")
    e(f"s_cmp_eq_u32 s{s_rb}, 0")
    e(f"s_cselect_b32 s{s_m}, 3, s{s_m}")
    e(f"s_mov_b32 s{s_m+1}, 0")
    e(f"s_lshl_b32 s{s_tmp3}, s{s_cg}, 6")
    e(f"s_lshl_b32 s{s_tmp4}, s{s_rb}, 2")
    e(f"s_add_u32 s{s_tmp3}, s{s_tmp3}, s{s_tmp4}")
    e(f"s_lshl_b32 s{s_tmp3}, s{s_tmp3}, 11")
    e(f"s_mul_i32 s{s_tmp4}, s{s_wv}, 3072")
    e(f"s_add_u32 s{s_kvb}, s{s_tmp3}, s{s_tmp4}")
    e(f"s_lshl_b32 s{s_tmp}, s{s_rg}, 11")
    e(f"s_lshl_b32 s{s_tmp2}, s{s_cgp}, 10")
    e(f"s_add_u32 s{s_tmp2}, s{s_tmp2}, s{s_tmp}")
    e(f"s_add_u32 s{s_krd}, s{s_tmp2}, {ATK}")
    e(f"s_lshl_b32 s{s_tmp2}, s{s_cgp}, 8")
    e(f"s_add_u32 s{s_tmp2}, s{s_tmp2}, s{s_tmp}")
    e(f"s_add_u32 s{s_vrdb}, s{s_tmp2}, {ATV}")
    e(f"s_lshl_b32 s{s_qb}, s{s_rb}, 2")
    e(f"s_add_u32 s{s_qb}, s{s_qb}, s{s_rg}")
    e(f"s_sub_i32 s{s_first}, 8, s{s_qb}")
    e(f"s_max_i32 s{s_first}, s{s_first}, 0")
    e(f"s_mov_b32 s{s_vm}, 0xffff")
    e(f"s_mov_b32 s{s_vm+1}, 0xffff")
    s3_addr_setup(a)
    e(f"s_lshl_b32 s{s_tmp}, s{s_cg}, 3")
    e(f"s_add_u32 s{s_tmp}, s{s_tmp}, s{s_wv}")
    e(f"s_lshl_b32 s{s_tmp}, s{s_tmp}, 3")
    e(f"s_lshl_b32 s{s_flh}, s{s_rb}, 10")
    e(f"s_add_u32 s{s_flh}, s{s_flh}, s{s_tmp}")
    e(f"s_add_u32 s{s_flh}, s{s_flh}, {FL + 32768}")
    e(f"s_lshr_b32 s{s_flc}, s{s_rb3}, 1")
    e(f"s_lshl_b32 s{s_flc}, s{s_flc}, 10")
    e(f"s_add_u32 s{s_flc}, s{s_flc}, {FL + 32768}")

def kv_ops(a, guard=True):
    ops = []
    for reg, lds, tag in ((KF, ATK, "AK"), (VF, ATV, "AV")):
        for i in range(3):
            def f(reg=reg, lds=lds, tag=tag, i=i):
                l = None
                if guard:
                    l = a.newlabel("Lkvg")
                    a.e(f"s_cmp_eq_u32 s{s_ok}, 0")
                    a.e(f"s_cbranch_scc1 {l}")
                a.e(f"s_mul_i32 s{s_tmp4}, s{s_wv}, 3072")
                a.e(f"s_add_u32 s{s_tmp}, s{s_kvb}, {reg - 16384 + i*1024}")
                dma(a, v_l16, sWS, f"s{s_tmp}", s_tmp4, lds + i*1024, tag, sc1=True)
                if l: a.label(l)
            ops.append(f)
    return ops

def issue_kv(a, which, track=True):
    sv = list(a.vm)
    for f in kv_ops(a, guard=False): f()
    if not track: a.vm = sv

def s1_items(pieces, slot_of):
    items = []
    for i in pieces:
        sl = slot_of[i]
        if i < 4:
            for s in range(8):
                items.append(dict(pc=i, ks=8*i + s, tl=0, vb=v_trn, off=s*2048, sec=512, sl=sl, xs=s))
        else:
            j = i - 4
            for s in range(4):
                for tl in range(2):
                    items.append(dict(pc=i, ks=4*j + s, tl=tl, vb=(v_trw2 if tl else v_trw), off=None, s=s, sl=sl, xs=None))
    return items

def stage1(a, isv):
    raise NotImplementedError

ORDER = CFG['order']
T3U = env('GEN_T3U', 99)
FLUSH = 1
USPLIT = CFG['usplit']

class S1:
    D = env('GEN_D', 5)
    def __init__(self, a):
        self.a = a; self.lg = Lg(a); self.n = 0
        self.fifo = []
        self.slot_of = dict(CFG["init"])
        self.w2_slot = {}
        self.base = {}
        self.sched = CFG["sched"]
    def sync(self, u, extra_need=(), hook=None):
        a = self.a
        i = ORDER[u]
        need = [f"P{i}"] + ([f"X{i}"] if i < 4 else []) + list(extra_need)
        if FLUSH: self.pump(len(self.fifo))
        if u <= CFG['lg']:
            a.wait_vm(need, lgkm0=True)
            self.lg.clear()
        else:
            a.wait_vm(need)
        a.e("s_barrier")
        if STAMPS2: stamp(a)
        if hook: hook()
        for kind, pc, sl in self.sched.get(u, []):
            if kind == "P": self.slot_of[pc] = sl; self.fifo += piece_ops(a, pc, sl)
            elif kind == "X": self.fifo += x_ops(a, pc)
            else: self.w2_slot[pc] = sl; self.fifo += w2_ops(a, pc, sl)
        self.base = {}
    def pump(self, n=1):
        for _ in range(n):
            if self.fifo: self.fifo.pop(0)()
    def read(self, it):
        a = self.a
        b = BF + (it["n"] % 8) * 4
        sl = it["sl"]
        if it["xs"] is not None:
            s = it["xs"]; xq = it["pc"]
            r = v_t0 + (s & 1)
            a.e(f"v_xor_b32 v{r}, {s*32}, v{v_xrd}")
            off = XSLOT[xq]*SLOT
            if off > 65535:
                a.e(f"v_add_u32 v{r}, {off}, v{r}"); off = 0
            a.e(f"ds_read_b128 {vr(XF + it['ks']*4, 4)}, v{r} offset:{off}")
            self.lg.add(("x", it["ks"]))
        vb = it["vb"]
        if it["pc"] < 4:
            off, sec = it["off"], it["sec"]
            o = sl*SLOT + off
            if o + sec > 65535:
                if vb not in self.base:
                    a.e(f"v_add_u32 v{v_t4}, {sl*SLOT}, v{vb}"); self.base[vb] = v_t4
                vb = self.base[vb]; o = off
            a.e(f"ds_read_b64_tr_b16 {vr(b,2)}, v{vb} offset:{o}")
            a.e(f"ds_read_b64_tr_b16 {vr(b+2,2)}, v{vb} offset:{o + sec}")
        else:
            s = it["s"]; tl = it["tl"]
            if tl == 1:
                o = sl*SLOT + s*16*192; sec = 4*192
                if o + sec > 65535 - 16384:
                    if vb not in self.base:
                        a.e(f"v_add_u32 v{v_t5}, {sl*SLOT}, v{vb}"); self.base[vb] = v_t5
                    vb = self.base[vb]; o = s*16*192
                a.e(f"ds_read_b64_tr_b16 {vr(b,2)}, v{vb} offset:{o}")
                a.e(f"ds_read_b64_tr_b16 {vr(b+2,2)}, v{vb} offset:{o + sec}")
            else:
                if s == 0:
                    a.e(f"v_add_u32 v{v_t4}, {sl*SLOT}, v{v_trw}")
                    a.e(f"v_add_u32 v{v_t0}, {sl*SLOT}, v{v_omg2}")
                else:
                    a.e(f"v_add_u32 v{v_t4}, s{s_k16}, v{v_t4}")
                    a.e(f"v_add_u32 v{v_t0}, s{s_k16}, v{v_t0}")
                a.e(f"ds_read_b64_tr_b16 {vr(b,2)}, v{v_t4}")
                a.e(f"ds_read_b64_tr_b16 {vr(b+2,2)}, v{v_t0}")
        self.lg.add(("b", it["n"])); self.lg.add(("b", it["n"]))
    def mm(self, it, isv):
        a = self.a
        self.lg.wait([("b", it["n"]), ("x", it["ks"])])
        b = BF + (it["n"] % 8) * 4
        if it["pc"] < 4:
            acc = ACC2
            cin = "0" if it["ks"] == 0 else acc
            if isv: mfma(a, acc, XF + it["ks"]*4, b, cin)
            else: mfma(a, acc, b, XF + it["ks"]*4, cin)
        else:
            acc = ACC + 16*it["tl"]
            cin = "0" if it["ks"] == 0 else acc
            mfma(a, acc, b, XF + it["ks"]*4, cin)

ACC2 = MASKF
s_k16 = 93

def build_maskd(a):
    e = a.e
    e(f"v_and_b32 v{v_t2}, 31, v{v_lane}")
    e(f"v_lshlrev_b32 v{v_t3}, 2, v{v_hi}")
    e(f"v_sub_u32 v{v_t2}, v{v_t2}, v{v_t3}")
    e(f"v_mov_b32 v{v_t3}, 0xf149f2ca")
    for r in range(16):
        cr = (r & 3) + 8 * (r >> 2)
        e(f"v_cmp_gt_i32 vcc, {cr}, v{v_t2}")
        e("s_nop 1")
        e(f"v_cndmask_b32 v{MASKD+r}, 0, v{v_t3}, vcc")

PRE = env("GEN_PRE", 2)
def run_stage1(a):
    e = a.e
    a.c("================ stage 1 ================")
    D = S1.D
    base_lines = a.lines
    outs = []
    ns0 = a.nstamp; vm0 = list(a.vm)
    state = {}
    def hook(u, st):
        if u == 1 and TOUCH >= 2 and TOUCH not in (7, 9): touch(a, (sW2, sWO), 240)
        if T3U <= u < T3U + 4: st.fifo.append(lambda u=u: touch_l2_s3(a, u - T3U, 4))
        if u == env("GEN_TLBV", 3): tlb_warm_v(a)
        if u == env("GEN_SENTU", 0) and u > 0:
            for i in range(4): a.e(f"v_mov_b32 v{4+i}, -1")
            a.vmem(f"buffer_store_dwordx4 v[4:7], v{v_l16}, {srd(sWS)}, s{s_oa} offen sc1", "SENT")
        if u == CFG['non']:
            a.e(f"v_mov_b32 v{v_t2}, 0")
            a.vmem(f"buffer_load_dwordx2 v[{v_non}:{v_non+1}], v{v_t2}, {srd(sDBG)}, 0 offen sc1", "NON")
        if u == SIG0:
            get_nonce(a); signal(a, 0)
        VE = env("GEN_VE", 0)
        if u == CFG["kvi"] - VE:
            flag_issue(a, v_kf, v_non + 2, "FKV")
        if u == CFG["kvc"] - VE:
            flag_check(a, v_non + 2, "FKV")
            a.e(f"s_cselect_b32 s{s_ok}, 1, 0")
            l2 = a.newlabel("Lkv2")
            a.e(f"s_cbranch_scc1 {l2}")
            flag_issue(a, v_kf, v_non + 2, "FKV", track=False)
            a.label(l2)
            ops = kv_ops(a)
            if VE: st.fifo = ops[3:] + st.fifo
            else: st.fifo = ops + st.fifo
        if VE and u == CFG["kvc"]:
            st.fifo = kv_ops(a)[:3] + st.fifo
    def do_mm(st, pend, isv):
        it = pend.pop(0)
        st.mm(it, isv)
        if it["pc"] == 3 and it["ks"] == 31: state["kvdone"] = 0
        elif "kvdone" in state:
            state["kvdone"] += 1
            if state["kvdone"] == 2:
                a.e("s_nop 7")
                pack_tile(a, ACC2, ACC2, False)
                store_pk(a, ACC2, s_st0, "ST0")
        st.pump(1)
    def unit(st, u, pend, n, isv, q0=0, q1=8, items=None):
        pc = ORDER[u]
        if items is None:
            if u <= CFG["lg"]:
                for _ in range(min(PRE, len(pend))): do_mm(st, pend, isv)
            st.sync(u, ["ST0"] if u == SIG0 else [], lambda: hook(u, st))
            items = s1_items([pc], st.slot_of)
            for it in items: it["n"] = n; n += 1
        for q in range(q0, q1):
            st.read(items[q]); pend.append(items[q])
            if len(pend) > D: do_mm(st, pend, isv)
            elif q % 2 == 1 and len(pend) > 2 and u > 0 and pend[0]["pc"] != pc: do_mm(st, pend, isv)
        return n, items
    for isv in (0, 1):
        a.lines = []; a.vm = list(vm0); a.nstamp = ns0; state.clear()
        st = S1(a)
        if isv: a.label("L_s1v")
        pend = []; n = 0
        for u in range(0, USPLIT):
            n, _ = unit(st, u, pend, n, isv)
        n, items = unit(st, USPLIT, pend, n, isv, 0, 0)
        q = 0
        while any(it["pc"] < 4 for it in pend):
            unit(st, USPLIT, pend, n, isv, q, q + 1, items); q += 1
            if q >= 8:
                while any(it["pc"] < 4 for it in pend): do_mm(st, pend, isv)
        st.pump(len(st.fifo))
        if not isv: a.e("s_branch L_s1w")
        outs.append((a.lines, list(a.vm), st, pend, n, items, q, dict(state)))
    assert outs[0][1] == outs[1][1]
    a.lines = base_lines + outs[0][0] + outs[1][0]
    _, vm, st, pend, n, items_s, q0, stt = outs[1]
    a.vm = vm
    a.label("L_s1w")
    unit(st, USPLIT, pend, n, 0, q0, 8, items_s)
    for u in range(USPLIT + 1, 12):
        n, _ = unit(st, u, pend, n, 0)
    while pend: do_mm(st, pend, 0)
    st.pump(len(st.fifo))
    e("s_nop 7"); e("s_nop 3")
    gate(a)
    pack_tile(a, ACC + 16, BF + 8, True)
    store_pk(a, BF + 8, s_st2, "ST1")
    pack_tile(a, ACC, BF, False)
    l = a.newlabel("Lq"); l2 = a.newlabel("Lqd")
    e(f"s_cmp_eq_u32 s{s_cgp}, 0")
    e(f"s_cbranch_scc1 {l}")
    for q in range(8): e(f"v_pk_max_i16 v{BF+q}, v{BF+q}, 0")
    a.label(l)
    store_pk(a, BF, s_st1, "ST1")
    return st.w2_slot

SIG0 = CFG['sig0']

def gate(a):
    e = a.e
    l = a.newlabel("Lgate")
    e(f"s_cmp_lg_u32 s{s_cg}, 15")
    e(f"s_cbranch_scc1 {l}")
    e(f"s_cmp_lg_u32 s{s_cgp}, 1")
    e(f"s_cbranch_scc1 {l}")
    e(f"v_cvt_pk_bf16_f32 v{v_t1}, v{ACC+16}, v{ACC+16}")
    e(f"v_lshlrev_b32 v{v_t1}, 16, v{v_t1}")
    e(f"v_mul_f32 v{v_t1}, 0xbfb8aa3b, v{v_t1}")
    e(f"v_exp_f32 v{v_t1}, v{v_t1}")
    e("s_nop 0")
    e(f"v_add_f32 v{v_t1}, 1.0, v{v_t1}")
    e(f"v_rcp_f32 v{v_t1}, v{v_t1}")
    e("s_nop 0")
    e(f"v_cvt_pk_bf16_f32 v{v_t1}, v{v_t1}, v{v_t1}")
    e(f"v_lshlrev_b32 v{v_t1}, 16, v{v_t1}")
    e(f"v_lshlrev_b32 v{v_t0}, 2, v{v_lane}")
    e(f"s_lshl_b32 s{s_tmp}, s{s_rb}, 2")
    e(f"s_add_u32 s{s_tmp}, s{s_tmp}, s{s_rg}")
    e(f"s_lshl_b32 s{s_tmp}, s{s_tmp}, 7")
    e(f"s_add_u32 s{s_tmp}, s{s_tmp}, {GB}")
    e(f"s_mov_b64 s[{s_exec}:{s_exec+1}], exec")
    e("s_mov_b32 exec_lo, -1")
    e("s_mov_b32 exec_hi, 0")
    e(f"buffer_store_dword v{v_t1}, v{v_t0}, {srd(sWS)}, s{s_tmp} offen sc1")
    e(f"s_mov_b64 exec, s[{s_exec}:{s_exec+1}]")
    a.label(l)

def Sreg(b):
    if b == 0: return MASKF
    if b == 8: return MASKD
    return 64 + 16*(b-1)
KFR = 176; QFR = 212; VROT = 216; OACC = 232
v_max = 248; v_max2 = 249; v_vrd = 250; v_krd = 251

def AFreg(n):
    if n < 10: return 176 + 4*n
    if n < 14: return 48 + 4*(n-10)
    if n < 18: return 160 + 4*(n-14)
    return 144 + 4*(n-18)
def AOreg(n):
    return 128 + 4*n if n < 4 else 32 + 4*(n-4)
BF3 = 64; ACB = 96; ACA = 216

def s3_addr_setup(a):
    e = a.e
    e(f"s_lshl_b32 s{s_tmp3}, s{s_rb3}, 1")
    e(f"s_add_u32 s{s_tmp3}, s{s_tmp3}, s{s_cgp}")
    e(f"s_mul_i32 s{s_a3}, s{s_tmp3}, {HROW}")
    e(f"s_lshl_b32 s{s_tmp}, s{s_rg}, 10")
    if HROT:
        e(f"s_mul_i32 s{s_r3}, s{s_cb3}, 11")
        e(f"s_lshr_b32 s{s_r3}, s{s_r3}, 3")
        e(f"s_lshl_b32 s{s_p}, s{s_r3}, 17")
        e(f"s_lshl_b32 s{s_r3}, s{s_r3}, 13")
        e(f"s_add_u32 s{s_r3}, s{s_r3}, s{s_tmp}")
    else:
        e(f"s_add_u32 s{s_a3}, s{s_a3}, s{s_tmp}")
    e(f"s_add_u32 s{s_a3}, s{s_a3}, {HF}")
    e(f"s_lshl_b32 s{s_a3o}, s{s_tmp3}, 15")
    e(f"s_add_u32 s{s_a3o}, s{s_a3o}, s{s_tmp}")
    e(f"s_add_u32 s{s_a3o}, s{s_a3o}, {OF}")
    e(f"s_lshl_b32 s{s_ga}, s{s_tmp3}, 7")
    e(f"s_add_u32 s{s_ga}, s{s_ga}, {GB}")

def h_loads(a, ns, track=True):
    e = a.e
    for n in ns:
        if n == "g":
            e(f"v_and_b32 v{v_t0}, 31, v{v_lane}")
            e(f"v_lshlrev_b32 v{v_t0}, 2, v{v_t0}")
            ins = f"buffer_load_dword v{v_g2}, v{v_t0}, {srd(sWS)}, s{s_ga} offen sc1"
            (a.vmem(ins, "G") if track else e(ins))
            continue
        if HROT:
            e(f"s_add_u32 s{s_tmp}, s{s_r3}, {n*4096}")
            e(f"s_sub_u32 s{s_tmp2}, s{s_tmp}, {22*4096}")
            e(f"s_cselect_b32 s{s_tmp}, s{s_tmp}, s{s_tmp2}")
            e(f"s_cmp_ge_u32 s{s_tmp}, {HROW}")
            e(f"s_cselect_b32 s{s_tmp}, {OOB}, s{s_tmp}")
            e(f"s_add_u32 s{s_tmp}, s{s_tmp}, s{s_a3}")
        else:
            e(f"s_add_u32 s{s_tmp}, s{s_a3}, {n*4096}")
            if n == 21:
                e(f"s_cmp_ge_u32 s{s_rg}, 2")
                e(f"s_cselect_b32 s{s_tmp}, {OOB}, s{s_tmp}")
        ins = f"buffer_load_dwordx4 {vr(AFreg(n),4)}, v{v_l16}, {srd(sWS)}, s{s_tmp} offen sc1"
        (a.vmem(ins, f"H{n}") if track else e(ins))

def guarded_h_loads(a, ns, track=True):
    l = a.newlabel("Lhl")
    a.e(f"s_cmp_eq_u32 s{s_ok}, 0")
    a.e(f"s_cbranch_scc1 {l}")
    h_loads(a, ns, track)
    a.label(l)

def flags16(a, phase, vdst):
    e = a.e
    e(f"s_lshr_b32 s{s_tmp}, s{s_rb3}, 1")
    e(f"s_lshl_b32 s{s_tmp}, s{s_tmp}, 11")
    e(f"s_add_u32 s{s_tmp}, s{s_tmp}, {FL + phase*32768}")
    e(f"v_and_b32 v{vdst}, 15, v{v_lane}")
    e(f"v_lshlrev_b32 v{vdst}, 7, v{vdst}")
    e(f"v_add_u32 v{vdst}, s{s_tmp}, v{vdst}")
    e(f"s_mov_b32 s{s_m}, 0xffff")
    e(f"s_mov_b32 s{s_m+1}, 0")

SIGB = env('GEN_SIGB', 1)
HB_ISSUE, HB_CHECK = env("GEN_HBI", 5), env("GEN_HBC", 3)

def attention(a, slot_of):
    e = a.e
    a.c("================ attention ================")
    e(f"s_lshl_b32 s{s_tmp}, s{s_rg}, 10")
    e(f"s_add_u32 s{s_tmp}, s{s_tmp}, {ATQ}")
    e(f"v_add_u32 v{v_t0}, s{s_tmp}, v{v_l16}")
    l = a.newlabel("Lqx")
    e(f"s_cmp_lg_u32 s{s_cgp}, 0")
    e(f"s_cbranch_scc1 {l}")
    e(f"ds_write_b128 v{v_t0}, {vr(BF+4,4)}")
    for i in range(4): e(f"v_mov_b32 v{QFR+i}, v{BF+i}")
    a.label(l)
    l = a.newlabel("Lkvok")
    e(f"s_cmp_lg_u32 s{s_ok}, 0")
    e(f"s_cbranch_scc1 {l}")
    l2 = a.newlabel("Lkv3")
    flag_check(a, v_non + 2, "FKV", track=False)
    e(f"s_cbranch_scc1 {l2}")
    poll(a, v_kf)
    a.label(l2)
    issue_kv(a, "KV", track=False)
    e("s_waitcnt vmcnt(0)")
    a.label(l)
    l = a.newlabel("Lgm")
    e(f"s_cmp_eq_u32 s{s_gw}, 0")
    e(f"s_cbranch_scc1 {l}")
    build_maskd(a)
    a.label(l)
    stamp(a)
    e(f"v_add_u32 v{v_krd}, s{s_krd}, v{v_l16}")
    e(f"v_mov_b32 v{v_t3}, 0xf149f2ca")
    for r in range(16):
        e(f"v_sub_f32 v{MASKF+r}, v{v_t3}, v{MASKD+r}")
    a.wait_vm(["AK", "AV"], lgkm0=True)
    e("s_barrier")
    stamp(a)
    lg = Lg(a)
    l = a.newlabel("Lqr")
    e(f"s_cmp_eq_u32 s{s_cgp}, 0")
    e(f"s_cbranch_scc1 {l}")
    e(f"ds_read_b128 {vr(QFR,4)}, v{v_t0}")
    a.label(l)
    for b in range(8, -1, -1):
        e(f"ds_read_b128 {vr(KFR+4*b,4)}, v{v_krd} offset:{b*2048}"); lg.add(("k", b))
    fill = []
    for pc, sl in zip((4, 5), CFG["post"]):
        slot_of[pc] = sl; fill += w2_ops(a, pc, sl)
    c = 0.25 * math.log2(math.e)
    cbits = struct.unpack("<I", struct.pack("<f", c))[0]
    misc = [f"v_mov_b32 v{VROT+i}, 0x3f803f80" for i in range(16)]
    misc += [f"v_mov_b32 v{v_c2}, 0x{cbits:08x}", f"v_mov_b32 v{v_c2+1}, 0x{cbits:08x}", f"v_add_u32 v{v_vrd}, s{s_vrdb}, v{v_l16}"]
    for b in range(8, -1, -1):
        lg.wait([("k", b)])
        S = Sreg(b)
        mfma(a, S, KFR + 4*b, QFR, S if b in (0, 8) else "0")
        for _ in range(3):
            if misc: e(misc.pop(0))
        if fill and b % 2 == 0: fill.pop(0)()
    while misc: e(misc.pop(0))
    while fill: fill.pop(0)()
    if SIGB == 1:
        a.wait_vm("ST1"); signal_wave(a)
    lmax = a.newlabel("Lmaxd")
    e("s_nop 4")
    for b in range(8, -1, -1):
        S = Sreg(b)
        if b < 8:
            e(f"s_cmp_gt_u32 s{s_first}, {b}")
            e(f"s_cbranch_scc1 {lmax}")
        for q in range(8):
            if b == 8 and q == 0:
                e(f"v_max_f32 v{v_max}, v{S}, v{S+1}")
            else:
                e(f"v_max3_f32 v{v_max}, v{S+2*q}, v{S+2*q+1}, v{v_max}")
    a.label(lmax)
    e(f"v_mov_b32 v{v_max2}, v{v_max}")
    e("s_nop 1")
    e(f"v_permlane32_swap_b32 v{v_max}, v{v_max2}")
    e("s_nop 1")
    e(f"v_max_f32 v{v_max}, v{v_max}, v{v_max2}")
    e(f"v_mul_f32 v{v_mc}, v{v_c2}, v{v_max}")
    e(f"v_sub_f32 v{v_mc}, 0, v{v_mc}")
    e(f"v_mov_b32 v{v_mc+1}, v{v_mc}")
    if SIGB == 2:
        a.wait_vm("ST1"); signal_wave(a)
    def softmax_block(b):
        S = Sreg(b)
        for q in range(8):
            e(f"v_pk_fma_f32 v[{S+2*q}:{S+2*q+1}], v[{S+2*q}:{S+2*q+1}], v[{v_c2}:{v_c2+1}], v[{v_mc}:{v_mc+1}]")
        for r in range(16):
            e(f"v_exp_f32 v{S+r}, v{S+r}")
        for q in range(8):
            e(f"v_cvt_pk_bf16_f32 v{S+q}, v{S+2*q}, v{S+2*q+1}")
    softmax_block(8)
    e("s_barrier")
    stamp(a)
    for pc, sl in ((6, CFG['atk']), (7, CFG['atk']+1)):
        slot_of[pc] = sl; issue_w2_piece(a, pc, sl)
    lg = Lg(a)
    def vread(n):
        b = 8 - n//2; m = n % 2
        e(f"ds_read_b128 {vr(VROT + 4*(n%4), 4)}, v{v_vrd} offset:{b*2048 + m*1024}")
        lg.add(("v", n))
    e(f"s_mov_b64 exec, s[{s_vm}:{s_vm+1}]")
    vread(0); vread(1)
    e("s_mov_b64 exec, -1")
    lpv = a.newlabel("Lpvd")
    e(f"s_mov_b32 s{s_ok}, 0")
    skip_labels = {}
    hl = list(range(22)) + ["g"]
    CH = eval(os.environ.get("GEN_CH", "[(7,5),(5,3),(3,1)]"))
    def peek_wait(tag):
        sv = list(a.vm); a.wait_vm(tag); a.vm = sv
    def post_block(b, track):
        for i, (bi, bc) in enumerate(CH):
            if b == bc:
                l = a.newlabel("Lch")
                e(f"s_cmp_lg_u32 s{s_ok}, 0")
                e(f"s_cbranch_scc1 {l}")
                e("s_waitcnt vmcnt(0)")
                cmp_flags4(a, 252)
                e(f"s_cselect_b32 s{s_ok}, {i+1}, 0")
                a.label(l)
        for i, (bi, bc) in enumerate(CH):
            if b == bi:
                l = a.newlabel("Lci")
                e(f"s_cmp_lg_u32 s{s_ok}, 0")
                e(f"s_cbranch_scc1 {l}")
                hflag_issue(a, False)
                a.label(l)
        for i, (bi, bc) in enumerate(CH):
            if b <= bc:
                per = -(-len(hl) // (bc + 1))
                i0 = (bc - b) * per
                if hl[i0:i0+per]:
                    l = a.newlabel("Lhl")
                    e(f"s_cmp_lg_u32 s{s_ok}, {i+1}")
                    e(f"s_cbranch_scc1 {l}")
                    h_loads(a, hl[i0:i0+per], track and i == len(CH) - 1)
                    a.label(l)
    for b in range(8, -1, -1):
        S = Sreg(b)
        n0 = 2*(8 - b)
        if b < 8:
            skip_labels[b] = a.newlabel("Lskip")
            e(f"s_cmp_gt_u32 s{s_first}, {b}")
            e(f"s_cbranch_scc1 {skip_labels[b]}")
        if b > 0:
            e(f"s_mov_b64 exec, s[{s_vm}:{s_vm+1}]")
            vread(n0 + 2); vread(n0 + 3)
            e("s_mov_b64 exec, -1")
        if b < 8: softmax_block(b)
        lg.wait([("v", n0), ("v", n0+1)])
        e("s_nop 0")
        mfma(a, OACC, VROT + 4*(n0 % 4), S, "0" if b == 8 else OACC)
        mfma(a, OACC, VROT + 4*((n0+1) % 4), S + 4, OACC)
        post_block(b, True)
    e(f"s_branch {lpv}")
    for b in range(7, -1, -1):
        a.label(skip_labels[b])
        post_block(b, False)
    a.label(lpv)
    e("s_waitcnt lgkmcnt(0)")
    e("s_nop 7"); e("s_nop 3")
    e(f"v_rcp_f32 v{v_max}, v{OACC+8}")
    e("s_nop 0")
    for r in range(8):
        e(f"v_mul_f32 v{OACC+r}, v{OACC+r}, v{v_max}")
    for q in range(4):
        e(f"v_cvt_pk_bf16_f32 v{248+q}, v{OACC+2*q}, v{OACC+2*q+1}")
    e(f"buffer_store_dwordx4 v[248:251], v{v_l16}, {srd(sWS)}, s{s_oa} offen sc1")
    l = a.newlabel("Lhok")
    e(f"s_cmp_lg_u32 s{s_ok}, 0")
    e(f"s_cbranch_scc1 {l}")
    hpoll(a)
    h_loads(a, list(range(22)) + ["g"], track=False)
    a.label(l)
    stamp(a)
s_oa = 94

def compute3(a, pieces, slot_of, cnt):
    e = a.e
    work = []
    for pc in pieces:
        for u in range(2):
            if pc <= 10: af = AFreg(2*pc + u); tag = f"H{2*pc+u}"; acc = ACB; first = (pc == 0 and u == 0)
            else: af = AOreg(2*(pc-11) + u); tag = f"O{2*(pc-11)+u}"; acc = ACA; first = (pc == 11 and u == 0)
            for ct in range(2):
                work.append((slot_of[pc], u, ct, af, tag, acc + 16*ct, first))
    lg = Lg(a)
    cur = {}
    def rd(w):
        sl, u, ct, af, tag, acc, first = work[w]
        vb = v_tr3b if ct else v_tr3
        off = sl*SLOT + u*8192
        if off + 1024 > 65535:
            r = v_t5 if ct else v_t4
            if cur.get(ct) != sl:
                e(f"v_add_u32 v{r}, {sl*SLOT}, v{vb}")
                cur[ct] = sl
            vb = r; off = u*8192
        b = BF3 + ((cnt[0] + w) % 8)*4
        e(f"ds_read_b64_tr_b16 {vr(b,2)}, v{vb} offset:{off}")
        e(f"ds_read_b64_tr_b16 {vr(b+2,2)}, v{vb} offset:{off + 1024}")
        lg.add(w); lg.add(w)
    D = 4
    for w in range(min(D, len(work))): rd(w)
    for w in range(len(work)):
        if w + D < len(work): rd(w + D)
        sl, u, ct, af, tag, acc, first = work[w]
        a.wait_vm(tag)
        lg.wait([w])
        b = BF3 + ((cnt[0] + w) % 8)*4
        mfma(a, acc, b, af, "0" if first else acc)
    cnt[0] += len(work)
    lg.drain()

S3J = env('GEN_S3J', 1)
def o_loads(a, track=True):
    for n in range(8):
        a.e(f"s_add_u32 s{s_tmp}, s{s_a3o}, {n*4096}")
        ins = f"buffer_load_dwordx4 {vr(AOreg(n),4)}, v{v_l16}, {srd(sWS)}, s{s_tmp} offen sc1"
        (a.vmem(ins, f"O{n}") if track else a.e(ins))

def o_check(a):
    e = a.e
    regs = [AOreg(n) + i for n in range(8) for i in range(4)]
    e(f"v_max3_u32 v{v_t2}, v{regs[0]}, v{regs[1]}, v{regs[2]}")
    i = 3
    while i < len(regs):
        if i + 1 < len(regs):
            e(f"v_max3_u32 v{v_t2}, v{regs[i]}, v{regs[i+1]}, v{v_t2}"); i += 2
        else:
            e(f"v_max_u32 v{v_t2}, v{regs[i]}, v{v_t2}"); i += 1
    e(f"v_cmp_eq_u32 vcc, -1, v{v_t2}")
    e("s_nop 3")
    e("s_cmp_eq_u64 vcc, 0")

def stage3(a, slot_of):
    e = a.e
    a.c("================ stage 3 ================")
    D = 4
    lg = Lg(a)
    fifo = []
    cur = {}
    V0 = CFG["atv"]
    def assign(pc, sl):
        slot_of[pc] = sl
        for f in w2_ops(a, pc, sl):
            f.tag = f"Q{pc}"; fifo.append(f)
    def o_verify():
        a.wait_vm("O7")
        lp = a.newlabel("Lop"); ld = a.newlabel("Lod")
        e(f"s_mov_b32 s{s_cnt}, 0")
        a.label(lp)
        o_check(a)
        e(f"s_cbranch_scc1 {ld}")
        o_loads(a, track=False)
        e("s_waitcnt vmcnt(0)")
        e(f"s_add_u32 s{s_cnt}, s{s_cnt}, 1")
        e(f"s_cmp_lt_u32 s{s_cnt}, 100000")
        e(f"s_cbranch_scc1 {lp}")
        a.label(ld)
        stamp(a)
    def o_ops():
        ops = []
        for n in range(8):
            def f(n=n):
                a.e(f"s_add_u32 s{s_tmp}, s{s_a3o}, {n*4096}")
                a.vmem(f"buffer_load_dwordx4 {vr(AOreg(n),4)}, v{v_l16}, {srd(sWS)}, s{s_tmp} offen sc1", f"O{n}")
            f.tag = f"O{n}"
            ops.append(f)
        return ops
    syncs = {
        S3J: (["Q4", "Q5", "Q6", "Q7"], lambda: (assign(8, V0), assign(9, V0 + 1))),
        4: ([], lambda: (assign(10, slot_of[0]), assign(11, slot_of[1]), assign(12, slot_of[2]))),
        6: ([], lambda: (assign(13, slot_of[3]), assign(14, slot_of[4]), fifo.extend(o_ops()))),
        8: (["Q8", "Q9"], None),
        10: (["Q10", "Q11", "Q12"], None),
        13: (["Q13", "Q14"], None),
    }
    items = []
    for pc in range(15):
        for u in range(2):
            for ct in range(2):
                items.append((pc, u, ct))
    def rd(w):
        pc, u, ct = items[w]
        if u == 0 and ct == 0 and pc in syncs:
            tags, act = syncs[pc]
            while any(f.tag in tags for f in fifo): fifo.pop(0)()
            a.wait_vm(tags)
            e("s_barrier")
            if STAMPS2: stamp(a)
            if act: act()
        sl = slot_of[pc]
        vb = v_tr3b if ct else v_tr3
        off = sl*SLOT + u*8192
        if off + 1024 > 65535:
            r = v_t5 if ct else v_t4
            if cur.get(ct) != sl:
                e(f"v_add_u32 v{r}, {sl*SLOT}, v{vb}")
                cur[ct] = sl
            vb = r; off = u*8192
        b = BF3 + (w % 8)*4
        e(f"ds_read_b64_tr_b16 {vr(b,2)}, v{vb} offset:{off}")
        e(f"ds_read_b64_tr_b16 {vr(b+2,2)}, v{vb} offset:{off + 1024}")
        lg.add(w); lg.add(w)
    done = set(["Q4", "Q5", "Q6", "Q7"])
    for w in range(D): rd(w)
    for w in range(len(items)):
        if w + D < len(items):
            rd(w + D)
        pc, u, ct = items[w]
        if pc <= 10: af = AFreg(2*pc + u); tag = f"H{2*pc+u}"; acc = ACB; first = (pc == 0 and u == 0)
        else: af = AOreg(2*(pc-11) + u); tag = f"O{2*(pc-11)+u}"; acc = ACA; first = (pc == 11 and u == 0)
        if pc == 11 and u == 0 and ct == 0:
            while fifo: fifo.pop(0)()
            o_verify()
        a.wait_vm(tag)
        lg.wait([w])
        b = BF3 + (w % 8)*4
        mfma(a, acc + 16*ct, b, af, "0" if first else acc + 16*ct)
        if fifo: fifo.pop(0)()
        if pc >= 11:
            k = w - 44
            if k == 0:
                a.wait_vm("G")
                e(f"v_sub_f32 v{v_c2}, 1.0, v{v_g2}")
                e(f"v_cvt_pk_bf16_f32 v{v_c2}, v{v_c2}, v{v_c2}")
                e(f"v_lshlrev_b32 v{v_c2}, 16, v{v_c2}")
                e(f"v_mov_b32 v{v_c2+1}, v{v_c2}")
                e(f"v_mov_b32 v{v_g2+1}, v{v_g2}")
            elif 2 <= k < 10:
                for q in (2*(k-2), 2*(k-2)+1):
                    e(f"v_pk_mul_f32 v[{ACB+2*q}:{ACB+2*q+1}], v[{ACB+2*q}:{ACB+2*q+1}], v[{v_c2}:{v_c2+1}]")
    lg.drain()
    stamp(a)
    PS = [slot_of[p] for p in (5, 6, 7, 8)]
    e(f"s_cmp_eq_u32 s{s_rg}, 1"); e(f"s_movk_i32 s{s_tmp}, {PS[0]}"); e(f"s_cselect_b32 s{s_tmp}, {PS[1]}, s{s_tmp}")
    e(f"s_cmp_eq_u32 s{s_rg}, 2"); e(f"s_cselect_b32 s{s_tmp}, {PS[2]}, s{s_tmp}")
    e(f"s_cmp_eq_u32 s{s_rg}, 3"); e(f"s_cselect_b32 s{s_tmp}, {PS[3]}, s{s_tmp}")
    e(f"s_lshl_b32 s{s_tmp}, s{s_tmp}, 14")
    e(f"s_lshl_b32 s{s_tmp2}, s{s_cgp}, 13")
    e(f"s_add_u32 s{s_tmp}, s{s_tmp}, s{s_tmp2}")
    e(f"v_and_b32 v{v_t0}, 31, v{v_lane}")
    e(f"v_and_b32 v{v_t1}, 7, v{v_lane}")
    e(f"v_xor_b32 v{v_t1}, v{v_t1}, v{v_hi}")
    e(f"v_lshlrev_b32 v{v_t1}, 4, v{v_t1}")
    e(f"v_lshl_add_u32 v{v_t0}, v{v_t0}, 8, v{v_t1}")
    e(f"v_add_u32 v{v_t0}, s{s_tmp}, v{v_t0}")
    e("s_nop 4")
    for ct in range(2):
        for g4 in range(4):
            b0 = 16*ct + 4*g4
            for q in range(2):
                e(f"v_pk_fma_f32 v[{ACB+b0+2*q}:{ACB+b0+2*q+1}], v[{ACA+b0+2*q}:{ACA+b0+2*q+1}], v[{v_g2}:{v_g2+1}], v[{ACB+b0+2*q}:{ACB+b0+2*q+1}]")
            r = v_t2 + (g4 & 1)
            e(f"v_xor_b32 v{r}, {g4*32}, v{v_t0}")
            e(f"ds_write_b128 v{r}, {vr(ACB + b0, 4)} offset:{ct*128}")
    e(f"v_lshrrev_b32 v{v_t0}, 3, v0")
    e(f"v_and_b32 v{v_t1}, 7, v0")
    e(f"v_and_b32 v{v_t2}, 7, v{v_t0}")
    e(f"v_lshlrev_b32 v{v_t3}, 1, v{v_t1}")
    e(f"v_xor_b32 v{v_t2}, v{v_t2}, v{v_t3}")
    e(f"v_lshlrev_b32 v{v_t2}, 4, v{v_t2}")
    e(f"v_lshl_add_u32 v{v_t2}, v{v_t0}, 8, v{v_t2}")
    e(f"v_xor_b32 v{v_t3}, 16, v{v_t2}")
    e(f"v_add_u32 v{v_t4}, 0x10000, v{v_t2}")
    e(f"v_add_u32 v{v_t5}, 0x10000, v{v_t3}")
    e(f"v_add_u32 v{v_trn}, 0x20000, v{v_t2}")
    e(f"v_add_u32 v{v_trw}, 0x20000, v{v_t3}")
    e(f"v_lshlrev_b32 v{v_t0}, 10, v{v_t0}")
    e(f"v_lshl_add_u32 v{v_t0}, v{v_t1}, 4, v{v_t0}")
    e(f"s_lshl_b32 s{s_tmp}, s{s_rb3}, 16")
    e(f"s_lshl_b32 s{s_tmp2}, s{s_cb3}, 7")
    e(f"s_add_u32 s{s_tmp}, s{s_tmp}, s{s_tmp2}")
    e("s_waitcnt lgkmcnt(0)")
    e("s_barrier")
    for kq in range(4):
        off = PS[kq]*SLOT
        ra, rb_ = ((v_t2, v_t3), (v_t4, v_t5), (v_trn, v_trw))[off >> 16]
        e(f"ds_read_b128 {vr(64 + 8*kq, 4)}, v{ra} offset:{off & 0xffff}")
        e(f"ds_read_b128 {vr(68 + 8*kq, 4)}, v{rb_} offset:{off & 0xffff}")
    e("s_waitcnt lgkmcnt(4)")
    for q in range(4):
        e(f"v_pk_add_f32 v[{64+2*q}:{65+2*q}], v[{64+2*q}:{65+2*q}], v[{72+2*q}:{73+2*q}]")
    e("s_waitcnt lgkmcnt(0)")
    for q in range(4):
        e(f"v_pk_add_f32 v[{80+2*q}:{81+2*q}], v[{80+2*q}:{81+2*q}], v[{88+2*q}:{89+2*q}]")
    for q in range(4):
        e(f"v_pk_add_f32 v[{64+2*q}:{65+2*q}], v[{64+2*q}:{65+2*q}], v[{80+2*q}:{81+2*q}]")
    for q in range(4):
        e(f"v_cvt_pk_bf16_f32 v{64+q}, v{64+2*q}, v{65+2*q}")
    e(f"buffer_store_dwordx4 v[64:67], v{v_t0}, {srd(sOUT)}, s{s_tmp} offen {os.environ.get('GEN_OST','sc1').replace('_',' ')}")
    stamp(a, final=True)

def common_setup(a):
    e = a.e
    l = a.newlabel("Lcas")
    e(f"s_or_b32 s{s_nonce}, s{s_nonce}, 1")
    e(f"s_or_b32 s{s_tmp}, s{s_wv}, s2")
    e(f"s_cmp_lg_u32 s{s_tmp}, 0")
    e(f"s_cbranch_scc1 {l}")
    e(f"v_mov_b32 v{v_non}, s{s_nonce}")
    e(f"v_mov_b32 v{v_non+1}, s{s_nonce+1}")
    e(f"v_mov_b32 v{v_t4}, 0")
    e(f"s_mov_b64 s[{s_exec}:{s_exec+1}], exec")
    e("s_mov_b64 exec, 1")
    e(f"buffer_store_dwordx2 {vr(v_non,2)}, v{v_t4}, {srd(sDBG)}, 0 offen sc1")
    e(f"s_mov_b64 exec, s[{s_exec}:{s_exec+1}]")
    a.label(l)
    e(f"s_lshl_b32 s{s_tmp}, s{s_rb}, 2")
    e(f"s_add_u32 s{s_tmp}, s{s_tmp}, s{s_rg}")
    e(f"s_lshl_b32 s{s_oa}, s{s_tmp}, 15")
    e(f"s_lshl_b32 s{s_tmp2}, s{s_cg}, 1")
    e(f"s_add_u32 s{s_tmp2}, s{s_tmp2}, s{s_cgp}")
    e(f"s_lshl_b32 s{s_tmp2}, s{s_tmp2}, 10")
    e(f"s_add_u32 s{s_oa}, s{s_oa}, s{s_tmp2}")
    e(f"s_add_u32 s{s_oa}, s{s_oa}, {OF}")
    if env("GEN_SENTU", 0) == 0:
        for i in range(4): e(f"v_mov_b32 v{ACC+i}, -1")
        a.vmem(f"buffer_store_dwordx4 {vr(ACC,4)}, v{v_l16}, {srd(sWS)}, s{s_oa} offen sc1", "SENT")
    e(f"v_and_b32 v{v_t0}, 31, v{v_lane}")
    e(f"v_lshrrev_b32 v{v_hi}, 5, v{v_lane}")
    e(f"v_and_b32 v{v_t1}, 15, v{v_lane}")
    e(f"v_xor_b32 v{v_t1}, v{v_t1}, v{v_hi}")
    e(f"v_lshlrev_b32 v{v_t1}, 4, v{v_t1}")
    e(f"v_lshl_add_u32 v{v_xrd}, v{v_t0}, 8, v{v_t1}")
    e(f"s_lshl_b32 s{s_tmp}, s{s_rg}, 13")
    e(f"v_add_u32 v{v_xrd}, s{s_tmp}, v{v_xrd}")
    e(f"v_and_b32 v{v_t0}, 15, v{v_lane}")
    e(f"v_lshrrev_b32 v{v_t1}, 2, v{v_t0}")
    e(f"v_bfe_u32 v{v_t2}, v{v_lane}, 4, 1")
    e(f"v_bfe_u32 v{v_t3}, v{v_lane}, 1, 1")
    e(f"v_lshl_add_u32 v{v_t2}, v{v_t2}, 1, v{v_t3}")
    e(f"v_and_b32 v{v_t3}, 1, v{v_lane}")
    e(f"v_lshlrev_b32 v{v_t3}, 3, v{v_t3}")
    e(f"v_lshl_add_u32 v{v_t2}, v{v_t2}, 4, v{v_t3}")
    e(f"v_lshrrev_b32 v{v_t3}, 1, v{v_t1}")
    e(f"v_xor_b32 v{v_t4}, s{s_cgp}, v{v_t3}")
    e(f"v_lshl_add_u32 v{v_t4}, v{v_t4}, 6, v{v_t2}")
    e(f"v_lshl_add_u32 v{v_t5}, v{v_hi}, 3, v{v_t1}")
    e(f"v_lshl_add_u32 v{v_trn}, v{v_t5}, 7, v{v_t4}")
    e(f"s_cmp_eq_u32 s{s_cgp}, 0")
    e(f"s_movk_i32 s{s_tmp}, 192")
    e(f"s_cselect_b32 s{s_tmp}, 64, s{s_tmp}")
    e(f"s_lshl_b32 s{s_k16}, s{s_tmp}, 4")
    e(f"s_lshl_b32 s{s_tmp2}, s{s_cgp}, 12")
    e(f"v_mad_u32_u24 v{v_trw}, v{v_t5}, s{s_tmp}, v{v_t2}")
    e(f"v_add_u32 v{v_trw}, s{s_tmp2}, v{v_trw}")
    e(f"s_lshl_b32 s{s_tmp}, s{s_tmp}, 2")
    e(f"v_add_u32 v{v_omg2}, s{s_tmp}, v{v_trw}")
    e(f"s_movk_i32 s{s_tmp}, 192")
    e(f"v_mad_u32_u24 v{v_trw2}, v{v_t5}, s{s_tmp}, v{v_t2}")
    e(f"s_lshl_b32 s{s_tmp2}, s{s_cgp}, 6")
    e(f"s_add_u32 s{s_tmp2}, s{s_tmp2}, {4096 + 64}")
    e(f"v_add_u32 v{v_trw2}, s{s_tmp2}, v{v_trw2}")
    e(f"v_lshl_add_u32 v{v_t4}, v{v_t3}, 6, v{v_t2}")
    e(f"v_lshl_add_u32 v{v_t5}, v{v_hi}, 2, v{v_t1}")
    e(f"v_lshl_add_u32 v{v_tr3}, v{v_t5}, 7, v{v_t4}")
    e(f"s_lshl_b32 s{s_tmp}, s{s_rg}, 11")
    e(f"v_add_u32 v{v_tr3}, s{s_tmp}, v{v_tr3}")
    e(f"v_xor_b32 v{v_tr3b}, 64, v{v_tr3}")

def wide_setup(a):
    e = a.e
    lq = a.newlabel("Lwq"); lj = a.newlabel("Lwj")
    e(f"s_cmp_lt_u32 s{s_wv}, 2")
    e(f"s_cbranch_scc1 {lq}")
    e(f"s_mov_b32 s{sPW}, s{sW1}"); e(f"s_mov_b32 s{sPW+1}, s{sW1+1}"); e(f"s_mov_b32 s{sPW+2}, {512*1376*2}"); e(f"s_mov_b32 s{sPW+3}, 0x00020000")
    e(f"s_sub_u32 s{s_tmp}, s{s_wv}, 2")
    e(f"s_lshl_b32 s{s_tmp}, s{s_tmp}, 7")
    e(f"s_movk_i32 s{s_tmp3}, 2752")
    e(f"s_movk_i32 s{s_tmp4}, 5462")
    for t in range(2):
        e(f"v_add_u32 v{v_t0}, s{s_tmp}, v{v_lane}")
        if t: e(f"v_add_u32 v{v_t0}, 64, v{v_t0}")
        e(f"v_mul_u32_u24 v{v_t1}, s{s_tmp4}, v{v_t0}")
        e(f"v_lshrrev_b32 v{v_t1}, 16, v{v_t1}")
        e(f"v_mul_u32_u24 v{v_t2}, 12, v{v_t1}")
        e(f"v_sub_u32 v{v_t0}, v{v_t0}, v{v_t2}")
        e(f"v_lshlrev_b32 v{v_t0}, 4, v{v_t0}")
        e(f"v_mad_u32_u24 v{v_wd0+t}, v{v_t1}, s{s_tmp3}, v{v_t0}")
    e(f"s_mul_i32 s{s_wbase}, s{s_cg}, 192")
    e(f"s_cmp_eq_u32 s{s_cg}, 15")
    e(f"s_cselect_b32 s{s_wbase}, {OOB}, s{s_wbase}")
    e(f"s_mov_b32 s{s_pstep}, {64*2752}")
    e(f"s_branch {lj}")
    a.label(lq)
    e(f"s_mov_b32 s{sPW}, s{sWQ}"); e(f"s_mov_b32 s{sPW+1}, s{sWQ+1}"); e(f"s_mov_b32 s{sPW+2}, {512*1536*2}"); e(f"s_mov_b32 s{sPW+3}, 0x00020000")
    e(f"s_lshl_b32 s{s_tmp}, s{s_wv}, 5")
    e(f"s_movk_i32 s{s_tmp3}, 3072")
    e(f"v_lshrrev_b32 v{v_t1}, 2, v{v_lane}")
    e(f"v_add_u32 v{v_t1}, s{s_tmp}, v{v_t1}")
    e(f"v_and_b32 v{v_t0}, 3, v{v_lane}")
    e(f"v_lshlrev_b32 v{v_t0}, 4, v{v_t0}")
    e(f"v_mad_u32_u24 v{v_wd0}, v{v_t1}, s{s_tmp3}, v{v_t0}")
    e(f"v_add_u32 v{v_wd1}, {16*3072}, v{v_wd0}")
    e(f"s_lshl_b32 s{s_wbase}, s{s_cg}, 6")
    e(f"s_mov_b32 s{s_pstep}, {64*3072}")
    a.label(lj)

def gen():
    a = Asm()
    e = a.e
    e("s_cmp_ge_u32 s2, 256")
    e("s_cbranch_scc1 L_exit")
    stamp(a)
    e("s_load_dwordx4 s[8:11], s[0:1], 0")
    e("s_load_dwordx2 s[24:25], s[0:1], 16")
    e("s_load_dwordx4 s[16:19], s[0:1], 32")
    e("s_load_dwordx4 s[36:39], s[0:1], 48")
    e("s_load_dwordx4 s[40:43], s[0:1], 64")
    e(f"s_memrealtime s[{s_nonce}:{s_nonce+1}]")
    if env("GEN_SPIN", 0): e("s_memrealtime s[96:97]")
    e(f"v_and_b32 v{v_lane}, 63, v0")
    e(f"v_lshrrev_b32 v{v_t0}, 6, v0")
    e(f"v_lshlrev_b32 v{v_l16}, 4, v{v_lane}")
    e(f"v_readfirstlane_b32 s{s_wv}, v{v_t0}")
    e(f"s_and_b32 s{s_tmp}, s2, 7")
    e(f"s_lshr_b32 s{s_tmp2}, s2, 3")
    e(f"s_and_b32 s{s_rb}, s{s_tmp}, 1")
    e(f"s_lshl_b32 s{s_rb}, s{s_rb}, 3")
    e(f"s_and_b32 s{s_tmp3}, s{s_tmp2}, 7")
    e(f"s_add_u32 s{s_rb}, s{s_rb}, s{s_tmp3}")
    e(f"s_lshr_b32 s{s_cg}, s{s_tmp}, 1")
    e(f"s_lshl_b32 s{s_cg}, s{s_cg}, 2")
    e(f"s_lshr_b32 s{s_tmp3}, s{s_tmp2}, 3")
    e(f"s_add_u32 s{s_cg}, s{s_cg}, s{s_tmp3}")
    e(f"s_lshr_b32 s{s_p}, s{s_cg}, 1")
    e(f"s_and_b32 s{s_t}, s{s_cg}, 1")
    e(f"s_lshl_b32 s{s_rb3}, s{s_tmp}, 2")
    e(f"s_and_b32 s{s_tmp3}, s{s_tmp2}, 3")
    e(f"s_add_u32 s{s_rb3}, s{s_rb3}, s{s_tmp3}")
    e(f"s_lshr_b32 s{s_cb3}, s{s_tmp2}, 2")
    e(f"s_and_b32 s{s_rg}, s{s_wv}, 3")
    e(f"s_lshr_b32 s{s_cgp}, s{s_wv}, 2")
    e(f"s_lshl_b32 s{s_ldsw}, s{s_wv}, 11")
    e(f"s_lshl_b32 s{s_xlds}, s{s_wv}, 12")
    e(f"s_lshl_b32 s{s_xbase}, s{s_rb}, 17")
    e(f"s_lshl_b32 s{s_tmp3}, s{s_wv}, 14")
    e(f"s_add_u32 s{s_xbase}, s{s_xbase}, s{s_tmp3}")
    if STAMPS:
        e(f"s_lshl_b32 s{s_tsb}, s2, 3")
        e(f"s_add_u32 s{s_tsb}, s{s_tsb}, s{s_wv}")
        e(f"s_lshl_b32 s{s_tsb}, s{s_tsb}, 7")
        e(f"s_add_u32 s{s_tsb}, s{s_tsb}, {TS}")
    e(f"v_lshrrev_b32 v{v_t0}, 4, v{v_lane}")
    e(f"v_and_b32 v{v_t1}, 15, v{v_lane}")
    e(f"v_xor_b32 v{v_t1}, v{v_t1}, v{v_t0}")
    e(f"v_lshlrev_b32 v{v_t0}, 10, v{v_t0}")
    for t in range(4):
        e(f"v_xor_b32 v{v_t2}, {4*t}, v{v_t1}")
        e(f"v_lshl_add_u32 v{v_xo+t}, v{v_t2}, 4, v{v_t0}")
    e(f"v_lshrrev_b32 v{v_t0}, 3, v{v_lane}")
    e(f"v_and_b32 v{v_t1}, 7, v{v_lane}")
    e(f"v_lshrrev_b32 v{v_t2}, 2, v{v_lane}")
    e(f"v_and_b32 v{v_t2}, 4, v{v_t2}")
    e(f"v_xor_b32 v{v_t1}, v{v_t1}, v{v_t2}")
    e(f"v_lshlrev_b32 v{v_t1}, 4, v{v_t1}")
    e(f"s_movk_i32 s{s_tmp3}, 3072")
    e(f"v_mad_u32_u24 v{v_wq_n}, v{v_t0}, s{s_tmp3}, v{v_t1}")
    e(f"v_lshl_add_u32 v{v_w2_n}, v{v_t0}, 10, v{v_t1}")
    e(f"s_mul_i32 s{s_naroff}, s{s_wv}, {16*3072}")
    e(f"s_lshl_b32 s{s_tmp3}, s{s_p}, 7")
    e(f"s_add_u32 s{s_naroff}, s{s_naroff}, s{s_tmp3}")
    e(f"s_lshl_b32 s{s_tmp3}, s{s_t}, 10")
    e(f"s_add_u32 s{s_naroff}, s{s_naroff}, s{s_tmp3}")
    e(f"s_add_u32 s{s_naroff}, s{s_naroff}, 1024")
    e(f"s_lshl_b32 s{s_tmp3}, s{s_p}, 1")
    e(f"s_add_u32 s{s_tmp3}, s{s_tmp3}, s{s_cgp}")
    e(f"s_lshl_b32 s{s_tmp3}, s{s_tmp3}, 6")
    e(f"s_lshl_b32 s{s_tmp4}, s{s_rb}, 2")
    e(f"s_add_u32 s{s_tmp4}, s{s_tmp4}, s{s_rg}")
    e(f"s_add_u32 s{s_tmp3}, s{s_tmp3}, s{s_tmp4}")
    e(f"s_lshl_b32 s{s_st0}, s{s_tmp3}, 11")
    e(f"s_lshl_b32 s{s_tmp3}, s{s_t}, 21")
    e(f"s_add_u32 s{s_st0}, s{s_st0}, s{s_tmp3}")
    e(f"s_add_u32 s{s_st0}, s{s_st0}, {KF}")
    e(f"s_mul_i32 s{s_tmp4}, s{s_tmp4}, {HROW}")
    e(f"s_add_u32 s{s_tmp4}, s{s_tmp4}, {HF}")
    e(f"s_mul_i32 s{s_tmp3}, s{s_cg}, 3")
    e(f"s_lshl_b32 s{s_st1}, s{s_tmp3}, 11")
    e(f"s_add_u32 s{s_st1}, s{s_st1}, s{s_tmp4}")
    e(f"s_cmp_ge_u32 s{s_tmp3}, 43")
    e(f"s_cselect_b32 s{s_st1}, {OOB}, s{s_st1}")
    e(f"s_cmp_eq_u32 s{s_cgp}, 0")
    e(f"s_cselect_b32 s{s_st1}, {OOB}, s{s_st1}")
    e(f"s_add_u32 s{s_tmp3}, s{s_tmp3}, s{s_cgp}")
    e(f"s_add_u32 s{s_tmp3}, s{s_tmp3}, 1")
    e(f"s_lshl_b32 s{s_st2}, s{s_tmp3}, 11")
    e(f"s_add_u32 s{s_st2}, s{s_st2}, s{s_tmp4}")
    e(f"s_cmp_ge_u32 s{s_tmp3}, 43")
    e(f"s_cselect_b32 s{s_st2}, {OOB}, s{s_st2}")
    e(f"s_lshl_b32 s{s_w2off}, s{s_wv}, 14")
    e(f"s_lshl_b32 s{s_tmp3}, s{s_cb3}, 7")
    e(f"s_add_u32 s{s_w2off}, s{s_w2off}, s{s_tmp3}")
    e("s_waitcnt lgkmcnt(0)")
    e("s_mov_b32 s12, s10"); e("s_mov_b32 s13, s11"); e(f"s_mov_b32 s14, {512*1536*2}"); e("s_mov_b32 s15, 0x00020000")
    e(f"s_mov_b32 s10, {2048*512*2}"); e("s_mov_b32 s11, 0x00020000")
    e("s_mov_b32 s32, s38"); e("s_mov_b32 s33, s39"); e(f"s_mov_b32 s34, {2048*512*2}"); e("s_mov_b32 s35, 0x00020000")
    e("s_mov_b32 s38, 1024"); e("s_mov_b32 s39, 0x00020000")
    e(f"s_mov_b32 s{s_ldsww}, 0")
    e(f"s_mov_b32 s{s_gw}, 0")
    lg_ = a.newlabel("Lgs")
    e(f"s_cmp_lg_u32 s{s_cg}, 15")
    e(f"s_cbranch_scc1 {lg_}")
    e(f"s_cmp_lt_u32 s{s_wv}, 2")
    e(f"s_cbranch_scc1 {lg_}")
    e(f"s_mov_b32 s{s_ldsww}, 0x30000")
    e(f"s_cmp_lg_u32 s{s_wv}, 2")
    e(f"s_cbranch_scc1 {lg_}")
    e(f"s_mov_b32 s{s_gw}, 1")
    e(f"v_lshlrev_b32 v{v_t0}, 1, v{v_lane}")
    for j in range(8):
        e(f"buffer_load_ushort v{GREG+j}, v{v_t0}, {srd(sGW)}, 0 offen offset:{j*128}")
    e(f"s_movk_i32 s{s_tmp3}, 192")
    e(f"v_mul_u32_u24 v{v_g2}, s{s_tmp3}, v{v_lane}")
    a.label(lg_)
    e("s_mov_b32 s20, s18"); e("s_mov_b32 s21, s19"); e(f"s_mov_b32 s22, {1376*512*2}"); e("s_mov_b32 s23, 0x00020000")
    e(f"s_mov_b32 s18, {512*1376*2}"); e("s_mov_b32 s19, 0x00020000")
    if TOUCH in (2, 9): touch(a, (sWQ, sW1) if env('GEN_NOX',0) else (sX, sWQ, sW1), 224)
    if TOUCH == 4: touch_l2(a)
    if TOUCH == 10: touch_xcd(a)
    issue_x_quarter(a, 0)
    issue_piece(a, 0, CFG['init'][0])
    if TOUCH == 3: touch(a, (sX, sWQ, sW1), 224)
    if TOUCH == 5: touch_l2(a)
    if TOUCH == 11: touch_xcd(a)
    e(f"s_mov_b32 s26, {512*512*2}"); e("s_mov_b32 s27, 0x00020000")
    e("s_mov_b32 s28, s42"); e("s_mov_b32 s29, s43"); e(f"s_mov_b32 s30, {WS_BYTES}"); e("s_mov_b32 s31, 0x00020000")
    e("s_mov_b32 s42, 256"); e("s_mov_b32 s43, 0x00020000")
    if env("GEN_TLB", 2): tlb_warm(a, env("GEN_TLB", 2))
    if env("GEN_CPF", 0):
        e(f"s_getpc_b64 s[{s_m2}:{s_m2+1}]")
        a.label("L_pc")
        e(f"s_lshr_b32 s{s_tmp}, s2, 3")
        e(f"s_lshl_b32 s{s_tmp}, s{s_tmp}, 3")
        e(f"s_add_u32 s{s_tmp}, s{s_tmp}, s{s_wv}")
        e(f"s_lshl_b32 s{s_tmp}, s{s_tmp}, 6")
        e(f"s_load_dword s{s_cnt}, s[{s_m2}:{s_m2+1}], s{s_tmp}")
        e(f"s_lshr_b32 s{s_tmp}, s{s_tmp}, 2")
        e(f"s_and_b32 s{s_tmp}, s{s_tmp}, 0xfc0")
        e(f"s_add_u32 s{s_tmp}, s{s_tmp}, 16384")
        e(f"s_min_u32 s{s_tmp}, s{s_tmp}, L_exit-L_pc")
        e(f"s_load_dword s{s_cnt}, s[{s_m2}:{s_m2+1}], s{s_tmp}")
    if TOUCH == 9: touch(a, (sW2, sWO), 240)
    if TOUCH == 7: touch_scalar(a, "xq12o")
    if TOUCH == 8: touch_scalar(a, "xq1")
    stamp(a)
    if env("GEN_ST3",0): stamp(a)
    common_setup(a)
    wide_setup(a)
    if env("GEN_ST3",0): stamp(a)
    kv_flag_setup(a)
    lm_ = a.newlabel("Lmk")
    e(f"s_cmp_lg_u32 s{s_gw}, 0")
    e(f"s_cbranch_scc1 {lm_}")
    build_maskd(a)
    a.label(lm_)
    if env("GEN_ST3",0): stamp(a)
    e("s_barrier")
    issue_x_quarter(a, 1)
    issue_piece(a, 1, CFG['init'][1])
    e(f"s_cmp_lg_u32 s{s_t}, 0")
    e("s_cbranch_scc1 L_s1v")
    w2_slot = run_stage1(a)
    stamp(a)
    attention(a, w2_slot)
    stage3(a, w2_slot)
    if env("GEN_SPIN", 0):
        a.label("L_spin")
        a.e("s_memrealtime s[82:83]")
        a.e("s_waitcnt lgkmcnt(0)")
        a.e("s_sub_u32 s82, s82, s96")
        a.e(f"s_cmp_lt_u32 s82, {env('GEN_SPIN', 0)}")
        a.e("s_cbranch_scc1 L_spin")
    a.label("L_exit")
    a.e("s_endpgm")
    return a

def touch(a, srds, T):
    e = a.e
    e(f"s_lshl_b32 s{s_tmp}, s2, 3")
    e(f"s_add_u32 s{s_tmp}, s{s_tmp}, s{s_wv}")
    e(f"s_lshl_b32 s{s_tmp}, s{s_tmp}, 10")
    for i, sr in enumerate(srds):
        a.vmem(f"buffer_load_dwordx4 {vr(T+4*i,4)}, v{v_l16}, {srd(sr)}, s{s_tmp} offen", "TCH")

def touch_l2(a):
    e = a.e
    T = 224
    lx = a.newlabel("Ltx"); lk = a.newlabel("Ltk"); lq = a.newlabel("Ltq"); lj = a.newlabel("Ltj")
    e(f"s_lshr_b32 s{s_tmp}, s2, 3")
    e(f"s_and_b32 s{s_tmp2}, s2, 7")
    e(f"s_lshr_b32 s{s_tmp3}, s{s_tmp2}, 1")
    e(f"s_cmp_lt_u32 s{s_wv}, 4")
    e(f"s_cbranch_scc1 {lx}")
    e(f"s_cmp_eq_u32 s{s_wv}, 4")
    e(f"s_cbranch_scc1 {lk}")
    e(f"s_cmp_eq_u32 s{s_wv}, 5")
    e(f"s_cbranch_scc1 {lq}")
    e(f"s_sub_u32 s{s_tmp4}, s{s_wv}, 6")
    e(f"s_lshl_b32 s{s_tmp4}, s{s_tmp4}, 3")
    e(f"s_lshl_b32 s{s_tmp}, s{s_tmp}, 4")
    e(f"s_add_u32 s{s_tmp}, s{s_tmp}, s{s_tmp4}")
    e(f"s_mul_i32 s{s_tmp}, s{s_tmp}, 2752")
    e(f"s_mul_i32 s{s_tmp3}, s{s_tmp3}, 768")
    e(f"s_add_u32 s{s_tmp}, s{s_tmp}, s{s_tmp3}")
    e(f"v_lshrrev_b32 v{v_t0}, 3, v{v_lane}")
    e(f"s_movk_i32 s{s_tmp4}, 2752")
    e(f"v_mul_u32_u24 v{v_t0}, s{s_tmp4}, v{v_t0}")
    e(f"v_and_b32 v{v_t1}, 7, v{v_lane}")
    e(f"v_min_u32 v{v_t1}, 6, v{v_t1}")
    e(f"v_lshl_add_u32 v{v_t0}, v{v_t1}, 7, v{v_t0}")
    e(f"buffer_load_dword v{T}, v{v_t0}, {srd(sW1)}, s{s_tmp} offen")
    e(f"s_branch {lj}")
    a.label(lx)
    e(f"s_and_b32 s{s_tmp2}, s{s_tmp2}, 1")
    e(f"s_lshl_b32 s{s_tmp2}, s{s_tmp2}, 20")
    e(f"s_lshl_b32 s{s_tmp}, s{s_tmp}, 15")
    e(f"s_add_u32 s{s_tmp}, s{s_tmp}, s{s_tmp2}")
    e(f"s_lshl_b32 s{s_tmp2}, s{s_wv}, 8")
    e(f"s_add_u32 s{s_tmp}, s{s_tmp}, s{s_tmp2}")
    e(f"v_lshrrev_b32 v{v_t0}, 1, v{v_lane}")
    e(f"v_lshlrev_b32 v{v_t0}, 10, v{v_t0}")
    e(f"v_and_b32 v{v_t1}, 1, v{v_lane}")
    e(f"v_lshl_add_u32 v{v_t0}, v{v_t1}, 7, v{v_t0}")
    e(f"buffer_load_dword v{T}, v{v_t0}, {srd(sX)}, s{s_tmp} offen")
    e(f"s_branch {lj}")
    a.label(lk)
    e(f"s_mul_i32 s{s_tmp}, s{s_tmp}, {16*3072}")
    e(f"s_lshl_b32 s{s_tmp3}, s{s_tmp3}, 8")
    e(f"s_add_u32 s{s_tmp}, s{s_tmp}, s{s_tmp3}")
    e(f"s_add_u32 s{s_tmp}, s{s_tmp}, 1024")
    e(f"v_lshrrev_b32 v{v_t0}, 2, v{v_lane}")
    e(f"s_movk_i32 s{s_tmp4}, 3072")
    e(f"v_mul_u32_u24 v{v_t0}, s{s_tmp4}, v{v_t0}")
    e(f"v_and_b32 v{v_t1}, 1, v{v_lane}")
    e(f"v_lshl_add_u32 v{v_t0}, v{v_t1}, 10, v{v_t0}")
    e(f"v_bfe_u32 v{v_t1}, v{v_lane}, 1, 1")
    e(f"v_lshl_add_u32 v{v_t0}, v{v_t1}, 7, v{v_t0}")
    e(f"buffer_load_dword v{T}, v{v_t0}, {srd(sWQ)}, s{s_tmp} offen")
    e(f"s_branch {lj}")
    a.label(lq)
    e(f"s_mul_i32 s{s_tmp}, s{s_tmp}, {16*3072}")
    e(f"s_lshl_b32 s{s_tmp3}, s{s_tmp3}, 8")
    e(f"s_add_u32 s{s_tmp}, s{s_tmp}, s{s_tmp3}")
    e(f"v_bfe_u32 v{v_t0}, v{v_lane}, 1, 4")
    e(f"s_movk_i32 s{s_tmp4}, 3072")
    e(f"v_mul_u32_u24 v{v_t0}, s{s_tmp4}, v{v_t0}")
    e(f"v_and_b32 v{v_t1}, 1, v{v_lane}")
    e(f"v_lshl_add_u32 v{v_t0}, v{v_t1}, 7, v{v_t0}")
    e(f"buffer_load_dword v{T}, v{v_t0}, {srd(sWQ)}, s{s_tmp} offen")
    a.label(lj)
    a.vm.append("TCH")

def touch_l2_s3(a, part, nparts):
    e = a.e
    T = v_xo + 3
    l1 = a.newlabel("Lt3"); lj = a.newlabel("Lt3j")
    n = 64 // nparts
    mask = ((1 << n) - 1) << (n * part)
    e(f"s_lshr_b32 s{s_tmp}, s2, 3")
    e(f"s_lshl_b32 s{s_tmp}, s{s_tmp}, 3")
    e(f"s_add_u32 s{s_tmp}, s{s_tmp}, s{s_wv}")
    e(f"s_mul_i32 s{s_tmp}, s{s_tmp}, {n*128}")
    e(f"s_add_u32 s{s_tmp}, s{s_tmp}, {part * 256 * n * 128 - part*n*128}")
    e(f"v_lshlrev_b32 v{v_t2}, 7, v{v_lane}")
    e(f"s_mov_b32 exec_lo, 0x{mask & 0xffffffff:x}")
    e(f"s_mov_b32 exec_hi, 0x{mask >> 32:x}")
    lim = 1376*1024
    if (part + 1) * 256 * n * 128 <= 0x180000:
        e(f"buffer_load_dword v{T}, v{v_t2}, {srd(sW2)}, s{s_tmp} offen")
    else:
        e(f"s_sub_u32 s{s_tmp}, s{s_tmp}, 0x180000")
        e(f"buffer_load_dword v{T}, v{v_t2}, {srd(sWO)}, s{s_tmp} offen")
    e("s_mov_b64 exec, -1")
    a.vm.append("TCH")

def touch_scalar(a, which):
    e = a.e
    e(f"s_lshl_b32 s{s_tmp}, s2, 3")
    e(f"s_add_u32 s{s_tmp}, s{s_tmp}, s{s_wv}")
    tab = {"x": (sX, 8), "q": (sWQ, 6), "1": (sW1, 6), "2": (sW2, 6), "o": (sWO, 2)}
    for w in which:
        sr, n = tab[w]
        e(f"s_mul_i32 s{s_tmp2}, s{s_tmp}, {n*128}")
        for i in range(n):
            e(f"s_buffer_load_dword s{s_cnt}, {srd(sr)}, s{s_tmp2} offset:{i*128}")

def tlb_warm(a, mode):
    e = a.e
    e(f"s_lshl_b32 s{s_tmp}, s{s_wv}, 21")
    e(f"s_buffer_load_dword s{s_cnt}, {srd(sWS)}, s{s_tmp}")
    e(f"s_add_u32 s{s_tmp}, s{s_tmp}, 0x100000")
    e(f"s_buffer_load_dword s{s_cnt}, {srd(sWS)}, s{s_tmp}")
    e(f"s_lshl_b32 s{s_tmp}, s{s_wv}, 18")
    e(f"s_buffer_load_dword s{s_cnt}, {srd(sOUT)}, s{s_tmp}")
    if mode >= 2:
        e(f"s_buffer_load_dword s{s_cnt}, {srd(sW2)}, s{s_tmp}")
        e(f"s_buffer_load_dword s{s_cnt}, {srd(sWO)}, s{s_tmp}")
        e(f"s_buffer_load_dword s{s_cnt}, {srd(sDBG)}, 128")

def tlb_warm_v(a):
    e = a.e
    l = a.newlabel("Ltlb")
    e(f"s_cmp_lg_u32 s{s_wv}, 7")
    e(f"s_cbranch_scc1 {l}")
    e(f"v_lshlrev_b32 v{v_t2}, 20, v{v_lane}")
    e("s_mov_b64 exec, 0xffff")
    e(f"buffer_load_dword v{v_xo}, v{v_t2}, {srd(sWS)}, 0 offen")
    e("s_mov_b64 exec, 0xff")
    e(f"v_lshlrev_b32 v{v_t2}, 18, v{v_lane}")
    e(f"buffer_load_dword v{v_xo+1}, v{v_t2}, {srd(sOUT)}, 0 offen")
    e("s_mov_b64 exec, -1")
    a.label(l)

def touch_xcd(a):
    e = a.e
    T = 224
    e(f"s_lshr_b32 s{s_tmp}, s2, 3")
    e(f"s_lshl_b32 s{s_tmp}, s{s_tmp}, 3")
    e(f"s_add_u32 s{s_tmp}, s{s_tmp}, s{s_wv}")
    e(f"s_and_b32 s{s_tmp2}, s2, 1")
    e(f"s_bfe_u32 s{s_tmp3}, s2, 0x20001")
    e(f"s_lshl_b32 s{s_tmp4}, s{s_tmp2}, 2")
    e(f"s_add_u32 s{s_tmp4}, s{s_tmp4}, s{s_tmp3}")
    e(f"s_lshl_b32 s{s_tmp4}, s{s_tmp4}, 8")
    e(f"s_add_u32 s{s_tmp4}, s{s_tmp4}, s{s_tmp}")
    e(f"s_lshl_b32 s{s_tmp4}, s{s_tmp4}, 10")
    a.vmem(f"buffer_load_dwordx4 {vr(T,4)}, v{v_l16}, {srd(sX)}, s{s_tmp4} offen", "TCH")
    e(f"v_lshrrev_b32 v{v_t0}, 4, v{v_lane}")
    e(f"s_movk_i32 s{s_tmp4}, 3072")
    e(f"v_mul_u32_u24 v{v_t0}, s{s_tmp4}, v{v_t0}")
    e(f"v_and_b32 v{v_t1}, 15, v{v_lane}")
    e(f"v_lshl_add_u32 v{v_t0}, v{v_t1}, 4, v{v_t0}")
    e(f"s_and_b32 s{s_tmp4}, s{s_tmp}, 63")
    e(f"s_lshl_b32 s{s_cnt}, s{s_tmp2}, 6")
    e(f"s_add_u32 s{s_tmp4}, s{s_tmp4}, s{s_cnt}")
    e(f"s_mul_i32 s{s_tmp4}, s{s_tmp4}, {4*3072}")
    e(f"s_lshr_b32 s{s_cnt}, s{s_tmp}, 6")
    e(f"s_sub_u32 s{s_cnt}, 2, s{s_cnt}")
    e(f"s_lshl_b32 s{s_cnt}, s{s_cnt}, 10")
    e(f"s_add_u32 s{s_tmp4}, s{s_tmp4}, s{s_cnt}")
    e(f"s_lshl_b32 s{s_cnt}, s{s_tmp3}, 8")
    e(f"s_add_u32 s{s_tmp4}, s{s_tmp4}, s{s_cnt}")
    e(f"s_cmp_ge_u32 s{s_tmp}, 192")
    e(f"s_cselect_b32 s{s_tmp4}, {OOB}, s{s_tmp4}")
    a.vmem(f"buffer_load_dwordx4 {vr(T+4,4)}, v{v_t0}, {srd(sWQ)}, s{s_tmp4} offen", "TCH")
    e(f"s_lshl_b32 s{s_tmp4}, s{s_tmp2}, 8")
    e(f"s_add_u32 s{s_tmp4}, s{s_tmp4}, s{s_tmp}")
    e(f"s_mul_i32 s{s_tmp4}, s{s_tmp4}, 2752")
    e(f"s_mul_i32 s{s_cnt}, s{s_tmp3}, 768")
    e(f"s_add_u32 s{s_tmp4}, s{s_tmp4}, s{s_cnt}")
    e(f"s_and_b32 s{s_tmp4}, s{s_tmp4}, 0xffffff80")
    e("s_mov_b32 exec_hi, 0xffffff")
    a.vmem(f"buffer_load_dwordx4 {vr(T+8,4)}, v{v_l16}, {srd(sW1)}, s{s_tmp4} offen", "TCH")
    e("s_mov_b32 exec_hi, -1")

HEADER = open(os.path.join(os.path.dirname(os.path.abspath(__file__)), "..", "cdna_kernels", NAME + ".s.ref")).read().split("; Override launch")[0]

def emit_file(path):
    a = gen()
    s = HEADER
    s += "; @launch grid=(256,1,1) block=(512,1,1) lds=163840\n"
    s += f""".amdgcn_target "amdgcn-amd-amdhsa--gfx950"
.text
.globl {NAME}_kernel
.p2align 8
.type {NAME}_kernel,@function
{NAME}_kernel:
"""
    s += "\n".join(a.lines) + "\n"
    s += f""".section .rodata,"a"
.p2align 6
.amdhsa_kernel {NAME}_kernel
  .amdhsa_next_free_vgpr 256
  .amdhsa_next_free_sgpr {NSGPR}
  .amdhsa_accum_offset 256
  .amdhsa_group_segment_fixed_size 0
  .amdhsa_kernarg_size 80
  .amdhsa_user_sgpr_count 2
  .amdhsa_user_sgpr_kernarg_segment_ptr 1
  .amdhsa_system_sgpr_workgroup_id_x 1
.end_amdhsa_kernel
"""
    open(path, "w").write(s)

if __name__ == "__main__":
    out = sys.argv[1] if len(sys.argv) > 1 else os.path.join(os.path.dirname(os.path.abspath(__file__)), "..", "cdna_kernels", NAME + ".s")
    emit_file(out)
```
